```python
import torch

def _softmax(x, axis=-1):
    return torch.softmax(x, dim=axis)
def _gelu(x):
    return torch.nn.functional.gelu(x, approximate="tanh")
def _silu(x):
    return torch.nn.functional.silu(x)
def _sigmoid(x):
    return torch.sigmoid(x)
def _layernorm(x, axis=-1, eps=1e-5):
    m = x.mean(dim=axis, keepdim=True)
    v = x.var(dim=axis, keepdim=True, unbiased=False)
    return (x - m) / torch.sqrt(v + eps)
def _scatter_add(tgt, idx, src, axis=0):
    return tgt.clone().index_add_(axis, idx, src)
def _segment_sum(src, seg, n):
    out = torch.zeros((n,) + src.shape[1:], dtype=src.dtype)
    return out.index_add_(0, seg, src)
def _pad(x, pw):
    flat = tuple(v for pair in reversed(pw) for v in pair)
    return torch.nn.functional.pad(x, flat)

kernel_name = 'sequential_preLN__ssm_conv_s4d__mixer_token_mlp__prompt'

def setup_inputs():

    _w = (lambda a: (lambda t: t.to(torch.bfloat16) if t.is_floating_point() else t)(torch.as_tensor(a)))
    def _A_setup():
        Bsz, L, D, N = 1, 2048, 576, 128
        return {
            "u": _w((lambda *s: torch.randn(*s, dtype=torch.bfloat16) * 0.05)(Bsz, L, D)),
            "log_A_real": _w((lambda *s: torch.randn(*s, dtype=torch.bfloat16) * 6.4)(D, N) * 0.5),
            "A_imag": _w((lambda *s: torch.randn(*s, dtype=torch.bfloat16) * 0.05)(D, N) * 3.14),
            "C_real": _w((lambda *s: torch.randn(*s, dtype=torch.bfloat16) * 0.05)(D, N) / N ** 0.5),
            "C_imag": _w((lambda *s: torch.randn(*s, dtype=torch.bfloat16) * 0.05)(D, N) / N ** 0.5),
            "log_dt": _w((lambda *s: torch.randn(*s, dtype=torch.bfloat16) * 0.05)(D) * 0.5 - 4.0),
            "D_skip": _w((lambda *s: torch.randn(*s, dtype=torch.bfloat16) * 0.05)(D)),
        }
    _A_in = _A_setup()

    def _B_setup():
        B, S, D, F = 1, 2048, 576, 4608
        return {
            "x": _w((lambda *s: torch.randn(*s, dtype=torch.bfloat16) * 0.05)(B, S, D)),
            "w1": _w((lambda *s: torch.randn(*s, dtype=torch.bfloat16) * 0.4)(S, F) * (S ** -0.5)),
            "b1": _w((lambda *s: torch.randn(*s, dtype=torch.bfloat16) * 0.1)(F) * 0.02),
            "w2": _w((lambda *s: torch.randn(*s, dtype=torch.bfloat16) * 0.1)(F, S) * (F ** -0.5)),
            "b2": _w((lambda *s: torch.randn(*s, dtype=torch.bfloat16) * 0.1)(S) * 0.02),
        }
    _B_in = _B_setup()

    return {
        "A_u": _A_in["u"],
        "A_log_A_real": _A_in["log_A_real"],
        "A_A_imag": _A_in["A_imag"],
        "A_C_real": _A_in["C_real"],
        "A_C_imag": _A_in["C_imag"],
        "A_log_dt": _A_in["log_dt"],
        "A_D_skip": _A_in["D_skip"],
        "B_x": _B_in["x"],
        "B_w1": _B_in["w1"],
        "B_b1": _B_in["b1"],
        "B_w2": _B_in["w2"],
        "B_b2": _B_in["b2"],
    }

def reference(A_u, A_log_A_real, A_A_imag, A_C_real, A_C_imag, A_log_dt, A_D_skip, B_x, B_w1, B_b1, B_w2, B_b2):
    def _A_ref(u, log_A_real, A_imag, C_real, C_imag, log_dt, D_skip):
        L = u.shape[1]
        dt = torch.exp(log_dt)
        A = -torch.exp(log_A_real) + 1j * A_imag
        C = (C_real + 1j * C_imag) * dt[:, None]
        pos = (lambda x, dt: x.to(dt))(torch.arange(L), log_dt.dtype)
        P = torch.exp((A * dt[:, None])[:, :, None] * pos[None, None, :])
        K = 2.0 * torch.einsum("dn,dnl->dl", C, P).real
        L2 = 2 * L
        u_t = (lambda x, *d: x.permute(*d))(u, 0, 2, 1)
        Kf = (lambda x, *a, **k: torch.fft.rfft(x.float(), *a, **k))(K, L2)
        Uf = (lambda x, *a, **k: torch.fft.rfft(x.float(), *a, **k))(u_t, L2)
        y = (lambda x, *a, **k: torch.fft.irfft(x, *a, **k).to(torch.bfloat16))(Uf * Kf[None, :, :], L2)[:, :, :L]
        y = (lambda x, *d: x.permute(*d))(y, 0, 2, 1)
        return y + u * D_skip[None, None, :]

    def _B_ref(x, w1, b1, w2, b2):
        B, S, D = x.shape
        h = _layernorm(x, axis=-1)
        u = torch.einsum("bsd,sf->bdf", h, w1) + b1
        u = _gelu(u)
        y = torch.einsum("bdf,fs->bds", u, w2) + b2
        return (lambda x, *d: x.permute(*d))(y, 0, 2, 1)

    x = A_u
    h = x + _A_ref(_layernorm(x, axis=-1), A_log_A_real, A_A_imag, A_C_real, A_C_imag, A_log_dt, A_D_skip)
    h2 = h + _B_ref(_layernorm(h, axis=-1), B_w1, B_b1, B_w2, B_b2)
    return h2
```

```python
import re

class Asm:
    def __init__(self):
        self.lines = []
        self.uid = 0
    def i(self, s):
        for part in s.strip().split('\n'):
            part = part.strip()
            if not part: continue
            self.lines.append(('i', part))
    def __call__(self, s): self.i(s)
    def label(self, name): self.lines.append(('l', name))
    def c(self, s): self.lines.append(('c', s))
    def raw(self, s): self.lines.append(('raw', s))
    def newlabel(self, p='L'):
        self.uid += 1
        return f"{p}_{self.uid}"

_reg_re = re.compile(r'^(-?)(\|?)(abs\()?([vsa])(\d+|\[(\d+):(\d+)\])\)?\|?$')
def regs_of(tok):
    tok = tok.strip()
    if tok in ('vcc',): return [('s', 106), ('s', 107)]
    if tok == 'vcc_lo': return [('s', 106)]
    if tok == 'vcc_hi': return [('s', 107)]
    if tok == 'exec': return [('s', 126), ('s', 127)]
    if tok == 'm0': return [('s', 124)]
    m = _reg_re.match(tok)
    if not m: return []
    k = m.group(4)
    if m.group(6) is not None:
        return [(k, n) for n in range(int(m.group(6)), int(m.group(7)) + 1)]
    return [(k, int(m.group(5)))]

def split_ops(s):
    out, depth, cur = [], 0, ''
    for ch in s:
        if ch == '[' or ch == '(' : depth += 1
        if ch == ']' or ch == ')' : depth -= 1
        if ch == ',' and depth == 0:
            out.append(cur.strip()); cur = ''
        else: cur += ch
    if cur.strip(): out.append(cur.strip())
    return out

TRANS = ('v_exp_f32', 'v_log_f32', 'v_rcp_f32', 'v_rsq_f32', 'v_sqrt_f32', 'v_sin_f32', 'v_cos_f32', 'v_rcp_iflag_f32',
         'v_exp_f16','v_log_f16','v_rcp_f16','v_rsq_f16','v_sqrt_f16')
MFMA_PASSES = {
    'v_mfma_f32_16x16x32_bf16': (4, 'x'), 'v_mfma_f32_32x32x16_bf16': (8, 'x'),
    'v_mfma_f32_16x16x4_f32': (8, 's'), 'v_mfma_f32_32x32x2_f32': (16, 's'),
    'v_mfma_f32_16x16x16_bf16': (4,'x'),
}
XDL_D_TO_OTHER = {2: 5, 4: 8, 8: 12, 16: 20}
XDL_D_TO_C_OVERLAP = {2: 4, 4: 6, 8: 10, 16: 18}
SG_D_TO_OTHER = {2: 4, 4: 6, 8: 10, 16: 18}
SG_D_TO_C_OVERLAP = {2: 2, 4: 4, 8: 8, 16: 16}
SRCC_WAR = {2: 1, 4: 3, 8: 7, 16: 15}

class Ins:
    __slots__ = ('text', 'mn', 'ops', 'mods', 'cls', 'wr', 'rd', 'srcC', 'dpp', 'isvalu', 'ismfma', 'istrans', 'store_data', 'lds_dma', 'reads_sgpr_valu', 'nops')
    def __init__(self, text):
        self.text = text
        t = text.split(';')[0].strip()
        sp = t.split(None, 1)
        self.mn = sp[0]
        rest = sp[1] if len(sp) > 1 else ''
        ops = split_ops(rest)
        mods = []
        if ops:
            last = ops[-1].split()
            ops[-1] = last[0]; mods = last[1:]
        self.ops = ops; self.mods = mods
        mn = self.mn
        base = re.sub(r'_(e32|e64|dpp|sdwa)$', '', mn)
        self.mn = base
        self.wr = []; self.rd = []; self.srcC = []; self.store_data = []
        self.isvalu = False; self.ismfma = False; self.istrans = False; self.lds_dma = False
        self.dpp = any(m.startswith(('quad_perm', 'row_', 'wave_', 'half_mirror', 'row_mirror','row_half_mirror')) for m in mods) or mn.endswith('_dpp')
        self.cls = 'other'; self.nops = 1
        R = regs_of
        if base == 's_nop':
            self.cls = 'nop'; self.nops = int(ops[0], 0) + 1
        elif base.startswith('v_mfma'):
            self.cls = 'mfma'; self.ismfma = True
            self.wr = R(ops[0]); self.rd = R(ops[1]) + R(ops[2]) + R(ops[3]); self.srcC = R(ops[3])
        elif base.startswith('v_'):
            self.cls = 'valu'; self.isvalu = True
            self.istrans = base in TRANS
            if base.startswith('v_cmp'):
                self.wr = R(ops[0]);
                for o in ops[1:]: self.rd += R(o)
                if base.startswith('v_cmpx'): self.wr += R('exec')
            elif base in ('v_add_co_u32', 'v_sub_co_u32', 'v_subrev_co_u32', 'v_addc_co_u32', 'v_subb_co_u32', 'v_subbrev_co_u32', 'v_mad_u64_u32', 'v_mad_i64_i32', 'v_div_scale_f32'):
                self.wr = R(ops[0]) + R(ops[1])
                for o in ops[2:]: self.rd += R(o)
            elif base in ('v_permlane32_swap_b32', 'v_permlane16_swap_b32', 'v_swap_b32'):
                self.wr = R(ops[0]) + R(ops[1]); self.rd = R(ops[0]) + R(ops[1])
            elif base == 'v_nop':
                pass
            else:
                self.wr = R(ops[0])
                for o in ops[1:]: self.rd += R(o)
                if base in ('v_fmac_f32', 'v_pk_fmac_f16', 'v_fmac_f16', 'v_dot2c_f32_bf16', 'v_writelane_b32', 'v_mac_f32') or self.dpp:
                    self.rd += R(ops[0])
                if base == 'v_cndmask_b32' and len(ops) == 3: self.rd += R('vcc')
        elif base.startswith('ds_'):
            self.cls = 'ds'
            if base.startswith(('ds_read', 'ds_bpermute', 'ds_permute', 'ds_swizzle')) or '_rtn' in base:
                self.wr = R(ops[0])
                for o in ops[1:]: self.rd += R(o)
            else:
                for o in ops: self.rd += R(o)
        elif base.startswith(('buffer_', 'global_', 'flat_', 'scratch_')):
            self.cls = 'vmem'
            is_lds = ('lds' in mods) or ('_lds_' in base)
            self.lds_dma = is_lds
            if base.startswith(('buffer_inv','buffer_wbl2')):
                pass
            elif 'load' in base and not is_lds:
                self.wr = R(ops[0])
                for o in ops[1:]: self.rd += R(o)
            elif 'store' in base:
                for o in ops: self.rd += R(o)
                if re.search(r'dwordx[34]$', base):
                    self.store_data = R(ops[0]) if base.startswith('buffer_') else R(ops[1])
            elif 'atomic' in base:
                for o in ops: self.rd += R(o)
                if 'sc0' in mods:
                    self.wr = R(ops[0])
            else:
                for o in ops: self.rd += R(o)
            if is_lds: self.rd += R('m0')
        elif base.startswith('s_'):
            self.cls = 'salu'
            if base.startswith(('s_cmp', 's_bitcmp', 's_cbranch', 's_branch', 's_waitcnt', 's_barrier', 's_endpgm', 's_setprio', 's_sleep', 's_setpc', 's_sendmsg', 's_setreg')):
                for o in ops: self.rd += R(o)
            else:
                if ops: self.wr = R(ops[0])
                for o in ops[1:]: self.rd += R(o)
                if 'saveexec' in base: self.wr += R('exec')

def required_gap(prod, pkey, cons):
    kind, reg = pkey
    need = 0
    if kind == 'w':
        if prod.ismfma:
            passes, ty = MFMA_PASSES[prod.mn]
            if cons.ismfma:
                if reg in cons.srcC:
                    same = (cons.srcC == prod.wr) and cons.mn == prod.mn
                    if same: need = max(need, 2 if passes == 2 else 0)
                    else:
                        if ty == 'x': need = max(need, XDL_D_TO_C_OVERLAP[passes])
                        else: need = max(need, SG_D_TO_C_OVERLAP[passes])
                a_b = regs_of(cons.ops[1]) + regs_of(cons.ops[2])
                if reg in a_b:
                    need = max(need, (XDL_D_TO_OTHER if ty == 'x' else SG_D_TO_OTHER)[passes])
                if reg in cons.wr and reg not in cons.srcC:
                    need = max(need, (XDL_D_TO_OTHER if ty == 'x' else SG_D_TO_OTHER)[passes])
            else:
                if reg in cons.rd or reg in cons.wr:
                    need = max(need, (XDL_D_TO_OTHER if ty == 'x' else SG_D_TO_OTHER)[passes])
        elif prod.isvalu:
            if reg[0] in 'va':
                if cons.ismfma and reg in cons.rd: need = max(need, 2)
                if cons.isvalu and reg in cons.rd:
                    if cons.dpp: need = max(need, 2)
                    if cons.mn in ('v_readfirstlane_b32', 'v_readlane_b32'): need = max(need, 1)
                    if cons.mn.startswith('v_permlane'): need = max(need, 2)
                    if prod.istrans and not cons.istrans: need = max(need, 1)
                    if prod.istrans and cons.istrans: need = max(need, 1)
                    if any(m.startswith(('op_sel','dst_sel')) for m in prod.mods): need = max(need, 1)
                if prod.istrans and (cons.cls in ('ds','vmem')) and reg in cons.rd: need = max(need, 1)
            else:
                if reg in (('s', 126), ('s', 127)):
                    if cons.isvalu or cons.ismfma: need = max(need, 5)
                else:
                    if cons.isvalu and reg in cons.rd:
                        need = max(need, 4 if cons.mn in ('v_readlane_b32', 'v_writelane_b32') else 2)
                    if cons.cls == 'vmem' and reg in cons.rd: need = max(need, 5)
                    if cons.cls == 'salu' and reg in cons.rd: need = max(need, 1)
                    if cons.cls == 'ds' and reg in cons.rd: need = max(need, 5)
        elif prod.cls == 'salu':
            if reg == ('s', 124) and (cons.lds_dma or 'addtid' in cons.mn or cons.mn.startswith('s_movrel')): need = max(need, 1)
            if reg in (('s',126),('s',127)) and cons.ismfma: need = max(need, 1)
    elif kind == 'c':
        passes, ty = MFMA_PASSES[prod.mn]
        if ty == 'x' and cons.isvalu and reg in cons.wr: need = max(need, SRCC_WAR[passes])
    elif kind == 'sd':
        if reg in cons.wr: need = max(need, 2 if (cons.isvalu or cons.ismfma) else 1)
    return need

MAXAGE = 21
def insert_hazard_nops(lines):
    items = []
    for k, t in lines:
        if k == 'i': items.append(Ins(t))
        else: items.append((k, t))
    for rounds in range(20):
        n = len(items)
        labelpos = {it[1]: idx for idx, it in enumerate(items) if isinstance(it, tuple) and it[0] == 'l'}
        instate = [None] * (n + 1)
        ins = {}
        def join(idx, st):
            cur = instate[idx]
            if cur is None:
                instate[idx] = dict(st); return True
            ch = False
            for kk, v in st.items():
                if kk not in cur or cur[kk][0] > v[0]:
                    cur[kk] = v; ch = True
            return ch
        work = [0]; instate[0] = {}
        while work:
            idx = work.pop()
            st = dict(instate[idx])
            while idx < n:
                it = items[idx]
                if isinstance(it, tuple):
                    idx += 1
                    if not join(idx, st): break
                    st = dict(instate[idx])
                    continue
                need = 0
                for kk, (age, pr, key) in st.items():
                    r = required_gap(pr, key, it)
                    if r > age: need = max(need, r - age)
                if need > 0:
                    ins[idx] = max(ins.get(idx, 0), need)
                adv = it.nops
                nst = {}
                for kk, (age, pr, key) in st.items():
                    if age + need + adv - (adv - 1) - 1 + adv < MAXAGE + 100 and age + need + adv < MAXAGE:
                        nst[kk] = (age + need + adv, pr, key)
                for r in it.wr:
                    for kk in [kk for kk, v in nst.items() if v[2] == ('w', r)]: del nst[kk]
                if it.isvalu or it.ismfma or it.cls == 'salu':
                    for r in it.wr:
                        if it.cls == 'salu' and r not in (('s', 124), ('s', 126), ('s', 127)): continue
                        nst[(('w', r), id(it))] = (0, it, ('w', r))
                if it.ismfma:
                    for r in it.srcC: nst[(('c', r), id(it))] = (0, it, ('c', r))
                for r in it.store_data: nst[(('sd', r), id(it))] = (0, it, ('sd', r))
                st = nst
                if it.mn == 's_endpgm': break
                fall = True
                succ = []
                if it.mn == 's_branch':
                    succ = [labelpos[it.ops[0]]]; fall = False
                elif it.mn.startswith('s_cbranch'):
                    succ = [labelpos[it.ops[0]]]
                for s_ in succ:
                    if join(s_, st): work.append(s_)
                if not fall: break
                idx += 1
                if not join(idx, st): break
                st = dict(instate[idx])
        if not ins: break
        for idx in sorted(ins, reverse=True):
            need = ins[idx]
            while need > 0:
                k = min(need, 16)
                items.insert(idx, Ins(f"s_nop {k-1} ; hz")); need -= k
    else:
        raise RuntimeError("hazard pass did not converge")
    out = []
    for it in items:
        if isinstance(it, tuple): out.append(it)
        else: out.append(('i', it.text))
    return out

def render(lines):
    s = []
    for k, t in lines:
        if k == 'i': s.append('    ' + t)
        elif k == 'l': s.append(t + ':')
        elif k == 'c': s.append('    ; ' + t)
        else: s.append(t)
    return '\n'.join(s) + '\n'
```

```python
from gen import *

NS = 4
WSLOT = 16384
ASLOT = 12288
ACT0 = NS * WSLOT
HT0 = ACT0 + NS * ASLOT

def gen_gemm(a, kind, nstg, ntiles_n, name):
    kernel_head(a, name)
    P = name.upper()[:2]
    WPITCH = 9216 if kind == 1 else 4096
    NWG = 6 * ntiles_n
    per_xcd = NWG // 8
    assert NWG % 8 == 0
    ACTBASE = WS_HN if kind == 1 else WS_G
    ASTG = 32 if kind == 1 else 72
    END = f"{P}_END"; PROD = f"{P}_PROD"
    a(f"s_cmp_ge_u32 s2, {NWG}")
    a(f"s_cbranch_scc1 {END}")
    a("s_load_dwordx2 s[6:7], s[0:1], 112")
    a(f"s_load_dwordx4 s[16:19], s[0:1], {64 if kind == 1 else 80}")
    a("s_load_dwordx2 s[20:21], s[0:1], 96")
    a("s_and_b32 s3, s2, 7")
    a("s_lshr_b32 s4, s2, 3")
    a(f"s_mul_i32 s3, s3, {per_xcd}")
    a("s_add_u32 s3, s3, s4")
    a("s_mul_i32 s4, s3, 171")
    a("s_lshr_b32 s4, s4, 10")
    a("s_mul_i32 s5, s4, 6")
    a("s_sub_u32 s5, s3, s5")
    a("v_and_b32 v1, 63, v0")
    a("v_lshrrev_b32 v2, 6, v0")
    a("v_readfirstlane_b32 s27, v2")
    a("v_lshrrev_b32 v3, 4, v1")
    a("s_waitcnt lgkmcnt(0)")
    srd(a, 8, 16, 17, 2048 * 4608 * 2)
    srd(a, 12, 6, 7, WS_END)
    a("s_cmp_ge_u32 s27, 4")
    a(f"s_cbranch_scc1 {PROD}")

    a("s_lshr_b32 s28, s27, 1")
    a("s_and_b32 s29, s27, 1")
    a("v_bfe_u32 v8, v1, 2, 2")
    a("v_and_b32 v9, 3, v1")
    a("v_and_b32 v10, 1, v3")
    a("v_lshl_add_u32 v10, v10, 2, v8")
    a("s_lshl_b32 s30, s28, 2")
    a("v_xor_b32 v10, s30, v10")
    a(f"v_lshl_add_u32 v11, v3, {3 if kind == 1 else 2}, v8")
    a("v_lshlrev_b32 v11, 8, v11")
    a("v_lshl_add_u32 v11, v9, 3, v11")
    for jj in range(4):
        a(f"v_xor_b32 v12, {jj}, v10")
        a(f"v_lshl_add_u32 v{4+jj}, v12, 5, v11")
    HOFF = 1024 if kind == 1 else 4096
    a("s_mul_i32 s30, s29, 3072")
    a(f"s_add_u32 s30, s30, {ACT0}")
    a("v_lshlrev_b32 v8, 4, v1")
    a("v_add_u32 v8, s30, v8")
    srd(a, 16, 18, 19, (4608 if kind == 1 else 2048) * 2)
    a("s_lshl_b32 s30, s4, 8")
    a("s_lshl_b32 s31, s28, 7")
    a("s_add_u32 s30, s30, s31")
    if kind == 1:
        a("v_lshlrev_b32 v9, 3, v3")
        for jj in range(4):
            a(f"buffer_load_dwordx2 v[{16+2*jj}:{17+2*jj}], v9, s[16:19], s30 offen offset:{32*jj}")
    else:
        a("v_and_b32 v9, 15, v1")
        a("v_lshlrev_b32 v9, 1, v9")
        for jj in range(4):
            a(f"buffer_load_ushort v{16+jj}, v9, s[16:19], s30 offen offset:{32*jj}")
    ACC = 128
    FA = [32, 64]
    for r in range(48): a(f"v_mov_b32 v{ACC+r}, 0")

    def reads(slot, kb, st):
        base = FA[st]
        out = []
        def wr(jj):
            return [f"ds_read_b64_tr_b16 v[{base+4*jj+2*h}:{base+4*jj+2*h+1}], v{4+jj} offset:{slot*WSLOT + kb*8192 + h*HOFF}" for h in range(2)]
        def ar(dd):
            return [f"ds_read_b128 v[{base+16+4*dd}:{base+16+4*dd+3}], v8 offset:{slot*ASLOT + kb*6144 + dd*1024}"]
        out += wr(0) + ar(0) + ar(1) + ar(2) + wr(1) + wr(2) + wr(3)
        return out
    def mfmas(st):
        base = FA[st]
        out = []
        for jj in range(4):
            for dd in range(3):
                acc = ACC + 4 * (jj * 3 + dd)
                wf_ = f"v[{base+4*jj}:{base+4*jj+3}]"; af_ = f"v[{base+16+4*dd}:{base+16+4*dd+3}]"
                if kind == 1:
                    out.append(f"v_mfma_f32_16x16x32_bf16 v[{acc}:{acc+3}], {wf_}, {af_}, v[{acc}:{acc+3}]")
                else:
                    out.append(f"v_mfma_f32_16x16x32_bf16 v[{acc}:{acc+3}], {af_}, {wf_}, v[{acc}:{acc+3}]")
        return out
    def half(st, rd):
        m = mfmas(st)
        rd = list(rd)
        for i, ins in enumerate(m):
            a(ins)
            for _ in range(2):
                if rd: a(rd.pop(0))
    def stage(slot, last):
        a("s_waitcnt lgkmcnt(0)")
        half(0, reads(slot, 1, 1))
        if not last:
            a("s_waitcnt lgkmcnt(0)")
            a("s_barrier")
            half(1, reads((slot + 1) % NS, 0, 0))
        else:
            a("s_waitcnt lgkmcnt(0)")
            half(1, [])
    a("s_barrier")
    for r in reads(0, 0, 0): a(r)
    assert nstg % NS == 0
    nloop = nstg // NS - 1
    a(f"s_movk_i32 s31, {nloop}")
    a.label(f"{P}_CLOOP")
    for s in range(NS): stage(s, False)
    a("s_sub_u32 s31, s31, 1")
    a("s_cmp_lg_u32 s31, 0")
    a(f"s_cbranch_scc1 {P}_CLOOP")
    for s in range(NS): stage(s, s == NS - 1)

    if kind == 1:
        a("s_waitcnt vmcnt(0)")
        for jj in range(4):
            a(f"v_lshlrev_b32 v{96+4*jj}, 16, v{16+2*jj}")
            a(f"v_and_b32 v{97+4*jj}, 0xffff0000, v{16+2*jj}")
            a(f"v_lshlrev_b32 v{98+4*jj}, 16, v{17+2*jj}")
            a(f"v_and_b32 v{99+4*jj}, 0xffff0000, v{17+2*jj}")
        import math
        c0 = -2.0 * math.sqrt(2.0 / math.pi) * 1.4426950408889634
        c1 = c0 * 0.044715
        a(f"s_mov_b32 s32, {fhex(c0)}"); a(f"s_mov_b32 s33, {fhex(c0)}")
        a(f"s_mov_b32 s34, {fhex(c1)}"); a(f"s_mov_b32 s35, {fhex(c1)}")
        a(f"s_mov_b32 s36, {fhex(1.0)}"); a(f"s_mov_b32 s37, {fhex(1.0)}")
        a("v_mov_b32 v30, s32"); a("v_mov_b32 v31, s32")
        a("s_mul_i32 s38, s5, 72")
        a("s_lshl_b32 s39, s4, 1")
        a("s_add_u32 s38, s38, s39")
        a("s_add_u32 s38, s38, s28")
        a("s_mul_i32 s38, s38, 12288")
        a("s_mul_i32 s39, s29, 3072")
        a("s_add_u32 s38, s38, s39")
        a(f"s_add_u32 s38, s38, {WS_G}")
        a("v_lshlrev_b32 v9, 4, v1")
        a("s_add_u32 s39, s38, 6144")
        for kb in range(2):
            for dd in range(3):
                T = 32
                for t in range(2):
                    jj = 2 * kb + t
                    acc = ACC + 4 * (jj * 3 + dd)
                    for p in range(2):
                        x = T + 8 * t + 4 * p
                        a(f"v_cvt_pk_bf16_f32 v{x+2}, v{acc+2*p}, v{acc+2*p+1}")
                        a(f"v_lshlrev_b32 v{x}, 16, v{x+2}")
                        a(f"v_and_b32 v{x+1}, 0xffff0000, v{x+2}")
                        a(f"v_pk_add_f32 v[{x}:{x+1}], v[{x}:{x+1}], v[{96+4*jj+2*p}:{97+4*jj+2*p}]")
                        a(f"v_cvt_pk_bf16_f32 v{x+2}, v{x}, v{x+1}")
                        a(f"v_lshlrev_b32 v{x}, 16, v{x+2}")
                        a(f"v_and_b32 v{x+1}, 0xffff0000, v{x+2}")
                    for p in range(2):
                        x = T + 8 * t + 4 * p
                        a(f"v_pk_mul_f32 v[{x+2}:{x+3}], v[{x}:{x+1}], v[{x}:{x+1}]")
                        a(f"v_pk_fma_f32 v[{x+2}:{x+3}], v[{x+2}:{x+3}], s[34:35], v[30:31]")
                        a(f"v_pk_mul_f32 v[{x+2}:{x+3}], v[{x+2}:{x+3}], v[{x}:{x+1}]")
                    for p in range(2):
                        x = T + 8 * t + 4 * p
                        a(f"v_exp_f32 v{x+2}, v{x+2}")
                        a(f"v_exp_f32 v{x+3}, v{x+3}")
                    for p in range(2):
                        x = T + 8 * t + 4 * p
                        a(f"v_pk_add_f32 v[{x+2}:{x+3}], v[{x+2}:{x+3}], s[36:37]")
                    for p in range(2):
                        x = T + 8 * t + 4 * p
                        a(f"v_rcp_f32 v{x+2}, v{x+2}")
                        a(f"v_rcp_f32 v{x+3}, v{x+3}")
                    O = 112 + 4 * ((kb * 3 + dd) % 2)
                    for p in range(2):
                        x = T + 8 * t + 4 * p
                        a(f"v_pk_mul_f32 v[{x}:{x+1}], v[{x}:{x+1}], v[{x+2}:{x+3}]")
                        a(f"v_cvt_pk_bf16_f32 v{O+2*t+p}, v{x}, v{x+1}")
                a(f"buffer_store_dwordx4 v[{O}:{O+3}], v9, s[12:15], s{38+kb} offen offset:{1024*dd}")
    else:
        a("s_waitcnt vmcnt(0)")
        for jj in range(4): a(f"v_lshlrev_b32 v{16+jj}, 16, v{16+jj}")
        a("s_mul_i32 s30, s29, 48*256")
        a(f"s_add_u32 s30, s30, {HT0}")
        for jj in range(4): a(f"v_add_u32 v{4+jj}, s30, v{4+jj}")
        for jj in range(4):
            for dd in range(3):
                r = 32 + 2 * (jj * 3 + dd)
                a(f"ds_read_b64_tr_b16 v[{r}:{r+1}], v{4+jj} offset:{dd*16*256}")
        srd(a, 16, 20, 21, 2048 * 576 * 2)
        a("v_and_b32 v9, 15, v1")
        a("s_movk_i32 s30, 1152")
        a("v_mul_lo_u32 v9, v9, s30")
        a("v_lshl_add_u32 v9, v3, 3, v9")
        a("s_lshl_b32 s30, s4, 7")
        a("s_lshl_b32 s31, s28, 6")
        a("s_add_u32 s30, s30, s31")
        a("s_mul_i32 s30, s30, 1152")
        a("s_mul_i32 s31, s5, 192")
        a("s_add_u32 s30, s30, s31")
        a("s_mul_i32 s31, s29, 96")
        a("s_add_u32 s30, s30, s31")
        a("s_waitcnt lgkmcnt(0)")
        for jj in range(4):
            for dd in range(3):
                acc = ACC + 4 * (jj * 3 + dd)
                hr = 32 + 2 * (jj * 3 + dd)
                O = 64 + 2 * ((jj * 3 + dd) % 4)
                for p in range(2):
                    x = 80 + 4 * p
                    a(f"v_cvt_pk_bf16_f32 v{x+2}, v{acc+2*p}, v{acc+2*p+1}")
                    a(f"v_lshlrev_b32 v{x}, 16, v{x+2}")
                    a(f"v_and_b32 v{x+1}, 0xffff0000, v{x+2}")
                    a(f"v_add_f32 v{x}, v{x}, v{16+jj}")
                    a(f"v_add_f32 v{x+1}, v{x+1}, v{16+jj}")
                    a(f"v_cvt_pk_bf16_f32 v{x+2}, v{x}, v{x+1}")
                    a(f"v_lshlrev_b32 v{x}, 16, v{x+2}")
                    a(f"v_and_b32 v{x+1}, 0xffff0000, v{x+2}")
                    a(f"v_lshlrev_b32 v{x+2}, 16, v{hr+p}")
                    a(f"v_and_b32 v{x+3}, 0xffff0000, v{hr+p}")
                    a(f"v_add_f32 v{x}, v{x}, v{x+2}")
                    a(f"v_add_f32 v{x+1}, v{x+1}, v{x+3}")
                    a(f"v_cvt_pk_bf16_f32 v{O+p}, v{x}, v{x+1}")
                a(f"buffer_store_dwordx2 v[{O}:{O+1}], v9, s[16:19], s30 offen offset:{32*dd}")
            if jj < 3: a(f"s_add_u32 s30, s30, {16*1152}")
    a(f"s_branch {END}")

    a.label(PROD)
    a("s_sub_u32 s28, s27, 4")
    a("v_and_b32 v4, 15, v1")
    a("v_lshrrev_b32 v5, 1, v4")
    a("v_and_b32 v4, 1, v4")
    a("s_lshl_b32 s29, s28, 4")
    a("v_add_u32 v6, s29, v3")
    a(f"s_movk_i32 s30, {WPITCH}")
    a("v_mul_lo_u32 v6, v6, s30")
    a("v_lshl_add_u32 v6, v4, 4, v6")
    for q in range(4):
        hi = (q >> 1) if kind == 1 else (q & 1)
        a(f"v_or_b32 v7, {hi << 2}, v3")
        a("v_xor_b32 v7, v7, v5")
        a(f"v_lshl_add_u32 v{10+q}, v7, 5, v6")
        if q: a(f"v_add_u32 v{10+q}, {q*(4*WPITCH - 1024)}, v{10+q}")
    a("v_lshlrev_b32 v14, 4, v1")
    a("s_mul_i32 s30, s28, 3072")
    a("v_add_u32 v14, s30, v14")
    a("s_lshl_b32 s32, s4, 8")
    a(f"s_mul_i32 s33, s5, {ASTG*ASLOT}")
    a(f"s_add_u32 s33, s33, {ACTBASE}")
    for s in range(NS):
        a("s_lshl_b32 s30, s28, 12")
        a(f"s_add_u32 s{40+s}, s30, {s*WSLOT}")
        a("s_mul_i32 s30, s28, 3072")
        a(f"s_add_u32 s{48+s}, s30, {ACT0 + s*ASLOT}")
    npre = 0
    if kind == 2:
        a("s_mul_i32 s29, s28, 24")
        a("v_add_u32 v6, s29, v3")
        a("v_lshlrev_b32 v15, 12, v6")
        a("v_lshl_add_u32 v15, v4, 4, v15")
        a("s_mul_i32 s30, s5, 96*4096")
        a("s_lshl_b32 s31, s4, 8")
        a("s_add_u32 s30, s30, s31")
        a(f"s_add_u32 s30, s30, {WS_HT}")
        a("s_mul_i32 s31, s28, 6144")
        a(f"s_add_u32 s31, s31, {HT0}")
        for i in range(6):
            a(f"v_or_b32 v7, {(i & 1) << 2}, v3")
            a("v_xor_b32 v7, v7, v5")
            a(f"v_lshl_add_u32 v16, v7, 5, v15")
            a(f"s_add_u32 s34, s31, {1024*i}")
            a("s_mov_b32 m0, s34")
            a(f"s_add_u32 s35, s30, {i*4*4096}")
            a("buffer_load_dwordx4 v16, s[12:15], s35 offen lds")
    def issue(slot):
        a(f"s_mov_b32 m0, s{40+slot}")
        for q in range(4):
            a(f"buffer_load_dwordx4 v{10+q}, s[8:11], s32 offen offset:{1024*q} lds")
        a(f"s_mov_b32 m0, s{48+slot}")
        for q in range(3):
            a(f"buffer_load_dwordx4 v14, s[12:15], s33 offen offset:{1024*q} lds")
        a(f"s_add_u32 s32, s32, {64*WPITCH}")
        a(f"s_add_u32 s33, s33, {ASLOT}")
    for s in range(NS): issue(s)
    a(f"s_waitcnt vmcnt({(NS-1)*7})")
    a("s_barrier")
    a(f"s_movk_i32 s31, {nloop}")
    a.label(f"{P}_PLOOP")
    for s in range(NS):
        a(f"s_waitcnt vmcnt({(NS-2)*7})")
        a("s_barrier")
        issue(s)
    a("s_sub_u32 s31, s31, 1")
    a("s_cmp_lg_u32 s31, 0")
    a(f"s_cbranch_scc1 {P}_PLOOP")
    for s in range(NS - 1):
        a(f"s_waitcnt vmcnt({(NS-2-s)*7})")
        a("s_barrier")
    a.label(END)
    a("s_endpgm")
    return name, 176, HT0 + (24576 if kind == 2 else 0)

def gen_k4(a): return gen_gemm(a, 1, 32, 36, "k4_kernel")
def gen_k5(a): return gen_gemm(a, 2, 72, 16, "k5_kernel")
```

```python
from gen import *

def gen_k2(a):
    name = "k2_kernel"
    kernel_head(a, name)
    CS = 4160
    UPAD = 8 * CS
    UOFF = UPAD + 512
    a("s_cmp_ge_u32 s2, 576")
    a("s_cbranch_scc1 K2_END")
    a("s_load_dwordx2 s[6:7], s[0:1], 112")
    a("s_load_dwordx2 s[4:5], s[0:1], 48")
    a("v_and_b32 v1, 63, v0")
    a("v_lshrrev_b32 v2, 6, v0")
    a("v_readfirstlane_b32 s27, v2")
    a("v_lshrrev_b32 v3, 4, v1")
    a("v_and_b32 v4, 15, v1")
    a("v_lshlrev_b32 v5, 4, v1")
    a("s_waitcnt lgkmcnt(0)")
    srd(a, 8, 6, 7, WS_HN)
    srd(a, 12, 4, 5, D * 2)
    a("s_lshl_b32 s28, s27, 2")
    a("s_sub_u32 s28, 12, s28")
    a("v_add_u32 v6, s28, v5")
    a(f"v_add_u32 v7, {ROFF}, v6")
    a(f"s_mul_i32 s29, s2, {RSTRIDE}")
    a(f"s_add_u32 s29, s29, {WS_R}")
    a(f"s_mul_i32 s30, s27, {2*CS}")
    a("s_mov_b32 m0, s30")
    for q in range(4):
        a(f"buffer_load_dwordx4 v7, s[8:11], s29 offen offset:{1024*q} lds")
    a(f"s_add_u32 s30, s30, {CS}")
    a("s_mov_b32 m0, s30")
    for q in range(4):
        a(f"buffer_load_dwordx4 v6, s[8:11], s29 offen offset:{1024*q} lds")
    a("s_lshl_b32 s31, s27, 10")
    a(f"s_add_u32 s30, s31, {UOFF}")
    a("s_mov_b32 m0, s30")
    a("s_lshl_b32 s32, s2, 12")
    a("s_add_u32 s33, s32, s31")
    a(f"s_add_u32 s33, s33, {WS_UT}")
    a("buffer_load_dwordx4 v5, s[8:11], s33 offen lds")
    a("v_lshlrev_b32 v8, 5, v4")
    a("v_lshl_add_u32 v8, v3, 3, v8")
    a("s_lshl_b32 s34, s27, 10")
    a("s_add_u32 s34, s34, s32")
    a(f"s_add_u32 s35, s34, {WS_XT}")
    a("buffer_load_dwordx2 v[10:11], v8, s[8:11], s35 offen")
    a("buffer_load_dwordx2 v[12:13], v8, s[8:11], s35 offen offset:512")
    a("s_lshl_b32 s36, s2, 1")
    a("v_mov_b32 v9, s36")
    a("buffer_load_ushort v14, v9, s[12:15], 0 offen")
    a("v_lshrrev_b32 v15, 2, v1")
    a(f"s_movk_i32 s37, {CS}")
    a("v_mul_lo_u32 v15, v15, s37")
    a("v_and_b32 v16, 3, v1")
    a("v_lshl_add_u32 v15, v16, 4, v15")
    a("v_add_u32 v15, 4096, v15")
    a("v_subrev_u32 v16, 32, v1")
    a("v_lshlrev_b32 v16, 4, v16")
    a(f"v_add_u32 v16, {UPAD}, v16")
    a("v_cmp_gt_u32 vcc, 32, v1")
    a("v_cndmask_b32 v15, v16, v15, vcc")
    for r in range(4): a(f"v_mov_b32 v{16+r}, 0")
    a("ds_write_b128 v15, v[16:19]")
    a("v_lshlrev_b32 v20, 5, v4")
    a("v_lshl_add_u32 v20, v3, 4, v20")
    a("s_lshl_b32 s37, s27, 6")
    a(f"s_sub_u32 s38, {UOFF-288}, s37")
    a("v_add_u32 v20, s38, v20")
    a("v_and_b32 v21, 7, v4")
    a(f"s_movk_i32 s39, {CS}")
    a("v_mul_lo_u32 v21, v21, s39")
    a("v_lshl_add_u32 v21, v3, 4, v21")
    a("v_lshrrev_b32 v22, 3, v4")
    a("v_lshlrev_b32 v22, 4, v22")
    a("v_sub_u32 v21, v21, v22")
    a("s_sub_u32 s38, 208, s37")
    a("v_add_u32 v21, s38, v21")
    ACC = 160
    for r in range(32): a(f"v_mov_b32 v{ACC+r}, 0")
    a("s_waitcnt vmcnt(0) lgkmcnt(0)")
    a("s_barrier")
    BF = 32
    for z in range(16):
        a(f"ds_read_b128 v[{BF+4*z}:{BF+4*z+3}], v20 offset:{256*z}")
    AF = 96
    for i in range(16):
        a(f"ds_read_b128 v[{AF+4*i}:{AF+4*i+3}], v21 offset:{256*(15-i)}")
    for i in range(16):
        a(f"s_waitcnt lgkmcnt({min(15, 15-i)})")
        for t in range(i >> 1, 8):
            z = 2 * t - i
            if z < -1: continue
            a(f"v_mfma_f32_16x16x32_bf16 v[{ACC+4*t}:{ACC+4*t+3}], v[{AF+4*i}:{AF+4*i+3}], v[{BF+4*(z+1)}:{BF+4*(z+1)+3}], v[{ACC+4*t}:{ACC+4*t+3}]")
    a("s_barrier")
    a("s_lshl_b32 s37, s27, 13")
    a("v_add_u32 v22, s37, v5")
    for w in range(4):
        lab = a.newlabel("K2_W")
        a(f"s_cmp_eq_u32 s27, {w}")
        a(f"s_cbranch_scc1 {lab}")
        for t in (2*w, 2*w+1):
            a(f"ds_write_b128 v22, v[{ACC+4*t}:{ACC+4*t+3}] offset:{1024*t}")
        a.label(lab)
    for w in range(4):
        lab = a.newlabel("K2_M")
        a(f"s_cmp_lg_u32 s27, {w}")
        a(f"s_cbranch_scc1 {lab}")
        for r in range(8): a(f"v_mov_b32 v{24+r}, v{ACC+8*w+r}")
        a.label(lab)
    a("s_waitcnt lgkmcnt(0)")
    a("s_barrier")
    a("s_lshl_b32 s37, s27, 11")
    a("v_add_u32 v22, s37, v5")
    for k in range(1, 4):
        a(f"s_add_u32 s38, s27, {k}")
        a("s_and_b32 s38, s38, 3")
        a("s_lshl_b32 s38, s38, 13")
        a(f"v_add_u32 v23, s38, v22")
        a(f"ds_read_b128 v[{32+8*(k-1)}:{35+8*(k-1)}], v23")
        a(f"ds_read_b128 v[{36+8*(k-1)}:{39+8*(k-1)}], v23 offset:1024")
    a("s_lshl_b32 s37, s27, 10")
    a(f"s_add_u32 s37, s37, {UOFF}")
    a("v_add_u32 v23, s37, v8")
    a("ds_read_b64 v[56:57], v23")
    a("ds_read_b64 v[58:59], v23 offset:512")
    a("v_lshlrev_b32 v14, 16, v14")
    a("s_waitcnt lgkmcnt(0)")
    for r in range(8):
        a(f"v_add_f32 v{24+r}, v{24+r}, v{32+r}")
        a(f"v_add_f32 v{40+r}, v{40+r}, v{48+r}")
        a(f"v_add_f32 v{24+r}, v{24+r}, v{40+r}")
    for tt in range(2):
        y = 24 + 4 * tt; u = 56 + 2 * tt; x = 10 + 2 * tt
        a(f"v_cvt_pk_bf16_f32 v60, v{y}, v{y+1}")
        a(f"v_cvt_pk_bf16_f32 v61, v{y+2}, v{y+3}")
        a(f"v_lshlrev_b32 v62, 16, v{u}")
        a(f"v_and_b32 v63, 0xffff0000, v{u}")
        a(f"v_lshlrev_b32 v64, 16, v{u+1}")
        a(f"v_and_b32 v65, 0xffff0000, v{u+1}")
        for k in range(4): a(f"v_mul_f32 v{62+k}, v{62+k}, v14")
        a(f"v_cvt_pk_bf16_f32 v66, v62, v63")
        a(f"v_cvt_pk_bf16_f32 v67, v64, v65")
        for k in range(2):
            a(f"v_lshlrev_b32 v62, 16, v{60+k}")
            a(f"v_lshlrev_b32 v63, 16, v{66+k}")
            a(f"v_and_b32 v64, 0xffff0000, v{60+k}")
            a(f"v_and_b32 v65, 0xffff0000, v{66+k}")
            a(f"v_add_f32 v62, v62, v63")
            a(f"v_add_f32 v64, v64, v65")
            a(f"v_cvt_pk_bf16_f32 v{68+k}, v62, v64")
            a(f"v_lshlrev_b32 v62, 16, v{68+k}")
            a(f"v_lshlrev_b32 v63, 16, v{x+k}")
            a(f"v_and_b32 v64, 0xffff0000, v{68+k}")
            a(f"v_and_b32 v65, 0xffff0000, v{x+k}")
            a(f"v_add_f32 v62, v62, v63")
            a(f"v_add_f32 v64, v64, v65")
            a(f"v_cvt_pk_bf16_f32 v{70+2*tt+k}, v62, v64")
    a(f"s_add_u32 s35, s34, {WS_HT}")
    a("buffer_store_dwordx2 v[70:71], v8, s[8:11], s35 offen")
    a("buffer_store_dwordx2 v[72:73], v8, s[8:11], s35 offen offset:512")
    a.label("K2_END")
    a("s_endpgm")
    return name, 192, UOFF + 4096

def gen_k3(a):
    name = "k3_kernel"
    kernel_head(a, name)
    a("s_cmp_ge_u32 s2, 64")
    a("s_cbranch_scc1 K3_END")
    a("s_load_dwordx2 s[6:7], s[0:1], 112")
    a("v_and_b32 v1, 3, v0")
    a("v_lshrrev_b32 v2, 2, v0")
    a("v_lshrrev_b32 v3, 6, v0")
    a("v_readfirstlane_b32 s27, v3")
    a("v_lshlrev_b32 v4, 12, v2")
    a("v_lshl_add_u32 v4, v1, 4, v4")
    a("s_lshl_b32 s28, s2, 6")
    a(f"s_add_u32 s28, s28, {WS_HT}")
    a("s_waitcnt lgkmcnt(0)")
    srd(a, 8, 6, 7, WS_G)
    for i in range(9):
        a(f"s_add_u32 s29, s28, {i*64*4096}")
        a(f"buffer_load_dwordx4 v[{10+4*i}:{13+4*i}], v4, s[8:11], s29 offen")
    a(f"s_mov_b32 s26, {fhex(1.0/576)}")
    a("s_waitcnt vmcnt(0)")
    X = 50
    for i in range(9):
        for k in range(4):
            a(f"v_lshlrev_b32 v{X+8*i+2*k}, 16, v{10+4*i+k}")
            a(f"v_and_b32 v{X+8*i+2*k+1}, 0xffff0000, v{10+4*i+k}")
    S = 124
    for e in range(8):
        a(f"v_add_f32 v{S+e}, v{X+e}, v{X+8+e}")
    for i in range(2, 9):
        for e in range(8):
            a(f"v_add_f32 v{S+e}, v{S+e}, v{X+8*i+e}")
    def reduce_all(tagoff):
        for e in range(8):
            a(f"v_add_f32_dpp v{S+e}, v{S+e}, v{S+e} row_ror:4 row_mask:0xf bank_mask:0xf")
        for e in range(8):
            a(f"v_add_f32_dpp v{S+e}, v{S+e}, v{S+e} row_ror:8 row_mask:0xf bank_mask:0xf")
        a("v_lshrrev_b32 v5, 4, v0")
        a("v_lshlrev_b32 v5, 7, v5")
        a("v_lshl_add_u32 v5, v1, 5, v5")
        a(f"ds_write_b128 v5, v[{S}:{S+3}] offset:{tagoff}")
        a(f"ds_write_b128 v5, v[{S+4}:{S+7}] offset:{tagoff+16}")
        a("s_waitcnt lgkmcnt(0)")
        a("s_barrier")
        a("v_lshlrev_b32 v5, 5, v1")
        T = 132
        for rr in range(0, 16, 2):
            a(f"ds_read_b128 v[{T}:{T+3}], v5 offset:{tagoff+128*rr}")
            a(f"ds_read_b128 v[{T+4}:{T+7}], v5 offset:{tagoff+128*rr+16}")
            a(f"ds_read_b128 v[{T+8}:{T+11}], v5 offset:{tagoff+128*(rr+1)}")
            a(f"ds_read_b128 v[{T+12}:{T+15}], v5 offset:{tagoff+128*(rr+1)+16}")
            a("s_waitcnt lgkmcnt(0)")
            for e in range(8):
                if rr == 0: a(f"v_add_f32 v{S+e}, v{T+e}, v{T+8+e}")
                else:
                    a(f"v_add_f32 v{T+e}, v{T+e}, v{T+8+e}")
                    a(f"v_add_f32 v{S+e}, v{S+e}, v{T+e}")
    reduce_all(0)
    M = 148
    for e in range(8): a(f"v_mul_f32 v{M+e}, s26, v{S+e}")
    for e in range(8):
        a(f"v_sub_f32 v5, v{X+e}, v{M+e}")
        a(f"v_mul_f32 v{S+e}, v5, v5")
    for i in range(1, 9):
        for e in range(8):
            a(f"v_sub_f32 v{132+e}, v{X+8*i+e}, v{M+e}")
        for e in range(8):
            a(f"v_fmac_f32 v{S+e}, v{132+e}, v{132+e}")
    reduce_all(2048)
    for e in range(8):
        a(f"v_mul_f32 v{S+e}, s26, v{S+e}")
        bf16_round(a, M + e, M + e)
        bf16_round(a, S + e, S + e)
        a(f"v_add_f32 v{S+e}, {fhex(1e-5)}, v{S+e}")
        bf16_round(a, S + e, S + e)
        a(f"v_sqrt_f32 v{S+e}, v{S+e}")
        bf16_round(a, S + e, S + e)
        a(f"v_rcp_f32 v{S+e}, v{S+e}")
    a("s_lshr_b32 s30, s2, 1")
    a("s_and_b32 s31, s2, 1")
    a("s_lshl_b32 s30, s30, 1")
    a("s_add_u32 s30, s30, s31")
    a("s_mul_i32 s30, s30, 6144")
    a(f"s_add_u32 s30, s30, {WS_HN}")
    a("v_and_b32 v5, 15, v2")
    a("v_lshl_add_u32 v5, v1, 4, v5")
    a("v_lshlrev_b32 v5, 4, v5")
    for i in range(9):
        for k in range(4):
            x0 = X + 8*i + 2*k; x1 = x0 + 1
            a(f"v_sub_f32 v{x0}, v{x0}, v{M+2*k}")
            a(f"v_sub_f32 v{x1}, v{x1}, v{M+2*k+1}")
            a(f"v_cvt_pk_bf16_f32 v132, v{x0}, v{x1}")
            a(f"v_lshlrev_b32 v{x0}, 16, v132")
            a(f"v_and_b32 v{x1}, 0xffff0000, v132")
            a(f"v_mul_f32 v{x0}, v{x0}, v{S+2*k}")
            a(f"v_mul_f32 v{x1}, v{x1}, v{S+2*k+1}")
            a(f"v_cvt_pk_bf16_f32 v{10+4*i+k}, v{x0}, v{x1}")
        a(f"s_add_u32 s31, s27, {4*i}")
        a("s_mul_i32 s32, s31, 43")
        a("s_lshr_b32 s32, s32, 8")
        a("s_mul_i32 s33, s32, 6")
        a("s_sub_u32 s33, s31, s33")
        a(f"s_mul_i32 s32, s32, {64*6144}")
        a("s_lshl_b32 s33, s33, 10")
        a("s_add_u32 s32, s32, s33")
        a("s_add_u32 s32, s32, s30")
        a(f"buffer_store_dwordx4 v[{10+4*i}:{13+4*i}], v5, s[8:11], s32 offen")
    a.label("K3_END")
    a("s_endpgm")
    return name, 160, 4096
```

```python
from gen import *
from gen_k2 import *
from gen_gemm import *
def main():
    import sys
    launches = [("k1_kernel", 640 + PF[1].nwg, 256, 38912), ("k2_kernel", 576 + PF[2].nwg, 256, 33280+512+4096), ("k3_kernel", K3_NWG + PF[3].nwg, 192, 1024),
                ("k4_kernel", GC(1).NWG + PF[4].nwg, 512, GC(1).LDS), ("k5_kernel", GC(2).NWG + PF[5].nwg, 512, GC(2).LDS)]
    txt = build([gen_k1, gen_k2, gen_k3, gen_k4, gen_k5], launches)
    open('test.s', 'w').write(txt)
```

```python
import sys
sys.path.insert(0, 'gen')
from asmlib import *

NAME = "sequential_preLN__ssm_conv_s4d__mixer_token_mlp__prompt"
L, D, NM, F = 2048, 576, 128, 4608
WS_UT = 0x0
WS_XT = 0x240000
WS_R  = 0x480000
RSTRIDE = 8256; ROFF = 4128
WS_HT = 0x910000
WS_HN = 0xB50000
WS_G  = 0xD90000
WS_END = 0x12A0000
LOG2E = 0x3fb8aa3b
INV2PI = 0x3e22f983

def fhex(x):
    import struct
    return "0x%08x" % struct.unpack('<I', struct.pack('<f', x))[0]

def srd(a, s, lo, hi, size):
    a(f"s_mov_b32 s{s}, s{lo}")
    a(f"s_and_b32 s{s+1}, s{hi}, 0xffff")
    a(f"s_mov_b32 s{s+2}, {hex(size)}")
    a(f"s_mov_b32 s{s+3}, 0x00020000")

def kernel_head(a, name):
    a.raw(f".globl {name}\n.p2align 8\n.type {name},@function\n{name}:")

def kernel_desc(name, vgpr, sgpr=96, accum=None):
    acc = accum if accum is not None else ((vgpr + 3) // 4) * 4
    return f""".amdhsa_kernel {name}
  .amdhsa_next_free_vgpr {vgpr}
  .amdhsa_next_free_sgpr {sgpr}
  .amdhsa_accum_offset {acc}
  .amdhsa_group_segment_fixed_size 0
  .amdhsa_kernarg_size 120
  .amdhsa_user_sgpr_count 2
  .amdhsa_user_sgpr_kernarg_segment_ptr 1
  .amdhsa_system_sgpr_workgroup_id_x 1
.end_amdhsa_kernel
"""

def bf16_round(a, dst, src, tmp=None):
    a(f"v_cvt_pk_bf16_f32 v{dst}, v{src}, v{src}")
    a(f"v_and_b32 v{dst}, 0xffff0000, v{dst}")

def exp_precise(a, dst, src, t0, t1, sL, sLlo, sLn2):
    a(f"v_mul_f32 v{t0}, s{sL}, v{src}")
    a(f"v_fma_f32 v{t1}, v{src}, s{sL}, -v{t0}")
    a(f"v_fma_f32 v{t1}, v{src}, s{sLlo}, v{t1}")
    a(f"v_exp_f32 v{dst}, v{t0}")
    a(f"v_mul_f32 v{t1}, s{sLn2}, v{t1}")
    a(f"v_fma_f32 v{dst}, v{dst}, v{t1}, v{dst}")

def gen_k1(a):
    name = "k1_kernel"
    kernel_head(a, name)
    a("s_cmp_ge_u32 s2, 640")
    a("s_cbranch_scc1 K1_END")
    a("s_load_dwordx2 s[4:5], s[0:1], 0")
    a("s_load_dwordx2 s[6:7], s[0:1], 112")
    a("s_load_dwordx8 s[16:23], s[0:1], 8")
    a("s_load_dwordx2 s[24:25], s[0:1], 40")
    a("s_cmp_ge_u32 s2, 64")
    a("s_cbranch_scc1 K1_KGEN")
    a("s_waitcnt lgkmcnt(0)")
    srd(a, 8, 4, 5, L * D * 2)
    srd(a, 12, 6, 7, WS_R)
    PITCH = 1216
    a("v_lshrrev_b32 v1, 3, v0")
    a("v_and_b32 v2, 7, v0")
    a("s_lshl_b32 s3, s2, 5")
    a("v_add_u32 v3, s3, v1")
    a("s_movk_i32 s26, 1152")
    a("v_mul_lo_u32 v3, v3, s26")
    a("v_lshl_add_u32 v3, v2, 4, v3")
    for i in range(9):
        a(f"buffer_load_dwordx4 v[{10+4*i}:{13+4*i}], v3, s[8:11], 0 offen offset:{128*i}")
    a(f"s_movk_i32 s26, {PITCH}")
    a("v_mul_lo_u32 v4, v1, s26")
    a("v_lshl_add_u32 v4, v2, 4, v4")
    a("v_and_b32 v5, 63, v0")
    a("v_lshrrev_b32 v6, 6, v0")
    a("v_readfirstlane_b32 s27, v6")
    a("v_bfe_u32 v7, v5, 2, 2")
    a("v_mul_lo_u32 v7, v7, s26")
    a("v_lshrrev_b32 v8, 4, v5")
    a("v_lshl_add_u32 v7, v8, 5, v7")
    a("v_and_b32 v8, 3, v5")
    a("v_lshl_add_u32 v7, v8, 3, v7")
    a("s_lshl_b32 s28, s2, 6")
    a("v_lshlrev_b32 v9, 12, v5")
    a("v_add_u32 v9, s28, v9")
    a("s_waitcnt vmcnt(0)")
    for i in range(9):
        a(f"ds_write_b128 v4, v[{10+4*i}:{13+4*i}] offset:{128*i}")
    for i in range(36):
        a(f"v_lshlrev_b32 v{50+2*i}, 16, v{10+i}")
        a(f"v_and_b32 v{51+2*i}, 0xffff0000, v{10+i}")
    a("v_add_f32 v122, v50, v51")
    a("v_add_f32 v123, v52, v53")
    a("v_add_f32 v124, v54, v55")
    a("v_add_f32 v125, v56, v57")
    for i in range(2, 18):
        for q in range(4):
            a(f"v_add_f32 v{122+q}, v{122+q}, v{50+4*i+q}")
    a("v_add_f32 v122, v122, v123")
    a("v_add_f32 v124, v124, v125")
    a("v_add_f32 v122, v122, v124")
    def red8(r, t):
        a(f"v_add_f32_dpp v{r}, v{r}, v{r} quad_perm:[1,0,3,2] row_mask:0xf bank_mask:0xf")
        a(f"v_add_f32_dpp v{r}, v{r}, v{r} quad_perm:[2,3,0,1] row_mask:0xf bank_mask:0xf")
        a(f"v_add_f32_dpp v{r}, v{r}, v{r} row_half_mirror row_mask:0xf bank_mask:0xf")
    red8(122, None)
    a(f"s_mov_b32 s26, {fhex(1.0/576)}")
    a("v_mul_f32 v126, s26, v122")
    a("s_waitcnt lgkmcnt(0)")
    a("s_barrier")
    def transpose_store(ws_off):
        for u in range(3):
            lab = a.newlabel("K1_SKIP")
            if u == 2:
                a("s_cmp_lg_u32 s27, 0")
                a(f"s_cbranch_scc1 {lab}")
            a(f"s_lshl_b32 s29, s27, 7")
            a(f"s_add_u32 s29, s29, {u*4*128}")
            a(f"v_add_u32 v127, s29, v7")
            for Q in range(8):
                a(f"ds_read_b64_tr_b16 v[{130+2*Q}:{131+2*Q}], v127 offset:{Q*4*PITCH}")
            a(f"s_lshl_b32 s29, s27, 18")
            a(f"s_add_u32 s29, s29, {ws_off + u*4*64*4096}")
            a("s_waitcnt lgkmcnt(0)")
            for q in range(4):
                a(f"buffer_store_dwordx4 v[{130+4*q}:{133+4*q}], v9, s[12:15], s29 offen offset:{16*q}")
            if u == 2: a.label(lab)
            a("s_nop 1")
    transpose_store(WS_XT)
    for i in range(72):
        a(f"v_sub_f32 v{150+0}, v{50+i}, v126") if False else None
    a("v_sub_f32 v127, v50, v126"); a("v_mul_f32 v122, v127, v127")
    a("v_sub_f32 v127, v51, v126"); a("v_mul_f32 v123, v127, v127")
    a("v_sub_f32 v127, v52, v126"); a("v_mul_f32 v124, v127, v127")
    a("v_sub_f32 v127, v53, v126"); a("v_mul_f32 v125, v127, v127")
    for i in range(4, 72):
        t = 146 + (i % 4)
        a(f"v_sub_f32 v{t}, v{50+i}, v126")
        a(f"v_fmac_f32 v{122+(i%4)}, v{t}, v{t}")
    a("v_add_f32 v122, v122, v123")
    a("v_add_f32 v124, v124, v125")
    a("v_add_f32 v122, v122, v124")
    red8(122, None)
    a("v_mul_f32 v122, s26, v122")
    bf16_round(a, 126, 126)
    bf16_round(a, 122, 122)
    a(f"v_add_f32 v122, {fhex(1e-5)}, v122")
    bf16_round(a, 122, 122)
    a("v_sqrt_f32 v122, v122")
    bf16_round(a, 122, 122)
    a("v_rcp_f32 v122, v122")
    for i in range(36):
        x0, x1 = 50 + 2*i, 51 + 2*i
        a(f"v_sub_f32 v{x0}, v{x0}, v126")
        a(f"v_sub_f32 v{x1}, v{x1}, v126")
        a(f"v_cvt_pk_bf16_f32 v146, v{x0}, v{x1}")
        a(f"v_lshlrev_b32 v{x0}, 16, v146")
        a(f"v_and_b32 v{x1}, 0xffff0000, v146")
        a(f"v_mul_f32 v{x0}, v{x0}, v122")
        a(f"v_mul_f32 v{x1}, v{x1}, v122")
        a(f"v_cvt_pk_bf16_f32 v{10+i}, v{x0}, v{x1}")
    a("s_barrier")
    for i in range(9):
        a(f"ds_write_b128 v4, v[{10+4*i}:{13+4*i}] offset:{128*i}")
    a("s_waitcnt lgkmcnt(0)")
    a("s_barrier")
    transpose_store(WS_UT)
    a("s_branch K1_END")

    a.label("K1_KGEN")
    a("s_sub_u32 s3, s2, 64")
    a("v_and_b32 v1, 63, v0")
    a("v_lshrrev_b32 v2, 6, v0")
    a("v_readfirstlane_b32 s27, v2")
    a("v_lshrrev_b32 v3, 4, v1")
    a("v_and_b32 v4, 15, v1")
    a("s_lshl_b32 s28, s3, 8")
    a("v_lshlrev_b32 v5, 6, v2")
    a("v_lshl_add_u32 v5, v3, 4, v5")
    a("v_add_u32 v5, s28, v5")
    a("s_waitcnt lgkmcnt(0)")
    srd(a, 8, 16, 17, D * NM * 2)
    a("buffer_load_dwordx4 v[10:13], v5, s[8:11], 0 offen")
    srd(a, 28, 18, 19, D * NM * 2)
    a("buffer_load_dwordx4 v[14:17], v5, s[28:31], 0 offen")
    srd(a, 32, 20, 21, D * NM * 2)
    a("buffer_load_dwordx4 v[18:21], v5, s[32:35], 0 offen")
    srd(a, 36, 22, 23, D * NM * 2)
    a("buffer_load_dwordx4 v[22:25], v5, s[36:39], 0 offen")
    srd(a, 40, 24, 25, D * 2)
    a("s_lshl_b32 s44, s3, 1")
    a("v_mov_b32 v6, s44")
    a("buffer_load_ushort v26, v6, s[40:43], 0 offen")
    srd(a, 12, 6, 7, WS_HT)
    a("v_lshlrev_b32 v27, 3, v4")
    a("v_cvt_f32_u32 v27, v27")
    a("v_and_b32 v28, 7, v4")
    a("v_lshrrev_b32 v29, 3, v4")
    a("v_lshl_add_u32 v28, v29, 7, v28")
    a("v_cvt_f32_u32 v28, v28")
    a("v_lshrrev_b32 v29, 2, v4")
    a("v_lshlrev_b32 v29, 7, v29")
    a("v_and_b32 v30, 3, v4")
    a("v_lshl_add_u32 v29, v30, 1, v29")
    a("v_add_u32 v29, 256, v29")
    a("v_subrev_u32 v30, 8, v4")
    a("v_lshrrev_b32 v30, 1, v30")
    a("v_lshlrev_b32 v30, 7, v30")
    a("v_and_b32 v31, 1, v4")
    a("v_lshl_add_u32 v30, v31, 2, v30")
    a("v_add_u32 v30, 512, v30")
    a("v_cmp_gt_u32 vcc, 8, v4")
    a("v_cndmask_b32 v29, v30, v29, vcc")
    a("v_cvt_f32_u32 v29, v29")
    a("v_lshlrev_b32 v30, 7, v4")
    a("v_add_u32 v30, 1024, v30")
    a("v_cvt_f32_u32 v30, v30")
    a(f"s_mov_b32 s44, {hex(LOG2E)}")
    a(f"s_mov_b32 s45, {fhex(1.4426950408889634 - 1.4426950216293335)}")
    a(f"s_mov_b32 s46, {fhex(0.6931471805599453)}")
    a(f"s_mov_b32 s47, {hex(INV2PI)}")
    a("s_waitcnt vmcnt(0)")
    a("v_lshlrev_b32 v26, 16, v26")
    exp_precise(a, 31, 26, 32, 33, 44, 45, 46)
    bf16_round(a, 31, 31)
    for t in range(8):
        src = 10 + t // 2
        if t % 2 == 0:
            un = lambda d, s: a(f"v_lshlrev_b32 v{d}, 16, v{s}")
        else:
            un = lambda d, s: a(f"v_and_b32 v{d}, 0xffff0000, v{s}")
        un(32, 10 + t // 2)
        exp_precise(a, 33, 32, 34, 35, 44, 45, 46)
        bf16_round(a, 33, 33)
        a(f"v_mul_f32 v33, v33, v31")
        a(f"v_mul_f32 v{40+t}, s44, v33")
        a(f"v_sub_f32 v{40+t}, 0, v{40+t}")
        un(32, 14 + t // 2)
        a(f"v_mul_f32 v32, v32, v31")
        a(f"v_mul_f32 v{48+t}, s47, v32")
        un(32, 18 + t // 2)
        a(f"v_mul_f32 v32, v32, v31")
        a(f"v_add_f32 v{56+t}, v32, v32")
        un(32, 22 + t // 2)
        a(f"v_mul_f32 v32, v32, v31")
        a(f"v_add_f32 v{64+t}, v32, v32")
    for r in range(12): a(f"v_mov_b32 v{80+r}, 0")
    P = [28, 29, 30]
    for t in range(8):
        ar, ai, cr, ci = 40 + t, 48 + t, 56 + t, 64 + t
        a(f"v_mul_f32 v72, v{ar}, v27")
        a(f"v_mul_f32 v73, v{ai}, v27")
        a(f"v_exp_f32 v72, v72")
        a(f"v_fract_f32 v73, v73")
        a(f"v_cos_f32 v74, v73")
        a(f"v_sin_f32 v75, v73")
        a(f"v_mul_f32 v74, v72, v74")
        a(f"v_mul_f32 v75, v72, v75")
        for T in range(3):
            b = 92 + 8 * T
            a(f"v_mul_f32 v{b}, v{ar}, v{P[T]}")
            a(f"v_mul_f32 v{b+1}, v{ai}, v{P[T]}")
            a(f"v_exp_f32 v{b}, v{b}")
            a(f"v_fract_f32 v{b+1}, v{b+1}")
            a(f"v_cos_f32 v{b+2}, v{b+1}")
            a(f"v_sin_f32 v{b+3}, v{b+1}")
            a(f"v_mul_f32 v{b+4}, v{cr}, v{b+2}")
            a(f"v_mul_f32 v{b+5}, v{cr}, v{b+3}")
            a(f"v_fma_f32 v{b+4}, -v{ci}, v{b+3}, v{b+4}")
            a(f"v_fma_f32 v{b+5}, v{ci}, v{b+2}, v{b+5}")
            a(f"v_mul_f32 v{b+4}, v{b}, v{b+4}")
            a(f"v_mul_f32 v{b+5}, -v{b}, v{b+5}")
        for T in range(3):
            b = 92 + 8 * T
            a(f"v_mfma_f32_16x16x4_f32 v[{80+4*T}:{83+4*T}], v{b+4}, v74, v[{80+4*T}:{83+4*T}]")
        for T in range(3):
            b = 92 + 8 * T
            a(f"v_mfma_f32_16x16x4_f32 v[{80+4*T}:{83+4*T}], v{b+5}, v75, v[{80+4*T}:{83+4*T}]")
    a("v_lshlrev_b32 v5, 4, v1")
    a("s_mul_i32 s28, s27, 3072")
    a("v_add_u32 v5, s28, v5")
    for T in range(3):
        a(f"ds_write_b128 v5, v[{80+4*T}:{83+4*T}] offset:{1024*T}")
    a("s_waitcnt lgkmcnt(0)")
    a("s_barrier")
    KC = 12288
    a("s_cmp_eq_u32 s27, 3")
    a("s_cbranch_scc1 K1_KG_ZERO")
    a("v_lshlrev_b32 v5, 4, v1")
    a("s_lshl_b32 s28, s27, 10")
    a("v_add_u32 v5, s28, v5")
    for w in range(4):
        a(f"ds_read_b128 v[{80+4*w}:{83+4*w}], v5 offset:{3072*w}")
    a("s_cmp_eq_u32 s27, 1")
    a("s_cbranch_scc1 K1_KG_T1")
    a("s_cmp_eq_u32 s27, 2")
    a("s_cbranch_scc1 K1_KG_T2")
    a("v_and_b32 v100, 1, v3")
    a("v_lshlrev_b32 v100, 2, v100")
    a("v_lshrrev_b32 v101, 1, v3")
    a("v_lshl_add_u32 v100, v101, 7, v100")
    a("v_lshl_add_u32 v100, v4, 3, v100")
    for r in range(1, 4): a(f"v_add_u32 v{100+r}, {r}, v100")
    a("s_branch K1_KG_SC")
    a.label("K1_KG_T1")
    a("v_lshlrev_b32 v104, 6, v3")
    a("v_lshl_add_u32 v104, v4, 2, v104")
    a("v_add_u32 v104, 256, v104")
    a("v_lshlrev_b32 v105, 6, v3")
    a("v_lshl_add_u32 v105, v4, 1, v105")
    a("v_add_u32 v105, 256, v105")
    a("v_cmp_gt_u32 vcc, 2, v3")
    for r in range(4):
        a(f"v_add_u32 v106, {r}, v104")
        a(f"v_add_u32 v107, {32*(r>>1)+(r&1)}, v105")
        a(f"v_cndmask_b32 v{100+r}, v107, v106, vcc")
    a("s_branch K1_KG_SC")
    a.label("K1_KG_T2")
    a("v_lshlrev_b32 v100, 6, v3")
    a("v_add_u32 v100, v4, v100")
    a("v_add_u32 v100, 512, v100")
    for r in range(1, 4): a(f"v_add_u32 v{100+r}, {16*r}, v100")
    a.label("K1_KG_SC")
    a("s_waitcnt lgkmcnt(0)")
    for r in range(4):
        a(f"v_add_f32 v{80+r}, v{80+r}, v{84+r}")
        a(f"v_add_f32 v{88+r}, v{88+r}, v{92+r}")
        a(f"v_add_f32 v{80+r}, v{80+r}, v{88+r}")
        a(f"v_lshlrev_b32 v{100+r}, 2, v{100+r}")
        a(f"ds_write_b32 v{100+r}, v{80+r} offset:{KC}")
    a("s_branch K1_KG_EXP")
    a.label("K1_KG_ZERO")
    a("v_mov_b32 v5, 0")
    a(f"ds_write_b32 v5, v5 offset:{KC + 768*4}")
    a.label("K1_KG_EXP")
    a("s_waitcnt lgkmcnt(0)")
    a("s_barrier")
    a("v_lshlrev_b32 v5, 3, v0")
    a("v_sub_u32 v5, 2047, v5")
    for e in range(9):
        a(f"v_subrev_u32 v{10+e}, {e}, v5")
        a(f"v_cvt_f32_i32 v{20+e}, v{10+e}")
    for e in range(0, 9, 2):
        e1 = min(e + 1, 8)
        a(f"v_cvt_pk_bf16_f32 v{30+e//2}, v{20+e}, v{20+e1}")
    for e in range(9):
        src = 30 + e // 2
        if e % 2 == 0: a(f"v_and_b32 v{20+e}, 0xffff, v{src}")
        else: a(f"v_lshrrev_b32 v{20+e}, 16, v{src}")
        a(f"v_subrev_u32 v{20+e}, 17024, v{20+e}")
        a(f"v_min_u32 v36, 127, v{10+e}")
        a(f"v_max_i32 v{20+e}, v{20+e}, v36")
    a("v_cmp_gt_i32 vcc, 0, v18")
    a("v_mov_b32 v36, 768")
    a("v_cndmask_b32 v28, v28, v36, vcc")
    for e in range(9):
        a(f"v_lshlrev_b32 v{20+e}, 2, v{20+e}")
        a(f"ds_read_b32 v{40+e}, v{20+e} offset:{KC}")
    a("s_mul_i32 s28, s3, %d" % RSTRIDE)
    a(f"s_add_u32 s28, s28, {WS_R}")
    a("v_lshlrev_b32 v5, 4, v0")
    a("s_waitcnt lgkmcnt(0)")
    for k in range(4):
        a(f"v_cvt_pk_bf16_f32 v{52+k}, v{40+2*k}, v{41+2*k}")
        a(f"v_cvt_pk_bf16_f32 v{56+k}, v{41+2*k}, v{42+2*k}")
    a("buffer_store_dwordx4 v[52:55], v5, s[12:15], s28 offen")
    a(f"buffer_store_dwordx4 v[56:59], v5, s[12:15], s28 offen offset:{ROFF - 4096}") if False else None
    a(f"v_add_u32 v6, {ROFF}, v5")
    a("buffer_store_dwordx4 v[56:59], v6, s[12:15], s28 offen")
    a("v_cmp_gt_u32 vcc, 2, v0")
    a("s_and_saveexec_b64 s[30:31], vcc")
    a("s_cbranch_execz K1_END")
    for r in range(4): a(f"v_mov_b32 v{60+r}, 0")
    a("v_add_u32 v5, 4096, v5")
    a("v_add_u32 v6, 4096, v6")
    a("buffer_store_dwordx4 v[60:63], v5, s[12:15], s28 offen")
    a("buffer_store_dwordx4 v[60:63], v6, s[12:15], s28 offen")
    a.label("K1_END")
    a("s_endpgm")
    return name, 152, 38912

KERNELS = []
def build(kernels, launches):
    head = []
    ref = open('cdna_kernels/' + NAME + '.s.ref').read().split('\n')
    for ln in ref:
        if ln.startswith('; Kernarg') or ln.startswith(';   offset'):
            head.append(ln)
    for (k, grid, block, lds) in launches:
        head.append(f"; @launch kernel={k} grid=({grid},1,1) block=({block},1,1) lds={lds}")
    out = '\n'.join(head) + '\n.amdgcn_target "amdgcn-amd-amdhsa--gfx950"\n.text\n'
    descs = ''
    for gen in kernels:
        a = Asm()
        name, vg, lds = gen(a)
        out += render(insert_hazard_nops(a.lines))
        descs += kernel_desc(name, vg)
    out += '.section .rodata,"a"\n.p2align 6\n' + descs.replace('.amdhsa_kernel', '.p2align 6\n.amdhsa_kernel')
    return out

if __name__ == '__main__':
    from gen_rest import *
    main()
```

```python
from gen import *
import os, math
OPT = os.environ.get('GOPT', '').split(',')
def opt_int(name, default):
    for o in OPT:
        if o.startswith(name + '='): return int(o.split('=')[1])
    return default

ASLOT = 12288

class GC:
    def __init__(s, kind):
        s.kind = kind
        s.TW = 128 if kind == 1 else 64
        s.NJ = s.TW // 32
        s.NS = opt_int('ns1', 4) if kind == 1 else opt_int('ns2', 6)
        s.PD = opt_int('pd1', 10) if kind == 1 else opt_int('pd2', 12)
        s.nstg = 32 if kind == 1 else 72
        s.ntn = 36 if kind == 1 else 32
        s.WPITCH = 9216 if kind == 1 else 4096
        s.ROWB = s.TW * 2
        s.WSLOT = 64 * s.ROWB
        s.ACT0 = s.NS * s.WSLOT
        s.HT0 = s.ACT0 + s.NS * ASLOT
        s.LDS = s.HT0 + (96 * s.ROWB if kind == 2 else 0)
        s.NWG = 6 * s.ntn
        s.per_xcd = s.NWG // 8
        s.ACTBASE = WS_HN if kind == 1 else WS_G
        s.NWP = s.WSLOT // 4096
        s.PPS = (0 if 'noW' in OPT else s.NWP) + (0 if 'noA' in OPT else 3)

def gen_gemm(a, kind, name):
    C = GC(kind)
    NS, TW, NJ, nstg, WPITCH, ROWB, WSLOT, ACT0, HT0, NWG = C.NS, C.TW, C.NJ, C.nstg, C.WPITCH, C.ROWB, C.WSLOT, C.ACT0, C.HT0, C.NWG
    kernel_head(a, name)
    P = name.upper()[:2]
    END = f"{P}_END"; PROD = f"{P}_PROD"; PREF = f"{P}_PREF"
    kst_begin(a)
    a(f"s_cmp_ge_u32 s2, {NWG}")
    a(f"s_cbranch_scc1 {END}")
    a("s_load_dwordx2 s[6:7], s[0:1], 112")
    a(f"s_load_dwordx4 s[16:19], s[0:1], {64 if kind == 1 else 80}")
    a("s_load_dwordx2 s[20:21], s[0:1], 96")
    a("s_and_b32 s22, s2, 7")
    a("s_lshr_b32 s23, s2, 3")
    a(f"s_mul_i32 s3, s22, {C.per_xcd}")
    a("s_mul_i32 s24, s3, 171")
    a("s_lshr_b32 s24, s24, 10")
    a("s_add_u32 s3, s3, s23")
    a("s_mul_i32 s4, s3, 171")
    a("s_lshr_b32 s4, s4, 10")
    a("s_mul_i32 s5, s4, 6")
    a("s_sub_u32 s5, s3, s5")
    a("v_and_b32 v1, 63, v0")
    a("v_lshrrev_b32 v2, 6, v0")
    a("v_readfirstlane_b32 s27, v2")
    a("v_lshrrev_b32 v3, 4, v1")
    a("s_waitcnt lgkmcnt(0)")
    srd(a, 8, 16, 17, 2048 * 4608 * 2)
    srd(a, 12, 6, 7, WS_END)
    a("s_cmp_eq_u32 s27, 8")
    a(f"s_cbranch_scc1 {PREF}")
    a("s_cmp_ge_u32 s27, 4")
    a(f"s_cbranch_scc1 {PROD}")
    assert nstg % NS == 0
    nloop = nstg // NS - 1

    a("s_lshr_b32 s28, s27, 1")
    a("s_and_b32 s29, s27, 1")
    a("v_bfe_u32 v8, v1, 2, 2")
    a("v_and_b32 v9, 3, v1")
    if kind == 1:
        a("v_and_b32 v10, 1, v3")
        a("v_lshl_add_u32 v10, v10, 2, v8")
        a("v_lshl_add_u32 v11, v3, 3, v8")
        HOFF = 4 * ROWB
    else:
        a("v_lshl_add_u32 v11, v3, 2, v8")
        a("v_bfe_u32 v10, v11, 1, 2")
        HOFF = 16 * ROWB
    a(f"s_mul_i32 s30, s28, {NJ}")
    a("v_xor_b32 v10, s30, v10")
    a(f"s_movk_i32 s30, {ROWB}")
    a("v_mul_lo_u32 v11, v11, s30")
    a("v_lshl_add_u32 v11, v9, 3, v11")
    for jj in range(NJ):
        a(f"v_xor_b32 v12, {jj}, v10")
        a(f"v_lshl_add_u32 v{4+jj}, v12, 5, v11")
    a("s_mul_i32 s30, s29, 3072")
    a(f"s_add_u32 s30, s30, {ACT0}")
    a("v_lshlrev_b32 v8, 4, v1")
    a("v_add_u32 v8, s30, v8")
    a(f"v_add_u32 v9, {3*ASLOT}, v8")
    srd(a, 16, 18, 19, (4608 if kind == 1 else 2048) * 2)
    a(f"s_mul_i32 s30, s4, {TW*2}")
    a(f"s_mul_i32 s31, s28, {TW}")
    a("s_add_u32 s30, s30, s31")
    if kind == 1:
        a("v_lshlrev_b32 v10, 3, v3")
        for jj in range(NJ):
            a(f"buffer_load_dwordx2 v[{16+2*jj}:{17+2*jj}], v10, s[16:19], s30 offen offset:{32*jj}")
    else:
        a("v_and_b32 v10, 15, v1")
        a("v_lshlrev_b32 v10, 1, v10")
        for jj in range(NJ):
            a(f"buffer_load_ushort v{16+jj}, v10, s[16:19], s30 offen offset:{32*jj}")
    ACC = 120
    FA = [32, 64]
    AO = 4 * NJ
    for r in range(12 * NJ): a(f"v_mov_b32 v{ACC+r}, 0")

    def reads(slot, kb, st):
        base = FA[st]
        def wr(jj):
            return [f"ds_read_b64_tr_b16 v[{base+4*jj+2*h}:{base+4*jj+2*h+1}], v{4+jj} offset:{slot*WSLOT + kb*32*ROWB + h*HOFF}" for h in range(2)]
        def ar(dd):
            va, so = (8, slot) if slot < 3 else (9, slot - 3)
            return [f"ds_read_b128 v[{base+AO+4*dd}:{base+AO+4*dd+3}], v{va} offset:{so*ASLOT + kb*6144 + dd*1024}"]
        out = wr(0) + ar(0) + ar(1) + ar(2)
        for jj in range(1, NJ): out += wr(jj)
        return out
    def mfmas(st):
        base = FA[st]
        out = []
        for jj in range(NJ):
            for dd in range(3):
                acc = ACC + 4 * (jj * 3 + dd)
                wf_ = f"v[{base+4*jj}:{base+4*jj+3}]"; af_ = f"v[{base+AO+4*dd}:{base+AO+4*dd+3}]"
                if kind == 1:
                    out.append(f"v_mfma_f32_16x16x32_bf16 v[{acc}:{acc+3}], {wf_}, {af_}, v[{acc}:{acc+3}]")
                else:
                    out.append(f"v_mfma_f32_16x16x32_bf16 v[{acc}:{acc+3}], {af_}, {wf_}, v[{acc}:{acc+3}]")
        return out
    def half(st, rd):
        m = mfmas(st)
        rd = list(rd)
        if 'nomfma' in OPT: m = []
        if 'nords' in OPT: rd = []
        if 'nomfma' in OPT:
            for r_ in rd: a(r_)
            rd = []
        for i, ins in enumerate(m):
            a(ins)
            for _ in range(2):
                if rd: a(rd.pop(0))
    def stage(slot, last):
        a("s_waitcnt lgkmcnt(0)")
        half(0, reads(slot, 1, 1))
        if not last:
            a("s_waitcnt lgkmcnt(0)")
            a("s_barrier")
            half(1, reads((slot + 1) % NS, 0, 0))
        else:
            a("s_waitcnt lgkmcnt(0)")
            half(1, [])
    a("s_barrier")
    for r in reads(0, 0, 0): a(r)
    a(f"s_movk_i32 s31, {nloop}")
    a.label(f"{P}_CLOOP")
    for s in range(NS): stage(s, False)
    a("s_sub_u32 s31, s31, 1")
    a("s_cmp_lg_u32 s31, 0")
    a(f"s_cbranch_scc1 {P}_CLOOP")
    for s in range(NS): stage(s, s == NS - 1)

    if kind == 1:
        a("s_waitcnt vmcnt(0)")
        for jj in range(4):
            a(f"v_lshlrev_b32 v{96+4*jj}, 16, v{16+2*jj}")
            a(f"v_and_b32 v{97+4*jj}, 0xffff0000, v{16+2*jj}")
            a(f"v_lshlrev_b32 v{98+4*jj}, 16, v{17+2*jj}")
            a(f"v_and_b32 v{99+4*jj}, 0xffff0000, v{17+2*jj}")
        c0 = -2.0 * math.sqrt(2.0 / math.pi) * 1.4426950408889634
        c1 = c0 * 0.044715
        a(f"s_mov_b32 s34, {fhex(c1)}"); a(f"s_mov_b32 s35, {fhex(c1)}")
        a(f"s_mov_b32 s36, {fhex(1.0)}"); a(f"s_mov_b32 s37, {fhex(1.0)}")
        a(f"v_mov_b32 v30, {fhex(c0)}"); a(f"v_mov_b32 v31, {fhex(c0)}")
        a("s_lshl_b32 s39, s4, 1")
        a("s_add_u32 s38, s39, s28")
        a("s_mul_i32 s38, s38, 6")
        a("s_add_u32 s38, s38, s5")
        a("s_mul_i32 s38, s38, 12288")
        a("s_mul_i32 s39, s29, 3072")
        a("s_add_u32 s38, s38, s39")
        a(f"s_add_u32 s38, s38, {WS_G}")
        a("v_lshlrev_b32 v9, 4, v1")
        a("s_add_u32 s39, s38, 6144")
        for kb in range(2):
            for dd in range(3):
                T = 32
                O = 112 + 4 * ((kb * 3 + dd) % 2)
                for t in range(2):
                    jj = 2 * kb + t
                    acc = ACC + 4 * (jj * 3 + dd)
                    for p in range(2):
                        x = T + 8 * t + 4 * p
                        a(f"v_cvt_pk_bf16_f32 v{x+2}, v{acc+2*p}, v{acc+2*p+1}")
                        a(f"v_lshlrev_b32 v{x}, 16, v{x+2}")
                        a(f"v_and_b32 v{x+1}, 0xffff0000, v{x+2}")
                        a(f"v_pk_add_f32 v[{x}:{x+1}], v[{x}:{x+1}], v[{96+4*jj+2*p}:{97+4*jj+2*p}]")
                        a(f"v_cvt_pk_bf16_f32 v{x+2}, v{x}, v{x+1}")
                        a(f"v_lshlrev_b32 v{x}, 16, v{x+2}")
                        a(f"v_and_b32 v{x+1}, 0xffff0000, v{x+2}")
                    for p in range(2):
                        x = T + 8 * t + 4 * p
                        a(f"v_pk_mul_f32 v[{x+2}:{x+3}], v[{x}:{x+1}], v[{x}:{x+1}]")
                        a(f"v_pk_fma_f32 v[{x+2}:{x+3}], v[{x+2}:{x+3}], s[34:35], v[30:31]")
                        a(f"v_pk_mul_f32 v[{x+2}:{x+3}], v[{x+2}:{x+3}], v[{x}:{x+1}]")
                    for p in range(2):
                        x = T + 8 * t + 4 * p
                        a(f"v_exp_f32 v{x+2}, v{x+2}")
                        a(f"v_exp_f32 v{x+3}, v{x+3}")
                    for p in range(2):
                        x = T + 8 * t + 4 * p
                        a(f"v_pk_add_f32 v[{x+2}:{x+3}], v[{x+2}:{x+3}], s[36:37]")
                    for p in range(2):
                        x = T + 8 * t + 4 * p
                        a(f"v_rcp_f32 v{x+2}, v{x+2}")
                        a(f"v_rcp_f32 v{x+3}, v{x+3}")
                    for p in range(2):
                        x = T + 8 * t + 4 * p
                        a(f"v_pk_mul_f32 v[{x}:{x+1}], v[{x}:{x+1}], v[{x+2}:{x+3}]")
                        a(f"v_cvt_pk_bf16_f32 v{O+2*t+p}, v{x}, v{x+1}")
                a(f"buffer_store_dwordx4 v[{O}:{O+3}], v9, s[12:15], s{38+kb} offen offset:{1024*dd}")
    else:
        a("s_waitcnt vmcnt(0)")
        for jj in range(NJ): a(f"v_lshlrev_b32 v{16+jj}, 16, v{16+jj}")
        a(f"s_mul_i32 s30, s29, {48*ROWB}")
        a(f"s_add_u32 s30, s30, {HT0}")
        for jj in range(NJ): a(f"v_add_u32 v{4+jj}, s30, v{4+jj}")
        for jj in range(NJ):
            for dd in range(3):
                r = 32 + 2 * (jj * 3 + dd)
                a(f"ds_read_b64_tr_b16 v[{r}:{r+1}], v{4+jj} offset:{dd*16*ROWB}")
        srd(a, 16, 20, 21, 2048 * 576 * 2)
        a("v_and_b32 v9, 15, v1")
        a("s_movk_i32 s30, 1152")
        a("v_mul_lo_u32 v9, v9, s30")
        a("v_lshl_add_u32 v9, v3, 3, v9")
        a(f"s_mul_i32 s30, s4, {TW}")
        a(f"s_mul_i32 s31, s28, {TW//2}")
        a("s_add_u32 s30, s30, s31")
        a("s_mul_i32 s30, s30, 1152")
        a("s_mul_i32 s31, s5, 192")
        a("s_add_u32 s30, s30, s31")
        a("s_mul_i32 s31, s29, 96")
        a("s_add_u32 s30, s30, s31")
        a("s_waitcnt lgkmcnt(0)")
        for jj in range(NJ):
            for dd in range(3):
                acc = ACC + 4 * (jj * 3 + dd)
                hr = 32 + 2 * (jj * 3 + dd)
                O = 64 + 2 * ((jj * 3 + dd) % 4)
                for p in range(2):
                    x = 80 + 4 * p
                    a(f"v_cvt_pk_bf16_f32 v{x+2}, v{acc+2*p}, v{acc+2*p+1}")
                    a(f"v_lshlrev_b32 v{x}, 16, v{x+2}")
                    a(f"v_and_b32 v{x+1}, 0xffff0000, v{x+2}")
                    a(f"v_add_f32 v{x}, v{x}, v{16+jj}")
                    a(f"v_add_f32 v{x+1}, v{x+1}, v{16+jj}")
                    a(f"v_cvt_pk_bf16_f32 v{x+2}, v{x}, v{x+1}")
                    a(f"v_lshlrev_b32 v{x}, 16, v{x+2}")
                    a(f"v_and_b32 v{x+1}, 0xffff0000, v{x+2}")
                    a(f"v_lshlrev_b32 v{x+2}, 16, v{hr+p}")
                    a(f"v_and_b32 v{x+3}, 0xffff0000, v{hr+p}")
                    a(f"v_add_f32 v{x}, v{x}, v{x+2}")
                    a(f"v_add_f32 v{x+1}, v{x+1}, v{x+3}")
                    a(f"v_cvt_pk_bf16_f32 v{O+p}, v{x}, v{x+1}")
                a(f"buffer_store_dwordx2 v[{O}:{O+1}], v9, s[16:19], s30 offen offset:{32*dd}")
            if jj < NJ - 1: a(f"s_add_u32 s30, s30, {16*1152}")
    a(f"s_branch {END}")

    a.label(PREF)
    LPR = ROWB // 128
    NTX = 5 if kind == 1 else 4
    LPT = 64 * LPR
    WL = NTX * LPT
    if 'pfA' in OPT: WL = 0
    TOT = WL + 576
    if 'pfW' in OPT: TOT = WL
    LPW = -(-TOT // C.per_xcd)
    assert LPW <= 64
    PD = C.PD
    if 'nopf' in OPT:
        for k in range(nstg): pass
    a(f"s_mul_i32 s30, s23, {LPW}")
    a(f"v_min_u32 v4, {LPW-1}, v1")
    a("v_add_u32 v4, s30, v4")
    a(f"v_min_u32 v4, {TOT-1}, v4")
    a(f"v_lshrrev_b32 v5, {int(math.log2(LPT))}, v4")
    a(f"v_and_b32 v6, {LPT-1}, v4")
    a("v_add_u32 v5, s24, v5")
    a(f"v_mul_u32_u24 v5, {ROWB}, v5")
    if LPR == 2:
        a("v_and_b32 v7, 1, v6")
        a("v_lshl_add_u32 v5, v7, 7, v5")
        a("v_lshrrev_b32 v6, 1, v6")
    a(f"v_add_u32 v6, {64*NS}, v6")
    a(f"s_movk_i32 s30, {WPITCH}")
    a("v_mul_lo_u32 v6, v6, s30")
    a("v_add_u32 v5, v5, v6")
    a(f"v_subrev_u32 v6, {WL}, v4")
    a("v_lshlrev_b32 v7, 7, v6")
    a(f"v_add_u32 v7, {C.ACTBASE + NS*6*ASLOT}, v7")
    a(f"v_cmp_gt_u32 vcc, {WL}, v4")
    a("v_cndmask_b32 v5, v7, v5, vcc")
    a("v_mov_b32 v8, s6"); a("v_mov_b32 v9, s8")
    a("v_cndmask_b32 v10, v8, v9, vcc")
    a("v_mov_b32 v8, s7"); a("v_mov_b32 v9, s17")
    a("v_cndmask_b32 v11, v8, v9, vcc")
    a(f"v_mov_b32 v8, {6*ASLOT}"); a(f"v_mov_b32 v9, {64*WPITCH}")
    a("v_cndmask_b32 v12, v8, v9, vcc")
    a("v_add_co_u32 v10, vcc, v10, v5")
    a("v_addc_co_u32 v11, vcc, 0, v11, vcc")
    def touch():
        if 'nopf' in OPT: return
        a("global_load_dword v13, v[10:11], off")
        a("v_add_co_u32 v10, vcc, v10, v12")
        a("v_addc_co_u32 v11, vcc, 0, v11, vcc")
    for k in range(NS, PD): touch()
    a("s_barrier")
    ntouch = nstg - PD
    a(f"s_movk_i32 s31, {ntouch}")
    a.label(f"{P}_FLOOP")
    a("s_barrier")
    touch()
    a("s_sub_u32 s31, s31, 1")
    a("s_cmp_lg_u32 s31, 0")
    a(f"s_cbranch_scc1 {P}_FLOOP")
    a(f"s_movk_i32 s31, {nstg - 1 - ntouch}")
    a.label(f"{P}_FLOOP2")
    a("s_barrier")
    a("s_sub_u32 s31, s31, 1")
    a("s_cmp_lg_u32 s31, 0")
    a(f"s_cbranch_scc1 {P}_FLOOP2")
    a(f"s_branch {END}")

    a.label(PROD)
    a("s_sub_u32 s28, s27, 4")
    a(f"s_movk_i32 s30, {WPITCH}")
    if kind == 1:
        a("v_and_b32 v4, 15, v1")
        a("v_lshrrev_b32 v5, 1, v4")
        a("v_and_b32 v4, 1, v4")
        a("s_lshl_b32 s29, s28, 4")
        a("v_add_u32 v6, s29, v3")
        a("v_mul_lo_u32 v6, v6, s30")
        a("v_lshl_add_u32 v6, v4, 4, v6")
        for q in range(4):
            hi = (q >> 1)
            a(f"v_or_b32 v7, {hi << 2}, v3")
            a("v_xor_b32 v7, v7, v5")
            a(f"v_lshl_add_u32 v{10+q}, v7, 5, v6")
            if q: a(f"v_add_u32 v{10+q}, {q*(4*WPITCH - 1024)}, v{10+q}")
    else:
        a("v_bfe_u32 v5, v1, 1, 2")
        a("v_and_b32 v4, 1, v1")
        a("v_lshrrev_b32 v6, 3, v1")
        a("s_lshl_b32 s29, s28, 4")
        a("v_add_u32 v6, s29, v6")
        a("v_mul_lo_u32 v6, v6, s30")
        a("v_lshl_add_u32 v6, v4, 4, v6")
        a("v_xor_b32 v7, v3, v5")
        a("v_lshl_add_u32 v10, v7, 5, v6")
        a(f"v_add_u32 v11, {8*WPITCH - 1024}, v10")
    a("v_lshlrev_b32 v14, 4, v1")
    a("s_mul_i32 s30, s28, 3072")
    a("v_add_u32 v14, s30, v14")
    a(f"s_mul_i32 s32, s4, {ROWB}")
    a(f"s_mul_i32 s33, s5, {ASLOT}")
    a(f"s_add_u32 s33, s33, {C.ACTBASE}")
    for s in range(NS):
        a(f"s_mul_i32 s30, s28, {C.NWP*1024}")
        a(f"s_add_u32 s{40+s}, s30, {s*WSLOT}")
        a("s_mul_i32 s30, s28, 3072")
        a(f"s_add_u32 s{48+s}, s30, {ACT0 + s*ASLOT}")
    if kind == 2:
        a("s_mul_i32 s29, s28, 24")
        a("v_lshrrev_b32 v6, 3, v1")
        a("v_add_u32 v6, s29, v6")
        a("v_lshlrev_b32 v15, 12, v6")
        a("v_lshl_add_u32 v15, v4, 4, v15")
        a("v_lshl_add_u32 v15, v7, 5, v15")
        a("s_mul_i32 s30, s5, 96*4096")
        a(f"s_mul_i32 s31, s4, {ROWB}")
        a("s_add_u32 s30, s30, s31")
        a(f"s_add_u32 s30, s30, {WS_HT}")
        a("s_mul_i32 s31, s28, 3072")
        a(f"s_add_u32 s31, s31, {HT0}")
        for i in range(3):
            a(f"s_add_u32 s34, s31, {1024*i}")
            a("s_mov_b32 m0, s34")
            a(f"s_add_u32 s35, s30, {i*8*4096}")
            a("buffer_load_dwordx4 v15, s[12:15], s35 offen lds")
    def issue(slot):
        a(f"s_mov_b32 m0, s{40+slot}")
        for q in range(0 if 'noW' in OPT else C.NWP):
            a(f"buffer_load_dwordx4 v{10+q}, s[8:11], s32 offen offset:{1024*q} lds")
        a(f"s_mov_b32 m0, s{48+slot}")
        for q in range(0 if 'noA' in OPT else 3):
            a(f"buffer_load_dwordx4 v14, s[12:15], s33 offen offset:{1024*q} lds")
        a(f"s_add_u32 s32, s32, {64*WPITCH}")
        a(f"s_add_u32 s33, s33, {6*ASLOT}")
    def stamp():
        if 'stamp' not in OPT: return
        a("s_memrealtime s[60:61]")
        a("s_waitcnt lgkmcnt(0)")
        a("v_mov_b32 v22, s60")
        a("v_cmp_eq_u32 vcc, s62, v1")
        a("v_cndmask_b32 v20, v20, v22, vcc")
        a("s_add_u32 s62, s62, 1")
        a("s_and_b32 s62, s62, 63")
    if 'stamp' in OPT:
        a("s_mov_b32 s62, 0"); a("v_mov_b32 v20, 0")
    PPS = C.PPS
    stamp()
    for s in range(NS): issue(s)
    stamp()
    a(f"s_waitcnt vmcnt({(NS-1)*PPS})")
    a("s_barrier")
    stamp()
    a(f"s_movk_i32 s31, {nloop}")
    a.label(f"{P}_PLOOP")
    for s in range(NS):
        a(f"s_waitcnt vmcnt({(NS-2)*PPS})")
        a("s_barrier")
        if kind == 1 or s % 2 == 0: stamp()
        issue(s)
    a("s_sub_u32 s31, s31, 1")
    a("s_cmp_lg_u32 s31, 0")
    a(f"s_cbranch_scc1 {P}_PLOOP")
    for s in range(NS - 1):
        a(f"s_waitcnt vmcnt({(NS-2-s)*PPS})")
        a("s_barrier")
        stamp()
    if 'stamp' in OPT:
        a("s_cmp_lg_u32 s28, 0")
        a(f"s_cbranch_scc1 {END}")
        a("s_lshl_b32 s30, s2, 8")
        a(f"s_add_u32 s30, s30, {0x2000000 + (0 if kind == 1 else 0x10000)}")
        a("v_lshlrev_b32 v21, 2, v1")
        srd(a, 12, 6, 7, 0x4000000)
        a("buffer_store_dword v20, v21, s[12:15], s30 offen")
    a.label(END)
    kst_end(a, 2 + kind, NWG)
    a("s_endpgm")
    return name, 168, C.LDS

def gen_k4(a): return gen_gemm(a, 1, "k4_kernel")
def gen_k5(a): return gen_gemm(a, 2, "k5_kernel")
```

```python
from gen import *

def gen_k2(a):
    name = "k2_kernel"
    kernel_head(a, name)
    CS = 4160
    UPAD = 8 * CS
    UOFF = UPAD + 512
    kst_begin(a)
    a("s_cmp_ge_u32 s2, 576")
    a("s_cbranch_scc1 K2_PF")
    a("s_load_dwordx2 s[6:7], s[0:1], 112")
    a("s_load_dwordx2 s[4:5], s[0:1], 48")
    a("v_and_b32 v1, 63, v0")
    a("v_lshrrev_b32 v2, 6, v0")
    a("v_readfirstlane_b32 s27, v2")
    a("v_lshrrev_b32 v3, 4, v1")
    a("v_and_b32 v4, 15, v1")
    a("v_lshlrev_b32 v5, 4, v1")
    a("s_waitcnt lgkmcnt(0)")
    srd(a, 8, 6, 7, WS_HN)
    srd(a, 12, 4, 5, D * 2)
    a("s_lshl_b32 s28, s27, 2")
    a("s_sub_u32 s28, 12, s28")
    a("v_add_u32 v6, s28, v5")
    a(f"v_add_u32 v7, {ROFF}, v6")
    a(f"s_mul_i32 s29, s2, {RSTRIDE}")
    a(f"s_add_u32 s29, s29, {WS_R}")
    a(f"s_mul_i32 s30, s27, {2*CS}")
    a("s_mov_b32 m0, s30")
    for q in range(4):
        a(f"buffer_load_dwordx4 v7, s[8:11], s29 offen offset:{1024*q} lds")
    a(f"s_add_u32 s30, s30, {CS}")
    a("s_mov_b32 m0, s30")
    for q in range(4):
        a(f"buffer_load_dwordx4 v6, s[8:11], s29 offen offset:{1024*q} lds")
    a("s_lshl_b32 s31, s27, 10")
    a(f"s_add_u32 s30, s31, {UOFF}")
    a("s_mov_b32 m0, s30")
    a("s_lshl_b32 s32, s2, 12")
    a("s_add_u32 s33, s32, s31")
    a(f"s_add_u32 s33, s33, {WS_UT}")
    a("buffer_load_dwordx4 v5, s[8:11], s33 offen lds")
    a("v_lshlrev_b32 v8, 5, v4")
    a("v_lshl_add_u32 v8, v3, 3, v8")
    a("s_lshl_b32 s34, s27, 10")
    a("s_add_u32 s34, s34, s32")
    a(f"s_add_u32 s35, s34, {WS_XT}")
    a("buffer_load_dwordx2 v[10:11], v8, s[8:11], s35 offen")
    a("buffer_load_dwordx2 v[12:13], v8, s[8:11], s35 offen offset:512")
    a("s_lshl_b32 s36, s2, 1")
    a("v_mov_b32 v9, s36")
    a("buffer_load_ushort v14, v9, s[12:15], 0 offen")
    a("v_lshrrev_b32 v15, 2, v1")
    a(f"s_movk_i32 s37, {CS}")
    a("v_mul_lo_u32 v15, v15, s37")
    a("v_and_b32 v16, 3, v1")
    a("v_lshl_add_u32 v15, v16, 4, v15")
    a("v_add_u32 v15, 4096, v15")
    a("v_subrev_u32 v16, 32, v1")
    a("v_lshlrev_b32 v16, 4, v16")
    a(f"v_add_u32 v16, {UPAD}, v16")
    a("v_cmp_gt_u32 vcc, 32, v1")
    a("v_cndmask_b32 v15, v16, v15, vcc")
    for r in range(4): a(f"v_mov_b32 v{16+r}, 0")
    a("ds_write_b128 v15, v[16:19]")
    a("v_lshlrev_b32 v20, 5, v4")
    a("v_lshl_add_u32 v20, v3, 4, v20")
    a("s_lshl_b32 s37, s27, 6")
    a(f"s_sub_u32 s38, {UOFF-288}, s37")
    a("v_add_u32 v20, s38, v20")
    a("v_and_b32 v21, 7, v4")
    a(f"s_movk_i32 s39, {CS}")
    a("v_mul_lo_u32 v21, v21, s39")
    a("v_lshl_add_u32 v21, v3, 4, v21")
    a("v_lshrrev_b32 v22, 3, v4")
    a("v_lshlrev_b32 v22, 4, v22")
    a("v_sub_u32 v21, v21, v22")
    a("s_sub_u32 s38, 208, s37")
    a("v_add_u32 v21, s38, v21")
    ACC = 128
    for r in range(32): a(f"v_mov_b32 v{ACC+r}, 0")
    a("s_waitcnt vmcnt(0) lgkmcnt(0)")
    a("s_barrier")
    BF = 32
    for z in range(16):
        a(f"ds_read_b128 v[{BF+4*z}:{BF+4*z+3}], v20 offset:{256*z}")
    AF = 96
    for i in range(8):
        a(f"ds_read_b128 v[{AF+4*i}:{AF+4*i+3}], v21 offset:{256*(15-i)}")
    for i in range(16):
        a(f"s_waitcnt lgkmcnt({7 if i < 8 else 15-i})")
        af = AF + 4 * (i % 8)
        for t in range(i >> 1, 8):
            z = 2 * t - i
            if z < -1: continue
            a(f"v_mfma_f32_16x16x32_bf16 v[{ACC+4*t}:{ACC+4*t+3}], v[{af}:{af+3}], v[{BF+4*(z+1)}:{BF+4*(z+1)+3}], v[{ACC+4*t}:{ACC+4*t+3}]")
        if i < 8:
            a(f"ds_read_b128 v[{af}:{af+3}], v21 offset:{256*(15-(i+8))}")
    a("s_barrier")
    a("s_lshl_b32 s37, s27, 13")
    a("v_add_u32 v22, s37, v5")
    for w in range(4):
        lab = a.newlabel("K2_W")
        a(f"s_cmp_eq_u32 s27, {w}")
        a(f"s_cbranch_scc1 {lab}")
        for t in (2*w, 2*w+1):
            a(f"ds_write_b128 v22, v[{ACC+4*t}:{ACC+4*t+3}] offset:{1024*t}")
        a.label(lab)
    for w in range(4):
        lab = a.newlabel("K2_M")
        a(f"s_cmp_lg_u32 s27, {w}")
        a(f"s_cbranch_scc1 {lab}")
        for r in range(8): a(f"v_mov_b32 v{24+r}, v{ACC+8*w+r}")
        a.label(lab)
    a("s_waitcnt lgkmcnt(0)")
    a("s_barrier")
    a("s_lshl_b32 s37, s27, 11")
    a("v_add_u32 v22, s37, v5")
    for k in range(1, 4):
        a(f"s_add_u32 s38, s27, {k}")
        a("s_and_b32 s38, s38, 3")
        a("s_lshl_b32 s38, s38, 13")
        a(f"v_add_u32 v23, s38, v22")
        a(f"ds_read_b128 v[{32+8*(k-1)}:{35+8*(k-1)}], v23")
        a(f"ds_read_b128 v[{36+8*(k-1)}:{39+8*(k-1)}], v23 offset:1024")
    a("s_lshl_b32 s37, s27, 10")
    a(f"s_add_u32 s37, s37, {UOFF}")
    a("v_add_u32 v23, s37, v8")
    a("ds_read_b64 v[56:57], v23")
    a("ds_read_b64 v[58:59], v23 offset:512")
    a("v_lshlrev_b32 v14, 16, v14")
    a("s_waitcnt lgkmcnt(0)")
    for r in range(8):
        a(f"v_add_f32 v{24+r}, v{24+r}, v{32+r}")
        a(f"v_add_f32 v{40+r}, v{40+r}, v{48+r}")
        a(f"v_add_f32 v{24+r}, v{24+r}, v{40+r}")
    for tt in range(2):
        y = 24 + 4 * tt; u = 56 + 2 * tt; x = 10 + 2 * tt
        a(f"v_cvt_pk_bf16_f32 v60, v{y}, v{y+1}")
        a(f"v_cvt_pk_bf16_f32 v61, v{y+2}, v{y+3}")
        a(f"v_lshlrev_b32 v62, 16, v{u}")
        a(f"v_and_b32 v63, 0xffff0000, v{u}")
        a(f"v_lshlrev_b32 v64, 16, v{u+1}")
        a(f"v_and_b32 v65, 0xffff0000, v{u+1}")
        for k in range(4): a(f"v_mul_f32 v{62+k}, v{62+k}, v14")
        a(f"v_cvt_pk_bf16_f32 v66, v62, v63")
        a(f"v_cvt_pk_bf16_f32 v67, v64, v65")
        for k in range(2):
            a(f"v_lshlrev_b32 v62, 16, v{60+k}")
            a(f"v_lshlrev_b32 v63, 16, v{66+k}")
            a(f"v_and_b32 v64, 0xffff0000, v{60+k}")
            a(f"v_and_b32 v65, 0xffff0000, v{66+k}")
            a(f"v_add_f32 v62, v62, v63")
            a(f"v_add_f32 v64, v64, v65")
            a(f"v_cvt_pk_bf16_f32 v{68+k}, v62, v64")
            a(f"v_lshlrev_b32 v62, 16, v{68+k}")
            a(f"v_lshlrev_b32 v63, 16, v{x+k}")
            a(f"v_and_b32 v64, 0xffff0000, v{68+k}")
            a(f"v_and_b32 v65, 0xffff0000, v{x+k}")
            a(f"v_add_f32 v62, v62, v63")
            a(f"v_add_f32 v64, v64, v65")
            a(f"v_cvt_pk_bf16_f32 v{70+2*tt+k}, v62, v64")
    a(f"s_add_u32 s35, s34, {WS_HT}")
    a("buffer_store_dwordx2 v[70:71], v8, s[8:11], s35 offen")
    a("buffer_store_dwordx2 v[72:73], v8, s[8:11], s35 offen offset:512")
    a("s_branch K2_END")
    a.label("K2_PF")
    gen_prefetch(a, 2, 576, "K2_END")
    a.label("K2_END")
    kst_end(a, 1, 576 + PF[2].nwg)
    a("s_endpgm")
    return name, 160, UOFF + 4096

K3_NWG = 256
def gen_k3(a):
    name = "k3_kernel"
    kernel_head(a, name)
    kst_begin(a)
    a(f"s_cmp_ge_u32 s2, {K3_NWG}")
    a("s_cbranch_scc1 K3_PF")
    a("s_load_dwordx2 s[6:7], s[0:1], 112")
    a("s_and_b32 s3, s2, 7")
    a("s_lshl_b32 s3, s3, 5")
    a("s_lshr_b32 s4, s2, 3")
    a("s_add_u32 s3, s3, s4")
    a("v_and_b32 v1, 63, v0")
    a("v_lshlrev_b32 v4, 12, v0")
    a("s_lshl_b32 s28, s3, 4")
    a(f"s_add_u32 s28, s28, {WS_HT}")
    a("v_and_b32 v5, 7, v1")
    a("v_lshlrev_b32 v5, 1, v5")
    a("v_mov_b32 v6, 0")
    K3ST = 'k3st' in os.environ.get('GOPT', '').split(',')
    def st(i):
        if K3ST:
            a(f"s_memrealtime s[{60+2*i}:{61+2*i}]")
    a("s_waitcnt lgkmcnt(0)")
    st(0)
    srd(a, 8, 6, 7, WS_G)
    for i in range(3):
        a(f"s_add_u32 s29, s28, {i*192*4096}")
        a(f"buffer_load_dwordx4 v[{10+4*i}:{13+4*i}], v4, s[8:11], s29 offen")
    a("buffer_load_dwordx4 v[22:25], v6, s[8:11], s28 offen")
    a("buffer_load_ushort v26, v5, s[8:11], s28 offen")
    a("v_lshrrev_b32 v7, 4, v0")
    a("v_cmp_le_u32 vcc, 6, v7")
    a("v_cndmask_b32 v8, 0, 1, vcc")
    a("v_mul_u32_u24 v9, 6, v8")
    a("v_sub_u32 v7, v7, v9")
    a("v_mul_u32_u24 v8, 12288, v8")
    a("v_lshl_add_u32 v8, v7, 10, v8")
    a("v_and_b32 v7, 15, v0")
    a("v_lshl_add_u32 v8, v7, 4, v8")
    a("s_lshr_b32 s30, s3, 3")
    a("s_mul_i32 s30, s30, 73728")
    a("s_bfe_u32 s31, s3, 0x10002")
    a("s_mul_i32 s31, s31, 6144")
    a("s_add_u32 s30, s30, s31")
    a("s_and_b32 s31, s3, 3")
    a("s_lshl_b32 s31, s31, 8")
    a("s_add_u32 s30, s30, s31")
    a(f"s_add_u32 s30, s30, {WS_HN}")
    a(f"s_mov_b32 s26, {fhex(1.0/576)}")
    a("v_lshrrev_b32 v9, 4, v0")
    a("v_lshlrev_b32 v9, 6, v9")
    a("v_and_b32 v27, 15, v1")
    a("v_lshlrev_b32 v27, 2, v27")
    a("s_waitcnt vmcnt(0)")
    st(1)
    X = 32
    for i in range(4):
        for k in range(4):
            a(f"v_lshlrev_b32 v{X+8*i+2*k}, 16, v{10+4*i+k}")
            a(f"v_and_b32 v{X+8*i+2*k+1}, 0xffff0000, v{10+4*i+k}")
    a("v_lshlrev_b32 v26, 16, v26")
    S = 64
    for i in range(3):
        for e in range(8):
            a(f"v_sub_f32 v{80+8*i+e}, v{X+8*i+e}, v{56+e}")
    for e in range(8):
        a(f"v_add_f32 v{S+e}, v{80+e}, v{88+e}")
        a(f"v_mul_f32 v{S+8+e}, v{80+e}, v{80+e}")
    for e in range(8):
        a(f"v_add_f32 v{S+e}, v{S+e}, v{96+e}")
        a(f"v_fmac_f32 v{S+8+e}, v{88+e}, v{88+e}")
    for e in range(8):
        a(f"v_fmac_f32 v{S+8+e}, v{96+e}, v{96+e}")
    for mode in ("quad_perm:[1,0,3,2]", "quad_perm:[2,3,0,1]", "row_half_mirror", "row_mirror"):
        for e in range(16):
            a(f"v_add_f32_dpp v{S+e}, v{S+e}, v{S+e} {mode} row_mask:0xf bank_mask:0xf")
    a("v_and_b32 v28, 15, v1")
    a("v_cmp_eq_u32 vcc, 0, v28")
    a("s_and_saveexec_b64 s[32:33], vcc")
    for k in range(4):
        a(f"ds_write_b128 v9, v[{S+4*k}:{S+4*k+3}] offset:{16*k}")
    a("s_mov_b64 exec, s[32:33]")
    a("s_waitcnt lgkmcnt(0)")
    a("s_barrier")
    st(2)
    for r in range(12):
        a(f"ds_read_b32 v{80+r}, v27 offset:{64*r}")
    a("s_waitcnt lgkmcnt(0)")
    for k in range(6): a(f"v_add_f32 v{80+k}, v{80+k}, v{86+k}")
    for k in range(3): a(f"v_add_f32 v{80+k}, v{80+k}, v{83+k}")
    a("v_add_f32 v80, v80, v81")
    a("v_add_f32 v80, v80, v82")
    a("v_mov_b32_dpp v81, v80 row_ror:8 row_mask:0xf bank_mask:0xf")
    a("v_and_b32 v28, 8, v1")
    a("v_cmp_eq_u32 vcc, 0, v28")
    a("v_cndmask_b32 v82, v81, v80, vcc")
    a("v_cndmask_b32 v83, v80, v81, vcc")
    a("v_mul_f32 v82, s26, v82")
    a("v_mul_f32 v83, s26, v83")
    a("v_fma_f32 v83, -v82, v82, v83")
    a("v_max_f32 v83, 0, v83")
    a("v_add_f32 v82, v82, v26")
    bf16_round(a, 82, 82)
    bf16_round(a, 83, 83)
    a(f"v_add_f32 v83, {fhex(1e-5)}, v83")
    bf16_round(a, 83, 83)
    a("v_sqrt_f32 v83, v83")
    bf16_round(a, 83, 83)
    a("v_rcp_f32 v83, v83")
    for e in range(8):
        a(f"v_readlane_b32 s{40+e}, v82, {e}")
        a(f"v_readlane_b32 s{48+e}, v83, {e}")
    for i in range(3):
        for k in range(4):
            x0 = X + 8*i + 2*k; x1 = x0 + 1
            a(f"v_subrev_f32 v{x0}, s{40+2*k}, v{x0}")
            a(f"v_subrev_f32 v{x1}, s{41+2*k}, v{x1}")
            a(f"v_cvt_pk_bf16_f32 v{84+k}, v{x0}, v{x1}")
        for k in range(4):
            x0 = X + 8*i + 2*k; x1 = x0 + 1
            a(f"v_lshlrev_b32 v{x0}, 16, v{84+k}")
            a(f"v_and_b32 v{x1}, 0xffff0000, v{84+k}")
        for k in range(4):
            x0 = X + 8*i + 2*k; x1 = x0 + 1
            a(f"v_mul_f32 v{x0}, s{48+2*k}, v{x0}")
            a(f"v_mul_f32 v{x1}, s{49+2*k}, v{x1}")
            a(f"v_cvt_pk_bf16_f32 v{10+4*i+k}, v{x0}, v{x1}")
        a(f"s_add_u32 s31, s30, {i*2*12288}")
        a(f"buffer_store_dwordx4 v[{10+4*i}:{13+4*i}], v8, s[8:11], s31 offen")
    if K3ST:
        st(3)
        a("s_waitcnt vmcnt(0)")
        st(4)
        a("s_waitcnt lgkmcnt(0)")
        srd(a, 8, 6, 7, 0x4000000)
        for i in range(5): a(f"v_mov_b32 v{10+i}, s{60+2*i}")
        a("v_mov_b32 v15, s94")
        a("v_mov_b32 v16, 0"); a("v_mov_b32 v17, 0")
        a("s_lshl_b32 s31, s2, 5")
        a("s_add_u32 s31, s31, 0x2800000")
        a("v_mov_b32 v6, 0")
        a("s_mov_b64 exec, 1")
        a("v_readfirstlane_b32 s32, v0")
        a("s_cmp_lg_u32 s32, 0")
        a("s_cbranch_scc1 K3_END")
        a("buffer_store_dwordx4 v[10:13], v6, s[8:11], s31 offen")
        a("buffer_store_dwordx4 v[14:17], v6, s[8:11], s31 offen offset:16")
    a("s_branch K3_END")
    a.label("K3_PF")
    gen_prefetch(a, 3, K3_NWG, "K3_END")
    a.label("K3_END")
    kst_end(a, 2, K3_NWG + PF[3].nwg)
    a("s_endpgm")
    return name, 104, 1024
```

```python
import sys
sys.path.insert(0, 'gen')
from asmlib import *

NAME = "sequential_preLN__ssm_conv_s4d__mixer_token_mlp__prompt"
L, D, NM, F = 2048, 576, 128, 4608
WS_UT = 0x0
WS_XT = 0x240000
WS_R  = 0x480000
RSTRIDE = 8256; ROFF = 4128
WS_HT = 0x910000
WS_HN = 0xB50000
WS_G  = 0xD90000
WS_END = 0x12A0000
LOG2E = 0x3fb8aa3b
INV2PI = 0x3e22f983

def fhex(x):
    import struct
    return "0x%08x" % struct.unpack('<I', struct.pack('<f', x))[0]

def srd(a, s, lo, hi, size):
    a(f"s_mov_b32 s{s}, s{lo}")
    a(f"s_and_b32 s{s+1}, s{hi}, 0xffff")
    a(f"s_mov_b32 s{s+2}, {hex(size)}")
    a(f"s_mov_b32 s{s+3}, 0x00020000")

def kernel_head(a, name):
    a.raw(f".globl {name}\n.p2align 8\n.type {name},@function\n{name}:")

import os
STAMP = 'kst' in os.environ.get('GOPT', '').split(',')
STAMP_BASE = 0x3000000
def kst_begin(a):
    if not STAMP: return
    a("s_memrealtime s[94:95]")
    a("v_readfirstlane_b32 s93, v0")
def kst_end(a, kidx, nwg):
    if not STAMP: return
    lab = f"KST_{kidx}"
    a(f"s_cmp_ge_u32 s2, {nwg}")
    a(f"s_cbranch_scc1 {lab}")
    a("s_mov_b64 exec, -1")
    a("s_waitcnt vmcnt(0) lgkmcnt(0)")
    a("s_lshr_b32 s86, s93, 6")
    a("s_memrealtime s[92:93]")
    a("s_load_dwordx2 s[6:7], s[0:1], 112")
    a("s_waitcnt lgkmcnt(0)")
    srd(a, 88, 6, 7, 0x4000000)
    a("s_lshl_b32 s86, s86, 3")
    a("v_mov_b32 v2, s86")
    a(f"s_lshl_b32 s87, s2, 7")
    a(f"s_add_u32 s87, s87, {STAMP_BASE + kidx * 0x20000}")
    a("v_mov_b32 v0, s94")
    a("v_mov_b32 v1, s92")
    a("s_mov_b64 exec, 1")
    a("buffer_store_dwordx2 v[0:1], v2, s[88:91], s87 offen")
    a.label(lab)

def kernel_desc(name, vgpr, sgpr=96, accum=None):
    acc = accum if accum is not None else ((vgpr + 3) // 4) * 4
    return f""".amdhsa_kernel {name}
  .amdhsa_next_free_vgpr {vgpr}
  .amdhsa_next_free_sgpr {sgpr}
  .amdhsa_accum_offset {acc}
  .amdhsa_group_segment_fixed_size 0
  .amdhsa_kernarg_size 120
  .amdhsa_user_sgpr_count 2
  .amdhsa_user_sgpr_kernarg_segment_ptr 1
  .amdhsa_system_sgpr_workgroup_id_x 1
.end_amdhsa_kernel
"""

class PFC:
    def __init__(s, nwg, nwv, jobs): s.nwg = nwg; s.nwv = nwv; s.jobs = jobs
def _pfopt():
    d = {1: PFC(0, 4, []), 2: PFC(0, 4, []), 3: PFC(0, 3, [])}
    for o in os.environ.get('GOPT', '').split(','):
        if o.startswith('pf='):
            for k, spec in enumerate(o[3:].split('/')):
                if not spec or spec == '0': continue
                n, js = spec.split(':')
                d[k + 1].nwg = int(n)
                d[k + 1].jobs = [tuple(int(x) for x in j.split('.')) for j in js.split('+')]
    return d
PF = _pfopt()
def gen_prefetch(a, k, nmain, endlab):
    c = PF[k]
    if c.nwg == 0:
        a(f"s_branch {endlab}")
        return
    assert c.nwg % 8 == 0 and nmain % 8 == 0
    a(f"s_cmp_ge_u32 s2, {nmain + c.nwg}")
    a(f"s_cbranch_scc1 {endlab}")
    a("s_load_dwordx2 s[16:17], s[0:1], 64")
    a("s_load_dwordx2 s[18:19], s[0:1], 80")
    a("v_and_b32 v1, 63, v0")
    a("v_lshrrev_b32 v2, 6, v0")
    a("v_readfirstlane_b32 s27, v2")
    a(f"s_sub_u32 s3, s2, {nmain}")
    a("s_lshr_b32 s3, s3, 3")
    a(f"s_mul_i32 s3, s3, {c.nwv}")
    a("s_add_u32 s3, s3, s27")
    a("s_and_b32 s4, s2, 7")
    NWX = c.nwg // 8 * c.nwv
    a("s_waitcnt lgkmcnt(0)")
    for ji, (buf, r0, r1) in enumerate(c.jobs):
        pitch = 9216 if buf == 1 else 4096
        RPI = 6 if buf == 1 else 16
        if buf == 1:
            srd(a, 8, 16, 17, r1 * pitch)
            a("v_min_u32 v3, 59, v1")
            a("v_mul_u32_u24 v4, 52, v3")
            a("v_lshrrev_b32 v4, 9, v4")
            a("v_mul_u32_u24 v5, 10, v4")
            a("v_sub_u32 v5, v3, v5")
            a("s_mul_i32 s5, s4, 27*171")
            a("s_lshr_b32 s5, s5, 10")
            a("s_lshl_b32 s5, s5, 8")
        else:
            srd(a, 8, 18, 19, r1 * pitch)
            a("v_lshrrev_b32 v4, 2, v1")
            a("v_and_b32 v5, 3, v1")
            a("s_lshl_b32 s5, s4, 9")
        a(f"v_mul_u32_u24 v4, {pitch}, v4")
        a("v_lshl_add_u32 v4, v5, 7, v4")
        a(f"s_mul_i32 s20, s3, {RPI*pitch}")
        a("s_add_u32 s20, s20, s5")
        a(f"s_add_u32 s20, s20, {r0*pitch}")
        n = -(-(r1 - r0) // (RPI * NWX))
        for i in range(n):
            a(f"buffer_load_dword v{8 + (i % 8)}, v4, s[8:11], s20 offen")
            if i < n - 1: a(f"s_add_u32 s20, s20, {NWX*RPI*pitch}")
            if i % 8 == 7 and i < n - 1: a("s_waitcnt vmcnt(24)")
    a(f"s_branch {endlab}")

def bf16_round(a, dst, src, tmp=None):
    a(f"v_cvt_pk_bf16_f32 v{dst}, v{src}, v{src}")
    a(f"v_and_b32 v{dst}, 0xffff0000, v{dst}")

def exp_precise(a, dst, src, t0, t1, sL, sLlo, sLn2):
    a(f"v_mul_f32 v{t0}, s{sL}, v{src}")
    a(f"v_fma_f32 v{t1}, v{src}, s{sL}, -v{t0}")
    a(f"v_fma_f32 v{t1}, v{src}, s{sLlo}, v{t1}")
    a(f"v_exp_f32 v{dst}, v{t0}")
    a(f"v_mul_f32 v{t1}, s{sLn2}, v{t1}")
    a(f"v_fma_f32 v{dst}, v{dst}, v{t1}, v{dst}")

def gen_k1(a):
    name = "k1_kernel"
    kernel_head(a, name)
    kst_begin(a)
    a("s_cmp_ge_u32 s2, 640")
    a("s_cbranch_scc1 K1_PF")
    a("s_load_dwordx2 s[4:5], s[0:1], 0")
    a("s_load_dwordx2 s[6:7], s[0:1], 112")
    a("s_load_dwordx8 s[16:23], s[0:1], 8")
    a("s_load_dwordx2 s[24:25], s[0:1], 40")
    a("s_cmp_ge_u32 s2, 64")
    a("s_cbranch_scc1 K1_KGEN")
    a("s_waitcnt lgkmcnt(0)")
    srd(a, 8, 4, 5, L * D * 2)
    srd(a, 12, 6, 7, WS_R)
    PITCH = 1216
    a("v_lshrrev_b32 v1, 3, v0")
    a("v_and_b32 v2, 7, v0")
    a("s_lshl_b32 s3, s2, 5")
    a("v_add_u32 v3, s3, v1")
    a("s_movk_i32 s26, 1152")
    a("v_mul_lo_u32 v3, v3, s26")
    a("v_lshl_add_u32 v3, v2, 4, v3")
    for i in range(9):
        a(f"buffer_load_dwordx4 v[{10+4*i}:{13+4*i}], v3, s[8:11], 0 offen offset:{128*i}")
    a(f"s_movk_i32 s26, {PITCH}")
    a("v_mul_lo_u32 v4, v1, s26")
    a("v_lshl_add_u32 v4, v2, 4, v4")
    a("v_and_b32 v5, 63, v0")
    a("v_lshrrev_b32 v6, 6, v0")
    a("v_readfirstlane_b32 s27, v6")
    a("v_bfe_u32 v7, v5, 2, 2")
    a("v_mul_lo_u32 v7, v7, s26")
    a("v_lshrrev_b32 v8, 4, v5")
    a("v_lshl_add_u32 v7, v8, 5, v7")
    a("v_and_b32 v8, 3, v5")
    a("v_lshl_add_u32 v7, v8, 3, v7")
    a("s_lshl_b32 s28, s2, 6")
    a("v_lshlrev_b32 v9, 12, v5")
    a("v_add_u32 v9, s28, v9")
    a("s_waitcnt vmcnt(0)")
    for i in range(9):
        a(f"ds_write_b128 v4, v[{10+4*i}:{13+4*i}] offset:{128*i}")
    for i in range(36):
        a(f"v_lshlrev_b32 v{50+2*i}, 16, v{10+i}")
        a(f"v_and_b32 v{51+2*i}, 0xffff0000, v{10+i}")
    a("v_add_f32 v122, v50, v51")
    a("v_add_f32 v123, v52, v53")
    a("v_add_f32 v124, v54, v55")
    a("v_add_f32 v125, v56, v57")
    for i in range(2, 18):
        for q in range(4):
            a(f"v_add_f32 v{122+q}, v{122+q}, v{50+4*i+q}")
    a("v_add_f32 v122, v122, v123")
    a("v_add_f32 v124, v124, v125")
    a("v_add_f32 v122, v122, v124")
    def red8(r, t):
        a(f"v_add_f32_dpp v{r}, v{r}, v{r} quad_perm:[1,0,3,2] row_mask:0xf bank_mask:0xf")
        a(f"v_add_f32_dpp v{r}, v{r}, v{r} quad_perm:[2,3,0,1] row_mask:0xf bank_mask:0xf")
        a(f"v_add_f32_dpp v{r}, v{r}, v{r} row_half_mirror row_mask:0xf bank_mask:0xf")
    red8(122, None)
    a(f"s_mov_b32 s26, {fhex(1.0/576)}")
    a("v_mul_f32 v126, s26, v122")
    a("s_waitcnt lgkmcnt(0)")
    a("s_barrier")
    def transpose_store(ws_off):
        for u in range(3):
            lab = a.newlabel("K1_SKIP")
            if u == 2:
                a("s_cmp_lg_u32 s27, 0")
                a(f"s_cbranch_scc1 {lab}")
            a(f"s_lshl_b32 s29, s27, 7")
            a(f"s_add_u32 s29, s29, {u*4*128}")
            a(f"v_add_u32 v127, s29, v7")
            for Q in range(8):
                a(f"ds_read_b64_tr_b16 v[{130+2*Q}:{131+2*Q}], v127 offset:{Q*4*PITCH}")
            a(f"s_lshl_b32 s29, s27, 18")
            a(f"s_add_u32 s29, s29, {ws_off + u*4*64*4096}")
            a("s_waitcnt lgkmcnt(0)")
            for q in range(4):
                a(f"buffer_store_dwordx4 v[{130+4*q}:{133+4*q}], v9, s[12:15], s29 offen offset:{16*q}")
            if u == 2: a.label(lab)
            a("s_nop 1")
    transpose_store(WS_XT)
    for i in range(72):
        a(f"v_sub_f32 v{150+0}, v{50+i}, v126") if False else None
    a("v_sub_f32 v127, v50, v126"); a("v_mul_f32 v122, v127, v127")
    a("v_sub_f32 v127, v51, v126"); a("v_mul_f32 v123, v127, v127")
    a("v_sub_f32 v127, v52, v126"); a("v_mul_f32 v124, v127, v127")
    a("v_sub_f32 v127, v53, v126"); a("v_mul_f32 v125, v127, v127")
    for i in range(4, 72):
        t = 146 + (i % 4)
        a(f"v_sub_f32 v{t}, v{50+i}, v126")
        a(f"v_fmac_f32 v{122+(i%4)}, v{t}, v{t}")
    a("v_add_f32 v122, v122, v123")
    a("v_add_f32 v124, v124, v125")
    a("v_add_f32 v122, v122, v124")
    red8(122, None)
    a("v_mul_f32 v122, s26, v122")
    bf16_round(a, 126, 126)
    bf16_round(a, 122, 122)
    a(f"v_add_f32 v122, {fhex(1e-5)}, v122")
    bf16_round(a, 122, 122)
    a("v_sqrt_f32 v122, v122")
    bf16_round(a, 122, 122)
    a("v_rcp_f32 v122, v122")
    for i in range(36):
        x0, x1 = 50 + 2*i, 51 + 2*i
        a(f"v_sub_f32 v{x0}, v{x0}, v126")
        a(f"v_sub_f32 v{x1}, v{x1}, v126")
        a(f"v_cvt_pk_bf16_f32 v146, v{x0}, v{x1}")
        a(f"v_lshlrev_b32 v{x0}, 16, v146")
        a(f"v_and_b32 v{x1}, 0xffff0000, v146")
        a(f"v_mul_f32 v{x0}, v{x0}, v122")
        a(f"v_mul_f32 v{x1}, v{x1}, v122")
        a(f"v_cvt_pk_bf16_f32 v{10+i}, v{x0}, v{x1}")
    a("s_barrier")
    for i in range(9):
        a(f"ds_write_b128 v4, v[{10+4*i}:{13+4*i}] offset:{128*i}")
    a("s_waitcnt lgkmcnt(0)")
    a("s_barrier")
    transpose_store(WS_UT)
    a("s_branch K1_END")

    a.label("K1_KGEN")
    a("s_sub_u32 s3, s2, 64")
    a("v_and_b32 v1, 63, v0")
    a("v_lshrrev_b32 v2, 6, v0")
    a("v_readfirstlane_b32 s27, v2")
    a("v_lshrrev_b32 v3, 4, v1")
    a("v_and_b32 v4, 15, v1")
    a("s_lshl_b32 s28, s3, 8")
    a("v_lshlrev_b32 v5, 6, v2")
    a("v_lshl_add_u32 v5, v3, 4, v5")
    a("v_add_u32 v5, s28, v5")
    a("s_waitcnt lgkmcnt(0)")
    srd(a, 8, 16, 17, D * NM * 2)
    a("buffer_load_dwordx4 v[10:13], v5, s[8:11], 0 offen")
    srd(a, 28, 18, 19, D * NM * 2)
    a("buffer_load_dwordx4 v[14:17], v5, s[28:31], 0 offen")
    srd(a, 32, 20, 21, D * NM * 2)
    a("buffer_load_dwordx4 v[18:21], v5, s[32:35], 0 offen")
    srd(a, 36, 22, 23, D * NM * 2)
    a("buffer_load_dwordx4 v[22:25], v5, s[36:39], 0 offen")
    srd(a, 40, 24, 25, D * 2)
    a("s_lshl_b32 s44, s3, 1")
    a("v_mov_b32 v6, s44")
    a("buffer_load_ushort v26, v6, s[40:43], 0 offen")
    srd(a, 12, 6, 7, WS_HT)
    a("v_lshlrev_b32 v27, 3, v4")
    a("v_cvt_f32_u32 v27, v27")
    a("v_and_b32 v28, 7, v4")
    a("v_lshrrev_b32 v29, 3, v4")
    a("v_lshl_add_u32 v28, v29, 7, v28")
    a("v_cvt_f32_u32 v28, v28")
    a("v_lshrrev_b32 v29, 2, v4")
    a("v_lshlrev_b32 v29, 7, v29")
    a("v_and_b32 v30, 3, v4")
    a("v_lshl_add_u32 v29, v30, 1, v29")
    a("v_add_u32 v29, 256, v29")
    a("v_subrev_u32 v30, 8, v4")
    a("v_lshrrev_b32 v30, 1, v30")
    a("v_lshlrev_b32 v30, 7, v30")
    a("v_and_b32 v31, 1, v4")
    a("v_lshl_add_u32 v30, v31, 2, v30")
    a("v_add_u32 v30, 512, v30")
    a("v_cmp_gt_u32 vcc, 8, v4")
    a("v_cndmask_b32 v29, v30, v29, vcc")
    a("v_cvt_f32_u32 v29, v29")
    a("v_lshlrev_b32 v30, 7, v4")
    a("v_add_u32 v30, 1024, v30")
    a("v_cvt_f32_u32 v30, v30")
    a(f"s_mov_b32 s44, {hex(LOG2E)}")
    a(f"s_mov_b32 s45, {fhex(1.4426950408889634 - 1.4426950216293335)}")
    a(f"s_mov_b32 s46, {fhex(0.6931471805599453)}")
    a(f"s_mov_b32 s47, {hex(INV2PI)}")
    a("s_waitcnt vmcnt(0)")
    a("v_lshlrev_b32 v26, 16, v26")
    exp_precise(a, 31, 26, 32, 33, 44, 45, 46)
    bf16_round(a, 31, 31)
    for t in range(8):
        src = 10 + t // 2
        if t % 2 == 0:
            un = lambda d, s: a(f"v_lshlrev_b32 v{d}, 16, v{s}")
        else:
            un = lambda d, s: a(f"v_and_b32 v{d}, 0xffff0000, v{s}")
        un(32, 10 + t // 2)
        exp_precise(a, 33, 32, 34, 35, 44, 45, 46)
        bf16_round(a, 33, 33)
        a(f"v_mul_f32 v33, v33, v31")
        a(f"v_mul_f32 v{40+t}, s44, v33")
        a(f"v_sub_f32 v{40+t}, 0, v{40+t}")
        un(32, 14 + t // 2)
        a(f"v_mul_f32 v32, v32, v31")
        a(f"v_mul_f32 v{48+t}, s47, v32")
        un(32, 18 + t // 2)
        a(f"v_mul_f32 v32, v32, v31")
        a(f"v_add_f32 v{56+t}, v32, v32")
        un(32, 22 + t // 2)
        a(f"v_mul_f32 v32, v32, v31")
        a(f"v_add_f32 v{64+t}, v32, v32")
    for r in range(12): a(f"v_mov_b32 v{80+r}, 0")
    P = [28, 29, 30]
    for t in range(8):
        ar, ai, cr, ci = 40 + t, 48 + t, 56 + t, 64 + t
        a(f"v_mul_f32 v72, v{ar}, v27")
        a(f"v_mul_f32 v73, v{ai}, v27")
        a(f"v_exp_f32 v72, v72")
        a(f"v_fract_f32 v73, v73")
        a(f"v_cos_f32 v74, v73")
        a(f"v_sin_f32 v75, v73")
        a(f"v_mul_f32 v74, v72, v74")
        a(f"v_mul_f32 v75, v72, v75")
        for T in range(3):
            b = 92 + 8 * T
            a(f"v_mul_f32 v{b}, v{ar}, v{P[T]}")
            a(f"v_mul_f32 v{b+1}, v{ai}, v{P[T]}")
            a(f"v_exp_f32 v{b}, v{b}")
            a(f"v_fract_f32 v{b+1}, v{b+1}")
            a(f"v_cos_f32 v{b+2}, v{b+1}")
            a(f"v_sin_f32 v{b+3}, v{b+1}")
            a(f"v_mul_f32 v{b+4}, v{cr}, v{b+2}")
            a(f"v_mul_f32 v{b+5}, v{cr}, v{b+3}")
            a(f"v_fma_f32 v{b+4}, -v{ci}, v{b+3}, v{b+4}")
            a(f"v_fma_f32 v{b+5}, v{ci}, v{b+2}, v{b+5}")
            a(f"v_mul_f32 v{b+4}, v{b}, v{b+4}")
            a(f"v_mul_f32 v{b+5}, -v{b}, v{b+5}")
        for T in range(3):
            b = 92 + 8 * T
            a(f"v_mfma_f32_16x16x4_f32 v[{80+4*T}:{83+4*T}], v{b+4}, v74, v[{80+4*T}:{83+4*T}]")
        for T in range(3):
            b = 92 + 8 * T
            a(f"v_mfma_f32_16x16x4_f32 v[{80+4*T}:{83+4*T}], v{b+5}, v75, v[{80+4*T}:{83+4*T}]")
    a("v_lshlrev_b32 v5, 4, v1")
    a("s_mul_i32 s28, s27, 3072")
    a("v_add_u32 v5, s28, v5")
    for T in range(3):
        a(f"ds_write_b128 v5, v[{80+4*T}:{83+4*T}] offset:{1024*T}")
    a("s_waitcnt lgkmcnt(0)")
    a("s_barrier")
    KC = 12288
    a("s_cmp_eq_u32 s27, 3")
    a("s_cbranch_scc1 K1_KG_ZERO")
    a("v_lshlrev_b32 v5, 4, v1")
    a("s_lshl_b32 s28, s27, 10")
    a("v_add_u32 v5, s28, v5")
    for w in range(4):
        a(f"ds_read_b128 v[{80+4*w}:{83+4*w}], v5 offset:{3072*w}")
    a("s_cmp_eq_u32 s27, 1")
    a("s_cbranch_scc1 K1_KG_T1")
    a("s_cmp_eq_u32 s27, 2")
    a("s_cbranch_scc1 K1_KG_T2")
    a("v_and_b32 v100, 1, v3")
    a("v_lshlrev_b32 v100, 2, v100")
    a("v_lshrrev_b32 v101, 1, v3")
    a("v_lshl_add_u32 v100, v101, 7, v100")
    a("v_lshl_add_u32 v100, v4, 3, v100")
    for r in range(1, 4): a(f"v_add_u32 v{100+r}, {r}, v100")
    a("s_branch K1_KG_SC")
    a.label("K1_KG_T1")
    a("v_lshlrev_b32 v104, 6, v3")
    a("v_lshl_add_u32 v104, v4, 2, v104")
    a("v_add_u32 v104, 256, v104")
    a("v_lshlrev_b32 v105, 6, v3")
    a("v_lshl_add_u32 v105, v4, 1, v105")
    a("v_add_u32 v105, 256, v105")
    a("v_cmp_gt_u32 vcc, 2, v3")
    for r in range(4):
        a(f"v_add_u32 v106, {r}, v104")
        a(f"v_add_u32 v107, {32*(r>>1)+(r&1)}, v105")
        a(f"v_cndmask_b32 v{100+r}, v107, v106, vcc")
    a("s_branch K1_KG_SC")
    a.label("K1_KG_T2")
    a("v_lshlrev_b32 v100, 6, v3")
    a("v_add_u32 v100, v4, v100")
    a("v_add_u32 v100, 512, v100")
    for r in range(1, 4): a(f"v_add_u32 v{100+r}, {16*r}, v100")
    a.label("K1_KG_SC")
    a("s_waitcnt lgkmcnt(0)")
    for r in range(4):
        a(f"v_add_f32 v{80+r}, v{80+r}, v{84+r}")
        a(f"v_add_f32 v{88+r}, v{88+r}, v{92+r}")
        a(f"v_add_f32 v{80+r}, v{80+r}, v{88+r}")
        a(f"v_lshlrev_b32 v{100+r}, 2, v{100+r}")
        a(f"ds_write_b32 v{100+r}, v{80+r} offset:{KC}")
    a("s_branch K1_KG_EXP")
    a.label("K1_KG_ZERO")
    a("v_mov_b32 v5, 0")
    a(f"ds_write_b32 v5, v5 offset:{KC + 768*4}")
    a.label("K1_KG_EXP")
    a("s_waitcnt lgkmcnt(0)")
    a("s_barrier")
    a("v_lshlrev_b32 v5, 3, v0")
    a("v_sub_u32 v5, 2047, v5")
    for e in range(9):
        a(f"v_subrev_u32 v{10+e}, {e}, v5")
        a(f"v_cvt_f32_i32 v{20+e}, v{10+e}")
    for e in range(0, 9, 2):
        e1 = min(e + 1, 8)
        a(f"v_cvt_pk_bf16_f32 v{30+e//2}, v{20+e}, v{20+e1}")
    for e in range(9):
        src = 30 + e // 2
        if e % 2 == 0: a(f"v_and_b32 v{20+e}, 0xffff, v{src}")
        else: a(f"v_lshrrev_b32 v{20+e}, 16, v{src}")
        a(f"v_subrev_u32 v{20+e}, 17024, v{20+e}")
        a(f"v_min_u32 v36, 127, v{10+e}")
        a(f"v_max_i32 v{20+e}, v{20+e}, v36")
    a("v_cmp_gt_i32 vcc, 0, v18")
    a("v_mov_b32 v36, 768")
    a("v_cndmask_b32 v28, v28, v36, vcc")
    for e in range(9):
        a(f"v_lshlrev_b32 v{20+e}, 2, v{20+e}")
        a(f"ds_read_b32 v{40+e}, v{20+e} offset:{KC}")
    a("s_mul_i32 s28, s3, %d" % RSTRIDE)
    a(f"s_add_u32 s28, s28, {WS_R}")
    a("v_lshlrev_b32 v5, 4, v0")
    a("s_waitcnt lgkmcnt(0)")
    for k in range(4):
        a(f"v_cvt_pk_bf16_f32 v{52+k}, v{40+2*k}, v{41+2*k}")
        a(f"v_cvt_pk_bf16_f32 v{56+k}, v{41+2*k}, v{42+2*k}")
    a("buffer_store_dwordx4 v[52:55], v5, s[12:15], s28 offen")
    a(f"buffer_store_dwordx4 v[56:59], v5, s[12:15], s28 offen offset:{ROFF - 4096}") if False else None
    a(f"v_add_u32 v6, {ROFF}, v5")
    a("buffer_store_dwordx4 v[56:59], v6, s[12:15], s28 offen")
    a("v_cmp_gt_u32 vcc, 2, v0")
    a("s_and_saveexec_b64 s[30:31], vcc")
    a("s_cbranch_execz K1_END")
    for r in range(4): a(f"v_mov_b32 v{60+r}, 0")
    a("v_add_u32 v5, 4096, v5")
    a("v_add_u32 v6, 4096, v6")
    a("buffer_store_dwordx4 v[60:63], v5, s[12:15], s28 offen")
    a("buffer_store_dwordx4 v[60:63], v6, s[12:15], s28 offen")
    a("s_branch K1_END")
    a.label("K1_PF")
    gen_prefetch(a, 1, 640, "K1_END")
    a.label("K1_END")
    kst_end(a, 0, 640 + PF[1].nwg)
    a("s_endpgm")
    return name, 152, 38912

KERNELS = []
def build(kernels, launches):
    head = []
    ref = open('cdna_kernels/' + NAME + '.s.ref').read().split('\n')
    for ln in ref:
        if ln.startswith('; Kernarg') or ln.startswith(';   offset'):
            head.append(ln)
    for (k, grid, block, lds) in launches:
        head.append(f"; @launch kernel={k} grid=({grid},1,1) block=({block},1,1) lds={lds}")
    out = '\n'.join(head) + '\n.amdgcn_target "amdgcn-amd-amdhsa--gfx950"\n.text\n'
    descs = ''
    for gen in kernels:
        a = Asm()
        name, vg, lds = gen(a)
        out += render(insert_hazard_nops(a.lines))
        descs += kernel_desc(name, vg)
    out += '.section .rodata,"a"\n.p2align 6\n' + descs.replace('.amdhsa_kernel', '.p2align 6\n.amdhsa_kernel')
    return out

if __name__ == '__main__':
    from gen_rest import *
    main()
```

```python
from gen import *
import os, math
OPT = os.environ.get('GOPT', '').split(',')
def opt_int(name, default):
    for o in OPT:
        if o.startswith(name + '='): return int(o.split('=')[1])
    return default

ASLOT = 12288

class GC:
    def __init__(s, kind):
        s.kind = kind
        s.TW = 128 if kind == 1 else 64
        s.NJ = s.TW // 32
        s.NS = opt_int('ns1', 4) if kind == 1 else opt_int('ns2', 6)
        s.PD = opt_int('pd1', 10) if kind == 1 else opt_int('pd2', 12)
        s.nstg = 32 if kind == 1 else 72
        s.ntn = 36 if kind == 1 else 32
        s.WPITCH = 9216 if kind == 1 else 4096
        s.ROWB = s.TW * 2
        s.WSLOT = 64 * s.ROWB
        s.ACT0 = s.NS * s.WSLOT
        s.HT0 = s.ACT0 + s.NS * ASLOT
        s.LDS = s.HT0 + (96 * s.ROWB if kind == 2 else 0)
        s.NWG = 6 * s.ntn
        s.per_xcd = s.NWG // 8
        s.ACTBASE = WS_HN if kind == 1 else WS_G
        s.NWP = s.WSLOT // 4096
        s.PPS = (0 if 'noW' in OPT else s.NWP) + (0 if 'noA' in OPT else 3)

def gen_gemm(a, kind, name):
    C = GC(kind)
    NS, TW, NJ, nstg, WPITCH, ROWB, WSLOT, ACT0, HT0, NWG = C.NS, C.TW, C.NJ, C.nstg, C.WPITCH, C.ROWB, C.WSLOT, C.ACT0, C.HT0, C.NWG
    kernel_head(a, name)
    P = name.upper()[:2]
    END = f"{P}_END"; PROD = f"{P}_PROD"; PREF = f"{P}_PREF"
    kst_begin(a)
    a(f"s_cmp_ge_u32 s2, {NWG}")
    a(f"s_cbranch_scc1 {END}")
    a("s_load_dwordx2 s[6:7], s[0:1], 112")
    a(f"s_load_dwordx4 s[16:19], s[0:1], {64 if kind == 1 else 80}")
    a("s_load_dwordx2 s[20:21], s[0:1], 96")
    a("s_and_b32 s22, s2, 7")
    a("s_lshr_b32 s23, s2, 3")
    a(f"s_mul_i32 s3, s22, {C.per_xcd}")
    a("s_mul_i32 s24, s3, 171")
    a("s_lshr_b32 s24, s24, 10")
    a("s_add_u32 s3, s3, s23")
    a("s_mul_i32 s4, s3, 171")
    a("s_lshr_b32 s4, s4, 10")
    a("s_mul_i32 s5, s4, 6")
    a("s_sub_u32 s5, s3, s5")
    a("v_and_b32 v1, 63, v0")
    a("v_lshrrev_b32 v2, 6, v0")
    a("v_readfirstlane_b32 s27, v2")
    a("v_lshrrev_b32 v3, 4, v1")
    a("s_waitcnt lgkmcnt(0)")
    srd(a, 8, 16, 17, 2048 * 4608 * 2)
    srd(a, 12, 6, 7, WS_END)
    a("s_cmp_ge_u32 s27, 4")
    a(f"s_cbranch_scc1 {PROD}")
    assert nstg % NS == 0
    nloop = nstg // NS - 1

    a("s_lshr_b32 s28, s27, 1")
    a("s_and_b32 s29, s27, 1")
    a("v_bfe_u32 v8, v1, 2, 2")
    a("v_and_b32 v9, 3, v1")
    if kind == 1:
        a("v_and_b32 v10, 1, v3")
        a("v_lshl_add_u32 v10, v10, 2, v8")
        a("v_lshl_add_u32 v11, v3, 3, v8")
        HOFF = 4 * ROWB
    else:
        a("v_lshl_add_u32 v11, v3, 2, v8")
        a("v_bfe_u32 v10, v11, 1, 2")
        HOFF = 16 * ROWB
    a(f"s_mul_i32 s30, s28, {NJ}")
    a("v_xor_b32 v10, s30, v10")
    a(f"s_movk_i32 s30, {ROWB}")
    a("v_mul_lo_u32 v11, v11, s30")
    a("v_lshl_add_u32 v11, v9, 3, v11")
    for jj in range(NJ):
        a(f"v_xor_b32 v12, {jj}, v10")
        a(f"v_lshl_add_u32 v{4+jj}, v12, 5, v11")
    a("s_mul_i32 s30, s29, 3072")
    a(f"s_add_u32 s30, s30, {ACT0}")
    a("v_lshlrev_b32 v8, 4, v1")
    a("v_add_u32 v8, s30, v8")
    a(f"v_add_u32 v9, {3*ASLOT}, v8")
    srd(a, 16, 18, 19, (4608 if kind == 1 else 2048) * 2)
    a(f"s_mul_i32 s30, s4, {TW*2}")
    a(f"s_mul_i32 s31, s28, {TW}")
    a("s_add_u32 s30, s30, s31")
    if kind == 1:
        a("v_lshlrev_b32 v10, 3, v3")
        for jj in range(NJ):
            a(f"buffer_load_dwordx2 v[{16+2*jj}:{17+2*jj}], v10, s[16:19], s30 offen offset:{32*jj}")
    else:
        a("v_and_b32 v10, 15, v1")
        a("v_lshlrev_b32 v10, 1, v10")
        for jj in range(NJ):
            a(f"buffer_load_ushort v{16+jj}, v10, s[16:19], s30 offen offset:{32*jj}")
    BPF = opt_int('bpf1', 0) if kind == 1 else opt_int('bpf2', 0)
    if BPF:
        nl = BPF * 576
        per = C.per_xcd * 256
        n = -(-nl // per)
        srd(a, 20, 6, 7, C.ACTBASE + min(nstg, NS + BPF) * 6 * ASLOT)
        a("s_lshl_b32 s30, s23, 2")
        a("s_add_u32 s30, s30, s27")
        a("s_lshl_b32 s30, s30, 13")
        a(f"s_add_u32 s30, s30, {C.ACTBASE + NS * 6 * ASLOT}")
        a("v_lshlrev_b32 v10, 7, v1")
        for k in range(n):
            a(f"buffer_load_dword v{24+(k%6)}, v10, s[20:23], s30 offen")
            if k < n - 1: a(f"s_add_u32 s30, s30, {per*128}")
    ACC = 160 if kind == 1 else 120
    SETSZ = 2 * (4 * NJ + 12)
    FA = [32, 32 + SETSZ]
    AO = 4 * NJ
    assert FA[1] + SETSZ <= ACC
    for r in range(12 * NJ): a(f"v_mov_b32 v{ACC+r}, 0")

    def reads(slot, st):
        out = []
        for kb in range(2):
            base = FA[st] + kb * (SETSZ // 2)
            def wr(jj):
                return [f"ds_read_b64_tr_b16 v[{base+4*jj+2*h}:{base+4*jj+2*h+1}], v{4+jj} offset:{slot*WSLOT + kb*32*ROWB + h*HOFF}" for h in range(2)]
            def ar(dd):
                va, so = (8, slot) if slot < 3 else (9, slot - 3)
                return [f"ds_read_b128 v[{base+AO+4*dd}:{base+AO+4*dd+3}], v{va} offset:{so*ASLOT + kb*6144 + dd*1024}"]
            out += wr(0) + ar(0) + ar(1) + ar(2)
            for jj in range(1, NJ): out += wr(jj)
        return out
    def mfmas(st):
        out = []
        for kb in range(2):
            base = FA[st] + kb * (SETSZ // 2)
            for jj in range(NJ):
                for dd in range(3):
                    acc = ACC + 4 * (jj * 3 + dd)
                    wf_ = f"v[{base+4*jj}:{base+4*jj+3}]"; af_ = f"v[{base+AO+4*dd}:{base+AO+4*dd+3}]"
                    if kind == 1:
                        out.append(f"v_mfma_f32_16x16x32_bf16 v[{acc}:{acc+3}], {wf_}, {af_}, v[{acc}:{acc+3}]")
                    else:
                        out.append(f"v_mfma_f32_16x16x32_bf16 v[{acc}:{acc+3}], {af_}, {wf_}, v[{acc}:{acc+3}]")
        return out
    NPRE = opt_int('npre1', 4) if kind == 1 else opt_int('npre2', 3)
    NRD = len(reads(0, 0))
    need = 5 + (2 if NPRE > 3 else 0) + (2 if NPRE > 6 else 0)
    def stage(slot, st, last):
        m = mfmas(st)
        if 'nomfma' in OPT: m = []
        a(f"s_waitcnt lgkmcnt({min(15, NRD - need)})")
        for ins in m[:NPRE]: a(ins)
        a("s_waitcnt lgkmcnt(0)")
        if last:
            for ins in m[NPRE:]: a(ins)
            return
        a("s_barrier")
        rd = reads((slot + 1) % NS, 1 - st)
        if 'nords' in OPT: rd = []
        rest = m[NPRE:]
        ng = max(1, len(rest) - 1)
        extra = max(0, len(rd) - ng)
        for i, ins in enumerate(rest):
            a(ins)
            n = 1 + (1 if i < extra else 0)
            if i == len(rest) - 1: n = len(rd)
            for _ in range(n):
                if rd: a(rd.pop(0))
        for r_ in rd: a(r_)
    a("s_barrier")
    if 'clk' in OPT:
        a("s_memtime s[64:65]"); a("s_memrealtime s[66:67]")
    for r in reads(0, 0): a(r)
    assert NS % 2 == 0
    a(f"s_movk_i32 s31, {nloop}")
    a.label(f"{P}_CLOOP")
    for s in range(NS): stage(s, s % 2, False)
    a("s_sub_u32 s31, s31, 1")
    a("s_cmp_lg_u32 s31, 0")
    a(f"s_cbranch_scc1 {P}_CLOOP")
    for s in range(NS): stage(s, s % 2, s == NS - 1)
    if 'clk' in OPT:
        a("s_memtime s[68:69]"); a("s_memrealtime s[70:71]")
        a("s_waitcnt lgkmcnt(0)")
        a("s_sub_u32 s68, s68, s64")
        a("s_sub_u32 s70, s70, s66")
        a("v_mov_b32 v10, s68"); a("v_mov_b32 v11, s70")
        a("s_lshl_b32 s72, s2, 5")
        a("s_lshl_b32 s73, s27, 3")
        a("s_add_u32 s72, s72, s73")
        a(f"s_add_u32 s72, s72, {0x2900000 + (0 if kind == 1 else 0x10000)}")
        srd(a, 76, 6, 7, 0x4000000)
        a("v_mov_b32 v12, 0")
        a("buffer_store_dwordx2 v[10:11], v12, s[76:79], s72 offen")

    if kind == 1:
        a("s_waitcnt vmcnt(0)")
        for jj in range(4):
            a(f"v_lshlrev_b32 v{96+4*jj}, 16, v{16+2*jj}")
            a(f"v_and_b32 v{97+4*jj}, 0xffff0000, v{16+2*jj}")
            a(f"v_lshlrev_b32 v{98+4*jj}, 16, v{17+2*jj}")
            a(f"v_and_b32 v{99+4*jj}, 0xffff0000, v{17+2*jj}")
        c0 = -2.0 * math.sqrt(2.0 / math.pi) * 1.4426950408889634
        c1 = c0 * 0.044715
        a(f"s_mov_b32 s34, {fhex(c1)}"); a(f"s_mov_b32 s35, {fhex(c1)}")
        a(f"s_mov_b32 s36, {fhex(1.0)}"); a(f"s_mov_b32 s37, {fhex(1.0)}")
        a(f"v_mov_b32 v30, {fhex(c0)}"); a(f"v_mov_b32 v31, {fhex(c0)}")
        a("s_lshl_b32 s39, s4, 1")
        a("s_add_u32 s38, s39, s28")
        a("s_mul_i32 s38, s38, 6")
        a("s_add_u32 s38, s38, s5")
        a("s_mul_i32 s38, s38, 12288")
        a("s_mul_i32 s39, s29, 3072")
        a("s_add_u32 s38, s38, s39")
        a(f"s_add_u32 s38, s38, {WS_G}")
        a("v_lshlrev_b32 v9, 4, v1")
        a("s_add_u32 s39, s38, 6144")
        for kb in range(2):
            for dd in range(3):
                T = 32
                O = 112 + 4 * ((kb * 3 + dd) % 2)
                for t in range(2):
                    jj = 2 * kb + t
                    acc = ACC + 4 * (jj * 3 + dd)
                    for p in range(2):
                        x = T + 8 * t + 4 * p
                        a(f"v_cvt_pk_bf16_f32 v{x+2}, v{acc+2*p}, v{acc+2*p+1}")
                        a(f"v_lshlrev_b32 v{x}, 16, v{x+2}")
                        a(f"v_and_b32 v{x+1}, 0xffff0000, v{x+2}")
                        a(f"v_pk_add_f32 v[{x}:{x+1}], v[{x}:{x+1}], v[{96+4*jj+2*p}:{97+4*jj+2*p}]")
                        a(f"v_cvt_pk_bf16_f32 v{x+2}, v{x}, v{x+1}")
                        a(f"v_lshlrev_b32 v{x}, 16, v{x+2}")
                        a(f"v_and_b32 v{x+1}, 0xffff0000, v{x+2}")
                    for p in range(2):
                        x = T + 8 * t + 4 * p
                        a(f"v_pk_mul_f32 v[{x+2}:{x+3}], v[{x}:{x+1}], v[{x}:{x+1}]")
                        a(f"v_pk_fma_f32 v[{x+2}:{x+3}], v[{x+2}:{x+3}], s[34:35], v[30:31]")
                        a(f"v_pk_mul_f32 v[{x+2}:{x+3}], v[{x+2}:{x+3}], v[{x}:{x+1}]")
                    for p in range(2):
                        x = T + 8 * t + 4 * p
                        a(f"v_exp_f32 v{x+2}, v{x+2}")
                        a(f"v_exp_f32 v{x+3}, v{x+3}")
                    for p in range(2):
                        x = T + 8 * t + 4 * p
                        a(f"v_pk_add_f32 v[{x+2}:{x+3}], v[{x+2}:{x+3}], s[36:37]")
                    for p in range(2):
                        x = T + 8 * t + 4 * p
                        a(f"v_rcp_f32 v{x+2}, v{x+2}")
                        a(f"v_rcp_f32 v{x+3}, v{x+3}")
                    for p in range(2):
                        x = T + 8 * t + 4 * p
                        a(f"v_pk_mul_f32 v[{x}:{x+1}], v[{x}:{x+1}], v[{x+2}:{x+3}]")
                        a(f"v_cvt_pk_bf16_f32 v{O+2*t+p}, v{x}, v{x+1}")
                a(f"buffer_store_dwordx4 v[{O}:{O+3}], v9, s[12:15], s{38+kb} offen offset:{1024*dd}")
    else:
        a("s_waitcnt vmcnt(0)")
        for jj in range(NJ): a(f"v_lshlrev_b32 v{16+jj}, 16, v{16+jj}")
        a(f"s_mul_i32 s30, s29, {48*ROWB}")
        a(f"s_add_u32 s30, s30, {HT0}")
        for jj in range(NJ): a(f"v_add_u32 v{4+jj}, s30, v{4+jj}")
        for jj in range(NJ):
            for dd in range(3):
                r = 32 + 2 * (jj * 3 + dd)
                a(f"ds_read_b64_tr_b16 v[{r}:{r+1}], v{4+jj} offset:{dd*16*ROWB}")
        srd(a, 16, 20, 21, 2048 * 576 * 2)
        a("v_and_b32 v9, 15, v1")
        a("s_movk_i32 s30, 1152")
        a("v_mul_lo_u32 v9, v9, s30")
        a("v_lshl_add_u32 v9, v3, 3, v9")
        a(f"s_mul_i32 s30, s4, {TW}")
        a(f"s_mul_i32 s31, s28, {TW//2}")
        a("s_add_u32 s30, s30, s31")
        a("s_mul_i32 s30, s30, 1152")
        a("s_mul_i32 s31, s5, 192")
        a("s_add_u32 s30, s30, s31")
        a("s_mul_i32 s31, s29, 96")
        a("s_add_u32 s30, s30, s31")
        a("s_waitcnt lgkmcnt(0)")
        for jj in range(NJ):
            for dd in range(3):
                acc = ACC + 4 * (jj * 3 + dd)
                hr = 32 + 2 * (jj * 3 + dd)
                O = 64 + 2 * ((jj * 3 + dd) % 4)
                for p in range(2):
                    x = 80 + 4 * p
                    a(f"v_cvt_pk_bf16_f32 v{x+2}, v{acc+2*p}, v{acc+2*p+1}")
                    a(f"v_lshlrev_b32 v{x}, 16, v{x+2}")
                    a(f"v_and_b32 v{x+1}, 0xffff0000, v{x+2}")
                    a(f"v_add_f32 v{x}, v{x}, v{16+jj}")
                    a(f"v_add_f32 v{x+1}, v{x+1}, v{16+jj}")
                    a(f"v_cvt_pk_bf16_f32 v{x+2}, v{x}, v{x+1}")
                    a(f"v_lshlrev_b32 v{x}, 16, v{x+2}")
                    a(f"v_and_b32 v{x+1}, 0xffff0000, v{x+2}")
                    a(f"v_lshlrev_b32 v{x+2}, 16, v{hr+p}")
                    a(f"v_and_b32 v{x+3}, 0xffff0000, v{hr+p}")
                    a(f"v_add_f32 v{x}, v{x}, v{x+2}")
                    a(f"v_add_f32 v{x+1}, v{x+1}, v{x+3}")
                    a(f"v_cvt_pk_bf16_f32 v{O+p}, v{x}, v{x+1}")
                a(f"buffer_store_dwordx2 v[{O}:{O+1}], v9, s[16:19], s30 offen offset:{32*dd}")
            if jj < NJ - 1: a(f"s_add_u32 s30, s30, {16*1152}")
    a(f"s_branch {END}")

    a.label(PROD)
    a("s_sub_u32 s28, s27, 4")
    a(f"s_movk_i32 s30, {WPITCH}")
    if kind == 1:
        a("v_and_b32 v4, 15, v1")
        a("v_lshrrev_b32 v5, 1, v4")
        a("v_and_b32 v4, 1, v4")
        a("s_lshl_b32 s29, s28, 4")
        a("v_add_u32 v6, s29, v3")
        a("v_mul_lo_u32 v6, v6, s30")
        a("v_lshl_add_u32 v6, v4, 4, v6")
        for q in range(4):
            hi = (q >> 1)
            a(f"v_or_b32 v7, {hi << 2}, v3")
            a("v_xor_b32 v7, v7, v5")
            a(f"v_lshl_add_u32 v{10+q}, v7, 5, v6")
            if q: a(f"v_add_u32 v{10+q}, {q*(4*WPITCH - 1024)}, v{10+q}")
    else:
        a("v_bfe_u32 v5, v1, 1, 2")
        a("v_and_b32 v4, 1, v1")
        a("v_lshrrev_b32 v6, 3, v1")
        a("s_lshl_b32 s29, s28, 4")
        a("v_add_u32 v6, s29, v6")
        a("v_mul_lo_u32 v6, v6, s30")
        a("v_lshl_add_u32 v6, v4, 4, v6")
        a("v_xor_b32 v7, v3, v5")
        a("v_lshl_add_u32 v10, v7, 5, v6")
        a(f"v_add_u32 v11, {8*WPITCH - 1024}, v10")
    a("v_lshlrev_b32 v14, 4, v1")
    a("s_mul_i32 s30, s28, 3072")
    a("v_add_u32 v14, s30, v14")
    a(f"s_mul_i32 s32, s4, {ROWB}")
    a(f"s_mul_i32 s33, s5, {ASLOT}")
    a(f"s_add_u32 s33, s33, {C.ACTBASE}")
    for s in range(NS):
        a(f"s_mul_i32 s30, s28, {C.NWP*1024}")
        a(f"s_add_u32 s{40+s}, s30, {s*WSLOT}")
        a("s_mul_i32 s30, s28, 3072")
        a(f"s_add_u32 s{48+s}, s30, {ACT0 + s*ASLOT}")
    if kind == 2:
        a("s_mul_i32 s29, s28, 24")
        a("v_lshrrev_b32 v6, 3, v1")
        a("v_add_u32 v6, s29, v6")
        a("v_lshlrev_b32 v15, 12, v6")
        a("v_lshl_add_u32 v15, v4, 4, v15")
        a("v_lshl_add_u32 v15, v7, 5, v15")
        a("s_mul_i32 s30, s5, 96*4096")
        a(f"s_mul_i32 s31, s4, {ROWB}")
        a("s_add_u32 s30, s30, s31")
        a(f"s_add_u32 s30, s30, {WS_HT}")
        a("s_mul_i32 s31, s28, 3072")
        a(f"s_add_u32 s31, s31, {HT0}")
        for i in range(3):
            a(f"s_add_u32 s34, s31, {1024*i}")
            a("s_mov_b32 m0, s34")
            a(f"s_add_u32 s35, s30, {i*8*4096}")
            a("buffer_load_dwordx4 v15, s[12:15], s35 offen lds")
    def issue(slot):
        a(f"s_mov_b32 m0, s{40+slot}")
        for q in range(0 if 'noW' in OPT else C.NWP):
            a(f"buffer_load_dwordx4 v{10+q}, s[8:11], s32 offen offset:{1024*q} lds")
        a(f"s_mov_b32 m0, s{48+slot}")
        for q in range(0 if 'noA' in OPT else 3):
            a(f"buffer_load_dwordx4 v14, s[12:15], s33 offen offset:{1024*q} lds")
        if 'hot' not in OPT:
            a(f"s_add_u32 s32, s32, {64*WPITCH}")
            a(f"s_add_u32 s33, s33, {6*ASLOT}")
    def stamp():
        if 'stamp' not in OPT: return
        a("s_memrealtime s[60:61]")
        a("s_waitcnt lgkmcnt(0)")
        a("v_mov_b32 v22, s60")
        a("v_cmp_eq_u32 vcc, s62, v1")
        a("v_cndmask_b32 v20, v20, v22, vcc")
        a("s_add_u32 s62, s62, 1")
        a("s_and_b32 s62, s62, 63")
    if 'stamp' in OPT:
        a("s_mov_b32 s62, 0"); a("v_mov_b32 v20, 0")
    PPS = C.PPS
    stamp()
    for s in range(NS): issue(s)
    stamp()
    a(f"s_waitcnt vmcnt({(NS-1)*PPS})")
    a("s_barrier")
    stamp()
    a(f"s_movk_i32 s31, {nloop}")
    a.label(f"{P}_PLOOP")
    for s in range(NS):
        a(f"s_waitcnt vmcnt({(NS-2)*PPS})")
        a("s_barrier")
        if kind == 1 or s % 2 == 0: stamp()
        issue(s)
    a("s_sub_u32 s31, s31, 1")
    a("s_cmp_lg_u32 s31, 0")
    a(f"s_cbranch_scc1 {P}_PLOOP")
    for s in range(NS - 1):
        a(f"s_waitcnt vmcnt({(NS-2-s)*PPS})")
        a("s_barrier")
        stamp()
    if 'stamp' in OPT:
        a("s_cmp_lg_u32 s28, 0")
        a(f"s_cbranch_scc1 {END}")
        a("s_lshl_b32 s30, s2, 8")
        a(f"s_add_u32 s30, s30, {0x2000000 + (0 if kind == 1 else 0x10000)}")
        a("v_lshlrev_b32 v21, 2, v1")
        srd(a, 12, 6, 7, 0x4000000)
        a("buffer_store_dword v20, v21, s[12:15], s30 offen")
    a.label(END)
    kst_end(a, 2 + kind, NWG)
    a("s_endpgm")
    return name, (208 if kind == 1 else 144), C.LDS

def gen_k4(a): return gen_gemm(a, 1, "k4_kernel")
def gen_k5(a): return gen_gemm(a, 2, "k5_kernel")
```

```python
import sys
sys.path.insert(0, 'gen')
from asmlib import *

NAME = "sequential_preLN__ssm_conv_s4d__mixer_token_mlp__prompt"
L, D, NM, F = 2048, 576, 128, 4608
WS_UT = 0x0
WS_XT = 0x240000
WS_R  = 0x480000
RSTRIDE = 8256; ROFF = 4128
WS_HT = 0x910000
WS_HN = 0xB50000
WS_G  = 0xD90000
WS_END = 0x12A0000
LOG2E = 0x3fb8aa3b
INV2PI = 0x3e22f983

def fhex(x):
    import struct
    return "0x%08x" % struct.unpack('<I', struct.pack('<f', x))[0]

def srd(a, s, lo, hi, size):
    a(f"s_mov_b32 s{s}, s{lo}")
    a(f"s_and_b32 s{s+1}, s{hi}, 0xffff")
    a(f"s_mov_b32 s{s+2}, {hex(size)}")
    a(f"s_mov_b32 s{s+3}, 0x00020000")

def kernel_head(a, name):
    a.raw(f".globl {name}\n.p2align 8\n.type {name},@function\n{name}:")

import os
STAMP = 'kst' in os.environ.get('GOPT', '').split(',')
STAMP_BASE = 0x3000000
def kst_begin(a):
    if not STAMP: return
    a("s_memrealtime s[94:95]")
    a("v_readfirstlane_b32 s93, v0")
def kst_end(a, kidx, nwg):
    if not STAMP: return
    lab = f"KST_{kidx}"
    a(f"s_cmp_ge_u32 s2, {nwg}")
    a(f"s_cbranch_scc1 {lab}")
    a("s_mov_b64 exec, -1")
    a("s_waitcnt vmcnt(0) lgkmcnt(0)")
    a("s_lshr_b32 s86, s93, 6")
    a("s_memrealtime s[92:93]")
    a("s_load_dwordx2 s[6:7], s[0:1], 112")
    a("s_waitcnt lgkmcnt(0)")
    srd(a, 88, 6, 7, 0x4000000)
    a("s_lshl_b32 s86, s86, 3")
    a("v_mov_b32 v2, s86")
    a(f"s_lshl_b32 s87, s2, 7")
    a(f"s_add_u32 s87, s87, {STAMP_BASE + kidx * 0x20000}")
    a("v_mov_b32 v0, s94")
    a("v_mov_b32 v1, s92")
    a("s_mov_b64 exec, 1")
    a("buffer_store_dwordx2 v[0:1], v2, s[88:91], s87 offen")
    a.label(lab)

def kernel_desc(name, vgpr, sgpr=96, accum=None):
    acc = accum if accum is not None else ((vgpr + 3) // 4) * 4
    return f""".amdhsa_kernel {name}
  .amdhsa_next_free_vgpr {vgpr}
  .amdhsa_next_free_sgpr {sgpr}
  .amdhsa_accum_offset {acc}
  .amdhsa_group_segment_fixed_size 0
  .amdhsa_kernarg_size 120
  .amdhsa_user_sgpr_count 2
  .amdhsa_user_sgpr_kernarg_segment_ptr 1
  .amdhsa_system_sgpr_workgroup_id_x 1
.end_amdhsa_kernel
"""

class PFC:
    def __init__(s, nwg, nwv, jobs): s.nwg = nwg; s.nwv = nwv; s.jobs = jobs
def _pfopt():
    d = {1: PFC(0, 4, []), 2: PFC(0, 4, []), 3: PFC(0, 3, [])}
    for o in os.environ.get('GOPT', '').split(','):
        if o.startswith('pf='):
            for k, spec in enumerate(o[3:].split('/')):
                if not spec or spec == '0': continue
                n, js = spec.split(':')
                d[k + 1].nwg = int(n)
                d[k + 1].jobs = [tuple(int(x) for x in j.split('.')) for j in js.split('+')]
    return d
PF = _pfopt()
def gen_prefetch(a, k, nmain, endlab):
    c = PF[k]
    if c.nwg == 0:
        a(f"s_branch {endlab}")
        return
    assert c.nwg % 8 == 0 and nmain % 8 == 0
    a(f"s_cmp_ge_u32 s2, {nmain + c.nwg}")
    a(f"s_cbranch_scc1 {endlab}")
    a("s_load_dwordx2 s[16:17], s[0:1], 64")
    a("s_load_dwordx2 s[18:19], s[0:1], 80")
    a("v_and_b32 v1, 63, v0")
    a("v_lshrrev_b32 v2, 6, v0")
    a("v_readfirstlane_b32 s27, v2")
    a(f"s_sub_u32 s3, s2, {nmain}")
    a("s_lshr_b32 s3, s3, 3")
    a(f"s_mul_i32 s3, s3, {c.nwv}")
    a("s_add_u32 s3, s3, s27")
    a("s_and_b32 s4, s2, 7")
    NWX = c.nwg // 8 * c.nwv
    a("s_waitcnt lgkmcnt(0)")
    for ji, (buf, r0, r1) in enumerate(c.jobs):
        pitch = 9216 if buf == 1 else 4096
        RPI = 6 if buf == 1 else 16
        if buf == 1:
            srd(a, 8, 16, 17, r1 * pitch)
            a("v_min_u32 v3, 59, v1")
            a("v_mul_u32_u24 v4, 52, v3")
            a("v_lshrrev_b32 v4, 9, v4")
            a("v_mul_u32_u24 v5, 10, v4")
            a("v_sub_u32 v5, v3, v5")
            a("s_mul_i32 s5, s4, 27*171")
            a("s_lshr_b32 s5, s5, 10")
            a("s_lshl_b32 s5, s5, 8")
        else:
            srd(a, 8, 18, 19, r1 * pitch)
            a("v_lshrrev_b32 v4, 2, v1")
            a("v_and_b32 v5, 3, v1")
            a("s_lshl_b32 s5, s4, 9")
        a(f"v_mul_u32_u24 v4, {pitch}, v4")
        a("v_lshl_add_u32 v4, v5, 7, v4")
        a(f"s_mul_i32 s20, s3, {RPI*pitch}")
        a("s_add_u32 s20, s20, s5")
        a(f"s_add_u32 s20, s20, {r0*pitch}")
        n = -(-(r1 - r0) // (RPI * NWX))
        for i in range(n):
            a(f"buffer_load_dword v{8 + (i % 8)}, v4, s[8:11], s20 offen")
            if i < n - 1: a(f"s_add_u32 s20, s20, {NWX*RPI*pitch}")
            if i % 8 == 7 and i < n - 1: a("s_waitcnt vmcnt(24)")
    a(f"s_branch {endlab}")

def bf16_round(a, dst, src, tmp=None):
    a(f"v_cvt_pk_bf16_f32 v{dst}, v{src}, v{src}")
    a(f"v_and_b32 v{dst}, 0xffff0000, v{dst}")

def exp_precise(a, dst, src, t0, t1, sL, sLlo, sLn2):
    a(f"v_mul_f32 v{t0}, s{sL}, v{src}")
    a(f"v_fma_f32 v{t1}, v{src}, s{sL}, -v{t0}")
    a(f"v_fma_f32 v{t1}, v{src}, s{sLlo}, v{t1}")
    a(f"v_exp_f32 v{dst}, v{t0}")
    a(f"v_mul_f32 v{t1}, s{sLn2}, v{t1}")
    a(f"v_fma_f32 v{dst}, v{dst}, v{t1}, v{dst}")

def gen_k1(a):
    name = "k1_kernel"
    kernel_head(a, name)
    kst_begin(a)
    a("s_cmp_ge_u32 s2, 640")
    a("s_cbranch_scc1 K1_PF")
    a("s_load_dwordx2 s[4:5], s[0:1], 0")
    a("s_load_dwordx2 s[6:7], s[0:1], 112")
    a("s_load_dwordx8 s[16:23], s[0:1], 8")
    a("s_load_dwordx2 s[24:25], s[0:1], 40")
    a("s_cmp_ge_u32 s2, 64")
    a("s_cbranch_scc1 K1_KGEN")
    a("s_waitcnt lgkmcnt(0)")
    srd(a, 8, 4, 5, L * D * 2)
    srd(a, 12, 6, 7, WS_R)
    PITCH = 1216
    a("v_lshrrev_b32 v1, 3, v0")
    a("v_and_b32 v2, 7, v0")
    a("s_lshl_b32 s3, s2, 5")
    a("v_add_u32 v3, s3, v1")
    a("s_movk_i32 s26, 1152")
    a("v_mul_lo_u32 v3, v3, s26")
    a("v_lshl_add_u32 v3, v2, 4, v3")
    for i in range(9):
        a(f"buffer_load_dwordx4 v[{10+4*i}:{13+4*i}], v3, s[8:11], 0 offen offset:{128*i}")
    a(f"s_movk_i32 s26, {PITCH}")
    a("v_mul_lo_u32 v4, v1, s26")
    a("v_lshl_add_u32 v4, v2, 4, v4")
    a("v_and_b32 v5, 63, v0")
    a("v_lshrrev_b32 v6, 6, v0")
    a("v_readfirstlane_b32 s27, v6")
    a("v_bfe_u32 v7, v5, 2, 2")
    a("v_mul_lo_u32 v7, v7, s26")
    a("v_lshrrev_b32 v8, 4, v5")
    a("v_lshl_add_u32 v7, v8, 5, v7")
    a("v_and_b32 v8, 3, v5")
    a("v_lshl_add_u32 v7, v8, 3, v7")
    a("s_lshl_b32 s28, s2, 6")
    a("v_lshlrev_b32 v9, 12, v5")
    a("v_add_u32 v9, s28, v9")
    a("s_waitcnt vmcnt(0)")
    for i in range(9):
        a(f"ds_write_b128 v4, v[{10+4*i}:{13+4*i}] offset:{128*i}")
    for i in range(36):
        a(f"v_lshlrev_b32 v{50+2*i}, 16, v{10+i}")
        a(f"v_and_b32 v{51+2*i}, 0xffff0000, v{10+i}")
    a("v_add_f32 v122, v50, v51")
    a("v_add_f32 v123, v52, v53")
    a("v_add_f32 v124, v54, v55")
    a("v_add_f32 v125, v56, v57")
    for i in range(2, 18):
        for q in range(4):
            a(f"v_add_f32 v{122+q}, v{122+q}, v{50+4*i+q}")
    a("v_add_f32 v122, v122, v123")
    a("v_add_f32 v124, v124, v125")
    a("v_add_f32 v122, v122, v124")
    def red8(r, t):
        a(f"v_add_f32_dpp v{r}, v{r}, v{r} quad_perm:[1,0,3,2] row_mask:0xf bank_mask:0xf")
        a(f"v_add_f32_dpp v{r}, v{r}, v{r} quad_perm:[2,3,0,1] row_mask:0xf bank_mask:0xf")
        a(f"v_add_f32_dpp v{r}, v{r}, v{r} row_half_mirror row_mask:0xf bank_mask:0xf")
    red8(122, None)
    a(f"s_mov_b32 s26, {fhex(1.0/576)}")
    a("v_mul_f32 v126, s26, v122")
    a("s_waitcnt lgkmcnt(0)")
    a("s_barrier")
    def transpose_store(ws_off):
        for u in range(3):
            lab = a.newlabel("K1_SKIP")
            if u == 2:
                a("s_cmp_lg_u32 s27, 0")
                a(f"s_cbranch_scc1 {lab}")
            a(f"s_lshl_b32 s29, s27, 7")
            a(f"s_add_u32 s29, s29, {u*4*128}")
            a(f"v_add_u32 v127, s29, v7")
            for Q in range(8):
                a(f"ds_read_b64_tr_b16 v[{130+2*Q}:{131+2*Q}], v127 offset:{Q*4*PITCH}")
            a(f"s_lshl_b32 s29, s27, 18")
            a(f"s_add_u32 s29, s29, {ws_off + u*4*64*4096}")
            a("s_waitcnt lgkmcnt(0)")
            for q in range(4):
                a(f"buffer_store_dwordx4 v[{130+4*q}:{133+4*q}], v9, s[12:15], s29 offen offset:{16*q}")
            if u == 2: a.label(lab)
            a("s_nop 1")
    transpose_store(WS_XT)
    for i in range(72):
        a(f"v_sub_f32 v{150+0}, v{50+i}, v126") if False else None
    a("v_sub_f32 v127, v50, v126"); a("v_mul_f32 v122, v127, v127")
    a("v_sub_f32 v127, v51, v126"); a("v_mul_f32 v123, v127, v127")
    a("v_sub_f32 v127, v52, v126"); a("v_mul_f32 v124, v127, v127")
    a("v_sub_f32 v127, v53, v126"); a("v_mul_f32 v125, v127, v127")
    for i in range(4, 72):
        t = 146 + (i % 4)
        a(f"v_sub_f32 v{t}, v{50+i}, v126")
        a(f"v_fmac_f32 v{122+(i%4)}, v{t}, v{t}")
    a("v_add_f32 v122, v122, v123")
    a("v_add_f32 v124, v124, v125")
    a("v_add_f32 v122, v122, v124")
    red8(122, None)
    a("v_mul_f32 v122, s26, v122")
    bf16_round(a, 126, 126)
    bf16_round(a, 122, 122)
    a(f"v_add_f32 v122, {fhex(1e-5)}, v122")
    bf16_round(a, 122, 122)
    a("v_sqrt_f32 v122, v122")
    bf16_round(a, 122, 122)
    a("v_rcp_f32 v122, v122")
    for i in range(36):
        x0, x1 = 50 + 2*i, 51 + 2*i
        a(f"v_sub_f32 v{x0}, v{x0}, v126")
        a(f"v_sub_f32 v{x1}, v{x1}, v126")
        a(f"v_cvt_pk_bf16_f32 v146, v{x0}, v{x1}")
        a(f"v_lshlrev_b32 v{x0}, 16, v146")
        a(f"v_and_b32 v{x1}, 0xffff0000, v146")
        a(f"v_mul_f32 v{x0}, v{x0}, v122")
        a(f"v_mul_f32 v{x1}, v{x1}, v122")
        a(f"v_cvt_pk_bf16_f32 v{10+i}, v{x0}, v{x1}")
    a("s_barrier")
    for i in range(9):
        a(f"ds_write_b128 v4, v[{10+4*i}:{13+4*i}] offset:{128*i}")
    a("s_waitcnt lgkmcnt(0)")
    a("s_barrier")
    transpose_store(WS_UT)
    a("s_branch K1_END")

    a.label("K1_KGEN")
    K1ST = 'k1st' in os.environ.get('GOPT', '').split(',')
    def st(i):
        if K1ST: a(f"s_memrealtime s[{60+2*i}:{61+2*i}]")
    a("s_sub_u32 s3, s2, 64")
    a("v_and_b32 v1, 63, v0")
    a("v_lshrrev_b32 v2, 6, v0")
    a("v_readfirstlane_b32 s27, v2")
    a("v_lshrrev_b32 v3, 4, v1")
    a("v_and_b32 v4, 15, v1")
    a("s_lshl_b32 s28, s3, 8")
    a("v_lshlrev_b32 v5, 6, v2")
    a("v_lshl_add_u32 v5, v3, 4, v5")
    a("v_add_u32 v5, s28, v5")
    a("s_waitcnt lgkmcnt(0)")
    srd(a, 8, 16, 17, D * NM * 2)
    a("buffer_load_dwordx4 v[10:13], v5, s[8:11], 0 offen")
    srd(a, 28, 18, 19, D * NM * 2)
    a("buffer_load_dwordx4 v[14:17], v5, s[28:31], 0 offen")
    srd(a, 32, 20, 21, D * NM * 2)
    a("buffer_load_dwordx4 v[18:21], v5, s[32:35], 0 offen")
    srd(a, 36, 22, 23, D * NM * 2)
    a("buffer_load_dwordx4 v[22:25], v5, s[36:39], 0 offen")
    srd(a, 40, 24, 25, D * 2)
    a("s_lshl_b32 s44, s3, 1")
    a("v_mov_b32 v6, s44")
    a("buffer_load_ushort v26, v6, s[40:43], 0 offen")
    srd(a, 12, 6, 7, WS_HT)
    a("v_lshlrev_b32 v27, 3, v4")
    a("v_cvt_f32_u32 v27, v27")
    a("v_and_b32 v28, 7, v4")
    a("v_lshrrev_b32 v29, 3, v4")
    a("v_lshl_add_u32 v28, v29, 7, v28")
    a("v_cvt_f32_u32 v28, v28")
    a("v_lshrrev_b32 v29, 2, v4")
    a("v_lshlrev_b32 v29, 7, v29")
    a("v_and_b32 v30, 3, v4")
    a("v_lshl_add_u32 v29, v30, 1, v29")
    a("v_add_u32 v29, 256, v29")
    a("v_subrev_u32 v30, 8, v4")
    a("v_lshrrev_b32 v30, 1, v30")
    a("v_lshlrev_b32 v30, 7, v30")
    a("v_and_b32 v31, 1, v4")
    a("v_lshl_add_u32 v30, v31, 2, v30")
    a("v_add_u32 v30, 512, v30")
    a("v_cmp_gt_u32 vcc, 8, v4")
    a("v_cndmask_b32 v29, v30, v29, vcc")
    a("v_cvt_f32_u32 v29, v29")
    a("v_lshlrev_b32 v30, 7, v4")
    a("v_add_u32 v30, 1024, v30")
    a("v_cvt_f32_u32 v30, v30")
    a(f"s_mov_b32 s44, {hex(LOG2E)}")
    a(f"s_mov_b32 s45, {fhex(1.4426950408889634 - 1.4426950216293335)}")
    a(f"s_mov_b32 s46, {fhex(0.6931471805599453)}")
    a(f"s_mov_b32 s47, {hex(INV2PI)}")
    a("s_waitcnt vmcnt(0)")
    st(0)
    a("v_lshlrev_b32 v26, 16, v26")
    exp_precise(a, 31, 26, 32, 33, 44, 45, 46)
    bf16_round(a, 31, 31)
    a("v_add_f32 v26, v31, v31")
    a(f"s_mov_b32 s48, {hex(LOG2E | 0x80000000)}")
    st(1)
    HI = 40; LO = 72
    XV = 104
    TP = 120
    ACCK = 80 + 60
    ACCK = 140
    for tp in range(4):
        for h in range(2):
            un = (lambda d, s_: a(f"v_lshlrev_b32 v{d}, 16, v{s_}")) if h == 0 else (lambda d, s_: a(f"v_and_b32 v{d}, 0xffff0000, v{s_}"))
            ar, ai, cr, ci = 32 + 4 * h, 33 + 4 * h, 34 + 4 * h, 35 + 4 * h
            t0, t1, t2 = TP, TP + 1, TP + 2
            un(t0, 10 + tp)
            exp_precise(a, t1, t0, t2, TP + 3, 44, 45, 46)
            bf16_round(a, t1, t1)
            a(f"v_mul_f32 v{t1}, v{t1}, v31")
            a(f"v_mul_f32 v{ar}, s48, v{t1}")
            un(t0, 14 + tp)
            a(f"v_mul_f32 v{t0}, v{t0}, v31")
            a(f"v_mul_f32 v{ai}, s47, v{t0}")
            un(t0, 18 + tp)
            a(f"v_mul_f32 v{cr}, v{t0}, v26")
            un(t0, 22 + tp)
            a(f"v_mul_f32 v{ci}, v{t0}, v26")
            e0, e1, e2, e3 = TP + 4, TP + 5, TP + 6, TP + 7
            a(f"v_mul_f32 v{e0}, v{ar}, v27")
            a(f"v_mul_f32 v{e1}, v{ai}, v27")
            a(f"v_exp_f32 v{e0}, v{e0}")
            a(f"v_fract_f32 v{e1}, v{e1}")
            a(f"v_cos_f32 v{e2}, v{e1}")
            a(f"v_sin_f32 v{e3}, v{e1}")
            a(f"v_mul_f32 v{XV+0+h}, v{e0}, v{e2}")
            a(f"v_mul_f32 v{XV+2+h}, v{e0}, v{e3}")
            for T in range(3):
                b = TP + 8 + 6 * T
                a(f"v_mul_f32 v{b}, v{ar}, v{28+T}")
                a(f"v_mul_f32 v{b+1}, v{ai}, v{28+T}")
                a(f"v_exp_f32 v{b}, v{b}")
                a(f"v_fract_f32 v{b+1}, v{b+1}")
                a(f"v_cos_f32 v{b+2}, v{b+1}")
                a(f"v_sin_f32 v{b+3}, v{b+1}")
                a(f"v_mul_f32 v{b+4}, v{cr}, v{b+2}")
                a(f"v_mul_f32 v{b+5}, v{cr}, v{b+3}")
                a(f"v_fma_f32 v{b+4}, -v{ci}, v{b+3}, v{b+4}")
                a(f"v_fma_f32 v{b+5}, v{ci}, v{b+2}, v{b+5}")
                a(f"v_mul_f32 v{XV+4+4*T+h}, v{b}, v{b+4}")
                a(f"v_mul_f32 v{XV+6+4*T+h}, -v{b}, v{b+5}")
        for q in range(8):
            x0, x1 = XV + 2 * q, XV + 2 * q + 1
            hp = HI + 4 * q + tp; lp = LO + 4 * q + tp
            u0, u1 = TP + (2 * q) % 16, TP + (2 * q) % 16 + 1
            a(f"v_cvt_pk_bf16_f32 v{hp}, v{x0}, v{x1}")
            a(f"v_lshlrev_b32 v{u0}, 16, v{hp}")
            a(f"v_and_b32 v{u1}, 0xffff0000, v{hp}")
            a(f"v_sub_f32 v{u0}, v{x0}, v{u0}")
            a(f"v_sub_f32 v{u1}, v{x1}, v{u1}")
            a(f"v_cvt_pk_bf16_f32 v{lp}, v{u0}, v{u1}")
    def fr(base, q): return f"v[{base+4*q}:{base+4*q+3}]"
    for T in range(3):
        acc = f"v[{ACCK+4*T}:{ACCK+4*T+3}]"
        first = True
        for (qa, qb) in ((2 + 2 * T, 0), (3 + 2 * T, 1)):
            for (ba, bb) in ((LO, HI), (HI, LO), (HI, HI)):
                a(f"v_mfma_f32_16x16x32_bf16 {acc}, {fr(ba, qa)}, {fr(bb, qb)}, {'0' if first else acc}")
                first = False
    for r in range(12): a(f"v_mov_b32 v{80+r}, v{ACCK+r}")
    st(2)
    a("v_lshlrev_b32 v5, 4, v1")
    a("s_mul_i32 s28, s27, 3072")
    a("v_add_u32 v5, s28, v5")
    for T in range(3):
        a(f"ds_write_b128 v5, v[{80+4*T}:{83+4*T}] offset:{1024*T}")
    a("s_waitcnt lgkmcnt(0)")
    a("s_barrier")
    KC = 12288
    a("s_cmp_eq_u32 s27, 3")
    a("s_cbranch_scc1 K1_KG_ZERO")
    a("v_lshlrev_b32 v5, 4, v1")
    a("s_lshl_b32 s28, s27, 10")
    a("v_add_u32 v5, s28, v5")
    for w in range(4):
        a(f"ds_read_b128 v[{80+4*w}:{83+4*w}], v5 offset:{3072*w}")
    a("s_cmp_eq_u32 s27, 1")
    a("s_cbranch_scc1 K1_KG_T1")
    a("s_cmp_eq_u32 s27, 2")
    a("s_cbranch_scc1 K1_KG_T2")
    a("v_and_b32 v100, 1, v3")
    a("v_lshlrev_b32 v100, 2, v100")
    a("v_lshrrev_b32 v101, 1, v3")
    a("v_lshl_add_u32 v100, v101, 7, v100")
    a("v_lshl_add_u32 v100, v4, 3, v100")
    for r in range(1, 4): a(f"v_add_u32 v{100+r}, {r}, v100")
    a("s_branch K1_KG_SC")
    a.label("K1_KG_T1")
    a("v_lshlrev_b32 v104, 6, v3")
    a("v_lshl_add_u32 v104, v4, 2, v104")
    a("v_add_u32 v104, 256, v104")
    a("v_lshlrev_b32 v105, 6, v3")
    a("v_lshl_add_u32 v105, v4, 1, v105")
    a("v_add_u32 v105, 256, v105")
    a("v_cmp_gt_u32 vcc, 2, v3")
    for r in range(4):
        a(f"v_add_u32 v106, {r}, v104")
        a(f"v_add_u32 v107, {32*(r>>1)+(r&1)}, v105")
        a(f"v_cndmask_b32 v{100+r}, v107, v106, vcc")
    a("s_branch K1_KG_SC")
    a.label("K1_KG_T2")
    a("v_lshlrev_b32 v100, 6, v3")
    a("v_add_u32 v100, v4, v100")
    a("v_add_u32 v100, 512, v100")
    for r in range(1, 4): a(f"v_add_u32 v{100+r}, {16*r}, v100")
    a.label("K1_KG_SC")
    a("s_waitcnt lgkmcnt(0)")
    for r in range(4):
        a(f"v_add_f32 v{80+r}, v{80+r}, v{84+r}")
        a(f"v_add_f32 v{88+r}, v{88+r}, v{92+r}")
        a(f"v_add_f32 v{80+r}, v{80+r}, v{88+r}")
        a(f"v_lshlrev_b32 v{100+r}, 2, v{100+r}")
        a(f"ds_write_b32 v{100+r}, v{80+r} offset:{KC}")
    a("s_branch K1_KG_EXP")
    a.label("K1_KG_ZERO")
    a("v_mov_b32 v5, 0")
    a(f"ds_write_b32 v5, v5 offset:{KC + 768*4}")
    a.label("K1_KG_EXP")
    a("s_waitcnt lgkmcnt(0)")
    a("s_barrier")
    st(3)
    a("v_lshlrev_b32 v5, 3, v0")
    a("v_sub_u32 v5, 2047, v5")
    for e in range(9):
        a(f"v_subrev_u32 v{10+e}, {e}, v5")
        a(f"v_cvt_f32_i32 v{20+e}, v{10+e}")
    for e in range(0, 9, 2):
        e1 = min(e + 1, 8)
        a(f"v_cvt_pk_bf16_f32 v{30+e//2}, v{20+e}, v{20+e1}")
    for e in range(9):
        src = 30 + e // 2
        if e % 2 == 0: a(f"v_and_b32 v{20+e}, 0xffff, v{src}")
        else: a(f"v_lshrrev_b32 v{20+e}, 16, v{src}")
        a(f"v_subrev_u32 v{20+e}, 17024, v{20+e}")
        a(f"v_min_u32 v36, 127, v{10+e}")
        a(f"v_max_i32 v{20+e}, v{20+e}, v36")
    a("v_cmp_gt_i32 vcc, 0, v18")
    a("v_mov_b32 v36, 768")
    a("v_cndmask_b32 v28, v28, v36, vcc")
    for e in range(9):
        a(f"v_lshlrev_b32 v{20+e}, 2, v{20+e}")
        a(f"ds_read_b32 v{40+e}, v{20+e} offset:{KC}")
    a("s_mul_i32 s28, s3, %d" % RSTRIDE)
    a(f"s_add_u32 s28, s28, {WS_R}")
    a("v_lshlrev_b32 v5, 4, v0")
    a("s_waitcnt lgkmcnt(0)")
    for k in range(4):
        a(f"v_cvt_pk_bf16_f32 v{52+k}, v{40+2*k}, v{41+2*k}")
        a(f"v_cvt_pk_bf16_f32 v{56+k}, v{41+2*k}, v{42+2*k}")
    a("buffer_store_dwordx4 v[52:55], v5, s[12:15], s28 offen")
    a(f"buffer_store_dwordx4 v[56:59], v5, s[12:15], s28 offen offset:{ROFF - 4096}") if False else None
    a(f"v_add_u32 v6, {ROFF}, v5")
    a("buffer_store_dwordx4 v[56:59], v6, s[12:15], s28 offen")
    if K1ST:
        st(4)
        a("s_waitcnt vmcnt(0) lgkmcnt(0)")
        st(5)
        a("s_waitcnt lgkmcnt(0)")
        srd(a, 72, 6, 7, 0x4000000)
        for i in range(6): a(f"v_mov_b32 v{70+i}, s{60+2*i}")
        a("v_mov_b32 v76, s94"); a("v_mov_b32 v77, 0")
        a("s_lshl_b32 s76, s2, 7")
        a("s_lshl_b32 s77, s27, 5")
        a("s_add_u32 s76, s76, s77")
        a("s_add_u32 s76, s76, 0x2a00000")
        a("v_mov_b32 v78, 0")
        a("buffer_store_dwordx4 v[70:73], v78, s[72:75], s76 offen")
        a("buffer_store_dwordx4 v[74:77], v78, s[72:75], s76 offen offset:16")
    a("v_cmp_gt_u32 vcc, 2, v0")
    a("s_and_saveexec_b64 s[30:31], vcc")
    a("s_cbranch_execz K1_END")
    for r in range(4): a(f"v_mov_b32 v{60+r}, 0")
    a("v_add_u32 v5, 4096, v5")
    a("v_add_u32 v6, 4096, v6")
    a("buffer_store_dwordx4 v[60:63], v5, s[12:15], s28 offen")
    a("buffer_store_dwordx4 v[60:63], v6, s[12:15], s28 offen")
    a("s_branch K1_END")
    a.label("K1_PF")
    gen_prefetch(a, 1, 640, "K1_END")
    a.label("K1_END")
    kst_end(a, 0, 640 + PF[1].nwg)
    a("s_endpgm")
    return name, 152, 38912

KERNELS = []
def build(kernels, launches):
    head = []
    ref = open('cdna_kernels/' + NAME + '.s.ref').read().split('\n')
    for ln in ref:
        if ln.startswith('; Kernarg') or ln.startswith(';   offset'):
            head.append(ln)
    for (k, grid, block, lds) in launches:
        head.append(f"; @launch kernel={k} grid=({grid},1,1) block=({block},1,1) lds={lds}")
    out = '\n'.join(head) + '\n.amdgcn_target "amdgcn-amd-amdhsa--gfx950"\n.text\n'
    descs = ''
    for gen in kernels:
        a = Asm()
        name, vg, lds = gen(a)
        out += render(insert_hazard_nops(a.lines))
        descs += kernel_desc(name, vg)
    out += '.section .rodata,"a"\n.p2align 6\n' + descs.replace('.amdhsa_kernel', '.p2align 6\n.amdhsa_kernel')
    return out

if __name__ == '__main__':
    from gen_rest import *
    main()
```

```python
from gen import *
import os, math
OPT = os.environ.get('GOPT', '').split(',')
def opt_int(name, default):
    for o in OPT:
        if o.startswith(name + '='): return int(o.split('=')[1])
    return default

ASLOT = 12288

class GC:
    def __init__(s, kind):
        s.kind = kind
        s.TW = 128 if kind == 1 else 64
        s.NJ = s.TW // 32
        s.NS = opt_int('ns1', 4) if kind == 1 else opt_int('ns2', 6)
        s.PD = opt_int('pd1', 10) if kind == 1 else opt_int('pd2', 12)
        s.nstg = 32 if kind == 1 else 72
        s.ntn = 36 if kind == 1 else 32
        s.WPITCH = 9216 if kind == 1 else 4096
        s.WTEST = opt_int('wp%d' % kind, 0)
        if s.WTEST: s.WPITCH = s.WTEST if s.WTEST > 0 else s.TW * 2
        s.ROWB = s.TW * 2
        s.WSLOT = 64 * s.ROWB
        s.ACT0 = s.NS * s.WSLOT
        s.HT0 = s.ACT0 + s.NS * ASLOT
        s.LDS = s.HT0 + (96 * s.ROWB if kind == 2 else 0)
        s.HTOV = s.LDS > 163840
        if s.HTOV:
            s.HT0 = s.ACT0
            s.LDS = s.ACT0 + s.NS * ASLOT
        s.NWG = 6 * s.ntn
        s.per_xcd = s.NWG // 8
        s.ACTBASE = WS_HN if kind == 1 else WS_G
        s.NWP = s.WSLOT // 4096
        s.PPS = (0 if 'noW' in OPT else s.NWP) + (0 if 'noA' in OPT else 3)

def gen_gemm(a, kind, name):
    C = GC(kind)
    NS, TW, NJ, nstg, WPITCH, ROWB, WSLOT, ACT0, HT0, NWG = C.NS, C.TW, C.NJ, C.nstg, C.WPITCH, C.ROWB, C.WSLOT, C.ACT0, C.HT0, C.NWG
    kernel_head(a, name)
    P = name.upper()[:2]
    END = f"{P}_END"; PROD = f"{P}_PROD"; PREF = f"{P}_PREF"
    kst_begin(a)
    a(f"s_cmp_ge_u32 s2, {NWG}")
    a(f"s_cbranch_scc1 {PREF}")
    a("s_load_dwordx2 s[6:7], s[0:1], 112")
    a(f"s_load_dwordx4 s[16:19], s[0:1], {64 if kind == 1 else 80}")
    a("s_load_dwordx2 s[20:21], s[0:1], 96")
    a("s_and_b32 s22, s2, 7")
    a("s_lshr_b32 s23, s2, 3")
    if ('map%d' % kind) in OPT:
        a("s_mul_i32 s4, s23, 171")
        a("s_lshr_b32 s4, s4, 9")
        a("s_mul_i32 s5, s4, 3")
        a("s_sub_u32 s5, s23, s5")
        a("s_and_b32 s24, s22, 1")
        a("s_mul_i32 s24, s24, 3")
        a("s_add_u32 s5, s5, s24")
        a("s_lshr_b32 s24, s22, 1")
        a(f"s_mul_i32 s24, s24, {C.ntn // 4}")
        a("s_add_u32 s4, s4, s24")
    else:
        a(f"s_mul_i32 s3, s22, {C.per_xcd}")
        a("s_mul_i32 s24, s3, 171")
        a("s_lshr_b32 s24, s24, 10")
        a("s_add_u32 s3, s3, s23")
        a("s_mul_i32 s4, s3, 171")
        a("s_lshr_b32 s4, s4, 10")
        a("s_mul_i32 s5, s4, 6")
        a("s_sub_u32 s5, s3, s5")
    a("v_and_b32 v1, 63, v0")
    a("v_lshrrev_b32 v2, 6, v0")
    a("v_readfirstlane_b32 s27, v2")
    a("v_lshrrev_b32 v3, 4, v1")
    a("s_waitcnt lgkmcnt(0)")
    if C.WTEST:
        a("s_add_u32 s14, s6, 0x4000000"); a("s_addc_u32 s15, s7, 0")
        srd(a, 8, 14, 15, 0x4000000)
    else:
        srd(a, 8, 16, 17, 2048 * 4608 * 2)
    srd(a, 12, 6, 7, WS_END)
    a("s_cmp_ge_u32 s27, 4")
    a(f"s_cbranch_scc1 {PROD}")
    assert nstg % NS == 0
    nloop = nstg // NS - 1

    a("s_lshr_b32 s28, s27, 1")
    a("s_and_b32 s29, s27, 1")
    a("v_bfe_u32 v8, v1, 2, 2")
    a("v_and_b32 v9, 3, v1")
    if kind == 1:
        a("v_and_b32 v10, 1, v3")
        a("v_lshl_add_u32 v10, v10, 2, v8")
        a("v_lshl_add_u32 v11, v3, 3, v8")
        HOFF = 4 * ROWB
    else:
        a("v_lshl_add_u32 v11, v3, 2, v8")
        a("v_bfe_u32 v10, v11, 1, 2")
        HOFF = 16 * ROWB
    a(f"s_mul_i32 s30, s28, {NJ}")
    a("v_xor_b32 v10, s30, v10")
    a(f"s_movk_i32 s30, {ROWB}")
    a("v_mul_lo_u32 v11, v11, s30")
    a("v_lshl_add_u32 v11, v9, 3, v11")
    for jj in range(NJ):
        a(f"v_xor_b32 v12, {jj}, v10")
        a(f"v_lshl_add_u32 v{4+jj}, v12, 5, v11")
    a("s_mul_i32 s30, s29, 3072")
    a(f"s_add_u32 s30, s30, {ACT0}")
    a("v_lshlrev_b32 v8, 4, v1")
    a("v_add_u32 v8, s30, v8")
    a(f"v_add_u32 v9, {3*ASLOT}, v8")
    srd(a, 16, 18, 19, (4608 if kind == 1 else 2048) * 2)
    a(f"s_mul_i32 s30, s4, {TW*2}")
    a(f"s_mul_i32 s31, s28, {TW}")
    a("s_add_u32 s30, s30, s31")
    if kind == 1:
        a("v_lshlrev_b32 v10, 3, v3")
        for jj in range(NJ):
            a(f"buffer_load_dwordx2 v[{16+2*jj}:{17+2*jj}], v10, s[16:19], s30 offen offset:{32*jj}")
    else:
        a("v_and_b32 v10, 15, v1")
        a("v_lshlrev_b32 v10, 1, v10")
        for jj in range(NJ):
            a(f"buffer_load_ushort v{16+jj}, v10, s[16:19], s30 offen offset:{32*jj}")
    ACC = 160 if kind == 1 else 120
    SETSZ = 2 * (4 * NJ + 12)
    FA = [32, 32 + SETSZ]
    AO = 4 * NJ
    assert FA[1] + SETSZ <= ACC
    for r in range(12 * NJ): a(f"v_mov_b32 v{ACC+r}, 0")

    def reads(slot, st):
        out = []
        for kb in range(2):
            base = FA[st] + kb * (SETSZ // 2)
            def wr(jj):
                return [f"ds_read_b64_tr_b16 v[{base+4*jj+2*h}:{base+4*jj+2*h+1}], v{4+jj} offset:{slot*WSLOT + kb*32*ROWB + h*HOFF}" for h in range(2)]
            def ar(dd):
                va, so = (8, slot) if slot < 3 else (9, slot - 3)
                return [f"ds_read_b128 v[{base+AO+4*dd}:{base+AO+4*dd+3}], v{va} offset:{so*ASLOT + kb*6144 + dd*1024}"]
            out += wr(0) + ar(0) + ar(1) + ar(2)
            for jj in range(1, NJ): out += wr(jj)
        return out
    def mfmas(st):
        out = []
        for kb in range(2):
            base = FA[st] + kb * (SETSZ // 2)
            for jj in range(NJ):
                for dd in range(3):
                    acc = ACC + 4 * (jj * 3 + dd)
                    wf_ = f"v[{base+4*jj}:{base+4*jj+3}]"; af_ = f"v[{base+AO+4*dd}:{base+AO+4*dd+3}]"
                    if kind == 1:
                        out.append(f"v_mfma_f32_16x16x32_bf16 v[{acc}:{acc+3}], {wf_}, {af_}, v[{acc}:{acc+3}]")
                    else:
                        out.append(f"v_mfma_f32_16x16x32_bf16 v[{acc}:{acc+3}], {af_}, {wf_}, v[{acc}:{acc+3}]")
        return out
    NPRE = opt_int('npre1', 4) if kind == 1 else opt_int('npre2', 3)
    NRD = len(reads(0, 0))
    need = 5 + (2 if NPRE > 3 else 0) + (2 if NPRE > 6 else 0)
    def stage(slot, st, last):
        m = mfmas(st)
        if 'nomfma' in OPT: m = []
        a(f"s_waitcnt lgkmcnt({min(15, NRD - need)})")
        for ins in m[:NPRE]: a(ins)
        a("s_waitcnt lgkmcnt(0)")
        if last:
            for ins in m[NPRE:]: a(ins)
            return
        a("s_barrier")
        rd = reads((slot + 1) % NS, 1 - st)
        if 'nords' in OPT: rd = []
        rest = m[NPRE:]
        ng = max(1, len(rest) - 1)
        extra = max(0, len(rd) - ng)
        for i, ins in enumerate(rest):
            a(ins)
            n = 1 + (1 if i < extra else 0)
            if i == len(rest) - 1: n = len(rd)
            for _ in range(n):
                if rd: a(rd.pop(0))
        for r_ in rd: a(r_)
    a("s_barrier")
    if 'clk' in OPT:
        a("s_memtime s[64:65]"); a("s_memrealtime s[66:67]")
    for r in reads(0, 0): a(r)
    assert NS % 2 == 0
    a(f"s_movk_i32 s31, {nloop}")
    a.label(f"{P}_CLOOP")
    for s in range(NS): stage(s, s % 2, False)
    a("s_sub_u32 s31, s31, 1")
    a("s_cmp_lg_u32 s31, 0")
    a(f"s_cbranch_scc1 {P}_CLOOP")
    for s in range(NS): stage(s, s % 2, s == NS - 1)
    if 'clk' in OPT:
        a("s_memtime s[68:69]"); a("s_memrealtime s[70:71]")
        a("s_waitcnt lgkmcnt(0)")
        a("s_sub_u32 s68, s68, s64")
        a("s_sub_u32 s70, s70, s66")
        a("v_mov_b32 v10, s68"); a("v_mov_b32 v11, s70")
        a("s_lshl_b32 s72, s2, 5")
        a("s_lshl_b32 s73, s27, 3")
        a("s_add_u32 s72, s72, s73")
        a(f"s_add_u32 s72, s72, {0x2900000 + (0 if kind == 1 else 0x10000)}")
        srd(a, 76, 6, 7, 0x4000000)
        a("v_mov_b32 v12, 0")
        a("buffer_store_dwordx2 v[10:11], v12, s[76:79], s72 offen")

    if kind == 1:
        a("s_waitcnt vmcnt(0)")
        for jj in range(4):
            a(f"v_lshlrev_b32 v{96+4*jj}, 16, v{16+2*jj}")
            a(f"v_and_b32 v{97+4*jj}, 0xffff0000, v{16+2*jj}")
            a(f"v_lshlrev_b32 v{98+4*jj}, 16, v{17+2*jj}")
            a(f"v_and_b32 v{99+4*jj}, 0xffff0000, v{17+2*jj}")
        c0 = -2.0 * math.sqrt(2.0 / math.pi) * 1.4426950408889634
        c1 = c0 * 0.044715
        a(f"s_mov_b32 s34, {fhex(c1)}"); a(f"s_mov_b32 s35, {fhex(c1)}")
        a(f"s_mov_b32 s36, {fhex(1.0)}"); a(f"s_mov_b32 s37, {fhex(1.0)}")
        a(f"v_mov_b32 v30, {fhex(c0)}"); a(f"v_mov_b32 v31, {fhex(c0)}")
        a("s_lshl_b32 s39, s4, 1")
        a("s_add_u32 s38, s39, s28")
        a("s_mul_i32 s38, s38, 6")
        a("s_add_u32 s38, s38, s5")
        a(f"s_mul_i32 s38, s38, {2*ABLK}")
        a("s_lshl_b32 s39, s29, 9")
        a("s_add_u32 s38, s38, s39")
        a(f"s_add_u32 s38, s38, {WS_G}")
        a("v_lshrrev_b32 v9, 3, v1")
        a("v_lshlrev_b32 v9, 10, v9")
        a("v_and_b32 v10, 7, v1")
        a("v_lshl_add_u32 v9, v10, 4, v9")
        a(f"s_add_u32 s39, s38, {ABLK}")
        for kb in range(2):
            for dd in range(3):
                T = 32
                O = 112 + 4 * ((kb * 3 + dd) % 2)
                for t in range(2):
                    jj = 2 * kb + t
                    acc = ACC + 4 * (jj * 3 + dd)
                    for p in range(2):
                        x = T + 8 * t + 4 * p
                        a(f"v_cvt_pk_bf16_f32 v{x+2}, v{acc+2*p}, v{acc+2*p+1}")
                        a(f"v_lshlrev_b32 v{x}, 16, v{x+2}")
                        a(f"v_and_b32 v{x+1}, 0xffff0000, v{x+2}")
                        a(f"v_pk_add_f32 v[{x}:{x+1}], v[{x}:{x+1}], v[{96+4*jj+2*p}:{97+4*jj+2*p}]")
                        a(f"v_cvt_pk_bf16_f32 v{x+2}, v{x}, v{x+1}")
                        a(f"v_lshlrev_b32 v{x}, 16, v{x+2}")
                        a(f"v_and_b32 v{x+1}, 0xffff0000, v{x+2}")
                    for p in range(2):
                        x = T + 8 * t + 4 * p
                        a(f"v_pk_mul_f32 v[{x+2}:{x+3}], v[{x}:{x+1}], v[{x}:{x+1}]")
                        a(f"v_pk_fma_f32 v[{x+2}:{x+3}], v[{x+2}:{x+3}], s[34:35], v[30:31]")
                        a(f"v_pk_mul_f32 v[{x+2}:{x+3}], v[{x+2}:{x+3}], v[{x}:{x+1}]")
                    for p in range(2):
                        x = T + 8 * t + 4 * p
                        a(f"v_exp_f32 v{x+2}, v{x+2}")
                        a(f"v_exp_f32 v{x+3}, v{x+3}")
                    for p in range(2):
                        x = T + 8 * t + 4 * p
                        a(f"v_pk_add_f32 v[{x+2}:{x+3}], v[{x+2}:{x+3}], s[36:37]")
                    for p in range(2):
                        x = T + 8 * t + 4 * p
                        a(f"v_rcp_f32 v{x+2}, v{x+2}")
                        a(f"v_rcp_f32 v{x+3}, v{x+3}")
                    for p in range(2):
                        x = T + 8 * t + 4 * p
                        a(f"v_pk_mul_f32 v[{x}:{x+1}], v[{x}:{x+1}], v[{x+2}:{x+3}]")
                        a(f"v_cvt_pk_bf16_f32 v{O+2*t+p}, v{x}, v{x+1}")
                a(f"buffer_store_dwordx4 v[{O}:{O+3}], v9, s[12:15], s{38+kb} offen offset:{128*dd}")
    else:
        a("s_waitcnt vmcnt(0)")
        if C.HTOV: a("s_barrier")
        for jj in range(NJ): a(f"v_lshlrev_b32 v{16+jj}, 16, v{16+jj}")
        a(f"s_mul_i32 s30, s29, {48*ROWB}")
        a(f"s_add_u32 s30, s30, {HT0}")
        for jj in range(NJ): a(f"v_add_u32 v{4+jj}, s30, v{4+jj}")
        for jj in range(NJ):
            for dd in range(3):
                r = 32 + 2 * (jj * 3 + dd)
                a(f"ds_read_b64_tr_b16 v[{r}:{r+1}], v{4+jj} offset:{dd*16*ROWB}")
        srd(a, 16, 20, 21, 2048 * 576 * 2)
        a("v_and_b32 v9, 15, v1")
        a("s_movk_i32 s30, 1152")
        a("v_mul_lo_u32 v9, v9, s30")
        a("v_lshl_add_u32 v9, v3, 3, v9")
        a(f"s_mul_i32 s30, s4, {TW}")
        a(f"s_mul_i32 s31, s28, {TW//2}")
        a("s_add_u32 s30, s30, s31")
        a("s_mul_i32 s30, s30, 1152")
        a("s_mul_i32 s31, s5, 192")
        a("s_add_u32 s30, s30, s31")
        a("s_mul_i32 s31, s29, 96")
        a("s_add_u32 s30, s30, s31")
        a("s_waitcnt lgkmcnt(0)")
        for jj in range(NJ):
            for dd in range(3):
                acc = ACC + 4 * (jj * 3 + dd)
                hr = 32 + 2 * (jj * 3 + dd)
                O = 64 + 2 * ((jj * 3 + dd) % 4)
                for p in range(2):
                    x = 80 + 4 * p
                    a(f"v_cvt_pk_bf16_f32 v{x+2}, v{acc+2*p}, v{acc+2*p+1}")
                    a(f"v_lshlrev_b32 v{x}, 16, v{x+2}")
                    a(f"v_and_b32 v{x+1}, 0xffff0000, v{x+2}")
                    a(f"v_add_f32 v{x}, v{x}, v{16+jj}")
                    a(f"v_add_f32 v{x+1}, v{x+1}, v{16+jj}")
                    a(f"v_cvt_pk_bf16_f32 v{x+2}, v{x}, v{x+1}")
                    a(f"v_lshlrev_b32 v{x}, 16, v{x+2}")
                    a(f"v_and_b32 v{x+1}, 0xffff0000, v{x+2}")
                    a(f"v_lshlrev_b32 v{x+2}, 16, v{hr+p}")
                    a(f"v_and_b32 v{x+3}, 0xffff0000, v{hr+p}")
                    a(f"v_add_f32 v{x}, v{x}, v{x+2}")
                    a(f"v_add_f32 v{x+1}, v{x+1}, v{x+3}")
                    a(f"v_cvt_pk_bf16_f32 v{O+p}, v{x}, v{x+1}")
                a(f"buffer_store_dwordx2 v[{O}:{O+1}], v9, s[16:19], s30 offen offset:{32*dd}")
            if jj < NJ - 1: a(f"s_add_u32 s30, s30, {16*1152}")
    a(f"s_branch {END}")

    a.label(PROD)
    a("s_sub_u32 s28, s27, 4")
    CPY = 'nocopy' not in OPT and not C.WTEST
    CPITCH = W1C_PITCH if kind == 1 else W2C_PITCH
    a(f"s_movk_i32 s30, {WPITCH}")
    a(f"s_mul_i32 s32, s4, {ROWB if C.WTEST >= 0 else nstg * WSLOT}")
    if CPY:
        a(f"s_and_b32 s31, s4, {3 if kind == 1 else 7}")
        a(f"s_cmp_lg_u32 s31, {1 if kind == 1 else 3}")
        a(f"s_cbranch_scc1 {P}_NOCP")
        a(f"s_movk_i32 s30, {CPITCH}")
        a(f"s_lshr_b32 s32, s4, {2 if kind == 1 else 3}")
        a(f"s_lshl_b32 s32, s32, {9 if kind == 1 else 8}")
        a(f"s_add_u32 s32, s32, {WS_W1C if kind == 1 else WS_W2C}")
        srd(a, 8, 6, 7, WS_END)
        a.label(f"{P}_NOCP")
    a("s_mov_b32 s56, s30")
    a("s_lshl_b32 s57, s30, 6")
    if kind == 1:
        a("v_and_b32 v4, 15, v1")
        a("v_lshrrev_b32 v5, 1, v4")
        a("v_and_b32 v4, 1, v4")
        a("s_lshl_b32 s29, s28, 4")
        a("v_add_u32 v6, s29, v3")
        a("v_mul_lo_u32 v6, v6, s30")
        a("v_lshl_add_u32 v6, v4, 4, v6")
        for q in range(4):
            hi = (q >> 1)
            a(f"v_or_b32 v7, {hi << 2}, v3")
            a("v_xor_b32 v7, v7, v5")
            a(f"v_lshl_add_u32 v{10+q}, v7, 5, v6")
            if q:
                a(f"s_mul_i32 s31, s56, {4*q}")
                a(f"s_sub_u32 s31, s31, {1024*q}")
                a(f"v_add_u32 v{10+q}, s31, v{10+q}")
    else:
        a("v_bfe_u32 v5, v1, 1, 2")
        a("v_and_b32 v4, 1, v1")
        a("v_lshrrev_b32 v6, 3, v1")
        a("s_lshl_b32 s29, s28, 4")
        a("v_add_u32 v6, s29, v6")
        a("v_mul_lo_u32 v6, v6, s30")
        a("v_lshl_add_u32 v6, v4, 4, v6")
        a("v_xor_b32 v7, v3, v5")
        a("v_lshl_add_u32 v10, v7, 5, v6")
        a("s_lshl_b32 s31, s56, 3")
        a("s_sub_u32 s31, s31, 1024")
        a("v_add_u32 v11, s31, v10")
    a("v_lshrrev_b32 v16, 3, v1")
    a("v_lshlrev_b32 v16, 10, v16")
    a("v_and_b32 v17, 7, v1")
    a("v_lshl_add_u32 v16, v17, 4, v16")
    a("s_lshr_b32 s30, s28, 1")
    a("s_lshl_b32 s30, s30, 13")
    a("s_and_b32 s31, s28, 1")
    a("s_lshl_b32 s31, s31, 9")
    a("s_add_u32 s30, s30, s31")
    for q in range(3):
        a(f"s_add_u32 s31, s30, {2048 - 896*q}")
        a(f"v_add_u32 v{17+q}, s31, v16")
    a(f"s_mul_i32 s33, s5, {2*ABLK}")
    a(f"s_add_u32 s33, s33, {C.ACTBASE - 2048 + opt_int('ashift', 0)}")
    if opt_int('wshift', 0): a(f"s_add_u32 s32, s32, {opt_int('wshift', 0)}")
    if opt_int('wxor', 0): a(f"s_xor_b32 s32, s32, {opt_int('wxor', 0)}")
    for s in range(NS):
        a(f"s_mul_i32 s30, s28, {C.NWP*1024}")
        a(f"s_add_u32 s{40+s}, s30, {s*WSLOT}")
        a("s_mul_i32 s30, s28, 3072")
        a(f"s_add_u32 s{48+s}, s30, {ACT0 + s*ASLOT}")
    if kind == 2:
        a("s_mul_i32 s29, s28, 24")
        a("v_lshrrev_b32 v6, 3, v1")
        a("v_add_u32 v6, s29, v6")
        a("v_lshlrev_b32 v15, 12, v6")
        a("v_lshl_add_u32 v15, v4, 4, v15")
        a("v_lshl_add_u32 v15, v7, 5, v15")
        a("s_mul_i32 s30, s5, 96*4096")
        a(f"s_mul_i32 s31, s4, {ROWB}")
        a("s_add_u32 s30, s30, s31")
        a(f"s_add_u32 s30, s30, {WS_HT}")
        a("s_mul_i32 s31, s28, 3072")
        a(f"s_add_u32 s31, s31, {HT0}")
        a("s_mov_b32 s36, s30"); a("s_mov_b32 s37, s31")
        def ht_issue():
            for i in range(3):
                a(f"s_add_u32 s34, s37, {1024*i}")
                a("s_mov_b32 m0, s34")
                a(f"s_add_u32 s35, s36, {i*8*4096}")
                a("buffer_load_dwordx4 v15, s[12:15], s35 offen lds")
        if not C.HTOV: ht_issue()
    AV = [17, 18, 19]
    def issue(slot):
        a(f"s_mov_b32 m0, s{40+slot}")
        for q in range(0 if 'noW' in OPT else C.NWP):
            a(f"buffer_load_dwordx4 v{10+q}, s[8:11], s32 offen offset:{1024*q} lds")
        a(f"s_mov_b32 m0, s{48+slot}")
        for q in range(0 if 'noA' in OPT else 3):
            a(f"buffer_load_dwordx4 v{AV[q]}, s[12:15], s33 offen offset:{1024*q} lds")
        if 'hot' not in OPT:
            a("s_add_u32 s32, s32, s57")
            a(f"s_add_u32 s33, s33, {12*ABLK}")
    def stamp():
        if 'stamp' not in OPT: return
        a("s_memrealtime s[60:61]")
        a("s_waitcnt lgkmcnt(0)")
        a("v_mov_b32 v22, s60")
        a("v_cmp_eq_u32 vcc, s62, v1")
        a("v_cndmask_b32 v20, v20, v22, vcc")
        a("s_add_u32 s62, s62, 1")
        a("s_and_b32 s62, s62, 63")
    if 'stamp' in OPT:
        a("s_mov_b32 s62, 0"); a("v_mov_b32 v20, 0")
    PPS = C.PPS
    stamp()
    for s in range(NS): issue(s)
    stamp()
    a(f"s_waitcnt vmcnt({(NS-1)*PPS})")
    a("s_barrier")
    stamp()
    a(f"s_movk_i32 s31, {nloop}")
    a.label(f"{P}_PLOOP")
    for s in range(NS):
        a(f"s_waitcnt vmcnt({(NS-2)*PPS})")
        a("s_barrier")
        if kind == 1 or s % 2 == 0: stamp()
        issue(s)
    a("s_sub_u32 s31, s31, 1")
    a("s_cmp_lg_u32 s31, 0")
    a(f"s_cbranch_scc1 {P}_PLOOP")
    HOV = kind == 2 and C.HTOV
    for s in range(NS - 1):
        a(f"s_waitcnt vmcnt({(NS-2-s)*PPS + (3 if (HOV and s > 0) else 0)})")
        a("s_barrier")
        stamp()
        if HOV and s == 0: ht_issue()
    if HOV:
        a("s_waitcnt vmcnt(0)")
        a("s_barrier")
    if 'stamp' in OPT:
        a("s_cmp_lg_u32 s28, 0")
        a(f"s_cbranch_scc1 {END}")
        a("s_lshl_b32 s30, s2, 8")
        a(f"s_add_u32 s30, s30, {0x2400000 + (0 if kind == 1 else 0x10000)}")
        a("v_lshlrev_b32 v21, 2, v1")
        srd(a, 12, 6, 7, 0x4000000)
        a("buffer_store_dword v20, v21, s[12:15], s30 offen")
    a(f"s_branch {END}")
    a.label(PREF)
    gen_prefetch(a, 3 + kind, NWG, END)
    a.label(END)
    kst_end(a, 2 + kind, NWG + PF[3 + kind].nwg)
    a("s_endpgm")
    return name, (208 if kind == 1 else 144), C.LDS

def gen_k4(a): return gen_gemm(a, 1, "k4_kernel")
def gen_k5(a): return gen_gemm(a, 2, "k5_kernel")
```

```python
from gen import *

def gen_k2(a):
    name = "k2_kernel"
    kernel_head(a, name)
    CS = 4160
    UPAD = 8 * CS
    UOFF = UPAD + 512
    kst_begin(a)
    a("s_cmp_ge_u32 s2, 576")
    a("s_cbranch_scc1 K2_PF")
    a("s_load_dwordx2 s[6:7], s[0:1], 112")
    a("s_load_dwordx2 s[4:5], s[0:1], 48")
    it_load_ptrs(a, 2)
    a("v_and_b32 v1, 63, v0")
    a("v_lshrrev_b32 v2, 6, v0")
    a("v_readfirstlane_b32 s27, v2")
    a("v_lshrrev_b32 v3, 4, v1")
    a("v_and_b32 v4, 15, v1")
    a("v_lshlrev_b32 v5, 4, v1")
    a("s_waitcnt lgkmcnt(0)")
    srd(a, 8, 6, 7, WS_HN)
    srd(a, 12, 4, 5, D * 2)
    a("s_lshl_b32 s28, s27, 2")
    a("s_sub_u32 s28, 12, s28")
    a("v_add_u32 v6, s28, v5")
    a(f"v_add_u32 v7, {ROFF}, v6")
    a(f"s_mul_i32 s29, s2, {RSTRIDE}")
    a(f"s_add_u32 s29, s29, {WS_R}")
    a(f"s_mul_i32 s30, s27, {2*CS}")
    a("s_mov_b32 m0, s30")
    for q in range(4):
        a(f"buffer_load_dwordx4 v7, s[8:11], s29 offen offset:{1024*q} lds")
    a(f"s_add_u32 s30, s30, {CS}")
    a("s_mov_b32 m0, s30")
    for q in range(4):
        a(f"buffer_load_dwordx4 v6, s[8:11], s29 offen offset:{1024*q} lds")
    a("s_lshl_b32 s31, s27, 10")
    a(f"s_add_u32 s30, s31, {UOFF}")
    a("s_mov_b32 m0, s30")
    a("s_lshl_b32 s32, s2, 12")
    a("s_add_u32 s33, s32, s31")
    a(f"s_add_u32 s33, s33, {WS_UT}")
    a("buffer_load_dwordx4 v5, s[8:11], s33 offen lds")
    a("v_lshlrev_b32 v8, 5, v4")
    a("v_lshl_add_u32 v8, v3, 3, v8")
    a("s_lshl_b32 s34, s27, 10")
    a("s_add_u32 s34, s34, s32")
    a(f"s_add_u32 s35, s34, {WS_XT}")
    a("buffer_load_dwordx2 v[10:11], v8, s[8:11], s35 offen")
    a("buffer_load_dwordx2 v[12:13], v8, s[8:11], s35 offen offset:512")
    a("s_lshl_b32 s36, s2, 1")
    a("v_mov_b32 v9, s36")
    a("buffer_load_ushort v14, v9, s[12:15], 0 offen")
    a("v_lshrrev_b32 v15, 2, v1")
    a(f"s_movk_i32 s37, {CS}")
    a("v_mul_lo_u32 v15, v15, s37")
    a("v_and_b32 v16, 3, v1")
    a("v_lshl_add_u32 v15, v16, 4, v15")
    a("v_add_u32 v15, 4096, v15")
    a("v_subrev_u32 v16, 32, v1")
    a("v_lshlrev_b32 v16, 4, v16")
    a(f"v_add_u32 v16, {UPAD}, v16")
    a("v_cmp_gt_u32 vcc, 32, v1")
    a("v_cndmask_b32 v15, v16, v15, vcc")
    for r in range(4): a(f"v_mov_b32 v{16+r}, 0")
    a("ds_write_b128 v15, v[16:19]")
    a("v_lshlrev_b32 v20, 5, v4")
    a("v_lshl_add_u32 v20, v3, 4, v20")
    a("s_lshl_b32 s37, s27, 6")
    a(f"s_sub_u32 s38, {UOFF-288}, s37")
    a("v_add_u32 v20, s38, v20")
    a("v_and_b32 v21, 7, v4")
    a(f"s_movk_i32 s39, {CS}")
    a("v_mul_lo_u32 v21, v21, s39")
    a("v_lshl_add_u32 v21, v3, 4, v21")
    a("v_lshrrev_b32 v22, 3, v4")
    a("v_lshlrev_b32 v22, 4, v22")
    a("v_sub_u32 v21, v21, v22")
    a("s_sub_u32 s38, 208, s37")
    a("v_add_u32 v21, s38, v21")
    ACC = 128
    for r in range(32): a(f"v_mov_b32 v{ACC+r}, 0")
    a("s_waitcnt vmcnt(0) lgkmcnt(0)")
    a("s_barrier")
    a("s_lshl_b32 s71, s2, 2")
    a("s_add_u32 s71, s71, s27")
    inline_touch(a, 2, 71, 2304, 1, 15, 16)
    BF = 32
    for z in range(16):
        a(f"ds_read_b128 v[{BF+4*z}:{BF+4*z+3}], v20 offset:{256*z}")
    AF = 96
    for i in range(8):
        a(f"ds_read_b128 v[{AF+4*i}:{AF+4*i+3}], v21 offset:{256*(15-i)}")
    for i in range(16):
        a(f"s_waitcnt lgkmcnt({7 if i < 8 else 15-i})")
        af = AF + 4 * (i % 8)
        for t in range(i >> 1, 8):
            z = 2 * t - i
            if z < -1: continue
            a(f"v_mfma_f32_16x16x32_bf16 v[{ACC+4*t}:{ACC+4*t+3}], v[{af}:{af+3}], v[{BF+4*(z+1)}:{BF+4*(z+1)+3}], v[{ACC+4*t}:{ACC+4*t+3}]")
        if i < 8:
            a(f"ds_read_b128 v[{af}:{af+3}], v21 offset:{256*(15-(i+8))}")
    a("s_barrier")
    a("s_lshl_b32 s37, s27, 13")
    a("v_add_u32 v22, s37, v5")
    for w in range(4):
        lab = a.newlabel("K2_W")
        a(f"s_cmp_eq_u32 s27, {w}")
        a(f"s_cbranch_scc1 {lab}")
        for t in (2*w, 2*w+1):
            a(f"ds_write_b128 v22, v[{ACC+4*t}:{ACC+4*t+3}] offset:{1024*t}")
        a.label(lab)
    for w in range(4):
        lab = a.newlabel("K2_M")
        a(f"s_cmp_lg_u32 s27, {w}")
        a(f"s_cbranch_scc1 {lab}")
        for r in range(8): a(f"v_mov_b32 v{24+r}, v{ACC+8*w+r}")
        a.label(lab)
    a("s_waitcnt lgkmcnt(0)")
    a("s_barrier")
    a("s_lshl_b32 s37, s27, 11")
    a("v_add_u32 v22, s37, v5")
    for k in range(1, 4):
        a(f"s_add_u32 s38, s27, {k}")
        a("s_and_b32 s38, s38, 3")
        a("s_lshl_b32 s38, s38, 13")
        a(f"v_add_u32 v23, s38, v22")
        a(f"ds_read_b128 v[{32+8*(k-1)}:{35+8*(k-1)}], v23")
        a(f"ds_read_b128 v[{36+8*(k-1)}:{39+8*(k-1)}], v23 offset:1024")
    a("s_lshl_b32 s37, s27, 10")
    a(f"s_add_u32 s37, s37, {UOFF}")
    a("v_add_u32 v23, s37, v8")
    a("ds_read_b64 v[56:57], v23")
    a("ds_read_b64 v[58:59], v23 offset:512")
    a("v_lshlrev_b32 v14, 16, v14")
    a("s_waitcnt lgkmcnt(0)")
    for r in range(8):
        a(f"v_add_f32 v{24+r}, v{24+r}, v{32+r}")
        a(f"v_add_f32 v{40+r}, v{40+r}, v{48+r}")
        a(f"v_add_f32 v{24+r}, v{24+r}, v{40+r}")
    for tt in range(2):
        y = 24 + 4 * tt; u = 56 + 2 * tt; x = 10 + 2 * tt
        a(f"v_cvt_pk_bf16_f32 v60, v{y}, v{y+1}")
        a(f"v_cvt_pk_bf16_f32 v61, v{y+2}, v{y+3}")
        a(f"v_lshlrev_b32 v62, 16, v{u}")
        a(f"v_and_b32 v63, 0xffff0000, v{u}")
        a(f"v_lshlrev_b32 v64, 16, v{u+1}")
        a(f"v_and_b32 v65, 0xffff0000, v{u+1}")
        for k in range(4): a(f"v_mul_f32 v{62+k}, v{62+k}, v14")
        a(f"v_cvt_pk_bf16_f32 v66, v62, v63")
        a(f"v_cvt_pk_bf16_f32 v67, v64, v65")
        for k in range(2):
            a(f"v_lshlrev_b32 v62, 16, v{60+k}")
            a(f"v_lshlrev_b32 v63, 16, v{66+k}")
            a(f"v_and_b32 v64, 0xffff0000, v{60+k}")
            a(f"v_and_b32 v65, 0xffff0000, v{66+k}")
            a(f"v_add_f32 v62, v62, v63")
            a(f"v_add_f32 v64, v64, v65")
            a(f"v_cvt_pk_bf16_f32 v{68+k}, v62, v64")
            a(f"v_lshlrev_b32 v62, 16, v{68+k}")
            a(f"v_lshlrev_b32 v63, 16, v{x+k}")
            a(f"v_and_b32 v64, 0xffff0000, v{68+k}")
            a(f"v_and_b32 v65, 0xffff0000, v{x+k}")
            a(f"v_add_f32 v62, v62, v63")
            a(f"v_add_f32 v64, v64, v65")
            a(f"v_cvt_pk_bf16_f32 v{70+2*tt+k}, v62, v64")
    a(f"s_add_u32 s35, s34, {WS_HT}")
    a("buffer_store_dwordx2 v[70:71], v8, s[8:11], s35 offen")
    a("buffer_store_dwordx2 v[72:73], v8, s[8:11], s35 offen offset:512")
    a("s_branch K2_END")
    a.label("K2_PF")
    gen_prefetch(a, 2, 576, "K2_END")
    a.label("K2_END")
    kst_end(a, 1, 576 + PF[2].nwg)
    a("s_endpgm")
    return name, 160, UOFF + 4096

K3_NWG = 256
def gen_k3(a):
    name = "k3_kernel"
    kernel_head(a, name)
    kst_begin(a)
    a(f"s_cmp_ge_u32 s2, {K3_NWG}")
    a("s_cbranch_scc1 K3_PF")
    a("s_load_dwordx2 s[6:7], s[0:1], 112")
    it_load_ptrs(a, 3)
    a("s_and_b32 s3, s2, 7")
    a("s_lshl_b32 s3, s3, 5")
    a("s_lshr_b32 s4, s2, 3")
    a("s_add_u32 s3, s3, s4")
    a("v_and_b32 v1, 63, v0")
    a("v_lshlrev_b32 v4, 12, v0")
    a("s_lshl_b32 s28, s3, 4")
    a(f"s_add_u32 s28, s28, {WS_HT}")
    a("v_and_b32 v5, 7, v1")
    a("v_lshlrev_b32 v5, 1, v5")
    a("v_mov_b32 v6, 0")
    K3ST = 'k3st' in os.environ.get('GOPT', '').split(',')
    def st(i):
        if K3ST:
            a(f"s_memrealtime s[{60+2*i}:{61+2*i}]")
    a("s_waitcnt lgkmcnt(0)")
    st(0)
    srd(a, 8, 6, 7, WS_G)
    for i in range(3):
        a(f"s_add_u32 s29, s28, {i*192*4096}")
        a(f"buffer_load_dwordx4 v[{10+4*i}:{13+4*i}], v4, s[8:11], s29 offen")
    a("buffer_load_dwordx4 v[22:25], v6, s[8:11], s28 offen")
    a("buffer_load_ushort v26, v5, s[8:11], s28 offen")
    a("v_lshrrev_b32 v7, 4, v0")
    a("v_cmp_le_u32 vcc, 6, v7")
    a("v_cndmask_b32 v8, 0, 1, vcc")
    a("v_mul_u32_u24 v9, 6, v8")
    a("v_sub_u32 v7, v7, v9")
    a("v_cmp_le_u32 vcc, 3, v7")
    a("v_addc_co_u32 v7, vcc, 0, v7, vcc")
    a(f"v_mul_u32_u24 v8, {2*ABLK}, v8")
    a("v_lshl_add_u32 v8, v7, 7, v8")
    a("v_and_b32 v7, 7, v0")
    a("v_lshl_add_u32 v8, v7, 4, v8")
    a("v_bfe_u32 v7, v0, 3, 1")
    a("v_lshl_add_u32 v8, v7, 10, v8")
    a("s_lshr_b32 s30, s3, 3")
    a(f"s_mul_i32 s30, s30, {12*ABLK}")
    a("s_bfe_u32 s31, s3, 0x10002")
    a(f"s_mul_i32 s31, s31, {ABLK}")
    a("s_add_u32 s30, s30, s31")
    a("s_and_b32 s31, s3, 3")
    a("s_lshl_b32 s31, s31, 11")
    a("s_add_u32 s30, s30, s31")
    a(f"s_add_u32 s30, s30, {WS_HN}")
    a(f"s_mov_b32 s26, {fhex(1.0/576)}")
    a("v_lshrrev_b32 v9, 4, v0")
    a("v_lshlrev_b32 v9, 6, v9")
    a("v_and_b32 v27, 15, v1")
    a("v_lshlrev_b32 v27, 2, v27")
    a("s_waitcnt vmcnt(0)")
    st(1)
    if IT[3]:
        a("v_lshrrev_b32 v28, 6, v0")
        a("v_readfirstlane_b32 s71, v28")
        a("s_mul_i32 s70, s2, 3")
        a("s_add_u32 s71, s71, s70")
        inline_touch(a, 3, 71, 768, 1, 28, 29)
    X = 32
    for i in range(4):
        for k in range(4):
            a(f"v_lshlrev_b32 v{X+8*i+2*k}, 16, v{10+4*i+k}")
            a(f"v_and_b32 v{X+8*i+2*k+1}, 0xffff0000, v{10+4*i+k}")
    a("v_lshlrev_b32 v26, 16, v26")
    S = 64
    for i in range(3):
        for e in range(8):
            a(f"v_sub_f32 v{80+8*i+e}, v{X+8*i+e}, v{56+e}")
    for e in range(8):
        a(f"v_add_f32 v{S+e}, v{80+e}, v{88+e}")
        a(f"v_mul_f32 v{S+8+e}, v{80+e}, v{80+e}")
    for e in range(8):
        a(f"v_add_f32 v{S+e}, v{S+e}, v{96+e}")
        a(f"v_fmac_f32 v{S+8+e}, v{88+e}, v{88+e}")
    for e in range(8):
        a(f"v_fmac_f32 v{S+8+e}, v{96+e}, v{96+e}")
    for mode in ("quad_perm:[1,0,3,2]", "quad_perm:[2,3,0,1]", "row_half_mirror", "row_mirror"):
        for e in range(16):
            a(f"v_add_f32_dpp v{S+e}, v{S+e}, v{S+e} {mode} row_mask:0xf bank_mask:0xf")
    a("v_and_b32 v28, 15, v1")
    a("v_cmp_eq_u32 vcc, 0, v28")
    a("s_and_saveexec_b64 s[32:33], vcc")
    for k in range(4):
        a(f"ds_write_b128 v9, v[{S+4*k}:{S+4*k+3}] offset:{16*k}")
    a("s_mov_b64 exec, s[32:33]")
    a("s_waitcnt lgkmcnt(0)")
    a("s_barrier")
    st(2)
    for r in range(12):
        a(f"ds_read_b32 v{80+r}, v27 offset:{64*r}")
    a("s_waitcnt lgkmcnt(0)")
    for k in range(6): a(f"v_add_f32 v{80+k}, v{80+k}, v{86+k}")
    for k in range(3): a(f"v_add_f32 v{80+k}, v{80+k}, v{83+k}")
    a("v_add_f32 v80, v80, v81")
    a("v_add_f32 v80, v80, v82")
    a("v_mov_b32_dpp v81, v80 row_ror:8 row_mask:0xf bank_mask:0xf")
    a("v_and_b32 v28, 8, v1")
    a("v_cmp_eq_u32 vcc, 0, v28")
    a("v_cndmask_b32 v82, v81, v80, vcc")
    a("v_cndmask_b32 v83, v80, v81, vcc")
    a("v_mul_f32 v82, s26, v82")
    a("v_mul_f32 v83, s26, v83")
    a("v_fma_f32 v83, -v82, v82, v83")
    a("v_max_f32 v83, 0, v83")
    a("v_add_f32 v82, v82, v26")
    bf16_round(a, 82, 82)
    bf16_round(a, 83, 83)
    a(f"v_add_f32 v83, {fhex(1e-5)}, v83")
    bf16_round(a, 83, 83)
    a("v_sqrt_f32 v83, v83")
    bf16_round(a, 83, 83)
    a("v_rcp_f32 v83, v83")
    for e in range(8):
        a(f"v_readlane_b32 s{40+e}, v82, {e}")
        a(f"v_readlane_b32 s{48+e}, v83, {e}")
    for i in range(3):
        for k in range(4):
            x0 = X + 8*i + 2*k; x1 = x0 + 1
            a(f"v_subrev_f32 v{x0}, s{40+2*k}, v{x0}")
            a(f"v_subrev_f32 v{x1}, s{41+2*k}, v{x1}")
            a(f"v_cvt_pk_bf16_f32 v{84+k}, v{x0}, v{x1}")
        for k in range(4):
            x0 = X + 8*i + 2*k; x1 = x0 + 1
            a(f"v_lshlrev_b32 v{x0}, 16, v{84+k}")
            a(f"v_and_b32 v{x1}, 0xffff0000, v{84+k}")
        for k in range(4):
            x0 = X + 8*i + 2*k; x1 = x0 + 1
            a(f"v_mul_f32 v{x0}, s{48+2*k}, v{x0}")
            a(f"v_mul_f32 v{x1}, s{49+2*k}, v{x1}")
            a(f"v_cvt_pk_bf16_f32 v{10+4*i+k}, v{x0}, v{x1}")
        a(f"s_add_u32 s31, s30, {i*2*2*ABLK}")
        a(f"buffer_store_dwordx4 v[{10+4*i}:{13+4*i}], v8, s[8:11], s31 offen")
    if K3ST:
        st(3)
        a("s_waitcnt vmcnt(0)")
        st(4)
        a("s_waitcnt lgkmcnt(0)")
        srd(a, 8, 6, 7, 0x4000000)
        for i in range(5): a(f"v_mov_b32 v{10+i}, s{60+2*i}")
        a("v_mov_b32 v15, s94")
        a("v_mov_b32 v16, 0"); a("v_mov_b32 v17, 0")
        a("s_lshl_b32 s31, s2, 5")
        a("s_add_u32 s31, s31, 0x2800000")
        a("v_mov_b32 v6, 0")
        a("s_mov_b64 exec, 1")
        a("v_readfirstlane_b32 s32, v0")
        a("s_cmp_lg_u32 s32, 0")
        a("s_cbranch_scc1 K3_END")
        a("buffer_store_dwordx4 v[10:13], v6, s[8:11], s31 offen")
        a("buffer_store_dwordx4 v[14:17], v6, s[8:11], s31 offen offset:16")
    a("s_branch K3_END")
    a.label("K3_PF")
    gen_prefetch(a, 3, K3_NWG, "K3_END")
    a.label("K3_END")
    kst_end(a, 2, K3_NWG + PF[3].nwg)
    a("s_endpgm")
    return name, 104, 1024
```

```python
import sys
sys.path.insert(0, 'gen')
from asmlib import *

NAME = "sequential_preLN__ssm_conv_s4d__mixer_token_mlp__prompt"
L, D, NM, F = 2048, 576, 128, 4608
WS_UT = 0x0
WS_XT = 0x240000
WS_R  = 0x480000
RSTRIDE = 8256; ROFF = 4128
WS_HT = 0x910000
WS_HN = 0xB50000
WS_G  = 0xE50000
WS_W1C = 0x1510000
W1C_PITCH = 4608
WS_W2C = 0x1E10000
W2C_PITCH = 1024
WS_END = 0x2290000
ABLK = 8192
LOG2E = 0x3fb8aa3b
INV2PI = 0x3e22f983

def fhex(x):
    import struct
    return "0x%08x" % struct.unpack('<I', struct.pack('<f', x))[0]

def srd(a, s, lo, hi, size):
    a(f"s_mov_b32 s{s}, s{lo}")
    a(f"s_and_b32 s{s+1}, s{hi}, 0xffff")
    a(f"s_mov_b32 s{s+2}, {hex(size)}")
    a(f"s_mov_b32 s{s+3}, 0x00020000")

def kernel_head(a, name):
    a.raw(f".globl {name}\n.p2align 8\n.type {name},@function\n{name}:")

import os
STAMP = 'kst' in os.environ.get('GOPT', '').split(',')
STAMP_BASE = 0x3000000
def kst_begin(a):
    if not STAMP: return
    a("s_memrealtime s[94:95]")
    a("v_readfirstlane_b32 s93, v0")
def kst_end(a, kidx, nwg):
    if not STAMP: return
    lab = f"KST_{kidx}"
    a(f"s_cmp_ge_u32 s2, {nwg}")
    a(f"s_cbranch_scc1 {lab}")
    a("s_mov_b64 exec, -1")
    a("s_waitcnt vmcnt(0) lgkmcnt(0)")
    a("s_lshr_b32 s86, s93, 6")
    a("s_memrealtime s[92:93]")
    a("s_load_dwordx2 s[6:7], s[0:1], 112")
    a("s_waitcnt lgkmcnt(0)")
    srd(a, 88, 6, 7, 0x4000000)
    a("s_lshl_b32 s86, s86, 3")
    a("v_mov_b32 v2, s86")
    a(f"s_lshl_b32 s87, s2, 7")
    a(f"s_add_u32 s87, s87, {STAMP_BASE + kidx * 0x20000}")
    a("v_mov_b32 v0, s94")
    a("v_mov_b32 v1, s92")
    a("s_mov_b64 exec, 1")
    a("buffer_store_dwordx2 v[0:1], v2, s[88:91], s87 offen")
    a.label(lab)

def kernel_desc(name, vgpr, sgpr=96, accum=None):
    acc = accum if accum is not None else ((vgpr + 3) // 4) * 4
    return f""".amdhsa_kernel {name}
  .amdhsa_next_free_vgpr {vgpr}
  .amdhsa_next_free_sgpr {sgpr}
  .amdhsa_accum_offset {acc}
  .amdhsa_group_segment_fixed_size 0
  .amdhsa_kernarg_size 120
  .amdhsa_user_sgpr_count 2
  .amdhsa_user_sgpr_kernarg_segment_ptr 1
  .amdhsa_system_sgpr_workgroup_id_x 1
.end_amdhsa_kernel
"""

class PFC:
    def __init__(s, nwg, nwv, jobs): s.nwg = nwg; s.nwv = nwv; s.jobs = jobs
def _pfopt():
    d = {1: PFC(0, 4, []), 2: PFC(0, 4, []), 3: PFC(0, 3, []), 4: PFC(0, 8, []), 5: PFC(0, 8, [])}
    for o in os.environ.get('GOPT', '').split(','):
        if o.startswith('pf='):
            for k, spec in enumerate(o[3:].split('/')):
                if not spec or spec == '0': continue
                n, js = spec.split(':')
                d[k + 1].nwg = int(n)
                d[k + 1].jobs = [tuple(int(x) for x in j.split('.')) for j in js.split('+') if j]
    return d
PF = _pfopt()
def gen_prefetch(a, k, nmain, endlab):
    c = PF[k]
    if c.nwg == 0:
        a(f"s_branch {endlab}")
        return
    assert c.nwg % 8 == 0 and nmain % 8 == 0
    a(f"s_cmp_ge_u32 s2, {nmain + c.nwg}")
    a(f"s_cbranch_scc1 {endlab}")
    a("s_load_dwordx2 s[16:17], s[0:1], 64")
    a("s_load_dwordx2 s[18:19], s[0:1], 80")
    a("v_and_b32 v1, 63, v0")
    a("v_lshrrev_b32 v2, 6, v0")
    a("v_readfirstlane_b32 s27, v2")
    a(f"s_sub_u32 s3, s2, {nmain}")
    a("s_lshr_b32 s3, s3, 3")
    a(f"s_mul_i32 s3, s3, {c.nwv}")
    a("s_add_u32 s3, s3, s27")
    a("s_and_b32 s4, s2, 7")
    NWX = c.nwg // 8 * c.nwv
    NWA = c.nwg * c.nwv
    a("s_waitcnt lgkmcnt(0)")
    _o = os.environ.get('GOPT', '').split(',')
    cpk = {1: 1, 2: 2}
    for o in _o:
        if o.startswith('cp1='): cpk[1] = int(o[4:])
        if o.startswith('cp2='): cpk[2] = int(o[4:])
    assert cpk[1] != cpk[2]
    if 'icp1' in _o: cpk[1] = -1
    CP = {cpk[1]: 1, cpk[2]: 2}.get(k, 0) if 'nocopy' not in _o else 0
    ncp = 0
    if CP:
        a("s_load_dwordx2 s[6:7], s[0:1], 112")
        a(f"s_sub_u32 s21, s2, {nmain}")
        a(f"s_mul_i32 s21, s21, {c.nwv}")
        a("s_add_u32 s21, s21, s27")
        if CP == 1:
            srd(a, 24, 16, 17, 2048 * 9216)
            a("v_lshrrev_b32 v6, 4, v1")
            a("v_and_b32 v7, 15, v1")
            a("v_mul_u32_u24 v4, 9216, v6")
            a("v_lshl_add_u32 v4, v7, 4, v4")
            a("v_add_u32 v4, 256, v4")
            a(f"v_mul_u32_u24 v5, {W1C_PITCH}, v6")
            a("v_lshl_add_u32 v5, v7, 4, v5")
            nr = -(-512 // NWA)
            assert nr == 1
            a("s_mul_i32 s22, s21, 4*9216".replace("4*9216", str(4*9216)))
            for j in range(9):
                if j in (4, 8): a("s_add_u32 s22, s22, 4096")
                a(f"buffer_load_dwordx4 v[{16+4*j}:{19+4*j}], v4, s[24:27], s22 offen offset:{(j%4)*1024}")
            ncp = 9
            a(f"s_mul_i32 s22, s21, {4*W1C_PITCH}")
            a(f"s_add_u32 s22, s22, {WS_W1C}")
            a("s_add_u32 s23, s22, 4096")
            cp_stores = [f"buffer_store_dwordx4 v[{16+4*j}:{19+4*j}], v5, s[28:31], s{22 if j < 8 else 23} offen offset:{(j%8)*512}" for j in range(9)]
            cp_lim = WS_W1C + 2048 * W1C_PITCH
        else:
            srd(a, 24, 18, 19, 4608 * 4096)
            a("v_lshrrev_b32 v6, 5, v1")
            a("v_bfe_u32 v7, v1, 3, 2")
            a("v_and_b32 v3, 7, v1")
            a("v_lshlrev_b32 v4, 12, v6")
            a("v_lshl_add_u32 v4, v7, 10, v4")
            a("v_lshl_add_u32 v4, v3, 4, v4")
            a("v_add_u32 v4, 384, v4")
            a("v_lshlrev_b32 v5, 10, v6")
            a("v_lshl_add_u32 v5, v7, 8, v5")
            a("v_lshl_add_u32 v5, v3, 4, v5")
            nr = -(-2304 // NWA)
            a("s_lshl_b32 s22, s21, 13")
            for j in range(nr):
                a(f"buffer_load_dwordx4 v[{16+4*j}:{19+4*j}], v4, s[24:27], s22 offen")
                if j < nr - 1: a(f"s_add_u32 s22, s22, {NWA*8192}")
            ncp = nr
            a("s_lshl_b32 s21, s21, 11")
            a(f"s_add_u32 s21, s21, {WS_W2C}")
            cp_stores = []
            for j in range(nr):
                cp_stores.append(f"s_add_u32 s22, s21, {j*NWA*2048}")
                cp_stores.append(f"buffer_store_dwordx4 v[{16+4*j}:{19+4*j}], v5, s[28:31], s22 offen")
            cp_lim = WS_W2C + 4608 * W2C_PITCH
        a("v_mov_b32 v14, v5")
    ntouch = 0
    for ji, (buf, r0, r1) in enumerate(c.jobs):
        pitch = 9216 if buf == 1 else 4096
        RPI = 6 if buf == 1 else 16
        if buf == 1:
            srd(a, 8, 16, 17, r1 * pitch)
            a("v_min_u32 v3, 59, v1")
            a("v_mul_u32_u24 v4, 52, v3")
            a("v_lshrrev_b32 v4, 9, v4")
            a("v_mul_u32_u24 v5, 10, v4")
            a("v_sub_u32 v5, v3, v5")
            a("s_mul_i32 s5, s4, 27*171")
            a("s_lshr_b32 s5, s5, 10")
            a("s_lshl_b32 s5, s5, 8")
        else:
            srd(a, 8, 18, 19, r1 * pitch)
            a("v_lshrrev_b32 v4, 2, v1")
            a("v_and_b32 v5, 3, v1")
            a("s_lshl_b32 s5, s4, 9")
        a(f"v_mul_u32_u24 v4, {pitch}, v4")
        a("v_lshl_add_u32 v4, v5, 7, v4")
        a(f"s_mul_i32 s20, s3, {RPI*pitch}")
        a("s_add_u32 s20, s20, s5")
        a(f"s_add_u32 s20, s20, {r0*pitch}")
        n = -(-(r1 - r0) // (RPI * NWX))
        for i in range(n):
            a(f"buffer_load_dword v{60 + (i % 8)}, v4, s[8:11], s20 offen")
            if i < n - 1: a(f"s_add_u32 s20, s20, {NWX*RPI*pitch}")
            ntouch += 1
    if CP:
        assert ntouch < 60
        a("s_waitcnt lgkmcnt(0)")
        srd(a, 28, 6, 7, cp_lim)
        a(f"s_waitcnt vmcnt({ntouch})")
        for st_ in cp_stores: a(st_.replace(", v5, ", ", v14, "))
    a(f"s_branch {endlab}")


def _itopt():
    d = {1: [], 2: [], 3: []}
    for o in os.environ.get('GOPT', '').split(','):
        if o.startswith('it='):
            for k, spec in enumerate(o[3:].split('/')):
                if not spec or spec == '0': continue
                d[k + 1] = [tuple(int(x) for x in j.split('.')) for j in spec.split('+') if j]
    return d
IT = _itopt()
def it_load_ptrs(a, k):
    if not IT[k] and not (k == 1 and ICP1): return
    a("s_load_dwordx2 s[76:77], s[0:1], 64")
    a("s_load_dwordx2 s[78:79], s[0:1], 80")
def inline_touch(a, k, sgw, nwaves, vlane, vt, vd):
    n_tot = 0
    if not IT[k]: return 0
    a(f"v_lshlrev_b32 v{vt}, 7, v{vlane}")
    for (buf, r0, r1) in IT[k]:
        pitch = 9216 if buf == 1 else 4096
        srd(a, 72, 76 if buf == 1 else 78, 77 if buf == 1 else 79, r1 * pitch)
        lines = (r1 - r0) * pitch // 128
        n = -(-lines // (64 * nwaves))
        a(f"s_lshl_b32 s70, s{sgw}, 13")
        a(f"s_add_u32 s70, s70, {r0 * pitch}")
        for i in range(n):
            a(f"buffer_load_dword v{vd}, v{vt}, s[72:75], s70 offen")
            if i < n - 1: a(f"s_add_u32 s70, s70, {nwaves * 8192}")
            n_tot += 1
    return n_tot
ICP1 = 'icp1' in os.environ.get('GOPT', '').split(',')

def bf16_round(a, dst, src, tmp=None):
    a(f"v_cvt_pk_bf16_f32 v{dst}, v{src}, v{src}")
    a(f"v_and_b32 v{dst}, 0xffff0000, v{dst}")

def exp_precise(a, dst, src, t0, t1, sL, sLlo, sLn2):
    a(f"v_mul_f32 v{t0}, s{sL}, v{src}")
    a(f"v_fma_f32 v{t1}, v{src}, s{sL}, -v{t0}")
    a(f"v_fma_f32 v{t1}, v{src}, s{sLlo}, v{t1}")
    a(f"v_exp_f32 v{dst}, v{t0}")
    a(f"v_mul_f32 v{t1}, s{sLn2}, v{t1}")
    a(f"v_fma_f32 v{dst}, v{dst}, v{t1}, v{dst}")

def gen_k1(a):
    name = "k1_kernel"
    kernel_head(a, name)
    kst_begin(a)
    a("s_cmp_ge_u32 s2, 640")
    a("s_cbranch_scc1 K1_PF")
    a("s_load_dwordx2 s[4:5], s[0:1], 0")
    a("s_load_dwordx2 s[6:7], s[0:1], 112")
    a("s_load_dwordx8 s[16:23], s[0:1], 8")
    a("s_load_dwordx2 s[24:25], s[0:1], 40")
    it_load_ptrs(a, 1)
    a("s_cmp_ge_u32 s2, 64")
    a("s_cbranch_scc1 K1_KGEN")
    a("s_waitcnt lgkmcnt(0)")
    srd(a, 8, 4, 5, L * D * 2)
    srd(a, 12, 6, 7, WS_R)
    PITCH = 1216
    a("v_lshrrev_b32 v1, 3, v0")
    a("v_and_b32 v2, 7, v0")
    a("s_lshl_b32 s3, s2, 5")
    a("v_add_u32 v3, s3, v1")
    a("s_movk_i32 s26, 1152")
    a("v_mul_lo_u32 v3, v3, s26")
    a("v_lshl_add_u32 v3, v2, 4, v3")
    for i in range(9):
        a(f"buffer_load_dwordx4 v[{10+4*i}:{13+4*i}], v3, s[8:11], 0 offen offset:{128*i}")
    a(f"s_movk_i32 s26, {PITCH}")
    a("v_mul_lo_u32 v4, v1, s26")
    a("v_lshl_add_u32 v4, v2, 4, v4")
    a("v_and_b32 v5, 63, v0")
    a("v_lshrrev_b32 v6, 6, v0")
    a("v_readfirstlane_b32 s27, v6")
    a("v_bfe_u32 v7, v5, 2, 2")
    a("v_mul_lo_u32 v7, v7, s26")
    a("v_lshrrev_b32 v8, 4, v5")
    a("v_lshl_add_u32 v7, v8, 5, v7")
    a("v_and_b32 v8, 3, v5")
    a("v_lshl_add_u32 v7, v8, 3, v7")
    a("s_lshl_b32 s28, s2, 6")
    a("v_lshlrev_b32 v9, 12, v5")
    a("v_add_u32 v9, s28, v9")
    a("s_waitcnt vmcnt(0)")
    for i in range(9):
        a(f"ds_write_b128 v4, v[{10+4*i}:{13+4*i}] offset:{128*i}")
    for i in range(36):
        a(f"v_lshlrev_b32 v{50+2*i}, 16, v{10+i}")
        a(f"v_and_b32 v{51+2*i}, 0xffff0000, v{10+i}")
    a("v_add_f32 v122, v50, v51")
    a("v_add_f32 v123, v52, v53")
    a("v_add_f32 v124, v54, v55")
    a("v_add_f32 v125, v56, v57")
    for i in range(2, 18):
        for q in range(4):
            a(f"v_add_f32 v{122+q}, v{122+q}, v{50+4*i+q}")
    a("v_add_f32 v122, v122, v123")
    a("v_add_f32 v124, v124, v125")
    a("v_add_f32 v122, v122, v124")
    def red8(r, t):
        a(f"v_add_f32_dpp v{r}, v{r}, v{r} quad_perm:[1,0,3,2] row_mask:0xf bank_mask:0xf")
        a(f"v_add_f32_dpp v{r}, v{r}, v{r} quad_perm:[2,3,0,1] row_mask:0xf bank_mask:0xf")
        a(f"v_add_f32_dpp v{r}, v{r}, v{r} row_half_mirror row_mask:0xf bank_mask:0xf")
    red8(122, None)
    a(f"s_mov_b32 s26, {fhex(1.0/576)}")
    a("v_mul_f32 v126, s26, v122")
    a("s_waitcnt lgkmcnt(0)")
    a("s_barrier")
    def transpose_store(ws_off):
        for u in range(3):
            lab = a.newlabel("K1_SKIP")
            if u == 2:
                a("s_cmp_lg_u32 s27, 0")
                a(f"s_cbranch_scc1 {lab}")
            a(f"s_lshl_b32 s29, s27, 7")
            a(f"s_add_u32 s29, s29, {u*4*128}")
            a(f"v_add_u32 v127, s29, v7")
            for Q in range(8):
                a(f"ds_read_b64_tr_b16 v[{130+2*Q}:{131+2*Q}], v127 offset:{Q*4*PITCH}")
            a(f"s_lshl_b32 s29, s27, 18")
            a(f"s_add_u32 s29, s29, {ws_off + u*4*64*4096}")
            a("s_waitcnt lgkmcnt(0)")
            for q in range(4):
                a(f"buffer_store_dwordx4 v[{130+4*q}:{133+4*q}], v9, s[12:15], s29 offen offset:{16*q}")
            if u == 2: a.label(lab)
            a("s_nop 1")
    transpose_store(WS_XT)
    for i in range(72):
        a(f"v_sub_f32 v{150+0}, v{50+i}, v126") if False else None
    a("v_sub_f32 v127, v50, v126"); a("v_mul_f32 v122, v127, v127")
    a("v_sub_f32 v127, v51, v126"); a("v_mul_f32 v123, v127, v127")
    a("v_sub_f32 v127, v52, v126"); a("v_mul_f32 v124, v127, v127")
    a("v_sub_f32 v127, v53, v126"); a("v_mul_f32 v125, v127, v127")
    for i in range(4, 72):
        t = 146 + (i % 4)
        a(f"v_sub_f32 v{t}, v{50+i}, v126")
        a(f"v_fmac_f32 v{122+(i%4)}, v{t}, v{t}")
    a("v_add_f32 v122, v122, v123")
    a("v_add_f32 v124, v124, v125")
    a("v_add_f32 v122, v122, v124")
    red8(122, None)
    a("v_mul_f32 v122, s26, v122")
    bf16_round(a, 126, 126)
    bf16_round(a, 122, 122)
    a(f"v_add_f32 v122, {fhex(1e-5)}, v122")
    bf16_round(a, 122, 122)
    a("v_sqrt_f32 v122, v122")
    bf16_round(a, 122, 122)
    a("v_rcp_f32 v122, v122")
    for i in range(36):
        x0, x1 = 50 + 2*i, 51 + 2*i
        a(f"v_sub_f32 v{x0}, v{x0}, v126")
        a(f"v_sub_f32 v{x1}, v{x1}, v126")
        a(f"v_cvt_pk_bf16_f32 v146, v{x0}, v{x1}")
        a(f"v_lshlrev_b32 v{x0}, 16, v146")
        a(f"v_and_b32 v{x1}, 0xffff0000, v146")
        a(f"v_mul_f32 v{x0}, v{x0}, v122")
        a(f"v_mul_f32 v{x1}, v{x1}, v122")
        a(f"v_cvt_pk_bf16_f32 v{10+i}, v{x0}, v{x1}")
    a("s_barrier")
    for i in range(9):
        a(f"ds_write_b128 v4, v[{10+4*i}:{13+4*i}] offset:{128*i}")
    a("s_waitcnt lgkmcnt(0)")
    a("s_barrier")
    transpose_store(WS_UT)
    a("s_branch K1_END")

    a.label("K1_KGEN")
    K1ST = 'k1st' in os.environ.get('GOPT', '').split(',')
    def st(i):
        if K1ST: a(f"s_memrealtime s[{60+2*i}:{61+2*i}]")
    a("s_sub_u32 s3, s2, 64")
    a("v_and_b32 v1, 63, v0")
    a("v_lshrrev_b32 v2, 6, v0")
    a("v_readfirstlane_b32 s27, v2")
    a("v_lshrrev_b32 v3, 4, v1")
    a("v_and_b32 v4, 15, v1")
    a("s_lshl_b32 s28, s3, 8")
    a("v_lshlrev_b32 v5, 6, v2")
    a("v_lshl_add_u32 v5, v3, 4, v5")
    a("v_add_u32 v5, s28, v5")
    a("s_waitcnt lgkmcnt(0)")
    srd(a, 8, 16, 17, D * NM * 2)
    a("buffer_load_dwordx4 v[10:13], v5, s[8:11], 0 offen")
    srd(a, 28, 18, 19, D * NM * 2)
    a("buffer_load_dwordx4 v[14:17], v5, s[28:31], 0 offen")
    srd(a, 32, 20, 21, D * NM * 2)
    a("buffer_load_dwordx4 v[18:21], v5, s[32:35], 0 offen")
    srd(a, 36, 22, 23, D * NM * 2)
    a("buffer_load_dwordx4 v[22:25], v5, s[36:39], 0 offen")
    srd(a, 40, 24, 25, D * 2)
    a("s_lshl_b32 s44, s3, 1")
    a("v_mov_b32 v6, s44")
    a("buffer_load_ushort v26, v6, s[40:43], 0 offen")
    srd(a, 12, 6, 7, WS_HT)
    a("v_lshlrev_b32 v27, 3, v4")
    a("v_cvt_f32_u32 v27, v27")
    a("v_and_b32 v28, 7, v4")
    a("v_lshrrev_b32 v29, 3, v4")
    a("v_lshl_add_u32 v28, v29, 7, v28")
    a("v_cvt_f32_u32 v28, v28")
    a("v_lshrrev_b32 v29, 2, v4")
    a("v_lshlrev_b32 v29, 7, v29")
    a("v_and_b32 v30, 3, v4")
    a("v_lshl_add_u32 v29, v30, 1, v29")
    a("v_add_u32 v29, 256, v29")
    a("v_subrev_u32 v30, 8, v4")
    a("v_lshrrev_b32 v30, 1, v30")
    a("v_lshlrev_b32 v30, 7, v30")
    a("v_and_b32 v31, 1, v4")
    a("v_lshl_add_u32 v30, v31, 2, v30")
    a("v_add_u32 v30, 512, v30")
    a("v_cmp_gt_u32 vcc, 8, v4")
    a("v_cndmask_b32 v29, v30, v29, vcc")
    a("v_cvt_f32_u32 v29, v29")
    a("v_lshlrev_b32 v30, 7, v4")
    a("v_add_u32 v30, 1024, v30")
    a("v_cvt_f32_u32 v30, v30")
    a(f"s_mov_b32 s44, {hex(LOG2E)}")
    a(f"s_mov_b32 s45, {fhex(1.4426950408889634 - 1.4426950216293335)}")
    a(f"s_mov_b32 s46, {fhex(0.6931471805599453)}")
    a(f"s_mov_b32 s47, {hex(INV2PI)}")
    a("s_waitcnt vmcnt(0)")
    st(0)
    a("s_lshl_b32 s71, s3, 2")
    a("s_add_u32 s71, s71, s27")
    ntouch = 0
    if ICP1:
        srd(a, 72, 76, 77, 2048 * 9216)
        a("v_mul_u32_u24 v160, 9216, v3")
        a("v_lshl_add_u32 v160, v4, 4, v160")
        a(f"v_mul_u32_u24 v161, {W1C_PITCH}, v3")
        a("v_lshl_add_u32 v161, v4, 4, v161")
        for h in range(2):
            a("s_lshl_b32 s68, s71, 1")
            if h: a("s_add_u32 s68, s68, 1")
            a("s_mul_i32 s69, s68, 7282")
            a("s_lshr_b32 s69, s69, 16")
            a("s_mul_i32 s70, s69, 9")
            a("s_sub_u32 s68, s68, s70")
            a(f"s_mul_i32 s70, s69, {4*9216}")
            a("s_lshl_b32 s67, s68, 10")
            a("s_add_u32 s70, s70, s67")
            a(f"buffer_load_dwordx4 v[{152+4*h}:{155+4*h}], v160, s[72:75], s70 offen offset:256")
            a(f"s_mul_i32 s70, s69, {4*W1C_PITCH}")
            a("s_lshl_b32 s67, s68, 9")
            a("s_add_u32 s70, s70, s67")
            a(f"s_add_u32 s{64+h}, s70, {WS_W1C}")
    ntouch = inline_touch(a, 1, 71, 2304, 1, 162, 163)
    a("v_lshlrev_b32 v26, 16, v26")
    exp_precise(a, 31, 26, 32, 33, 44, 45, 46)
    bf16_round(a, 31, 31)
    a("v_add_f32 v26, v31, v31")
    a(f"s_mov_b32 s48, {hex(LOG2E | 0x80000000)}")
    st(1)
    HI = 40; LO = 72
    XV = 104
    TP = 120
    ACCK = 80 + 60
    ACCK = 140
    for tp in range(4):
        for h in range(2):
            un = (lambda d, s_: a(f"v_lshlrev_b32 v{d}, 16, v{s_}")) if h == 0 else (lambda d, s_: a(f"v_and_b32 v{d}, 0xffff0000, v{s_}"))
            ar, ai, cr, ci = 32 + 4 * h, 33 + 4 * h, 34 + 4 * h, 35 + 4 * h
            t0, t1, t2 = TP, TP + 1, TP + 2
            un(t0, 10 + tp)
            exp_precise(a, t1, t0, t2, TP + 3, 44, 45, 46)
            bf16_round(a, t1, t1)
            a(f"v_mul_f32 v{t1}, v{t1}, v31")
            a(f"v_mul_f32 v{ar}, s48, v{t1}")
            un(t0, 14 + tp)
            a(f"v_mul_f32 v{t0}, v{t0}, v31")
            a(f"v_mul_f32 v{ai}, s47, v{t0}")
            un(t0, 18 + tp)
            a(f"v_mul_f32 v{cr}, v{t0}, v26")
            un(t0, 22 + tp)
            a(f"v_mul_f32 v{ci}, v{t0}, v26")
            e0, e1, e2, e3 = TP + 4, TP + 5, TP + 6, TP + 7
            a(f"v_mul_f32 v{e0}, v{ar}, v27")
            a(f"v_mul_f32 v{e1}, v{ai}, v27")
            a(f"v_exp_f32 v{e0}, v{e0}")
            a(f"v_fract_f32 v{e1}, v{e1}")
            a(f"v_cos_f32 v{e2}, v{e1}")
            a(f"v_sin_f32 v{e3}, v{e1}")
            a(f"v_mul_f32 v{XV+0+h}, v{e0}, v{e2}")
            a(f"v_mul_f32 v{XV+2+h}, v{e0}, v{e3}")
            for T in range(3):
                b = TP + 8 + 6 * T
                a(f"v_mul_f32 v{b}, v{ar}, v{28+T}")
                a(f"v_mul_f32 v{b+1}, v{ai}, v{28+T}")
                a(f"v_exp_f32 v{b}, v{b}")
                a(f"v_fract_f32 v{b+1}, v{b+1}")
                a(f"v_cos_f32 v{b+2}, v{b+1}")
                a(f"v_sin_f32 v{b+3}, v{b+1}")
                a(f"v_mul_f32 v{b+4}, v{cr}, v{b+2}")
                a(f"v_mul_f32 v{b+5}, v{cr}, v{b+3}")
                a(f"v_fma_f32 v{b+4}, -v{ci}, v{b+3}, v{b+4}")
                a(f"v_fma_f32 v{b+5}, v{ci}, v{b+2}, v{b+5}")
                a(f"v_mul_f32 v{XV+4+4*T+h}, v{b}, v{b+4}")
                a(f"v_mul_f32 v{XV+6+4*T+h}, -v{b}, v{b+5}")
        for q in range(8):
            x0, x1 = XV + 2 * q, XV + 2 * q + 1
            hp = HI + 4 * q + tp; lp = LO + 4 * q + tp
            u0, u1 = TP + (2 * q) % 16, TP + (2 * q) % 16 + 1
            a(f"v_cvt_pk_bf16_f32 v{hp}, v{x0}, v{x1}")
            a(f"v_lshlrev_b32 v{u0}, 16, v{hp}")
            a(f"v_and_b32 v{u1}, 0xffff0000, v{hp}")
            a(f"v_sub_f32 v{u0}, v{x0}, v{u0}")
            a(f"v_sub_f32 v{u1}, v{x1}, v{u1}")
            a(f"v_cvt_pk_bf16_f32 v{lp}, v{u0}, v{u1}")
    def fr(base, q): return f"v[{base+4*q}:{base+4*q+3}]"
    for T in range(3):
        acc = f"v[{ACCK+4*T}:{ACCK+4*T+3}]"
        first = True
        for (qa, qb) in ((2 + 2 * T, 0), (3 + 2 * T, 1)):
            for (ba, bb) in ((LO, HI), (HI, LO), (HI, HI)):
                a(f"v_mfma_f32_16x16x32_bf16 {acc}, {fr(ba, qa)}, {fr(bb, qb)}, {'0' if first else acc}")
                first = False
    for r in range(12): a(f"v_mov_b32 v{80+r}, v{ACCK+r}")
    if ICP1:
        srd(a, 72, 6, 7, WS_W1C + 2048 * W1C_PITCH)
        a(f"s_waitcnt vmcnt({ntouch})")
        for h in range(2):
            a(f"buffer_store_dwordx4 v[{152+4*h}:{155+4*h}], v161, s[72:75], s{64+h} offen")
    st(2)
    a("v_lshlrev_b32 v5, 4, v1")
    a("s_mul_i32 s28, s27, 3072")
    a("v_add_u32 v5, s28, v5")
    for T in range(3):
        a(f"ds_write_b128 v5, v[{80+4*T}:{83+4*T}] offset:{1024*T}")
    a("s_waitcnt lgkmcnt(0)")
    a("s_barrier")
    KC = 12288
    a("s_cmp_eq_u32 s27, 3")
    a("s_cbranch_scc1 K1_KG_ZERO")
    a("v_lshlrev_b32 v5, 4, v1")
    a("s_lshl_b32 s28, s27, 10")
    a("v_add_u32 v5, s28, v5")
    for w in range(4):
        a(f"ds_read_b128 v[{80+4*w}:{83+4*w}], v5 offset:{3072*w}")
    a("s_cmp_eq_u32 s27, 1")
    a("s_cbranch_scc1 K1_KG_T1")
    a("s_cmp_eq_u32 s27, 2")
    a("s_cbranch_scc1 K1_KG_T2")
    a("v_and_b32 v100, 1, v3")
    a("v_lshlrev_b32 v100, 2, v100")
    a("v_lshrrev_b32 v101, 1, v3")
    a("v_lshl_add_u32 v100, v101, 7, v100")
    a("v_lshl_add_u32 v100, v4, 3, v100")
    for r in range(1, 4): a(f"v_add_u32 v{100+r}, {r}, v100")
    a("s_branch K1_KG_SC")
    a.label("K1_KG_T1")
    a("v_lshlrev_b32 v104, 6, v3")
    a("v_lshl_add_u32 v104, v4, 2, v104")
    a("v_add_u32 v104, 256, v104")
    a("v_lshlrev_b32 v105, 6, v3")
    a("v_lshl_add_u32 v105, v4, 1, v105")
    a("v_add_u32 v105, 256, v105")
    a("v_cmp_gt_u32 vcc, 2, v3")
    for r in range(4):
        a(f"v_add_u32 v106, {r}, v104")
        a(f"v_add_u32 v107, {32*(r>>1)+(r&1)}, v105")
        a(f"v_cndmask_b32 v{100+r}, v107, v106, vcc")
    a("s_branch K1_KG_SC")
    a.label("K1_KG_T2")
    a("v_lshlrev_b32 v100, 6, v3")
    a("v_add_u32 v100, v4, v100")
    a("v_add_u32 v100, 512, v100")
    for r in range(1, 4): a(f"v_add_u32 v{100+r}, {16*r}, v100")
    a.label("K1_KG_SC")
    a("s_waitcnt lgkmcnt(0)")
    for r in range(4):
        a(f"v_add_f32 v{80+r}, v{80+r}, v{84+r}")
        a(f"v_add_f32 v{88+r}, v{88+r}, v{92+r}")
        a(f"v_add_f32 v{80+r}, v{80+r}, v{88+r}")
        a(f"v_lshlrev_b32 v{100+r}, 2, v{100+r}")
        a(f"ds_write_b32 v{100+r}, v{80+r} offset:{KC}")
    a("s_branch K1_KG_EXP")
    a.label("K1_KG_ZERO")
    a("v_mov_b32 v5, 0")
    a(f"ds_write_b32 v5, v5 offset:{KC + 768*4}")
    a.label("K1_KG_EXP")
    a("s_waitcnt lgkmcnt(0)")
    a("s_barrier")
    st(3)
    a("v_lshlrev_b32 v5, 3, v0")
    a("v_sub_u32 v5, 2047, v5")
    for e in range(9):
        a(f"v_subrev_u32 v{10+e}, {e}, v5")
        a(f"v_cvt_f32_i32 v{20+e}, v{10+e}")
    for e in range(0, 9, 2):
        e1 = min(e + 1, 8)
        a(f"v_cvt_pk_bf16_f32 v{30+e//2}, v{20+e}, v{20+e1}")
    for e in range(9):
        src = 30 + e // 2
        if e % 2 == 0: a(f"v_and_b32 v{20+e}, 0xffff, v{src}")
        else: a(f"v_lshrrev_b32 v{20+e}, 16, v{src}")
        a(f"v_subrev_u32 v{20+e}, 17024, v{20+e}")
        a(f"v_min_u32 v36, 127, v{10+e}")
        a(f"v_max_i32 v{20+e}, v{20+e}, v36")
    a("v_cmp_gt_i32 vcc, 0, v18")
    a("v_mov_b32 v36, 768")
    a("v_cndmask_b32 v28, v28, v36, vcc")
    for e in range(9):
        a(f"v_lshlrev_b32 v{20+e}, 2, v{20+e}")
        a(f"ds_read_b32 v{40+e}, v{20+e} offset:{KC}")
    a("s_mul_i32 s28, s3, %d" % RSTRIDE)
    a(f"s_add_u32 s28, s28, {WS_R}")
    a("v_lshlrev_b32 v5, 4, v0")
    a("s_waitcnt lgkmcnt(0)")
    for k in range(4):
        a(f"v_cvt_pk_bf16_f32 v{52+k}, v{40+2*k}, v{41+2*k}")
        a(f"v_cvt_pk_bf16_f32 v{56+k}, v{41+2*k}, v{42+2*k}")
    a("buffer_store_dwordx4 v[52:55], v5, s[12:15], s28 offen")
    a(f"buffer_store_dwordx4 v[56:59], v5, s[12:15], s28 offen offset:{ROFF - 4096}") if False else None
    a(f"v_add_u32 v6, {ROFF}, v5")
    a("buffer_store_dwordx4 v[56:59], v6, s[12:15], s28 offen")
    if K1ST:
        st(4)
        a("s_waitcnt vmcnt(0) lgkmcnt(0)")
        st(5)
        a("s_waitcnt lgkmcnt(0)")
        srd(a, 72, 6, 7, 0x4000000)
        for i in range(6): a(f"v_mov_b32 v{70+i}, s{60+2*i}")
        a("v_mov_b32 v76, s94"); a("v_mov_b32 v77, 0")
        a("s_lshl_b32 s76, s2, 7")
        a("s_lshl_b32 s77, s27, 5")
        a("s_add_u32 s76, s76, s77")
        a("s_add_u32 s76, s76, 0x2a00000")
        a("v_mov_b32 v78, 0")
        a("buffer_store_dwordx4 v[70:73], v78, s[72:75], s76 offen")
        a("buffer_store_dwordx4 v[74:77], v78, s[72:75], s76 offen offset:16")
    a("v_cmp_gt_u32 vcc, 2, v0")
    a("s_and_saveexec_b64 s[30:31], vcc")
    a("s_cbranch_execz K1_END")
    for r in range(4): a(f"v_mov_b32 v{60+r}, 0")
    a("v_add_u32 v5, 4096, v5")
    a("v_add_u32 v6, 4096, v6")
    a("buffer_store_dwordx4 v[60:63], v5, s[12:15], s28 offen")
    a("buffer_store_dwordx4 v[60:63], v6, s[12:15], s28 offen")
    a("s_branch K1_END")
    a.label("K1_PF")
    gen_prefetch(a, 1, 640, "K1_END")
    a.label("K1_END")
    kst_end(a, 0, 640 + PF[1].nwg)
    a("s_endpgm")
    return name, 164, 38912

KERNELS = []
def build(kernels, launches):
    head = []
    ref = open('cdna_kernels/' + NAME + '.s.ref').read().split('\n')
    for ln in ref:
        if ln.startswith('; Kernarg') or ln.startswith(';   offset'):
            head.append(ln)
    for (k, grid, block, lds) in launches:
        head.append(f"; @launch kernel={k} grid=({grid},1,1) block=({block},1,1) lds={lds}")
    out = '\n'.join(head) + '\n.amdgcn_target "amdgcn-amd-amdhsa--gfx950"\n.text\n'
    descs = ''
    for gen in kernels:
        a = Asm()
        name, vg, lds = gen(a)
        out += render(insert_hazard_nops(a.lines))
        descs += kernel_desc(name, vg)
    out += '.section .rodata,"a"\n.p2align 6\n' + descs.replace('.amdhsa_kernel', '.p2align 6\n.amdhsa_kernel')
    return out

if __name__ == '__main__':
    from gen_rest import *
    main()
```

```python
import re

class Asm:
    def __init__(self):
        self.lines = []
        self.uid = 0
    def i(self, s):
        for part in s.strip().split('\n'):
            part = part.strip()
            if not part: continue
            self.lines.append(('i', part))
    def __call__(self, s): self.i(s)
    def label(self, name): self.lines.append(('l', name))
    def c(self, s): self.lines.append(('c', s))
    def raw(self, s): self.lines.append(('raw', s))
    def newlabel(self, p='L'):
        self.uid += 1
        return f"{p}_{self.uid}"

_reg_re = re.compile(r'^(-?)(\|?)(abs\()?([vsa])(\d+|\[(\d+):(\d+)\])\)?\|?$')
def regs_of(tok):
    tok = tok.strip()
    if tok in ('vcc',): return [('s', 106), ('s', 107)]
    if tok == 'vcc_lo': return [('s', 106)]
    if tok == 'vcc_hi': return [('s', 107)]
    if tok == 'exec': return [('s', 126), ('s', 127)]
    if tok == 'exec_lo': return [('s', 126)]
    if tok == 'exec_hi': return [('s', 127)]
    if tok == 'm0': return [('s', 124)]
    m = _reg_re.match(tok)
    if not m: return []
    k = m.group(4)
    if m.group(6) is not None:
        return [(k, n) for n in range(int(m.group(6)), int(m.group(7)) + 1)]
    return [(k, int(m.group(5)))]

def split_ops(s):
    out, depth, cur = [], 0, ''
    for ch in s:
        if ch == '[' or ch == '(' : depth += 1
        if ch == ']' or ch == ')' : depth -= 1
        if ch == ',' and depth == 0:
            out.append(cur.strip()); cur = ''
        else: cur += ch
    if cur.strip(): out.append(cur.strip())
    return out

TRANS = ('v_exp_f32', 'v_log_f32', 'v_rcp_f32', 'v_rsq_f32', 'v_sqrt_f32', 'v_sin_f32', 'v_cos_f32', 'v_rcp_iflag_f32',
         'v_exp_f16','v_log_f16','v_rcp_f16','v_rsq_f16','v_sqrt_f16')
MFMA_PASSES = {
    'v_mfma_f32_16x16x32_bf16': (4, 'x'), 'v_mfma_f32_16x16x32_f16': (4, 'x'), 'v_mfma_f32_32x32x16_bf16': (8, 'x'),
    'v_mfma_f32_16x16x4_f32': (8, 's'), 'v_mfma_f32_32x32x2_f32': (16, 's'),
    'v_mfma_f32_16x16x16_bf16': (4,'x'),
}
XDL_D_TO_OTHER = {2: 5, 4: 8, 8: 12, 16: 20}
XDL_D_TO_C_OVERLAP = {2: 4, 4: 6, 8: 10, 16: 18}
SG_D_TO_OTHER = {2: 4, 4: 6, 8: 10, 16: 18}
SG_D_TO_C_OVERLAP = {2: 2, 4: 4, 8: 8, 16: 16}
SRCC_WAR = {2: 1, 4: 3, 8: 7, 16: 15}

class Ins:
    __slots__ = ('text', 'mn', 'ops', 'mods', 'cls', 'wr', 'rd', 'srcC', 'dpp', 'isvalu', 'ismfma', 'istrans', 'store_data', 'lds_dma', 'reads_sgpr_valu', 'nops')
    def __init__(self, text):
        self.text = text
        t = text.split(';')[0].strip()
        sp = t.split(None, 1)
        self.mn = sp[0]
        rest = sp[1] if len(sp) > 1 else ''
        ops = split_ops(rest)
        mods = []
        if ops:
            last = ops[-1].split()
            ops[-1] = last[0]; mods = last[1:]
        self.ops = ops; self.mods = mods
        mn = self.mn
        base = re.sub(r'_(e32|e64|dpp|sdwa)$', '', mn)
        self.mn = base
        self.wr = []; self.rd = []; self.srcC = []; self.store_data = []
        self.isvalu = False; self.ismfma = False; self.istrans = False; self.lds_dma = False
        self.dpp = any(m.startswith(('quad_perm', 'row_', 'wave_', 'half_mirror', 'row_mirror','row_half_mirror')) for m in mods) or mn.endswith('_dpp')
        self.cls = 'other'; self.nops = 1
        R = regs_of
        if base == 's_nop':
            self.cls = 'nop'; self.nops = int(ops[0], 0) + 1
        elif base.startswith('v_mfma'):
            self.cls = 'mfma'; self.ismfma = True
            self.wr = R(ops[0]); self.rd = R(ops[1]) + R(ops[2]) + R(ops[3]); self.srcC = R(ops[3])
        elif base.startswith('v_'):
            self.cls = 'valu'; self.isvalu = True
            self.istrans = base in TRANS
            if base.startswith('v_cmp'):
                self.wr = R(ops[0]);
                for o in ops[1:]: self.rd += R(o)
                if base.startswith('v_cmpx'): self.wr += R('exec')
            elif base in ('v_add_co_u32', 'v_sub_co_u32', 'v_subrev_co_u32', 'v_addc_co_u32', 'v_subb_co_u32', 'v_subbrev_co_u32', 'v_mad_u64_u32', 'v_mad_i64_i32', 'v_div_scale_f32'):
                self.wr = R(ops[0]) + R(ops[1])
                for o in ops[2:]: self.rd += R(o)
            elif base in ('v_permlane32_swap_b32', 'v_permlane16_swap_b32', 'v_swap_b32'):
                self.wr = R(ops[0]) + R(ops[1]); self.rd = R(ops[0]) + R(ops[1])
            elif base == 'v_nop':
                pass
            else:
                self.wr = R(ops[0])
                for o in ops[1:]: self.rd += R(o)
                if base in ('v_fmac_f32', 'v_pk_fmac_f16', 'v_fmac_f16', 'v_dot2c_f32_bf16', 'v_writelane_b32', 'v_mac_f32') or self.dpp:
                    self.rd += R(ops[0])
                if base == 'v_cndmask_b32' and len(ops) == 3: self.rd += R('vcc')
        elif base.startswith('ds_'):
            self.cls = 'ds'
            if base.startswith(('ds_read', 'ds_bpermute', 'ds_permute', 'ds_swizzle')) or '_rtn' in base:
                self.wr = R(ops[0])
                for o in ops[1:]: self.rd += R(o)
            else:
                for o in ops: self.rd += R(o)
        elif base.startswith(('buffer_', 'global_', 'flat_', 'scratch_')):
            self.cls = 'vmem'
            is_lds = ('lds' in mods) or ('_lds_' in base)
            self.lds_dma = is_lds
            if base.startswith(('buffer_inv','buffer_wbl2')):
                pass
            elif 'load' in base and not is_lds:
                self.wr = R(ops[0])
                for o in ops[1:]: self.rd += R(o)
            elif 'store' in base:
                for o in ops: self.rd += R(o)
                if re.search(r'dwordx[34]$', base):
                    self.store_data = R(ops[0]) if base.startswith('buffer_') else R(ops[1])
            elif 'atomic' in base:
                for o in ops: self.rd += R(o)
                if 'sc0' in mods:
                    self.wr = R(ops[0])
            else:
                for o in ops: self.rd += R(o)
            if is_lds: self.rd += R('m0')
        elif base.startswith('s_'):
            self.cls = 'salu'
            if base.startswith(('s_cmp', 's_bitcmp', 's_cbranch', 's_branch', 's_waitcnt', 's_barrier', 's_endpgm', 's_setprio', 's_sleep', 's_setpc', 's_sendmsg', 's_setreg')):
                for o in ops: self.rd += R(o)
            else:
                if ops: self.wr = R(ops[0])
                for o in ops[1:]: self.rd += R(o)
                if 'saveexec' in base: self.wr += R('exec')

def required_gap(prod, pkey, cons):
    kind, reg = pkey
    need = 0
    if kind == 'w':
        if prod.ismfma:
            passes, ty = MFMA_PASSES[prod.mn]
            if cons.ismfma:
                if reg in cons.srcC:
                    same = (cons.srcC == prod.wr) and cons.mn == prod.mn
                    if same: need = max(need, 2 if passes == 2 else 0)
                    else:
                        if ty == 'x': need = max(need, XDL_D_TO_C_OVERLAP[passes])
                        else: need = max(need, SG_D_TO_C_OVERLAP[passes])
                a_b = regs_of(cons.ops[1]) + regs_of(cons.ops[2])
                if reg in a_b:
                    need = max(need, (XDL_D_TO_OTHER if ty == 'x' else SG_D_TO_OTHER)[passes])
                if reg in cons.wr and reg not in cons.srcC:
                    need = max(need, (XDL_D_TO_OTHER if ty == 'x' else SG_D_TO_OTHER)[passes])
            else:
                if reg in cons.rd or reg in cons.wr:
                    need = max(need, (XDL_D_TO_OTHER if ty == 'x' else SG_D_TO_OTHER)[passes])
        elif prod.isvalu:
            if reg[0] in 'va':
                if cons.ismfma and reg in cons.rd: need = max(need, 2)
                if cons.isvalu and reg in cons.rd:
                    if cons.dpp: need = max(need, 2)
                    if cons.mn in ('v_readfirstlane_b32', 'v_readlane_b32'): need = max(need, 1)
                    if cons.mn.startswith('v_permlane'): need = max(need, 2)
                    if prod.istrans and not cons.istrans: need = max(need, 1)
                    if prod.istrans and cons.istrans: need = max(need, 1)
                    if any(m.startswith(('op_sel','dst_sel')) for m in prod.mods) and prod.mn not in ('v_pk_add_f32','v_pk_mul_f32','v_pk_fma_f32'): need = max(need, 1)
                if prod.istrans and (cons.cls in ('ds','vmem')) and reg in cons.rd: need = max(need, 1)
            else:
                if reg in (('s', 126), ('s', 127)):
                    if cons.isvalu or cons.ismfma: need = max(need, 5)
                else:
                    if cons.isvalu and reg in cons.rd:
                        need = max(need, 4 if cons.mn in ('v_readlane_b32', 'v_writelane_b32') else 2)
                    if cons.cls == 'vmem' and reg in cons.rd: need = max(need, 5)
                    if cons.cls == 'salu' and reg in cons.rd: need = max(need, 1)
                    if cons.cls == 'ds' and reg in cons.rd: need = max(need, 5)
        elif prod.cls == 'salu':
            if reg == ('s', 124) and (cons.lds_dma or 'addtid' in cons.mn or cons.mn.startswith('s_movrel')): need = max(need, 1)
            if reg in (('s',126),('s',127)) and cons.ismfma: need = max(need, 1)
    elif kind == 'c':
        passes, ty = MFMA_PASSES[prod.mn]
        if ty == 'x' and cons.isvalu and reg in cons.wr: need = max(need, SRCC_WAR[passes])
    elif kind == 'sd':
        if reg in cons.wr: need = max(need, 2 if (cons.isvalu or cons.ismfma) else 1)
    return need

MAXAGE = 21
def insert_hazard_nops(lines):
    items = []
    for k, t in lines:
        if k == 'i': items.append(Ins(t))
        else: items.append((k, t))
    for rounds in range(20):
        n = len(items)
        labelpos = {it[1]: idx for idx, it in enumerate(items) if isinstance(it, tuple) and it[0] == 'l'}
        instate = [None] * (n + 1)
        ins = {}
        def join(idx, st):
            cur = instate[idx]
            if cur is None:
                instate[idx] = dict(st); return True
            ch = False
            for kk, v in st.items():
                if kk not in cur or cur[kk][0] > v[0]:
                    cur[kk] = v; ch = True
            return ch
        work = [0]; instate[0] = {}
        while work:
            idx = work.pop()
            st = dict(instate[idx])
            while idx < n:
                it = items[idx]
                if isinstance(it, tuple):
                    idx += 1
                    if not join(idx, st): break
                    st = dict(instate[idx])
                    continue
                need = 0
                for kk, (age, pr, key) in st.items():
                    r = required_gap(pr, key, it)
                    if r > age: need = max(need, r - age)
                if need > 0:
                    ins[idx] = max(ins.get(idx, 0), need)
                adv = it.nops
                nst = {}
                for kk, (age, pr, key) in st.items():
                    if age + need + adv - (adv - 1) - 1 + adv < MAXAGE + 100 and age + need + adv < MAXAGE:
                        nst[kk] = (age + need + adv, pr, key)
                for r in it.wr:
                    for kk in [kk for kk, v in nst.items() if v[2] == ('w', r)]: del nst[kk]
                if it.isvalu or it.ismfma or it.cls == 'salu':
                    for r in it.wr:
                        if it.cls == 'salu' and r not in (('s', 124), ('s', 126), ('s', 127)): continue
                        nst[(('w', r), id(it))] = (0, it, ('w', r))
                if it.ismfma:
                    for r in it.srcC: nst[(('c', r), id(it))] = (0, it, ('c', r))
                for r in it.store_data: nst[(('sd', r), id(it))] = (0, it, ('sd', r))
                st = nst
                if it.mn == 's_endpgm': break
                fall = True
                succ = []
                if it.mn == 's_branch':
                    succ = [labelpos[it.ops[0]]]; fall = False
                elif it.mn.startswith('s_cbranch'):
                    succ = [labelpos[it.ops[0]]]
                for s_ in succ:
                    if join(s_, st): work.append(s_)
                if not fall: break
                idx += 1
                if not join(idx, st): break
                st = dict(instate[idx])
        if not ins: break
        for idx in sorted(ins, reverse=True):
            need = ins[idx]
            while need > 0:
                k = min(need, 16)
                items.insert(idx, Ins(f"s_nop {k-1} ; hz")); need -= k
    else:
        raise RuntimeError("hazard pass did not converge")
    out = []
    for it in items:
        if isinstance(it, tuple): out.append(it)
        else: out.append(('i', it.text))
    return out

def render(lines):
    s = []
    for k, t in lines:
        if k == 'i': s.append('    ' + t)
        elif k == 'l': s.append(t + ':')
        elif k == 'c': s.append('    ; ' + t)
        else: s.append(t)
    return '\n'.join(s) + '\n'
```

```python
from gen import *
import os, math
OPT = os.environ.get('GOPT', '').split(',')
def opt_int(name, default):
    for o in OPT:
        if o.startswith(name + '='): return int(o.split('=')[1])
    return default

ASLOT = 12288

class GC:
    def __init__(s, kind):
        s.kind = kind
        s.TW = 128 if kind == 1 else 64
        s.NJ = s.TW // 32
        s.NS = opt_int('ns1', 4) if kind == 1 else opt_int('ns2', 6)
        s.PD = opt_int('pd1', 10) if kind == 1 else opt_int('pd2', 12)
        s.nstg = 32 if kind == 1 else 72
        s.ntn = 36 if kind == 1 else 32
        s.WPITCH = 9216 if kind == 1 else 4096
        s.WTEST = opt_int('wp%d' % kind, 0)
        if s.WTEST: s.WPITCH = s.WTEST if s.WTEST > 0 else s.TW * 2
        s.ROWB = s.TW * 2
        s.WSLOT = 64 * s.ROWB
        s.ACT0 = s.NS * s.WSLOT
        s.HT0 = s.ACT0 + s.NS * ASLOT
        s.LDS = s.HT0 + (96 * s.ROWB if kind == 2 else 0)
        s.HTOV = s.LDS > 163840
        if s.HTOV:
            s.HT0 = s.ACT0
            s.LDS = s.ACT0 + s.NS * ASLOT
        s.LDS += 64
        s.NWG = 6 * s.ntn
        s.per_xcd = s.NWG // 8
        s.ACTBASE = WS_HN if kind == 1 else WS_G
        s.NWP = s.WSLOT // 4096
        s.PPS = (0 if 'noW' in OPT else s.NWP) + (0 if 'noA' in OPT else 3)

def gen_gemm(a, kind, name):
    C = GC(kind)
    NS, TW, NJ, nstg, WPITCH, ROWB, WSLOT, ACT0, HT0, NWG = C.NS, C.TW, C.NJ, C.nstg, C.WPITCH, C.ROWB, C.WSLOT, C.ACT0, C.HT0, C.NWG
    kernel_head(a, name)
    P = name.upper()[:2]
    END = f"{P}_END"; PROD = f"{P}_PROD"; PREF = f"{P}_PREF"
    kst_begin(a)
    NG = NWG + PF[3 + kind].nwg
    a(f"s_cmp_ge_u32 s2, {NG}")
    a(f"s_cbranch_scc1 {END}")
    if not DYN:
        a(f"s_cmp_ge_u32 s2, {NWG}")
        a(f"s_cbranch_scc1 {PREF}")
    a("s_load_dwordx2 s[6:7], s[0:1], 112")
    a(f"s_load_dwordx4 s[16:19], s[0:1], {64 if kind == 1 else 80}")
    a("s_load_dwordx2 s[20:21], s[0:1], 96")
    a("v_lshrrev_b32 v2, 6, v0")
    a("v_readfirstlane_b32 s27, v2")
    if DYN:
        a("s_waitcnt lgkmcnt(0)")
        dyn_assign(a, 2 + kind, NG // 8, C.LDS - 64, 27)
        a(f"s_cmp_ge_u32 s2, {NWG}")
        a(f"s_cbranch_scc1 {PREF}")
    a("s_and_b32 s22, s2, 7")
    a("s_lshr_b32 s23, s2, 3")
    if ('map%d' % kind) in OPT:
        a("s_mul_i32 s4, s23, 171")
        a("s_lshr_b32 s4, s4, 9")
        a("s_mul_i32 s5, s4, 3")
        a("s_sub_u32 s5, s23, s5")
        a("s_and_b32 s24, s22, 1")
        a("s_mul_i32 s24, s24, 3")
        a("s_add_u32 s5, s5, s24")
        a("s_lshr_b32 s24, s22, 1")
        a(f"s_mul_i32 s24, s24, {C.ntn // 4}")
        a("s_add_u32 s4, s4, s24")
    else:
        a(f"s_mul_i32 s3, s22, {C.per_xcd}")
        a("s_mul_i32 s24, s3, 171")
        a("s_lshr_b32 s24, s24, 10")
        a("s_add_u32 s3, s3, s23")
        a("s_mul_i32 s4, s3, 171")
        a("s_lshr_b32 s4, s4, 10")
        a("s_mul_i32 s5, s4, 6")
        a("s_sub_u32 s5, s3, s5")
    a("v_and_b32 v1, 63, v0")
    a("v_lshrrev_b32 v2, 6, v0")
    a("v_readfirstlane_b32 s27, v2")
    a("v_lshrrev_b32 v3, 4, v1")
    a("s_waitcnt lgkmcnt(0)")
    if C.WTEST:
        a("s_add_u32 s14, s6, 0x4000000"); a("s_addc_u32 s15, s7, 0")
        srd(a, 8, 14, 15, 0x4000000)
    else:
        srd(a, 8, 16, 17, 2048 * 4608 * 2)
    srd(a, 12, 6, 7, WS_END)
    a("s_cmp_ge_u32 s27, 4")
    a(f"s_cbranch_scc1 {PROD}")
    assert nstg % NS == 0
    nloop = nstg // NS - 1

    a("s_lshr_b32 s28, s27, 1")
    a("s_and_b32 s29, s27, 1")
    a("v_bfe_u32 v8, v1, 2, 2")
    a("v_and_b32 v9, 3, v1")
    if kind == 1:
        a("v_and_b32 v10, 1, v3")
        a("v_lshl_add_u32 v10, v10, 2, v8")
        a("v_lshl_add_u32 v11, v3, 3, v8")
        HOFF = 4 * ROWB
    else:
        a("v_lshl_add_u32 v11, v3, 2, v8")
        a("v_bfe_u32 v10, v11, 1, 2")
        HOFF = 16 * ROWB
    a(f"s_mul_i32 s30, s28, {NJ}")
    a("v_xor_b32 v10, s30, v10")
    a(f"s_movk_i32 s30, {ROWB}")
    a("v_mul_lo_u32 v11, v11, s30")
    a("v_lshl_add_u32 v11, v9, 3, v11")
    for jj in range(NJ):
        a(f"v_xor_b32 v12, {jj}, v10")
        a(f"v_lshl_add_u32 v{4+jj}, v12, 5, v11")
    a("s_mul_i32 s30, s29, 3072")
    a(f"s_add_u32 s30, s30, {ACT0}")
    a("v_lshlrev_b32 v8, 4, v1")
    a("v_add_u32 v8, s30, v8")
    a(f"v_add_u32 v9, {3*ASLOT}, v8")
    srd(a, 16, 18, 19, (4608 if kind == 1 else 2048) * 2)
    a(f"s_mul_i32 s30, s4, {TW*2}")
    a(f"s_mul_i32 s31, s28, {TW}")
    a("s_add_u32 s30, s30, s31")
    if kind == 1:
        a("v_lshlrev_b32 v10, 3, v3")
        for jj in range(NJ):
            a(f"buffer_load_dwordx2 v[{16+2*jj}:{17+2*jj}], v10, s[16:19], s30 offen offset:{32*jj}")
    else:
        a("v_and_b32 v10, 15, v1")
        a("v_lshlrev_b32 v10, 1, v10")
        for jj in range(NJ):
            a(f"buffer_load_ushort v{16+jj}, v10, s[16:19], s30 offen offset:{32*jj}")
    ACC = 160 if kind == 1 else 120
    SETSZ = 2 * (4 * NJ + 12)
    FA = [32, 32 + SETSZ]
    AO = 4 * NJ
    assert FA[1] + SETSZ <= ACC
    for r in range(12 * NJ): a(f"v_mov_b32 v{ACC+r}, 0")

    def reads(slot, st):
        out = []
        for kb in range(2):
            base = FA[st] + kb * (SETSZ // 2)
            def wr(jj):
                return [f"ds_read_b64_tr_b16 v[{base+4*jj+2*h}:{base+4*jj+2*h+1}], v{4+jj} offset:{slot*WSLOT + kb*32*ROWB + h*HOFF}" for h in range(2)]
            def ar(dd):
                va, so = (8, slot) if slot < 3 else (9, slot - 3)
                return [f"ds_read_b128 v[{base+AO+4*dd}:{base+AO+4*dd+3}], v{va} offset:{so*ASLOT + kb*6144 + dd*1024}"]
            out += wr(0) + ar(0) + ar(1) + ar(2)
            for jj in range(1, NJ): out += wr(jj)
        return out
    def mfmas(st):
        out = []
        for kb in range(2):
            base = FA[st] + kb * (SETSZ // 2)
            for jj in range(NJ):
                for dd in range(3):
                    acc = ACC + 4 * (jj * 3 + dd)
                    wf_ = f"v[{base+4*jj}:{base+4*jj+3}]"; af_ = f"v[{base+AO+4*dd}:{base+AO+4*dd+3}]"
                    if kind == 1:
                        out.append(f"v_mfma_f32_16x16x32_bf16 v[{acc}:{acc+3}], {wf_}, {af_}, v[{acc}:{acc+3}]")
                    else:
                        out.append(f"v_mfma_f32_16x16x32_bf16 v[{acc}:{acc+3}], {af_}, {wf_}, v[{acc}:{acc+3}]")
        return out
    NPRE = opt_int('npre1', 4) if kind == 1 else opt_int('npre2', 3)
    NRD = len(reads(0, 0))
    need = 5 + (2 if NPRE > 3 else 0) + (2 if NPRE > 6 else 0)
    def stage(slot, st, last):
        m = mfmas(st)
        if 'nomfma' in OPT: m = []
        a(f"s_waitcnt lgkmcnt({min(15, NRD - need)})")
        for ins in m[:NPRE]: a(ins)
        a("s_waitcnt lgkmcnt(0)")
        if last:
            for ins in m[NPRE:]: a(ins)
            return
        a("s_barrier")
        rd = reads((slot + 1) % NS, 1 - st)
        if 'nords' in OPT: rd = []
        rest = m[NPRE:]
        ng = max(1, len(rest) - 1)
        extra = max(0, len(rd) - ng)
        for i, ins in enumerate(rest):
            a(ins)
            n = 1 + (1 if i < extra else 0)
            if i == len(rest) - 1: n = len(rd)
            for _ in range(n):
                if rd: a(rd.pop(0))
        for r_ in rd: a(r_)
    a("s_barrier")
    if 'clk' in OPT:
        a("s_memtime s[64:65]"); a("s_memrealtime s[66:67]")
    for r in reads(0, 0): a(r)
    assert NS % 2 == 0
    a(f"s_movk_i32 s31, {nloop}")
    a.label(f"{P}_CLOOP")
    for s in range(NS): stage(s, s % 2, False)
    a("s_sub_u32 s31, s31, 1")
    a("s_cmp_lg_u32 s31, 0")
    a(f"s_cbranch_scc1 {P}_CLOOP")
    for s in range(NS): stage(s, s % 2, s == NS - 1)
    if 'clk' in OPT:
        a("s_memtime s[68:69]"); a("s_memrealtime s[70:71]")
        a("s_waitcnt lgkmcnt(0)")
        a("s_sub_u32 s68, s68, s64")
        a("s_sub_u32 s70, s70, s66")
        a("v_mov_b32 v10, s68"); a("v_mov_b32 v11, s70"); a("v_mov_b32 v12, s66"); a("v_mov_b32 v13, 0")
        a("s_lshl_b32 s72, s2, 6")
        a("s_lshl_b32 s73, s27, 4")
        a("s_add_u32 s72, s72, s73")
        a(f"s_add_u32 s72, s72, {0x2900000 + (0 if kind == 1 else 0x10000)}")
        srd(a, 76, 6, 7, 0x4000000)
        a("v_mov_b32 v14, 0")
        a("buffer_store_dwordx4 v[10:13], v14, s[76:79], s72 offen")

    if kind == 1:
        a("s_waitcnt vmcnt(0)")
        for jj in range(4):
            a(f"v_lshlrev_b32 v{96+4*jj}, 16, v{16+2*jj}")
            a(f"v_and_b32 v{97+4*jj}, 0xffff0000, v{16+2*jj}")
            a(f"v_lshlrev_b32 v{98+4*jj}, 16, v{17+2*jj}")
            a(f"v_and_b32 v{99+4*jj}, 0xffff0000, v{17+2*jj}")
        c0 = -2.0 * math.sqrt(2.0 / math.pi) * 1.4426950408889634
        c1 = c0 * 0.044715
        a(f"s_mov_b32 s34, {fhex(c1)}"); a(f"s_mov_b32 s35, {fhex(c1)}")
        a(f"s_mov_b32 s36, {fhex(1.0)}"); a(f"s_mov_b32 s37, {fhex(1.0)}")
        a(f"v_mov_b32 v30, {fhex(c0)}"); a(f"v_mov_b32 v31, {fhex(c0)}")
        a("s_lshl_b32 s39, s4, 1")
        a("s_add_u32 s38, s39, s28")
        a("s_mul_i32 s38, s38, 6")
        a("s_add_u32 s38, s38, s5")
        a(f"s_mul_i32 s38, s38, {2*ABLK}")
        a("s_lshl_b32 s39, s29, 9")
        a("s_add_u32 s38, s38, s39")
        a(f"s_add_u32 s38, s38, {WS_G}")
        a("v_lshrrev_b32 v9, 3, v1")
        a("v_lshlrev_b32 v9, 10, v9")
        a("v_and_b32 v10, 7, v1")
        a("v_lshl_add_u32 v9, v10, 4, v9")
        a(f"s_add_u32 s39, s38, {ABLK}")
        for kb in range(2):
            for dd in range(3):
                T = 32
                O = 112 + 4 * ((kb * 3 + dd) % 2)
                for t in range(2):
                    jj = 2 * kb + t
                    acc = ACC + 4 * (jj * 3 + dd)
                    for p in range(2):
                        x = T + 8 * t + 4 * p
                        a(f"v_cvt_pk_bf16_f32 v{x+2}, v{acc+2*p}, v{acc+2*p+1}")
                        a(f"v_lshlrev_b32 v{x}, 16, v{x+2}")
                        a(f"v_and_b32 v{x+1}, 0xffff0000, v{x+2}")
                        a(f"v_pk_add_f32 v[{x}:{x+1}], v[{x}:{x+1}], v[{96+4*jj+2*p}:{97+4*jj+2*p}]")
                        a(f"v_cvt_pk_bf16_f32 v{x+2}, v{x}, v{x+1}")
                        a(f"v_lshlrev_b32 v{x}, 16, v{x+2}")
                        a(f"v_and_b32 v{x+1}, 0xffff0000, v{x+2}")
                    for p in range(2):
                        x = T + 8 * t + 4 * p
                        a(f"v_pk_mul_f32 v[{x+2}:{x+3}], v[{x}:{x+1}], v[{x}:{x+1}]")
                        a(f"v_pk_fma_f32 v[{x+2}:{x+3}], v[{x+2}:{x+3}], s[34:35], v[30:31]")
                        a(f"v_pk_mul_f32 v[{x+2}:{x+3}], v[{x+2}:{x+3}], v[{x}:{x+1}]")
                    for p in range(2):
                        x = T + 8 * t + 4 * p
                        a(f"v_exp_f32 v{x+2}, v{x+2}")
                        a(f"v_exp_f32 v{x+3}, v{x+3}")
                    for p in range(2):
                        x = T + 8 * t + 4 * p
                        a(f"v_pk_add_f32 v[{x+2}:{x+3}], v[{x+2}:{x+3}], s[36:37]")
                    for p in range(2):
                        x = T + 8 * t + 4 * p
                        a(f"v_rcp_f32 v{x+2}, v{x+2}")
                        a(f"v_rcp_f32 v{x+3}, v{x+3}")
                    for p in range(2):
                        x = T + 8 * t + 4 * p
                        a(f"v_pk_mul_f32 v[{x}:{x+1}], v[{x}:{x+1}], v[{x+2}:{x+3}]")
                        a(f"v_cvt_pk_bf16_f32 v{O+2*t+p}, v{x}, v{x+1}")
                a(f"buffer_store_dwordx4 v[{O}:{O+3}], v9, s[12:15], s{38+kb} offen offset:{128*dd}")
    else:
        a("s_waitcnt vmcnt(0)")
        if C.HTOV: a("s_barrier")
        for jj in range(NJ): a(f"v_lshlrev_b32 v{16+jj}, 16, v{16+jj}")
        a(f"s_mul_i32 s30, s29, {48*ROWB}")
        a(f"s_add_u32 s30, s30, {HT0}")
        for jj in range(NJ): a(f"v_add_u32 v{4+jj}, s30, v{4+jj}")
        for jj in range(NJ):
            for dd in range(3):
                r = 32 + 2 * (jj * 3 + dd)
                a(f"ds_read_b64_tr_b16 v[{r}:{r+1}], v{4+jj} offset:{dd*16*ROWB}")
        srd(a, 16, 20, 21, 2048 * 576 * 2)
        a("v_and_b32 v9, 15, v1")
        a("s_movk_i32 s30, 1152")
        a("v_mul_lo_u32 v9, v9, s30")
        a("v_lshl_add_u32 v9, v3, 3, v9")
        a(f"s_mul_i32 s30, s4, {TW}")
        a(f"s_mul_i32 s31, s28, {TW//2}")
        a("s_add_u32 s30, s30, s31")
        a("s_mul_i32 s30, s30, 1152")
        a("s_mul_i32 s31, s5, 192")
        a("s_add_u32 s30, s30, s31")
        a("s_mul_i32 s31, s29, 96")
        a("s_add_u32 s30, s30, s31")
        a("s_waitcnt lgkmcnt(0)")
        for jj in range(NJ):
            for dd in range(3):
                acc = ACC + 4 * (jj * 3 + dd)
                hr = 32 + 2 * (jj * 3 + dd)
                O = 64 + 2 * ((jj * 3 + dd) % 4)
                for p in range(2):
                    x = 80 + 4 * p
                    a(f"v_cvt_pk_bf16_f32 v{x+2}, v{acc+2*p}, v{acc+2*p+1}")
                    a(f"v_lshlrev_b32 v{x}, 16, v{x+2}")
                    a(f"v_and_b32 v{x+1}, 0xffff0000, v{x+2}")
                    a(f"v_add_f32 v{x}, v{x}, v{16+jj}")
                    a(f"v_add_f32 v{x+1}, v{x+1}, v{16+jj}")
                    a(f"v_cvt_pk_bf16_f32 v{x+2}, v{x}, v{x+1}")
                    a(f"v_lshlrev_b32 v{x}, 16, v{x+2}")
                    a(f"v_and_b32 v{x+1}, 0xffff0000, v{x+2}")
                    a(f"v_lshlrev_b32 v{x+2}, 16, v{hr+p}")
                    a(f"v_and_b32 v{x+3}, 0xffff0000, v{hr+p}")
                    a(f"v_add_f32 v{x}, v{x}, v{x+2}")
                    a(f"v_add_f32 v{x+1}, v{x+1}, v{x+3}")
                    a(f"v_cvt_pk_bf16_f32 v{O+p}, v{x}, v{x+1}")
                a(f"buffer_store_dwordx2 v[{O}:{O+1}], v9, s[16:19], s30 offen offset:{32*dd}")
            if jj < NJ - 1: a(f"s_add_u32 s30, s30, {16*1152}")
    a(f"s_branch {END}")

    a.label(PROD)
    a("s_sub_u32 s28, s27, 4")
    CPY = 'nocopy' not in OPT and not C.WTEST
    CPITCH = W1C_PITCH if kind == 1 else W2C_PITCH
    a(f"s_movk_i32 s30, {WPITCH}")
    a(f"s_mul_i32 s32, s4, {ROWB if C.WTEST >= 0 else nstg * WSLOT}")
    if CPY:
        a(f"s_and_b32 s31, s4, {3 if kind == 1 else 7}")
        a(f"s_cmp_lg_u32 s31, {1 if kind == 1 else 3}")
        a(f"s_cbranch_scc1 {P}_NOCP")
        a(f"s_movk_i32 s30, {CPITCH}")
        a(f"s_lshr_b32 s32, s4, {2 if kind == 1 else 3}")
        a(f"s_lshl_b32 s32, s32, {9 if kind == 1 else 8}")
        a(f"s_add_u32 s32, s32, {WS_W1C if kind == 1 else WS_W2C}")
        srd(a, 8, 6, 7, WS_END)
        a.label(f"{P}_NOCP")
    a("s_mov_b32 s56, s30")
    a("s_lshl_b32 s57, s30, 6")
    if kind == 1:
        a("v_and_b32 v4, 15, v1")
        a("v_lshrrev_b32 v5, 1, v4")
        a("v_and_b32 v4, 1, v4")
        a("s_lshl_b32 s29, s28, 4")
        a("v_add_u32 v6, s29, v3")
        a("v_mul_lo_u32 v6, v6, s30")
        a("v_lshl_add_u32 v6, v4, 4, v6")
        for q in range(4):
            hi = (q >> 1)
            a(f"v_or_b32 v7, {hi << 2}, v3")
            a("v_xor_b32 v7, v7, v5")
            a(f"v_lshl_add_u32 v{10+q}, v7, 5, v6")
            if q:
                a(f"s_mul_i32 s31, s56, {4*q}")
                a(f"s_sub_u32 s31, s31, {1024*q}")
                a(f"v_add_u32 v{10+q}, s31, v{10+q}")
    else:
        a("v_bfe_u32 v5, v1, 1, 2")
        a("v_and_b32 v4, 1, v1")
        a("v_lshrrev_b32 v6, 3, v1")
        a("s_lshl_b32 s29, s28, 4")
        a("v_add_u32 v6, s29, v6")
        a("v_mul_lo_u32 v6, v6, s30")
        a("v_lshl_add_u32 v6, v4, 4, v6")
        a("v_xor_b32 v7, v3, v5")
        a("v_lshl_add_u32 v10, v7, 5, v6")
        a("s_lshl_b32 s31, s56, 3")
        a("s_sub_u32 s31, s31, 1024")
        a("v_add_u32 v11, s31, v10")
    a("v_lshrrev_b32 v16, 3, v1")
    a("v_lshlrev_b32 v16, 10, v16")
    a("v_and_b32 v17, 7, v1")
    a("v_lshl_add_u32 v16, v17, 4, v16")
    a("s_lshr_b32 s30, s28, 1")
    a("s_lshl_b32 s30, s30, 13")
    a("s_and_b32 s31, s28, 1")
    a("s_lshl_b32 s31, s31, 9")
    a("s_add_u32 s30, s30, s31")
    for q in range(3):
        a(f"s_add_u32 s31, s30, {2048 - 896*q}")
        a(f"v_add_u32 v{17+q}, s31, v16")
    a(f"s_mul_i32 s33, s5, {2*ABLK}")
    a(f"s_add_u32 s33, s33, {C.ACTBASE - 2048 + opt_int('ashift', 0)}")
    ROT = ('rot' in OPT) or (('rot%d' % kind) in OPT)
    if ROT:
        RS = nstg // 8
        a("s_and_b32 s58, s2, 7")
        a(f"s_mul_i32 s58, s58, {RS}")
        a("s_mul_i32 s59, s58, s57")
        a("s_add_u32 s32, s32, s59")
        a(f"s_mul_i32 s59, s58, {12*ABLK}")
        a("s_add_u32 s33, s33, s59")
        a(f"s_sub_u32 s58, {nstg}, s58")
        a(f"s_mul_i32 s63, s57, {nstg}")
    if opt_int('wshift', 0): a(f"s_add_u32 s32, s32, {opt_int('wshift', 0)}")
    if opt_int('wxor', 0): a(f"s_xor_b32 s32, s32, {opt_int('wxor', 0)}")
    for s in range(NS):
        a(f"s_mul_i32 s30, s28, {C.NWP*1024}")
        a(f"s_add_u32 s{40+s}, s30, {s*WSLOT}")
        a("s_mul_i32 s30, s28, 3072")
        a(f"s_add_u32 s{48+s}, s30, {ACT0 + s*ASLOT}")
    if kind == 2:
        a("s_mul_i32 s29, s28, 24")
        a("v_lshrrev_b32 v6, 3, v1")
        a("v_add_u32 v6, s29, v6")
        a("v_lshlrev_b32 v15, 12, v6")
        a("v_lshl_add_u32 v15, v4, 4, v15")
        a("v_lshl_add_u32 v15, v7, 5, v15")
        a("s_mul_i32 s30, s5, 96*4096")
        a(f"s_mul_i32 s31, s4, {ROWB}")
        a("s_add_u32 s30, s30, s31")
        a(f"s_add_u32 s30, s30, {WS_HT}")
        a("s_mul_i32 s31, s28, 3072")
        a(f"s_add_u32 s31, s31, {HT0}")
        a("s_mov_b32 s36, s30"); a("s_mov_b32 s37, s31")
        def ht_issue():
            for i in range(3):
                a(f"s_add_u32 s34, s37, {1024*i}")
                a("s_mov_b32 m0, s34")
                a(f"s_add_u32 s35, s36, {i*8*4096}")
                a("buffer_load_dwordx4 v15, s[12:15], s35 offen lds")
        if not C.HTOV: ht_issue()
    AV = [17, 18, 19]
    def issue(slot):
        a(f"s_mov_b32 m0, s{40+slot}")
        for q in range(0 if 'noW' in OPT else C.NWP):
            a(f"buffer_load_dwordx4 v{10+q}, s[8:11], s32 offen offset:{1024*q} lds")
        a(f"s_mov_b32 m0, s{48+slot}")
        for q in range(0 if 'noA' in OPT else 3):
            a(f"buffer_load_dwordx4 v{AV[q]}, s[12:15], s33 offen offset:{1024*q} lds")
        if 'hot' not in OPT:
            a("s_add_u32 s32, s32, s57")
            a(f"s_add_u32 s33, s33, {12*ABLK}")
            if ROT:
                a("s_sub_u32 s58, s58, 1")
                a("s_cmp_eq_u32 s58, 0")
                a("s_cselect_b32 s59, s63, 0")
                a(f"s_cselect_b32 s64, {nstg*12*ABLK}, 0")
                a("s_sub_u32 s32, s32, s59")
                a("s_sub_u32 s33, s33, s64")
    def stamp():
        if 'stamp' not in OPT: return
        a("s_memrealtime s[60:61]")
        a("s_waitcnt lgkmcnt(0)")
        a("v_mov_b32 v22, s60")
        a("v_cmp_eq_u32 vcc, s62, v1")
        a("v_cndmask_b32 v20, v20, v22, vcc")
        a("s_add_u32 s62, s62, 1")
        a("s_and_b32 s62, s62, 63")
    if 'stamp' in OPT:
        a("s_mov_b32 s62, 0"); a("v_mov_b32 v20, 0")
    PPS = C.PPS
    stamp()
    for s in range(NS): issue(s)
    stamp()
    a(f"s_waitcnt vmcnt({(NS-1)*PPS})")
    a("s_barrier")
    stamp()
    a(f"s_movk_i32 s31, {nloop}")
    a.label(f"{P}_PLOOP")
    for s in range(NS):
        a(f"s_waitcnt vmcnt({(NS-2)*PPS})")
        a("s_barrier")
        if kind == 1 or s % 2 == 0: stamp()
        issue(s)
    a("s_sub_u32 s31, s31, 1")
    a("s_cmp_lg_u32 s31, 0")
    a(f"s_cbranch_scc1 {P}_PLOOP")
    HOV = kind == 2 and C.HTOV
    for s in range(NS - 1):
        a(f"s_waitcnt vmcnt({(NS-2-s)*PPS + (3 if (HOV and s > 0) else 0)})")
        a("s_barrier")
        stamp()
        if HOV and s == 0: ht_issue()
    if HOV:
        a("s_waitcnt vmcnt(0)")
        a("s_barrier")
    if 'stamp' in OPT:
        a("s_cmp_lg_u32 s28, 0")
        a(f"s_cbranch_scc1 {END}")
        a("s_lshl_b32 s30, s2, 8")
        a(f"s_add_u32 s30, s30, {0x2400000 + (0 if kind == 1 else 0x10000)}")
        a("v_lshlrev_b32 v21, 2, v1")
        srd(a, 12, 6, 7, 0x4000000)
        a("buffer_store_dword v20, v21, s[12:15], s30 offen")
    a(f"s_branch {END}")
    a.label(PREF)
    gen_prefetch(a, 3 + kind, NWG, END)
    a.label(END)
    kst_end(a, 2 + kind, NWG + PF[3 + kind].nwg)
    a("s_endpgm")
    return name, (208 if kind == 1 else 144), C.LDS

def gen_k4(a): return gen_gemm(a, 1, "k4_kernel")
def gen_k5(a): return gen_gemm(a, 2, "k5_kernel")
```

```python
from gen import *
OPTS = os.environ.get('GOPT', '').split(',')
CS = 4160
UPAD = 8 * CS
UOFF = UPAD + 512
RES = UOFF + 4096
PRM = RES + 4128 + 32
PMAX = PRM + 2048
K12_LDS = PMAX + 64
KC = 12288

def gen_k12(a):
    name = "k1_kernel"
    kernel_head(a, name)
    kst_begin(a)
    a("s_cmp_ge_u32 s2, 640")
    a("s_cbranch_scc1 K1_PF")
    a("s_load_dwordx2 s[4:5], s[0:1], 0")
    a("s_load_dwordx2 s[6:7], s[0:1], 112")
    a("s_load_dwordx8 s[16:23], s[0:1], 8")
    a("s_load_dwordx4 s[52:55], s[0:1], 40")
    a("s_load_dwordx2 s[56:57], s[0:1], 104")
    a("s_cmp_ge_u32 s2, 64")
    a("s_cbranch_scc1 K1_KGEN")
    KT = 'k1st' in OPTS
    def st(i):
        if KT: a(f"s_memrealtime s[{60+2*i}:{61+2*i}]")
    def st_flush(sw):
        a("s_waitcnt lgkmcnt(0)")
        srd(a, 76, 6, 7, 0x4000000)
        for i in range(7): a(f"v_mov_b32 v{80+i}, s{60+2*i}")
        a("v_mov_b32 v87, s94")
        a("s_lshl_b32 s75, s2, 7")
        a(f"s_lshl_b32 s74, s{sw}, 5")
        a("s_add_u32 s75, s75, s74")
        a("s_add_u32 s75, s75, 0x2a00000")
        a("v_mov_b32 v78, 0")
        a("buffer_store_dwordx4 v[80:83], v78, s[76:79], s75 offen")
        a("buffer_store_dwordx4 v[84:87], v78, s[76:79], s75 offen offset:16")
    a("s_waitcnt lgkmcnt(0)")
    st(0)
    srd(a, 8, 4, 5, L * D * 2)
    srd(a, 12, 6, 7, WS_R)
    PITCH = 1216
    a("v_lshrrev_b32 v1, 3, v0")
    a("v_and_b32 v2, 7, v0")
    a("s_lshl_b32 s3, s2, 5")
    a("v_add_u32 v3, s3, v1")
    a("s_movk_i32 s26, 1152")
    a("v_mul_lo_u32 v3, v3, s26")
    a("v_lshl_add_u32 v3, v2, 4, v3")
    for i in range(9):
        a(f"buffer_load_dwordx4 v[{10+4*i}:{13+4*i}], v3, s[8:11], 0 offen offset:{128*i}")
    a(f"s_movk_i32 s26, {PITCH}")
    a("v_mul_lo_u32 v4, v1, s26")
    a("v_lshl_add_u32 v4, v2, 4, v4")
    a("v_and_b32 v5, 63, v0")
    a("v_lshrrev_b32 v6, 6, v0")
    a("v_readfirstlane_b32 s27, v6")
    a("v_bfe_u32 v7, v5, 2, 2")
    a("v_mul_lo_u32 v7, v7, s26")
    a("v_lshrrev_b32 v8, 4, v5")
    a("v_lshl_add_u32 v7, v8, 5, v7")
    a("v_and_b32 v8, 3, v5")
    a("v_lshl_add_u32 v7, v8, 3, v7")
    a("s_lshl_b32 s28, s2, 6")
    a("v_lshlrev_b32 v9, 12, v5")
    a("v_add_u32 v9, s28, v9")
    a("s_waitcnt vmcnt(0)")
    st(1)
    for i in range(9):
        a(f"ds_write_b128 v4, v[{10+4*i}:{13+4*i}] offset:{128*i}")
    for i in range(36):
        a(f"v_lshlrev_b32 v{50+2*i}, 16, v{10+i}")
        a(f"v_and_b32 v{51+2*i}, 0xffff0000, v{10+i}")
    a("v_add_f32 v122, v50, v51")
    a("v_add_f32 v123, v52, v53")
    a("v_add_f32 v124, v54, v55")
    a("v_add_f32 v125, v56, v57")
    for i in range(2, 18):
        for q in range(4):
            a(f"v_add_f32 v{122+q}, v{122+q}, v{50+4*i+q}")
    a("v_add_f32 v122, v122, v123")
    a("v_add_f32 v124, v124, v125")
    a("v_add_f32 v122, v122, v124")
    def red8(r):
        a(f"v_add_f32_dpp v{r}, v{r}, v{r} quad_perm:[1,0,3,2] row_mask:0xf bank_mask:0xf")
        a(f"v_add_f32_dpp v{r}, v{r}, v{r} quad_perm:[2,3,0,1] row_mask:0xf bank_mask:0xf")
        a(f"v_add_f32_dpp v{r}, v{r}, v{r} row_half_mirror row_mask:0xf bank_mask:0xf")
    red8(122)
    a(f"s_mov_b32 s26, {fhex(1.0/576)}")
    a("v_mul_f32 v126, s26, v122")
    a("s_waitcnt lgkmcnt(0)")
    a("s_barrier")
    a("v_bfe_u32 v128, v5, 2, 2")
    a("v_lshlrev_b32 v129, 6, v5")
    a("v_lshrrev_b32 v146, 2, v5")
    a("v_lshlrev_b32 v146, 6, v146")
    a("v_and_b32 v147, 3, v5")
    a("v_lshrrev_b32 v148, 4, v5")
    a("v_xor_b32 v147, v147, v148")
    a("v_lshl_add_u32 v146, v147, 4, v146")
    a("v_lshrrev_b32 v147, 2, v5")
    a("v_lshlrev_b32 v147, 12, v147")
    a("v_and_b32 v148, 3, v5")
    a("v_lshl_add_u32 v147, v148, 4, v147")
    a("v_add_u32 v147, s28, v147")
    def transpose_store(ws_off, regs):
        for u in range(3):
            lab = a.newlabel("K1_SKIP")
            if u == 2:
                a("s_cmp_lg_u32 s27, 0")
                a(f"s_cbranch_scc1 {lab}")
            a(f"s_lshl_b32 s29, s27, 7")
            a(f"s_add_u32 s29, s29, {u*4*128}")
            a(f"v_add_u32 v127, s29, v7")
            for Q in range(8):
                a(f"ds_read_b64_tr_b16 v[{regs[u]+2*Q}:{regs[u]+2*Q+1}], v127 offset:{Q*4*PITCH}")
            if u == 2: a.label(lab)
        a("s_waitcnt lgkmcnt(0)")
        a("s_barrier")
        for u in range(3):
            lab = a.newlabel("K1_SKIP")
            if u == 2:
                a("s_cmp_lg_u32 s27, 0")
                a(f"s_cbranch_scc1 {lab}")
            R = regs[u]
            a(f"s_lshl_b32 s29, s27, 12")
            a(f"s_add_u32 s29, s29, {u*4*4096}")
            for q in range(4):
                a(f"v_xor_b32 v127, {q}, v128")
                a(f"v_lshl_add_u32 v127, v127, 4, v129")
                a(f"v_add_u32 v127, s29, v127")
                a(f"ds_write_b128 v127, v[{R+4*q}:{R+4*q+3}]")
            a(f"v_add_u32 v127, s29, v146")
            a("s_waitcnt lgkmcnt(0)")
            for k in range(4):
                a(f"ds_read_b128 v[{R+4*k}:{R+4*k+3}], v127 offset:{1024*k}")
            a(f"s_lshl_b32 s29, s27, 18")
            a(f"s_add_u32 s29, s29, {ws_off + u*4*64*4096}")
            for k in range(4):
                a(f"s_waitcnt lgkmcnt({3-k})")
                a(f"buffer_store_dwordx4 v[{R+4*k}:{R+4*k+3}], v147, s[12:15], s29 offen sc1")
                if k < 3: a(f"s_add_u32 s29, s29, {16*4096}")
            if u == 2: a.label(lab)
    st(2)
    transpose_store(WS_XT, [10, 26, 130])
    st(3)
    a("v_sub_f32 v127, v50, v126"); a("v_mul_f32 v122, v127, v127")
    a("v_sub_f32 v127, v51, v126"); a("v_mul_f32 v123, v127, v127")
    a("v_sub_f32 v127, v52, v126"); a("v_mul_f32 v124, v127, v127")
    a("v_sub_f32 v127, v53, v126"); a("v_mul_f32 v125, v127, v127")
    for i in range(4, 72):
        t = 150 + (i % 4)
        a(f"v_sub_f32 v{t}, v{50+i}, v126")
        a(f"v_fmac_f32 v{122+(i%4)}, v{t}, v{t}")
    a("v_add_f32 v122, v122, v123")
    a("v_add_f32 v124, v124, v125")
    a("v_add_f32 v122, v122, v124")
    red8(122)
    a("v_mul_f32 v122, s26, v122")
    bf16_round(a, 126, 126)
    bf16_round(a, 122, 122)
    a(f"v_add_f32 v122, {fhex(1e-5)}, v122")
    bf16_round(a, 122, 122)
    a("v_sqrt_f32 v122, v122")
    bf16_round(a, 122, 122)
    a("v_rcp_f32 v122, v122")
    for i in range(36):
        x0, x1 = 50 + 2*i, 51 + 2*i
        a(f"v_sub_f32 v{x0}, v{x0}, v126")
        a(f"v_sub_f32 v{x1}, v{x1}, v126")
        a(f"v_cvt_pk_bf16_f32 v150, v{x0}, v{x1}")
        a(f"v_lshlrev_b32 v{x0}, 16, v150")
        a(f"v_and_b32 v{x1}, 0xffff0000, v150")
        a(f"v_mul_f32 v{x0}, v{x0}, v122")
        a(f"v_mul_f32 v{x1}, v{x1}, v122")
        a(f"v_cvt_pk_bf16_f32 v{10+i}, v{x0}, v{x1}")
    a("s_barrier")
    for i in range(9):
        a(f"ds_write_b128 v4, v[{10+4*i}:{13+4*i}] offset:{128*i}")
    a("s_waitcnt lgkmcnt(0)")
    a("s_barrier")
    st(4)
    transpose_store(WS_UT, [50, 66, 82])
    st(5)
    a("s_waitcnt vmcnt(0)")
    st(6)
    a("s_barrier")
    if KT: st_flush(27)
    a("s_cmp_lg_u32 s27, 0")
    a("s_cbranch_scc1 K1_END")
    srd(a, 28, 56, 57, 256)
    a("s_lshl_b32 s32, s2, 2")
    a("v_mov_b32 v1, 0")
    a("v_mov_b32 v2, 1")
    a("s_mov_b64 exec, 1")
    a("buffer_store_dword v2, v1, s[28:31], s32 offen sc1")
    a("s_branch K1_END")

    a.label("K1_KGEN")
    a("s_sub_u32 s3, s2, 64")
    a("v_and_b32 v1, 63, v0")
    a("v_lshrrev_b32 v2, 6, v0")
    a("v_readfirstlane_b32 s27, v2")
    a("v_lshrrev_b32 v3, 4, v1")
    a("v_and_b32 v4, 15, v1")
    a("v_and_b32 v6, 127, v0")
    a("s_lshl_b32 s28, s3, 8")
    a("v_lshlrev_b32 v5, 1, v6")
    a("v_add_u32 v5, s28, v5")
    a("s_lshl_b32 s44, s3, 1")
    a("v_mov_b32 v7, s44")
    a("s_waitcnt lgkmcnt(0)")
    srd(a, 40, 52, 53, D * 2)
    a("buffer_load_ushort v14, v7, s[40:43], 0 offen")
    srd(a, 8, 16, 17, D * NM * 2)
    a("buffer_load_ushort v10, v5, s[8:11], 0 offen")
    srd(a, 28, 18, 19, D * NM * 2)
    a("buffer_load_ushort v11, v5, s[28:31], 0 offen")
    srd(a, 32, 20, 21, D * NM * 2)
    a("buffer_load_ushort v12, v5, s[32:35], 0 offen")
    srd(a, 36, 22, 23, D * NM * 2)
    a("buffer_load_ushort v13, v5, s[36:39], 0 offen")
    srd(a, 40, 54, 55, D * 2)
    a("buffer_load_ushort v160, v7, s[40:43], 0 offen")
    srd(a, 12, 6, 7, WS_HN)
    srd(a, 48, 56, 57, 256)
    a("v_lshlrev_b32 v27, 3, v4")
    a("v_cvt_f32_u32 v27, v27")
    a("v_and_b32 v28, 7, v4")
    a("v_lshrrev_b32 v29, 3, v4")
    a("v_lshl_add_u32 v28, v29, 7, v28")
    a("v_cvt_f32_u32 v28, v28")
    a("v_lshrrev_b32 v29, 2, v4")
    a("v_lshlrev_b32 v29, 7, v29")
    a("v_and_b32 v30, 3, v4")
    a("v_lshl_add_u32 v29, v30, 1, v29")
    a("v_add_u32 v29, 256, v29")
    a("v_subrev_u32 v30, 8, v4")
    a("v_lshrrev_b32 v30, 1, v30")
    a("v_lshlrev_b32 v30, 7, v30")
    a("v_and_b32 v31, 1, v4")
    a("v_lshl_add_u32 v30, v31, 2, v30")
    a("v_add_u32 v30, 512, v30")
    a("v_cmp_gt_u32 vcc, 8, v4")
    a("v_cndmask_b32 v29, v30, v29, vcc")
    a("v_cvt_f32_u32 v29, v29")
    a("v_lshlrev_b32 v30, 7, v4")
    a("v_add_u32 v30, 1024, v30")
    a("v_cvt_f32_u32 v30, v30")
    a(f"s_mov_b32 s44, {hex(LOG2E)}")
    a(f"s_mov_b32 s45, {fhex(1.4426950408889634 - 1.4426950216293335)}")
    a(f"s_mov_b32 s46, {fhex(0.6931471805599453)}")
    a(f"s_mov_b32 s47, {hex(INV2PI)}")
    a(f"s_mov_b32 s26, {hex(LOG2E | 0x80000000)}")
    a("v_and_b32 v8, 7, v6")
    a("v_lshrrev_b32 v9, 3, v6")
    a("v_lshl_add_u32 v8, v8, 4, v9")
    a("v_lshlrev_b32 v8, 4, v8")
    a("s_lshl_b32 s28, s27, 2")
    a("v_add_u32 v9, s28, v3")
    a("v_lshlrev_b32 v9, 4, v9")
    a("s_cmp_ge_u32 s27, 2")
    a("s_cbranch_scc1 K1_PWAIT")
    a("s_waitcnt vmcnt(1)")
    st(0)
    a("v_lshlrev_b32 v14, 16, v14")
    exp_precise(a, 16, 14, 17, 18, 44, 45, 46)
    a("v_lshlrev_b32 v10, 16, v10")
    exp_precise(a, 19, 10, 20, 21, 44, 45, 46)
    bf16_round(a, 16, 16)
    bf16_round(a, 19, 19)
    a("v_add_f32 v17, v16, v16")
    a("v_mul_f32 v19, v19, v16")
    a("v_mul_f32 v32, s26, v19")
    a("v_lshlrev_b32 v11, 16, v11")
    a("v_mul_f32 v11, v11, v16")
    a("v_mul_f32 v33, s47, v11")
    a("v_lshlrev_b32 v12, 16, v12")
    a("v_mul_f32 v34, v12, v17")
    a("v_lshlrev_b32 v13, 16, v13")
    a("v_mul_f32 v35, v13, v17")
    a(f"ds_write_b128 v8, v[32:35] offset:{PRM}")
    a("v_max_f32 v36, |v34|, |v35|")
    for mode in ("quad_perm:[1,0,3,2]", "quad_perm:[2,3,0,1]", "row_half_mirror", "row_mirror"):
        a(f"v_max_f32_dpp v36, v36, v36 {mode} row_mask:0xf bank_mask:0xf")
    for k, sr in enumerate((24, 25, 58, 59)): a(f"v_readlane_b32 s{sr}, v36, {16*k}")
    a("s_max_u32 s24, s24, s25")
    a("s_max_u32 s58, s58, s59")
    a("s_max_u32 s24, s24, s58")
    a("v_mov_b32 v36, s24")
    a("s_lshl_b32 s25, s27, 2")
    a("v_mov_b32 v37, s25")
    a(f"ds_write_b32 v37, v36 offset:{PMAX}")
    a("s_waitcnt lgkmcnt(0)")
    a.label("K1_PWAIT")
    a("s_barrier")
    st(1)
    PR = 32; FB = 64; TP = 96; ACCK = 128
    for e in range(8):
        a(f"ds_read_b128 v[{PR+4*e}:{PR+4*e+3}], v9 offset:{PRM + 256*e}")
    a("v_mov_b32 v5, 0")
    a(f"ds_read_b64 v[24:25], v5 offset:{PMAX}")
    a("s_waitcnt lgkmcnt(0)")
    a("v_max_f32 v24, v24, v25")
    a("v_frexp_exp_i32_f32 v26, v24")
    a("v_cvt_f32_i32 v31, v26")
    a("v_sub_f32 v31, 0, v31")
    XV = TP + 16
    for tp in range(4):
        for h in range(2):
            ar, ai, cr, ci = (PR + 4 * (2 * tp + h) + k for k in range(4))
            t = lambda T, k: TP + 4 * T + k
            a(f"v_fma_f32 v{t(0,0)}, v{ar}, v27, v31")
            a(f"v_mul_f32 v{t(0,1)}, v{ai}, v27")
            for T in range(3):
                a(f"v_mul_f32 v{t(T+1,0)}, v{ar}, v{28+T}")
                a(f"v_mul_f32 v{t(T+1,1)}, v{ai}, v{28+T}")
            for T in range(4):
                a(f"v_fract_f32 v{t(T,1)}, v{t(T,1)}")
            for T in range(4):
                a(f"v_exp_f32 v{t(T,0)}, v{t(T,0)}")
            for T in range(4):
                a(f"v_cos_f32 v{t(T,2)}, v{t(T,1)}")
                a(f"v_sin_f32 v{t(T,3)}, v{t(T,1)}")
            a(f"v_mul_f32 v{t(0,1)}, v{cr}, v{t(0,0)}")
            a(f"v_mul_f32 v{t(0,0)}, v{ci}, v{t(0,0)}")
            for T in range(3):
                a(f"v_mul_f32 v{XV+4+4*T+h}, v{t(T+1,0)}, v{t(T+1,2)}")
                a(f"v_mul_f32 v{XV+6+4*T+h}, -v{t(T+1,0)}, v{t(T+1,3)}")
            a(f"v_mul_f32 v{XV+0+h}, v{t(0,1)}, v{t(0,2)}")
            a(f"v_mul_f32 v{XV+2+h}, v{t(0,1)}, v{t(0,3)}")
            a(f"v_fma_f32 v{XV+0+h}, -v{t(0,0)}, v{t(0,3)}, v{XV+0+h}")
            a(f"v_fma_f32 v{XV+2+h}, v{t(0,0)}, v{t(0,2)}, v{XV+2+h}")
        for q in range(8):
            a(f"v_cvt_pk_f16_f32 v{FB+4*q+tp}, v{XV+2*q}, v{XV+2*q+1}")
    def fr(q): return f"v[{FB+4*q}:{FB+4*q+3}]"
    for T in range(3):
        acc = f"v[{ACCK+4*T}:{ACCK+4*T+3}]"
        a(f"v_mfma_f32_16x16x32_f16 {acc}, {fr(2+2*T)}, {fr(0)}, 0")
    for T in range(3):
        acc = f"v[{ACCK+4*T}:{ACCK+4*T+3}]"
        a(f"v_mfma_f32_16x16x32_f16 {acc}, {fr(3+2*T)}, {fr(1)}, {acc}")
    st(2)
    a("v_lshlrev_b32 v5, 4, v1")
    a("s_mul_i32 s28, s27, 3072")
    a("v_add_u32 v5, s28, v5")
    for T in range(3):
        a(f"ds_write_b128 v5, v[{ACCK+4*T}:{ACCK+4*T+3}] offset:{1024*T}")
    a("s_waitcnt lgkmcnt(0)")
    a("s_barrier")
    a("s_cmp_eq_u32 s27, 3")
    a("s_cbranch_scc1 K1_KG_POLL")
    a("v_lshlrev_b32 v5, 4, v1")
    a("s_lshl_b32 s28, s27, 10")
    a("v_add_u32 v5, s28, v5")
    for w in range(4):
        a(f"ds_read_b128 v[{80+4*w}:{83+4*w}], v5 offset:{3072*w}")
    a("s_cmp_eq_u32 s27, 1")
    a("s_cbranch_scc1 K1_KG_T1")
    a("s_cmp_eq_u32 s27, 2")
    a("s_cbranch_scc1 K1_KG_T2")
    a("v_and_b32 v100, 1, v3")
    a("v_lshlrev_b32 v100, 2, v100")
    a("v_lshrrev_b32 v101, 1, v3")
    a("v_lshl_add_u32 v100, v101, 7, v100")
    a("v_lshl_add_u32 v100, v4, 3, v100")
    for r in range(1, 4): a(f"v_add_u32 v{100+r}, {r}, v100")
    a("s_branch K1_KG_SC")
    a.label("K1_KG_T1")
    a("v_lshlrev_b32 v104, 6, v3")
    a("v_lshl_add_u32 v104, v4, 2, v104")
    a("v_add_u32 v104, 256, v104")
    a("v_lshlrev_b32 v105, 6, v3")
    a("v_lshl_add_u32 v105, v4, 1, v105")
    a("v_add_u32 v105, 256, v105")
    a("v_cmp_gt_u32 vcc, 2, v3")
    for r in range(4):
        a(f"v_add_u32 v106, {r}, v104")
        a(f"v_add_u32 v107, {32*(r>>1)+(r&1)}, v105")
        a(f"v_cndmask_b32 v{100+r}, v107, v106, vcc")
    a("s_branch K1_KG_SC")
    a.label("K1_KG_T2")
    a("v_lshlrev_b32 v100, 6, v3")
    a("v_add_u32 v100, v4, v100")
    a("v_add_u32 v100, 512, v100")
    for r in range(1, 4): a(f"v_add_u32 v{100+r}, {16*r}, v100")
    a.label("K1_KG_SC")
    a("s_waitcnt lgkmcnt(0)")
    for r in range(4):
        a(f"v_add_f32 v{80+r}, v{80+r}, v{84+r}")
        a(f"v_add_f32 v{88+r}, v{88+r}, v{92+r}")
        a(f"v_add_f32 v{80+r}, v{80+r}, v{88+r}")
        a(f"v_ldexp_f32 v{80+r}, v{80+r}, v26")
        a(f"v_lshlrev_b32 v{100+r}, 2, v{100+r}")
        a(f"ds_write_b32 v{100+r}, v{80+r} offset:{KC}")
    a("s_branch K1_KG_EXP")
    a.label("K1_KG_POLL")
    a("v_mov_b32 v5, 0")
    a(f"ds_write_b32 v5, v5 offset:{KC + 768*4}")
    a("v_lshlrev_b32 v6, 2, v1")
    a.label("K1_POLL")
    a("buffer_load_dword v7, v6, s[48:51], 0 offen sc1")
    a("s_waitcnt vmcnt(0)")
    a("v_cmp_eq_u32 vcc, 0, v7")
    a("s_cmp_eq_u64 vcc, 0")
    a("s_cbranch_scc1 K1_KG_EXP")
    a(f"s_sleep {4}")
    a("s_branch K1_POLL")
    a.label("K1_KG_EXP")
    a("s_waitcnt lgkmcnt(0)")
    a("s_barrier")
    st(3)
    a("v_lshlrev_b32 v5, 4, v0")
    a("s_lshl_b32 s32, s3, 12")
    a(f"s_add_u32 s33, s32, {WS_UT}")
    a("buffer_load_dwordx4 v[16:19], v5, s[12:15], s33 offen sc1")
    a("v_lshlrev_b32 v8, 5, v4")
    a("v_lshl_add_u32 v8, v3, 3, v8")
    a("s_lshl_b32 s34, s27, 10")
    a("s_add_u32 s34, s34, s32")
    a(f"s_add_u32 s35, s34, {WS_XT}")
    a("buffer_load_dwordx2 v[10:11], v8, s[12:15], s35 offen sc1")
    a("buffer_load_dwordx2 v[12:13], v8, s[12:15], s35 offen offset:512 sc1")
    a("v_lshlrev_b32 v9, 3, v0")
    a("v_sub_u32 v9, 2047, v9")
    for e in range(8):
        a(f"v_subrev_u32 v{40+e}, {e}, v9")
        a(f"v_cvt_f32_i32 v{50+e}, v{40+e}")
    for e in range(0, 8, 2):
        a(f"v_cvt_pk_bf16_f32 v{60+e//2}, v{50+e}, v{51+e}")
    for e in range(8):
        src = 60 + e // 2
        if e % 2 == 0: a(f"v_and_b32 v{50+e}, 0xffff, v{src}")
        else: a(f"v_lshrrev_b32 v{50+e}, 16, v{src}")
        a(f"v_subrev_u32 v{50+e}, 17024, v{50+e}")
        a(f"v_min_u32 v66, 127, v{40+e}")
        a(f"v_max_i32 v{50+e}, v{50+e}, v66")
        a(f"v_lshlrev_b32 v{50+e}, 2, v{50+e}")
        a(f"ds_read_b32 v{70+e}, v{50+e} offset:{KC}")
    for r in range(4): a(f"v_mov_b32 v{84+r}, 0")
    a("s_waitcnt lgkmcnt(0)")
    for k in range(4):
        a(f"v_cvt_pk_bf16_f32 v{80+k}, v{70+2*k}, v{71+2*k}")
    a(f"ds_write_b128 v5, v[80:83] offset:{RES}")
    a("v_mov_b32 v6, 0")
    a(f"ds_write_b128 v6, v[84:87] offset:{RES + 4096}")
    if 'dumpR' in OPTS:
        srd(a, 28, 6, 7, WS_HT)
        a("s_mul_i32 s36, s3, %d" % RSTRIDE)
        a(f"s_add_u32 s36, s36, {WS_R}")
        a("buffer_store_dwordx4 v[80:83], v5, s[28:31], s36 offen")
    a("s_waitcnt lgkmcnt(0)")
    a("s_barrier")
    Dv = 40; Ev = 48; Ov = 56; Pv = 64
    a(f"ds_read_b128 v[{Dv}:{Dv+3}], v5 offset:{RES}")
    a(f"ds_read_b128 v[{Dv+4}:{Dv+7}], v5 offset:{RES+16}")
    a("v_lshrrev_b32 v15, 2, v1")
    a(f"s_movk_i32 s37, {CS}")
    a("v_mul_lo_u32 v15, v15, s37")
    a("v_and_b32 v20, 3, v1")
    a("v_lshl_add_u32 v15, v20, 4, v15")
    a("v_add_u32 v15, 4096, v15")
    a("v_subrev_u32 v20, 32, v1")
    a("v_lshlrev_b32 v20, 4, v20")
    a(f"v_add_u32 v20, {UPAD}, v20")
    a("v_cmp_gt_u32 vcc, 32, v1")
    a("v_cndmask_b32 v15, v20, v15, vcc")
    a("ds_write_b128 v15, v[84:87]")
    a("s_waitcnt lgkmcnt(1)")
    for k in range(6): a(f"v_mov_b32 v{Ev+k}, v{Dv+1+k}")
    for k in range(7): a(f"v_alignbit_b32 v{Ov+k}, v{Dv+k+1}, v{Dv+k}, 16")
    for k in range(6): a(f"v_alignbit_b32 v{Pv+k}, v{Dv+k+2}, v{Dv+k+1}, 16")
    src = {7: Dv, 5: Ev, 3: Dv + 2, 1: Ev + 2, 6: Ov, 4: Pv, 2: Ov + 2, 0: Pv + 2}
    for r in range(8):
        a(f"ds_write_b128 v5, v[{src[r]}:{src[r]+3}] offset:{r*CS}")
    a("v_lshlrev_b32 v20, 5, v4")
    a("v_lshl_add_u32 v20, v3, 4, v20")
    a("s_lshl_b32 s37, s27, 6")
    a(f"s_sub_u32 s38, {UOFF-288}, s37")
    a("v_add_u32 v20, s38, v20")
    a("v_and_b32 v21, 7, v4")
    a(f"s_movk_i32 s39, {CS}")
    a("v_mul_lo_u32 v21, v21, s39")
    a("v_lshl_add_u32 v21, v3, 4, v21")
    a("v_lshrrev_b32 v22, 3, v4")
    a("v_lshlrev_b32 v22, 4, v22")
    a("v_sub_u32 v21, v21, v22")
    a("s_sub_u32 s38, 208, s37")
    a("v_add_u32 v21, s38, v21")
    ACC = 128
    for r in range(32): a(f"v_mov_b32 v{ACC+r}, 0")
    a("s_waitcnt vmcnt(2)")
    a(f"ds_write_b128 v5, v[16:19] offset:{UOFF}")
    a("v_lshlrev_b32 v5, 4, v1")
    a("s_waitcnt lgkmcnt(0)")
    a("s_barrier")
    st(4)
    BF = 32
    for z in range(16):
        a(f"ds_read_b128 v[{BF+4*z}:{BF+4*z+3}], v20 offset:{256*z}")
    AF = 96
    for i in range(8):
        a(f"ds_read_b128 v[{AF+4*i}:{AF+4*i+3}], v21 offset:{256*(15-i)}")
    for i in range(16):
        a(f"s_waitcnt lgkmcnt({7 if i < 8 else 15-i})")
        af = AF + 4 * (i % 8)
        for t in range(i >> 1, 8):
            z = 2 * t - i
            if z < -1: continue
            a(f"v_mfma_f32_16x16x32_bf16 v[{ACC+4*t}:{ACC+4*t+3}], v[{af}:{af+3}], v[{BF+4*(z+1)}:{BF+4*(z+1)+3}], v[{ACC+4*t}:{ACC+4*t+3}]")
        if i < 8:
            a(f"ds_read_b128 v[{af}:{af+3}], v21 offset:{256*(15-(i+8))}")
    a("s_barrier")
    a("s_lshl_b32 s37, s27, 13")
    a("v_add_u32 v22, s37, v5")
    for w in range(4):
        lab = a.newlabel("K2_W")
        a(f"s_cmp_eq_u32 s27, {w}")
        a(f"s_cbranch_scc1 {lab}")
        for t in (2*w, 2*w+1):
            a(f"ds_write_b128 v22, v[{ACC+4*t}:{ACC+4*t+3}] offset:{1024*t}")
        a.label(lab)
    for w in range(4):
        lab = a.newlabel("K2_M")
        a(f"s_cmp_lg_u32 s27, {w}")
        a(f"s_cbranch_scc1 {lab}")
        for r in range(8): a(f"v_mov_b32 v{24+r}, v{ACC+8*w+r}")
        a.label(lab)
    a("s_waitcnt lgkmcnt(0)")
    a("s_barrier")
    a("s_lshl_b32 s37, s27, 11")
    a("v_add_u32 v22, s37, v5")
    for k in range(1, 4):
        a(f"s_add_u32 s38, s27, {k}")
        a("s_and_b32 s38, s38, 3")
        a("s_lshl_b32 s38, s38, 13")
        a(f"v_add_u32 v23, s38, v22")
        a(f"ds_read_b128 v[{32+8*(k-1)}:{35+8*(k-1)}], v23")
        a(f"ds_read_b128 v[{36+8*(k-1)}:{39+8*(k-1)}], v23 offset:1024")
    a("s_lshl_b32 s37, s27, 10")
    a(f"s_add_u32 s37, s37, {UOFF}")
    a("v_add_u32 v23, s37, v8")
    a("ds_read_b64 v[56:57], v23")
    a("ds_read_b64 v[58:59], v23 offset:512")
    a("v_lshlrev_b32 v14, 16, v160")
    a("s_waitcnt vmcnt(0) lgkmcnt(0)")
    for r in range(8):
        a(f"v_add_f32 v{24+r}, v{24+r}, v{32+r}")
        a(f"v_add_f32 v{40+r}, v{40+r}, v{48+r}")
        a(f"v_add_f32 v{24+r}, v{24+r}, v{40+r}")
    for tt in range(2):
        y = 24 + 4 * tt; u = 56 + 2 * tt; x = 10 + 2 * tt
        a(f"v_cvt_pk_bf16_f32 v60, v{y}, v{y+1}")
        a(f"v_cvt_pk_bf16_f32 v61, v{y+2}, v{y+3}")
        a(f"v_lshlrev_b32 v62, 16, v{u}")
        a(f"v_and_b32 v63, 0xffff0000, v{u}")
        a(f"v_lshlrev_b32 v64, 16, v{u+1}")
        a(f"v_and_b32 v65, 0xffff0000, v{u+1}")
        for k in range(4): a(f"v_mul_f32 v{62+k}, v{62+k}, v14")
        a(f"v_cvt_pk_bf16_f32 v66, v62, v63")
        a(f"v_cvt_pk_bf16_f32 v67, v64, v65")
        for k in range(2):
            a(f"v_lshlrev_b32 v62, 16, v{60+k}")
            a(f"v_lshlrev_b32 v63, 16, v{66+k}")
            a(f"v_and_b32 v64, 0xffff0000, v{60+k}")
            a(f"v_and_b32 v65, 0xffff0000, v{66+k}")
            a(f"v_add_f32 v62, v62, v63")
            a(f"v_add_f32 v64, v64, v65")
            a(f"v_cvt_pk_bf16_f32 v{68+k}, v62, v64")
            a(f"v_lshlrev_b32 v62, 16, v{68+k}")
            a(f"v_lshlrev_b32 v63, 16, v{x+k}")
            a(f"v_and_b32 v64, 0xffff0000, v{68+k}")
            a(f"v_and_b32 v65, 0xffff0000, v{x+k}")
            a(f"v_add_f32 v62, v62, v63")
            a(f"v_add_f32 v64, v64, v65")
            a(f"v_cvt_pk_bf16_f32 v{70+2*tt+k}, v62, v64")
    a(f"s_add_u32 s35, s34, {WS_HT}")
    a("buffer_store_dwordx2 v[70:71], v8, s[12:15], s35 offen")
    a("buffer_store_dwordx2 v[72:73], v8, s[12:15], s35 offen offset:512")
    if KT:
        st(5)
        a("s_waitcnt vmcnt(0) lgkmcnt(0)")
        st(6)
        st_flush(27)
    a("s_branch K1_END")
    a.label("K1_PF")
    gen_prefetch(a, 1, 640, "K1_END")
    a.label("K1_END")
    kst_end(a, 0, 640 + PF[1].nwg)
    a("s_endpgm")
    return name, 164, K12_LDS
```

```python
from gen import *
OPTS = os.environ.get('GOPT', '').split(',')
CS = 4160
UPAD = 8 * CS
UOFF = UPAD + 512
RES = UOFF + 4096
KC2 = RES + 4128 + 32
CH_LDS = KC2 + 3072 + 64
K12B_LDS = 3 * CH_LDS
TTILE = 8 * 1088
TROW = 16
WS_ST = WS_UT

def cmul(a, dst, x, y, tmp):
    a(f"v_pk_mul_f32 v[{tmp}:{tmp+1}], v[{x}:{x+1}], v[{y}:{y+1}] op_sel:[0,0] op_sel_hi:[0,1]")
    a(f"v_pk_fma_f32 v[{dst}:{dst+1}], v[{x}:{x+1}], v[{y}:{y+1}], v[{tmp}:{tmp+1}] op_sel:[1,1,0] op_sel_hi:[1,0,1] neg_lo:[1,0,0]")

def gen_k12b(a):
    name = "k1_kernel"
    kernel_head(a, name)
    kst_begin(a)
    KT = 'k1st' in OPTS
    ST2 = 'st2' in OPTS
    phase = ['ln']
    def st(i):
        if KT and not (ST2 and phase[0] == 'ch'): a(f"s_memrealtime s[{60+2*i}:{61+2*i}]")
    def stg(i):
        if KT and ST2: a(f"s_memrealtime s[{60+2*i}:{61+2*i}]")
    def st_flush():
        a("s_waitcnt lgkmcnt(0)")
        srd(a, 76, 6, 7, 0x4000000)
        for i in range(7): a(f"v_mov_b32 v{80+i}, s{60+2*i}")
        a("v_mov_b32 v87, s94")
        a("s_mul_i32 s75, s2, 384")
        a(f"s_lshl_b32 s74, s59, 5")
        a("s_add_u32 s75, s75, s74")
        a("s_add_u32 s75, s75, 0x2a00000")
        a("v_mov_b32 v78, 0")
        a("buffer_store_dwordx4 v[80:83], v78, s[76:79], s75 offen")
        a("buffer_store_dwordx4 v[84:87], v78, s[76:79], s75 offen offset:16")
    def touch(r0, r1, vd, T):
        srd(a, 8, 84, 85, r1 * 9216)
        t0, t1, t2 = T
        a(f"v_min_u32 v{t0}, 59, v1")
        a(f"v_mul_u32_u24 v{t1}, 52, v{t0}")
        a(f"v_lshrrev_b32 v{t1}, 9, v{t1}")
        a(f"v_mul_u32_u24 v{t2}, 10, v{t1}")
        a(f"v_sub_u32 v{t2}, v{t0}, v{t2}")
        a(f"v_mul_u32_u24 v{t1}, 9216, v{t1}")
        a(f"v_lshl_add_u32 v{t1}, v{t2}, 7, v{t1}")
        a("s_and_b32 s82, s2, 7")
        a("s_mul_i32 s82, s82, 27*171")
        a("s_lshr_b32 s82, s82, 10")
        a("s_lshl_b32 s82, s82, 8")
        a("s_sub_u32 s83, s2, 64")
        a("s_lshr_b32 s83, s83, 3")
        a("s_mul_i32 s83, s83, 12")
        a("s_add_u32 s83, s83, s59")
        a(f"s_mul_i32 s83, s83, {6*9216}")
        a("s_add_u32 s82, s82, s83")
        a(f"s_add_u32 s82, s82, {r0*9216}")
        n = -(-(r1 - r0) // (6 * 288))
        for i in range(n):
            a(f"buffer_load_dword v{vd+i}, v{t1}, s[8:11], s82 offen")
            if i < n - 1: a(f"s_add_u32 s82, s82, {288*6*9216}")
        return n
    a("s_cmp_ge_u32 s2, 256")
    a("s_cbranch_scc1 K1_END")
    a("s_load_dwordx2 s[4:5], s[0:1], 0")
    a("s_load_dwordx2 s[6:7], s[0:1], 112")
    a("s_load_dwordx8 s[16:23], s[0:1], 8")
    a("s_load_dwordx4 s[52:55], s[0:1], 40")
    a("s_load_dwordx2 s[56:57], s[0:1], 104")
    a("s_load_dwordx2 s[84:85], s[0:1], 64")
    a("v_lshrrev_b32 v2, 6, v0")
    a("v_readfirstlane_b32 s59, v2")
    a("v_and_b32 v1, 63, v0")
    if KT:
        for i in range(7): a(f"s_mov_b32 s{60+2*i}, 0")
    a("s_cmp_ge_u32 s2, 64")
    a("s_cbranch_scc1 K1_CH")
    a("s_cmp_ge_u32 s59, 8")
    a("s_cbranch_scc1 K1_LN_B")
    a("s_setprio 3")
    a("v_lshrrev_b32 v2, 4, v1")
    a("v_and_b32 v3, 15, v1")
    a("s_lshl_b32 s3, s2, 5")
    a("s_lshl_b32 s26, s59, 2")
    a("s_add_u32 s3, s3, s26")
    a("v_add_u32 v4, s3, v2")
    a("s_movk_i32 s26, 1152")
    a("v_mul_lo_u32 v5, v4, s26")
    a("v_lshl_add_u32 v5, v3, 3, v5")
    a("s_waitcnt lgkmcnt(0)")
    st(0)
    srd(a, 8, 4, 5, L * D * 2)
    for i in range(9):
        a(f"buffer_load_dwordx2 v[{10+2*i}:{11+2*i}], v5, s[8:11], 0 offen offset:{128*i}")
    srd(a, 12, 6, 7, WS_HN)
    srd(a, 48, 56, 57, 256)
    a("v_mov_b32 v6, 0")
    a("ds_write_b32 v6, v6")
    a("v_lshlrev_b32 v7, 2, v4")
    a("v_mov_b32 v8, 1")
    a("s_waitcnt vmcnt(0) lgkmcnt(0)")
    st(1)
    a.label("K1_LN_B")
    a("s_barrier")
    a("s_cmp_ge_u32 s59, 8")
    a("s_cbranch_scc1 K1_PF")
    for i in range(18):
        a(f"v_lshlrev_b32 v{30+2*i}, 16, v{10+i}")
        a(f"v_and_b32 v{31+2*i}, 0xffff0000, v{10+i}")
    a("v_pk_add_f32 v[66:67], v[30:31], v[32:33]")
    a("v_pk_add_f32 v[68:69], v[34:35], v[36:37]")
    for i in range(4, 18):
        r = 66 + 2 * (i % 2)
        a(f"v_pk_add_f32 v[{r}:{r+1}], v[{r}:{r+1}], v[{30+2*i}:{31+2*i}]")
    a("v_pk_add_f32 v[66:67], v[66:67], v[68:69]")
    a("v_add_f32 v66, v66, v67")
    def red16(r):
        for m in ("quad_perm:[1,0,3,2]", "quad_perm:[2,3,0,1]", "row_half_mirror", "row_mirror"):
            a(f"v_add_f32_dpp v{r}, v{r}, v{r} {m} row_mask:0xf bank_mask:0xf")
    red16(66)
    a(f"s_mov_b32 s26, {fhex(1.0/576)}")
    a("v_mul_f32 v70, s26, v66")
    for i in range(18):
        t = 72 + 2 * (i % 4)
        r = 66 + 2 * (i % 2)
        a(f"v_pk_add_f32 v[{t}:{t+1}], v[{30+2*i}:{31+2*i}], v[70:71] op_sel:[0,0] op_sel_hi:[1,0] neg_lo:[0,1] neg_hi:[0,1]")
        if i < 2: a(f"v_pk_mul_f32 v[{r}:{r+1}], v[{t}:{t+1}], v[{t}:{t+1}]")
        else: a(f"v_pk_fma_f32 v[{r}:{r+1}], v[{t}:{t+1}], v[{t}:{t+1}], v[{r}:{r+1}]")
    a("v_pk_add_f32 v[66:67], v[66:67], v[68:69]")
    a("v_add_f32 v66, v66, v67")
    red16(66)
    a("v_mul_f32 v66, s26, v66")
    bf16_round(a, 70, 70)
    bf16_round(a, 66, 66)
    a(f"v_add_f32 v66, {fhex(1e-5)}, v66")
    bf16_round(a, 66, 66)
    a("v_sqrt_f32 v66, v66")
    bf16_round(a, 66, 66)
    a("v_lshrrev_b32 v70, 16, v70")
    a("v_or_b32 v66, v66, v70")
    st(2)
    a("s_mov_b32 exec_lo, 0x00010001")
    a("s_mov_b32 exec_hi, 0x00010001")
    a(f"s_mov_b32 s26, {WS_ST}")
    a("buffer_store_dword v66, v7, s[12:15], s26 offen sc1")
    a("s_waitcnt vmcnt(0)")
    st(3)
    a("s_mov_b64 exec, 1")
    a("ds_add_rtn_u32 v9, v6, v8")
    a("s_waitcnt lgkmcnt(0)")
    a("v_readfirstlane_b32 s26, v9")
    a("s_cmp_lg_u32 s26, 7")
    a("s_cbranch_scc1 K1_LN_D")
    a("buffer_atomic_add v8, v6, s[48:51], 0 offen sc0 sc1")
    a("s_waitcnt vmcnt(0)")
    st(4)
    a("v_readfirstlane_b32 s26, v8")
    a("s_cmp_lg_u32 s26, 63")
    a("s_cbranch_scc1 K1_LN_D")
    a("v_mov_b32 v8, 1")
    a("buffer_store_dword v8, v6, s[48:51], 0 offen offset:128 sc1")
    if KT:
        a("s_waitcnt vmcnt(0)")
        st(5)
    a.label("K1_LN_D")
    a("s_mov_b64 exec, -1")
    a("s_setprio 0")
    if KT: st_flush()
    a("s_branch K1_PF")

    a.label("K1_CH")
    phase[0] = 'ch'
    if 'rep2' in OPTS:
        a("v_mov_b32 v161, v0")
        a("s_mov_b32 s92, 0")
        a.label("K1_REP")
        a("v_mov_b32 v0, v161")
        a("s_memrealtime s[94:95]")
    a("s_sub_u32 s3, s2, 64")
    a("s_and_b32 s26, s3, 7")
    a("s_mul_i32 s26, s26, 24")
    a("s_lshr_b32 s3, s3, 3")
    a("s_add_u32 s3, s3, s26")
    a("s_lshr_b32 s39, s59, 2")
    a("s_and_b32 s27, s59, 3")
    a("s_mul_i32 s33, s3, 3")
    a("s_add_u32 s33, s33, s39")
    a(f"s_mul_i32 s34, s39, {CH_LDS}")
    a("s_movk_i32 s26, 1152")
    a("v_mul_lo_u32 v150, v0, s26")
    a("v_lshlrev_b32 v151, 1, v0")
    a("v_and_b32 v0, 255, v0")
    a("v_lshrrev_b32 v3, 4, v1")
    a("v_and_b32 v4, 15, v1")
    a("v_and_b32 v6, 127, v0")
    a("s_lshl_b32 s28, s33, 8")
    a("v_lshlrev_b32 v5, 1, v6")
    a("v_add_u32 v5, s28, v5")
    a("v_lshl_add_u32 v9, v1, 2, s28")
    a("s_lshl_b32 s44, s33, 1")
    a("v_mov_b32 v7, s44")
    a("s_mul_i32 s36, s3, 6")
    a("s_and_b32 s37, s36, 2")
    a("s_lshl_b32 s37, s37, 3")
    a("s_and_b32 s36, s36, -4")
    a(f"s_add_u32 s38, s36, {768*1152}")
    a(f"s_add_u32 s40, s36, {2*768*1152}")
    a("s_mov_b32 s58, s40")
    a("s_waitcnt lgkmcnt(0)")
    srd(a, 40, 52, 53, D * 2)
    a("buffer_load_ushort v14, v7, s[40:43], 0 offen")
    srd(a, 8, 16, 17, D * NM * 2)
    a("buffer_load_ushort v10, v5, s[8:11], 0 offen")
    srd(a, 28, 18, 19, D * NM * 2)
    a("buffer_load_ushort v11, v5, s[28:31], 0 offen")
    srd(a, 44, 20, 21, D * NM * 2)
    a("buffer_load_dword v20, v9, s[44:47], 0 offen")
    a("buffer_load_ushort v12, v5, s[44:47], 0 offen")
    srd(a, 48, 22, 23, D * NM * 2)
    a("buffer_load_dword v21, v9, s[48:51], 0 offen")
    a("buffer_load_ushort v13, v5, s[48:51], 0 offen")
    srd(a, 40, 54, 55, D * 2)
    a("buffer_load_ushort v160, v7, s[40:43], 0 offen")
    srd(a, 8, 4, 5, L * D * 2)
    def gathers():
        a("buffer_load_dwordx2 v[152:153], v150, s[8:11], s36 offen")
        a("buffer_load_dwordx2 v[154:155], v150, s[8:11], s38 offen")
        a("buffer_load_dwordx2 v[156:157], v150, s[8:11], s58 offen")
    GLATE = 'gearly' not in OPTS
    if not GLATE: gathers()
    srd(a, 12, 6, 7, WS_HN)
    srd(a, 48, 56, 57, 256)
    a(f"s_mov_b32 s44, {hex(LOG2E)}")
    a(f"s_mov_b32 s45, {fhex(1.4426950408889634 - 1.4426950216293335)}")
    a(f"s_mov_b32 s46, {fhex(0.6931471805599453)}")
    a(f"s_mov_b32 s47, {hex(INV2PI)}")
    a(f"s_mov_b32 s26, {hex(LOG2E | 0x80000000)}")
    a("v_lshrrev_b32 v8, 3, v6")
    a("v_mul_u32_u24 v8, 544, v8")
    a("v_bfe_u32 v9, v6, 2, 1")
    a("v_lshl_add_u32 v8, v9, 8, v8")
    a("v_and_b32 v9, 3, v6")
    a("v_lshl_add_u32 v8, v9, 2, v8")
    a("v_add_u32 v8, s34, v8")
    a("v_lshrrev_b32 v9, 1, v3")
    a("v_mul_u32_u24 v9, 544, v9")
    a("v_and_b32 v2, 1, v3")
    a("v_lshl_add_u32 v9, v2, 8, v9")
    a("v_lshl_add_u32 v9, v4, 4, v9")
    a("v_add_u32 v9, s34, v9")
    a("s_cmp_eq_u32 s27, 1")
    a("s_cbranch_scc1 K1_KG_T1")
    a("s_cmp_eq_u32 s27, 2")
    a("s_cbranch_scc1 K1_KG_T2")
    a("v_and_b32 v100, 1, v3")
    a("v_lshlrev_b32 v100, 2, v100")
    a("v_lshrrev_b32 v101, 1, v3")
    a("v_lshl_add_u32 v100, v101, 7, v100")
    a("v_lshl_add_u32 v100, v4, 3, v100")
    for r in range(1, 4): a(f"v_add_u32 v{100+r}, {r}, v100")
    a("s_branch K1_KG_SC")
    a.label("K1_KG_T1")
    a("v_lshlrev_b32 v104, 6, v3")
    a("v_lshl_add_u32 v104, v4, 2, v104")
    a("v_add_u32 v104, 256, v104")
    a("v_lshlrev_b32 v105, 6, v3")
    a("v_lshl_add_u32 v105, v4, 1, v105")
    a("v_add_u32 v105, 256, v105")
    a("v_cmp_gt_u32 vcc, 2, v3")
    for r in range(4):
        a(f"v_add_u32 v106, {r}, v104")
        a(f"v_add_u32 v107, {32*(r>>1)+(r&1)}, v105")
        a(f"v_cndmask_b32 v{100+r}, v107, v106, vcc")
    a("s_branch K1_KG_SC")
    a.label("K1_KG_T2")
    a("v_lshlrev_b32 v100, 6, v3")
    a("v_add_u32 v100, v4, v100")
    a("v_add_u32 v100, 512, v100")
    for r in range(1, 4): a(f"v_add_u32 v{100+r}, {16*r}, v100")
    a.label("K1_KG_SC")
    for r in range(4): a(f"v_lshl_add_u32 v{140+r}, v{100+r}, 2, s34")
    GM = [o for o in OPTS if o.startswith('g=')]
    GM = GM[0][2:] if GM else 'mid'
    if GM == 'mid' and GLATE:
        a("s_barrier")
        gathers()
    IT0 = [o for o in OPTS if o.startswith('itx0=')]
    n0 = 0
    if IT0:
        a("s_barrier")
        n0 = touch(*(int(x) for x in IT0[0][5:].split('.')), 162, (24, 25, 27))
        srd(a, 8, 4, 5, L * D * 2)
    a(f"s_waitcnt vmcnt({4 if (GM == 'mid' or not GLATE) else 1 + n0})")
    st(0)
    if GM == 'late' and GLATE: gathers()
    def gpoint(k):
        if GM != 'sp': return
        lab = a.newlabel("K1_GP")
        a(f"s_cmp_lg_u32 s39, {k}")
        a(f"s_cbranch_scc1 {lab}")
        gathers()
        a.label(lab)
    gpoint(0)
    a("v_lshlrev_b32 v14, 16, v14")
    exp_precise(a, 16, 14, 17, 18, 44, 45, 46)
    a("v_lshlrev_b32 v10, 16, v10")
    exp_precise(a, 19, 10, 22, 23, 44, 45, 46)
    bf16_round(a, 16, 16)
    bf16_round(a, 19, 19)
    a("v_add_f32 v17, v16, v16")
    a("v_mul_f32 v19, v19, v16")
    a("v_mul_f32 v32, s26, v19")
    a("v_lshlrev_b32 v11, 16, v11")
    a("v_mul_f32 v11, v11, v16")
    a("v_mul_f32 v33, s47, v11")
    a("v_and_b32 v20, 0x7fff7fff, v20")
    a("v_and_b32 v21, 0x7fff7fff, v21")
    a("v_lshlrev_b32 v22, 16, v20")
    a("v_lshlrev_b32 v23, 16, v21")
    a("v_max_u32 v20, v20, v21")
    a("v_max_u32 v22, v22, v23")
    a("v_and_b32 v20, 0xffff0000, v20")
    a("v_max_u32 v36, v20, v22")
    for mode in ("quad_perm:[1,0,3,2]", "quad_perm:[2,3,0,1]", "row_half_mirror", "row_mirror"):
        a(f"v_max_u32_dpp v36, v36, v36 {mode} row_mask:0xf bank_mask:0xf")
    for k, sr in enumerate((24, 25, 30, 31)): a(f"v_readlane_b32 s{sr}, v36, {16*k}")
    a("s_max_u32 s24, s24, s25")
    a("s_max_u32 s30, s30, s31")
    a("s_max_u32 s24, s24, s30")
    a("v_mul_f32 v36, s24, v17")
    a("v_frexp_exp_i32_f32 v26, v36")
    a("v_sub_u32 v31, 0, v26")
    def direct(dst, n, conj, t):
        c = fhex(float(n)) if n not in (1, 2, 4) else f"{float(n)}"
        a(f"v_mul_f32 v{t}, {c}, v32")
        a(f"v_mul_f32 v{t+1}, {c}, v33")
        a(f"v_fract_f32 v{t+1}, v{t+1}")
        a(f"v_exp_f32 v{t}, v{t}")
        a(f"v_cos_f32 v{t+2}, v{t+1}")
        a(f"v_sin_f32 v{t+3}, v{t+1}")
        a(f"v_mul_f32 v{dst}, v{t}, v{t+2}")
        a(f"v_mul_f32 v{dst+1}, {'-' if conj else ''}v{t}, v{t+3}")
    cv = [0]
    def put(T, i, p):
        r = 88 + (cv[0] % 8); cv[0] += 1
        a(f"v_cvt_pk_f16_f32 v{r}, v{p}, v{p+1}")
        a(f"ds_write_b32 v8, v{r} offset:{T*TTILE + i*TROW}")
    a("s_cmp_ge_u32 s27, 2")
    a("s_cbranch_scc1 K1_H1")
    direct(40, 8, False, 72)
    direct(42, 1, True, 76)
    direct(44, 128, True, 80)
    a("v_lshlrev_b32 v12, 16, v12")
    a("v_lshlrev_b32 v13, 16, v13")
    a("v_mul_f32 v12, v12, v17")
    a("v_mul_f32 v13, v13, v17")
    a("v_ldexp_f32 v46, v12, v31")
    a("v_ldexp_f32 v47, v13, v31")
    a("v_mov_b32 v52, 1.0")
    a("v_mov_b32 v53, 0")
    put(0, 0, 46); put(1, 0, 52); put(1, 8, 44); put(1, 1, 42)
    ecur, enx = 46, 48
    ycur, ynx = 42, 54
    gpoint(1)
    for k in range(1, 16):
        if k == 6: gpoint(2)
        cmul(a, enx, ecur, 40, 50)
        if k <= 7:
            cmul(a, 58, ycur, 44, 60)
            if k < 7: cmul(a, ynx, ycur, 42, 62)
        put(0, k, enx)
        if k <= 7:
            put(1, 8 + k, 58)
            if k < 7: put(1, k + 1, ynx)
            ycur, ynx = ynx, (56 if ynx == 54 else 54)
        ecur, enx = enx, ecur
    a("s_branch K1_HJ")
    a.label("K1_H1")
    direct(40, 2, True, 72)
    direct(42, 128, True, 76)
    cmul(a, 44, 40, 40, 60)
    cmul(a, 48, 42, 42, 62)
    cmul(a, 46, 44, 40, 60)
    cmul(a, 50, 48, 42, 62)
    cmul(a, 52, 48, 48, 60)
    put(2, 0, 48); put(2, 4, 50)
    cmul(a, 54, 52, 52, 62)
    put(2, 8, 52)
    gpoint(1)
    ys = [40, 44, 46]
    gcur, gnx = 54, 56
    put(3, 0, 54)
    bcur, bnx = 52, 64
    k2 = 1
    def g2step():
        nonlocal gcur, gnx, k2
        if k2 > 15: return
        cmul(a, gnx, gcur, 42, 58)
        put(3, k2, gnx)
        gcur, gnx = gnx, gcur
        k2 += 1
    for base, j0 in ((48, 0), (50, 4)):
        for t in range(3):
            cmul(a, 66, base, ys[t], 60)
            g2step()
            put(2, j0 + 1 + t, 66)
    gpoint(2)
    for t in range(4):
        cmul(a, 66, bcur, 44, 60)
        if t < 3: cmul(a, bnx, bcur, 42, 62)
        g2step()
        put(2, 8 + 2 * t + 1, 66)
        if t < 3:
            put(2, 8 + 2 * (t + 1), bnx)
            bcur, bnx = bnx, (68 if bnx == 64 else 64)
    while k2 <= 15: g2step()
    a.label("K1_HJ")
    if GM == 'A' and GLATE: gathers()
    a("s_waitcnt lgkmcnt(0)")
    a("s_barrier")
    st(1)
    a("s_cmp_eq_u32 s27, 3")
    a("s_cbranch_scc1 K1_KG_EXP")
    a(f"s_mul_i32 s28, s27, {TTILE}")
    a(f"s_add_u32 s28, s28, {TTILE}")
    a("v_add_u32 v5, s28, v9")
    AFR = 36; BFR = 100
    AFR = 36; BFR = 68; ACCK = 128
    for ks in range(8):
        a(f"ds_read_b128 v[{AFR+4*ks}:{AFR+4*ks+3}], v5 offset:{1088*ks}")
        a(f"ds_read_b128 v[{BFR+4*ks}:{BFR+4*ks+3}], v9 offset:{1088*ks}")
    for ks in range(8):
        a(f"s_waitcnt lgkmcnt({14-2*ks})")
        acc = ACCK + 4 * (ks % 2)
        a(f"v_mfma_f32_16x16x32_f16 v[{acc}:{acc+3}], v[{AFR+4*ks}:{AFR+4*ks+3}], v[{BFR+4*ks}:{BFR+4*ks+3}], {'0' if ks < 2 else f'v[{acc}:{acc+3}]'}")
    for r in range(4):
        a(f"v_add_f32 v{ACCK+r}, v{ACCK+r}, v{ACCK+4+r}")
        a(f"v_ldexp_f32 v{ACCK+r}, v{ACCK+r}, v26")
        a(f"ds_write_b32 v{140+r}, v{ACCK+r} offset:{KC2}")
    a.label("K1_KG_EXP")
    a("s_waitcnt lgkmcnt(0)")
    a("s_barrier")
    st(2)
    a("v_lshl_add_u32 v5, v0, 4, s34")
    a("v_lshlrev_b32 v9, 3, v0")
    a("v_sub_u32 v9, 2047, v9")
    for e in range(8):
        a(f"v_subrev_u32 v{40+e}, {e}, v9")
        a(f"v_cvt_f32_i32 v{50+e}, v{40+e}")
    for e in range(0, 8, 2):
        a(f"v_cvt_pk_bf16_f32 v{60+e//2}, v{50+e}, v{51+e}")
    for e in range(8):
        src = 60 + e // 2
        if e % 2 == 0: a(f"v_and_b32 v{50+e}, 0xffff, v{src}")
        else: a(f"v_lshrrev_b32 v{50+e}, 16, v{src}")
        a(f"v_subrev_u32 v{50+e}, 17024, v{50+e}")
        a(f"v_min_u32 v66, 127, v{40+e}")
        a(f"v_max_i32 v{50+e}, v{50+e}, v66")
        a(f"v_lshl_add_u32 v{50+e}, v{50+e}, 2, s34")
        a(f"ds_read_b32 v{70+e}, v{50+e} offset:{KC2}")
    for r in range(4): a(f"v_mov_b32 v{84+r}, 0")
    a(f"v_add_u32 v158, {CH_LDS}, v151")
    a(f"v_add_u32 v159, {2*CH_LDS}, v151")
    a("s_waitcnt vmcnt(0)")
    for k in range(3):
        lab = a.newlabel("K1_XS")
        if k == 2:
            a("s_cmp_ge_u32 s59, 8")
            a(f"s_cbranch_scc1 {lab}")
        r = 152 + 2 * k
        a(f"v_lshrrev_b64 v[{r}:{r+1}], s37, v[{r}:{r+1}]")
        a(f"ds_write_b16 v151, v{r} offset:{UOFF + 1536*k}")
        a(f"ds_write_b16_d16_hi v158, v{r} offset:{UOFF + 1536*k}")
        a(f"ds_write_b16 v159, v{r+1} offset:{UOFF + 1536*k}")
        if k == 2: a.label(lab)
    a("s_waitcnt lgkmcnt(0)")
    for k in range(4):
        a(f"v_cvt_pk_bf16_f32 v{80+k}, v{70+2*k}, v{71+2*k}")
    a(f"ds_write_b128 v5, v[80:83] offset:{RES}")
    a("v_mov_b32 v6, s34")
    a(f"ds_write_b128 v6, v[84:87] offset:{RES + 4096}")
    if 'dumpR' in OPTS:
        srd(a, 28, 6, 7, WS_HT)
        a("s_mul_i32 s36, s33, %d" % RSTRIDE)
        a(f"s_add_u32 s36, s36, {WS_R}")
        a("v_lshlrev_b32 v7, 4, v0")
        a("buffer_store_dwordx4 v[80:83], v7, s[28:31], s36 offen")
    a("s_waitcnt lgkmcnt(0)")
    a("s_barrier")
    st(3)
    a("v_mov_b32 v7, 0")
    a("buffer_load_dword v9, v7, s[48:51], 0 offen offset:128 sc1")
    Dv = 40; Ev = 48; Ov = 56; Pv = 64
    a(f"ds_read_b128 v[{Dv}:{Dv+3}], v5 offset:{RES}")
    a(f"ds_read_b128 v[{Dv+4}:{Dv+7}], v5 offset:{RES+16}")
    a("v_lshlrev_b32 v8, 5, v4")
    a("v_lshl_add_u32 v8, v3, 3, v8")
    a("s_lshl_b32 s37, s27, 10")
    a("s_add_u32 s37, s37, s34")
    a("v_add_u32 v23, s37, v8")
    a(f"ds_read_b64 v[10:11], v23 offset:{UOFF}")
    a(f"ds_read_b64 v[12:13], v23 offset:{UOFF + 512}")
    a("v_lshrrev_b32 v15, 2, v1")
    a(f"s_movk_i32 s37, {CS}")
    a("v_mul_lo_u32 v15, v15, s37")
    a("v_and_b32 v20, 3, v1")
    a("v_lshl_add_u32 v15, v20, 4, v15")
    a("v_add_u32 v15, 4096, v15")
    a("v_subrev_u32 v20, 32, v1")
    a("v_lshlrev_b32 v20, 4, v20")
    a(f"v_add_u32 v20, {UPAD}, v20")
    a("v_cmp_gt_u32 vcc, 32, v1")
    a("v_cndmask_b32 v15, v20, v15, vcc")
    a("v_add_u32 v15, s34, v15")
    a("ds_write_b128 v15, v[84:87]")
    a("s_waitcnt lgkmcnt(3)")
    for k in range(6): a(f"v_mov_b32 v{Ev+k}, v{Dv+1+k}")
    for k in range(7): a(f"v_alignbit_b32 v{Ov+k}, v{Dv+k+1}, v{Dv+k}, 16")
    for k in range(6): a(f"v_alignbit_b32 v{Pv+k}, v{Dv+k+2}, v{Dv+k+1}, 16")
    src = {7: Dv, 5: Ev, 3: Dv + 2, 1: Ev + 2, 6: Ov, 4: Pv, 2: Ov + 2, 0: Pv + 2}
    for r in range(8):
        a(f"ds_write_b128 v5, v[{src[r]}:{src[r]+3}] offset:{r*CS}")
    a("v_lshlrev_b32 v20, 5, v4")
    a("v_lshl_add_u32 v20, v3, 4, v20")
    a("s_lshl_b32 s37, s27, 6")
    a(f"s_sub_u32 s38, {UOFF-288}, s37")
    a("s_add_u32 s38, s38, s34")
    a("v_add_u32 v20, s38, v20")
    a("v_and_b32 v21, 7, v4")
    a(f"s_movk_i32 s39, {CS}")
    a("v_mul_lo_u32 v21, v21, s39")
    a("v_lshl_add_u32 v21, v3, 4, v21")
    a("v_lshrrev_b32 v22, 3, v4")
    a("v_lshlrev_b32 v22, 4, v22")
    a("v_sub_u32 v21, v21, v22")
    a("s_sub_u32 s38, 208, s37")
    a("s_add_u32 s38, s38, s34")
    a("v_add_u32 v21, s38, v21")
    a("v_lshlrev_b32 v22, 6, v4")
    a("v_lshl_add_u32 v22, v3, 4, v22")
    a("s_lshl_b32 s38, s27, 11")
    a(f"s_add_u32 s38, s38, {WS_ST}")
    a.label("K1_POLL")
    a("s_waitcnt vmcnt(0)")
    a("v_readfirstlane_b32 s37, v9")
    a("s_cmp_lg_u32 s37, 0")
    a("s_cbranch_scc1 K1_GO")
    a("s_sleep 1")
    a("buffer_load_dword v9, v7, s[48:51], 0 offen offset:128 sc1")
    a("s_branch K1_POLL")
    a.label("K1_GO")
    st(4)
    a("buffer_load_dwordx4 v[24:27], v22, s[12:15], s38 offen sc1")
    a("buffer_load_dwordx4 v[28:31], v22, s[12:15], s38 offen offset:1024 sc1")
    ACC = 128
    for r in range(32): a(f"v_mov_b32 v{ACC+r}, 0")
    a("s_waitcnt lgkmcnt(0)")
    for tt in range(2):
        X = 32; M = 36; R = 40
        xp = 10 + 2 * tt; S = 24 + 4 * tt
        a(f"v_lshlrev_b32 v{X}, 16, v{xp}")
        a(f"v_and_b32 v{X+1}, 0xffff0000, v{xp}")
        a(f"v_lshlrev_b32 v{X+2}, 16, v{xp+1}")
        a(f"v_and_b32 v{X+3}, 0xffff0000, v{xp+1}")
        a(f"s_waitcnt vmcnt({1-tt})")
        for k in range(4):
            a(f"v_and_b32 v{R+k}, 0xffff0000, v{S+k}")
            a(f"v_lshlrev_b32 v{M+k}, 16, v{S+k}")
            a(f"v_rcp_f32 v{R+k}, v{R+k}")
            a(f"v_sub_f32 v{X+k}, v{X+k}, v{M+k}")
        a(f"v_cvt_pk_bf16_f32 v{M}, v{X}, v{X+1}")
        a(f"v_cvt_pk_bf16_f32 v{M+1}, v{X+2}, v{X+3}")
        a(f"v_lshlrev_b32 v{X}, 16, v{M}")
        a(f"v_and_b32 v{X+1}, 0xffff0000, v{M}")
        a(f"v_lshlrev_b32 v{X+2}, 16, v{M+1}")
        a(f"v_and_b32 v{X+3}, 0xffff0000, v{M+1}")
        for k in range(4): a(f"v_mul_f32 v{X+k}, v{X+k}, v{R+k}")
        a(f"v_cvt_pk_bf16_f32 v{16+2*tt}, v{X}, v{X+1}")
        a(f"v_cvt_pk_bf16_f32 v{17+2*tt}, v{X+2}, v{X+3}")
        a(f"ds_write_b64 v23, v[{16+2*tt}:{17+2*tt}] offset:{UOFF + 512*tt}")
    a("v_lshl_add_u32 v5, v1, 4, s34")
    a("s_waitcnt lgkmcnt(0)")
    a("s_barrier")
    st(5)
    stg(0)
    ITX = [o for o in OPTS if o.startswith('itx=')]
    if ITX: touch(*(int(x) for x in ITX[0][4:].split('.')), 161, (24, 25, 26))
    BF = 32; AF = 96
    def lda(i): a(f"ds_read_b128 v[{AF+4*(i%8)}:{AF+4*(i%8)+3}], v21 offset:{256*(15-i)}")
    def ldb(z): a(f"ds_read_b128 v[{BF+4*z}:{BF+4*z+3}], v20 offset:{256*z}")
    order = []
    for n in range(16): order += [('a', 15 - n), ('b', n)]
    issued = 0
    def issue(n):
        nonlocal issued
        for _ in range(n):
            if issued >= len(order): return
            k, x = order[issued]
            (lda if k == 'a' else ldb)(x)
            issued += 1
    issue(16)
    for n in range(16):
        i = 15 - n
        a(f"s_waitcnt lgkmcnt({min(15, issued - (2*n + 2))})")
        af = AF + 4 * (i % 8)
        for t in range(7, (i >> 1) - 1, -1):
            z = 2 * t - i
            if z < -1: continue
            a(f"v_mfma_f32_16x16x32_bf16 v[{ACC+4*t}:{ACC+4*t+3}], v[{af}:{af+3}], v[{BF+4*(z+1)}:{BF+4*(z+1)+3}], v[{ACC+4*t}:{ACC+4*t+3}]")
        issue(2)
    stg(1)
    a("s_barrier")
    stg(2)
    a("s_lshl_b32 s37, s27, 13")
    a("v_add_u32 v22, s37, v5")
    for w in range(4):
        lab = a.newlabel("K2_W")
        a(f"s_cmp_eq_u32 s27, {w}")
        a(f"s_cbranch_scc1 {lab}")
        for t in (2*w, 2*w+1):
            a(f"ds_write_b128 v22, v[{ACC+4*t}:{ACC+4*t+3}] offset:{1024*t}")
        a.label(lab)
    for w in range(4):
        lab = a.newlabel("K2_M")
        a(f"s_cmp_lg_u32 s27, {w}")
        a(f"s_cbranch_scc1 {lab}")
        for r in range(8): a(f"v_mov_b32 v{24+r}, v{ACC+8*w+r}")
        a.label(lab)
    a("s_waitcnt lgkmcnt(0)")
    a("s_barrier")
    stg(3)
    a("s_lshl_b32 s37, s27, 11")
    a("v_add_u32 v22, s37, v5")
    for k in range(1, 4):
        a(f"s_add_u32 s38, s27, {k}")
        a("s_and_b32 s38, s38, 3")
        a("s_lshl_b32 s38, s38, 13")
        a(f"v_add_u32 v23, s38, v22")
        a(f"ds_read_b128 v[{32+8*(k-1)}:{35+8*(k-1)}], v23")
        a(f"ds_read_b128 v[{36+8*(k-1)}:{39+8*(k-1)}], v23 offset:1024")
    a("v_lshlrev_b32 v14, 16, v160")
    a("s_waitcnt lgkmcnt(0)")
    stg(4)
    for r in range(8):
        a(f"v_add_f32 v{24+r}, v{24+r}, v{32+r}")
        a(f"v_add_f32 v{40+r}, v{40+r}, v{48+r}")
        a(f"v_add_f32 v{24+r}, v{24+r}, v{40+r}")
    for tt in range(2):
        y = 24 + 4 * tt; u = 16 + 2 * tt; x = 10 + 2 * tt
        a(f"v_cvt_pk_bf16_f32 v60, v{y}, v{y+1}")
        a(f"v_cvt_pk_bf16_f32 v61, v{y+2}, v{y+3}")
        a(f"v_lshlrev_b32 v62, 16, v{u}")
        a(f"v_and_b32 v63, 0xffff0000, v{u}")
        a(f"v_lshlrev_b32 v64, 16, v{u+1}")
        a(f"v_and_b32 v65, 0xffff0000, v{u+1}")
        for k in range(4): a(f"v_mul_f32 v{62+k}, v{62+k}, v14")
        a(f"v_cvt_pk_bf16_f32 v66, v62, v63")
        a(f"v_cvt_pk_bf16_f32 v67, v64, v65")
        for k in range(2):
            a(f"v_lshlrev_b32 v62, 16, v{60+k}")
            a(f"v_lshlrev_b32 v63, 16, v{66+k}")
            a(f"v_and_b32 v64, 0xffff0000, v{60+k}")
            a(f"v_and_b32 v65, 0xffff0000, v{66+k}")
            a(f"v_add_f32 v62, v62, v63")
            a(f"v_add_f32 v64, v64, v65")
            a(f"v_cvt_pk_bf16_f32 v{68+k}, v62, v64")
            a(f"v_lshlrev_b32 v62, 16, v{68+k}")
            a(f"v_lshlrev_b32 v63, 16, v{x+k}")
            a(f"v_and_b32 v64, 0xffff0000, v{68+k}")
            a(f"v_and_b32 v65, 0xffff0000, v{x+k}")
            a(f"v_add_f32 v62, v62, v63")
            a(f"v_add_f32 v64, v64, v65")
            a(f"v_cvt_pk_bf16_f32 v{70+2*tt+k}, v62, v64")
    a("s_lshl_b32 s35, s33, 12")
    a("s_lshl_b32 s37, s27, 10")
    a("s_add_u32 s35, s35, s37")
    a(f"s_add_u32 s35, s35, {WS_HT}")
    stg(5)
    a("buffer_store_dwordx2 v[70:71], v8, s[12:15], s35 offen")
    a("buffer_store_dwordx2 v[72:73], v8, s[12:15], s35 offen offset:512")
    if KT:
        a("s_waitcnt vmcnt(0) lgkmcnt(0)")
        st(6)
        stg(6)
        st_flush()
    if 'rep2' in OPTS:
        a("s_waitcnt vmcnt(0) lgkmcnt(0)")
        a("s_barrier")
        a("s_add_u32 s92, s92, 1")
        a("s_cmp_lt_u32 s92, 2")
        a("s_cbranch_scc1 K1_REP")
    a("s_branch K1_END")
    a.label("K1_PF")
    a("s_waitcnt lgkmcnt(0)")
    if 'pfgo' in OPTS:
        srd(a, 48, 56, 57, 256)
        a("v_mov_b32 v7, 0")
        a.label("K1_PFW")
        a("buffer_load_dword v9, v7, s[48:51], 0 offen offset:128 sc1")
        a("s_waitcnt vmcnt(0)")
        a("v_readfirstlane_b32 s37, v9")
        a("s_cmp_lg_u32 s37, 0")
        a("s_cbranch_scc1 K1_PFG")
        a("s_sleep 2")
        a("s_branch K1_PFW")
        a.label("K1_PFG")
    gen_prefetch(a, 1, 0, "K1_END")
    a.label("K1_END")
    kst_end(a, 0, 256)
    a("s_endpgm")
    return name, 164, K12B_LDS
```

```python
from gen import *
from gen_k12b import cmul
OPTS = os.environ.get('GOPT', '').split(',')
C_CS = 4160
C_PART = 4 * C_CS
C_UPAD = C_PART + 24576
C_UOFF = C_UPAD + 512
C_KC = C_UOFF + 4096
C_LDS = C_KC + 3072 + 64
K12C_LDS = 3 * C_LDS
C_TT = 8 * 1088
WS_ST = WS_UT

def gen_k12c(a):
    name = "k1_kernel"
    kernel_head(a, name)
    kst_begin(a)
    KT = 'k1st' in OPTS
    ST2 = 'st2' in OPTS
    phase = ['ln']
    def st(i):
        if KT and not (ST2 and phase[0] == 'ch'): a(f"s_memrealtime s[{60+2*i}:{61+2*i}]")
    def stg(i):
        if KT and ST2: a(f"s_memrealtime s[{60+2*i}:{61+2*i}]")
    def st_flush():
        a("s_waitcnt lgkmcnt(0)")
        srd(a, 76, 6, 7, 0x4000000)
        for i in range(7): a(f"v_mov_b32 v{80+i}, s{60+2*i}")
        a("v_mov_b32 v87, s94")
        a("s_mul_i32 s75, s2, 384")
        a(f"s_lshl_b32 s74, s59, 5")
        a("s_add_u32 s75, s75, s74")
        a("s_add_u32 s75, s75, 0x2a00000")
        a("v_mov_b32 v78, 0")
        a("buffer_store_dwordx4 v[80:83], v78, s[76:79], s75 offen")
        a("buffer_store_dwordx4 v[84:87], v78, s[76:79], s75 offen offset:16")
    def touch(r0, r1, vd, T):
        srd(a, 8, 84, 85, r1 * 9216)
        t0, t1, t2 = T
        a(f"v_min_u32 v{t0}, 59, v1")
        a(f"v_mul_u32_u24 v{t1}, 52, v{t0}")
        a(f"v_lshrrev_b32 v{t1}, 9, v{t1}")
        a(f"v_mul_u32_u24 v{t2}, 10, v{t1}")
        a(f"v_sub_u32 v{t2}, v{t0}, v{t2}")
        a(f"v_mul_u32_u24 v{t1}, 9216, v{t1}")
        a(f"v_lshl_add_u32 v{t1}, v{t2}, 7, v{t1}")
        a("s_and_b32 s82, s2, 7")
        a("s_mul_i32 s82, s82, 27*171")
        a("s_lshr_b32 s82, s82, 10")
        a("s_lshl_b32 s82, s82, 8")
        a("s_sub_u32 s83, s2, 64")
        a("s_lshr_b32 s83, s83, 3")
        a("s_mul_i32 s83, s83, 12")
        a("s_add_u32 s83, s83, s59")
        a(f"s_mul_i32 s83, s83, {6*9216}")
        a("s_add_u32 s82, s82, s83")
        a(f"s_add_u32 s82, s82, {r0*9216}")
        n = -(-(r1 - r0) // (6 * 288))
        for i in range(n):
            a(f"buffer_load_dword v{vd+i}, v{t1}, s[8:11], s82 offen")
            if i < n - 1: a(f"s_add_u32 s82, s82, {288*6*9216}")
        return n
    a("s_cmp_ge_u32 s2, 256")
    a("s_cbranch_scc1 K1_END")
    a("s_load_dwordx2 s[4:5], s[0:1], 0")
    a("s_load_dwordx2 s[6:7], s[0:1], 112")
    a("s_load_dwordx8 s[16:23], s[0:1], 8")
    a("s_load_dwordx4 s[52:55], s[0:1], 40")
    a("s_load_dwordx2 s[56:57], s[0:1], 104")
    a("s_load_dwordx2 s[84:85], s[0:1], 64")
    a("v_lshrrev_b32 v2, 6, v0")
    a("v_readfirstlane_b32 s59, v2")
    a("v_and_b32 v1, 63, v0")
    if KT:
        for i in range(7): a(f"s_mov_b32 s{60+2*i}, 0")
    a("s_cmp_ge_u32 s2, 64")
    a("s_cbranch_scc1 K1_CH")
    a("s_cmp_ge_u32 s59, 8")
    a("s_cbranch_scc1 K1_LN_B")
    a("s_setprio 3")
    a("v_lshrrev_b32 v2, 4, v1")
    a("v_and_b32 v3, 15, v1")
    a("s_lshl_b32 s3, s2, 5")
    a("s_lshl_b32 s26, s59, 2")
    a("s_add_u32 s3, s3, s26")
    a("v_add_u32 v4, s3, v2")
    a("s_movk_i32 s26, 1152")
    a("v_mul_lo_u32 v5, v4, s26")
    a("v_lshl_add_u32 v5, v3, 3, v5")
    a("s_waitcnt lgkmcnt(0)")
    st(0)
    srd(a, 8, 4, 5, L * D * 2)
    for i in range(9):
        a(f"buffer_load_dwordx2 v[{10+2*i}:{11+2*i}], v5, s[8:11], 0 offen offset:{128*i}")
    srd(a, 12, 6, 7, WS_HN)
    srd(a, 48, 56, 57, 256)
    a("v_mov_b32 v6, 0")
    a("ds_write_b32 v6, v6")
    a("v_lshlrev_b32 v7, 2, v4")
    a("v_mov_b32 v8, 1")
    LNB = 'lnb' in OPTS
    if LNB:
        a("s_waitcnt lgkmcnt(0)")
    else:
        a("s_waitcnt vmcnt(0) lgkmcnt(0)")
        st(1)
    a.label("K1_LN_B")
    a("s_barrier")
    a("s_cmp_ge_u32 s59, 8")
    a("s_cbranch_scc1 K1_PF")
    if LNB:
        a("s_waitcnt vmcnt(0)")
        st(1)
    for i in range(18):
        a(f"v_lshlrev_b32 v{30+2*i}, 16, v{10+i}")
        a(f"v_and_b32 v{31+2*i}, 0xffff0000, v{10+i}")
    a("v_pk_add_f32 v[66:67], v[30:31], v[32:33]")
    a("v_pk_add_f32 v[68:69], v[34:35], v[36:37]")
    for i in range(4, 18):
        r = 66 + 2 * (i % 2)
        a(f"v_pk_add_f32 v[{r}:{r+1}], v[{r}:{r+1}], v[{30+2*i}:{31+2*i}]")
    a("v_pk_add_f32 v[66:67], v[66:67], v[68:69]")
    a("v_add_f32 v66, v66, v67")
    def red16(r):
        for m in ("quad_perm:[1,0,3,2]", "quad_perm:[2,3,0,1]", "row_half_mirror", "row_mirror"):
            a(f"v_add_f32_dpp v{r}, v{r}, v{r} {m} row_mask:0xf bank_mask:0xf")
    red16(66)
    a(f"s_mov_b32 s26, {fhex(1.0/576)}")
    a("v_mul_f32 v70, s26, v66")
    for i in range(18):
        t = 72 + 2 * (i % 4)
        r = 66 + 2 * (i % 2)
        a(f"v_pk_add_f32 v[{t}:{t+1}], v[{30+2*i}:{31+2*i}], v[70:71] op_sel:[0,0] op_sel_hi:[1,0] neg_lo:[0,1] neg_hi:[0,1]")
        if i < 2: a(f"v_pk_mul_f32 v[{r}:{r+1}], v[{t}:{t+1}], v[{t}:{t+1}]")
        else: a(f"v_pk_fma_f32 v[{r}:{r+1}], v[{t}:{t+1}], v[{t}:{t+1}], v[{r}:{r+1}]")
    a("v_pk_add_f32 v[66:67], v[66:67], v[68:69]")
    a("v_add_f32 v66, v66, v67")
    red16(66)
    a("v_mul_f32 v66, s26, v66")
    bf16_round(a, 70, 70)
    bf16_round(a, 66, 66)
    a(f"v_add_f32 v66, {fhex(1e-5)}, v66")
    bf16_round(a, 66, 66)
    a("v_sqrt_f32 v66, v66")
    bf16_round(a, 66, 66)
    a("v_lshrrev_b32 v70, 16, v70")
    a("v_or_b32 v66, v66, v70")
    st(2)
    a("s_mov_b32 exec_lo, 0x00010001")
    a("s_mov_b32 exec_hi, 0x00010001")
    a(f"s_mov_b32 s26, {WS_ST}")
    a("buffer_store_dword v66, v7, s[12:15], s26 offen sc1")
    a("s_waitcnt vmcnt(0)")
    st(3)
    a("s_mov_b64 exec, 1")
    a("ds_add_rtn_u32 v9, v6, v8")
    a("s_waitcnt lgkmcnt(0)")
    a("v_readfirstlane_b32 s26, v9")
    a("s_cmp_lg_u32 s26, 7")
    a("s_cbranch_scc1 K1_LN_D")
    a("buffer_atomic_add v8, v6, s[48:51], 0 offen sc0 sc1")
    a("s_waitcnt vmcnt(0)")
    st(4)
    a("v_readfirstlane_b32 s26, v8")
    a("s_cmp_lg_u32 s26, 63")
    a("s_cbranch_scc1 K1_LN_D")
    a("v_mov_b32 v8, 1")
    a("buffer_store_dword v8, v6, s[48:51], 0 offen offset:128 sc1")
    if KT:
        a("s_waitcnt vmcnt(0)")
        st(5)
    a.label("K1_LN_D")
    a("s_mov_b64 exec, -1")
    a("s_setprio 0")
    if KT: st_flush()
    a("s_branch K1_PF")

    a.label("K1_CH")
    phase[0] = 'ch'
    a("s_sub_u32 s3, s2, 64")
    a("s_and_b32 s26, s3, 7")
    a("s_mul_i32 s26, s26, 24")
    a("s_lshr_b32 s3, s3, 3")
    a("s_add_u32 s3, s3, s26")
    a("s_lshr_b32 s39, s59, 2")
    a("s_and_b32 s27, s59, 3")
    a("s_mul_i32 s33, s3, 3")
    a("s_add_u32 s33, s33, s39")
    a(f"s_mul_i32 s34, s39, {C_LDS}")
    a("s_movk_i32 s26, 1152")
    a("v_mul_lo_u32 v150, v0, s26")
    a("v_lshlrev_b32 v151, 1, v0")
    a("v_and_b32 v0, 255, v0")
    a("v_lshrrev_b32 v3, 4, v1")
    a("v_and_b32 v4, 15, v1")
    a("v_and_b32 v6, 127, v0")
    a("s_lshl_b32 s28, s33, 8")
    a("v_lshlrev_b32 v5, 1, v6")
    a("v_add_u32 v5, s28, v5")
    a("v_lshl_add_u32 v9, v1, 2, s28")
    a("s_lshl_b32 s44, s33, 1")
    a("v_mov_b32 v7, s44")
    a("s_mul_i32 s36, s3, 6")
    a("s_and_b32 s37, s36, 2")
    a("s_lshl_b32 s37, s37, 3")
    a("s_and_b32 s36, s36, -4")
    a(f"s_add_u32 s38, s36, {768*1152}")
    a(f"s_add_u32 s58, s36, {2*768*1152}")
    a("s_waitcnt lgkmcnt(0)")
    srd(a, 40, 52, 53, D * 2)
    a("buffer_load_ushort v14, v7, s[40:43], 0 offen")
    srd(a, 8, 16, 17, D * NM * 2)
    a("buffer_load_ushort v10, v5, s[8:11], 0 offen")
    srd(a, 28, 18, 19, D * NM * 2)
    a("buffer_load_ushort v11, v5, s[28:31], 0 offen")
    srd(a, 44, 20, 21, D * NM * 2)
    a("buffer_load_dword v24, v9, s[44:47], 0 offen")
    a("buffer_load_ushort v12, v5, s[44:47], 0 offen")
    srd(a, 48, 22, 23, D * NM * 2)
    a("buffer_load_dword v25, v9, s[48:51], 0 offen")
    a("buffer_load_ushort v13, v5, s[48:51], 0 offen")
    srd(a, 40, 54, 55, D * 2)
    a("buffer_load_ushort v160, v7, s[40:43], 0 offen")
    srd(a, 8, 4, 5, L * D * 2)
    def gathers():
        a("buffer_load_dwordx2 v[152:153], v150, s[8:11], s36 offen")
        a("buffer_load_dwordx2 v[154:155], v150, s[8:11], s38 offen")
        a("buffer_load_dwordx2 v[156:157], v150, s[8:11], s58 offen")
    srd(a, 12, 6, 7, WS_HN)
    srd(a, 48, 56, 57, 256)
    a(f"s_mov_b32 s44, {hex(LOG2E)}")
    a(f"s_mov_b32 s45, {fhex(1.4426950408889634 - 1.4426950216293335)}")
    a(f"s_mov_b32 s46, {fhex(0.6931471805599453)}")
    a(f"s_mov_b32 s47, {hex(INV2PI)}")
    a(f"s_mov_b32 s26, {hex(LOG2E | 0x80000000)}")
    a("v_lshrrev_b32 v8, 3, v6")
    a("v_mul_u32_u24 v8, 544, v8")
    a("v_bfe_u32 v9, v6, 2, 1")
    a("v_lshl_add_u32 v8, v9, 8, v8")
    a("v_and_b32 v9, 3, v6")
    a("v_lshl_add_u32 v8, v9, 2, v8")
    a("v_add_u32 v8, s34, v8")
    a("s_lshr_b32 s28, s27, 1")
    a(f"s_mul_i32 s28, s28, {2*C_TT}")
    a("v_add_u32 v8, s28, v8")
    a(f"v_add_u32 v2, {C_TT}, v8")
    a("v_lshrrev_b32 v9, 1, v3")
    a("v_mul_u32_u24 v9, 544, v9")
    a("v_and_b32 v5, 1, v3")
    a("v_lshl_add_u32 v9, v5, 8, v9")
    a("v_lshl_add_u32 v9, v4, 4, v9")
    a("v_add_u32 v9, s34, v9")
    a("s_cmp_eq_u32 s27, 1")
    a("s_cbranch_scc1 K1_KG_T1")
    a("s_cmp_eq_u32 s27, 2")
    a("s_cbranch_scc1 K1_KG_T2")
    a("v_and_b32 v100, 1, v3")
    a("v_lshlrev_b32 v100, 2, v100")
    a("v_lshrrev_b32 v101, 1, v3")
    a("v_lshl_add_u32 v100, v101, 7, v100")
    a("v_lshl_add_u32 v100, v4, 3, v100")
    for r in range(1, 4): a(f"v_add_u32 v{100+r}, {r}, v100")
    a("s_branch K1_KG_SC")
    a.label("K1_KG_T1")
    a("v_lshlrev_b32 v104, 6, v3")
    a("v_lshl_add_u32 v104, v4, 2, v104")
    a("v_add_u32 v104, 256, v104")
    a("v_lshlrev_b32 v105, 6, v3")
    a("v_lshl_add_u32 v105, v4, 1, v105")
    a("v_add_u32 v105, 256, v105")
    a("v_cmp_gt_u32 vcc, 2, v3")
    for r in range(4):
        a(f"v_add_u32 v106, {r}, v104")
        a(f"v_add_u32 v107, {32*(r>>1)+(r&1)}, v105")
        a(f"v_cndmask_b32 v{100+r}, v107, v106, vcc")
    a("s_branch K1_KG_SC")
    a.label("K1_KG_T2")
    a("v_lshlrev_b32 v100, 6, v3")
    a("v_add_u32 v100, v4, v100")
    a("v_add_u32 v100, 512, v100")
    for r in range(1, 4): a(f"v_add_u32 v{100+r}, {16*r}, v100")
    a.label("K1_KG_SC")
    for r in range(4): a(f"v_lshl_add_u32 v{140+r}, v{100+r}, 2, s34")
    GM = [o for o in OPTS if o.startswith('g=')]
    GM = GM[0][2:] if GM else 'sp'
    def gpoint(k):
        lab = a.newlabel("K1_GP")
        a(f"s_cmp_lg_u32 s39, {k}")
        a(f"s_cbranch_scc1 {lab}")
        gathers()
        a.label(lab)
    if GM == 'sp0':
        a("s_barrier")
    def static_addr():
        a("v_lshlrev_b32 v116, 3, v0")
        a("v_sub_u32 v116, 2047, v116")
        for e in range(12):
            a(f"v_subrev_u32 v{118+(e%2)}, {e}, v116")
            a(f"v_cvt_f32_i32 v{120+(e%2)}, v{118+(e%2)}")
            a(f"v_cvt_pk_bf16_f32 v{120+(e%2)}, v{120+(e%2)}, v{120+(e%2)}")
            a(f"v_and_b32 v{120+(e%2)}, 0xffff, v{120+(e%2)}")
            a(f"v_subrev_u32 v{120+(e%2)}, 17024, v{120+(e%2)}")
            a(f"v_min_i32 v{122+(e%2)}, 127, v{118+(e%2)}")
            a(f"v_max_i32 v{120+(e%2)}, v{120+(e%2)}, v{122+(e%2)}")
            if e >= 8:
                a(f"v_cmp_gt_i32 vcc, 0, v{118+(e%2)}")
                a(f"v_mov_b32 v{122+(e%2)}, 768")
                a(f"v_cndmask_b32 v{120+(e%2)}, v{120+(e%2)}, v{122+(e%2)}, vcc")
            a(f"v_lshl_add_u32 v{100+e}, v{120+(e%2)}, 2, s34")
        a("v_lshl_add_u32 v5, v0, 4, s34")
        a("v_lshlrev_b32 v23, 5, v4")
        a("v_lshl_add_u32 v23, v3, 3, v23")
        a("s_lshl_b32 s28, s27, 10")
        a("s_add_u32 s28, s28, s34")
        a("v_add_u32 v23, s28, v23")
        a("v_and_b32 v15, 3, v1")
        a(f"v_mul_u32_u24 v15, {C_CS}, v15")
        a("v_bfe_u32 v116, v1, 2, 2")
        a("v_lshl_add_u32 v15, v116, 4, v15")
        a("v_add_u32 v15, 4096, v15")
        a("v_subrev_u32 v116, 32, v1")
        a("v_lshlrev_b32 v116, 4, v116")
        a(f"v_add_u32 v116, {C_UPAD}, v116")
        a("v_cmp_gt_u32 vcc, 32, v1")
        a("v_cndmask_b32 v15, v116, v15, vcc")
        a("v_add_u32 v15, s34, v15")
        a("v_lshlrev_b32 v20, 5, v4")
        a("v_lshl_add_u32 v20, v3, 4, v20")
        a("s_lshl_b32 s28, s27, 6")
        a(f"s_sub_u32 s29, {C_UOFF-288}, s28")
        a("s_add_u32 s29, s29, s34")
        a("v_add_u32 v20, s29, v20")
        a("v_and_b32 v21, 3, v4")
        a(f"v_mul_u32_u24 v21, {C_CS}, v21")
        a("v_lshl_add_u32 v21, v3, 4, v21")
        a("v_lshrrev_b32 v116, 2, v4")
        a("v_lshlrev_b32 v116, 3, v116")
        a("v_sub_u32 v21, v21, v116")
        a("s_sub_u32 s29, 216, s28")
        a("s_add_u32 s29, s29, s34")
        a("v_add_u32 v21, s29, v21")
        a("v_lshlrev_b32 v22, 6, v4")
        a("v_lshl_add_u32 v22, v3, 4, v22")
        a(f"v_add_u32 v158, {C_LDS}, v151")
        a(f"v_add_u32 v159, {2*C_LDS}, v151")
    if GM == 'sp0':
        gpoint(0)
        static_addr()
        a("s_cmp_lg_u32 s39, 0")
        a("s_cbranch_scc1 K1_PW1")
        a("s_waitcnt vmcnt(4)")
        a("s_branch K1_PW2")
        a.label("K1_PW1")
        a("s_waitcnt vmcnt(1)")
        a.label("K1_PW2")
    else:
        static_addr()
        a("s_waitcnt vmcnt(1)")
    st(0)
    gpoint(1 if GM == 'sp0' else 0)
    a("v_lshlrev_b32 v14, 16, v14")
    exp_precise(a, 16, 14, 17, 18, 44, 45, 46)
    a("v_lshlrev_b32 v10, 16, v10")
    exp_precise(a, 19, 10, 28, 29, 44, 45, 46)
    bf16_round(a, 16, 16)
    bf16_round(a, 19, 19)
    a("v_add_f32 v17, v16, v16")
    a("v_mul_f32 v19, v19, v16")
    a("v_mul_f32 v32, s26, v19")
    a("v_lshlrev_b32 v11, 16, v11")
    a("v_mul_f32 v11, v11, v16")
    a("v_mul_f32 v33, s47, v11")
    a("v_and_b32 v24, 0x7fff7fff, v24")
    a("v_and_b32 v25, 0x7fff7fff, v25")
    a("v_lshlrev_b32 v28, 16, v24")
    a("v_lshlrev_b32 v29, 16, v25")
    a("v_max_u32 v24, v24, v25")
    a("v_max_u32 v28, v28, v29")
    a("v_and_b32 v24, 0xffff0000, v24")
    a("v_max_u32 v36, v24, v28")
    for mode in ("quad_perm:[1,0,3,2]", "quad_perm:[2,3,0,1]", "row_half_mirror", "row_mirror"):
        a(f"v_max_u32_dpp v36, v36, v36 {mode} row_mask:0xf bank_mask:0xf")
    for k, sr in enumerate((24, 25, 30, 31)): a(f"v_readlane_b32 s{sr}, v36, {16*k}")
    a("s_max_u32 s24, s24, s25")
    a("s_max_u32 s30, s30, s31")
    a("s_max_u32 s24, s24, s30")
    a("v_mul_f32 v36, s24, v17")
    a("v_frexp_exp_i32_f32 v26, v36")
    a("v_sub_u32 v31, 0, v26")
    def direct(dst, n, conj, t):
        c = fhex(float(n)) if n not in (1, 2, 4) else f"{float(n)}"
        a(f"v_mul_f32 v{t}, {c}, v32")
        a(f"v_mul_f32 v{t+1}, {c}, v33")
        a(f"v_fract_f32 v{t+1}, v{t+1}")
        a(f"v_exp_f32 v{t}, v{t}")
        a(f"v_cos_f32 v{t+2}, v{t+1}")
        a(f"v_sin_f32 v{t+3}, v{t+1}")
        a(f"v_mul_f32 v{dst}, v{t}, v{t+2}")
        a(f"v_mul_f32 v{dst+1}, {'-' if conj else ''}v{t}, v{t+3}")
    pend = {}
    cv = [0]
    def put(T, i, p):
        r = 80 + (cv[0] % 16); cv[0] += 1
        a(f"v_cvt_pk_f16_f32 v{r}, v{p}, v{p+1}")
        o = (T, i ^ 1)
        if o in pend:
            ro = pend.pop(o)
            lo, hi = (ro, r) if i & 1 else (r, ro)
            a(f"ds_write2_b32 v{8 if T == 0 else 2}, v{lo}, v{hi} offset0:{4*(i & ~1)} offset1:{4*(i | 1)}")
        else: pend[(T, i)] = r
    G2K = 2 if GM == 'sp0' else 1
    a("s_cmp_ge_u32 s27, 2")
    a("s_cbranch_scc1 K1_H1")
    direct(40, 8, False, 72)
    direct(42, 1, True, 76)
    direct(44, 128, True, 64)
    a("v_lshlrev_b32 v12, 16, v12")
    a("v_lshlrev_b32 v13, 16, v13")
    a("v_mul_f32 v12, v12, v17")
    a("v_mul_f32 v13, v13, v17")
    a("v_ldexp_f32 v46, v12, v31")
    a("v_ldexp_f32 v47, v13, v31")
    a("v_mov_b32 v52, 1.0")
    a("v_mov_b32 v53, 0")
    put(0, 0, 46); put(1, 0, 52); put(1, 1, 42); put(1, 8, 44)
    if GM == 'sp': gpoint(1)
    ecur, enx = 46, 48
    ycur, ynx = 42, 54
    for k in range(1, 16):
        if k == (3 if GM == 'sp0' else 6): gpoint(2)
        cmul(a, enx, ecur, 40, 50)
        if k <= 7:
            cmul(a, 58, ycur, 44, 60)
            if k < 7: cmul(a, ynx, ycur, 42, 62)
        put(0, k, enx)
        if k <= 7:
            put(1, 8 + k, 58)
            if k < 7: put(1, k + 1, ynx)
            ycur, ynx = ynx, (56 if ynx == 54 else 54)
        ecur, enx = enx, ecur
    assert not pend, pend
    a("s_branch K1_HJ")
    a.label("K1_H1")
    cv[0] = 0
    direct(40, 2, True, 72)
    direct(42, 128, True, 76)
    cmul(a, 44, 40, 40, 60)
    cmul(a, 48, 42, 42, 62)
    cmul(a, 46, 44, 40, 60)
    cmul(a, 50, 48, 42, 62)
    cmul(a, 52, 48, 48, 60)
    cmul(a, 54, 52, 52, 62)
    if GM == 'sp': gpoint(1)
    ys = [40, 44, 46]
    gcur, gnx = 54, 56
    put(1, 0, 54)
    bcur, bnx = 52, 64
    k2 = 1
    def g2step():
        nonlocal gcur, gnx, k2
        if k2 > 15: return
        cmul(a, gnx, gcur, 42, 58)
        put(1, k2, gnx)
        gcur, gnx = gnx, gcur
        k2 += 1
    for base, j0 in ((48, 0), (50, 4)):
        put(0, j0, base)
        for t in range(3):
            cmul(a, 66, base, ys[t], 60)
            g2step()
            put(0, j0 + 1 + t, 66)
        if j0 == 0 and GM == 'sp0': gpoint(2)
    if GM == 'sp': gpoint(2)
    for t in range(4):
        cmul(a, 66, bcur, 44, 60)
        if t < 3: cmul(a, bnx, bcur, 42, 62)
        put(0, 8 + 2 * t, bcur)
        g2step()
        put(0, 8 + 2 * t + 1, 66)
        if t < 3: bcur, bnx = bnx, (68 if bnx == 64 else 64)
    while k2 <= 15: g2step()
    assert not pend, pend
    a.label("K1_HJ")
    a("s_waitcnt lgkmcnt(0)")
    a("s_barrier")
    st(1)
    a("s_cmp_eq_u32 s27, 3")
    a("s_cbranch_scc1 K1_KG_Z")
    a(f"s_mul_i32 s28, s27, {C_TT}")
    a(f"s_add_u32 s28, s28, {C_TT}")
    a("v_add_u32 v7, s28, v9")
    AFR = 36; BFR = 68; ACCK = 128
    for ks in range(8):
        a(f"ds_read_b128 v[{AFR+4*ks}:{AFR+4*ks+3}], v7 offset:{1088*ks}")
        a(f"ds_read_b128 v[{BFR+4*ks}:{BFR+4*ks+3}], v9 offset:{1088*ks}")
    for ks in range(8):
        a(f"s_waitcnt lgkmcnt({14-2*ks})")
        acc = ACCK + 4 * (ks % 2)
        a(f"v_mfma_f32_16x16x32_f16 v[{acc}:{acc+3}], v[{AFR+4*ks}:{AFR+4*ks+3}], v[{BFR+4*ks}:{BFR+4*ks+3}], {'0' if ks < 2 else f'v[{acc}:{acc+3}]'}")
    for r in range(4):
        a(f"v_add_f32 v{ACCK+r}, v{ACCK+r}, v{ACCK+4+r}")
        a(f"v_ldexp_f32 v{ACCK+r}, v{ACCK+r}, v26")
        a(f"ds_write_b32 v{140+r}, v{ACCK+r} offset:{C_KC}")
    a("s_branch K1_KG_X")
    a.label("K1_KG_Z")
    a("v_mov_b32 v7, s34")
    a("v_mov_b32 v36, 0")
    a(f"ds_write_b32 v7, v36 offset:{C_KC + 768*4}")
    a.label("K1_KG_X")
    a("s_waitcnt vmcnt(0)")
    for k in range(3):
        lab = a.newlabel("K1_XS")
        if k == 2:
            a("s_cmp_ge_u32 s59, 8")
            a(f"s_cbranch_scc1 {lab}")
        r = 152 + 2 * k
        a(f"v_lshrrev_b64 v[{r}:{r+1}], s37, v[{r}:{r+1}]")
        a(f"ds_write_b16 v151, v{r} offset:{C_UOFF + 1536*k}")
        a(f"ds_write_b16_d16_hi v158, v{r} offset:{C_UOFF + 1536*k}")
        a(f"ds_write_b16 v159, v{r+1} offset:{C_UOFF + 1536*k}")
        if k == 2: a.label(lab)
    a("s_waitcnt lgkmcnt(0)")
    a("s_barrier")
    st(2)
    PC = 'pollc' in OPTS
    GOFF = 0 if PC else 128
    GOV = 64 if PC else 1
    a("v_mov_b32 v7, 0")
    a(f"buffer_load_dword v9, v7, s[48:51], 0 offen offset:{GOFF} sc1")
    for e in range(12):
        a(f"ds_read_b32 v{70+e}, v{100+e} offset:{C_KC}")
    a(f"ds_read_b64 v[10:11], v23 offset:{C_UOFF}")
    a(f"ds_read_b64 v[12:13], v23 offset:{C_UOFF + 512}")
    for r in range(4): a(f"v_mov_b32 v{84+r}, 0")
    a("ds_write_b128 v15, v[84:87]")
    a("s_lshl_b32 s38, s27, 11")
    a(f"s_add_u32 s38, s38, {WS_ST}")
    Dv = 40; Ev = 48; Ov = 52; Pv = 56
    a("s_waitcnt lgkmcnt(3)")
    for k in range(6):
        a(f"v_cvt_pk_bf16_f32 v{Dv+k}, v{70+2*k}, v{71+2*k}")
    if 'dumpR' in OPTS:
        srd(a, 28, 6, 7, WS_HT)
        a("s_mul_i32 s36, s33, %d" % RSTRIDE)
        a(f"s_add_u32 s36, s36, {WS_R}")
        a("v_lshlrev_b32 v7, 4, v0")
        a("buffer_store_dwordx4 v[40:43], v7, s[28:31], s36 offen")
        a("v_mov_b32 v7, 0")
    for k in range(4): a(f"v_mov_b32 v{Ev+k}, v{Dv+1+k}")
    for k in range(4): a(f"v_alignbit_b32 v{Ov+k}, v{Dv+k+1}, v{Dv+k}, 16")
    for k in range(4): a(f"v_alignbit_b32 v{Pv+k}, v{Dv+k+2}, v{Dv+k+1}, 16")
    src = {3: Dv, 1: Ev, 2: Ov, 0: Pv}
    def copies():
        for r in range(4):
            a(f"ds_write_b128 v5, v[{src[r]}:{src[r]+3}] offset:{r*C_CS}")
    CF = 'cpfirst' in OPTS
    if CF: copies()
    a("s_waitcnt vmcnt(0)")
    a("v_readfirstlane_b32 s36, v9")
    a(f"s_cmp_lt_u32 s36, {GOV}")
    a("s_cbranch_scc1 K1_NG1")
    a("buffer_load_dwordx4 v[24:27], v22, s[12:15], s38 offen sc1")
    a("buffer_load_dwordx4 v[28:31], v22, s[12:15], s38 offen offset:1024 sc1")
    a("s_branch K1_NG2")
    a.label("K1_NG1")
    a(f"buffer_load_dword v9, v7, s[48:51], 0 offen offset:{GOFF} sc1")
    a.label("K1_NG2")
    if not CF: copies()
    st(3)
    ACC = 128
    for r in range(32): a(f"v_mov_b32 v{ACC+r}, 0")
    a(f"s_cmp_ge_u32 s36, {GOV}")
    a("s_cbranch_scc1 K1_GO2")
    a.label("K1_POLL")
    a("s_waitcnt vmcnt(0)")
    a("v_readfirstlane_b32 s36, v9")
    a(f"s_cmp_ge_u32 s36, {GOV}")
    a("s_cbranch_scc1 K1_GO")
    a("s_sleep 1")
    a(f"buffer_load_dword v9, v7, s[48:51], 0 offen offset:{GOFF} sc1")
    a("s_branch K1_POLL")
    a.label("K1_GO")
    a("buffer_load_dwordx4 v[24:27], v22, s[12:15], s38 offen sc1")
    a("buffer_load_dwordx4 v[28:31], v22, s[12:15], s38 offen offset:1024 sc1")
    a.label("K1_GO2")
    for tt in range(2):
        X = 32; M = 36; R = 40
        xp = 10 + 2 * tt; S = 24 + 4 * tt
        a(f"v_lshlrev_b32 v{X}, 16, v{xp}")
        a(f"v_and_b32 v{X+1}, 0xffff0000, v{xp}")
        a(f"v_lshlrev_b32 v{X+2}, 16, v{xp+1}")
        a(f"v_and_b32 v{X+3}, 0xffff0000, v{xp+1}")
        a(f"s_waitcnt vmcnt({1-tt})")
        if tt == 0: st(4)
        for k in range(4):
            a(f"v_and_b32 v{R+k}, 0xffff0000, v{S+k}")
            a(f"v_lshlrev_b32 v{M+k}, 16, v{S+k}")
            a(f"v_rcp_f32 v{R+k}, v{R+k}")
            a(f"v_sub_f32 v{X+k}, v{X+k}, v{M+k}")
        a(f"v_cvt_pk_bf16_f32 v{M}, v{X}, v{X+1}")
        a(f"v_cvt_pk_bf16_f32 v{M+1}, v{X+2}, v{X+3}")
        a(f"v_lshlrev_b32 v{X}, 16, v{M}")
        a(f"v_and_b32 v{X+1}, 0xffff0000, v{M}")
        a(f"v_lshlrev_b32 v{X+2}, 16, v{M+1}")
        a(f"v_and_b32 v{X+3}, 0xffff0000, v{M+1}")
        for k in range(4): a(f"v_mul_f32 v{X+k}, v{X+k}, v{R+k}")
        a(f"v_cvt_pk_bf16_f32 v{16+2*tt}, v{X}, v{X+1}")
        a(f"v_cvt_pk_bf16_f32 v{17+2*tt}, v{X+2}, v{X+3}")
        a(f"ds_write_b64 v23, v[{16+2*tt}:{17+2*tt}] offset:{C_UOFF + 512*tt}")
    a("v_lshl_add_u32 v5, v1, 4, s34")
    a("s_waitcnt lgkmcnt(0)")
    a("s_barrier")
    st(5)
    stg(0)
    ITX = [o for o in OPTS if o.startswith('itx=')]
    if ITX: touch(*(int(x) for x in ITX[0][4:].split('.')), 161, (24, 25, 26))
    ICP = 'icp' in OPTS
    IT8 = [o for o in OPTS if o.startswith('it8=')]
    def wave_in_xcd(sd):
        a(f"s_sub_u32 s{sd}, s2, 64")
        a(f"s_lshr_b32 s{sd}, s{sd}, 3")
        a(f"s_mul_i32 s{sd}, s{sd}, 12")
        a(f"s_add_u32 s{sd}, s{sd}, s59")
    if ICP or IT8:
        srd(a, 8, 84, 85, 2048 * 9216)
        a("s_and_b32 s80, s2, 7")
        wave_in_xcd(81)
    if ICP:
        a("s_mul_i32 s82, s80, 576")
        a("s_lshl_b32 s83, s81, 1")
        a("s_add_u32 s82, s82, s83")
        a("s_lshr_b32 s83, s82, 9")
        a("s_and_b32 s82, s82, 511")
        a("s_lshl_b32 s82, s82, 2")
        a("v_lshrrev_b32 v2, 4, v1")
        a("v_and_b32 v6, 15, v1")
        a("v_lshlrev_b32 v6, 4, v6")
        a("v_mul_u32_u24 v7, 9216, v2")
        a("v_add_u32 v7, v7, v6")
        a(f"v_mul_u32_u24 v2, {W1C_PITCH}, v2")
        a("v_add_u32 v2, v2, v6")
        a("s_mul_i32 s86, s82, 9216")
        a("s_lshl_b32 s87, s83, 10")
        a("s_add_u32 s86, s86, s87")
        a("s_add_u32 s86, s86, 256")
        a("buffer_load_dwordx4 v[24:27], v7, s[8:11], s86 offen")
        a(f"s_add_u32 s86, s86, {4*9216}")
        a("buffer_load_dwordx4 v[28:31], v7, s[8:11], s86 offen")
        a(f"s_mul_i32 s86, s82, {W1C_PITCH}")
        a("s_lshl_b32 s87, s83, 9")
        a("s_add_u32 s86, s86, s87")
        a(f"s_add_u32 s86, s86, {WS_W1C}")
    if IT8:
        r0, r1 = (int(x) for x in IT8[0][4:].split('.'))
        t8_addr(a, 80, 1, 6, 7, 82, 83)
        a(f"s_mul_i32 s82, s81, {8*9216}")
        a(f"s_add_u32 s82, s82, {r0*9216}")
        n8 = -(-(r1 - r0) // (8 * 288))
        a("s_mov_b32 s87, 0")
        for i in range(n8):
            lab = a.newlabel("K1_T8")
            a(f"s_cmp_ge_u32 s82, {r1*9216}")
            a(f"s_cbranch_scc1 {lab}")
            a(f"buffer_load_dword v{161+i}, v6, s[8:11], s82 offen")
            a("s_add_u32 s87, s87, 1")
            a.label(lab)
            if i < n8 - 1: a(f"s_add_u32 s82, s82, {288*8*9216}")
    BF = 32; AF = 96
    def lda(i, h): a(f"ds_read_b64 v[{AF+4*(i%8)+2*h}:{AF+4*(i%8)+2*h+1}], v21 offset:{256*(15-i)+8*h}")
    def ldb(z): a(f"ds_read_b128 v[{BF+4*z}:{BF+4*z+3}], v20 offset:{256*z}")
    order = []
    for n in range(16): order += [('a', 15 - n, 0), ('a', 15 - n, 1), ('b', n, 0)]
    issued = 0
    def issue(n):
        nonlocal issued
        for _ in range(n):
            if issued >= len(order): return
            k, x, h = order[issued]
            if k == 'a': lda(x, h)
            else: ldb(x)
            issued += 1
    issue(15)
    for n in range(16):
        i = 15 - n
        a(f"s_waitcnt lgkmcnt({issued - (3*n + 3)})")
        af = AF + 4 * (i % 8)
        for t in range(7, (i >> 1) - 1, -1):
            z = 2 * t - i
            if z < -1: continue
            a(f"v_mfma_f32_16x16x32_bf16 v[{ACC+4*t}:{ACC+4*t+3}], v[{af}:{af+3}], v[{BF+4*(z+1)}:{BF+4*(z+1)+3}], v[{ACC+4*t}:{ACC+4*t+3}]")
        issue(3)
    stg(1)
    for o in range(4):
        lab = a.newlabel("K2_W")
        a(f"s_cmp_eq_u32 s27, {o}")
        a(f"s_cbranch_scc1 {lab}")
        a(f"s_sub_u32 s36, s27, {o+1}")
        a("s_and_b32 s36, s36, 3")
        a("s_lshl_b32 s36, s36, 10")
        a("v_add_u32 v22, s36, v5")
        for t in (2*o, 2*o+1):
            a(f"ds_write_b128 v22, v[{ACC+4*t}:{ACC+4*t+3}] offset:{C_PART + 3072*t}")
        a.label(lab)
    for w in range(4):
        lab = a.newlabel("K2_M")
        a(f"s_cmp_lg_u32 s27, {w}")
        a(f"s_cbranch_scc1 {lab}")
        for r in range(8): a(f"v_mov_b32 v{96+r}, v{ACC+8*w+r}")
        a.label(lab)
    a("v_subrev_u32 v8, s34, v23")
    a("s_mul_i32 s37, s27, 6144")
    a("v_add_u32 v22, s37, v5")
    a("v_lshlrev_b32 v14, 16, v160")
    a("s_waitcnt lgkmcnt(0)")
    stg(2)
    a("s_barrier")
    stg(3)
    for k in range(3):
        a(f"ds_read_b128 v[{32+8*k}:{35+8*k}], v22 offset:{C_PART + 1024*k}")
        a(f"ds_read_b128 v[{36+8*k}:{39+8*k}], v22 offset:{C_PART + 3072 + 1024*k}")
    a("s_waitcnt lgkmcnt(0)")
    stg(4)
    for r in range(8):
        a(f"v_add_f32 v{96+r}, v{96+r}, v{32+r}")
        a(f"v_add_f32 v{40+r}, v{40+r}, v{48+r}")
        a(f"v_add_f32 v{96+r}, v{96+r}, v{40+r}")
    for tt in range(2):
        y = 96 + 4 * tt; u = 16 + 2 * tt; x = 10 + 2 * tt
        a(f"v_cvt_pk_bf16_f32 v60, v{y}, v{y+1}")
        a(f"v_cvt_pk_bf16_f32 v61, v{y+2}, v{y+3}")
        a(f"v_lshlrev_b32 v62, 16, v{u}")
        a(f"v_and_b32 v63, 0xffff0000, v{u}")
        a(f"v_lshlrev_b32 v64, 16, v{u+1}")
        a(f"v_and_b32 v65, 0xffff0000, v{u+1}")
        for k in range(4): a(f"v_mul_f32 v{62+k}, v{62+k}, v14")
        a(f"v_cvt_pk_bf16_f32 v66, v62, v63")
        a(f"v_cvt_pk_bf16_f32 v67, v64, v65")
        for k in range(2):
            a(f"v_lshlrev_b32 v62, 16, v{60+k}")
            a(f"v_lshlrev_b32 v63, 16, v{66+k}")
            a(f"v_and_b32 v64, 0xffff0000, v{60+k}")
            a(f"v_and_b32 v65, 0xffff0000, v{66+k}")
            a(f"v_add_f32 v62, v62, v63")
            a(f"v_add_f32 v64, v64, v65")
            a(f"v_cvt_pk_bf16_f32 v{68+k}, v62, v64")
            a(f"v_lshlrev_b32 v62, 16, v{68+k}")
            a(f"v_lshlrev_b32 v63, 16, v{x+k}")
            a(f"v_and_b32 v64, 0xffff0000, v{68+k}")
            a(f"v_and_b32 v65, 0xffff0000, v{x+k}")
            a(f"v_add_f32 v62, v62, v63")
            a(f"v_add_f32 v64, v64, v65")
            a(f"v_cvt_pk_bf16_f32 v{70+2*tt+k}, v62, v64")
    a("s_lshl_b32 s35, s33, 12")
    a(f"s_add_u32 s35, s35, {WS_HT}")
    stg(5)
    a("buffer_store_dwordx2 v[70:71], v8, s[12:15], s35 offen")
    a("buffer_store_dwordx2 v[72:73], v8, s[12:15], s35 offen offset:512")
    if ICP:
        srd(a, 8, 6, 7, WS_W1C + 2048 * W1C_PITCH)
        if IT8:
            assert not ITX
            for c in range(n8, -1, -1):
                if c > 0:
                    lab = a.newlabel("K1_CW")
                    a(f"s_cmp_lg_u32 s87, {c}")
                    a(f"s_cbranch_scc1 {lab}")
                    a(f"s_waitcnt vmcnt({2+c})")
                    a("s_branch K1_CWD")
                    a.label(lab)
                else:
                    a("s_waitcnt vmcnt(2)")
            a.label("K1_CWD")
        else:
            assert not ITX
            a("s_waitcnt vmcnt(2)")
        a("buffer_store_dwordx4 v[24:27], v2, s[8:11], s86 offen")
        a(f"s_add_u32 s86, s86, {4*W1C_PITCH}")
        a("buffer_store_dwordx4 v[28:31], v2, s[8:11], s86 offen")
    if KT:
        a("s_waitcnt vmcnt(0) lgkmcnt(0)")
        st(6)
        stg(6)
        st_flush()
    a("s_branch K1_END")
    a.label("K1_PF")
    a("s_waitcnt lgkmcnt(0)")
    if 'pfwg' in OPTS:
        a("v_mov_b32 v7, 0")
        a.label("K1_PFW")
        a("ds_read_b32 v9, v7")
        a("s_waitcnt lgkmcnt(0)")
        a("v_readfirstlane_b32 s37, v9")
        a("s_cmp_ge_u32 s37, 8")
        a("s_cbranch_scc1 K1_PFG")
        a("s_sleep 2")
        a("s_branch K1_PFW")
        a.label("K1_PFG")
    elif 'pfgo' in OPTS:
        srd(a, 48, 56, 57, 256)
        a("v_mov_b32 v7, 0")
        a.label("K1_PFW")
        a("buffer_load_dword v9, v7, s[48:51], 0 offen offset:128 sc1")
        a("s_waitcnt vmcnt(0)")
        a("v_readfirstlane_b32 s37, v9")
        a("s_cmp_lg_u32 s37, 0")
        a("s_cbranch_scc1 K1_PFG")
        a("s_sleep 2")
        a("s_branch K1_PFW")
        a.label("K1_PFG")
    gen_prefetch(a, 1, 0, "K1_END")
    a.label("K1_END")
    kst_end(a, 0, 256)
    a("s_endpgm")
    return name, 164, K12C_LDS
```

```python
from gen import *

def gen_k2(a):
    name = "k2_kernel"
    kernel_head(a, name)
    CS = 4160
    UPAD = 8 * CS
    UOFF = UPAD + 512
    kst_begin(a)
    a("s_cmp_ge_u32 s2, 576")
    a("s_cbranch_scc1 K2_PF")
    a("s_load_dwordx2 s[6:7], s[0:1], 112")
    a("s_load_dwordx2 s[4:5], s[0:1], 48")
    it_load_ptrs(a, 2)
    a("v_and_b32 v1, 63, v0")
    a("v_lshrrev_b32 v2, 6, v0")
    a("v_readfirstlane_b32 s27, v2")
    a("v_lshrrev_b32 v3, 4, v1")
    a("v_and_b32 v4, 15, v1")
    a("v_lshlrev_b32 v5, 4, v1")
    a("s_waitcnt lgkmcnt(0)")
    srd(a, 8, 6, 7, WS_HN)
    srd(a, 12, 4, 5, D * 2)
    a("s_lshl_b32 s28, s27, 2")
    a("s_sub_u32 s28, 12, s28")
    a("v_add_u32 v6, s28, v5")
    a(f"v_add_u32 v7, {ROFF}, v6")
    a(f"s_mul_i32 s29, s2, {RSTRIDE}")
    a(f"s_add_u32 s29, s29, {WS_R}")
    a(f"s_mul_i32 s30, s27, {2*CS}")
    a("s_mov_b32 m0, s30")
    for q in range(4):
        a(f"buffer_load_dwordx4 v7, s[8:11], s29 offen offset:{1024*q} lds")
    a(f"s_add_u32 s30, s30, {CS}")
    a("s_mov_b32 m0, s30")
    for q in range(4):
        a(f"buffer_load_dwordx4 v6, s[8:11], s29 offen offset:{1024*q} lds")
    a("s_lshl_b32 s31, s27, 10")
    a(f"s_add_u32 s30, s31, {UOFF}")
    a("s_mov_b32 m0, s30")
    a("s_lshl_b32 s32, s2, 12")
    a("s_add_u32 s33, s32, s31")
    a(f"s_add_u32 s33, s33, {WS_UT}")
    a("buffer_load_dwordx4 v5, s[8:11], s33 offen lds")
    a("v_lshlrev_b32 v8, 5, v4")
    a("v_lshl_add_u32 v8, v3, 3, v8")
    a("s_lshl_b32 s34, s27, 10")
    a("s_add_u32 s34, s34, s32")
    a(f"s_add_u32 s35, s34, {WS_XT}")
    a("buffer_load_dwordx2 v[10:11], v8, s[8:11], s35 offen")
    a("buffer_load_dwordx2 v[12:13], v8, s[8:11], s35 offen offset:512")
    a("s_lshl_b32 s36, s2, 1")
    a("v_mov_b32 v9, s36")
    a("buffer_load_ushort v14, v9, s[12:15], 0 offen")
    a("v_lshrrev_b32 v15, 2, v1")
    a(f"s_movk_i32 s37, {CS}")
    a("v_mul_lo_u32 v15, v15, s37")
    a("v_and_b32 v16, 3, v1")
    a("v_lshl_add_u32 v15, v16, 4, v15")
    a("v_add_u32 v15, 4096, v15")
    a("v_subrev_u32 v16, 32, v1")
    a("v_lshlrev_b32 v16, 4, v16")
    a(f"v_add_u32 v16, {UPAD}, v16")
    a("v_cmp_gt_u32 vcc, 32, v1")
    a("v_cndmask_b32 v15, v16, v15, vcc")
    for r in range(4): a(f"v_mov_b32 v{16+r}, 0")
    a("ds_write_b128 v15, v[16:19]")
    a("v_lshlrev_b32 v20, 5, v4")
    a("v_lshl_add_u32 v20, v3, 4, v20")
    a("s_lshl_b32 s37, s27, 6")
    a(f"s_sub_u32 s38, {UOFF-288}, s37")
    a("v_add_u32 v20, s38, v20")
    a("v_and_b32 v21, 7, v4")
    a(f"s_movk_i32 s39, {CS}")
    a("v_mul_lo_u32 v21, v21, s39")
    a("v_lshl_add_u32 v21, v3, 4, v21")
    a("v_lshrrev_b32 v22, 3, v4")
    a("v_lshlrev_b32 v22, 4, v22")
    a("v_sub_u32 v21, v21, v22")
    a("s_sub_u32 s38, 208, s37")
    a("v_add_u32 v21, s38, v21")
    ACC = 128
    for r in range(32): a(f"v_mov_b32 v{ACC+r}, 0")
    a("s_waitcnt vmcnt(0) lgkmcnt(0)")
    a("s_barrier")
    a("s_lshl_b32 s71, s2, 2")
    a("s_add_u32 s71, s71, s27")
    inline_touch(a, 2, 71, 2304, 1, 15, 16)
    BF = 32
    for z in range(16):
        a(f"ds_read_b128 v[{BF+4*z}:{BF+4*z+3}], v20 offset:{256*z}")
    AF = 96
    for i in range(8):
        a(f"ds_read_b128 v[{AF+4*i}:{AF+4*i+3}], v21 offset:{256*(15-i)}")
    for i in range(16):
        a(f"s_waitcnt lgkmcnt({7 if i < 8 else 15-i})")
        af = AF + 4 * (i % 8)
        for t in range(i >> 1, 8):
            z = 2 * t - i
            if z < -1: continue
            a(f"v_mfma_f32_16x16x32_bf16 v[{ACC+4*t}:{ACC+4*t+3}], v[{af}:{af+3}], v[{BF+4*(z+1)}:{BF+4*(z+1)+3}], v[{ACC+4*t}:{ACC+4*t+3}]")
        if i < 8:
            a(f"ds_read_b128 v[{af}:{af+3}], v21 offset:{256*(15-(i+8))}")
    a("s_barrier")
    a("s_lshl_b32 s37, s27, 13")
    a("v_add_u32 v22, s37, v5")
    for w in range(4):
        lab = a.newlabel("K2_W")
        a(f"s_cmp_eq_u32 s27, {w}")
        a(f"s_cbranch_scc1 {lab}")
        for t in (2*w, 2*w+1):
            a(f"ds_write_b128 v22, v[{ACC+4*t}:{ACC+4*t+3}] offset:{1024*t}")
        a.label(lab)
    for w in range(4):
        lab = a.newlabel("K2_M")
        a(f"s_cmp_lg_u32 s27, {w}")
        a(f"s_cbranch_scc1 {lab}")
        for r in range(8): a(f"v_mov_b32 v{24+r}, v{ACC+8*w+r}")
        a.label(lab)
    a("s_waitcnt lgkmcnt(0)")
    a("s_barrier")
    a("s_lshl_b32 s37, s27, 11")
    a("v_add_u32 v22, s37, v5")
    for k in range(1, 4):
        a(f"s_add_u32 s38, s27, {k}")
        a("s_and_b32 s38, s38, 3")
        a("s_lshl_b32 s38, s38, 13")
        a(f"v_add_u32 v23, s38, v22")
        a(f"ds_read_b128 v[{32+8*(k-1)}:{35+8*(k-1)}], v23")
        a(f"ds_read_b128 v[{36+8*(k-1)}:{39+8*(k-1)}], v23 offset:1024")
    a("s_lshl_b32 s37, s27, 10")
    a(f"s_add_u32 s37, s37, {UOFF}")
    a("v_add_u32 v23, s37, v8")
    a("ds_read_b64 v[56:57], v23")
    a("ds_read_b64 v[58:59], v23 offset:512")
    a("v_lshlrev_b32 v14, 16, v14")
    a("s_waitcnt lgkmcnt(0)")
    for r in range(8):
        a(f"v_add_f32 v{24+r}, v{24+r}, v{32+r}")
        a(f"v_add_f32 v{40+r}, v{40+r}, v{48+r}")
        a(f"v_add_f32 v{24+r}, v{24+r}, v{40+r}")
    for tt in range(2):
        y = 24 + 4 * tt; u = 56 + 2 * tt; x = 10 + 2 * tt
        a(f"v_cvt_pk_bf16_f32 v60, v{y}, v{y+1}")
        a(f"v_cvt_pk_bf16_f32 v61, v{y+2}, v{y+3}")
        a(f"v_lshlrev_b32 v62, 16, v{u}")
        a(f"v_and_b32 v63, 0xffff0000, v{u}")
        a(f"v_lshlrev_b32 v64, 16, v{u+1}")
        a(f"v_and_b32 v65, 0xffff0000, v{u+1}")
        for k in range(4): a(f"v_mul_f32 v{62+k}, v{62+k}, v14")
        a(f"v_cvt_pk_bf16_f32 v66, v62, v63")
        a(f"v_cvt_pk_bf16_f32 v67, v64, v65")
        for k in range(2):
            a(f"v_lshlrev_b32 v62, 16, v{60+k}")
            a(f"v_lshlrev_b32 v63, 16, v{66+k}")
            a(f"v_and_b32 v64, 0xffff0000, v{60+k}")
            a(f"v_and_b32 v65, 0xffff0000, v{66+k}")
            a(f"v_add_f32 v62, v62, v63")
            a(f"v_add_f32 v64, v64, v65")
            a(f"v_cvt_pk_bf16_f32 v{68+k}, v62, v64")
            a(f"v_lshlrev_b32 v62, 16, v{68+k}")
            a(f"v_lshlrev_b32 v63, 16, v{x+k}")
            a(f"v_and_b32 v64, 0xffff0000, v{68+k}")
            a(f"v_and_b32 v65, 0xffff0000, v{x+k}")
            a(f"v_add_f32 v62, v62, v63")
            a(f"v_add_f32 v64, v64, v65")
            a(f"v_cvt_pk_bf16_f32 v{70+2*tt+k}, v62, v64")
    a(f"s_add_u32 s35, s34, {WS_HT}")
    a("buffer_store_dwordx2 v[70:71], v8, s[8:11], s35 offen")
    a("buffer_store_dwordx2 v[72:73], v8, s[8:11], s35 offen offset:512")
    a("s_branch K2_END")
    a.label("K2_PF")
    gen_prefetch(a, 2, 576, "K2_END")
    a.label("K2_END")
    kst_end(a, 1, 576 + PF[2].nwg)
    a("s_endpgm")
    return name, 160, UOFF + 4096

K3_NWG = 256
def gen_k3(a):
    name = "k3_kernel"
    kernel_head(a, name)
    kst_begin(a)
    NG3 = K3_NWG + PF[3].nwg
    a(f"s_cmp_ge_u32 s2, {NG3}")
    a("s_cbranch_scc1 K3_END")
    if not DYN:
        a(f"s_cmp_ge_u32 s2, {K3_NWG}")
        a("s_cbranch_scc1 K3_PF")
    a("s_load_dwordx2 s[6:7], s[0:1], 112")
    it_load_ptrs(a, 3)
    if DYN:
        a("v_lshrrev_b32 v2, 6, v0")
        a("v_readfirstlane_b32 s27, v2")
        a("s_waitcnt lgkmcnt(0)")
        dyn_assign(a, 2, NG3 // 8, 1024, 27)
        a(f"s_cmp_ge_u32 s2, {K3_NWG}")
        a("s_cbranch_scc1 K3_PF")
    a("s_and_b32 s3, s2, 7")
    a("s_lshl_b32 s3, s3, 5")
    a("s_lshr_b32 s4, s2, 3")
    a("s_add_u32 s3, s3, s4")
    a("v_and_b32 v1, 63, v0")
    a("v_lshlrev_b32 v4, 12, v0")
    a("s_lshl_b32 s28, s3, 4")
    a(f"s_add_u32 s28, s28, {WS_HT}")
    a("v_and_b32 v5, 7, v1")
    a("v_lshlrev_b32 v5, 1, v5")
    a("v_mov_b32 v6, 0")
    K3ST = 'k3st' in os.environ.get('GOPT', '').split(',')
    def st(i):
        if K3ST:
            a(f"s_memrealtime s[{60+2*i}:{61+2*i}]")
    a("s_waitcnt lgkmcnt(0)")
    st(0)
    srd(a, 8, 6, 7, WS_G)
    for i in range(3):
        a(f"s_add_u32 s29, s28, {i*192*4096}")
        a(f"buffer_load_dwordx4 v[{10+4*i}:{13+4*i}], v4, s[8:11], s29 offen")
    a("buffer_load_dwordx4 v[22:25], v6, s[8:11], s28 offen")
    a("buffer_load_ushort v26, v5, s[8:11], s28 offen")
    a("v_lshrrev_b32 v7, 4, v0")
    a("v_cmp_le_u32 vcc, 6, v7")
    a("v_cndmask_b32 v8, 0, 1, vcc")
    a("v_mul_u32_u24 v9, 6, v8")
    a("v_sub_u32 v7, v7, v9")
    a("v_cmp_le_u32 vcc, 3, v7")
    a("v_addc_co_u32 v7, vcc, 0, v7, vcc")
    a(f"v_mul_u32_u24 v8, {2*ABLK}, v8")
    a("v_lshl_add_u32 v8, v7, 7, v8")
    a("v_and_b32 v7, 7, v0")
    a("v_lshl_add_u32 v8, v7, 4, v8")
    a("v_bfe_u32 v7, v0, 3, 1")
    a("v_lshl_add_u32 v8, v7, 10, v8")
    a("s_lshr_b32 s30, s3, 3")
    a(f"s_mul_i32 s30, s30, {12*ABLK}")
    a("s_bfe_u32 s31, s3, 0x10002")
    a(f"s_mul_i32 s31, s31, {ABLK}")
    a("s_add_u32 s30, s30, s31")
    a("s_and_b32 s31, s3, 3")
    a("s_lshl_b32 s31, s31, 11")
    a("s_add_u32 s30, s30, s31")
    a(f"s_add_u32 s30, s30, {WS_HN}")
    a(f"s_mov_b32 s26, {fhex(1.0/576)}")
    a("v_lshrrev_b32 v9, 4, v0")
    a("v_lshlrev_b32 v9, 6, v9")
    a("v_and_b32 v27, 15, v1")
    a("v_lshlrev_b32 v27, 2, v27")
    a("s_waitcnt vmcnt(0)")
    st(1)
    if IT[3]:
        a("v_lshrrev_b32 v28, 6, v0")
        a("v_readfirstlane_b32 s71, v28")
        a("s_mul_i32 s70, s2, 3")
        a("s_add_u32 s71, s71, s70")
        inline_touch(a, 3, 71, 768, 1, 28, 29)
    X = 32
    for i in range(4):
        for k in range(4):
            a(f"v_lshlrev_b32 v{X+8*i+2*k}, 16, v{10+4*i+k}")
            a(f"v_and_b32 v{X+8*i+2*k+1}, 0xffff0000, v{10+4*i+k}")
    a("v_lshlrev_b32 v26, 16, v26")
    S = 64
    for i in range(3):
        for e in range(8):
            a(f"v_sub_f32 v{80+8*i+e}, v{X+8*i+e}, v{56+e}")
    for e in range(8):
        a(f"v_add_f32 v{S+e}, v{80+e}, v{88+e}")
        a(f"v_mul_f32 v{S+8+e}, v{80+e}, v{80+e}")
    for e in range(8):
        a(f"v_add_f32 v{S+e}, v{S+e}, v{96+e}")
        a(f"v_fmac_f32 v{S+8+e}, v{88+e}, v{88+e}")
    for e in range(8):
        a(f"v_fmac_f32 v{S+8+e}, v{96+e}, v{96+e}")
    for mode in ("quad_perm:[1,0,3,2]", "quad_perm:[2,3,0,1]", "row_half_mirror", "row_mirror"):
        for e in range(16):
            a(f"v_add_f32_dpp v{S+e}, v{S+e}, v{S+e} {mode} row_mask:0xf bank_mask:0xf")
    a("v_and_b32 v28, 15, v1")
    a("v_cmp_eq_u32 vcc, 0, v28")
    a("s_and_saveexec_b64 s[32:33], vcc")
    for k in range(4):
        a(f"ds_write_b128 v9, v[{S+4*k}:{S+4*k+3}] offset:{16*k}")
    a("s_mov_b64 exec, s[32:33]")
    a("s_waitcnt lgkmcnt(0)")
    a("s_barrier")
    st(2)
    for r in range(12):
        a(f"ds_read_b32 v{80+r}, v27 offset:{64*r}")
    a("s_waitcnt lgkmcnt(0)")
    for k in range(6): a(f"v_add_f32 v{80+k}, v{80+k}, v{86+k}")
    for k in range(3): a(f"v_add_f32 v{80+k}, v{80+k}, v{83+k}")
    a("v_add_f32 v80, v80, v81")
    a("v_add_f32 v80, v80, v82")
    a("v_mov_b32_dpp v81, v80 row_ror:8 row_mask:0xf bank_mask:0xf")
    a("v_and_b32 v28, 8, v1")
    a("v_cmp_eq_u32 vcc, 0, v28")
    a("v_cndmask_b32 v82, v81, v80, vcc")
    a("v_cndmask_b32 v83, v80, v81, vcc")
    a("v_mul_f32 v82, s26, v82")
    a("v_mul_f32 v83, s26, v83")
    a("v_fma_f32 v83, -v82, v82, v83")
    a("v_max_f32 v83, 0, v83")
    a("v_add_f32 v82, v82, v26")
    bf16_round(a, 82, 82)
    bf16_round(a, 83, 83)
    a(f"v_add_f32 v83, {fhex(1e-5)}, v83")
    bf16_round(a, 83, 83)
    a("v_sqrt_f32 v83, v83")
    bf16_round(a, 83, 83)
    a("v_rcp_f32 v83, v83")
    for e in range(8):
        a(f"v_readlane_b32 s{40+e}, v82, {e}")
        a(f"v_readlane_b32 s{48+e}, v83, {e}")
    for i in range(3):
        for k in range(4):
            x0 = X + 8*i + 2*k; x1 = x0 + 1
            a(f"v_subrev_f32 v{x0}, s{40+2*k}, v{x0}")
            a(f"v_subrev_f32 v{x1}, s{41+2*k}, v{x1}")
            a(f"v_cvt_pk_bf16_f32 v{84+k}, v{x0}, v{x1}")
        for k in range(4):
            x0 = X + 8*i + 2*k; x1 = x0 + 1
            a(f"v_lshlrev_b32 v{x0}, 16, v{84+k}")
            a(f"v_and_b32 v{x1}, 0xffff0000, v{84+k}")
        for k in range(4):
            x0 = X + 8*i + 2*k; x1 = x0 + 1
            a(f"v_mul_f32 v{x0}, s{48+2*k}, v{x0}")
            a(f"v_mul_f32 v{x1}, s{49+2*k}, v{x1}")
            a(f"v_cvt_pk_bf16_f32 v{10+4*i+k}, v{x0}, v{x1}")
        a(f"s_add_u32 s31, s30, {i*2*2*ABLK}")
        a(f"buffer_store_dwordx4 v[{10+4*i}:{13+4*i}], v8, s[8:11], s31 offen")
    if K3ST:
        st(3)
        a("s_waitcnt vmcnt(0)")
        st(4)
        a("s_waitcnt lgkmcnt(0)")
        srd(a, 8, 6, 7, 0x4000000)
        for i in range(5): a(f"v_mov_b32 v{10+i}, s{60+2*i}")
        a("v_mov_b32 v15, s94")
        a("v_mov_b32 v16, 0"); a("v_mov_b32 v17, 0")
        a("s_lshl_b32 s31, s2, 5")
        a("s_add_u32 s31, s31, 0x2800000")
        a("v_mov_b32 v6, 0")
        a("s_mov_b64 exec, 1")
        a("v_readfirstlane_b32 s32, v0")
        a("s_cmp_lg_u32 s32, 0")
        a("s_cbranch_scc1 K3_END")
        a("buffer_store_dwordx4 v[10:13], v6, s[8:11], s31 offen")
        a("buffer_store_dwordx4 v[14:17], v6, s[8:11], s31 offen offset:16")
    a("s_branch K3_END")
    a.label("K3_PF")
    gen_prefetch(a, 3, K3_NWG, "K3_END")
    a.label("K3_END")
    kst_end(a, 2, K3_NWG + PF[3].nwg)
    a("s_endpgm")
    return name, 104, 1088
```

```python
from gen import *
from gen_k2 import *
from gen_gemm import *
from gen_k12 import *
from gen_k12b import *
from gen_k12c import *
def main():
    import sys
    if 'fuse3' in os.environ.get('GOPT', '').split(','):
        launches = [("k1_kernel", 256, 768, K12C_LDS), ("k3_kernel", K3_NWG + PF[3].nwg, 192, 1088),
                    ("k4_kernel", GC(1).NWG + PF[4].nwg, 512, GC(1).LDS), ("k5_kernel", GC(2).NWG + PF[5].nwg, 512, GC(2).LDS)]
        txt = build([gen_k12c, gen_k3, gen_k4, gen_k5], launches)
    elif 'fuse2' in os.environ.get('GOPT', '').split(','):
        launches = [("k1_kernel", 256, 768, K12B_LDS), ("k3_kernel", K3_NWG + PF[3].nwg, 192, 1088),
                    ("k4_kernel", GC(1).NWG + PF[4].nwg, 512, GC(1).LDS), ("k5_kernel", GC(2).NWG + PF[5].nwg, 512, GC(2).LDS)]
        txt = build([gen_k12b, gen_k3, gen_k4, gen_k5], launches)
    elif 'fuse' in os.environ.get('GOPT', '').split(','):
        launches = [("k1_kernel", 640 + PF[1].nwg, 256, K12_LDS), ("k3_kernel", K3_NWG + PF[3].nwg, 192, 1088),
                    ("k4_kernel", GC(1).NWG + PF[4].nwg, 512, GC(1).LDS), ("k5_kernel", GC(2).NWG + PF[5].nwg, 512, GC(2).LDS)]
        txt = build([gen_k12, gen_k3, gen_k4, gen_k5], launches)
    else:
        launches = [("k1_kernel", 640 + PF[1].nwg, 256, 38912), ("k2_kernel", 576 + PF[2].nwg, 256, 33280+512+4096), ("k3_kernel", K3_NWG + PF[3].nwg, 192, 1088),
                    ("k4_kernel", GC(1).NWG + PF[4].nwg, 512, GC(1).LDS), ("k5_kernel", GC(2).NWG + PF[5].nwg, 512, GC(2).LDS)]
        txt = build([gen_k1, gen_k2, gen_k3, gen_k4, gen_k5], launches)
    open('test.s', 'w').write(txt)
```

```python
import sys
sys.path.insert(0, 'gen')
from asmlib import *

NAME = "sequential_preLN__ssm_conv_s4d__mixer_token_mlp__prompt"
L, D, NM, F = 2048, 576, 128, 4608
WS_UT = 0x0
WS_XT = 0x240000
WS_R  = 0x480000
RSTRIDE = 8256; ROFF = 4128
WS_HT = 0x910000
WS_HN = 0xB50000
WS_G  = 0xE50000
WS_W1C = 0x1510000
W1C_PITCH = 4608
WS_W2C = 0x1E10000
W2C_PITCH = 1024
WS_CNT = 0x2290000
WS_END = 0x22A0000
ABLK = 8192
LOG2E = 0x3fb8aa3b
INV2PI = 0x3e22f983

def fhex(x):
    import struct
    return "0x%08x" % struct.unpack('<I', struct.pack('<f', x))[0]

def srd(a, s, lo, hi, size):
    a(f"s_mov_b32 s{s}, s{lo} ; srd")
    a(f"s_and_b32 s{s+1}, s{hi}, 0xffff ; srd")
    a(f"s_mov_b32 s{s+2}, {hex(size)} ; srd")
    a(f"s_mov_b32 s{s+3}, 0x00020000 ; srd")

def lint_srd(lines, name):
    import re
    tag = {}
    pend = set()
    bad = 0
    for k, t in lines:
        if k != 'i': continue
        it = Ins(t)
        if it.mn == 's_waitcnt' and 'lgkmcnt(0)' in t: pend = set()
        if it.mn.startswith('s_load'):
            for r in it.wr:
                if r in pend: print(f"LINT {name}: s_load into {r} while a load to it is pending: {t}"); bad += 1
            pend |= set(it.wr)
        if it.mn.startswith('buffer_'):
            q = [o for o in it.ops if re.match(r'^s\[\d+:\d+\]$', o)]
            if q:
                regs = regs_of(q[0])
                for r in regs:
                    if tag.get(r) != 'srd': print(f"LINT {name}: {r} of SRD not from srd(): {t}"); bad += 1
                    if r in pend: print(f"LINT {name}: {r} pending s_load: {t}"); bad += 1
        for r in it.wr:
            if r[0] == 's': tag[r] = 'srd' if '; srd' in t else 'other'
    return bad

def kernel_head(a, name):
    a.raw(f".globl {name}\n.p2align 8\n.type {name},@function\n{name}:")

import os
STAMP = 'kst' in os.environ.get('GOPT', '').split(',')
STAMP_BASE = 0x3000000
def kst_begin(a):
    if not STAMP: return
    a("s_memrealtime s[94:95]")
    a("v_readfirstlane_b32 s93, v0")
def kst_end(a, kidx, nwg):
    if not STAMP: return
    lab = f"KST_{kidx}"
    a(f"s_cmp_ge_u32 s2, {nwg}")
    a(f"s_cbranch_scc1 {lab}")
    a("s_mov_b64 exec, -1")
    a("s_waitcnt vmcnt(0) lgkmcnt(0)")
    a("s_lshr_b32 s86, s93, 6")
    a("s_memrealtime s[92:93]")
    a("s_load_dwordx2 s[6:7], s[0:1], 112")
    a("s_waitcnt lgkmcnt(0)")
    srd(a, 88, 6, 7, 0x4000000)
    a("s_lshl_b32 s86, s86, 3")
    a("v_mov_b32 v2, s86")
    a(f"s_lshl_b32 s87, s2, 7")
    a(f"s_add_u32 s87, s87, {STAMP_BASE + kidx * 0x20000}")
    a("v_mov_b32 v0, s94")
    a("v_mov_b32 v1, s92")
    a("s_mov_b64 exec, 1")
    a("buffer_store_dwordx2 v[0:1], v2, s[88:91], s87 offen")
    a.label(lab)

def kernel_desc(name, vgpr, sgpr=96, accum=None):
    acc = accum if accum is not None else ((vgpr + 3) // 4) * 4
    return f""".amdhsa_kernel {name}
  .amdhsa_next_free_vgpr {vgpr}
  .amdhsa_next_free_sgpr {sgpr}
  .amdhsa_accum_offset {acc}
  .amdhsa_group_segment_fixed_size 0
  .amdhsa_kernarg_size 120
  .amdhsa_user_sgpr_count 2
  .amdhsa_user_sgpr_kernarg_segment_ptr 1
  .amdhsa_system_sgpr_workgroup_id_x 1
.end_amdhsa_kernel
"""


DYN = 'dyn' in os.environ.get('GOPT', '').split(',')
def dyn_assign(a, kidx, quota, lds_off, swave, sws=(6, 7)):
    if not DYN: return
    L = f"DYN{kidx}"
    a(f"s_cmp_lg_u32 s{swave}, 0")
    a(f"s_cbranch_scc1 {L}_W")
    a("s_getreg_b32 s60, hwreg(HW_REG_XCC_ID, 0, 3)")
    srd(a, 64, sws[0], sws[1], WS_END)
    a("s_mov_b32 s61, 0")
    a("v_mov_b32 v61, 0")
    a("s_mov_b64 exec, 1")
    a.label(f"{L}_L")
    a("s_add_u32 s62, s60, s61")
    a("s_and_b32 s62, s62, 7")
    a("s_lshl_b32 s63, s62, 8")
    a(f"s_add_u32 s63, s63, {WS_CNT + kidx * 2048}")
    a("v_mov_b32 v60, 1")
    a("buffer_atomic_add v60, v61, s[64:67], s63 offen sc0")
    a("s_waitcnt vmcnt(0)")
    a("v_readfirstlane_b32 s68, v60")
    a(f"s_cmp_lt_u32 s68, {quota}")
    a(f"s_cbranch_scc1 {L}_D")
    a("s_add_u32 s61, s61, 1")
    a("s_cmp_lt_u32 s61, 8")
    a(f"s_cbranch_scc1 {L}_L")
    a.label(f"{L}_D")
    a("s_lshl_b32 s68, s68, 3")
    a("s_add_u32 s68, s68, s62")
    a("v_mov_b32 v60, s68")
    a(f"v_mov_b32 v61, {lds_off}")
    a("ds_write_b32 v61, v60")
    a("s_mov_b64 exec, -1")
    a("s_waitcnt lgkmcnt(0)")
    a.label(f"{L}_W")
    a("s_barrier")
    a(f"v_mov_b32 v61, {lds_off}")
    a("ds_read_b32 v60, v61")
    a("s_waitcnt lgkmcnt(0)")
    a("v_readfirstlane_b32 s2, v60")

class PFC:
    def __init__(s, nwg, nwv, jobs): s.nwg = nwg; s.nwv = nwv; s.jobs = jobs
def _pfopt():
    d = {1: PFC(0, 4, []), 2: PFC(0, 4, []), 3: PFC(0, 3, []), 4: PFC(0, 8, []), 5: PFC(0, 8, [])}
    for o in os.environ.get('GOPT', '').split(','):
        if o.startswith('pf='):
            for k, spec in enumerate(o[3:].split('/')):
                if not spec or spec == '0': continue
                n, js = spec.split(':')
                d[k + 1].nwg = int(n)
                d[k + 1].jobs = [tuple(int(x) for x in j.split('.')) for j in js.split('+') if j]
    return d
PF = _pfopt()
if {'fuse2', 'fuse3'} & set(os.environ.get('GOPT', '').split(',')): PF[1].nwv = 12; PF[1].nwg = 64
def t8_addr(a, sx, vlane, vo, vt, s0, s1):
    assert s0 % 2 == 0 and s1 == s0 + 1
    a(f"s_lshr_b32 s{s0}, s{sx}, 1")
    a(f"s_lshl_b32 s{s0}, s{s0}, 4")
    a(f"s_mov_b32 s{s1}, 0x33214320")
    a(f"s_cmp_ge_u32 s{s0}, 32")
    a(f"s_cselect_b32 s{s1}, 0x43104210, s{s1}")
    a(f"s_and_b32 s{s0}, s{s0}, 16")
    a(f"s_lshr_b32 s{s1}, s{s1}, s{s0}")
    a(f"v_bfe_u32 v{vt}, v{vlane}, 1, 2")
    a(f"v_lshlrev_b32 v{vt}, 2, v{vt}")
    a(f"v_lshrrev_b32 v{vt}, v{vt}, s{s1}")
    a(f"v_and_b32 v{vt}, 15, v{vt}")
    a(f"s_mul_i32 s{s0}, s{sx}, 27*171".replace("27*171", str(27*171)))
    a(f"s_lshr_b32 s{s0}, s{s0}, 10")
    a(f"v_add_u32 v{vt}, s{s0}, v{vt}")
    a(f"v_lshrrev_b32 v{vo}, 3, v{vlane}")
    a(f"v_mul_u32_u24 v{vo}, 9216, v{vo}")
    a(f"v_lshl_add_u32 v{vo}, v{vt}, 8, v{vo}")
    a(f"v_and_b32 v{vt}, 1, v{vlane}")
    a(f"v_lshl_add_u32 v{vo}, v{vt}, 7, v{vo}")

def gen_prefetch(a, k, nmain, endlab):
    c = PF[k]
    if c.nwg == 0:
        a(f"s_branch {endlab}")
        return
    assert c.nwg % 8 == 0 and nmain % 8 == 0
    a(f"s_cmp_ge_u32 s2, {nmain + c.nwg}")
    a(f"s_cbranch_scc1 {endlab}")
    a("s_load_dwordx2 s[16:17], s[0:1], 64")
    a("s_load_dwordx2 s[18:19], s[0:1], 80")
    a("v_and_b32 v1, 63, v0")
    a("v_lshrrev_b32 v2, 6, v0")
    a("v_readfirstlane_b32 s27, v2")
    a(f"s_sub_u32 s3, s2, {nmain}")
    a("s_lshr_b32 s3, s3, 3")
    a(f"s_mul_i32 s3, s3, {c.nwv}")
    a("s_add_u32 s3, s3, s27")
    a("s_and_b32 s4, s2, 7")
    NWX = c.nwg // 8 * c.nwv
    NWA = c.nwg * c.nwv
    a("s_waitcnt lgkmcnt(0)")
    _o = os.environ.get('GOPT', '').split(',')
    cpk = {1: 1, 2: 2}
    for o in _o:
        if o.startswith('cp1='): cpk[1] = int(o[4:])
        if o.startswith('cp2='): cpk[2] = int(o[4:])
    assert cpk[1] != cpk[2]
    if 'icp1' in _o: cpk[1] = -1
    CP = {cpk[1]: 1, cpk[2]: 2}.get(k, 0) if 'nocopy' not in _o else 0
    ncp = 0
    if CP:
        a("s_load_dwordx2 s[6:7], s[0:1], 112")
        a(f"s_sub_u32 s21, s2, {nmain}")
        a(f"s_mul_i32 s21, s21, {c.nwv}")
        a("s_add_u32 s21, s21, s27")
        if CP == 1:
            srd(a, 24, 16, 17, 2048 * 9216)
            a("v_lshrrev_b32 v6, 4, v1")
            a("v_and_b32 v7, 15, v1")
            a("v_mul_u32_u24 v4, 9216, v6")
            a("v_lshl_add_u32 v4, v7, 4, v4")
            a("v_add_u32 v4, 256, v4")
            a(f"v_mul_u32_u24 v5, {W1C_PITCH}, v6")
            a("v_lshl_add_u32 v5, v7, 4, v5")
            nr = -(-512 // NWA)
            assert nr == 1
            a("s_mul_i32 s22, s21, 4*9216".replace("4*9216", str(4*9216)))
            for j in range(9):
                if j in (4, 8): a("s_add_u32 s22, s22, 4096")
                a(f"buffer_load_dwordx4 v[{16+4*j}:{19+4*j}], v4, s[24:27], s22 offen offset:{(j%4)*1024}")
            ncp = 9
            a(f"s_mul_i32 s22, s21, {4*W1C_PITCH}")
            a(f"s_add_u32 s22, s22, {WS_W1C}")
            a("s_add_u32 s23, s22, 4096")
            cp_stores = [f"buffer_store_dwordx4 v[{16+4*j}:{19+4*j}], v5, s[28:31], s{22 if j < 8 else 23} offen offset:{(j%8)*512}" for j in range(9)]
            cp_lim = WS_W1C + 2048 * W1C_PITCH
        else:
            srd(a, 24, 18, 19, 4608 * 4096)
            a("v_lshrrev_b32 v6, 5, v1")
            a("v_bfe_u32 v7, v1, 3, 2")
            a("v_and_b32 v3, 7, v1")
            a("v_lshlrev_b32 v4, 12, v6")
            a("v_lshl_add_u32 v4, v7, 10, v4")
            a("v_lshl_add_u32 v4, v3, 4, v4")
            a("v_add_u32 v4, 384, v4")
            a("v_lshlrev_b32 v5, 10, v6")
            a("v_lshl_add_u32 v5, v7, 8, v5")
            a("v_lshl_add_u32 v5, v3, 4, v5")
            nr = -(-2304 // NWA)
            a("s_lshl_b32 s22, s21, 13")
            for j in range(nr):
                a(f"buffer_load_dwordx4 v[{16+4*j}:{19+4*j}], v4, s[24:27], s22 offen")
                if j < nr - 1: a(f"s_add_u32 s22, s22, {NWA*8192}")
            ncp = nr
            a("s_lshl_b32 s21, s21, 11")
            a(f"s_add_u32 s21, s21, {WS_W2C}")
            cp_stores = []
            for j in range(nr):
                cp_stores.append(f"s_add_u32 s22, s21, {j*NWA*2048}")
                cp_stores.append(f"buffer_store_dwordx4 v[{16+4*j}:{19+4*j}], v5, s[28:31], s22 offen")
            cp_lim = WS_W2C + 4608 * W2C_PITCH
        a("v_mov_b32 v14, v5")
    ntouch = 0
    pfw = [int(o.split('=')[1]) for o in _o if o.startswith(f'pfw{k}=')]
    def copy_stores(nt):
        a("s_waitcnt lgkmcnt(0)")
        srd(a, 28, 6, 7, cp_lim)
        a(f"s_waitcnt vmcnt({nt})")
        for st_ in cp_stores: a(st_.replace(", v5, ", ", v14, "))
    if CP and pfw: copy_stores(0)
    for ji, (buf, r0, r1) in enumerate(c.jobs):
        pitch = 9216 if buf in (1, 3) else 4096
        RPI = {1: 6, 2: 16, 3: 8}[buf]
        ROT = ('pfrot%d' % buf) in _o
        NROW = 2048 if buf in (1, 3) else 4608
        lim = (NROW if ROT else r1) * pitch
        if buf == 3:
            srd(a, 8, 16, 17, lim)
            t8_addr(a, 4, 1, 4, 5, 34, 35)
            a(f"s_mul_i32 s20, s3, {RPI*pitch}")
            a(f"s_add_u32 s20, s20, {r0*pitch}")
            n = -(-(r1 - r0) // (RPI * NWX))
            for i in range(n):
                lab = a.newlabel(f"PF_SK{k}")
                a(f"s_cmp_ge_u32 s20, {r1*pitch}")
                a(f"s_cbranch_scc1 {lab}")
                a(f"buffer_load_dword v{60 + (i % 8)}, v4, s[8:11], s20 offen")
                a.label(lab)
                if i < n - 1: a(f"s_add_u32 s20, s20, {NWX*RPI*pitch}")
                ntouch += 1
            continue
        if buf == 1:
            srd(a, 8, 16, 17, lim)
            a("v_min_u32 v3, 59, v1")
            a("v_mul_u32_u24 v4, 52, v3")
            a("v_lshrrev_b32 v4, 9, v4")
            a("v_mul_u32_u24 v5, 10, v4")
            a("v_sub_u32 v5, v3, v5")
            a("s_mul_i32 s5, s4, 27*171")
            a("s_lshr_b32 s5, s5, 10")
            a("s_lshl_b32 s5, s5, 8")
        else:
            srd(a, 8, 18, 19, lim)
            a("v_lshrrev_b32 v4, 2, v1")
            a("v_and_b32 v5, 3, v1")
            a("s_lshl_b32 s5, s4, 9")
        a(f"v_mul_u32_u24 v4, {pitch}, v4")
        a("v_lshl_add_u32 v4, v5, 7, v4")
        a(f"s_mul_i32 s20, s3, {RPI*pitch}")
        a("s_add_u32 s20, s20, s5")
        a(f"s_add_u32 s20, s20, {r0*pitch}")
        n = -(-(r1 - r0) // (RPI * NWX))
        if ROT:
            a(f"s_mul_i32 s34, s4, {NROW // 8 * pitch}")
        for i in range(n):
            if ROT:
                lab = a.newlabel(f"PF_SK{k}")
                a(f"s_cmp_ge_u32 s20, {r1*pitch}")
                a(f"s_cbranch_scc1 {lab}")
                a("s_add_u32 s35, s20, s34")
                a(f"s_cmp_ge_u32 s35, {(NROW)*pitch}")
                a(f"s_cselect_b32 s36, {NROW*pitch}, 0")
                a("s_sub_u32 s35, s35, s36")
                a(f"buffer_load_dword v{60 + (i % 8)}, v4, s[8:11], s35 offen")
                a.label(lab)
                assert not (CP and not pfw) or True
            else:
                a(f"buffer_load_dword v{60 + (i % 8)}, v4, s[8:11], s20 offen")
            if i < n - 1: a(f"s_add_u32 s20, s20, {NWX*RPI*pitch}")
            ntouch += 1
            if pfw: a(f"s_waitcnt vmcnt({pfw[0]})")
    if CP and not pfw:
        assert ntouch < 60
        anyrot = any(('pfrot%d' % j[0]) in _o or j[0] == 3 for j in c.jobs)
        copy_stores(0 if anyrot else ntouch)
    a(f"s_branch {endlab}")


def _itopt():
    d = {1: [], 2: [], 3: []}
    for o in os.environ.get('GOPT', '').split(','):
        if o.startswith('it='):
            for k, spec in enumerate(o[3:].split('/')):
                if not spec or spec == '0': continue
                d[k + 1] = [tuple(int(x) for x in j.split('.')) for j in spec.split('+') if j]
    return d
IT = _itopt()
def it_load_ptrs(a, k):
    if not IT[k] and not (k == 1 and ICP1): return
    a("s_load_dwordx2 s[76:77], s[0:1], 64")
    a("s_load_dwordx2 s[78:79], s[0:1], 80")
def inline_touch(a, k, sgw, nwaves, vlane, vt, vd):
    n_tot = 0
    if not IT[k]: return 0
    a(f"v_lshlrev_b32 v{vt}, 7, v{vlane}")
    for (buf, r0, r1) in IT[k]:
        pitch = 9216 if buf == 1 else 4096
        srd(a, 72, 76 if buf == 1 else 78, 77 if buf == 1 else 79, r1 * pitch)
        lines = (r1 - r0) * pitch // 128
        n = -(-lines // (64 * nwaves))
        a(f"s_lshl_b32 s70, s{sgw}, 13")
        a(f"s_add_u32 s70, s70, {r0 * pitch}")
        for i in range(n):
            a(f"buffer_load_dword v{vd}, v{vt}, s[72:75], s70 offen")
            if i < n - 1: a(f"s_add_u32 s70, s70, {nwaves * 8192}")
            n_tot += 1
    return n_tot
ICP1 = 'icp1' in os.environ.get('GOPT', '').split(',')

def bf16_round(a, dst, src, tmp=None):
    a(f"v_cvt_pk_bf16_f32 v{dst}, v{src}, v{src}")
    a(f"v_and_b32 v{dst}, 0xffff0000, v{dst}")

def exp_precise(a, dst, src, t0, t1, sL, sLlo, sLn2):
    a(f"v_mul_f32 v{t0}, s{sL}, v{src}")
    a(f"v_fma_f32 v{t1}, v{src}, s{sL}, -v{t0}")
    a(f"v_fma_f32 v{t1}, v{src}, s{sLlo}, v{t1}")
    a(f"v_exp_f32 v{dst}, v{t0}")
    a(f"v_mul_f32 v{t1}, s{sLn2}, v{t1}")
    a(f"v_fma_f32 v{dst}, v{dst}, v{t1}, v{dst}")

def gen_k1(a):
    name = "k1_kernel"
    kernel_head(a, name)
    kst_begin(a)
    a("s_cmp_ge_u32 s2, 640")
    a("s_cbranch_scc1 K1_PF")
    a("s_load_dwordx2 s[4:5], s[0:1], 0")
    a("s_load_dwordx2 s[6:7], s[0:1], 112")
    a("s_load_dwordx8 s[16:23], s[0:1], 8")
    a("s_load_dwordx2 s[24:25], s[0:1], 40")
    it_load_ptrs(a, 1)
    a("s_cmp_ge_u32 s2, 64")
    a("s_cbranch_scc1 K1_KGEN")
    a("s_waitcnt lgkmcnt(0)")
    srd(a, 8, 4, 5, L * D * 2)
    srd(a, 12, 6, 7, WS_R)
    if DYN:
        a("s_cmp_lg_u32 s2, 0")
        a("s_cbranch_scc1 K1_NOZ")
        srd(a, 28, 6, 7, WS_END)
        a("v_lshlrev_b32 v1, 8, v0")
        a("v_mov_b32 v2, 0")
        a(f"s_mov_b32 s26, {WS_CNT}")
        a("v_cmp_gt_u32 vcc, 64, v0")
        a("s_and_saveexec_b64 s[32:33], vcc")
        a("s_cbranch_execz K1_NOZ2")
        a("buffer_store_dword v2, v1, s[28:31], s26 offen")
        a.label("K1_NOZ2")
        a("s_mov_b64 exec, -1")
        a.label("K1_NOZ")
    PITCH = 1216
    a("v_lshrrev_b32 v1, 3, v0")
    a("v_and_b32 v2, 7, v0")
    a("s_lshl_b32 s3, s2, 5")
    a("v_add_u32 v3, s3, v1")
    a("s_movk_i32 s26, 1152")
    a("v_mul_lo_u32 v3, v3, s26")
    a("v_lshl_add_u32 v3, v2, 4, v3")
    for i in range(9):
        a(f"buffer_load_dwordx4 v[{10+4*i}:{13+4*i}], v3, s[8:11], 0 offen offset:{128*i}")
    a(f"s_movk_i32 s26, {PITCH}")
    a("v_mul_lo_u32 v4, v1, s26")
    a("v_lshl_add_u32 v4, v2, 4, v4")
    a("v_and_b32 v5, 63, v0")
    a("v_lshrrev_b32 v6, 6, v0")
    a("v_readfirstlane_b32 s27, v6")
    a("v_bfe_u32 v7, v5, 2, 2")
    a("v_mul_lo_u32 v7, v7, s26")
    a("v_lshrrev_b32 v8, 4, v5")
    a("v_lshl_add_u32 v7, v8, 5, v7")
    a("v_and_b32 v8, 3, v5")
    a("v_lshl_add_u32 v7, v8, 3, v7")
    a("s_lshl_b32 s28, s2, 6")
    a("v_lshlrev_b32 v9, 12, v5")
    a("v_add_u32 v9, s28, v9")
    a("s_waitcnt vmcnt(0)")
    for i in range(9):
        a(f"ds_write_b128 v4, v[{10+4*i}:{13+4*i}] offset:{128*i}")
    for i in range(36):
        a(f"v_lshlrev_b32 v{50+2*i}, 16, v{10+i}")
        a(f"v_and_b32 v{51+2*i}, 0xffff0000, v{10+i}")
    a("v_add_f32 v122, v50, v51")
    a("v_add_f32 v123, v52, v53")
    a("v_add_f32 v124, v54, v55")
    a("v_add_f32 v125, v56, v57")
    for i in range(2, 18):
        for q in range(4):
            a(f"v_add_f32 v{122+q}, v{122+q}, v{50+4*i+q}")
    a("v_add_f32 v122, v122, v123")
    a("v_add_f32 v124, v124, v125")
    a("v_add_f32 v122, v122, v124")
    def red8(r, t):
        a(f"v_add_f32_dpp v{r}, v{r}, v{r} quad_perm:[1,0,3,2] row_mask:0xf bank_mask:0xf")
        a(f"v_add_f32_dpp v{r}, v{r}, v{r} quad_perm:[2,3,0,1] row_mask:0xf bank_mask:0xf")
        a(f"v_add_f32_dpp v{r}, v{r}, v{r} row_half_mirror row_mask:0xf bank_mask:0xf")
    red8(122, None)
    a(f"s_mov_b32 s26, {fhex(1.0/576)}")
    a("v_mul_f32 v126, s26, v122")
    a("s_waitcnt lgkmcnt(0)")
    a("s_barrier")
    def transpose_store(ws_off):
        for u in range(3):
            lab = a.newlabel("K1_SKIP")
            if u == 2:
                a("s_cmp_lg_u32 s27, 0")
                a(f"s_cbranch_scc1 {lab}")
            a(f"s_lshl_b32 s29, s27, 7")
            a(f"s_add_u32 s29, s29, {u*4*128}")
            a(f"v_add_u32 v127, s29, v7")
            for Q in range(8):
                a(f"ds_read_b64_tr_b16 v[{130+2*Q}:{131+2*Q}], v127 offset:{Q*4*PITCH}")
            a(f"s_lshl_b32 s29, s27, 18")
            a(f"s_add_u32 s29, s29, {ws_off + u*4*64*4096}")
            a("s_waitcnt lgkmcnt(0)")
            for q in range(4):
                a(f"buffer_store_dwordx4 v[{130+4*q}:{133+4*q}], v9, s[12:15], s29 offen offset:{16*q}")
            if u == 2: a.label(lab)
            a("s_nop 1")
    transpose_store(WS_XT)
    for i in range(72):
        a(f"v_sub_f32 v{150+0}, v{50+i}, v126") if False else None
    a("v_sub_f32 v127, v50, v126"); a("v_mul_f32 v122, v127, v127")
    a("v_sub_f32 v127, v51, v126"); a("v_mul_f32 v123, v127, v127")
    a("v_sub_f32 v127, v52, v126"); a("v_mul_f32 v124, v127, v127")
    a("v_sub_f32 v127, v53, v126"); a("v_mul_f32 v125, v127, v127")
    for i in range(4, 72):
        t = 146 + (i % 4)
        a(f"v_sub_f32 v{t}, v{50+i}, v126")
        a(f"v_fmac_f32 v{122+(i%4)}, v{t}, v{t}")
    a("v_add_f32 v122, v122, v123")
    a("v_add_f32 v124, v124, v125")
    a("v_add_f32 v122, v122, v124")
    red8(122, None)
    a("v_mul_f32 v122, s26, v122")
    bf16_round(a, 126, 126)
    bf16_round(a, 122, 122)
    a(f"v_add_f32 v122, {fhex(1e-5)}, v122")
    bf16_round(a, 122, 122)
    a("v_sqrt_f32 v122, v122")
    bf16_round(a, 122, 122)
    a("v_rcp_f32 v122, v122")
    for i in range(36):
        x0, x1 = 50 + 2*i, 51 + 2*i
        a(f"v_sub_f32 v{x0}, v{x0}, v126")
        a(f"v_sub_f32 v{x1}, v{x1}, v126")
        a(f"v_cvt_pk_bf16_f32 v146, v{x0}, v{x1}")
        a(f"v_lshlrev_b32 v{x0}, 16, v146")
        a(f"v_and_b32 v{x1}, 0xffff0000, v146")
        a(f"v_mul_f32 v{x0}, v{x0}, v122")
        a(f"v_mul_f32 v{x1}, v{x1}, v122")
        a(f"v_cvt_pk_bf16_f32 v{10+i}, v{x0}, v{x1}")
    a("s_barrier")
    for i in range(9):
        a(f"ds_write_b128 v4, v[{10+4*i}:{13+4*i}] offset:{128*i}")
    a("s_waitcnt lgkmcnt(0)")
    a("s_barrier")
    transpose_store(WS_UT)
    a("s_branch K1_END")

    a.label("K1_KGEN")
    K1ST = 'k1st' in os.environ.get('GOPT', '').split(',')
    def st(i):
        if K1ST: a(f"s_memrealtime s[{60+2*i}:{61+2*i}]")
    a("s_sub_u32 s3, s2, 64")
    a("v_and_b32 v1, 63, v0")
    a("v_lshrrev_b32 v2, 6, v0")
    a("v_readfirstlane_b32 s27, v2")
    a("v_lshrrev_b32 v3, 4, v1")
    a("v_and_b32 v4, 15, v1")
    a("s_lshl_b32 s28, s3, 8")
    a("v_lshlrev_b32 v5, 6, v2")
    a("v_lshl_add_u32 v5, v3, 4, v5")
    a("v_add_u32 v5, s28, v5")
    a("s_waitcnt lgkmcnt(0)")
    srd(a, 8, 16, 17, D * NM * 2)
    a("buffer_load_dwordx4 v[10:13], v5, s[8:11], 0 offen")
    srd(a, 28, 18, 19, D * NM * 2)
    a("buffer_load_dwordx4 v[14:17], v5, s[28:31], 0 offen")
    srd(a, 32, 20, 21, D * NM * 2)
    a("buffer_load_dwordx4 v[18:21], v5, s[32:35], 0 offen")
    srd(a, 36, 22, 23, D * NM * 2)
    a("buffer_load_dwordx4 v[22:25], v5, s[36:39], 0 offen")
    srd(a, 40, 24, 25, D * 2)
    a("s_lshl_b32 s44, s3, 1")
    a("v_mov_b32 v6, s44")
    a("buffer_load_ushort v26, v6, s[40:43], 0 offen")
    srd(a, 12, 6, 7, WS_HT)
    a("v_lshlrev_b32 v27, 3, v4")
    a("v_cvt_f32_u32 v27, v27")
    a("v_and_b32 v28, 7, v4")
    a("v_lshrrev_b32 v29, 3, v4")
    a("v_lshl_add_u32 v28, v29, 7, v28")
    a("v_cvt_f32_u32 v28, v28")
    a("v_lshrrev_b32 v29, 2, v4")
    a("v_lshlrev_b32 v29, 7, v29")
    a("v_and_b32 v30, 3, v4")
    a("v_lshl_add_u32 v29, v30, 1, v29")
    a("v_add_u32 v29, 256, v29")
    a("v_subrev_u32 v30, 8, v4")
    a("v_lshrrev_b32 v30, 1, v30")
    a("v_lshlrev_b32 v30, 7, v30")
    a("v_and_b32 v31, 1, v4")
    a("v_lshl_add_u32 v30, v31, 2, v30")
    a("v_add_u32 v30, 512, v30")
    a("v_cmp_gt_u32 vcc, 8, v4")
    a("v_cndmask_b32 v29, v30, v29, vcc")
    a("v_cvt_f32_u32 v29, v29")
    a("v_lshlrev_b32 v30, 7, v4")
    a("v_add_u32 v30, 1024, v30")
    a("v_cvt_f32_u32 v30, v30")
    a(f"s_mov_b32 s44, {hex(LOG2E)}")
    a(f"s_mov_b32 s45, {fhex(1.4426950408889634 - 1.4426950216293335)}")
    a(f"s_mov_b32 s46, {fhex(0.6931471805599453)}")
    a(f"s_mov_b32 s47, {hex(INV2PI)}")
    a("s_waitcnt vmcnt(0)")
    st(0)
    a("s_lshl_b32 s71, s3, 2")
    a("s_add_u32 s71, s71, s27")
    ntouch = 0
    if ICP1:
        srd(a, 72, 76, 77, 2048 * 9216)
        a("v_mul_u32_u24 v160, 9216, v3")
        a("v_lshl_add_u32 v160, v4, 4, v160")
        a(f"v_mul_u32_u24 v161, {W1C_PITCH}, v3")
        a("v_lshl_add_u32 v161, v4, 4, v161")
        for h in range(2):
            a("s_lshl_b32 s68, s71, 1")
            if h: a("s_add_u32 s68, s68, 1")
            a("s_mul_i32 s69, s68, 7282")
            a("s_lshr_b32 s69, s69, 16")
            a("s_mul_i32 s70, s69, 9")
            a("s_sub_u32 s68, s68, s70")
            a(f"s_mul_i32 s70, s69, {4*9216}")
            a("s_lshl_b32 s67, s68, 10")
            a("s_add_u32 s70, s70, s67")
            a(f"buffer_load_dwordx4 v[{152+4*h}:{155+4*h}], v160, s[72:75], s70 offen offset:256")
            a(f"s_mul_i32 s70, s69, {4*W1C_PITCH}")
            a("s_lshl_b32 s67, s68, 9")
            a("s_add_u32 s70, s70, s67")
            a(f"s_add_u32 s{64+h}, s70, {WS_W1C}")
    ntouch = inline_touch(a, 1, 71, 2304, 1, 162, 163)
    a("v_lshlrev_b32 v26, 16, v26")
    exp_precise(a, 31, 26, 32, 33, 44, 45, 46)
    bf16_round(a, 31, 31)
    a("v_add_f32 v26, v31, v31")
    a(f"s_mov_b32 s48, {hex(LOG2E | 0x80000000)}")
    st(1)
    HI = 40; LO = 72
    XV = 104
    TP = 120
    ACCK = 80 + 60
    ACCK = 140
    for tp in range(4):
        for h in range(2):
            un = (lambda d, s_: a(f"v_lshlrev_b32 v{d}, 16, v{s_}")) if h == 0 else (lambda d, s_: a(f"v_and_b32 v{d}, 0xffff0000, v{s_}"))
            ar, ai, cr, ci = 32 + 4 * h, 33 + 4 * h, 34 + 4 * h, 35 + 4 * h
            t0, t1, t2 = TP, TP + 1, TP + 2
            un(t0, 10 + tp)
            exp_precise(a, t1, t0, t2, TP + 3, 44, 45, 46)
            bf16_round(a, t1, t1)
            a(f"v_mul_f32 v{t1}, v{t1}, v31")
            a(f"v_mul_f32 v{ar}, s48, v{t1}")
            un(t0, 14 + tp)
            a(f"v_mul_f32 v{t0}, v{t0}, v31")
            a(f"v_mul_f32 v{ai}, s47, v{t0}")
            un(t0, 18 + tp)
            a(f"v_mul_f32 v{cr}, v{t0}, v26")
            un(t0, 22 + tp)
            a(f"v_mul_f32 v{ci}, v{t0}, v26")
            e0, e1, e2, e3 = TP + 4, TP + 5, TP + 6, TP + 7
            a(f"v_mul_f32 v{e0}, v{ar}, v27")
            a(f"v_mul_f32 v{e1}, v{ai}, v27")
            a(f"v_exp_f32 v{e0}, v{e0}")
            a(f"v_fract_f32 v{e1}, v{e1}")
            a(f"v_cos_f32 v{e2}, v{e1}")
            a(f"v_sin_f32 v{e3}, v{e1}")
            a(f"v_mul_f32 v{XV+0+h}, v{e0}, v{e2}")
            a(f"v_mul_f32 v{XV+2+h}, v{e0}, v{e3}")
            for T in range(3):
                b = TP + 8 + 6 * T
                a(f"v_mul_f32 v{b}, v{ar}, v{28+T}")
                a(f"v_mul_f32 v{b+1}, v{ai}, v{28+T}")
                a(f"v_exp_f32 v{b}, v{b}")
                a(f"v_fract_f32 v{b+1}, v{b+1}")
                a(f"v_cos_f32 v{b+2}, v{b+1}")
                a(f"v_sin_f32 v{b+3}, v{b+1}")
                a(f"v_mul_f32 v{b+4}, v{cr}, v{b+2}")
                a(f"v_mul_f32 v{b+5}, v{cr}, v{b+3}")
                a(f"v_fma_f32 v{b+4}, -v{ci}, v{b+3}, v{b+4}")
                a(f"v_fma_f32 v{b+5}, v{ci}, v{b+2}, v{b+5}")
                a(f"v_mul_f32 v{XV+4+4*T+h}, v{b}, v{b+4}")
                a(f"v_mul_f32 v{XV+6+4*T+h}, -v{b}, v{b+5}")
        for q in range(8):
            x0, x1 = XV + 2 * q, XV + 2 * q + 1
            hp = HI + 4 * q + tp; lp = LO + 4 * q + tp
            u0, u1 = TP + (2 * q) % 16, TP + (2 * q) % 16 + 1
            a(f"v_cvt_pk_bf16_f32 v{hp}, v{x0}, v{x1}")
            a(f"v_lshlrev_b32 v{u0}, 16, v{hp}")
            a(f"v_and_b32 v{u1}, 0xffff0000, v{hp}")
            a(f"v_sub_f32 v{u0}, v{x0}, v{u0}")
            a(f"v_sub_f32 v{u1}, v{x1}, v{u1}")
            a(f"v_cvt_pk_bf16_f32 v{lp}, v{u0}, v{u1}")
    def fr(base, q): return f"v[{base+4*q}:{base+4*q+3}]"
    for T in range(3):
        acc = f"v[{ACCK+4*T}:{ACCK+4*T+3}]"
        first = True
        for (qa, qb) in ((2 + 2 * T, 0), (3 + 2 * T, 1)):
            for (ba, bb) in ((LO, HI), (HI, LO), (HI, HI)):
                a(f"v_mfma_f32_16x16x32_bf16 {acc}, {fr(ba, qa)}, {fr(bb, qb)}, {'0' if first else acc}")
                first = False
    for r in range(12): a(f"v_mov_b32 v{80+r}, v{ACCK+r}")
    if ICP1:
        srd(a, 72, 6, 7, WS_W1C + 2048 * W1C_PITCH)
        a(f"s_waitcnt vmcnt({ntouch})")
        for h in range(2):
            a(f"buffer_store_dwordx4 v[{152+4*h}:{155+4*h}], v161, s[72:75], s{64+h} offen")
    st(2)
    a("v_lshlrev_b32 v5, 4, v1")
    a("s_mul_i32 s28, s27, 3072")
    a("v_add_u32 v5, s28, v5")
    for T in range(3):
        a(f"ds_write_b128 v5, v[{80+4*T}:{83+4*T}] offset:{1024*T}")
    a("s_waitcnt lgkmcnt(0)")
    a("s_barrier")
    KC = 12288
    a("s_cmp_eq_u32 s27, 3")
    a("s_cbranch_scc1 K1_KG_ZERO")
    a("v_lshlrev_b32 v5, 4, v1")
    a("s_lshl_b32 s28, s27, 10")
    a("v_add_u32 v5, s28, v5")
    for w in range(4):
        a(f"ds_read_b128 v[{80+4*w}:{83+4*w}], v5 offset:{3072*w}")
    a("s_cmp_eq_u32 s27, 1")
    a("s_cbranch_scc1 K1_KG_T1")
    a("s_cmp_eq_u32 s27, 2")
    a("s_cbranch_scc1 K1_KG_T2")
    a("v_and_b32 v100, 1, v3")
    a("v_lshlrev_b32 v100, 2, v100")
    a("v_lshrrev_b32 v101, 1, v3")
    a("v_lshl_add_u32 v100, v101, 7, v100")
    a("v_lshl_add_u32 v100, v4, 3, v100")
    for r in range(1, 4): a(f"v_add_u32 v{100+r}, {r}, v100")
    a("s_branch K1_KG_SC")
    a.label("K1_KG_T1")
    a("v_lshlrev_b32 v104, 6, v3")
    a("v_lshl_add_u32 v104, v4, 2, v104")
    a("v_add_u32 v104, 256, v104")
    a("v_lshlrev_b32 v105, 6, v3")
    a("v_lshl_add_u32 v105, v4, 1, v105")
    a("v_add_u32 v105, 256, v105")
    a("v_cmp_gt_u32 vcc, 2, v3")
    for r in range(4):
        a(f"v_add_u32 v106, {r}, v104")
        a(f"v_add_u32 v107, {32*(r>>1)+(r&1)}, v105")
        a(f"v_cndmask_b32 v{100+r}, v107, v106, vcc")
    a("s_branch K1_KG_SC")
    a.label("K1_KG_T2")
    a("v_lshlrev_b32 v100, 6, v3")
    a("v_add_u32 v100, v4, v100")
    a("v_add_u32 v100, 512, v100")
    for r in range(1, 4): a(f"v_add_u32 v{100+r}, {16*r}, v100")
    a.label("K1_KG_SC")
    a("s_waitcnt lgkmcnt(0)")
    for r in range(4):
        a(f"v_add_f32 v{80+r}, v{80+r}, v{84+r}")
        a(f"v_add_f32 v{88+r}, v{88+r}, v{92+r}")
        a(f"v_add_f32 v{80+r}, v{80+r}, v{88+r}")
        a(f"v_lshlrev_b32 v{100+r}, 2, v{100+r}")
        a(f"ds_write_b32 v{100+r}, v{80+r} offset:{KC}")
    a("s_branch K1_KG_EXP")
    a.label("K1_KG_ZERO")
    a("v_mov_b32 v5, 0")
    a(f"ds_write_b32 v5, v5 offset:{KC + 768*4}")
    a.label("K1_KG_EXP")
    a("s_waitcnt lgkmcnt(0)")
    a("s_barrier")
    st(3)
    a("v_lshlrev_b32 v5, 3, v0")
    a("v_sub_u32 v5, 2047, v5")
    for e in range(9):
        a(f"v_subrev_u32 v{10+e}, {e}, v5")
        a(f"v_cvt_f32_i32 v{20+e}, v{10+e}")
    for e in range(0, 9, 2):
        e1 = min(e + 1, 8)
        a(f"v_cvt_pk_bf16_f32 v{30+e//2}, v{20+e}, v{20+e1}")
    for e in range(9):
        src = 30 + e // 2
        if e % 2 == 0: a(f"v_and_b32 v{20+e}, 0xffff, v{src}")
        else: a(f"v_lshrrev_b32 v{20+e}, 16, v{src}")
        a(f"v_subrev_u32 v{20+e}, 17024, v{20+e}")
        a(f"v_min_u32 v36, 127, v{10+e}")
        a(f"v_max_i32 v{20+e}, v{20+e}, v36")
    a("v_cmp_gt_i32 vcc, 0, v18")
    a("v_mov_b32 v36, 768")
    a("v_cndmask_b32 v28, v28, v36, vcc")
    for e in range(9):
        a(f"v_lshlrev_b32 v{20+e}, 2, v{20+e}")
        a(f"ds_read_b32 v{40+e}, v{20+e} offset:{KC}")
    a("s_mul_i32 s28, s3, %d" % RSTRIDE)
    a(f"s_add_u32 s28, s28, {WS_R}")
    a("v_lshlrev_b32 v5, 4, v0")
    a("s_waitcnt lgkmcnt(0)")
    for k in range(4):
        a(f"v_cvt_pk_bf16_f32 v{52+k}, v{40+2*k}, v{41+2*k}")
        a(f"v_cvt_pk_bf16_f32 v{56+k}, v{41+2*k}, v{42+2*k}")
    a("buffer_store_dwordx4 v[52:55], v5, s[12:15], s28 offen")
    a(f"buffer_store_dwordx4 v[56:59], v5, s[12:15], s28 offen offset:{ROFF - 4096}") if False else None
    a(f"v_add_u32 v6, {ROFF}, v5")
    a("buffer_store_dwordx4 v[56:59], v6, s[12:15], s28 offen")
    if K1ST:
        st(4)
        a("s_waitcnt vmcnt(0) lgkmcnt(0)")
        st(5)
        a("s_waitcnt lgkmcnt(0)")
        srd(a, 72, 6, 7, 0x4000000)
        for i in range(6): a(f"v_mov_b32 v{70+i}, s{60+2*i}")
        a("v_mov_b32 v76, s94"); a("v_mov_b32 v77, 0")
        a("s_lshl_b32 s76, s2, 7")
        a("s_lshl_b32 s77, s27, 5")
        a("s_add_u32 s76, s76, s77")
        a("s_add_u32 s76, s76, 0x2a00000")
        a("v_mov_b32 v78, 0")
        a("buffer_store_dwordx4 v[70:73], v78, s[72:75], s76 offen")
        a("buffer_store_dwordx4 v[74:77], v78, s[72:75], s76 offen offset:16")
    a("v_cmp_gt_u32 vcc, 2, v0")
    a("s_and_saveexec_b64 s[30:31], vcc")
    a("s_cbranch_execz K1_END")
    for r in range(4): a(f"v_mov_b32 v{60+r}, 0")
    a("v_add_u32 v5, 4096, v5")
    a("v_add_u32 v6, 4096, v6")
    a("buffer_store_dwordx4 v[60:63], v5, s[12:15], s28 offen")
    a("buffer_store_dwordx4 v[60:63], v6, s[12:15], s28 offen")
    a("s_branch K1_END")
    a.label("K1_PF")
    gen_prefetch(a, 1, 640, "K1_END")
    a.label("K1_END")
    kst_end(a, 0, 640 + PF[1].nwg)
    a("s_endpgm")
    return name, 164, 38912

KERNELS = []
def build(kernels, launches):
    head = []
    ref = open('cdna_kernels/' + NAME + '.s.ref').read().split('\n')
    for ln in ref:
        if ln.startswith('; Kernarg') or ln.startswith(';   offset'):
            head.append(ln)
    for (k, grid, block, lds) in launches:
        head.append(f"; @launch kernel={k} grid=({grid},1,1) block=({block},1,1) lds={lds}")
    out = '\n'.join(head) + '\n.amdgcn_target "amdgcn-amd-amdhsa--gfx950"\n.text\n'
    descs = ''
    for gen in kernels:
        a = Asm()
        name, vg, lds = gen(a)
        lint_srd(a.lines, name)
        out += render(insert_hazard_nops(a.lines))
        descs += kernel_desc(name, vg)
    out += '.section .rodata,"a"\n.p2align 6\n' + descs.replace('.amdhsa_kernel', '.p2align 6\n.amdhsa_kernel')
    return out

if __name__ == '__main__':
    from gen_rest import *
    main()
```

```python
from gen import *
import os, math
OPT = os.environ.get('GOPT', '').split(',')
def opt_int(name, default):
    for o in OPT:
        if o.startswith(name + '='): return int(o.split('=')[1])
    return default

ASLOT = 12288

class GC:
    def __init__(s, kind):
        s.kind = kind
        s.TW = 128 if kind == 1 else 64
        s.NJ = s.TW // 32
        s.NS = opt_int('ns1', 4) if kind == 1 else opt_int('ns2', 6)
        s.PD = opt_int('pd1', 10) if kind == 1 else opt_int('pd2', 12)
        s.nstg = 32 if kind == 1 else 72
        s.ntn = 36 if kind == 1 else 32
        s.WPITCH = 9216 if kind == 1 else 4096
        s.WTEST = opt_int('wp%d' % kind, 0)
        if s.WTEST: s.WPITCH = s.WTEST if s.WTEST > 0 else s.TW * 2
        s.ROWB = s.TW * 2
        s.WSLOT = 64 * s.ROWB
        s.ACT0 = s.NS * s.WSLOT
        s.HT0 = s.ACT0 + s.NS * ASLOT
        s.LDS = s.HT0 + (96 * s.ROWB if kind == 2 else 0)
        s.HTOV = s.LDS > 163840
        if s.HTOV:
            s.HT0 = s.ACT0
            s.LDS = s.ACT0 + s.NS * ASLOT
        if DYN: s.LDS += 64
        s.NWG = 6 * s.ntn
        s.per_xcd = s.NWG // 8
        s.ACTBASE = WS_HN if kind == 1 else WS_G
        s.NWP = s.WSLOT // 4096
        s.PPS = (0 if 'noW' in OPT else s.NWP) + (0 if 'noA' in OPT else 3)

def gen_gemm(a, kind, name):
    C = GC(kind)
    NS, TW, NJ, nstg, WPITCH, ROWB, WSLOT, ACT0, HT0, NWG = C.NS, C.TW, C.NJ, C.nstg, C.WPITCH, C.ROWB, C.WSLOT, C.ACT0, C.HT0, C.NWG
    kernel_head(a, name)
    P = name.upper()[:2]
    END = f"{P}_END"; PROD = f"{P}_PROD"; PREF = f"{P}_PREF"
    kst_begin(a)
    NG = NWG + PF[3 + kind].nwg
    a(f"s_cmp_ge_u32 s2, {NG}")
    a(f"s_cbranch_scc1 {END}")
    if not DYN:
        a(f"s_cmp_ge_u32 s2, {NWG}")
        a(f"s_cbranch_scc1 {PREF}")
    a("s_load_dwordx2 s[6:7], s[0:1], 112")
    a(f"s_load_dwordx4 s[16:19], s[0:1], {64 if kind == 1 else 80}")
    a("s_load_dwordx2 s[20:21], s[0:1], 96")
    a("v_lshrrev_b32 v2, 6, v0")
    a("v_readfirstlane_b32 s27, v2")
    if DYN:
        a("s_waitcnt lgkmcnt(0)")
        dyn_assign(a, 2 + kind, NG // 8, C.LDS - 64, 27)
        a(f"s_cmp_ge_u32 s2, {NWG}")
        a(f"s_cbranch_scc1 {PREF}")
    a("s_and_b32 s22, s2, 7")
    a("s_lshr_b32 s23, s2, 3")
    if ('map%d' % kind) in OPT:
        a("s_mul_i32 s4, s23, 171")
        a("s_lshr_b32 s4, s4, 9")
        a("s_mul_i32 s5, s4, 3")
        a("s_sub_u32 s5, s23, s5")
        a("s_and_b32 s24, s22, 1")
        a("s_mul_i32 s24, s24, 3")
        a("s_add_u32 s5, s5, s24")
        a("s_lshr_b32 s24, s22, 1")
        a(f"s_mul_i32 s24, s24, {C.ntn // 4}")
        a("s_add_u32 s4, s4, s24")
    else:
        a(f"s_mul_i32 s3, s22, {C.per_xcd}")
        a("s_mul_i32 s24, s3, 171")
        a("s_lshr_b32 s24, s24, 10")
        a("s_add_u32 s3, s3, s23")
        a("s_mul_i32 s4, s3, 171")
        a("s_lshr_b32 s4, s4, 10")
        a("s_mul_i32 s5, s4, 6")
        a("s_sub_u32 s5, s3, s5")
    a("v_and_b32 v1, 63, v0")
    a("v_lshrrev_b32 v2, 6, v0")
    a("v_readfirstlane_b32 s27, v2")
    a("v_lshrrev_b32 v3, 4, v1")
    a("s_waitcnt lgkmcnt(0)")
    if C.WTEST:
        a("s_add_u32 s14, s6, 0x4000000"); a("s_addc_u32 s15, s7, 0")
        srd(a, 8, 14, 15, 0x4000000)
    else:
        srd(a, 8, 16, 17, 2048 * 4608 * 2)
    srd(a, 12, 6, 7, WS_END)
    a("s_cmp_ge_u32 s27, 4")
    a(f"s_cbranch_scc1 {PROD}")
    assert nstg % NS == 0
    nloop = nstg // NS - 1

    a("s_lshr_b32 s28, s27, 1")
    a("s_and_b32 s29, s27, 1")
    a("v_bfe_u32 v8, v1, 2, 2")
    a("v_and_b32 v9, 3, v1")
    if kind == 1:
        a("v_and_b32 v10, 1, v3")
        a("v_lshl_add_u32 v10, v10, 2, v8")
        a("v_lshl_add_u32 v11, v3, 3, v8")
        HOFF = 4 * ROWB
    else:
        a("v_lshl_add_u32 v11, v3, 2, v8")
        a("v_bfe_u32 v10, v11, 1, 2")
        HOFF = 16 * ROWB
    a(f"s_mul_i32 s30, s28, {NJ}")
    a("v_xor_b32 v10, s30, v10")
    a(f"s_movk_i32 s30, {ROWB}")
    a("v_mul_lo_u32 v11, v11, s30")
    a("v_lshl_add_u32 v11, v9, 3, v11")
    for jj in range(NJ):
        a(f"v_xor_b32 v12, {jj}, v10")
        a(f"v_lshl_add_u32 v{4+jj}, v12, 5, v11")
    a("s_mul_i32 s30, s29, 3072")
    a(f"s_add_u32 s30, s30, {ACT0}")
    a("v_lshlrev_b32 v8, 4, v1")
    a("v_add_u32 v8, s30, v8")
    a(f"v_add_u32 v9, {3*ASLOT}, v8")
    srd(a, 16, 18, 19, (4608 if kind == 1 else 2048) * 2)
    a(f"s_mul_i32 s30, s4, {TW*2}")
    a(f"s_mul_i32 s31, s28, {TW}")
    a("s_add_u32 s30, s30, s31")
    if kind == 1:
        a("v_lshlrev_b32 v10, 3, v3")
        for jj in range(NJ):
            a(f"buffer_load_dwordx2 v[{16+2*jj}:{17+2*jj}], v10, s[16:19], s30 offen offset:{32*jj}")
    else:
        a("v_and_b32 v10, 15, v1")
        a("v_lshlrev_b32 v10, 1, v10")
        for jj in range(NJ):
            a(f"buffer_load_ushort v{16+jj}, v10, s[16:19], s30 offen offset:{32*jj}")
    ACC = 160 if kind == 1 else 120
    SETSZ = 2 * (4 * NJ + 12)
    FA = [32, 32 + SETSZ]
    AO = 4 * NJ
    assert FA[1] + SETSZ <= ACC
    for r in range(12 * NJ): a(f"v_mov_b32 v{ACC+r}, 0")

    def reads(slot, st):
        out = []
        for kb in range(2):
            base = FA[st] + kb * (SETSZ // 2)
            def wr(jj):
                return [f"ds_read_b64_tr_b16 v[{base+4*jj+2*h}:{base+4*jj+2*h+1}], v{4+jj} offset:{slot*WSLOT + kb*32*ROWB + h*HOFF}" for h in range(2)]
            def ar(dd):
                va, so = (8, slot) if slot < 3 else (9, slot - 3)
                return [f"ds_read_b128 v[{base+AO+4*dd}:{base+AO+4*dd+3}], v{va} offset:{so*ASLOT + kb*6144 + dd*1024}"]
            out += wr(0) + ar(0) + ar(1) + ar(2)
            for jj in range(1, NJ): out += wr(jj)
        return out
    def mfmas(st):
        out = []
        for kb in range(2):
            base = FA[st] + kb * (SETSZ // 2)
            for jj in range(NJ):
                for dd in range(3):
                    acc = ACC + 4 * (jj * 3 + dd)
                    wf_ = f"v[{base+4*jj}:{base+4*jj+3}]"; af_ = f"v[{base+AO+4*dd}:{base+AO+4*dd+3}]"
                    if kind == 1:
                        out.append(f"v_mfma_f32_16x16x32_bf16 v[{acc}:{acc+3}], {wf_}, {af_}, v[{acc}:{acc+3}]")
                    else:
                        out.append(f"v_mfma_f32_16x16x32_bf16 v[{acc}:{acc+3}], {af_}, {wf_}, v[{acc}:{acc+3}]")
        return out
    NPRE = opt_int('npre1', 4) if kind == 1 else opt_int('npre2', 3)
    NRD = len(reads(0, 0))
    need = 5 + (2 if NPRE > 3 else 0) + (2 if NPRE > 6 else 0)
    def stage(slot, st, last):
        m = mfmas(st)
        if 'nomfma' in OPT: m = []
        a(f"s_waitcnt lgkmcnt({min(15, NRD - need)})")
        for ins in m[:NPRE]: a(ins)
        a("s_waitcnt lgkmcnt(0)")
        if last:
            for ins in m[NPRE:]: a(ins)
            return
        a("s_barrier")
        rd = reads((slot + 1) % NS, 1 - st)
        if 'nords' in OPT: rd = []
        rest = m[NPRE:]
        ng = max(1, len(rest) - 1)
        extra = max(0, len(rd) - ng)
        for i, ins in enumerate(rest):
            a(ins)
            n = 1 + (1 if i < extra else 0)
            if i == len(rest) - 1: n = len(rd)
            for _ in range(n):
                if rd: a(rd.pop(0))
        for r_ in rd: a(r_)
    a("s_barrier")
    if 'clk' in OPT:
        a("s_memtime s[64:65]"); a("s_memrealtime s[66:67]")
    for r in reads(0, 0): a(r)
    assert NS % 2 == 0
    a(f"s_movk_i32 s31, {nloop}")
    a.label(f"{P}_CLOOP")
    for s in range(NS): stage(s, s % 2, False)
    a("s_sub_u32 s31, s31, 1")
    a("s_cmp_lg_u32 s31, 0")
    a(f"s_cbranch_scc1 {P}_CLOOP")
    for s in range(NS): stage(s, s % 2, s == NS - 1)
    if 'clk' in OPT:
        a("s_memtime s[68:69]"); a("s_memrealtime s[70:71]")
        a("s_waitcnt lgkmcnt(0)")
        a("s_sub_u32 s68, s68, s64")
        a("s_sub_u32 s70, s70, s66")
        a("v_mov_b32 v10, s68"); a("v_mov_b32 v11, s70"); a("v_mov_b32 v12, s66"); a("v_mov_b32 v13, 0")
        a("s_lshl_b32 s72, s2, 6")
        a("s_lshl_b32 s73, s27, 4")
        a("s_add_u32 s72, s72, s73")
        a(f"s_add_u32 s72, s72, {0x2900000 + (0 if kind == 1 else 0x10000)}")
        srd(a, 76, 6, 7, 0x4000000)
        a("v_mov_b32 v14, 0")
        a("buffer_store_dwordx4 v[10:13], v14, s[76:79], s72 offen")

    if kind == 1:
        a("s_waitcnt vmcnt(0)")
        for jj in range(4):
            a(f"v_lshlrev_b32 v{96+4*jj}, 16, v{16+2*jj}")
            a(f"v_and_b32 v{97+4*jj}, 0xffff0000, v{16+2*jj}")
            a(f"v_lshlrev_b32 v{98+4*jj}, 16, v{17+2*jj}")
            a(f"v_and_b32 v{99+4*jj}, 0xffff0000, v{17+2*jj}")
        c0 = -2.0 * math.sqrt(2.0 / math.pi) * 1.4426950408889634
        c1 = c0 * 0.044715
        a(f"s_mov_b32 s34, {fhex(c1)}"); a(f"s_mov_b32 s35, {fhex(c1)}")
        a(f"s_mov_b32 s36, {fhex(1.0)}"); a(f"s_mov_b32 s37, {fhex(1.0)}")
        a(f"v_mov_b32 v30, {fhex(c0)}"); a(f"v_mov_b32 v31, {fhex(c0)}")
        a("s_lshl_b32 s39, s4, 1")
        a("s_add_u32 s38, s39, s28")
        a("s_mul_i32 s38, s38, 6")
        a("s_add_u32 s38, s38, s5")
        a(f"s_mul_i32 s38, s38, {2*ABLK}")
        a("s_lshl_b32 s39, s29, 9")
        a("s_add_u32 s38, s38, s39")
        a(f"s_add_u32 s38, s38, {WS_G}")
        a("v_lshrrev_b32 v9, 3, v1")
        a("v_lshlrev_b32 v9, 10, v9")
        a("v_and_b32 v10, 7, v1")
        a("v_lshl_add_u32 v9, v10, 4, v9")
        a(f"s_add_u32 s39, s38, {ABLK}")
        for kb in range(2):
            for dd in range(3):
                T = 32
                O = 112 + 4 * ((kb * 3 + dd) % 2)
                for t in range(2):
                    jj = 2 * kb + t
                    acc = ACC + 4 * (jj * 3 + dd)
                    for p in range(2):
                        x = T + 8 * t + 4 * p
                        a(f"v_cvt_pk_bf16_f32 v{x+2}, v{acc+2*p}, v{acc+2*p+1}")
                        a(f"v_lshlrev_b32 v{x}, 16, v{x+2}")
                        a(f"v_and_b32 v{x+1}, 0xffff0000, v{x+2}")
                        a(f"v_pk_add_f32 v[{x}:{x+1}], v[{x}:{x+1}], v[{96+4*jj+2*p}:{97+4*jj+2*p}]")
                        a(f"v_cvt_pk_bf16_f32 v{x+2}, v{x}, v{x+1}")
                        a(f"v_lshlrev_b32 v{x}, 16, v{x+2}")
                        a(f"v_and_b32 v{x+1}, 0xffff0000, v{x+2}")
                    for p in range(2):
                        x = T + 8 * t + 4 * p
                        a(f"v_pk_mul_f32 v[{x+2}:{x+3}], v[{x}:{x+1}], v[{x}:{x+1}]")
                        a(f"v_pk_fma_f32 v[{x+2}:{x+3}], v[{x+2}:{x+3}], s[34:35], v[30:31]")
                        a(f"v_pk_mul_f32 v[{x+2}:{x+3}], v[{x+2}:{x+3}], v[{x}:{x+1}]")
                    for p in range(2):
                        x = T + 8 * t + 4 * p
                        a(f"v_exp_f32 v{x+2}, v{x+2}")
                        a(f"v_exp_f32 v{x+3}, v{x+3}")
                    for p in range(2):
                        x = T + 8 * t + 4 * p
                        a(f"v_pk_add_f32 v[{x+2}:{x+3}], v[{x+2}:{x+3}], s[36:37]")
                    for p in range(2):
                        x = T + 8 * t + 4 * p
                        a(f"v_rcp_f32 v{x+2}, v{x+2}")
                        a(f"v_rcp_f32 v{x+3}, v{x+3}")
                    for p in range(2):
                        x = T + 8 * t + 4 * p
                        a(f"v_pk_mul_f32 v[{x}:{x+1}], v[{x}:{x+1}], v[{x+2}:{x+3}]")
                        a(f"v_cvt_pk_bf16_f32 v{O+2*t+p}, v{x}, v{x+1}")
                a(f"buffer_store_dwordx4 v[{O}:{O+3}], v9, s[12:15], s{38+kb} offen offset:{128*dd}" + (" sc1" if (kb * 3 + dd) < opt_int('gsc1', 0) else ""))
    else:
        a("s_waitcnt vmcnt(0)")
        if C.HTOV: a("s_barrier")
        for jj in range(NJ): a(f"v_lshlrev_b32 v{16+jj}, 16, v{16+jj}")
        a(f"s_mul_i32 s30, s29, {48*ROWB}")
        a(f"s_add_u32 s30, s30, {HT0}")
        for jj in range(NJ): a(f"v_add_u32 v{4+jj}, s30, v{4+jj}")
        for jj in range(NJ):
            for dd in range(3):
                r = 32 + 2 * (jj * 3 + dd)
                a(f"ds_read_b64_tr_b16 v[{r}:{r+1}], v{4+jj} offset:{dd*16*ROWB}")
        srd(a, 16, 20, 21, 2048 * 576 * 2)
        a("v_and_b32 v9, 15, v1")
        a("s_movk_i32 s30, 1152")
        a("v_mul_lo_u32 v9, v9, s30")
        a("v_lshl_add_u32 v9, v3, 3, v9")
        a(f"s_mul_i32 s30, s4, {TW}")
        a(f"s_mul_i32 s31, s28, {TW//2}")
        a("s_add_u32 s30, s30, s31")
        a("s_mul_i32 s30, s30, 1152")
        a("s_mul_i32 s31, s5, 192")
        a("s_add_u32 s30, s30, s31")
        a("s_mul_i32 s31, s29, 96")
        a("s_add_u32 s30, s30, s31")
        a("s_waitcnt lgkmcnt(0)")
        for jj in range(NJ):
            for dd in range(3):
                acc = ACC + 4 * (jj * 3 + dd)
                hr = 32 + 2 * (jj * 3 + dd)
                O = 64 + 2 * ((jj * 3 + dd) % 4)
                for p in range(2):
                    x = 80 + 4 * p
                    a(f"v_cvt_pk_bf16_f32 v{x+2}, v{acc+2*p}, v{acc+2*p+1}")
                    a(f"v_lshlrev_b32 v{x}, 16, v{x+2}")
                    a(f"v_and_b32 v{x+1}, 0xffff0000, v{x+2}")
                    a(f"v_add_f32 v{x}, v{x}, v{16+jj}")
                    a(f"v_add_f32 v{x+1}, v{x+1}, v{16+jj}")
                    a(f"v_cvt_pk_bf16_f32 v{x+2}, v{x}, v{x+1}")
                    a(f"v_lshlrev_b32 v{x}, 16, v{x+2}")
                    a(f"v_and_b32 v{x+1}, 0xffff0000, v{x+2}")
                    a(f"v_lshlrev_b32 v{x+2}, 16, v{hr+p}")
                    a(f"v_and_b32 v{x+3}, 0xffff0000, v{hr+p}")
                    a(f"v_add_f32 v{x}, v{x}, v{x+2}")
                    a(f"v_add_f32 v{x+1}, v{x+1}, v{x+3}")
                    a(f"v_cvt_pk_bf16_f32 v{O+p}, v{x}, v{x+1}")
                a(f"buffer_store_dwordx2 v[{O}:{O+1}], v9, s[16:19], s30 offen offset:{32*dd}")
            if jj < NJ - 1: a(f"s_add_u32 s30, s30, {16*1152}")
    a(f"s_branch {END}")

    a.label(PROD)
    a("s_sub_u32 s28, s27, 4")
    CPY = 'nocopy' not in OPT and not C.WTEST
    CPITCH = W1C_PITCH if kind == 1 else W2C_PITCH
    a(f"s_movk_i32 s30, {WPITCH}")
    a(f"s_mul_i32 s32, s4, {ROWB if C.WTEST >= 0 else nstg * WSLOT}")
    if CPY:
        a(f"s_and_b32 s31, s4, {3 if kind == 1 else 7}")
        a(f"s_cmp_lg_u32 s31, {1 if kind == 1 else 3}")
        a(f"s_cbranch_scc1 {P}_NOCP")
        a(f"s_movk_i32 s30, {CPITCH}")
        a(f"s_lshr_b32 s32, s4, {2 if kind == 1 else 3}")
        a(f"s_lshl_b32 s32, s32, {9 if kind == 1 else 8}")
        a(f"s_add_u32 s32, s32, {WS_W1C if kind == 1 else WS_W2C}")
        srd(a, 8, 6, 7, WS_END)
        a.label(f"{P}_NOCP")
    a("s_mov_b32 s56, s30")
    a("s_lshl_b32 s57, s30, 6")
    if kind == 1:
        a("v_and_b32 v4, 15, v1")
        a("v_lshrrev_b32 v5, 1, v4")
        a("v_and_b32 v4, 1, v4")
        a("s_lshl_b32 s29, s28, 4")
        a("v_add_u32 v6, s29, v3")
        a("v_mul_lo_u32 v6, v6, s30")
        a("v_lshl_add_u32 v6, v4, 4, v6")
        for q in range(4):
            hi = (q >> 1)
            a(f"v_or_b32 v7, {hi << 2}, v3")
            a("v_xor_b32 v7, v7, v5")
            a(f"v_lshl_add_u32 v{10+q}, v7, 5, v6")
            if q:
                a(f"s_mul_i32 s31, s56, {4*q}")
                a(f"s_sub_u32 s31, s31, {1024*q}")
                a(f"v_add_u32 v{10+q}, s31, v{10+q}")
    else:
        a("v_bfe_u32 v5, v1, 1, 2")
        a("v_and_b32 v4, 1, v1")
        a("v_lshrrev_b32 v6, 3, v1")
        a("s_lshl_b32 s29, s28, 4")
        a("v_add_u32 v6, s29, v6")
        a("v_mul_lo_u32 v6, v6, s30")
        a("v_lshl_add_u32 v6, v4, 4, v6")
        a("v_xor_b32 v7, v3, v5")
        a("v_lshl_add_u32 v10, v7, 5, v6")
        a("s_lshl_b32 s31, s56, 3")
        a("s_sub_u32 s31, s31, 1024")
        a("v_add_u32 v11, s31, v10")
    a("v_lshrrev_b32 v16, 3, v1")
    a("v_lshlrev_b32 v16, 10, v16")
    a("v_and_b32 v17, 7, v1")
    a("v_lshl_add_u32 v16, v17, 4, v16")
    a("s_lshr_b32 s30, s28, 1")
    a("s_lshl_b32 s30, s30, 13")
    a("s_and_b32 s31, s28, 1")
    a("s_lshl_b32 s31, s31, 9")
    a("s_add_u32 s30, s30, s31")
    for q in range(3):
        a(f"s_add_u32 s31, s30, {2048 - 896*q}")
        a(f"v_add_u32 v{17+q}, s31, v16")
    a(f"s_mul_i32 s33, s5, {2*ABLK}")
    a(f"s_add_u32 s33, s33, {C.ACTBASE - 2048 + opt_int('ashift', 0)}")
    ROT = ('rot' in OPT) or (('rot%d' % kind) in OPT)
    if ROT:
        RS = nstg // 8
        a("s_and_b32 s58, s2, 7")
        a(f"s_mul_i32 s58, s58, {RS}")
        a("s_mul_i32 s59, s58, s57")
        a("s_add_u32 s32, s32, s59")
        a(f"s_mul_i32 s59, s58, {12*ABLK}")
        a("s_add_u32 s33, s33, s59")
        a(f"s_sub_u32 s58, {nstg}, s58")
        a(f"s_mul_i32 s63, s57, {nstg}")
    if opt_int('wshift', 0): a(f"s_add_u32 s32, s32, {opt_int('wshift', 0)}")
    if opt_int('wxor', 0): a(f"s_xor_b32 s32, s32, {opt_int('wxor', 0)}")
    for s in range(NS):
        a(f"s_mul_i32 s30, s28, {C.NWP*1024}")
        a(f"s_add_u32 s{40+s}, s30, {s*WSLOT}")
        a("s_mul_i32 s30, s28, 3072")
        a(f"s_add_u32 s{48+s}, s30, {ACT0 + s*ASLOT}")
    if kind == 2:
        a("s_mul_i32 s29, s28, 24")
        a("v_lshrrev_b32 v6, 3, v1")
        a("v_add_u32 v6, s29, v6")
        a("v_lshlrev_b32 v15, 12, v6")
        a("v_lshl_add_u32 v15, v4, 4, v15")
        a("v_lshl_add_u32 v15, v7, 5, v15")
        a("s_mul_i32 s30, s5, 96*4096")
        a(f"s_mul_i32 s31, s4, {ROWB}")
        a("s_add_u32 s30, s30, s31")
        a(f"s_add_u32 s30, s30, {WS_HT}")
        a("s_mul_i32 s31, s28, 3072")
        a(f"s_add_u32 s31, s31, {HT0}")
        a("s_mov_b32 s36, s30"); a("s_mov_b32 s37, s31")
        def ht_issue():
            for i in range(3):
                a(f"s_add_u32 s34, s37, {1024*i}")
                a("s_mov_b32 m0, s34")
                a(f"s_add_u32 s35, s36, {i*8*4096}")
                a("buffer_load_dwordx4 v15, s[12:15], s35 offen lds")
        if not C.HTOV and 'htlate' not in OPT: ht_issue()
    AV = [17, 18, 19]
    def issue(slot):
        a(f"s_mov_b32 m0, s{40+slot}")
        for q in range(0 if 'noW' in OPT else C.NWP):
            a(f"buffer_load_dwordx4 v{10+q}, s[8:11], s32 offen offset:{1024*q} lds")
        a(f"s_mov_b32 m0, s{48+slot}")
        for q in range(0 if 'noA' in OPT else 3):
            a(f"buffer_load_dwordx4 v{AV[q]}, s[12:15], s33 offen offset:{1024*q} lds")
        if 'hot' not in OPT:
            a("s_add_u32 s32, s32, s57")
            a(f"s_add_u32 s33, s33, {12*ABLK}")
            if ROT:
                a("s_sub_u32 s58, s58, 1")
                a("s_cmp_eq_u32 s58, 0")
                a("s_cselect_b32 s59, s63, 0")
                a(f"s_cselect_b32 s64, {nstg*12*ABLK}, 0")
                a("s_sub_u32 s32, s32, s59")
                a("s_sub_u32 s33, s33, s64")
    def stamp():
        if 'stamp' not in OPT: return
        a("s_memrealtime s[60:61]")
        a("s_waitcnt lgkmcnt(0)")
        a("v_mov_b32 v22, s60")
        a("v_cmp_eq_u32 vcc, s62, v1")
        a("v_cndmask_b32 v20, v20, v22, vcc")
        a("s_add_u32 s62, s62, 1")
        a("s_and_b32 s62, s62, 63")
    if 'stamp' in OPT:
        a("s_mov_b32 s62, 0"); a("v_mov_b32 v20, 0")
    PPS = C.PPS
    stamp()
    EB = opt_int('eb%d' % kind, NS)
    for s in range(EB): issue(s)
    stamp()
    a(f"s_waitcnt vmcnt({(EB-1)*PPS})")
    a("s_barrier")
    for s in range(EB, NS): issue(s)
    if kind == 2 and not C.HTOV and 'htlate' in OPT: ht_issue()
    stamp()
    a(f"s_movk_i32 s31, {nloop}")
    a.label(f"{P}_PLOOP")
    for s in range(NS):
        a(f"s_waitcnt vmcnt({(NS-2)*PPS})")
        a("s_barrier")
        if kind == 1 or s % 2 == 0: stamp()
        issue(s)
    a("s_sub_u32 s31, s31, 1")
    a("s_cmp_lg_u32 s31, 0")
    a(f"s_cbranch_scc1 {P}_PLOOP")
    HOV = kind == 2 and C.HTOV
    for s in range(NS - 1):
        a(f"s_waitcnt vmcnt({(NS-2-s)*PPS + (3 if (HOV and s > 0) else 0)})")
        a("s_barrier")
        stamp()
        if HOV and s == 0: ht_issue()
    if HOV:
        a("s_waitcnt vmcnt(0)")
        a("s_barrier")
    if 'stamp' in OPT:
        a("s_cmp_lg_u32 s28, 0")
        a(f"s_cbranch_scc1 {END}")
        a("s_lshl_b32 s30, s2, 8")
        a(f"s_add_u32 s30, s30, {0x2400000 + (0 if kind == 1 else 0x10000)}")
        a("v_lshlrev_b32 v21, 2, v1")
        srd(a, 12, 6, 7, 0x4000000)
        a("buffer_store_dword v20, v21, s[12:15], s30 offen")
    a(f"s_branch {END}")
    a.label(PREF)
    gen_prefetch(a, 3 + kind, NWG, END)
    a.label(END)
    kst_end(a, 2 + kind, NWG + PF[3 + kind].nwg)
    a("s_endpgm")
    return name, (208 if kind == 1 else 144), C.LDS

def gen_k4(a): return gen_gemm(a, 1, "k4_kernel")
def gen_k5(a): return gen_gemm(a, 2, "k5_kernel")
```

```python
from gen import *
import os
OPT = os.environ.get('GOPT', '').split(',')
def opt_int(name, default):
    for o in OPT:
        if o.startswith(name + '='): return int(o.split('=')[1])
    return default
WS_W2D = 0x4000000
W2D_PITCH = 2048
WS_FL = 0x4900000
WS_XB = 0x4A00000
WS_END3 = WS_XB + 64 * 16 * 18 * 2048
SK = opt_int('sk', 4)
MF = 9 if SK == 4 else 6
NMT = 36 // MF
NSTG = 72 // SK
K5S_NWG = NMT * 16 * SK
S_NS = opt_int('s5ns', 4)
S_W = 16384
S_A = 2 * MF * 1024
S_ACT0 = S_NS * S_W
K5S_LDS = S_ACT0 + S_NS * S_A
NT_ = 2 * MF
NKEEP = -(-NT_ // SK)

def gen_k5s(a):
    name = "k5_kernel"
    NS = S_NS
    kernel_head(a, name)
    kst_begin(a)
    CLK = 'clk' in OPT
    NG = K5S_NWG + PF[5].nwg
    a(f"s_cmp_ge_u32 s2, {NG}")
    a("s_cbranch_scc1 K5_END")
    if PF[5].nwg:
        a(f"s_cmp_ge_u32 s2, {K5S_NWG}")
        a("s_cbranch_scc1 K5_PREF")
    a("s_load_dwordx2 s[6:7], s[0:1], 112")
    a("s_load_dwordx4 s[16:19], s[0:1], 80")
    a("s_load_dwordx2 s[20:21], s[0:1], 96")
    a("v_lshrrev_b32 v2, 6, v0")
    a("v_readfirstlane_b32 s27, v2")
    a("v_and_b32 v1, 63, v0")
    a("v_lshrrev_b32 v3, 4, v1")
    a("s_and_b32 s22, s2, 7")
    a("s_lshr_b32 s23, s2, 3")
    if SK == 4:
        a("s_lshr_b32 s24, s22, 1")
        a("s_and_b32 s25, s22, 1")
        a("s_and_b32 s5, s23, 3")
        a("s_lshr_b32 s4, s23, 2")
        a("s_lshl_b32 s26, s25, 3")
        a("s_add_u32 s4, s4, s26")
    else:
        a("s_lshr_b32 s24, s22, 2")
        a("s_and_b32 s25, s22, 3")
        a("s_mul_i32 s4, s23, 43")
        a("s_lshr_b32 s4, s4, 8")
        a("s_mul_i32 s5, s4, 6")
        a("s_sub_u32 s5, s23, s5")
        a("s_lshl_b32 s26, s25, 2")
        a("s_add_u32 s4, s4, s26")
    a(f"s_mul_i32 s3, s4, {NMT}")
    a("s_add_u32 s3, s3, s5")
    a("s_waitcnt lgkmcnt(0)")
    srd(a, 12, 6, 7, WS_END3)
    a("s_cmp_ge_u32 s27, 4")
    a("s_cbranch_scc1 K5_PROD")

    a("v_bfe_u32 v8, v1, 2, 2")
    a("v_and_b32 v9, 3, v1")
    a("v_and_b32 v10, 1, v3")
    a("v_lshl_add_u32 v10, v10, 2, v8")
    a("v_lshl_add_u32 v11, v3, 2, v8")
    a("s_lshl_b32 s30, s27, 1")
    a("v_xor_b32 v10, s30, v10")
    a("v_lshlrev_b32 v11, 8, v11")
    a("v_lshl_add_u32 v11, v9, 3, v11")
    a("v_lshl_add_u32 v4, v10, 5, v11")
    a("v_xor_b32 v10, 1, v10")
    a("v_lshl_add_u32 v5, v10, 5, v11")
    a("v_lshlrev_b32 v8, 4, v1")
    a(f"v_add_u32 v8, {S_ACT0}, v8")
    a(f"v_add_u32 v9, {2*S_A}, v8")
    if NS > 4: a(f"v_add_u32 v6, {4*S_A}, v8")
    if NS > 4: a(f"v_add_u32 v7, {65536}, v4"); a(f"v_add_u32 v15, {65536}, v5")
    SZ = 4 * MF + 8
    SET = [32, 32 + SZ]
    ACC = 32 + 2 * SZ
    HV = ACC + 4 * NT_
    BV = HV + 4 * NKEEP
    for r in range(4 * NT_): a(f"v_mov_b32 v{ACC+r}, 0")
    def reads(n):
        sg, kb = divmod(n, 2)
        sl = sg % NS
        b = SET[n % 2]
        va = (8, 9, 6)[sl // 2]
        vw = (4, 5) if sl < 4 else (7, 15)
        wo = (sl % 4) * S_W
        def wr(jj): return [(f"ds_read_b64_tr_b16 v[{b+4*MF+4*jj+2*h}:{b+4*MF+4*jj+2*h+1}], v{vw[jj]} offset:{wo + kb*8192 + h*4096}", ('w', jj, h)) for h in range(2)]
        def ar(dd): return [(f"ds_read_b128 v[{b+4*dd}:{b+4*dd+3}], v{va} offset:{(sl%2)*S_A + (kb*MF + dd)*1024}", ('a', dd))]
        out = wr(0) + ar(0) + wr(1) + ar(1)
        for dd in range(2, MF): out += ar(dd)
        return out
    NRD = MF + 4
    NPRE = opt_int('npre5', 4 if SK == 4 else 2)
    class Q: pass
    q = Q(); q.issued = 0; q.done = 0; q.pos = {}
    def rd_issue(n, item):
        a(item[0]); q.pos[(n % 2, item[1])] = q.issued; q.issued += 1
    def need(keys):
        p = max(q.pos[k] for k in keys)
        if p >= q.done:
            a(f"s_waitcnt lgkmcnt({min(15, q.issued - 1 - p)})")
            q.done = p + 1 if q.issued - 1 - p <= 15 else q.issued - 15
    def half(n):
        b = SET[n % 2]
        nxt = reads(n + 1) if n + 1 < 2 * NSTG else []
        odd = n % 2 == 1
        k = 0
        for dd in range(MF):
            for jj in range(2):
                if odd and k == NPRE and nxt:
                    a("s_waitcnt lgkmcnt(0)"); q.done = q.issued
                    a("s_barrier")
                need([(n % 2, ('a', dd)), (n % 2, ('w', jj, 0)), (n % 2, ('w', jj, 1))])
                acc = ACC + 4 * (2 * dd + jj)
                a(f"v_mfma_f32_16x16x32_bf16 v[{acc}:{acc+3}], v[{b+4*dd}:{b+4*dd+3}], v[{b+4*MF+4*jj}:{b+4*MF+4*jj+3}], v[{acc}:{acc+3}]")
                if nxt and (not odd or k >= NPRE):
                    rd_issue(n + 1, nxt.pop(0))
                    left = 2 * MF - 1 - k
                    while len(nxt) > left: rd_issue(n + 1, nxt.pop(0))
                k += 1
        for it in nxt: rd_issue(n + 1, it)
    a("s_barrier")
    if CLK:
        a("s_memtime s[64:65]"); a("s_memrealtime s[66:67]")
        a("s_waitcnt lgkmcnt(0)")
    for it in reads(0): rd_issue(0, it)
    a("v_and_b32 v10, 15, v1")
    a("v_lshlrev_b32 v10, 1, v10")
    a("v_lshl_add_u32 v11, v3, 14, v10")
    a("s_lshl_b32 s30, s4, 7")
    a("s_lshl_b32 s31, s27, 5")
    a("s_add_u32 s30, s30, s31")
    a("s_and_b32 s31, s24, 1")
    a("s_lshl_b32 s31, s31, 4")
    a("s_add_u32 s30, s30, s31")
    a("s_mov_b32 s38, s30")
    a("s_lshl_b32 s30, s30, 1")
    srd(a, 16, 18, 19, 2048 * 2)
    a(f"buffer_load_ushort v{BV}, v10, s[16:19], s30 offen")
    a(f"s_mul_i32 s31, s5, {16*MF}")
    a("s_lshr_b32 s33, s24, 1")
    a("s_lshl_b32 s33, s33, 4")
    a("s_add_u32 s31, s31, s33")
    a("s_mov_b32 s39, s31")
    a("s_lshl_b32 s31, s31, 12")
    a("s_add_u32 s30, s30, s31")
    a(f"s_add_u32 s30, s30, {WS_HT}")
    for i in range(NKEEP):
        for r in range(4):
            a(f"buffer_load_ushort v{HV+4*i+r}, v11, s[12:15], s30 offen")
            if r < 3: a("s_add_u32 s30, s30, 4096")
        if i < NKEEP - 1: a(f"s_add_u32 s30, s30, {(8*SK - 3)*4096}")
    nl = (NSTG - 1) // NS
    if NS % 2 == 0 or True:
        a(f"s_movk_i32 s31, {nl}")
        a.label("K5_CLOOP")
        q.done = q.issued - NRD
        for n in range(2 * NS): half(n)
        a("s_sub_u32 s31, s31, 1")
        a("s_cmp_lg_u32 s31, 0")
        a("s_cbranch_scc1 K5_CLOOP")
        q.done = q.issued - NRD
        for n in range(2 * NS * nl, 2 * NSTG): half(n)
    a("s_waitcnt vmcnt(0)")
    if CLK:
        a("s_memtime s[68:69]"); a("s_memrealtime s[70:71]")
        a("s_waitcnt lgkmcnt(0)")
        a("s_sub_u32 s68, s68, s64")
        a("s_sub_u32 s70, s70, s66")
        a("v_mov_b32 v24, s68"); a("v_mov_b32 v25, s70"); a("v_mov_b32 v26, s66"); a("v_mov_b32 v27, 0")
        a("s_lshl_b32 s72, s2, 6")
        a("s_lshl_b32 s73, s27, 4")
        a("s_add_u32 s72, s72, s73")
        a(f"s_add_u32 s72, s72, {0x2900000 + 0x10000}")
        a("v_mov_b32 v28, 0")
        a("buffer_store_dwordx4 v[24:27], v28, s[12:15], s72 offen")

    a("v_lshrrev_b32 v10, 3, v1")
    a("v_cmp_le_u32 vcc, 3, v10")
    a("v_addc_co_u32 v10, vcc, 0, v10, vcc")
    a("v_and_b32 v11, 7, v1")
    a("v_lshlrev_b32 v11, 4, v11")
    a("v_lshl_add_u32 v10, v10, 7, v11")
    a(f"s_mul_i32 s30, s3, {4*SK}")
    a("s_add_u32 s30, s30, s27")
    a("s_lshl_b32 s34, s30, 7")
    a(f"s_add_u32 s34, s34, {WS_FL}")
    a(f"s_mul_i32 s30, s30, {NT_*2048}")
    a(f"s_add_u32 s30, s30, {WS_XB}")
    SRCS = 4 * NT_ * 2048
    srd(a, 16, 20, 21, 2048 * 576 * 2)
    a("v_and_b32 v9, 15, v1")
    a("v_lshlrev_b32 v12, 9, v9")
    a("v_mul_u32_u24 v9, 1152, v9")
    a("v_lshl_add_u32 v9, v3, 3, v9")
    a("s_mul_i32 s38, s38, 1152")
    a("s_lshl_b32 s39, s39, 1")
    a("s_add_u32 s38, s38, s39")
    a(f"v_lshlrev_b32 v{BV}, 16, v{BV}")
    NOX = 'nox' in OPT
    XST = 'xst' in OPT
    def xst(i):
        if XST: a(f"s_memrealtime s[{40+2*i}:{41+2*i}]")
    xst(0)
    for kq in range(SK):
        if kq < SK - 1:
            a(f"s_cmp_lg_u32 s24, {kq}")
            a(f"s_cbranch_scc1 K5_X{kq+1}")
        keep = [t for t in range(NT_) if t % SK == kq]
        send = [t for t in range(NT_) if t % SK != kq]
        a(f"s_add_u32 s31, s30, {kq*SRCS}")
        prev = 0
        for t in send:
            while (t - prev) >= 2:
                a(f"s_add_u32 s31, s31, {2*2048}"); prev += 2
            acc = ACC + 4 * t
            if not NOX: a(f"buffer_store_dwordx4 v[{acc}:{acc+3}], v10, s[12:15], s31 offen offset:{(t-prev)*2048} sc1")
        xst(1)
        a("s_waitcnt vmcnt(0)")
        xst(2)
        a("v_mov_b32 v13, 1")
        a("v_mov_b32 v14, 0")
        a(f"s_add_u32 s31, s34, {kq*512}")
        a("s_mov_b64 exec, 1")
        a("buffer_store_dword v13, v14, s[12:15], s31 offen sc1")
        a(f"s_mov_b64 exec, {(1 << SK) - 1}")
        needm = ((1 << SK) - 1) & ~(1 << kq)
        a("s_mov_b32 s36, 0x100000")
        a.label(f"K5_P{kq}")
        a("s_sub_u32 s36, s36, 1")
        a("s_cmp_eq_u32 s36, 0")
        a(f"s_cbranch_scc1 K5_G{kq}")
        a("buffer_load_dword v13, v12, s[12:15], s34 offen sc1")
        a("s_waitcnt vmcnt(0)")
        a("v_cmp_ne_u32 vcc, 0, v13")
        a(f"s_and_b32 s35, vcc_lo, {needm}")
        a(f"s_cmp_eq_u32 s35, {needm}")
        a(f"s_cbranch_scc1 K5_G{kq}")
        a("s_sleep 1")
        a(f"s_branch K5_P{kq}")
        a.label(f"K5_G{kq}")
        a("s_mov_b64 exec, -1")
        xst(3)
        srcs = [s_ for s_ in range(SK) if s_ != kq]
        NSRC = SK - 1
        for i, t in enumerate(keep):
            for k, s_ in enumerate(srcs):
                off = s_ * SRCS + t * 2048
                r = 32 + 4 * (NSRC * i + k)
                a(f"s_add_u32 s31, s30, {off}")
                a(f"buffer_load_dwordx4 v[{r}:{r+3}], v10, s[12:15], s31 offen sc1")
        nk = len(keep)
        for i, t in enumerate(keep):
            acc = ACC + 4 * t
            a(f"s_waitcnt vmcnt({NSRC*(nk-1-i) + i})")
            if i == 0: xst(4)
            if i == nk - 1: xst(5)
            for k in range(NSRC):
                r = 32 + 4 * (NSRC * i + k)
                a(f"v_pk_add_f32 v[{acc}:{acc+1}], v[{acc}:{acc+1}], v[{r}:{r+1}]")
                a(f"v_pk_add_f32 v[{acc+2}:{acc+3}], v[{acc+2}:{acc+3}], v[{r+2}:{r+3}]")
            O = 24 + 2 * (i % 2)
            for p in range(2):
                x = 16 + 4 * p
                a(f"v_cvt_pk_bf16_f32 v{x+2}, v{acc+2*p}, v{acc+2*p+1}")
                a(f"v_lshlrev_b32 v{x}, 16, v{x+2}")
                a(f"v_and_b32 v{x+1}, 0xffff0000, v{x+2}")
                a(f"v_add_f32 v{x}, v{x}, v{BV}")
                a(f"v_add_f32 v{x+1}, v{x+1}, v{BV}")
                a(f"v_cvt_pk_bf16_f32 v{x+2}, v{x}, v{x+1}")
                a(f"v_lshlrev_b32 v{x}, 16, v{x+2}")
                a(f"v_and_b32 v{x+1}, 0xffff0000, v{x+2}")
                a(f"v_lshlrev_b32 v{x+2}, 16, v{HV+4*i+2*p}")
                a(f"v_lshlrev_b32 v{x+3}, 16, v{HV+4*i+2*p+1}")
                a(f"v_add_f32 v{x}, v{x}, v{x+2}")
                a(f"v_add_f32 v{x+1}, v{x+1}, v{x+3}")
                a(f"v_cvt_pk_bf16_f32 v{O+p}, v{x}, v{x+1}")
            a(f"buffer_store_dwordx2 v[{O}:{O+1}], v9, s[16:19], s38 offen offset:{16*SK*i}")
        if XST:
            a("s_waitcnt vmcnt(0)")
            xst(6)
            a("s_waitcnt lgkmcnt(0)")
            for i in range(7): a(f"v_mov_b32 v{32+i}, s{40+2*i}")
            a(f"v_mov_b32 v39, s36")
            a("s_lshl_b32 s72, s2, 2")
            a("s_add_u32 s72, s72, s27")
            a("s_lshl_b32 s72, s72, 5")
            a(f"s_add_u32 s72, s72, {0x2800000}")
            a("v_mov_b32 v28, 0")
            a("s_mov_b64 exec, 1")
            a("buffer_store_dwordx4 v[32:35], v28, s[12:15], s72 offen")
            a("buffer_store_dwordx4 v[36:39], v28, s[12:15], s72 offen offset:16")
            a("s_mov_b64 exec, -1")
        a("s_branch K5_END")
        if kq < SK - 1: a.label(f"K5_X{kq+1}")

    a.label("K5_PROD")
    a("s_sub_u32 s28, s27, 4")
    srd(a, 8, 16, 17, 4608 * 4096)
    a("s_movk_i32 s30, 4096")
    a("s_lshl_b32 s32, s4, 8")
    if 'nocopy5' not in OPT:
        a("s_and_b32 s31, s4, 3")
        a("s_cmp_lg_u32 s31, 1")
        a("s_cbranch_scc1 K5_NOCP")
        a(f"s_movk_i32 s30, {W2D_PITCH}")
        a("s_lshr_b32 s32, s4, 2")
        a("s_lshl_b32 s32, s32, 9")
        a(f"s_add_u32 s32, s32, {WS_W2D}")
        srd(a, 8, 6, 7, WS_END3)
        a.label("K5_NOCP")
    a("s_lshl_b32 s57, s30, 6")
    a(f"s_mul_i32 s58, s24, {NSTG}")
    a("s_mul_i32 s59, s25, 9")
    a("s_add_u32 s58, s58, s59")
    a("s_mul_i32 s60, s58, s57")
    a("s_add_u32 s32, s32, s60")
    a(f"s_mul_i32 s33, s58, {12*ABLK}")
    a(f"s_add_u32 s33, s33, {WS_G - 4096}")
    a(f"s_sub_u32 s58, {NSTG}, s59")
    a(f"s_mul_i32 s63, s57, {NSTG}")
    a("v_and_b32 v4, 15, v1")
    a("v_lshrrev_b32 v5, 1, v4")
    a("v_and_b32 v4, 1, v4")
    a("s_lshl_b32 s29, s28, 4")
    a("v_add_u32 v6, s29, v3")
    a("v_mul_lo_u32 v6, v6, s30")
    a("v_lshl_add_u32 v6, v4, 4, v6")
    for qq in range(4):
        a(f"v_or_b32 v7, {(qq & 1) << 2}, v3")
        a("v_xor_b32 v7, v7, v5")
        a(f"v_lshl_add_u32 v{10+qq}, v7, 5, v6")
        if qq:
            a(f"s_mul_i32 s31, s30, {4*qq}")
            a(f"s_sub_u32 s31, s31, {1024*qq}")
            a(f"v_add_u32 v{10+qq}, s31, v{10+qq}")
    a("v_lshrrev_b32 v16, 3, v1")
    a("v_lshlrev_b32 v16, 10, v16")
    a("v_and_b32 v17, 7, v1")
    a("v_lshl_add_u32 v16, v17, 4, v16")
    if SK == 4:
        a("s_mul_i32 s34, s28, 5")
        a("s_lshl_b32 s35, s28, 2")
        a("s_add_u32 s35, s35, 2")
        a("s_cmp_lt_u32 s28, 2")
        a("s_cselect_b32 s34, s34, s35")
        NAP = 5
    else:
        a("s_mul_i32 s34, s28, 3")
        NAP = 3
    a(f"s_mul_i32 s61, s5, {MF}")
    for i in range(NAP):
        a(f"s_add_u32 s35, s34, {i}")
        a(f"s_cmp_ge_u32 s35, {MF}")
        a("s_cselect_b32 s36, 1, 0")
        a(f"s_mul_i32 s37, s36, {MF}")
        a("s_sub_u32 s35, s35, s37")
        a("s_add_u32 s35, s35, s61")
        a("s_mul_i32 s37, s35, 43")
        a("s_lshr_b32 s37, s37, 8")
        a("s_mul_i32 s62, s37, 6")
        a("s_sub_u32 s35, s35, s62")
        a("s_cmp_ge_u32 s35, 3")
        a("s_addc_u32 s35, s35, 0")
        a("s_lshl_b32 s35, s35, 7")
        a("s_lshl_b32 s37, s37, 1")
        a("s_add_u32 s37, s37, s36")
        a(f"s_lshl_b32 s37, s37, 13")
        a("s_add_u32 s35, s35, s37")
        a(f"s_add_u32 s35, s35, {4096 - 1024*(i % 4)}")
        a(f"v_add_u32 v{17+i}, s35, v16")
    for s_ in range(NS):
        a("s_lshl_b32 s30, s28, 12")
        a(f"s_add_u32 s{40+s_}, s30, {s_*S_W}")
        a("s_lshl_b32 s30, s34, 10")
        a(f"s_add_u32 s{46+s_}, s30, {S_ACT0 + s_*S_A}")
        a(f"s_add_u32 s{66+s_}, s{46+s_}, 4096")
    def issue(k, na):
        sl = k % NS
        a(f"s_mov_b32 m0, s{40+sl}")
        for qq in range(4): a(f"buffer_load_dwordx4 v{10+qq}, s[8:11], s32 offen offset:{1024*qq} lds")
        a(f"s_mov_b32 m0, s{46+sl}")
        for i in range(min(na, 4)): a(f"buffer_load_dwordx4 v{17+i}, s[12:15], s33 offen offset:{1024*i} lds")
        if na == 5:
            a(f"s_mov_b32 m0, s{66+sl}")
            a("buffer_load_dwordx4 v21, s[12:15], s33 offen lds")
        a("s_add_u32 s32, s32, s57")
        a(f"s_add_u32 s33, s33, {12*ABLK}")
        a("s_sub_u32 s58, s58, 1")
        a("s_cmp_eq_u32 s58, 0")
        a("s_cselect_b32 s59, s63, 0")
        a(f"s_cselect_b32 s64, {NSTG*12*ABLK}, 0")
        a("s_sub_u32 s32, s32, s59")
        a("s_sub_u32 s33, s33, s64")
    EB = opt_int('eb5', 2)
    variants = (5, 4) if SK == 4 else (3,)
    if SK == 4:
        a("s_cmp_ge_u32 s28, 2")
        a("s_cbranch_scc1 K5_PR4")
    for na in variants:
        PPS = 4 + na
        for k in range(EB): issue(k, na)
        a(f"s_waitcnt vmcnt({(EB-1)*PPS})")
        a("s_barrier")
        for k in range(EB, NS): issue(k, na)
        for k in range(1, NSTG):
            a(f"s_waitcnt vmcnt({(min(k + NS - 2, NSTG - 1) - k) * PPS})")
            a("s_barrier")
            if k + NS - 1 < NSTG: issue(k + NS - 1, na)
        a("s_branch K5_END")
        if na == 5: a.label("K5_PR4")
    if PF[5].nwg:
        a.label("K5_PREF")
        gen_prefetch(a, 5, K5S_NWG, "K5_END")
    a.label("K5_END")
    kst_end(a, 4, NG)
    a("s_endpgm")
    return name, BV + 4, K5S_LDS
```

```python
from gen import *
from gen_k2 import *
from gen_gemm import *
from gen_k12 import *
from gen_k12b import *
from gen_k12c import *
from gen_k5s import *
def main():
    import sys
    if 'k5s' in os.environ.get('GOPT', '').split(','):
        launches = [("k1_kernel", 256, 768, K12C_LDS), ("k3_kernel", K3_NWG + PF[3].nwg, 192, 1088),
                    ("k4_kernel", GC(1).NWG + PF[4].nwg, 512, GC(1).LDS), ("k5_kernel", K5S_NWG + PF[5].nwg, 512, K5S_LDS)]
        txt = build([gen_k12c, gen_k3, gen_k4, gen_k5s], launches)
    elif 'fuse3' in os.environ.get('GOPT', '').split(','):
        launches = [("k1_kernel", 256, 768, K12C_LDS), ("k3_kernel", K3_NWG + PF[3].nwg, 192, 1088),
                    ("k4_kernel", GC(1).NWG + PF[4].nwg, 512, GC(1).LDS), ("k5_kernel", GC(2).NWG + PF[5].nwg, 512, GC(2).LDS)]
        txt = build([gen_k12c, gen_k3, gen_k4, gen_k5], launches)
    elif 'fuse2' in os.environ.get('GOPT', '').split(','):
        launches = [("k1_kernel", 256, 768, K12B_LDS), ("k3_kernel", K3_NWG + PF[3].nwg, 192, 1088),
                    ("k4_kernel", GC(1).NWG + PF[4].nwg, 512, GC(1).LDS), ("k5_kernel", GC(2).NWG + PF[5].nwg, 512, GC(2).LDS)]
        txt = build([gen_k12b, gen_k3, gen_k4, gen_k5], launches)
    elif 'fuse' in os.environ.get('GOPT', '').split(','):
        launches = [("k1_kernel", 640 + PF[1].nwg, 256, K12_LDS), ("k3_kernel", K3_NWG + PF[3].nwg, 192, 1088),
                    ("k4_kernel", GC(1).NWG + PF[4].nwg, 512, GC(1).LDS), ("k5_kernel", GC(2).NWG + PF[5].nwg, 512, GC(2).LDS)]
        txt = build([gen_k12, gen_k3, gen_k4, gen_k5], launches)
    else:
        launches = [("k1_kernel", 640 + PF[1].nwg, 256, 38912), ("k2_kernel", 576 + PF[2].nwg, 256, 33280+512+4096), ("k3_kernel", K3_NWG + PF[3].nwg, 192, 1088),
                    ("k4_kernel", GC(1).NWG + PF[4].nwg, 512, GC(1).LDS), ("k5_kernel", GC(2).NWG + PF[5].nwg, 512, GC(2).LDS)]
        txt = build([gen_k1, gen_k2, gen_k3, gen_k4, gen_k5], launches)
    open('test.s', 'w').write(txt)
```

```python
import sys
sys.path.insert(0, 'gen')
from asmlib import *

NAME = "sequential_preLN__ssm_conv_s4d__mixer_token_mlp__prompt"
L, D, NM, F = 2048, 576, 128, 4608
WS_UT = 0x0
WS_XT = 0x240000
WS_R  = 0x480000
RSTRIDE = 8256; ROFF = 4128
WS_HT = 0x910000
HTP = 'htp' in __import__('os').environ.get('GOPT', '').split(',')
WS_HTP = 0x480000
WS_HN = 0xB50000
WS_G  = 0xE50000
WS_W1C = 0x1510000
W1C_PITCH = 4608
WS_W2C = 0x1E10000
W2C_PITCH = 1024
WS_CNT = 0x2290000
WS_END = 0x22A0000
ABLK = 8192
LOG2E = 0x3fb8aa3b
INV2PI = 0x3e22f983

def fhex(x):
    import struct
    return "0x%08x" % struct.unpack('<I', struct.pack('<f', x))[0]

def srd(a, s, lo, hi, size):
    a(f"s_mov_b32 s{s}, s{lo} ; srd")
    a(f"s_and_b32 s{s+1}, s{hi}, 0xffff ; srd")
    a(f"s_mov_b32 s{s+2}, {hex(size)} ; srd")
    a(f"s_mov_b32 s{s+3}, 0x00020000 ; srd")

def lint_srd(lines, name):
    import re
    tag = {}
    pend = set()
    bad = 0
    for k, t in lines:
        if k != 'i': continue
        it = Ins(t)
        if it.mn == 's_waitcnt' and 'lgkmcnt(0)' in t: pend = set()
        if it.mn.startswith('s_load'):
            for r in it.wr:
                if r in pend: print(f"LINT {name}: s_load into {r} while a load to it is pending: {t}"); bad += 1
            pend |= set(it.wr)
        if it.mn.startswith('buffer_'):
            q = [o for o in it.ops if re.match(r'^s\[\d+:\d+\]$', o)]
            if q:
                regs = regs_of(q[0])
                for r in regs:
                    if tag.get(r) != 'srd': print(f"LINT {name}: {r} of SRD not from srd(): {t}"); bad += 1
                    if r in pend: print(f"LINT {name}: {r} pending s_load: {t}"); bad += 1
        for r in it.wr:
            if r[0] == 's': tag[r] = 'srd' if '; srd' in t else 'other'
    return bad

def kernel_head(a, name):
    a.raw(f".globl {name}\n.p2align 8\n.type {name},@function\n{name}:")

import os
STAMP = 'kst' in os.environ.get('GOPT', '').split(',')
STAMP_BASE = 0x3000000
def kst_begin(a):
    if not STAMP: return
    a("s_memrealtime s[94:95]")
    a("v_readfirstlane_b32 s93, v0")
def kst_end(a, kidx, nwg):
    if not STAMP: return
    lab = f"KST_{kidx}"
    a(f"s_cmp_ge_u32 s2, {nwg}")
    a(f"s_cbranch_scc1 {lab}")
    a("s_mov_b64 exec, -1")
    a("s_waitcnt vmcnt(0) lgkmcnt(0)")
    a("s_lshr_b32 s86, s93, 6")
    a("s_memrealtime s[92:93]")
    a("s_load_dwordx2 s[6:7], s[0:1], 112")
    a("s_waitcnt lgkmcnt(0)")
    srd(a, 88, 6, 7, 0x4000000)
    a("s_lshl_b32 s86, s86, 3")
    a("v_mov_b32 v2, s86")
    a(f"s_lshl_b32 s87, s2, 7")
    a(f"s_add_u32 s87, s87, {STAMP_BASE + kidx * 0x20000}")
    a("v_mov_b32 v0, s94")
    a("v_mov_b32 v1, s92")
    a("s_mov_b64 exec, 1")
    a("buffer_store_dwordx2 v[0:1], v2, s[88:91], s87 offen")
    a.label(lab)

def kernel_desc(name, vgpr, sgpr=96, accum=None):
    acc = accum if accum is not None else ((vgpr + 3) // 4) * 4
    return f""".amdhsa_kernel {name}
  .amdhsa_next_free_vgpr {vgpr}
  .amdhsa_next_free_sgpr {sgpr}
  .amdhsa_accum_offset {acc}
  .amdhsa_group_segment_fixed_size 0
  .amdhsa_kernarg_size 120
  .amdhsa_user_sgpr_count 2
  .amdhsa_user_sgpr_kernarg_segment_ptr 1
  .amdhsa_system_sgpr_workgroup_id_x 1
.end_amdhsa_kernel
"""


DYN = 'dyn' in os.environ.get('GOPT', '').split(',')
def dyn_assign(a, kidx, quota, lds_off, swave, sws=(6, 7)):
    if not DYN: return
    L = f"DYN{kidx}"
    a(f"s_cmp_lg_u32 s{swave}, 0")
    a(f"s_cbranch_scc1 {L}_W")
    a("s_getreg_b32 s60, hwreg(HW_REG_XCC_ID, 0, 3)")
    srd(a, 64, sws[0], sws[1], WS_END)
    a("s_mov_b32 s61, 0")
    a("v_mov_b32 v61, 0")
    a("s_mov_b64 exec, 1")
    a.label(f"{L}_L")
    a("s_add_u32 s62, s60, s61")
    a("s_and_b32 s62, s62, 7")
    a("s_lshl_b32 s63, s62, 8")
    a(f"s_add_u32 s63, s63, {WS_CNT + kidx * 2048}")
    a("v_mov_b32 v60, 1")
    a("buffer_atomic_add v60, v61, s[64:67], s63 offen sc0")
    a("s_waitcnt vmcnt(0)")
    a("v_readfirstlane_b32 s68, v60")
    a(f"s_cmp_lt_u32 s68, {quota}")
    a(f"s_cbranch_scc1 {L}_D")
    a("s_add_u32 s61, s61, 1")
    a("s_cmp_lt_u32 s61, 8")
    a(f"s_cbranch_scc1 {L}_L")
    a.label(f"{L}_D")
    a("s_lshl_b32 s68, s68, 3")
    a("s_add_u32 s68, s68, s62")
    a("v_mov_b32 v60, s68")
    a(f"v_mov_b32 v61, {lds_off}")
    a("ds_write_b32 v61, v60")
    a("s_mov_b64 exec, -1")
    a("s_waitcnt lgkmcnt(0)")
    a.label(f"{L}_W")
    a("s_barrier")
    a(f"v_mov_b32 v61, {lds_off}")
    a("ds_read_b32 v60, v61")
    a("s_waitcnt lgkmcnt(0)")
    a("v_readfirstlane_b32 s2, v60")

class PFC:
    def __init__(s, nwg, nwv, jobs): s.nwg = nwg; s.nwv = nwv; s.jobs = jobs
def _pfopt():
    d = {1: PFC(0, 4, []), 2: PFC(0, 4, []), 3: PFC(0, 3, []), 4: PFC(0, 8, []), 5: PFC(0, 8, [])}
    for o in os.environ.get('GOPT', '').split(','):
        if o.startswith('pf='):
            for k, spec in enumerate(o[3:].split('/')):
                if not spec or spec == '0': continue
                n, js = spec.split(':')
                d[k + 1].nwg = int(n)
                d[k + 1].jobs = [tuple(int(x) for x in j.split('.')) for j in js.split('+') if j]
    return d
PF = _pfopt()
if {'fuse2', 'fuse3'} & set(os.environ.get('GOPT', '').split(',')): PF[1].nwv = 12; PF[1].nwg = 64
def t8_addr(a, sx, vlane, vo, vt, s0, s1):
    assert s0 % 2 == 0 and s1 == s0 + 1
    a(f"s_lshr_b32 s{s0}, s{sx}, 1")
    a(f"s_lshl_b32 s{s0}, s{s0}, 4")
    a(f"s_mov_b32 s{s1}, 0x33214320")
    a(f"s_cmp_ge_u32 s{s0}, 32")
    a(f"s_cselect_b32 s{s1}, 0x43104210, s{s1}")
    a(f"s_and_b32 s{s0}, s{s0}, 16")
    a(f"s_lshr_b32 s{s1}, s{s1}, s{s0}")
    a(f"v_bfe_u32 v{vt}, v{vlane}, 1, 2")
    a(f"v_lshlrev_b32 v{vt}, 2, v{vt}")
    a(f"v_lshrrev_b32 v{vt}, v{vt}, s{s1}")
    a(f"v_and_b32 v{vt}, 15, v{vt}")
    a(f"s_mul_i32 s{s0}, s{sx}, 27*171".replace("27*171", str(27*171)))
    a(f"s_lshr_b32 s{s0}, s{s0}, 10")
    a(f"v_add_u32 v{vt}, s{s0}, v{vt}")
    a(f"v_lshrrev_b32 v{vo}, 3, v{vlane}")
    a(f"v_mul_u32_u24 v{vo}, 9216, v{vo}")
    a(f"v_lshl_add_u32 v{vo}, v{vt}, 8, v{vo}")
    a(f"v_and_b32 v{vt}, 1, v{vlane}")
    a(f"v_lshl_add_u32 v{vo}, v{vt}, 7, v{vo}")

def gen_prefetch(a, k, nmain, endlab):
    c = PF[k]
    if c.nwg == 0:
        a(f"s_branch {endlab}")
        return
    assert c.nwg % 8 == 0 and nmain % 8 == 0
    a(f"s_cmp_ge_u32 s2, {nmain + c.nwg}")
    a(f"s_cbranch_scc1 {endlab}")
    a("s_load_dwordx2 s[16:17], s[0:1], 64")
    a("s_load_dwordx2 s[18:19], s[0:1], 80")
    a("v_and_b32 v1, 63, v0")
    a("v_lshrrev_b32 v2, 6, v0")
    a("v_readfirstlane_b32 s27, v2")
    a(f"s_sub_u32 s3, s2, {nmain}")
    a("s_lshr_b32 s3, s3, 3")
    a(f"s_mul_i32 s3, s3, {c.nwv}")
    a("s_add_u32 s3, s3, s27")
    a("s_and_b32 s4, s2, 7")
    NWX = c.nwg // 8 * c.nwv
    NWA = c.nwg * c.nwv
    a("s_waitcnt lgkmcnt(0)")
    _o = os.environ.get('GOPT', '').split(',')
    if k == 4 and 'k5s' in _o:
        from gen_k5s import WS_FL, WS_END3
        a("s_load_dwordx2 s[6:7], s[0:1], 112")
        a(f"s_sub_u32 s21, s2, {nmain}")
        a(f"s_mul_i32 s21, s21, {c.nwv}")
        a("s_add_u32 s21, s21, s27")
        a("s_waitcnt lgkmcnt(0)")
        lab = a.newlabel("PF_ZF")
        a("s_cmp_ge_u32 s21, 16")
        a(f"s_cbranch_scc1 {lab}")
        srd(a, 28, 6, 7, WS_END3)
        a("v_lshlrev_b32 v4, 7, v1")
        a("v_mov_b32 v5, 0")
        a("s_lshl_b32 s21, s21, 13")
        a(f"s_add_u32 s21, s21, {WS_FL}")
        a("buffer_store_dword v5, v4, s[28:31], s21 offen")
        a.label(lab)
    cpk = {1: 1, 2: 2}
    for o in _o:
        if o.startswith('cp1='): cpk[1] = int(o[4:])
        if o.startswith('cp2='): cpk[2] = int(o[4:])
    assert cpk[1] != cpk[2]
    if 'icp1' in _o: cpk[1] = -1
    CP = {cpk[1]: 1, cpk[2]: 2}.get(k, 0) if 'nocopy' not in _o else 0
    ncp = 0
    if CP:
        a("s_load_dwordx2 s[6:7], s[0:1], 112")
        a(f"s_sub_u32 s21, s2, {nmain}")
        a(f"s_mul_i32 s21, s21, {c.nwv}")
        a("s_add_u32 s21, s21, s27")
        if CP == 1:
            srd(a, 24, 16, 17, 2048 * 9216)
            a("v_lshrrev_b32 v6, 4, v1")
            a("v_and_b32 v7, 15, v1")
            a("v_mul_u32_u24 v4, 9216, v6")
            a("v_lshl_add_u32 v4, v7, 4, v4")
            a("v_add_u32 v4, 256, v4")
            a(f"v_mul_u32_u24 v5, {W1C_PITCH}, v6")
            a("v_lshl_add_u32 v5, v7, 4, v5")
            nr = -(-512 // NWA)
            assert nr == 1
            a("s_mul_i32 s22, s21, 4*9216".replace("4*9216", str(4*9216)))
            for j in range(9):
                if j in (4, 8): a("s_add_u32 s22, s22, 4096")
                a(f"buffer_load_dwordx4 v[{16+4*j}:{19+4*j}], v4, s[24:27], s22 offen offset:{(j%4)*1024}")
            ncp = 9
            a(f"s_mul_i32 s22, s21, {4*W1C_PITCH}")
            a(f"s_add_u32 s22, s22, {WS_W1C}")
            a("s_add_u32 s23, s22, 4096")
            cp_stores = [f"buffer_store_dwordx4 v[{16+4*j}:{19+4*j}], v5, s[28:31], s{22 if j < 8 else 23} offen offset:{(j%8)*512}" for j in range(9)]
            cp_lim = WS_W1C + 2048 * W1C_PITCH
        else:
            srd(a, 24, 18, 19, 4608 * 4096)
            a("v_lshrrev_b32 v6, 5, v1")
            a("v_bfe_u32 v7, v1, 3, 2")
            a("v_and_b32 v3, 7, v1")
            a("v_lshlrev_b32 v4, 12, v6")
            a("v_lshl_add_u32 v4, v7, 10, v4")
            a("v_lshl_add_u32 v4, v3, 4, v4")
            a("v_add_u32 v4, 384, v4")
            a("v_lshlrev_b32 v5, 10, v6")
            a("v_lshl_add_u32 v5, v7, 8, v5")
            a("v_lshl_add_u32 v5, v3, 4, v5")
            nr = -(-2304 // NWA)
            a("s_lshl_b32 s22, s21, 13")
            for j in range(nr):
                a(f"buffer_load_dwordx4 v[{16+4*j}:{19+4*j}], v4, s[24:27], s22 offen")
                if j < nr - 1: a(f"s_add_u32 s22, s22, {NWA*8192}")
            ncp = nr
            a("s_lshl_b32 s21, s21, 11")
            a(f"s_add_u32 s21, s21, {WS_W2C}")
            cp_stores = []
            for j in range(nr):
                cp_stores.append(f"s_add_u32 s22, s21, {j*NWA*2048}")
                cp_stores.append(f"buffer_store_dwordx4 v[{16+4*j}:{19+4*j}], v5, s[28:31], s22 offen")
            cp_lim = WS_W2C + 4608 * W2C_PITCH
        a("v_mov_b32 v14, v5")
    if k == 4 and 'cp5' in _o:
        from gen_k5s import WS_W2D, W2D_PITCH, WS_END3
        NL = -(-576 // NWX)
        srd(a, 24, 18, 19, 4608 * 4096)
        srd(a, 28, 6, 7, WS_END3)
        a("v_lshrrev_b32 v6, 4, v1")
        a("v_and_b32 v7, 15, v1")
        a("v_lshlrev_b32 v7, 4, v7")
        a("v_lshl_add_u32 v4, v6, 12, v7")
        a(f"v_mul_u32_u24 v5, {W2D_PITCH}, v6")
        a("v_add_u32 v14, v5, v7")
        a("s_lshr_b32 s21, s4, 2")
        a("s_mul_i32 s21, s21, 2304")
        a("s_lshl_b32 s22, s3, 2")
        a("s_add_u32 s21, s21, s22")
        a("s_and_b32 s22, s4, 3")
        a("s_lshl_b32 s23, s21, 12")
        a("s_lshl_b32 s34, s22, 10")
        a("s_add_u32 s23, s23, s34")
        a("s_add_u32 s23, s23, 256")
        a(f"s_mul_i32 s21, s21, {W2D_PITCH}")
        a("s_lshl_b32 s34, s22, 9")
        a("s_add_u32 s21, s21, s34")
        a(f"s_add_u32 s21, s21, {WS_W2D}")
        full = 576 // NWX
        rem = 576 - full * NWX
        for j in range(full):
            a(f"buffer_load_dwordx4 v[{64+4*j}:{67+4*j}], v4, s[24:27], s23 offen")
            a(f"s_add_u32 s23, s23, {NWX*4*4096}")
        lab = a.newlabel("PF_CL")
        if rem:
            a(f"s_cmp_ge_u32 s3, {rem}")
            a(f"s_cbranch_scc1 {lab}")
            a(f"buffer_load_dwordx4 v[{64+4*full}:{67+4*full}], v4, s[24:27], s23 offen")
            a.label(lab)
        a("s_waitcnt vmcnt(0)")
        for j in range(full):
            a(f"buffer_store_dwordx4 v[{64+4*j}:{67+4*j}], v14, s[28:31], s21 offen")
            a(f"s_add_u32 s21, s21, {NWX*4*W2D_PITCH}")
        if rem:
            lab = a.newlabel("PF_CS")
            a(f"s_cmp_ge_u32 s3, {rem}")
            a(f"s_cbranch_scc1 {lab}")
            a(f"buffer_store_dwordx4 v[{64+4*full}:{67+4*full}], v14, s[28:31], s21 offen")
            a.label(lab)
    ntouch = 0
    pfw = [int(o.split('=')[1]) for o in _o if o.startswith(f'pfw{k}=')]
    NT = " nt" if f'pfnt{k}' in _o else ""
    def copy_stores(nt):
        a("s_waitcnt lgkmcnt(0)")
        srd(a, 28, 6, 7, cp_lim)
        a(f"s_waitcnt vmcnt({nt})")
        for st_ in cp_stores: a(st_.replace(", v5, ", ", v14, ") + (" sc1" if ('cpsc1' in _o and st_.startswith('buffer_store')) else ""))
    if CP and pfw: copy_stores(0)
    for ji, (buf, r0, r1) in enumerate(c.jobs):
        pitch = 9216 if buf in (1, 3) else 4096
        RPI = {1: 6, 2: 16, 3: 8, 4: 5, 5: 4, 6: 1, 7: 1, 8: 8, 9: 10}[buf]
        ROT = ('pfrot%d' % buf) in _o
        NROW = 2048 if buf in (1, 3) else 4608
        lim = (NROW if ROT else r1) * pitch
        if buf in (6, 7):
            NST = 32 if buf == 6 else 72
            base = WS_HN if buf == 6 else WS_G
            rot = (('rot1' in _o) if buf == 6 else ('rot2' in _o))
            a("s_waitcnt lgkmcnt(0)")
            a("s_load_dwordx2 s[38:39], s[0:1], 112")
            a("v_min_u32 v3, 47, v1")
            a("v_mul_u32_u24 v4, 43, v3")
            a("v_lshrrev_b32 v4, 8, v4")
            a("v_mul_u32_u24 v5, 6, v4")
            a("v_sub_u32 v5, v3, v5")
            a("v_cmp_le_u32 vcc, 3, v5")
            a("v_addc_co_u32 v5, vcc, 0, v5, vcc")
            a("v_lshlrev_b32 v5, 7, v5")
            a("v_lshl_add_u32 v4, v4, 10, v5")
            a("s_waitcnt lgkmcnt(0)")
            srd(a, 8, 38, 39, WS_END)
            a(f"s_mul_i32 s34, s4, {NST // 8 * 12 if rot else 0}")
            a(f"s_add_u32 s20, s3, {r0*12}")
            n = -(-(r1 - r0) * 12 // NWX)
            for i in range(n):
                lab = a.newlabel(f"PF_SK{k}")
                a(f"s_cmp_ge_u32 s20, {r1*12}")
                a(f"s_cbranch_scc1 {lab}")
                a("s_add_u32 s35, s20, s34")
                a(f"s_cmp_ge_u32 s35, {NST*12}")
                a(f"s_cselect_b32 s36, {NST*12}, 0")
                a("s_sub_u32 s35, s35, s36")
                a("s_lshl_b32 s35, s35, 13")
                a(f"s_add_u32 s35, s35, {base}")
                a(f"buffer_load_dword v{60 + (i % 8)}, v4, s[8:11], s35 offen")
                a.label(lab)
                if i < n - 1: a(f"s_add_u32 s20, s20, {NWX}")
                ntouch += 1
                if pfw: a(f"s_waitcnt vmcnt({pfw[0]})")
            continue
        if buf in (8, 9):
            srd(a, 8, 18, 19, 4608 * 4096)
            RP = 8 if buf == 8 else 10
            if buf == 8:
                a("v_lshrrev_b32 v4, 3, v1")
                a("v_and_b32 v5, 7, v1")
                a("v_lshlrev_b32 v5, 7, v5")
            else:
                a("v_min_u32 v3, 59, v1")
                a("v_mul_u32_u24 v4, 43, v3")
                a("v_lshrrev_b32 v4, 8, v4")
                a("v_mul_u32_u24 v5, 6, v4")
                a("v_sub_u32 v5, v3, v5")
                a("v_cmp_le_u32 vcc, 2, v5")
                a("v_cndmask_b32 v6, 0, 2, vcc")
                a("v_add_u32 v5, v5, v6")
                a("v_lshlrev_b32 v5, 7, v5")
            a("s_and_b32 s34, s4, 3")
            a("s_lshl_b32 s35, s34, 10")
            a("v_add_u32 v5, s35, v5")
            a("s_mul_i32 s34, s34, 576")
            a("s_lshr_b32 s35, s4, 2")
            a(f"s_mul_i32 s35, s35, {2304*4096}")
            a(f"s_mul_i32 s20, s3, {RP}")
            a(f"s_add_u32 s20, s20, {r0}")
            n = -(-(r1 - r0) // (RP * NWX))
            for i in range(n):
                lab = a.newlabel(f"PF_SK{k}")
                a(f"s_cmp_ge_u32 s20, {r1}")
                a(f"s_cbranch_scc1 {lab}")
                a("v_add_u32 v6, s20, v4")
                a(f"v_min_u32 v6, {r1 - 1}, v6")
                a("v_add_u32 v6, s34, v6")
                a("v_subrev_u32 v7, 2304, v6")
                a("v_min_u32 v6, v6, v7")
                a("v_lshl_add_u32 v6, v6, 12, v5")
                a(f"buffer_load_dword v{60 + (i % 8)}, v6, s[8:11], s35 offen")
                a.label(lab)
                if i < n - 1: a(f"s_add_u32 s20, s20, {NWX*RP}")
                ntouch += 1
            continue
        if buf in (4, 5):
            srd(a, 8, 18, 19, 4608 * 4096)
            RP = 5 if buf == 4 else 4
            if buf == 4:
                a("v_min_u32 v3, 59, v1")
                a("v_mul_u32_u24 v4, 43, v3")
                a("v_lshrrev_b32 v4, 9, v4")
                a("v_mul_u32_u24 v5, 12, v4")
                a("v_sub_u32 v5, v3, v5")
                a("v_lshrrev_b32 v6, 1, v5")
                a("v_cmp_le_u32 vcc, 1, v6")
                a("v_addc_co_u32 v7, vcc, 0, v6, vcc")
                a("v_cmp_le_u32 vcc, 4, v6")
                a("v_addc_co_u32 v7, vcc, 0, v7, vcc")
                a("v_and_b32 v5, 1, v5")
                a("v_lshlrev_b32 v5, 7, v5")
                a("v_lshl_add_u32 v5, v7, 8, v5")
            else:
                a("v_lshrrev_b32 v4, 4, v1")
                a("v_and_b32 v5, 15, v1")
                a("v_lshlrev_b32 v5, 7, v5")
            a("s_and_b32 s34, s4, 1")
            a("s_lshl_b32 s35, s34, 11")
            a("v_add_u32 v5, s35, v5")
            a("s_mul_i32 s34, s34, 576")
            a("s_lshr_b32 s35, s4, 1")
            a(f"s_mul_i32 s35, s35, {1152*4096}")
            a(f"s_mul_i32 s20, s3, {RP}")
            a(f"s_add_u32 s20, s20, {r0}")
            n = -(-(r1 - r0) // (RP * NWX))
            for i in range(n):
                lab = a.newlabel(f"PF_SK{k}")
                a(f"s_cmp_ge_u32 s20, {r1}")
                a(f"s_cbranch_scc1 {lab}")
                a("v_add_u32 v6, s20, v4")
                a(f"v_min_u32 v6, {r1 - 1}, v6")
                a("v_add_u32 v6, s34, v6")
                a("v_subrev_u32 v7, 1152, v6")
                a("v_min_u32 v6, v6, v7")
                a("v_lshl_add_u32 v6, v6, 12, v5")
                a(f"buffer_load_dword v{60 + (i % 8)}, v6, s[8:11], s35 offen")
                a.label(lab)
                if i < n - 1: a(f"s_add_u32 s20, s20, {NWX*RP}")
                ntouch += 1
            continue
        if buf == 3:
            srd(a, 8, 16, 17, lim)
            t8_addr(a, 4, 1, 4, 5, 34, 35)
            a(f"s_mul_i32 s20, s3, {RPI*pitch}")
            a(f"s_add_u32 s20, s20, {r0*pitch}")
            n = -(-(r1 - r0) // (RPI * NWX))
            for i in range(n):
                lab = a.newlabel(f"PF_SK{k}")
                a(f"s_cmp_ge_u32 s20, {r1*pitch}")
                a(f"s_cbranch_scc1 {lab}")
                a(f"buffer_load_dword v{60 + (i % 8)}, v4, s[8:11], s20 offen")
                a.label(lab)
                if i < n - 1: a(f"s_add_u32 s20, s20, {NWX*RPI*pitch}")
                ntouch += 1
            continue
        if buf == 1:
            srd(a, 8, 16, 17, lim)
            a("v_min_u32 v3, 59, v1")
            a("v_mul_u32_u24 v4, 52, v3")
            a("v_lshrrev_b32 v4, 9, v4")
            a("v_mul_u32_u24 v5, 10, v4")
            a("v_sub_u32 v5, v3, v5")
            a("s_mul_i32 s5, s4, 27*171")
            a("s_lshr_b32 s5, s5, 10")
            a("s_lshl_b32 s5, s5, 8")
        else:
            srd(a, 8, 18, 19, lim)
            a("v_lshrrev_b32 v4, 2, v1")
            a("v_and_b32 v5, 3, v1")
            a("s_lshl_b32 s5, s4, 9")
        a(f"v_mul_u32_u24 v4, {pitch}, v4")
        a("v_lshl_add_u32 v4, v5, 7, v4")
        a(f"s_mul_i32 s20, s3, {RPI*pitch}")
        a("s_add_u32 s20, s20, s5")
        a(f"s_add_u32 s20, s20, {r0*pitch}")
        n = -(-(r1 - r0) // (RPI * NWX))
        if ROT:
            a(f"s_mul_i32 s34, s4, {NROW // 8 * pitch}")
        for i in range(n):
            if ROT:
                lab = a.newlabel(f"PF_SK{k}")
                a(f"s_cmp_ge_u32 s20, {r1*pitch}")
                a(f"s_cbranch_scc1 {lab}")
                a("s_add_u32 s35, s20, s34")
                a(f"s_cmp_ge_u32 s35, {(NROW)*pitch}")
                a(f"s_cselect_b32 s36, {NROW*pitch}, 0")
                a("s_sub_u32 s35, s35, s36")
                a(f"buffer_load_dword v{60 + (i % 8)}, v4, s[8:11], s35 offen{NT}")
                a.label(lab)
            else:
                a(f"buffer_load_dword v{60 + (i % 8)}, v4, s[8:11], s20 offen{NT}")
            if i < n - 1: a(f"s_add_u32 s20, s20, {NWX*RPI*pitch}")
            ntouch += 1
            if pfw: a(f"s_waitcnt vmcnt({pfw[0]})")
    if CP and not pfw:
        assert ntouch < 60
        anyrot = any(('pfrot%d' % j[0]) in _o or j[0] >= 3 for j in c.jobs)
        copy_stores(0 if anyrot else ntouch)
    a(f"s_branch {endlab}")


def _itopt():
    d = {1: [], 2: [], 3: []}
    for o in os.environ.get('GOPT', '').split(','):
        if o.startswith('it='):
            for k, spec in enumerate(o[3:].split('/')):
                if not spec or spec == '0': continue
                d[k + 1] = [tuple(int(x) for x in j.split('.')) for j in spec.split('+') if j]
    return d
IT = _itopt()
def it_load_ptrs(a, k):
    if not IT[k] and not (k == 1 and ICP1): return
    a("s_load_dwordx2 s[76:77], s[0:1], 64")
    a("s_load_dwordx2 s[78:79], s[0:1], 80")
def inline_touch(a, k, sgw, nwaves, vlane, vt, vd):
    n_tot = 0
    if not IT[k]: return 0
    a(f"v_lshlrev_b32 v{vt}, 7, v{vlane}")
    for (buf, r0, r1) in IT[k]:
        pitch = 9216 if buf == 1 else 4096
        srd(a, 72, 76 if buf == 1 else 78, 77 if buf == 1 else 79, r1 * pitch)
        lines = (r1 - r0) * pitch // 128
        n = -(-lines // (64 * nwaves))
        a(f"s_lshl_b32 s70, s{sgw}, 13")
        a(f"s_add_u32 s70, s70, {r0 * pitch}")
        for i in range(n):
            a(f"buffer_load_dword v{vd}, v{vt}, s[72:75], s70 offen")
            if i < n - 1: a(f"s_add_u32 s70, s70, {nwaves * 8192}")
            n_tot += 1
    return n_tot
ICP1 = 'icp1' in os.environ.get('GOPT', '').split(',')

def bf16_round(a, dst, src, tmp=None):
    a(f"v_cvt_pk_bf16_f32 v{dst}, v{src}, v{src}")
    a(f"v_and_b32 v{dst}, 0xffff0000, v{dst}")

def exp_precise(a, dst, src, t0, t1, sL, sLlo, sLn2):
    a(f"v_mul_f32 v{t0}, s{sL}, v{src}")
    a(f"v_fma_f32 v{t1}, v{src}, s{sL}, -v{t0}")
    a(f"v_fma_f32 v{t1}, v{src}, s{sLlo}, v{t1}")
    a(f"v_exp_f32 v{dst}, v{t0}")
    a(f"v_mul_f32 v{t1}, s{sLn2}, v{t1}")
    a(f"v_fma_f32 v{dst}, v{dst}, v{t1}, v{dst}")

def gen_k1(a):
    name = "k1_kernel"
    kernel_head(a, name)
    kst_begin(a)
    a("s_cmp_ge_u32 s2, 640")
    a("s_cbranch_scc1 K1_PF")
    a("s_load_dwordx2 s[4:5], s[0:1], 0")
    a("s_load_dwordx2 s[6:7], s[0:1], 112")
    a("s_load_dwordx8 s[16:23], s[0:1], 8")
    a("s_load_dwordx2 s[24:25], s[0:1], 40")
    it_load_ptrs(a, 1)
    a("s_cmp_ge_u32 s2, 64")
    a("s_cbranch_scc1 K1_KGEN")
    a("s_waitcnt lgkmcnt(0)")
    srd(a, 8, 4, 5, L * D * 2)
    srd(a, 12, 6, 7, WS_R)
    if DYN:
        a("s_cmp_lg_u32 s2, 0")
        a("s_cbranch_scc1 K1_NOZ")
        srd(a, 28, 6, 7, WS_END)
        a("v_lshlrev_b32 v1, 8, v0")
        a("v_mov_b32 v2, 0")
        a(f"s_mov_b32 s26, {WS_CNT}")
        a("v_cmp_gt_u32 vcc, 64, v0")
        a("s_and_saveexec_b64 s[32:33], vcc")
        a("s_cbranch_execz K1_NOZ2")
        a("buffer_store_dword v2, v1, s[28:31], s26 offen")
        a.label("K1_NOZ2")
        a("s_mov_b64 exec, -1")
        a.label("K1_NOZ")
    PITCH = 1216
    a("v_lshrrev_b32 v1, 3, v0")
    a("v_and_b32 v2, 7, v0")
    a("s_lshl_b32 s3, s2, 5")
    a("v_add_u32 v3, s3, v1")
    a("s_movk_i32 s26, 1152")
    a("v_mul_lo_u32 v3, v3, s26")
    a("v_lshl_add_u32 v3, v2, 4, v3")
    for i in range(9):
        a(f"buffer_load_dwordx4 v[{10+4*i}:{13+4*i}], v3, s[8:11], 0 offen offset:{128*i}")
    a(f"s_movk_i32 s26, {PITCH}")
    a("v_mul_lo_u32 v4, v1, s26")
    a("v_lshl_add_u32 v4, v2, 4, v4")
    a("v_and_b32 v5, 63, v0")
    a("v_lshrrev_b32 v6, 6, v0")
    a("v_readfirstlane_b32 s27, v6")
    a("v_bfe_u32 v7, v5, 2, 2")
    a("v_mul_lo_u32 v7, v7, s26")
    a("v_lshrrev_b32 v8, 4, v5")
    a("v_lshl_add_u32 v7, v8, 5, v7")
    a("v_and_b32 v8, 3, v5")
    a("v_lshl_add_u32 v7, v8, 3, v7")
    a("s_lshl_b32 s28, s2, 6")
    a("v_lshlrev_b32 v9, 12, v5")
    a("v_add_u32 v9, s28, v9")
    a("s_waitcnt vmcnt(0)")
    for i in range(9):
        a(f"ds_write_b128 v4, v[{10+4*i}:{13+4*i}] offset:{128*i}")
    for i in range(36):
        a(f"v_lshlrev_b32 v{50+2*i}, 16, v{10+i}")
        a(f"v_and_b32 v{51+2*i}, 0xffff0000, v{10+i}")
    a("v_add_f32 v122, v50, v51")
    a("v_add_f32 v123, v52, v53")
    a("v_add_f32 v124, v54, v55")
    a("v_add_f32 v125, v56, v57")
    for i in range(2, 18):
        for q in range(4):
            a(f"v_add_f32 v{122+q}, v{122+q}, v{50+4*i+q}")
    a("v_add_f32 v122, v122, v123")
    a("v_add_f32 v124, v124, v125")
    a("v_add_f32 v122, v122, v124")
    def red8(r, t):
        a(f"v_add_f32_dpp v{r}, v{r}, v{r} quad_perm:[1,0,3,2] row_mask:0xf bank_mask:0xf")
        a(f"v_add_f32_dpp v{r}, v{r}, v{r} quad_perm:[2,3,0,1] row_mask:0xf bank_mask:0xf")
        a(f"v_add_f32_dpp v{r}, v{r}, v{r} row_half_mirror row_mask:0xf bank_mask:0xf")
    red8(122, None)
    a(f"s_mov_b32 s26, {fhex(1.0/576)}")
    a("v_mul_f32 v126, s26, v122")
    a("s_waitcnt lgkmcnt(0)")
    a("s_barrier")
    def transpose_store(ws_off):
        for u in range(3):
            lab = a.newlabel("K1_SKIP")
            if u == 2:
                a("s_cmp_lg_u32 s27, 0")
                a(f"s_cbranch_scc1 {lab}")
            a(f"s_lshl_b32 s29, s27, 7")
            a(f"s_add_u32 s29, s29, {u*4*128}")
            a(f"v_add_u32 v127, s29, v7")
            for Q in range(8):
                a(f"ds_read_b64_tr_b16 v[{130+2*Q}:{131+2*Q}], v127 offset:{Q*4*PITCH}")
            a(f"s_lshl_b32 s29, s27, 18")
            a(f"s_add_u32 s29, s29, {ws_off + u*4*64*4096}")
            a("s_waitcnt lgkmcnt(0)")
            for q in range(4):
                a(f"buffer_store_dwordx4 v[{130+4*q}:{133+4*q}], v9, s[12:15], s29 offen offset:{16*q}")
            if u == 2: a.label(lab)
            a("s_nop 1")
    transpose_store(WS_XT)
    for i in range(72):
        a(f"v_sub_f32 v{150+0}, v{50+i}, v126") if False else None
    a("v_sub_f32 v127, v50, v126"); a("v_mul_f32 v122, v127, v127")
    a("v_sub_f32 v127, v51, v126"); a("v_mul_f32 v123, v127, v127")
    a("v_sub_f32 v127, v52, v126"); a("v_mul_f32 v124, v127, v127")
    a("v_sub_f32 v127, v53, v126"); a("v_mul_f32 v125, v127, v127")
    for i in range(4, 72):
        t = 146 + (i % 4)
        a(f"v_sub_f32 v{t}, v{50+i}, v126")
        a(f"v_fmac_f32 v{122+(i%4)}, v{t}, v{t}")
    a("v_add_f32 v122, v122, v123")
    a("v_add_f32 v124, v124, v125")
    a("v_add_f32 v122, v122, v124")
    red8(122, None)
    a("v_mul_f32 v122, s26, v122")
    bf16_round(a, 126, 126)
    bf16_round(a, 122, 122)
    a(f"v_add_f32 v122, {fhex(1e-5)}, v122")
    bf16_round(a, 122, 122)
    a("v_sqrt_f32 v122, v122")
    bf16_round(a, 122, 122)
    a("v_rcp_f32 v122, v122")
    for i in range(36):
        x0, x1 = 50 + 2*i, 51 + 2*i
        a(f"v_sub_f32 v{x0}, v{x0}, v126")
        a(f"v_sub_f32 v{x1}, v{x1}, v126")
        a(f"v_cvt_pk_bf16_f32 v146, v{x0}, v{x1}")
        a(f"v_lshlrev_b32 v{x0}, 16, v146")
        a(f"v_and_b32 v{x1}, 0xffff0000, v146")
        a(f"v_mul_f32 v{x0}, v{x0}, v122")
        a(f"v_mul_f32 v{x1}, v{x1}, v122")
        a(f"v_cvt_pk_bf16_f32 v{10+i}, v{x0}, v{x1}")
    a("s_barrier")
    for i in range(9):
        a(f"ds_write_b128 v4, v[{10+4*i}:{13+4*i}] offset:{128*i}")
    a("s_waitcnt lgkmcnt(0)")
    a("s_barrier")
    transpose_store(WS_UT)
    a("s_branch K1_END")

    a.label("K1_KGEN")
    K1ST = 'k1st' in os.environ.get('GOPT', '').split(',')
    def st(i):
        if K1ST: a(f"s_memrealtime s[{60+2*i}:{61+2*i}]")
    a("s_sub_u32 s3, s2, 64")
    a("v_and_b32 v1, 63, v0")
    a("v_lshrrev_b32 v2, 6, v0")
    a("v_readfirstlane_b32 s27, v2")
    a("v_lshrrev_b32 v3, 4, v1")
    a("v_and_b32 v4, 15, v1")
    a("s_lshl_b32 s28, s3, 8")
    a("v_lshlrev_b32 v5, 6, v2")
    a("v_lshl_add_u32 v5, v3, 4, v5")
    a("v_add_u32 v5, s28, v5")
    a("s_waitcnt lgkmcnt(0)")
    srd(a, 8, 16, 17, D * NM * 2)
    a("buffer_load_dwordx4 v[10:13], v5, s[8:11], 0 offen")
    srd(a, 28, 18, 19, D * NM * 2)
    a("buffer_load_dwordx4 v[14:17], v5, s[28:31], 0 offen")
    srd(a, 32, 20, 21, D * NM * 2)
    a("buffer_load_dwordx4 v[18:21], v5, s[32:35], 0 offen")
    srd(a, 36, 22, 23, D * NM * 2)
    a("buffer_load_dwordx4 v[22:25], v5, s[36:39], 0 offen")
    srd(a, 40, 24, 25, D * 2)
    a("s_lshl_b32 s44, s3, 1")
    a("v_mov_b32 v6, s44")
    a("buffer_load_ushort v26, v6, s[40:43], 0 offen")
    srd(a, 12, 6, 7, WS_HT)
    a("v_lshlrev_b32 v27, 3, v4")
    a("v_cvt_f32_u32 v27, v27")
    a("v_and_b32 v28, 7, v4")
    a("v_lshrrev_b32 v29, 3, v4")
    a("v_lshl_add_u32 v28, v29, 7, v28")
    a("v_cvt_f32_u32 v28, v28")
    a("v_lshrrev_b32 v29, 2, v4")
    a("v_lshlrev_b32 v29, 7, v29")
    a("v_and_b32 v30, 3, v4")
    a("v_lshl_add_u32 v29, v30, 1, v29")
    a("v_add_u32 v29, 256, v29")
    a("v_subrev_u32 v30, 8, v4")
    a("v_lshrrev_b32 v30, 1, v30")
    a("v_lshlrev_b32 v30, 7, v30")
    a("v_and_b32 v31, 1, v4")
    a("v_lshl_add_u32 v30, v31, 2, v30")
    a("v_add_u32 v30, 512, v30")
    a("v_cmp_gt_u32 vcc, 8, v4")
    a("v_cndmask_b32 v29, v30, v29, vcc")
    a("v_cvt_f32_u32 v29, v29")
    a("v_lshlrev_b32 v30, 7, v4")
    a("v_add_u32 v30, 1024, v30")
    a("v_cvt_f32_u32 v30, v30")
    a(f"s_mov_b32 s44, {hex(LOG2E)}")
    a(f"s_mov_b32 s45, {fhex(1.4426950408889634 - 1.4426950216293335)}")
    a(f"s_mov_b32 s46, {fhex(0.6931471805599453)}")
    a(f"s_mov_b32 s47, {hex(INV2PI)}")
    a("s_waitcnt vmcnt(0)")
    st(0)
    a("s_lshl_b32 s71, s3, 2")
    a("s_add_u32 s71, s71, s27")
    ntouch = 0
    if ICP1:
        srd(a, 72, 76, 77, 2048 * 9216)
        a("v_mul_u32_u24 v160, 9216, v3")
        a("v_lshl_add_u32 v160, v4, 4, v160")
        a(f"v_mul_u32_u24 v161, {W1C_PITCH}, v3")
        a("v_lshl_add_u32 v161, v4, 4, v161")
        for h in range(2):
            a("s_lshl_b32 s68, s71, 1")
            if h: a("s_add_u32 s68, s68, 1")
            a("s_mul_i32 s69, s68, 7282")
            a("s_lshr_b32 s69, s69, 16")
            a("s_mul_i32 s70, s69, 9")
            a("s_sub_u32 s68, s68, s70")
            a(f"s_mul_i32 s70, s69, {4*9216}")
            a("s_lshl_b32 s67, s68, 10")
            a("s_add_u32 s70, s70, s67")
            a(f"buffer_load_dwordx4 v[{152+4*h}:{155+4*h}], v160, s[72:75], s70 offen offset:256")
            a(f"s_mul_i32 s70, s69, {4*W1C_PITCH}")
            a("s_lshl_b32 s67, s68, 9")
            a("s_add_u32 s70, s70, s67")
            a(f"s_add_u32 s{64+h}, s70, {WS_W1C}")
    ntouch = inline_touch(a, 1, 71, 2304, 1, 162, 163)
    a("v_lshlrev_b32 v26, 16, v26")
    exp_precise(a, 31, 26, 32, 33, 44, 45, 46)
    bf16_round(a, 31, 31)
    a("v_add_f32 v26, v31, v31")
    a(f"s_mov_b32 s48, {hex(LOG2E | 0x80000000)}")
    st(1)
    HI = 40; LO = 72
    XV = 104
    TP = 120
    ACCK = 80 + 60
    ACCK = 140
    for tp in range(4):
        for h in range(2):
            un = (lambda d, s_: a(f"v_lshlrev_b32 v{d}, 16, v{s_}")) if h == 0 else (lambda d, s_: a(f"v_and_b32 v{d}, 0xffff0000, v{s_}"))
            ar, ai, cr, ci = 32 + 4 * h, 33 + 4 * h, 34 + 4 * h, 35 + 4 * h
            t0, t1, t2 = TP, TP + 1, TP + 2
            un(t0, 10 + tp)
            exp_precise(a, t1, t0, t2, TP + 3, 44, 45, 46)
            bf16_round(a, t1, t1)
            a(f"v_mul_f32 v{t1}, v{t1}, v31")
            a(f"v_mul_f32 v{ar}, s48, v{t1}")
            un(t0, 14 + tp)
            a(f"v_mul_f32 v{t0}, v{t0}, v31")
            a(f"v_mul_f32 v{ai}, s47, v{t0}")
            un(t0, 18 + tp)
            a(f"v_mul_f32 v{cr}, v{t0}, v26")
            un(t0, 22 + tp)
            a(f"v_mul_f32 v{ci}, v{t0}, v26")
            e0, e1, e2, e3 = TP + 4, TP + 5, TP + 6, TP + 7
            a(f"v_mul_f32 v{e0}, v{ar}, v27")
            a(f"v_mul_f32 v{e1}, v{ai}, v27")
            a(f"v_exp_f32 v{e0}, v{e0}")
            a(f"v_fract_f32 v{e1}, v{e1}")
            a(f"v_cos_f32 v{e2}, v{e1}")
            a(f"v_sin_f32 v{e3}, v{e1}")
            a(f"v_mul_f32 v{XV+0+h}, v{e0}, v{e2}")
            a(f"v_mul_f32 v{XV+2+h}, v{e0}, v{e3}")
            for T in range(3):
                b = TP + 8 + 6 * T
                a(f"v_mul_f32 v{b}, v{ar}, v{28+T}")
                a(f"v_mul_f32 v{b+1}, v{ai}, v{28+T}")
                a(f"v_exp_f32 v{b}, v{b}")
                a(f"v_fract_f32 v{b+1}, v{b+1}")
                a(f"v_cos_f32 v{b+2}, v{b+1}")
                a(f"v_sin_f32 v{b+3}, v{b+1}")
                a(f"v_mul_f32 v{b+4}, v{cr}, v{b+2}")
                a(f"v_mul_f32 v{b+5}, v{cr}, v{b+3}")
                a(f"v_fma_f32 v{b+4}, -v{ci}, v{b+3}, v{b+4}")
                a(f"v_fma_f32 v{b+5}, v{ci}, v{b+2}, v{b+5}")
                a(f"v_mul_f32 v{XV+4+4*T+h}, v{b}, v{b+4}")
                a(f"v_mul_f32 v{XV+6+4*T+h}, -v{b}, v{b+5}")
        for q in range(8):
            x0, x1 = XV + 2 * q, XV + 2 * q + 1
            hp = HI + 4 * q + tp; lp = LO + 4 * q + tp
            u0, u1 = TP + (2 * q) % 16, TP + (2 * q) % 16 + 1
            a(f"v_cvt_pk_bf16_f32 v{hp}, v{x0}, v{x1}")
            a(f"v_lshlrev_b32 v{u0}, 16, v{hp}")
            a(f"v_and_b32 v{u1}, 0xffff0000, v{hp}")
            a(f"v_sub_f32 v{u0}, v{x0}, v{u0}")
            a(f"v_sub_f32 v{u1}, v{x1}, v{u1}")
            a(f"v_cvt_pk_bf16_f32 v{lp}, v{u0}, v{u1}")
    def fr(base, q): return f"v[{base+4*q}:{base+4*q+3}]"
    for T in range(3):
        acc = f"v[{ACCK+4*T}:{ACCK+4*T+3}]"
        first = True
        for (qa, qb) in ((2 + 2 * T, 0), (3 + 2 * T, 1)):
            for (ba, bb) in ((LO, HI), (HI, LO), (HI, HI)):
                a(f"v_mfma_f32_16x16x32_bf16 {acc}, {fr(ba, qa)}, {fr(bb, qb)}, {'0' if first else acc}")
                first = False
    for r in range(12): a(f"v_mov_b32 v{80+r}, v{ACCK+r}")
    if ICP1:
        srd(a, 72, 6, 7, WS_W1C + 2048 * W1C_PITCH)
        a(f"s_waitcnt vmcnt({ntouch})")
        for h in range(2):
            a(f"buffer_store_dwordx4 v[{152+4*h}:{155+4*h}], v161, s[72:75], s{64+h} offen")
    st(2)
    a("v_lshlrev_b32 v5, 4, v1")
    a("s_mul_i32 s28, s27, 3072")
    a("v_add_u32 v5, s28, v5")
    for T in range(3):
        a(f"ds_write_b128 v5, v[{80+4*T}:{83+4*T}] offset:{1024*T}")
    a("s_waitcnt lgkmcnt(0)")
    a("s_barrier")
    KC = 12288
    a("s_cmp_eq_u32 s27, 3")
    a("s_cbranch_scc1 K1_KG_ZERO")
    a("v_lshlrev_b32 v5, 4, v1")
    a("s_lshl_b32 s28, s27, 10")
    a("v_add_u32 v5, s28, v5")
    for w in range(4):
        a(f"ds_read_b128 v[{80+4*w}:{83+4*w}], v5 offset:{3072*w}")
    a("s_cmp_eq_u32 s27, 1")
    a("s_cbranch_scc1 K1_KG_T1")
    a("s_cmp_eq_u32 s27, 2")
    a("s_cbranch_scc1 K1_KG_T2")
    a("v_and_b32 v100, 1, v3")
    a("v_lshlrev_b32 v100, 2, v100")
    a("v_lshrrev_b32 v101, 1, v3")
    a("v_lshl_add_u32 v100, v101, 7, v100")
    a("v_lshl_add_u32 v100, v4, 3, v100")
    for r in range(1, 4): a(f"v_add_u32 v{100+r}, {r}, v100")
    a("s_branch K1_KG_SC")
    a.label("K1_KG_T1")
    a("v_lshlrev_b32 v104, 6, v3")
    a("v_lshl_add_u32 v104, v4, 2, v104")
    a("v_add_u32 v104, 256, v104")
    a("v_lshlrev_b32 v105, 6, v3")
    a("v_lshl_add_u32 v105, v4, 1, v105")
    a("v_add_u32 v105, 256, v105")
    a("v_cmp_gt_u32 vcc, 2, v3")
    for r in range(4):
        a(f"v_add_u32 v106, {r}, v104")
        a(f"v_add_u32 v107, {32*(r>>1)+(r&1)}, v105")
        a(f"v_cndmask_b32 v{100+r}, v107, v106, vcc")
    a("s_branch K1_KG_SC")
    a.label("K1_KG_T2")
    a("v_lshlrev_b32 v100, 6, v3")
    a("v_add_u32 v100, v4, v100")
    a("v_add_u32 v100, 512, v100")
    for r in range(1, 4): a(f"v_add_u32 v{100+r}, {16*r}, v100")
    a.label("K1_KG_SC")
    a("s_waitcnt lgkmcnt(0)")
    for r in range(4):
        a(f"v_add_f32 v{80+r}, v{80+r}, v{84+r}")
        a(f"v_add_f32 v{88+r}, v{88+r}, v{92+r}")
        a(f"v_add_f32 v{80+r}, v{80+r}, v{88+r}")
        a(f"v_lshlrev_b32 v{100+r}, 2, v{100+r}")
        a(f"ds_write_b32 v{100+r}, v{80+r} offset:{KC}")
    a("s_branch K1_KG_EXP")
    a.label("K1_KG_ZERO")
    a("v_mov_b32 v5, 0")
    a(f"ds_write_b32 v5, v5 offset:{KC + 768*4}")
    a.label("K1_KG_EXP")
    a("s_waitcnt lgkmcnt(0)")
    a("s_barrier")
    st(3)
    a("v_lshlrev_b32 v5, 3, v0")
    a("v_sub_u32 v5, 2047, v5")
    for e in range(9):
        a(f"v_subrev_u32 v{10+e}, {e}, v5")
        a(f"v_cvt_f32_i32 v{20+e}, v{10+e}")
    for e in range(0, 9, 2):
        e1 = min(e + 1, 8)
        a(f"v_cvt_pk_bf16_f32 v{30+e//2}, v{20+e}, v{20+e1}")
    for e in range(9):
        src = 30 + e // 2
        if e % 2 == 0: a(f"v_and_b32 v{20+e}, 0xffff, v{src}")
        else: a(f"v_lshrrev_b32 v{20+e}, 16, v{src}")
        a(f"v_subrev_u32 v{20+e}, 17024, v{20+e}")
        a(f"v_min_u32 v36, 127, v{10+e}")
        a(f"v_max_i32 v{20+e}, v{20+e}, v36")
    a("v_cmp_gt_i32 vcc, 0, v18")
    a("v_mov_b32 v36, 768")
    a("v_cndmask_b32 v28, v28, v36, vcc")
    for e in range(9):
        a(f"v_lshlrev_b32 v{20+e}, 2, v{20+e}")
        a(f"ds_read_b32 v{40+e}, v{20+e} offset:{KC}")
    a("s_mul_i32 s28, s3, %d" % RSTRIDE)
    a(f"s_add_u32 s28, s28, {WS_R}")
    a("v_lshlrev_b32 v5, 4, v0")
    a("s_waitcnt lgkmcnt(0)")
    for k in range(4):
        a(f"v_cvt_pk_bf16_f32 v{52+k}, v{40+2*k}, v{41+2*k}")
        a(f"v_cvt_pk_bf16_f32 v{56+k}, v{41+2*k}, v{42+2*k}")
    a("buffer_store_dwordx4 v[52:55], v5, s[12:15], s28 offen")
    a(f"buffer_store_dwordx4 v[56:59], v5, s[12:15], s28 offen offset:{ROFF - 4096}") if False else None
    a(f"v_add_u32 v6, {ROFF}, v5")
    a("buffer_store_dwordx4 v[56:59], v6, s[12:15], s28 offen")
    if K1ST:
        st(4)
        a("s_waitcnt vmcnt(0) lgkmcnt(0)")
        st(5)
        a("s_waitcnt lgkmcnt(0)")
        srd(a, 72, 6, 7, 0x4000000)
        for i in range(6): a(f"v_mov_b32 v{70+i}, s{60+2*i}")
        a("v_mov_b32 v76, s94"); a("v_mov_b32 v77, 0")
        a("s_lshl_b32 s76, s2, 7")
        a("s_lshl_b32 s77, s27, 5")
        a("s_add_u32 s76, s76, s77")
        a("s_add_u32 s76, s76, 0x2a00000")
        a("v_mov_b32 v78, 0")
        a("buffer_store_dwordx4 v[70:73], v78, s[72:75], s76 offen")
        a("buffer_store_dwordx4 v[74:77], v78, s[72:75], s76 offen offset:16")
    a("v_cmp_gt_u32 vcc, 2, v0")
    a("s_and_saveexec_b64 s[30:31], vcc")
    a("s_cbranch_execz K1_END")
    for r in range(4): a(f"v_mov_b32 v{60+r}, 0")
    a("v_add_u32 v5, 4096, v5")
    a("v_add_u32 v6, 4096, v6")
    a("buffer_store_dwordx4 v[60:63], v5, s[12:15], s28 offen")
    a("buffer_store_dwordx4 v[60:63], v6, s[12:15], s28 offen")
    a("s_branch K1_END")
    a.label("K1_PF")
    gen_prefetch(a, 1, 640, "K1_END")
    a.label("K1_END")
    kst_end(a, 0, 640 + PF[1].nwg)
    a("s_endpgm")
    return name, 164, 38912

KERNELS = []
def build(kernels, launches):
    head = []
    ref = open('cdna_kernels/' + NAME + '.s.ref').read().split('\n')
    for ln in ref:
        if ln.startswith('; Kernarg') or ln.startswith(';   offset'):
            head.append(ln)
    for (k, grid, block, lds) in launches:
        head.append(f"; @launch kernel={k} grid=({grid},1,1) block=({block},1,1) lds={lds}")
    out = '\n'.join(head) + '\n.amdgcn_target "amdgcn-amd-amdhsa--gfx950"\n.text\n'
    descs = ''
    for gen in kernels:
        a = Asm()
        name, vg, lds = gen(a)
        lint_srd(a.lines, name)
        out += render(insert_hazard_nops(a.lines))
        descs += kernel_desc(name, vg)
    out += '.section .rodata,"a"\n.p2align 6\n' + descs.replace('.amdhsa_kernel', '.p2align 6\n.amdhsa_kernel')
    return out

if __name__ == '__main__':
    from gen_rest import *
    main()
```

```python
from gen import *
from gen_k12b import cmul
from gen_k2 import ht_group_addr
OPTS = os.environ.get('GOPT', '').split(',')
C_CS = 4160
C_PART = 4 * C_CS
C_UPAD = C_PART + 24576
C_UOFF = C_UPAD + 512
C_KC = C_UOFF + 4096
C_LDS = C_KC + 3072 + 64
K12C_LDS = 3 * C_LDS
C_TT = 8 * 1088
WS_ST = WS_UT
STP = 'stp' in OPTS
WS_RC = 0x240000
RC_N = int(([o[3:] for o in OPTS if o.startswith('rc=')] or ['32'])[0])
RC_STRIDE = 4352

def ln2_tail(a, st):
    opt_sleep = int(([o[4:] for o in OPTS if o.startswith('psl=')] or ['4'])[0])
    a("s_barrier")
    a("s_mul_i32 s36, s59, 171")
    a("s_lshr_b32 s36, s36, 9")
    a("s_sub_u32 s37, s2, 64")
    a("s_lshr_b32 s38, s37, 3")
    a("s_and_b32 s37, s37, 7")
    a("v_mov_b32 v6, 0")
    a("s_cmp_lg_u32 s59, 0")
    a("s_cbranch_scc1 K1_F_NA")
    a("v_mov_b32 v7, 1")
    a(f"v_mul_u32_u24 v9, {RC_STRIDE}, v1")
    a(f"s_mov_b32 s39, {WS_RC}")
    a(f"s_mov_b32 exec_lo, {hex((1 << RC_N) - 1)}")
    a("s_mov_b32 exec_hi, 0")
    a("buffer_atomic_add v7, v9, s[12:15], s39 offen sc1")
    a("s_mov_b64 exec, -1")
    a("s_sub_u32 s35, s2, 64")
    a(f"s_and_b32 s35, s35, {RC_N - 1}")
    a(f"s_mul_i32 s35, s35, {RC_STRIDE}")
    a(f"s_add_u32 s35, s35, {WS_RC}")
    a.label("K1_F_NA")
    a("s_cmp_ge_u32 s36, 2")
    a("s_cbranch_scc1 K1_F_PF")
    a("s_cmp_eq_u32 s36, 0")
    a("s_cbranch_scc1 K1_F_ACT")
    a("s_cmp_ge_u32 s38, 8")
    a("s_cbranch_scc1 K1_F_IDLE")
    a("s_add_u32 s38, s38, 24")
    a.label("K1_F_ACT")
    a("s_lshl_b32 s3, s37, 5")
    a("s_add_u32 s3, s3, s38")
    a("s_mul_i32 s39, s36, 3")
    a("s_sub_u32 s39, s59, s39")
    a("s_lshl_b32 s39, s39, 6")
    a("v_add_u32 v0, s39, v1")
    a("s_lshl_b32 s39, s36, 10")
    ht_group_addr(a)
    a("v_and_b32 v5, 7, v1")
    a("v_lshlrev_b32 v5, 1, v5")
    srd(a, 8, 6, 7, WS_G)
    a("s_mov_b32 s36, 0x40000")
    a("v_lshrrev_b32 v7, 4, v0")
    a("v_cmp_le_u32 vcc, 6, v7")
    a("v_cndmask_b32 v8, 0, 1, vcc")
    a("v_mul_u32_u24 v27, 6, v8")
    a("v_sub_u32 v7, v7, v27")
    a("v_cmp_le_u32 vcc, 3, v7")
    a("v_addc_co_u32 v7, vcc, 0, v7, vcc")
    a(f"v_mul_u32_u24 v8, {2*ABLK}, v8")
    a("v_lshl_add_u32 v8, v7, 7, v8")
    a("v_and_b32 v7, 7, v0")
    a("v_lshl_add_u32 v8, v7, 4, v8")
    a("v_bfe_u32 v7, v0, 3, 1")
    a("v_lshl_add_u32 v8, v7, 10, v8")
    a("s_lshr_b32 s30, s3, 3")
    a(f"s_mul_i32 s30, s30, {12*ABLK}")
    a("s_bfe_u32 s31, s3, 0x10002")
    a(f"s_mul_i32 s31, s31, {ABLK}")
    a("s_add_u32 s30, s30, s31")
    a("s_and_b32 s31, s3, 3")
    a("s_lshl_b32 s31, s31, 11")
    a("s_add_u32 s30, s30, s31")
    a(f"s_add_u32 s30, s30, {WS_HN}")
    a(f"s_mov_b32 s26, {fhex(1.0/576)}")
    a("v_lshrrev_b32 v29, 4, v0")
    a("v_lshlrev_b32 v29, 6, v29")
    a("v_add_u32 v29, s39, v29")
    a("v_and_b32 v27, 15, v1")
    a("v_lshlrev_b32 v27, 2, v27")
    a("v_add_u32 v27, s39, v27")
    a("s_cmp_lg_u32 s59, 0")
    a("s_cbranch_scc1 K1_F_GO")
    NPP = int(([o[4:] for o in OPTS if o.startswith('npp=')] or ['1'])[0])
    if NPP > 1:
        a("s_mov_b64 exec, 1")
        for k in range(NPP):
            a(f"v_mov_b32 v{104+k}, 0")
            a(f"buffer_atomic_add v{104+k}, v6, s[12:15], s35 offen sc0 sc1")
            if k < NPP - 1: a(f"s_sleep {opt_sleep}")
        a.label("K1_F_POLL")
        for k in range(NPP):
            a(f"s_waitcnt vmcnt({NPP-1})")
            a(f"v_readfirstlane_b32 s37, v{104+k}")
            a("s_cmp_ge_u32 s37, 192")
            a("s_cbranch_scc1 K1_F_GO1")
            a(f"v_mov_b32 v{104+k}, 0")
            a(f"buffer_atomic_add v{104+k}, v6, s[12:15], s35 offen sc0 sc1")
        a("s_sub_u32 s36, s36, 1")
        a("s_cmp_lg_u32 s36, 0")
        a("s_cbranch_scc1 K1_F_POLL")
        a.label("K1_F_GO1")
        a("s_mov_b64 exec, -1")
    else:
        a.label("K1_F_POLL")
        a("s_mov_b64 exec, 1")
        if 'apoll' in OPTS:
            a("v_mov_b32 v9, 0")
            a("buffer_atomic_add v9, v6, s[12:15], s35 offen sc0 sc1")
        else:
            a("buffer_load_dword v9, v6, s[12:15], s35 offen sc1")
        a("s_mov_b64 exec, -1")
        a("s_waitcnt vmcnt(0)")
        a("v_readfirstlane_b32 s37, v9")
        a("s_cmp_ge_u32 s37, 192")
        a("s_cbranch_scc1 K1_F_GO")
        a("s_sub_u32 s36, s36, 1")
        a("s_cmp_eq_u32 s36, 0")
        a("s_cbranch_scc1 K1_F_GO")
        a(f"s_sleep {opt_sleep}")
        a("s_branch K1_F_POLL")
    a.label("K1_F_GO")
    a("s_barrier")
    if st: st(0)
    for i in range(3):
        a(f"s_add_u32 s29, s28, {i*192*(8192 if HTP else 4096)}")
        a(f"buffer_load_dwordx4 v[{10+4*i}:{13+4*i}], v4, s[8:11], s29 offen sc1")
    a("buffer_load_dwordx4 v[22:25], v6, s[8:11], s28 offen sc1")
    a("buffer_load_ushort v26, v5, s[8:11], s28 offen sc1")
    a("s_waitcnt vmcnt(0)")
    if st: st(1)
    X = 32
    for i in range(4):
        for k in range(4):
            a(f"v_lshlrev_b32 v{X+8*i+2*k}, 16, v{10+4*i+k}")
            a(f"v_and_b32 v{X+8*i+2*k+1}, 0xffff0000, v{10+4*i+k}")
    a("v_lshlrev_b32 v26, 16, v26")
    S = 64
    for i in range(3):
        for e in range(8):
            a(f"v_sub_f32 v{80+8*i+e}, v{X+8*i+e}, v{56+e}")
    for e in range(8):
        a(f"v_add_f32 v{S+e}, v{80+e}, v{88+e}")
        a(f"v_mul_f32 v{S+8+e}, v{80+e}, v{80+e}")
    for e in range(8):
        a(f"v_add_f32 v{S+e}, v{S+e}, v{96+e}")
        a(f"v_fmac_f32 v{S+8+e}, v{88+e}, v{88+e}")
    for e in range(8):
        a(f"v_fmac_f32 v{S+8+e}, v{96+e}, v{96+e}")
    for mode in ("quad_perm:[1,0,3,2]", "quad_perm:[2,3,0,1]", "row_half_mirror", "row_mirror"):
        for e in range(16):
            a(f"v_add_f32_dpp v{S+e}, v{S+e}, v{S+e} {mode} row_mask:0xf bank_mask:0xf")
    a("v_and_b32 v28, 15, v1")
    a("v_cmp_eq_u32 vcc, 0, v28")
    a("s_and_saveexec_b64 s[32:33], vcc")
    for k in range(4):
        a(f"ds_write_b128 v29, v[{S+4*k}:{S+4*k+3}] offset:{16*k}")
    a("s_mov_b64 exec, s[32:33]")
    a("s_waitcnt lgkmcnt(0)")
    a("s_barrier")
    if st: st(2)
    for r in range(12):
        a(f"ds_read_b32 v{80+r}, v27 offset:{64*r}")
    a("s_waitcnt lgkmcnt(0)")
    for k in range(6): a(f"v_add_f32 v{80+k}, v{80+k}, v{86+k}")
    for k in range(3): a(f"v_add_f32 v{80+k}, v{80+k}, v{83+k}")
    a("v_add_f32 v80, v80, v81")
    a("v_add_f32 v80, v80, v82")
    a("v_mov_b32_dpp v81, v80 row_ror:8 row_mask:0xf bank_mask:0xf")
    a("v_and_b32 v28, 8, v1")
    a("v_cmp_eq_u32 vcc, 0, v28")
    a("v_cndmask_b32 v82, v81, v80, vcc")
    a("v_cndmask_b32 v83, v80, v81, vcc")
    a("v_mul_f32 v82, s26, v82")
    a("v_mul_f32 v83, s26, v83")
    a("v_fma_f32 v83, -v82, v82, v83")
    a("v_max_f32 v83, 0, v83")
    a("v_add_f32 v82, v82, v26")
    bf16_round(a, 82, 82)
    bf16_round(a, 83, 83)
    a(f"v_add_f32 v83, {fhex(1e-5)}, v83")
    bf16_round(a, 83, 83)
    a("v_sqrt_f32 v83, v83")
    bf16_round(a, 83, 83)
    a("v_rcp_f32 v83, v83")
    for e in range(8):
        a(f"v_readlane_b32 s{40+e}, v82, {e}")
        a(f"v_readlane_b32 s{48+e}, v83, {e}")
    for i in range(3):
        for k in range(4):
            x0 = X + 8*i + 2*k; x1 = x0 + 1
            a(f"v_subrev_f32 v{x0}, s{40+2*k}, v{x0}")
            a(f"v_subrev_f32 v{x1}, s{41+2*k}, v{x1}")
            a(f"v_cvt_pk_bf16_f32 v{84+k}, v{x0}, v{x1}")
        for k in range(4):
            x0 = X + 8*i + 2*k; x1 = x0 + 1
            a(f"v_lshlrev_b32 v{x0}, 16, v{84+k}")
            a(f"v_and_b32 v{x1}, 0xffff0000, v{84+k}")
        for k in range(4):
            x0 = X + 8*i + 2*k; x1 = x0 + 1
            a(f"v_mul_f32 v{x0}, s{48+2*k}, v{x0}")
            a(f"v_mul_f32 v{x1}, s{49+2*k}, v{x1}")
            a(f"v_cvt_pk_bf16_f32 v{10+4*i+k}, v{x0}, v{x1}")
        a(f"s_add_u32 s31, s30, {i*2*2*ABLK}")
        a(f"buffer_store_dwordx4 v[{10+4*i}:{13+4*i}], v8, s[8:11], s31 offen")
    if st: st(3)
    a("s_branch K1_F_END")
    a.label("K1_F_PF")
    I8B = [o for o in OPTS if o.startswith('it8b=')]
    if I8B:
        r0, r1 = (int(x) for x in I8B[0][5:].split('.'))
        srd(a, 8, 84, 85, 2048 * 9216)
        t8_addr(a, 37, 1, 6, 7, 82, 83)
        a("s_mul_i32 s82, s38, 6")
        a("s_add_u32 s82, s82, s59")
        a("s_sub_u32 s82, s82, 6")
        a(f"s_mul_i32 s82, s82, {8*9216}")
        a(f"s_add_u32 s82, s82, {r0*9216}")
        n8 = -(-(r1 - r0) // (8 * 144))
        for i in range(n8):
            lab = a.newlabel("K1_T8B")
            a(f"s_cmp_ge_u32 s82, {r1*9216}")
            a(f"s_cbranch_scc1 {lab}")
            a(f"buffer_load_dword v{161+i}, v6, s[8:11], s82 offen")
            a.label(lab)
            if i < n8 - 1: a(f"s_add_u32 s82, s82, {144*8*9216}")
    a.label("K1_F_IDLE")
    a("s_barrier")
    a("s_barrier")
    a.label("K1_F_END")

def gen_k12c(a):
    name = "k1_kernel"
    kernel_head(a, name)
    kst_begin(a)
    KT = 'k1st' in OPTS
    F4 = 'fuse4' in OPTS
    assert not F4 or 'pollc' in OPTS
    ST2 = 'st2' in OPTS
    phase = ['ln']
    ST3 = 'st3' in OPTS
    def st(i):
        if KT and not ((ST2 or ST3) and phase[0] == 'ch'): a(f"s_memrealtime s[{60+2*i}:{61+2*i}]")
    def sth(i):
        if KT and ST3: a(f"s_memrealtime s[{60+2*i}:{61+2*i}]")
    def stg(i):
        if KT and ST2: a(f"s_memrealtime s[{60+2*i}:{61+2*i}]")
    def st_flush():
        a("s_waitcnt lgkmcnt(0)")
        srd(a, 76, 6, 7, 0x4000000)
        for i in range(7): a(f"v_mov_b32 v{80+i}, s{60+2*i}")
        a("v_mov_b32 v87, s94")
        a("s_mul_i32 s75, s2, 384")
        a(f"s_lshl_b32 s74, s59, 5")
        a("s_add_u32 s75, s75, s74")
        a("s_add_u32 s75, s75, 0x2a00000")
        a("v_mov_b32 v78, 0")
        a("buffer_store_dwordx4 v[80:83], v78, s[76:79], s75 offen")
        a("buffer_store_dwordx4 v[84:87], v78, s[76:79], s75 offen offset:16")
    def touch(r0, r1, vd, T):
        srd(a, 8, 84, 85, r1 * 9216)
        t0, t1, t2 = T
        a(f"v_min_u32 v{t0}, 59, v1")
        a(f"v_mul_u32_u24 v{t1}, 52, v{t0}")
        a(f"v_lshrrev_b32 v{t1}, 9, v{t1}")
        a(f"v_mul_u32_u24 v{t2}, 10, v{t1}")
        a(f"v_sub_u32 v{t2}, v{t0}, v{t2}")
        a(f"v_mul_u32_u24 v{t1}, 9216, v{t1}")
        a(f"v_lshl_add_u32 v{t1}, v{t2}, 7, v{t1}")
        a("s_and_b32 s82, s2, 7")
        a("s_mul_i32 s82, s82, 27*171")
        a("s_lshr_b32 s82, s82, 10")
        a("s_lshl_b32 s82, s82, 8")
        a("s_sub_u32 s83, s2, 64")
        a("s_lshr_b32 s83, s83, 3")
        a("s_mul_i32 s83, s83, 12")
        a("s_add_u32 s83, s83, s59")
        a(f"s_mul_i32 s83, s83, {6*9216}")
        a("s_add_u32 s82, s82, s83")
        a(f"s_add_u32 s82, s82, {r0*9216}")
        n = -(-(r1 - r0) // (6 * 288))
        for i in range(n):
            a(f"buffer_load_dword v{vd+i}, v{t1}, s[8:11], s82 offen")
            if i < n - 1: a(f"s_add_u32 s82, s82, {288*6*9216}")
        return n
    a("s_cmp_ge_u32 s2, 256")
    a("s_cbranch_scc1 K1_END")
    a("s_load_dwordx2 s[4:5], s[0:1], 0")
    a("s_load_dwordx2 s[6:7], s[0:1], 112")
    a("s_load_dwordx8 s[16:23], s[0:1], 8")
    a("s_load_dwordx4 s[52:55], s[0:1], 40")
    a("s_load_dwordx2 s[56:57], s[0:1], 104")
    a("s_load_dwordx2 s[84:85], s[0:1], 64")
    a("v_lshrrev_b32 v2, 6, v0")
    a("v_readfirstlane_b32 s59, v2")
    a("v_and_b32 v1, 63, v0")
    if KT:
        for i in range(7): a(f"s_mov_b32 s{60+2*i}, 0")
    a("s_cmp_ge_u32 s2, 64")
    a("s_cbranch_scc1 K1_CH")
    a("s_cmp_ge_u32 s59, 8")
    a("s_cbranch_scc1 K1_LN_B")
    a("s_setprio 3")
    a("v_lshrrev_b32 v2, 4, v1")
    a("v_and_b32 v3, 15, v1")
    a("s_lshl_b32 s3, s2, 5")
    a("s_lshl_b32 s26, s59, 2")
    a("s_add_u32 s3, s3, s26")
    a("v_add_u32 v4, s3, v2")
    a("s_movk_i32 s26, 1152")
    a("v_mul_lo_u32 v5, v4, s26")
    a("v_lshl_add_u32 v5, v3, 3, v5")
    a("s_waitcnt lgkmcnt(0)")
    st(0)
    srd(a, 8, 4, 5, L * D * 2)
    for i in range(9):
        a(f"buffer_load_dwordx2 v[{10+2*i}:{11+2*i}], v5, s[8:11], 0 offen offset:{128*i}")
    srd(a, 12, 6, 7, WS_HN)
    srd(a, 48, 56, 57, 256)
    a("v_mov_b32 v6, 0")
    a("ds_write_b32 v6, v6")
    a("v_lshlrev_b32 v7, 2, v4")
    if STP:
        a("v_lshrrev_b32 v9, 9, v7")
        a("v_and_b32 v7, 511, v7")
        a("v_lshl_add_u32 v7, v9, 10, v7")
        a("v_add_u32 v7, 512, v7")
    a("v_mov_b32 v8, 1")
    if F4:
        a("s_cmp_lg_u32 s59, 0")
        a("s_cbranch_scc1 K1_LN_Z")
        a(f"s_cmp_ge_u32 s2, {RC_N}")
        a("s_cbranch_scc1 K1_LN_Z")
        a(f"s_mul_i32 s26, s2, {RC_STRIDE}")
        a(f"s_add_u32 s26, s26, {WS_RC}")
        a("s_mov_b64 exec, 1")
        a("buffer_store_dword v6, v6, s[12:15], s26 offen sc1")
        a("s_mov_b64 exec, -1")
        a.label("K1_LN_Z")
    LNB = 'lnb' in OPTS
    if LNB:
        a("s_waitcnt lgkmcnt(0)")
    else:
        a("s_waitcnt vmcnt(0) lgkmcnt(0)")
        st(1)
    a.label("K1_LN_B")
    a("s_barrier")
    a("s_cmp_ge_u32 s59, 8")
    a("s_cbranch_scc1 K1_PF")
    if LNB:
        a("s_waitcnt vmcnt(0)")
        st(1)
    for i in range(18):
        a(f"v_lshlrev_b32 v{30+2*i}, 16, v{10+i}")
        a(f"v_and_b32 v{31+2*i}, 0xffff0000, v{10+i}")
    a("v_pk_add_f32 v[66:67], v[30:31], v[32:33]")
    a("v_pk_add_f32 v[68:69], v[34:35], v[36:37]")
    for i in range(4, 18):
        r = 66 + 2 * (i % 2)
        a(f"v_pk_add_f32 v[{r}:{r+1}], v[{r}:{r+1}], v[{30+2*i}:{31+2*i}]")
    a("v_pk_add_f32 v[66:67], v[66:67], v[68:69]")
    a("v_add_f32 v66, v66, v67")
    def red16(r):
        for m in ("quad_perm:[1,0,3,2]", "quad_perm:[2,3,0,1]", "row_half_mirror", "row_mirror"):
            a(f"v_add_f32_dpp v{r}, v{r}, v{r} {m} row_mask:0xf bank_mask:0xf")
    red16(66)
    a(f"s_mov_b32 s26, {fhex(1.0/576)}")
    a("v_mul_f32 v70, s26, v66")
    for i in range(18):
        t = 72 + 2 * (i % 4)
        r = 66 + 2 * (i % 2)
        a(f"v_pk_add_f32 v[{t}:{t+1}], v[{30+2*i}:{31+2*i}], v[70:71] op_sel:[0,0] op_sel_hi:[1,0] neg_lo:[0,1] neg_hi:[0,1]")
        if i < 2: a(f"v_pk_mul_f32 v[{r}:{r+1}], v[{t}:{t+1}], v[{t}:{t+1}]")
        else: a(f"v_pk_fma_f32 v[{r}:{r+1}], v[{t}:{t+1}], v[{t}:{t+1}], v[{r}:{r+1}]")
    a("v_pk_add_f32 v[66:67], v[66:67], v[68:69]")
    a("v_add_f32 v66, v66, v67")
    red16(66)
    a("v_mul_f32 v66, s26, v66")
    bf16_round(a, 70, 70)
    bf16_round(a, 66, 66)
    a(f"v_add_f32 v66, {fhex(1e-5)}, v66")
    bf16_round(a, 66, 66)
    a("v_sqrt_f32 v66, v66")
    bf16_round(a, 66, 66)
    a("v_lshrrev_b32 v70, 16, v70")
    a("v_or_b32 v66, v66, v70")
    st(2)
    a("s_mov_b32 exec_lo, 0x00010001")
    a("s_mov_b32 exec_hi, 0x00010001")
    a(f"s_mov_b32 s26, {WS_ST}")
    a("buffer_store_dword v66, v7, s[12:15], s26 offen sc1")
    a("s_waitcnt vmcnt(0)")
    st(3)
    a("s_mov_b64 exec, 1")
    a("ds_add_rtn_u32 v9, v6, v8")
    a("s_waitcnt lgkmcnt(0)")
    a("v_readfirstlane_b32 s26, v9")
    a("s_cmp_lg_u32 s26, 7")
    a("s_cbranch_scc1 K1_LN_D")
    a("buffer_atomic_add v8, v6, s[48:51], 0 offen sc0 sc1")
    a("s_waitcnt vmcnt(0)")
    st(4)
    if not F4:
        a("v_readfirstlane_b32 s26, v8")
        a("s_cmp_lg_u32 s26, 63")
        a("s_cbranch_scc1 K1_LN_D")
        a("v_mov_b32 v8, 1")
        a("buffer_store_dword v8, v6, s[48:51], 0 offen offset:128 sc1")
        if KT:
            a("s_waitcnt vmcnt(0)")
            st(5)
    a.label("K1_LN_D")
    a("s_mov_b64 exec, -1")
    a("s_setprio 0")
    if KT: st_flush()
    a("s_branch K1_PF")

    a.label("K1_CH")
    phase[0] = 'ch'
    a("s_sub_u32 s3, s2, 64")
    a("s_and_b32 s26, s3, 7")
    a("s_mul_i32 s26, s26, 24")
    a("s_lshr_b32 s3, s3, 3")
    a("s_add_u32 s3, s3, s26")
    a("s_lshr_b32 s39, s59, 2")
    a("s_and_b32 s27, s59, 3")
    a("s_mul_i32 s33, s3, 3")
    a("s_add_u32 s33, s33, s39")
    a(f"s_mul_i32 s34, s39, {C_LDS}")
    a("s_movk_i32 s26, 1152")
    GROT = 'grot' in OPTS
    if GROT:
        a("s_add_u32 s35, s3, s39")
        a("s_mul_i32 s28, s35, 171")
        a("s_lshr_b32 s28, s28, 9")
        a("s_mul_i32 s28, s28, 3")
        a("s_sub_u32 s35, s35, s28")
        a("s_lshl_b32 s28, s35, 8")
        a("v_and_b32 v0, 255, v0")
        a("v_add_u32 v151, s28, v0")
        a("v_mul_lo_u32 v150, v151, s26")
        a("v_lshlrev_b32 v151, 1, v151")
    else:
        a("v_mul_lo_u32 v150, v0, s26")
        a("v_lshlrev_b32 v151, 1, v0")
        a("v_and_b32 v0, 255, v0")
    a("v_lshrrev_b32 v3, 4, v1")
    a("v_and_b32 v4, 15, v1")
    a("v_and_b32 v6, 127, v0")
    a("s_lshl_b32 s28, s33, 8")
    a("v_lshlrev_b32 v5, 1, v6")
    a("v_add_u32 v5, s28, v5")
    a("v_lshl_add_u32 v9, v1, 2, s28")
    a("s_lshl_b32 s44, s33, 1")
    a("v_mov_b32 v7, s44")
    a("s_mul_i32 s36, s3, 6")
    a("s_and_b32 s37, s36, 2")
    a("s_lshl_b32 s37, s37, 3")
    a("s_and_b32 s36, s36, -4")
    a(f"s_add_u32 s38, s36, {768*1152}")
    a(f"s_add_u32 s58, s36, {2*768*1152}")
    a("s_waitcnt lgkmcnt(0)")
    sth(0)
    srd(a, 40, 52, 53, D * 2)
    a("buffer_load_ushort v14, v7, s[40:43], 0 offen")
    srd(a, 8, 16, 17, D * NM * 2)
    a("buffer_load_ushort v10, v5, s[8:11], 0 offen")
    srd(a, 28, 18, 19, D * NM * 2)
    a("buffer_load_ushort v11, v5, s[28:31], 0 offen")
    srd(a, 44, 20, 21, D * NM * 2)
    a("buffer_load_dword v24, v9, s[44:47], 0 offen")
    a("buffer_load_ushort v12, v5, s[44:47], 0 offen")
    srd(a, 48, 22, 23, D * NM * 2)
    a("buffer_load_dword v25, v9, s[48:51], 0 offen")
    a("buffer_load_ushort v13, v5, s[48:51], 0 offen")
    srd(a, 40, 54, 55, D * 2)
    a("buffer_load_ushort v160, v7, s[40:43], 0 offen")
    srd(a, 8, 4, 5, L * D * 2)
    sth(1)
    def gathers():
        a("buffer_load_dwordx2 v[152:153], v150, s[8:11], s36 offen")
        a("buffer_load_dwordx2 v[154:155], v150, s[8:11], s38 offen")
        a("buffer_load_dwordx2 v[156:157], v150, s[8:11], s58 offen")
    srd(a, 12, 6, 7, WS_HN)
    srd(a, 48, 56, 57, 256)
    a(f"s_mov_b32 s44, {hex(LOG2E)}")
    a(f"s_mov_b32 s45, {fhex(1.4426950408889634 - 1.4426950216293335)}")
    a(f"s_mov_b32 s46, {fhex(0.6931471805599453)}")
    a(f"s_mov_b32 s47, {hex(INV2PI)}")
    a(f"s_mov_b32 s26, {hex(LOG2E | 0x80000000)}")
    a("v_lshrrev_b32 v8, 3, v6")
    a("v_mul_u32_u24 v8, 544, v8")
    a("v_bfe_u32 v9, v6, 2, 1")
    a("v_lshl_add_u32 v8, v9, 8, v8")
    a("v_and_b32 v9, 3, v6")
    a("v_lshl_add_u32 v8, v9, 2, v8")
    a("v_add_u32 v8, s34, v8")
    a("s_lshr_b32 s28, s27, 1")
    a(f"s_mul_i32 s28, s28, {2*C_TT}")
    a("v_add_u32 v8, s28, v8")
    a(f"v_add_u32 v2, {C_TT}, v8")
    a("v_lshrrev_b32 v9, 1, v3")
    a("v_mul_u32_u24 v9, 544, v9")
    a("v_and_b32 v5, 1, v3")
    a("v_lshl_add_u32 v9, v5, 8, v9")
    a("v_lshl_add_u32 v9, v4, 4, v9")
    a("v_add_u32 v9, s34, v9")
    a("s_cmp_eq_u32 s27, 1")
    a("s_cbranch_scc1 K1_KG_T1")
    a("s_cmp_eq_u32 s27, 2")
    a("s_cbranch_scc1 K1_KG_T2")
    a("v_and_b32 v100, 1, v3")
    a("v_lshlrev_b32 v100, 2, v100")
    a("v_lshrrev_b32 v101, 1, v3")
    a("v_lshl_add_u32 v100, v101, 7, v100")
    a("v_lshl_add_u32 v100, v4, 3, v100")
    for r in range(1, 4): a(f"v_add_u32 v{100+r}, {r}, v100")
    a("s_branch K1_KG_SC")
    a.label("K1_KG_T1")
    a("v_lshlrev_b32 v104, 6, v3")
    a("v_lshl_add_u32 v104, v4, 2, v104")
    a("v_add_u32 v104, 256, v104")
    a("v_lshlrev_b32 v105, 6, v3")
    a("v_lshl_add_u32 v105, v4, 1, v105")
    a("v_add_u32 v105, 256, v105")
    a("v_cmp_gt_u32 vcc, 2, v3")
    for r in range(4):
        a(f"v_add_u32 v106, {r}, v104")
        a(f"v_add_u32 v107, {32*(r>>1)+(r&1)}, v105")
        a(f"v_cndmask_b32 v{100+r}, v107, v106, vcc")
    a("s_branch K1_KG_SC")
    a.label("K1_KG_T2")
    a("v_lshlrev_b32 v100, 6, v3")
    a("v_add_u32 v100, v4, v100")
    a("v_add_u32 v100, 512, v100")
    for r in range(1, 4): a(f"v_add_u32 v{100+r}, {16*r}, v100")
    a.label("K1_KG_SC")
    for r in range(4): a(f"v_lshl_add_u32 v{140+r}, v{100+r}, 2, s34")
    GM = [o for o in OPTS if o.startswith('g=')]
    GM = GM[0][2:] if GM else 'sp'
    GST = 'gst' in OPTS
    assert not GST or GM == 'sp'
    if GST:
        a("s_and_b32 s32, s36, 127")
        a("s_cmp_eq_u32 s32, 124")
        a("s_cselect_b32 s32, 0, 1")
        a("s_add_u32 s32, s32, s39")
    def gpoint(k):
        lab = a.newlabel("K1_GP")
        if GST: a(f"s_cmp_lg_u32 s32, {k+1}")
        else: a(f"s_cmp_lg_u32 s39, {k}")
        a(f"s_cbranch_scc1 {lab}")
        gathers()
        a.label(lab)
    if GM == 'sp0':
        a("s_barrier")
    def static_addr():
        if 'sa2' in OPTS:
            a("s_add_u32 s28, s39, 1")
            a("s_and_b32 s28, s28, 3")
            a("s_xor_b32 s29, s28, s27")
            a("s_lshl_b32 s28, s28, 6")
            a("v_xor_b32 v117, s28, v0")
            a("v_lshlrev_b32 v116, 3, v117")
            a("v_sub_u32 v116, 2047, v116")
            a("v_cvt_f32_i32 v122, v116")
            a(f"s_sub_u32 s28, s34, {4*17024}")
            for p in range(6):
                e = 2 * p
                t = 118 + 2 * (p % 2)
                if e: a(f"v_add_f32 v{t}, {fhex(-float(e))}, v122")
                a(f"v_add_f32 v{t+1}, {fhex(-float(e+1))}, v122")
                a(f"v_cvt_pk_bf16_f32 v{t}, v{t if e else 122}, v{t+1}")
                a(f"v_mad_u32_u16 v{100+e}, v{t}, 4, s28")
                a(f"v_mad_u32_u16 v{101+e}, v{t}, 4, s28 op_sel:[1,0,0,0]")
            lab = a.newlabel("K1_SA")
            a("s_cmp_lg_u32 s29, 3")
            a(f"s_cbranch_scc1 {lab}")
            a(f"s_add_u32 s28, s34, {768*4}")
            a("v_mov_b32 v123, s28")
            for e in range(12):
                t = 118 + 2 * (e % 2)
                a(f"v_subrev_u32 v{t}, {e}, v116")
                a(f"v_lshl_add_u32 v{t+1}, v{t}, 2, s34")
                a(f"v_cmp_gt_i32 vcc, 128, v{t}")
                a(f"v_cndmask_b32 v{100+e}, v{100+e}, v{t+1}, vcc")
                if e >= 8:
                    a(f"v_cmp_gt_i32 vcc, 0, v{t}")
                    a(f"v_cndmask_b32 v{100+e}, v{100+e}, v123, vcc")
            a.label(lab)
            a("v_lshl_add_u32 v5, v117, 4, s34")
        else:
            a("v_lshlrev_b32 v116, 3, v0")
            a("v_sub_u32 v116, 2047, v116")
            for e in range(12):
                a(f"v_subrev_u32 v{118+(e%2)}, {e}, v116")
                a(f"v_cvt_f32_i32 v{120+(e%2)}, v{118+(e%2)}")
                a(f"v_cvt_pk_bf16_f32 v{120+(e%2)}, v{120+(e%2)}, v{120+(e%2)}")
                a(f"v_and_b32 v{120+(e%2)}, 0xffff, v{120+(e%2)}")
                a(f"v_subrev_u32 v{120+(e%2)}, 17024, v{120+(e%2)}")
                a(f"v_min_i32 v{122+(e%2)}, 127, v{118+(e%2)}")
                a(f"v_max_i32 v{120+(e%2)}, v{120+(e%2)}, v{122+(e%2)}")
                if e >= 8:
                    a(f"v_cmp_gt_i32 vcc, 0, v{118+(e%2)}")
                    a(f"v_mov_b32 v{122+(e%2)}, 768")
                    a(f"v_cndmask_b32 v{120+(e%2)}, v{120+(e%2)}, v{122+(e%2)}, vcc")
                a(f"v_lshl_add_u32 v{100+e}, v{120+(e%2)}, 2, s34")
            a("v_lshl_add_u32 v5, v0, 4, s34")
        a("v_lshlrev_b32 v23, 5, v4")
        a("v_lshl_add_u32 v23, v3, 3, v23")
        a("s_lshl_b32 s28, s27, 10")
        a("s_add_u32 s28, s28, s34")
        a("v_add_u32 v23, s28, v23")
        a("v_and_b32 v15, 3, v1")
        a(f"v_mul_u32_u24 v15, {C_CS}, v15")
        a("v_bfe_u32 v116, v1, 2, 2")
        a("v_lshl_add_u32 v15, v116, 4, v15")
        a("v_add_u32 v15, 4096, v15")
        a("v_subrev_u32 v116, 32, v1")
        a("v_lshlrev_b32 v116, 4, v116")
        a(f"v_add_u32 v116, {C_UPAD}, v116")
        a("v_cmp_gt_u32 vcc, 32, v1")
        a("v_cndmask_b32 v15, v116, v15, vcc")
        a("v_add_u32 v15, s34, v15")
        a("v_lshlrev_b32 v20, 5, v4")
        a("v_lshl_add_u32 v20, v3, 4, v20")
        a("s_lshl_b32 s28, s27, 6")
        a(f"s_sub_u32 s29, {C_UOFF-288}, s28")
        a("s_add_u32 s29, s29, s34")
        a("v_add_u32 v20, s29, v20")
        a("v_and_b32 v21, 3, v4")
        a(f"v_mul_u32_u24 v21, {C_CS}, v21")
        a("v_lshl_add_u32 v21, v3, 4, v21")
        a("v_lshrrev_b32 v116, 2, v4")
        a("v_lshlrev_b32 v116, 3, v116")
        a("v_sub_u32 v21, v21, v116")
        a("s_sub_u32 s29, 216, s28")
        a("s_add_u32 s29, s29, s34")
        a("v_add_u32 v21, s29, v21")
        if STP:
            a("v_and_b32 v22, 7, v4")
            a("v_lshlrev_b32 v22, 6, v22")
            a("v_lshrrev_b32 v116, 3, v4")
            a("v_lshl_add_u32 v22, v116, 10, v22")
            a("v_lshl_add_u32 v22, v3, 4, v22")
        else:
            a("v_lshlrev_b32 v22, 6, v4")
            a("v_lshl_add_u32 v22, v3, 4, v22")
        a(f"v_add_u32 v158, {C_LDS}, v151")
        a(f"v_add_u32 v159, {2*C_LDS}, v151")
    if GM == 'sp0':
        gpoint(0)
        static_addr()
        a("s_cmp_lg_u32 s39, 0")
        a("s_cbranch_scc1 K1_PW1")
        a("s_waitcnt vmcnt(4)")
        a("s_branch K1_PW2")
        a.label("K1_PW1")
        a("s_waitcnt vmcnt(1)")
        a.label("K1_PW2")
    elif GST:
        gpoint(-1)
        static_addr()
        a("s_cmp_lg_u32 s32, 0")
        a("s_cbranch_scc1 K1_PW1")
        a("s_waitcnt vmcnt(4)")
        a("s_branch K1_PW2")
        a.label("K1_PW1")
        a("s_waitcnt vmcnt(1)")
        a.label("K1_PW2")
    else:
        static_addr()
        a("s_waitcnt vmcnt(1)")
    st(0)
    sth(2)
    gpoint(1 if GM == 'sp0' else 0)
    sth(3)
    a("v_lshlrev_b32 v14, 16, v14")
    exp_precise(a, 16, 14, 17, 18, 44, 45, 46)
    a("v_lshlrev_b32 v10, 16, v10")
    exp_precise(a, 19, 10, 28, 29, 44, 45, 46)
    bf16_round(a, 16, 16)
    bf16_round(a, 19, 19)
    a("v_add_f32 v17, v16, v16")
    a("v_mul_f32 v19, v19, v16")
    a("v_mul_f32 v32, s26, v19")
    a("v_lshlrev_b32 v11, 16, v11")
    a("v_mul_f32 v11, v11, v16")
    a("v_mul_f32 v33, s47, v11")
    a("v_and_b32 v24, 0x7fff7fff, v24")
    a("v_and_b32 v25, 0x7fff7fff, v25")
    a("v_lshlrev_b32 v28, 16, v24")
    a("v_lshlrev_b32 v29, 16, v25")
    a("v_max_u32 v24, v24, v25")
    a("v_max_u32 v28, v28, v29")
    a("v_and_b32 v24, 0xffff0000, v24")
    a("v_max_u32 v36, v24, v28")
    for mode in ("quad_perm:[1,0,3,2]", "quad_perm:[2,3,0,1]", "row_half_mirror", "row_mirror"):
        a(f"v_max_u32_dpp v36, v36, v36 {mode} row_mask:0xf bank_mask:0xf")
    for k, sr in enumerate((24, 25, 30, 31)): a(f"v_readlane_b32 s{sr}, v36, {16*k}")
    a("s_max_u32 s24, s24, s25")
    a("s_max_u32 s30, s30, s31")
    a("s_max_u32 s24, s24, s30")
    a("v_mul_f32 v36, s24, v17")
    a("v_frexp_exp_i32_f32 v26, v36")
    a("v_sub_u32 v31, 0, v26")
    def direct(dst, n, conj, t):
        c = fhex(float(n)) if n not in (1, 2, 4) else f"{float(n)}"
        a(f"v_mul_f32 v{t}, {c}, v32")
        a(f"v_mul_f32 v{t+1}, {c}, v33")
        a(f"v_fract_f32 v{t+1}, v{t+1}")
        a(f"v_exp_f32 v{t}, v{t}")
        a(f"v_cos_f32 v{t+2}, v{t+1}")
        a(f"v_sin_f32 v{t+3}, v{t+1}")
        a(f"v_mul_f32 v{dst}, v{t}, v{t+2}")
        a(f"v_mul_f32 v{dst+1}, {'-' if conj else ''}v{t}, v{t+3}")
    pend = {}
    cv = [0]
    def put(T, i, p):
        r = 80 + (cv[0] % 16); cv[0] += 1
        a(f"v_cvt_pk_f16_f32 v{r}, v{p}, v{p+1}")
        o = (T, i ^ 1)
        if o in pend:
            ro = pend.pop(o)
            lo, hi = (ro, r) if i & 1 else (r, ro)
            a(f"ds_write2_b32 v{8 if T == 0 else 2}, v{lo}, v{hi} offset0:{4*(i & ~1)} offset1:{4*(i | 1)}")
        else: pend[(T, i)] = r
    G2K = 2 if GM == 'sp0' else 1
    a("s_cmp_ge_u32 s27, 2")
    a("s_cbranch_scc1 K1_H1")
    direct(40, 8, False, 72)
    direct(42, 1, True, 76)
    direct(44, 128, True, 64)
    a("v_lshlrev_b32 v12, 16, v12")
    a("v_lshlrev_b32 v13, 16, v13")
    a("v_mul_f32 v12, v12, v17")
    a("v_mul_f32 v13, v13, v17")
    a("v_ldexp_f32 v46, v12, v31")
    a("v_ldexp_f32 v47, v13, v31")
    a("v_mov_b32 v52, 1.0")
    a("v_mov_b32 v53, 0")
    put(0, 0, 46); put(1, 0, 52); put(1, 1, 42); put(1, 8, 44)
    if GM == 'sp': gpoint(1)
    ecur, enx = 46, 48
    ycur, ynx = 42, 54
    for k in range(1, 16):
        if k == (3 if GM == 'sp0' else 6): gpoint(2)
        cmul(a, enx, ecur, 40, 50)
        if k <= 7:
            cmul(a, 58, ycur, 44, 60)
            if k < 7: cmul(a, ynx, ycur, 42, 62)
        put(0, k, enx)
        if k <= 7:
            put(1, 8 + k, 58)
            if k < 7: put(1, k + 1, ynx)
            ycur, ynx = ynx, (56 if ynx == 54 else 54)
        ecur, enx = enx, ecur
    assert not pend, pend
    a("s_branch K1_HJ")
    a.label("K1_H1")
    cv[0] = 0
    direct(40, 2, True, 72)
    direct(42, 128, True, 76)
    cmul(a, 44, 40, 40, 60)
    cmul(a, 48, 42, 42, 62)
    cmul(a, 46, 44, 40, 60)
    cmul(a, 50, 48, 42, 62)
    cmul(a, 52, 48, 48, 60)
    cmul(a, 54, 52, 52, 62)
    if GM == 'sp': gpoint(1)
    ys = [40, 44, 46]
    gcur, gnx = 54, 56
    put(1, 0, 54)
    bcur, bnx = 52, 64
    k2 = 1
    def g2step():
        nonlocal gcur, gnx, k2
        if k2 > 15: return
        cmul(a, gnx, gcur, 42, 58)
        put(1, k2, gnx)
        gcur, gnx = gnx, gcur
        k2 += 1
    for base, j0 in ((48, 0), (50, 4)):
        put(0, j0, base)
        for t in range(3):
            cmul(a, 66, base, ys[t], 60)
            g2step()
            put(0, j0 + 1 + t, 66)
        if j0 == 0 and GM == 'sp0': gpoint(2)
    if GM == 'sp': gpoint(2)
    for t in range(4):
        cmul(a, 66, bcur, 44, 60)
        if t < 3: cmul(a, bnx, bcur, 42, 62)
        put(0, 8 + 2 * t, bcur)
        g2step()
        put(0, 8 + 2 * t + 1, 66)
        if t < 3: bcur, bnx = bnx, (68 if bnx == 64 else 64)
    while k2 <= 15: g2step()
    assert not pend, pend
    a.label("K1_HJ")
    a("s_waitcnt lgkmcnt(0)")
    a("s_barrier")
    st(1)
    sth(4)
    a("s_cmp_eq_u32 s27, 3")
    a("s_cbranch_scc1 K1_KG_Z")
    a(f"s_mul_i32 s28, s27, {C_TT}")
    a(f"s_add_u32 s28, s28, {C_TT}")
    a("v_add_u32 v7, s28, v9")
    AFR = 36; BFR = 68; ACCK = 128
    for ks in range(8):
        a(f"ds_read_b128 v[{AFR+4*ks}:{AFR+4*ks+3}], v7 offset:{1088*ks}")
        a(f"ds_read_b128 v[{BFR+4*ks}:{BFR+4*ks+3}], v9 offset:{1088*ks}")
    for ks in range(8):
        a(f"s_waitcnt lgkmcnt({14-2*ks})")
        acc = ACCK + 4 * (ks % 2)
        a(f"v_mfma_f32_16x16x32_f16 v[{acc}:{acc+3}], v[{AFR+4*ks}:{AFR+4*ks+3}], v[{BFR+4*ks}:{BFR+4*ks+3}], {'0' if ks < 2 else f'v[{acc}:{acc+3}]'}")
    for r in range(4):
        a(f"v_add_f32 v{ACCK+r}, v{ACCK+r}, v{ACCK+4+r}")
        a(f"v_ldexp_f32 v{ACCK+r}, v{ACCK+r}, v26")
        a(f"ds_write_b32 v{140+r}, v{ACCK+r} offset:{C_KC}")
    a("s_branch K1_KG_X")
    a.label("K1_KG_Z")
    a("v_mov_b32 v7, s34")
    a("v_mov_b32 v36, 0")
    a(f"ds_write_b32 v7, v36 offset:{C_KC + 768*4}")
    a.label("K1_KG_X")
    sth(5)
    a("s_waitcnt vmcnt(0)")
    sth(6)
    for k in range(3):
        lab = a.newlabel("K1_XS")
        if k == 2:
            a("s_cmp_ge_u32 s35, 2" if GROT else "s_cmp_ge_u32 s59, 8")
            a(f"s_cbranch_scc1 {lab}")
        r = 152 + 2 * k
        a(f"v_lshrrev_b64 v[{r}:{r+1}], s37, v[{r}:{r+1}]")
        a(f"ds_write_b16 v151, v{r} offset:{C_UOFF + 1536*k}")
        a(f"ds_write_b16_d16_hi v158, v{r} offset:{C_UOFF + 1536*k}")
        a(f"ds_write_b16 v159, v{r+1} offset:{C_UOFF + 1536*k}")
        if k == 2: a.label(lab)
    a("s_waitcnt lgkmcnt(0)")
    a("s_barrier")
    st(2)
    PC = 'pollc' in OPTS
    GOFF = 0 if PC else 128
    GOV = 64 if PC else 1
    a("v_mov_b32 v7, 0")
    a(f"buffer_load_dword v9, v7, s[48:51], 0 offen offset:{GOFF} sc1")
    for e in range(12):
        a(f"ds_read_b32 v{70+e}, v{100+e} offset:{C_KC}")
    a(f"ds_read_b64 v[10:11], v23 offset:{C_UOFF}")
    a(f"ds_read_b64 v[12:13], v23 offset:{C_UOFF + 512}")
    for r in range(4): a(f"v_mov_b32 v{84+r}, 0")
    a("ds_write_b128 v15, v[84:87]")
    a(f"s_lshl_b32 s38, s27, {12 if STP else 11}")
    a(f"s_add_u32 s38, s38, {WS_ST + (512 if STP else 0)}")
    Dv = 40; Ev = 48; Ov = 52; Pv = 56
    a("s_waitcnt lgkmcnt(3)")
    for k in range(6):
        a(f"v_cvt_pk_bf16_f32 v{Dv+k}, v{70+2*k}, v{71+2*k}")
    if 'dumpR' in OPTS:
        srd(a, 28, 6, 7, WS_HT)
        a("s_mul_i32 s36, s33, %d" % RSTRIDE)
        a(f"s_add_u32 s36, s36, {WS_R}")
        a("v_lshlrev_b32 v7, 4, v0")
        a("buffer_store_dwordx4 v[40:43], v7, s[28:31], s36 offen")
        a("v_mov_b32 v7, 0")
    for k in range(4): a(f"v_mov_b32 v{Ev+k}, v{Dv+1+k}")
    for k in range(4): a(f"v_alignbit_b32 v{Ov+k}, v{Dv+k+1}, v{Dv+k}, 16")
    for k in range(4): a(f"v_alignbit_b32 v{Pv+k}, v{Dv+k+2}, v{Dv+k+1}, 16")
    src = {3: Dv, 1: Ev, 2: Ov, 0: Pv}
    def copies():
        for r in range(4):
            a(f"ds_write_b128 v5, v[{src[r]}:{src[r]+3}] offset:{r*C_CS}")
    CF = 'cpfirst' in OPTS
    if CF: copies()
    a("s_waitcnt vmcnt(0)")
    a("v_readfirstlane_b32 s36, v9")
    a(f"s_cmp_lt_u32 s36, {GOV}")
    a("s_cbranch_scc1 K1_NG1")
    a("buffer_load_dwordx4 v[24:27], v22, s[12:15], s38 offen sc1")
    a(f"buffer_load_dwordx4 v[28:31], v22, s[12:15], s38 offen offset:{2048 if STP else 1024} sc1")
    a("s_branch K1_NG2")
    a.label("K1_NG1")
    a(f"buffer_load_dword v9, v7, s[48:51], 0 offen offset:{GOFF} sc1")
    a.label("K1_NG2")
    if not CF: copies()
    st(3)
    ACC = 128
    for r in range(32): a(f"v_mov_b32 v{ACC+r}, 0")
    a(f"s_cmp_ge_u32 s36, {GOV}")
    a("s_cbranch_scc1 K1_GO2")
    a.label("K1_POLL")
    a("s_waitcnt vmcnt(0)")
    a("v_readfirstlane_b32 s36, v9")
    a(f"s_cmp_ge_u32 s36, {GOV}")
    a("s_cbranch_scc1 K1_GO")
    a("s_sleep 1")
    a(f"buffer_load_dword v9, v7, s[48:51], 0 offen offset:{GOFF} sc1")
    a("s_branch K1_POLL")
    a.label("K1_GO")
    a("buffer_load_dwordx4 v[24:27], v22, s[12:15], s38 offen sc1")
    a(f"buffer_load_dwordx4 v[28:31], v22, s[12:15], s38 offen offset:{2048 if STP else 1024} sc1")
    a.label("K1_GO2")
    for tt in range(2):
        X = 32; M = 36; R = 40
        xp = 10 + 2 * tt; S = 24 + 4 * tt
        a(f"v_lshlrev_b32 v{X}, 16, v{xp}")
        a(f"v_and_b32 v{X+1}, 0xffff0000, v{xp}")
        a(f"v_lshlrev_b32 v{X+2}, 16, v{xp+1}")
        a(f"v_and_b32 v{X+3}, 0xffff0000, v{xp+1}")
        a(f"s_waitcnt vmcnt({1-tt})")
        if tt == 0: st(4)
        for k in range(4):
            a(f"v_and_b32 v{R+k}, 0xffff0000, v{S+k}")
            a(f"v_lshlrev_b32 v{M+k}, 16, v{S+k}")
            a(f"v_rcp_f32 v{R+k}, v{R+k}")
            a(f"v_sub_f32 v{X+k}, v{X+k}, v{M+k}")
        a(f"v_cvt_pk_bf16_f32 v{M}, v{X}, v{X+1}")
        a(f"v_cvt_pk_bf16_f32 v{M+1}, v{X+2}, v{X+3}")
        a(f"v_lshlrev_b32 v{X}, 16, v{M}")
        a(f"v_and_b32 v{X+1}, 0xffff0000, v{M}")
        a(f"v_lshlrev_b32 v{X+2}, 16, v{M+1}")
        a(f"v_and_b32 v{X+3}, 0xffff0000, v{M+1}")
        for k in range(4): a(f"v_mul_f32 v{X+k}, v{X+k}, v{R+k}")
        a(f"v_cvt_pk_bf16_f32 v{16+2*tt}, v{X}, v{X+1}")
        a(f"v_cvt_pk_bf16_f32 v{17+2*tt}, v{X+2}, v{X+3}")
        a(f"ds_write_b64 v23, v[{16+2*tt}:{17+2*tt}] offset:{C_UOFF + 512*tt}")
    a("v_lshl_add_u32 v5, v1, 4, s34")
    a("s_waitcnt lgkmcnt(0)")
    a("s_barrier")
    st(5)
    stg(0)
    ITX = [o for o in OPTS if o.startswith('itx=')]
    if ITX: touch(*(int(x) for x in ITX[0][4:].split('.')), 161, (24, 25, 26))
    ICP = 'icp' in OPTS
    IT8 = [o for o in OPTS if o.startswith('it8=')]
    def wave_in_xcd(sd):
        a(f"s_sub_u32 s{sd}, s2, 64")
        a(f"s_lshr_b32 s{sd}, s{sd}, 3")
        a(f"s_mul_i32 s{sd}, s{sd}, 12")
        a(f"s_add_u32 s{sd}, s{sd}, s59")
    if ICP or IT8:
        srd(a, 8, 84, 85, 2048 * 9216)
        a("s_and_b32 s80, s2, 7")
        wave_in_xcd(81)
    if ICP:
        a("s_mul_i32 s82, s80, 576")
        a("s_lshl_b32 s83, s81, 1")
        a("s_add_u32 s82, s82, s83")
        a("s_lshr_b32 s83, s82, 9")
        a("s_and_b32 s82, s82, 511")
        a("s_lshl_b32 s82, s82, 2")
        a("v_lshrrev_b32 v2, 4, v1")
        a("v_and_b32 v6, 15, v1")
        a("v_lshlrev_b32 v6, 4, v6")
        a("v_mul_u32_u24 v7, 9216, v2")
        a("v_add_u32 v7, v7, v6")
        a(f"v_mul_u32_u24 v2, {W1C_PITCH}, v2")
        a("v_add_u32 v2, v2, v6")
        a("s_mul_i32 s86, s82, 9216")
        a("s_lshl_b32 s87, s83, 10")
        a("s_add_u32 s86, s86, s87")
        a("s_add_u32 s86, s86, 256")
        a("buffer_load_dwordx4 v[24:27], v7, s[8:11], s86 offen")
        a(f"s_add_u32 s86, s86, {4*9216}")
        a("buffer_load_dwordx4 v[28:31], v7, s[8:11], s86 offen")
        a(f"s_mul_i32 s86, s82, {W1C_PITCH}")
        a("s_lshl_b32 s87, s83, 9")
        a("s_add_u32 s86, s86, s87")
        a(f"s_add_u32 s86, s86, {WS_W1C}")
    if IT8:
        r0, r1 = (int(x) for x in IT8[0][4:].split('.'))
        t8_addr(a, 80, 1, 6, 7, 82, 83)
        if 'it8t' in OPTS:
            a("s_sub_u32 s82, s2, 64")
            a("s_lshr_b32 s82, s82, 3")
            a("s_mul_i32 s81, s59, 24")
            a("s_add_u32 s81, s81, s82")
        a(f"s_mul_i32 s82, s81, {8*9216}")
        a(f"s_add_u32 s82, s82, {r0*9216}")
        n8 = -(-(r1 - r0) // (8 * 288))
        a("s_mov_b32 s87, 0")
        for i in range(n8):
            lab = a.newlabel("K1_T8")
            a(f"s_cmp_ge_u32 s82, {r1*9216}")
            a(f"s_cbranch_scc1 {lab}")
            a(f"buffer_load_dword v{161+i}, v6, s[8:11], s82 offen")
            a("s_add_u32 s87, s87, 1")
            a.label(lab)
            if i < n8 - 1: a(f"s_add_u32 s82, s82, {288*8*9216}")
    BF = 32; AF = 96
    def lda(i, h): a(f"ds_read_b64 v[{AF+4*(i%8)+2*h}:{AF+4*(i%8)+2*h+1}], v21 offset:{256*(15-i)+8*h}")
    def ldb(z): a(f"ds_read_b128 v[{BF+4*z}:{BF+4*z+3}], v20 offset:{256*z}")
    order = []
    for n in range(16): order += [('a', 15 - n, 0), ('a', 15 - n, 1), ('b', n, 0)]
    issued = 0
    def issue(n):
        nonlocal issued
        for _ in range(n):
            if issued >= len(order): return
            k, x, h = order[issued]
            if k == 'a': lda(x, h)
            else: ldb(x)
            issued += 1
    issue(15)
    for n in range(16):
        i = 15 - n
        a(f"s_waitcnt lgkmcnt({issued - (3*n + 3)})")
        af = AF + 4 * (i % 8)
        for t in range(7, (i >> 1) - 1, -1):
            z = 2 * t - i
            if z < -1: continue
            a(f"v_mfma_f32_16x16x32_bf16 v[{ACC+4*t}:{ACC+4*t+3}], v[{af}:{af+3}], v[{BF+4*(z+1)}:{BF+4*(z+1)+3}], v[{ACC+4*t}:{ACC+4*t+3}]")
        issue(3)
    stg(1)
    CPE = 'cpe' in OPTS
    def copy_store(NHS):
        srd(a, 8, 6, 7, WS_W1C + 2048 * W1C_PITCH)
        if IT8:
            assert not ITX
            for c in range(n8, -1, -1):
                if c > 0:
                    lab = a.newlabel("K1_CW")
                    a(f"s_cmp_lg_u32 s87, {c}")
                    a(f"s_cbranch_scc1 {lab}")
                    a(f"s_waitcnt vmcnt({NHS+c})")
                    a("s_branch K1_CWD")
                    a.label(lab)
                else:
                    a(f"s_waitcnt vmcnt({NHS})")
            a.label("K1_CWD")
        else:
            assert not ITX
            a(f"s_waitcnt vmcnt({NHS})")
        a("buffer_store_dwordx4 v[24:27], v2, s[8:11], s86 offen" + (" sc1" if 'cpsc1' in OPTS else ""))
        a(f"s_add_u32 s86, s86, {4*W1C_PITCH}")
        a("buffer_store_dwordx4 v[28:31], v2, s[8:11], s86 offen" + (" sc1" if 'cpsc1' in OPTS else ""))
    if ICP and CPE: copy_store(0)
    for o in range(4):
        lab = a.newlabel("K2_W")
        a(f"s_cmp_eq_u32 s27, {o}")
        a(f"s_cbranch_scc1 {lab}")
        a(f"s_sub_u32 s36, s27, {o+1}")
        a("s_and_b32 s36, s36, 3")
        a("s_lshl_b32 s36, s36, 10")
        a("v_add_u32 v22, s36, v5")
        for t in (2*o, 2*o+1):
            a(f"ds_write_b128 v22, v[{ACC+4*t}:{ACC+4*t+3}] offset:{C_PART + 3072*t}")
        a.label(lab)
    for w in range(4):
        lab = a.newlabel("K2_M")
        a(f"s_cmp_lg_u32 s27, {w}")
        a(f"s_cbranch_scc1 {lab}")
        for r in range(8): a(f"v_mov_b32 v{96+r}, v{ACC+8*w+r}")
        a.label(lab)
    a("v_subrev_u32 v8, s34, v23")
    a("s_mul_i32 s37, s27, 6144")
    a("v_add_u32 v22, s37, v5")
    a("v_lshlrev_b32 v14, 16, v160")
    a("s_waitcnt lgkmcnt(0)")
    stg(2)
    a("s_barrier")
    stg(3)
    for k in range(3):
        a(f"ds_read_b128 v[{32+8*k}:{35+8*k}], v22 offset:{C_PART + 1024*k}")
        a(f"ds_read_b128 v[{36+8*k}:{39+8*k}], v22 offset:{C_PART + 3072 + 1024*k}")
    a("s_waitcnt lgkmcnt(0)")
    stg(4)
    for r in range(8):
        a(f"v_add_f32 v{96+r}, v{96+r}, v{32+r}")
        a(f"v_add_f32 v{40+r}, v{40+r}, v{48+r}")
        a(f"v_add_f32 v{96+r}, v{96+r}, v{40+r}")
    for tt in range(2):
        y = 96 + 4 * tt; u = 16 + 2 * tt; x = 10 + 2 * tt
        a(f"v_cvt_pk_bf16_f32 v60, v{y}, v{y+1}")
        a(f"v_cvt_pk_bf16_f32 v61, v{y+2}, v{y+3}")
        a(f"v_lshlrev_b32 v62, 16, v{u}")
        a(f"v_and_b32 v63, 0xffff0000, v{u}")
        a(f"v_lshlrev_b32 v64, 16, v{u+1}")
        a(f"v_and_b32 v65, 0xffff0000, v{u+1}")
        for k in range(4): a(f"v_mul_f32 v{62+k}, v{62+k}, v14")
        a(f"v_cvt_pk_bf16_f32 v66, v62, v63")
        a(f"v_cvt_pk_bf16_f32 v67, v64, v65")
        for k in range(2):
            a(f"v_lshlrev_b32 v62, 16, v{60+k}")
            a(f"v_lshlrev_b32 v63, 16, v{66+k}")
            a(f"v_and_b32 v64, 0xffff0000, v{60+k}")
            a(f"v_and_b32 v65, 0xffff0000, v{66+k}")
            a(f"v_add_f32 v62, v62, v63")
            a(f"v_add_f32 v64, v64, v65")
            a(f"v_cvt_pk_bf16_f32 v{68+k}, v62, v64")
            a(f"v_lshlrev_b32 v62, 16, v{68+k}")
            a(f"v_lshlrev_b32 v63, 16, v{x+k}")
            a(f"v_and_b32 v64, 0xffff0000, v{68+k}")
            a(f"v_and_b32 v65, 0xffff0000, v{x+k}")
            a(f"v_add_f32 v62, v62, v63")
            a(f"v_add_f32 v64, v64, v65")
            a(f"v_cvt_pk_bf16_f32 v{70+2*tt+k}, v62, v64")
    if HTP:
        assert 'h4' in OPTS
        a("s_lshl_b32 s35, s33, 13")
        a("s_lshl_b32 s36, s27, 10")
        a("s_add_u32 s35, s35, s36")
        a(f"s_add_u32 s35, s35, {WS_HTP + 512}")
    else:
        a("s_lshl_b32 s35, s33, 12")
        a(f"s_add_u32 s35, s35, {WS_HT}")
    stg(5)
    H4 = 'h4' in OPTS
    NHS = 1 if H4 else 2
    if H4:
        a("v_and_b32 v9, 1, v3")
        a(f"v_mul_u32_u24 v9, {1016 if HTP else 504}, v9")
        a("v_add_u32 v8, v9, v8")
        a("v_permlane16_swap_b32 v70, v72")
        a("v_permlane16_swap_b32 v71, v73")
        a("buffer_store_dwordx4 v[70:73], v8, s[12:15], s35 offen" + (" sc1" if F4 else ""))
    else:
        a("buffer_store_dwordx2 v[70:71], v8, s[12:15], s35 offen" + (" sc1" if F4 else ""))
        a("buffer_store_dwordx2 v[72:73], v8, s[12:15], s35 offen offset:512" + (" sc1" if F4 else ""))
    if ICP and not CPE: copy_store(NHS)
    if F4:
        a(f"s_waitcnt vmcnt({2 if (ICP and not CPE) else 0})")
        st(6)
        stg(6)
        ln2_tail(a, st if 'st4' in OPTS else None)
    if KT:
        a("s_waitcnt vmcnt(0) lgkmcnt(0)")
        if not F4:
            st(6)
            stg(6)
        st_flush()
    a("s_branch K1_END")
    a.label("K1_PF")
    a("s_waitcnt lgkmcnt(0)")
    if 'pfwg' in OPTS:
        a("v_mov_b32 v7, 0")
        a.label("K1_PFW")
        a("ds_read_b32 v9, v7")
        a("s_waitcnt lgkmcnt(0)")
        a("v_readfirstlane_b32 s37, v9")
        a("s_cmp_ge_u32 s37, 8")
        a("s_cbranch_scc1 K1_PFG")
        a("s_sleep 2")
        a("s_branch K1_PFW")
        a.label("K1_PFG")
    elif 'pfgo' in OPTS:
        srd(a, 48, 56, 57, 256)
        a("v_mov_b32 v7, 0")
        a.label("K1_PFW")
        a("buffer_load_dword v9, v7, s[48:51], 0 offen offset:128 sc1")
        a("s_waitcnt vmcnt(0)")
        a("v_readfirstlane_b32 s37, v9")
        a("s_cmp_lg_u32 s37, 0")
        a("s_cbranch_scc1 K1_PFG")
        a("s_sleep 2")
        a("s_branch K1_PFW")
        a.label("K1_PFG")
    gen_prefetch(a, 1, 0, "K1_END")
    a.label("K1_END")
    kst_end(a, 0, 256)
    a("s_endpgm")
    return name, 164, K12C_LDS
```

```python
from gen import *

def gen_k2(a):
    name = "k2_kernel"
    kernel_head(a, name)
    CS = 4160
    UPAD = 8 * CS
    UOFF = UPAD + 512
    kst_begin(a)
    a("s_cmp_ge_u32 s2, 576")
    a("s_cbranch_scc1 K2_PF")
    a("s_load_dwordx2 s[6:7], s[0:1], 112")
    a("s_load_dwordx2 s[4:5], s[0:1], 48")
    it_load_ptrs(a, 2)
    a("v_and_b32 v1, 63, v0")
    a("v_lshrrev_b32 v2, 6, v0")
    a("v_readfirstlane_b32 s27, v2")
    a("v_lshrrev_b32 v3, 4, v1")
    a("v_and_b32 v4, 15, v1")
    a("v_lshlrev_b32 v5, 4, v1")
    a("s_waitcnt lgkmcnt(0)")
    srd(a, 8, 6, 7, WS_HN)
    srd(a, 12, 4, 5, D * 2)
    a("s_lshl_b32 s28, s27, 2")
    a("s_sub_u32 s28, 12, s28")
    a("v_add_u32 v6, s28, v5")
    a(f"v_add_u32 v7, {ROFF}, v6")
    a(f"s_mul_i32 s29, s2, {RSTRIDE}")
    a(f"s_add_u32 s29, s29, {WS_R}")
    a(f"s_mul_i32 s30, s27, {2*CS}")
    a("s_mov_b32 m0, s30")
    for q in range(4):
        a(f"buffer_load_dwordx4 v7, s[8:11], s29 offen offset:{1024*q} lds")
    a(f"s_add_u32 s30, s30, {CS}")
    a("s_mov_b32 m0, s30")
    for q in range(4):
        a(f"buffer_load_dwordx4 v6, s[8:11], s29 offen offset:{1024*q} lds")
    a("s_lshl_b32 s31, s27, 10")
    a(f"s_add_u32 s30, s31, {UOFF}")
    a("s_mov_b32 m0, s30")
    a("s_lshl_b32 s32, s2, 12")
    a("s_add_u32 s33, s32, s31")
    a(f"s_add_u32 s33, s33, {WS_UT}")
    a("buffer_load_dwordx4 v5, s[8:11], s33 offen lds")
    a("v_lshlrev_b32 v8, 5, v4")
    a("v_lshl_add_u32 v8, v3, 3, v8")
    a("s_lshl_b32 s34, s27, 10")
    a("s_add_u32 s34, s34, s32")
    a(f"s_add_u32 s35, s34, {WS_XT}")
    a("buffer_load_dwordx2 v[10:11], v8, s[8:11], s35 offen")
    a("buffer_load_dwordx2 v[12:13], v8, s[8:11], s35 offen offset:512")
    a("s_lshl_b32 s36, s2, 1")
    a("v_mov_b32 v9, s36")
    a("buffer_load_ushort v14, v9, s[12:15], 0 offen")
    a("v_lshrrev_b32 v15, 2, v1")
    a(f"s_movk_i32 s37, {CS}")
    a("v_mul_lo_u32 v15, v15, s37")
    a("v_and_b32 v16, 3, v1")
    a("v_lshl_add_u32 v15, v16, 4, v15")
    a("v_add_u32 v15, 4096, v15")
    a("v_subrev_u32 v16, 32, v1")
    a("v_lshlrev_b32 v16, 4, v16")
    a(f"v_add_u32 v16, {UPAD}, v16")
    a("v_cmp_gt_u32 vcc, 32, v1")
    a("v_cndmask_b32 v15, v16, v15, vcc")
    for r in range(4): a(f"v_mov_b32 v{16+r}, 0")
    a("ds_write_b128 v15, v[16:19]")
    a("v_lshlrev_b32 v20, 5, v4")
    a("v_lshl_add_u32 v20, v3, 4, v20")
    a("s_lshl_b32 s37, s27, 6")
    a(f"s_sub_u32 s38, {UOFF-288}, s37")
    a("v_add_u32 v20, s38, v20")
    a("v_and_b32 v21, 7, v4")
    a(f"s_movk_i32 s39, {CS}")
    a("v_mul_lo_u32 v21, v21, s39")
    a("v_lshl_add_u32 v21, v3, 4, v21")
    a("v_lshrrev_b32 v22, 3, v4")
    a("v_lshlrev_b32 v22, 4, v22")
    a("v_sub_u32 v21, v21, v22")
    a("s_sub_u32 s38, 208, s37")
    a("v_add_u32 v21, s38, v21")
    ACC = 128
    for r in range(32): a(f"v_mov_b32 v{ACC+r}, 0")
    a("s_waitcnt vmcnt(0) lgkmcnt(0)")
    a("s_barrier")
    a("s_lshl_b32 s71, s2, 2")
    a("s_add_u32 s71, s71, s27")
    inline_touch(a, 2, 71, 2304, 1, 15, 16)
    BF = 32
    for z in range(16):
        a(f"ds_read_b128 v[{BF+4*z}:{BF+4*z+3}], v20 offset:{256*z}")
    AF = 96
    for i in range(8):
        a(f"ds_read_b128 v[{AF+4*i}:{AF+4*i+3}], v21 offset:{256*(15-i)}")
    for i in range(16):
        a(f"s_waitcnt lgkmcnt({7 if i < 8 else 15-i})")
        af = AF + 4 * (i % 8)
        for t in range(i >> 1, 8):
            z = 2 * t - i
            if z < -1: continue
            a(f"v_mfma_f32_16x16x32_bf16 v[{ACC+4*t}:{ACC+4*t+3}], v[{af}:{af+3}], v[{BF+4*(z+1)}:{BF+4*(z+1)+3}], v[{ACC+4*t}:{ACC+4*t+3}]")
        if i < 8:
            a(f"ds_read_b128 v[{af}:{af+3}], v21 offset:{256*(15-(i+8))}")
    a("s_barrier")
    a("s_lshl_b32 s37, s27, 13")
    a("v_add_u32 v22, s37, v5")
    for w in range(4):
        lab = a.newlabel("K2_W")
        a(f"s_cmp_eq_u32 s27, {w}")
        a(f"s_cbranch_scc1 {lab}")
        for t in (2*w, 2*w+1):
            a(f"ds_write_b128 v22, v[{ACC+4*t}:{ACC+4*t+3}] offset:{1024*t}")
        a.label(lab)
    for w in range(4):
        lab = a.newlabel("K2_M")
        a(f"s_cmp_lg_u32 s27, {w}")
        a(f"s_cbranch_scc1 {lab}")
        for r in range(8): a(f"v_mov_b32 v{24+r}, v{ACC+8*w+r}")
        a.label(lab)
    a("s_waitcnt lgkmcnt(0)")
    a("s_barrier")
    a("s_lshl_b32 s37, s27, 11")
    a("v_add_u32 v22, s37, v5")
    for k in range(1, 4):
        a(f"s_add_u32 s38, s27, {k}")
        a("s_and_b32 s38, s38, 3")
        a("s_lshl_b32 s38, s38, 13")
        a(f"v_add_u32 v23, s38, v22")
        a(f"ds_read_b128 v[{32+8*(k-1)}:{35+8*(k-1)}], v23")
        a(f"ds_read_b128 v[{36+8*(k-1)}:{39+8*(k-1)}], v23 offset:1024")
    a("s_lshl_b32 s37, s27, 10")
    a(f"s_add_u32 s37, s37, {UOFF}")
    a("v_add_u32 v23, s37, v8")
    a("ds_read_b64 v[56:57], v23")
    a("ds_read_b64 v[58:59], v23 offset:512")
    a("v_lshlrev_b32 v14, 16, v14")
    a("s_waitcnt lgkmcnt(0)")
    for r in range(8):
        a(f"v_add_f32 v{24+r}, v{24+r}, v{32+r}")
        a(f"v_add_f32 v{40+r}, v{40+r}, v{48+r}")
        a(f"v_add_f32 v{24+r}, v{24+r}, v{40+r}")
    for tt in range(2):
        y = 24 + 4 * tt; u = 56 + 2 * tt; x = 10 + 2 * tt
        a(f"v_cvt_pk_bf16_f32 v60, v{y}, v{y+1}")
        a(f"v_cvt_pk_bf16_f32 v61, v{y+2}, v{y+3}")
        a(f"v_lshlrev_b32 v62, 16, v{u}")
        a(f"v_and_b32 v63, 0xffff0000, v{u}")
        a(f"v_lshlrev_b32 v64, 16, v{u+1}")
        a(f"v_and_b32 v65, 0xffff0000, v{u+1}")
        for k in range(4): a(f"v_mul_f32 v{62+k}, v{62+k}, v14")
        a(f"v_cvt_pk_bf16_f32 v66, v62, v63")
        a(f"v_cvt_pk_bf16_f32 v67, v64, v65")
        for k in range(2):
            a(f"v_lshlrev_b32 v62, 16, v{60+k}")
            a(f"v_lshlrev_b32 v63, 16, v{66+k}")
            a(f"v_and_b32 v64, 0xffff0000, v{60+k}")
            a(f"v_and_b32 v65, 0xffff0000, v{66+k}")
            a(f"v_add_f32 v62, v62, v63")
            a(f"v_add_f32 v64, v64, v65")
            a(f"v_cvt_pk_bf16_f32 v{68+k}, v62, v64")
            a(f"v_lshlrev_b32 v62, 16, v{68+k}")
            a(f"v_lshlrev_b32 v63, 16, v{x+k}")
            a(f"v_and_b32 v64, 0xffff0000, v{68+k}")
            a(f"v_and_b32 v65, 0xffff0000, v{x+k}")
            a(f"v_add_f32 v62, v62, v63")
            a(f"v_add_f32 v64, v64, v65")
            a(f"v_cvt_pk_bf16_f32 v{70+2*tt+k}, v62, v64")
    a(f"s_add_u32 s35, s34, {WS_HT}")
    a("buffer_store_dwordx2 v[70:71], v8, s[8:11], s35 offen")
    a("buffer_store_dwordx2 v[72:73], v8, s[8:11], s35 offen offset:512")
    a("s_branch K2_END")
    a.label("K2_PF")
    gen_prefetch(a, 2, 576, "K2_END")
    a.label("K2_END")
    kst_end(a, 1, 576 + PF[2].nwg)
    a("s_endpgm")
    return name, 160, UOFF + 4096

K3_NWG = 256
def ht_group_addr(a):
    if HTP:
        a("v_lshlrev_b32 v4, 13, v0")
        a("s_lshr_b32 s28, s3, 5")
        a("s_lshl_b32 s28, s28, 10")
        a("s_and_b32 s29, s3, 31")
        a("s_lshl_b32 s29, s29, 4")
        a("s_add_u32 s28, s28, s29")
        a(f"s_add_u32 s28, s28, {WS_HTP + 512}")
    else:
        a("v_lshlrev_b32 v4, 12, v0")
        a("s_lshl_b32 s28, s3, 4")
        a(f"s_add_u32 s28, s28, {WS_HT}")
def gen_k3(a):
    name = "k3_kernel"
    kernel_head(a, name)
    kst_begin(a)
    NG3 = K3_NWG + PF[3].nwg
    a(f"s_cmp_ge_u32 s2, {NG3}")
    a("s_cbranch_scc1 K3_END")
    if not DYN:
        a(f"s_cmp_ge_u32 s2, {K3_NWG}")
        a("s_cbranch_scc1 K3_PF")
    a("s_load_dwordx2 s[6:7], s[0:1], 112")
    it_load_ptrs(a, 3)
    if DYN:
        a("v_lshrrev_b32 v2, 6, v0")
        a("v_readfirstlane_b32 s27, v2")
        a("s_waitcnt lgkmcnt(0)")
        dyn_assign(a, 2, NG3 // 8, 1024, 27)
        a(f"s_cmp_ge_u32 s2, {K3_NWG}")
        a("s_cbranch_scc1 K3_PF")
    a("s_and_b32 s3, s2, 7")
    a("s_lshl_b32 s3, s3, 5")
    a("s_lshr_b32 s4, s2, 3")
    a("s_add_u32 s3, s3, s4")
    a("v_and_b32 v1, 63, v0")
    ht_group_addr(a)
    a("v_and_b32 v5, 7, v1")
    a("v_lshlrev_b32 v5, 1, v5")
    a("v_mov_b32 v6, 0")
    K3ST = 'k3st' in os.environ.get('GOPT', '').split(',')
    def st(i):
        if K3ST:
            a(f"s_memrealtime s[{60+2*i}:{61+2*i}]")
    a("s_waitcnt lgkmcnt(0)")
    st(0)
    srd(a, 8, 6, 7, WS_G)
    for i in range(3):
        a(f"s_add_u32 s29, s28, {i*192*(8192 if HTP else 4096)}")
        a(f"buffer_load_dwordx4 v[{10+4*i}:{13+4*i}], v4, s[8:11], s29 offen")
    a("buffer_load_dwordx4 v[22:25], v6, s[8:11], s28 offen")
    a("buffer_load_ushort v26, v5, s[8:11], s28 offen")
    a("v_lshrrev_b32 v7, 4, v0")
    a("v_cmp_le_u32 vcc, 6, v7")
    a("v_cndmask_b32 v8, 0, 1, vcc")
    a("v_mul_u32_u24 v9, 6, v8")
    a("v_sub_u32 v7, v7, v9")
    a("v_cmp_le_u32 vcc, 3, v7")
    a("v_addc_co_u32 v7, vcc, 0, v7, vcc")
    a(f"v_mul_u32_u24 v8, {2*ABLK}, v8")
    a("v_lshl_add_u32 v8, v7, 7, v8")
    a("v_and_b32 v7, 7, v0")
    a("v_lshl_add_u32 v8, v7, 4, v8")
    a("v_bfe_u32 v7, v0, 3, 1")
    a("v_lshl_add_u32 v8, v7, 10, v8")
    a("s_lshr_b32 s30, s3, 3")
    a(f"s_mul_i32 s30, s30, {12*ABLK}")
    a("s_bfe_u32 s31, s3, 0x10002")
    a(f"s_mul_i32 s31, s31, {ABLK}")
    a("s_add_u32 s30, s30, s31")
    a("s_and_b32 s31, s3, 3")
    a("s_lshl_b32 s31, s31, 11")
    a("s_add_u32 s30, s30, s31")
    a(f"s_add_u32 s30, s30, {WS_HN}")
    a(f"s_mov_b32 s26, {fhex(1.0/576)}")
    a("v_lshrrev_b32 v9, 4, v0")
    a("v_lshlrev_b32 v9, 6, v9")
    a("v_and_b32 v27, 15, v1")
    a("v_lshlrev_b32 v27, 2, v27")
    a("s_waitcnt vmcnt(0)")
    st(1)
    if IT[3]:
        a("v_lshrrev_b32 v28, 6, v0")
        a("v_readfirstlane_b32 s71, v28")
        a("s_mul_i32 s70, s2, 3")
        a("s_add_u32 s71, s71, s70")
        inline_touch(a, 3, 71, 768, 1, 28, 29)
    X = 32
    for i in range(4):
        for k in range(4):
            a(f"v_lshlrev_b32 v{X+8*i+2*k}, 16, v{10+4*i+k}")
            a(f"v_and_b32 v{X+8*i+2*k+1}, 0xffff0000, v{10+4*i+k}")
    a("v_lshlrev_b32 v26, 16, v26")
    S = 64
    for i in range(3):
        for e in range(8):
            a(f"v_sub_f32 v{80+8*i+e}, v{X+8*i+e}, v{56+e}")
    for e in range(8):
        a(f"v_add_f32 v{S+e}, v{80+e}, v{88+e}")
        a(f"v_mul_f32 v{S+8+e}, v{80+e}, v{80+e}")
    for e in range(8):
        a(f"v_add_f32 v{S+e}, v{S+e}, v{96+e}")
        a(f"v_fmac_f32 v{S+8+e}, v{88+e}, v{88+e}")
    for e in range(8):
        a(f"v_fmac_f32 v{S+8+e}, v{96+e}, v{96+e}")
    for mode in ("quad_perm:[1,0,3,2]", "quad_perm:[2,3,0,1]", "row_half_mirror", "row_mirror"):
        for e in range(16):
            a(f"v_add_f32_dpp v{S+e}, v{S+e}, v{S+e} {mode} row_mask:0xf bank_mask:0xf")
    a("v_and_b32 v28, 15, v1")
    a("v_cmp_eq_u32 vcc, 0, v28")
    a("s_and_saveexec_b64 s[32:33], vcc")
    for k in range(4):
        a(f"ds_write_b128 v9, v[{S+4*k}:{S+4*k+3}] offset:{16*k}")
    a("s_mov_b64 exec, s[32:33]")
    a("s_waitcnt lgkmcnt(0)")
    a("s_barrier")
    st(2)
    for r in range(12):
        a(f"ds_read_b32 v{80+r}, v27 offset:{64*r}")
    a("s_waitcnt lgkmcnt(0)")
    for k in range(6): a(f"v_add_f32 v{80+k}, v{80+k}, v{86+k}")
    for k in range(3): a(f"v_add_f32 v{80+k}, v{80+k}, v{83+k}")
    a("v_add_f32 v80, v80, v81")
    a("v_add_f32 v80, v80, v82")
    a("v_mov_b32_dpp v81, v80 row_ror:8 row_mask:0xf bank_mask:0xf")
    a("v_and_b32 v28, 8, v1")
    a("v_cmp_eq_u32 vcc, 0, v28")
    a("v_cndmask_b32 v82, v81, v80, vcc")
    a("v_cndmask_b32 v83, v80, v81, vcc")
    a("v_mul_f32 v82, s26, v82")
    a("v_mul_f32 v83, s26, v83")
    a("v_fma_f32 v83, -v82, v82, v83")
    a("v_max_f32 v83, 0, v83")
    a("v_add_f32 v82, v82, v26")
    bf16_round(a, 82, 82)
    bf16_round(a, 83, 83)
    a(f"v_add_f32 v83, {fhex(1e-5)}, v83")
    bf16_round(a, 83, 83)
    a("v_sqrt_f32 v83, v83")
    bf16_round(a, 83, 83)
    a("v_rcp_f32 v83, v83")
    for e in range(8):
        a(f"v_readlane_b32 s{40+e}, v82, {e}")
        a(f"v_readlane_b32 s{48+e}, v83, {e}")
    for i in range(3):
        for k in range(4):
            x0 = X + 8*i + 2*k; x1 = x0 + 1
            a(f"v_subrev_f32 v{x0}, s{40+2*k}, v{x0}")
            a(f"v_subrev_f32 v{x1}, s{41+2*k}, v{x1}")
            a(f"v_cvt_pk_bf16_f32 v{84+k}, v{x0}, v{x1}")
        for k in range(4):
            x0 = X + 8*i + 2*k; x1 = x0 + 1
            a(f"v_lshlrev_b32 v{x0}, 16, v{84+k}")
            a(f"v_and_b32 v{x1}, 0xffff0000, v{84+k}")
        for k in range(4):
            x0 = X + 8*i + 2*k; x1 = x0 + 1
            a(f"v_mul_f32 v{x0}, s{48+2*k}, v{x0}")
            a(f"v_mul_f32 v{x1}, s{49+2*k}, v{x1}")
            a(f"v_cvt_pk_bf16_f32 v{10+4*i+k}, v{x0}, v{x1}")
        a(f"s_add_u32 s31, s30, {i*2*2*ABLK}")
        a(f"buffer_store_dwordx4 v[{10+4*i}:{13+4*i}], v8, s[8:11], s31 offen" + (" sc1" if i < int(([o[5:] for o in os.environ.get('GOPT', '').split(',') if o.startswith('hsc1=')] or ['0'])[0]) else ""))
    if K3ST:
        st(3)
        a("s_waitcnt vmcnt(0)")
        st(4)
        a("s_waitcnt lgkmcnt(0)")
        srd(a, 8, 6, 7, 0x4000000)
        for i in range(5): a(f"v_mov_b32 v{10+i}, s{60+2*i}")
        a("v_mov_b32 v15, s94")
        a("v_mov_b32 v16, 0"); a("v_mov_b32 v17, 0")
        a("s_lshl_b32 s31, s2, 5")
        a("s_add_u32 s31, s31, 0x2800000")
        a("v_mov_b32 v6, 0")
        a("s_mov_b64 exec, 1")
        a("v_readfirstlane_b32 s32, v0")
        a("s_cmp_lg_u32 s32, 0")
        a("s_cbranch_scc1 K3_END")
        a("buffer_store_dwordx4 v[10:13], v6, s[8:11], s31 offen")
        a("buffer_store_dwordx4 v[14:17], v6, s[8:11], s31 offen offset:16")
    a("s_branch K3_END")
    a.label("K3_PF")
    gen_prefetch(a, 3, K3_NWG, "K3_END")
    a.label("K3_END")
    kst_end(a, 2, K3_NWG + PF[3].nwg)
    a("s_endpgm")
    return name, 104, 1088
```

```python
from gen import *
import os
OPT = os.environ.get('GOPT', '').split(',')
def opt_int(name, default):
    for o in OPT:
        if o.startswith(name + '='): return int(o.split('=')[1])
    return default
WS_W2D = 0x4000000
W2D_PITCH = 2048
WS_FL = 0x4900000
WS_XB = 0x4A00000
WS_END3 = WS_XB + 64 * 16 * 18 * 2048
SK = opt_int('sk', 4)
MF = 9 if SK == 4 else 6
NMT = 36 // MF
NSTG = 72 // SK
K5S_NWG = NMT * 16 * SK
S_NS = opt_int('s5ns', 4)
S_W = 16384
S_A = 2 * MF * 1024
S_ACT0 = S_NS * S_W
K5S_LDS = S_ACT0 + S_NS * S_A
NT_ = 2 * MF
NKEEP = -(-NT_ // SK)

def gen_k5s(a):
    name = "k5_kernel"
    NS = S_NS
    kernel_head(a, name)
    kst_begin(a)
    CLK = 'clk' in OPT
    NG = K5S_NWG + PF[5].nwg
    a(f"s_cmp_ge_u32 s2, {NG}")
    a("s_cbranch_scc1 K5_END")
    if PF[5].nwg:
        a(f"s_cmp_ge_u32 s2, {K5S_NWG}")
        a("s_cbranch_scc1 K5_PREF")
    a("s_load_dwordx2 s[6:7], s[0:1], 112")
    a("s_load_dwordx4 s[16:19], s[0:1], 80")
    a("s_load_dwordx2 s[20:21], s[0:1], 96")
    a("v_lshrrev_b32 v2, 6, v0")
    a("v_readfirstlane_b32 s27, v2")
    a("v_and_b32 v1, 63, v0")
    a("v_lshrrev_b32 v3, 4, v1")
    a("s_and_b32 s22, s2, 7")
    a("s_lshr_b32 s23, s2, 3")
    if SK == 4:
        a("s_lshr_b32 s24, s22, 1")
        a("s_and_b32 s25, s22, 1")
        a("s_and_b32 s5, s23, 3")
        a("s_lshr_b32 s4, s23, 2")
        a("s_lshl_b32 s26, s25, 3")
        a("s_add_u32 s4, s4, s26")
    else:
        a("s_lshr_b32 s24, s22, 2")
        a("s_and_b32 s25, s22, 3")
        a("s_mul_i32 s4, s23, 43")
        a("s_lshr_b32 s4, s4, 8")
        a("s_mul_i32 s5, s4, 6")
        a("s_sub_u32 s5, s23, s5")
        a("s_lshl_b32 s26, s25, 2")
        a("s_add_u32 s4, s4, s26")
    a(f"s_mul_i32 s3, s4, {NMT}")
    a("s_add_u32 s3, s3, s5")
    a("s_waitcnt lgkmcnt(0)")
    srd(a, 12, 6, 7, WS_END3)
    a("s_cmp_ge_u32 s27, 4")
    a("s_cbranch_scc1 K5_PROD")

    a("v_bfe_u32 v8, v1, 2, 2")
    a("v_and_b32 v9, 3, v1")
    a("v_and_b32 v10, 1, v3")
    a("v_lshl_add_u32 v10, v10, 2, v8")
    a("v_lshl_add_u32 v11, v3, 2, v8")
    a("s_lshl_b32 s30, s27, 1")
    a("v_xor_b32 v10, s30, v10")
    a("v_lshlrev_b32 v11, 8, v11")
    a("v_lshl_add_u32 v11, v9, 3, v11")
    a("v_lshl_add_u32 v4, v10, 5, v11")
    a("v_xor_b32 v10, 1, v10")
    a("v_lshl_add_u32 v5, v10, 5, v11")
    a("v_lshlrev_b32 v8, 4, v1")
    a(f"v_add_u32 v8, {S_ACT0}, v8")
    a(f"v_add_u32 v9, {2*S_A}, v8")
    if NS > 4: a(f"v_add_u32 v6, {4*S_A}, v8")
    if NS > 4: a(f"v_add_u32 v7, {65536}, v4"); a(f"v_add_u32 v15, {65536}, v5")
    SZ = 4 * MF + 8
    SET = [32, 32 + SZ]
    ACC = 32 + 2 * SZ
    HV = ACC + 4 * NT_
    BV = HV + 4 * NKEEP
    for r in range(4 * NT_): a(f"v_mov_b32 v{ACC+r}, 0")
    def reads(n):
        sg, kb = divmod(n, 2)
        sl = sg % NS
        b = SET[n % 2]
        va = (8, 9, 6)[sl // 2]
        vw = (4, 5) if sl < 4 else (7, 15)
        wo = (sl % 4) * S_W
        def wr(jj): return [(f"ds_read_b64_tr_b16 v[{b+4*MF+4*jj+2*h}:{b+4*MF+4*jj+2*h+1}], v{vw[jj]} offset:{wo + kb*8192 + h*4096}", ('w', jj, h)) for h in range(2)]
        def ar(dd): return [(f"ds_read_b128 v[{b+4*dd}:{b+4*dd+3}], v{va} offset:{(sl%2)*S_A + (kb*MF + dd)*1024}", ('a', dd))]
        out = wr(0) + ar(0) + wr(1) + ar(1)
        for dd in range(2, MF): out += ar(dd)
        return out
    NRD = MF + 4
    NPRE = opt_int('npre5', 4 if SK == 4 else 2)
    class Q: pass
    q = Q(); q.issued = 0; q.done = 0; q.pos = {}
    def rd_issue(n, item):
        a(item[0]); q.pos[(n % 2, item[1])] = q.issued; q.issued += 1
    def need(keys):
        p = max(q.pos[k] for k in keys)
        if p >= q.done:
            a(f"s_waitcnt lgkmcnt({min(15, q.issued - 1 - p)})")
            q.done = p + 1 if q.issued - 1 - p <= 15 else q.issued - 15
    def half(n):
        b = SET[n % 2]
        nxt = reads(n + 1) if n + 1 < 2 * NSTG else []
        odd = n % 2 == 1
        k = 0
        for dd in range(MF):
            for jj in range(2):
                if odd and k == NPRE and nxt:
                    a("s_waitcnt lgkmcnt(0)"); q.done = q.issued
                    a("s_barrier")
                need([(n % 2, ('a', dd)), (n % 2, ('w', jj, 0)), (n % 2, ('w', jj, 1))])
                acc = ACC + 4 * (2 * dd + jj)
                a(f"v_mfma_f32_16x16x32_bf16 v[{acc}:{acc+3}], v[{b+4*dd}:{b+4*dd+3}], v[{b+4*MF+4*jj}:{b+4*MF+4*jj+3}], v[{acc}:{acc+3}]")
                if nxt and (not odd or k >= NPRE):
                    rd_issue(n + 1, nxt.pop(0))
                    left = 2 * MF - 1 - k
                    while len(nxt) > left: rd_issue(n + 1, nxt.pop(0))
                k += 1
        for it in nxt: rd_issue(n + 1, it)
    a("s_barrier")
    if CLK:
        a("s_memtime s[64:65]"); a("s_memrealtime s[66:67]")
        a("s_waitcnt lgkmcnt(0)")
    for it in reads(0): rd_issue(0, it)
    a("v_and_b32 v10, 15, v1")
    a("v_lshlrev_b32 v10, 1, v10")
    HP = 8192 if HTP else 4096
    a(f"v_lshl_add_u32 v11, v3, {15 if HTP else 14}, v10")
    a("s_lshl_b32 s30, s4, 7")
    a("s_lshl_b32 s31, s27, 5")
    a("s_add_u32 s30, s30, s31")
    a("s_and_b32 s31, s24, 1")
    a("s_lshl_b32 s31, s31, 4")
    a("s_add_u32 s30, s30, s31")
    a("s_mov_b32 s38, s30")
    a("s_lshl_b32 s30, s30, 1")
    srd(a, 16, 18, 19, 2048 * 2)
    a(f"buffer_load_ushort v{BV}, v10, s[16:19], s30 offen")
    a(f"s_mul_i32 s31, s5, {16*MF}")
    a("s_lshr_b32 s33, s24, 1")
    a("s_lshl_b32 s33, s33, 4")
    a("s_add_u32 s31, s31, s33")
    a("s_mov_b32 s39, s31")
    a(f"s_lshl_b32 s31, s31, {13 if HTP else 12}")
    if HTP:
        a("s_lshr_b32 s33, s30, 9")
        a("s_lshl_b32 s33, s33, 10")
        a("s_and_b32 s30, s30, 511")
        a("s_add_u32 s30, s30, s33")
    a("s_add_u32 s30, s30, s31")
    a(f"s_add_u32 s30, s30, {WS_HTP + 512 if HTP else WS_HT}")
    for i in range(NKEEP):
        for r in range(4):
            a(f"buffer_load_ushort v{HV+4*i+r}, v11, s[12:15], s30 offen")
            if r < 3: a(f"s_add_u32 s30, s30, {HP}")
        if i < NKEEP - 1: a(f"s_add_u32 s30, s30, {(8*SK - 3)*HP}")
    nl = (NSTG - 1) // NS
    if NS % 2 == 0 or True:
        a(f"s_movk_i32 s31, {nl}")
        a.label("K5_CLOOP")
        q.done = q.issued - NRD
        for n in range(2 * NS): half(n)
        a("s_sub_u32 s31, s31, 1")
        a("s_cmp_lg_u32 s31, 0")
        a("s_cbranch_scc1 K5_CLOOP")
        q.done = q.issued - NRD
        for n in range(2 * NS * nl, 2 * NSTG): half(n)
    a("s_waitcnt vmcnt(0)")
    if CLK:
        a("s_memtime s[68:69]"); a("s_memrealtime s[70:71]")
        a("s_waitcnt lgkmcnt(0)")
        a("s_sub_u32 s68, s68, s64")
        a("s_sub_u32 s70, s70, s66")
        a("v_mov_b32 v24, s68"); a("v_mov_b32 v25, s70"); a("v_mov_b32 v26, s66"); a("v_mov_b32 v27, 0")
        a("s_lshl_b32 s72, s2, 6")
        a("s_lshl_b32 s73, s27, 4")
        a("s_add_u32 s72, s72, s73")
        a(f"s_add_u32 s72, s72, {0x2900000 + 0x10000}")
        a("v_mov_b32 v28, 0")
        a("buffer_store_dwordx4 v[24:27], v28, s[12:15], s72 offen")

    a("v_lshrrev_b32 v10, 3, v1")
    a("v_cmp_le_u32 vcc, 3, v10")
    a("v_addc_co_u32 v10, vcc, 0, v10, vcc")
    a("v_and_b32 v11, 7, v1")
    a("v_lshlrev_b32 v11, 4, v11")
    a("v_lshl_add_u32 v10, v10, 7, v11")
    a(f"s_mul_i32 s30, s3, {4*SK}")
    a("s_add_u32 s30, s30, s27")
    a("s_lshl_b32 s34, s30, 7")
    a(f"s_add_u32 s34, s34, {WS_FL}")
    a(f"s_mul_i32 s30, s30, {NT_*2048}")
    a(f"s_add_u32 s30, s30, {WS_XB}")
    SRCS = 4 * NT_ * 2048
    srd(a, 16, 20, 21, 2048 * 576 * 2)
    a("v_and_b32 v9, 15, v1")
    a("v_lshlrev_b32 v12, 9, v9")
    a("v_mul_u32_u24 v9, 1152, v9")
    a("v_lshl_add_u32 v9, v3, 3, v9")
    a("s_mul_i32 s38, s38, 1152")
    a("s_lshl_b32 s39, s39, 1")
    a("s_add_u32 s38, s38, s39")
    a(f"v_lshlrev_b32 v{BV}, 16, v{BV}")
    NOX = 'nox' in OPT
    XST = 'xst' in OPT
    def xst(i):
        if XST: a(f"s_memrealtime s[{40+2*i}:{41+2*i}]")
    xst(0)
    for kq in range(SK):
        if kq < SK - 1:
            a(f"s_cmp_lg_u32 s24, {kq}")
            a(f"s_cbranch_scc1 K5_X{kq+1}")
        keep = [t for t in range(NT_) if t % SK == kq]
        send = [t for t in range(NT_) if t % SK != kq]
        a(f"s_add_u32 s31, s30, {kq*SRCS}")
        prev = 0
        for t in send:
            while (t - prev) >= 2:
                a(f"s_add_u32 s31, s31, {2*2048}"); prev += 2
            acc = ACC + 4 * t
            if not NOX: a(f"buffer_store_dwordx4 v[{acc}:{acc+3}], v10, s[12:15], s31 offen offset:{(t-prev)*2048} sc1")
        xst(1)
        a("s_waitcnt vmcnt(0)")
        xst(2)
        a("v_mov_b32 v13, 1")
        a("v_mov_b32 v14, 0")
        a(f"s_add_u32 s31, s34, {kq*512}")
        a("s_mov_b64 exec, 1")
        a("buffer_store_dword v13, v14, s[12:15], s31 offen sc1")
        a(f"s_mov_b64 exec, {(1 << SK) - 1}")
        needm = ((1 << SK) - 1) & ~(1 << kq)
        a("s_mov_b32 s36, 0x100000")
        a.label(f"K5_P{kq}")
        a("s_sub_u32 s36, s36, 1")
        a("s_cmp_eq_u32 s36, 0")
        a(f"s_cbranch_scc1 K5_G{kq}")
        a("buffer_load_dword v13, v12, s[12:15], s34 offen sc1")
        a("s_waitcnt vmcnt(0)")
        a("v_cmp_ne_u32 vcc, 0, v13")
        a(f"s_and_b32 s35, vcc_lo, {needm}")
        a(f"s_cmp_eq_u32 s35, {needm}")
        a(f"s_cbranch_scc1 K5_G{kq}")
        a("s_sleep 1")
        a(f"s_branch K5_P{kq}")
        a.label(f"K5_G{kq}")
        a("s_mov_b64 exec, -1")
        xst(3)
        srcs = [s_ for s_ in range(SK) if s_ != kq]
        NSRC = SK - 1
        for i, t in enumerate(keep):
            for k, s_ in enumerate(srcs):
                off = s_ * SRCS + t * 2048
                r = 32 + 4 * (NSRC * i + k)
                a(f"s_add_u32 s31, s30, {off}")
                a(f"buffer_load_dwordx4 v[{r}:{r+3}], v10, s[12:15], s31 offen sc1")
        nk = len(keep)
        for i, t in enumerate(keep):
            acc = ACC + 4 * t
            a(f"s_waitcnt vmcnt({NSRC*(nk-1-i) + i})")
            if i == 0: xst(4)
            if i == nk - 1: xst(5)
            for k in range(NSRC):
                r = 32 + 4 * (NSRC * i + k)
                a(f"v_pk_add_f32 v[{acc}:{acc+1}], v[{acc}:{acc+1}], v[{r}:{r+1}]")
                a(f"v_pk_add_f32 v[{acc+2}:{acc+3}], v[{acc+2}:{acc+3}], v[{r+2}:{r+3}]")
            O = 24 + 2 * (i % 2)
            for p in range(2):
                x = 16 + 4 * p
                a(f"v_cvt_pk_bf16_f32 v{x+2}, v{acc+2*p}, v{acc+2*p+1}")
                a(f"v_lshlrev_b32 v{x}, 16, v{x+2}")
                a(f"v_and_b32 v{x+1}, 0xffff0000, v{x+2}")
                a(f"v_add_f32 v{x}, v{x}, v{BV}")
                a(f"v_add_f32 v{x+1}, v{x+1}, v{BV}")
                a(f"v_cvt_pk_bf16_f32 v{x+2}, v{x}, v{x+1}")
                a(f"v_lshlrev_b32 v{x}, 16, v{x+2}")
                a(f"v_and_b32 v{x+1}, 0xffff0000, v{x+2}")
                a(f"v_lshlrev_b32 v{x+2}, 16, v{HV+4*i+2*p}")
                a(f"v_lshlrev_b32 v{x+3}, 16, v{HV+4*i+2*p+1}")
                a(f"v_add_f32 v{x}, v{x}, v{x+2}")
                a(f"v_add_f32 v{x+1}, v{x+1}, v{x+3}")
                a(f"v_cvt_pk_bf16_f32 v{O+p}, v{x}, v{x+1}")
            a(f"buffer_store_dwordx2 v[{O}:{O+1}], v9, s[16:19], s38 offen offset:{16*SK*i}")
        if XST:
            a("s_waitcnt vmcnt(0)")
            xst(6)
            a("s_waitcnt lgkmcnt(0)")
            for i in range(7): a(f"v_mov_b32 v{32+i}, s{40+2*i}")
            a(f"v_mov_b32 v39, s36")
            a("s_lshl_b32 s72, s2, 2")
            a("s_add_u32 s72, s72, s27")
            a("s_lshl_b32 s72, s72, 5")
            a(f"s_add_u32 s72, s72, {0x2800000}")
            a("v_mov_b32 v28, 0")
            a("s_mov_b64 exec, 1")
            a("buffer_store_dwordx4 v[32:35], v28, s[12:15], s72 offen")
            a("buffer_store_dwordx4 v[36:39], v28, s[12:15], s72 offen offset:16")
            a("s_mov_b64 exec, -1")
        a("s_branch K5_END")
        if kq < SK - 1: a.label(f"K5_X{kq+1}")

    a.label("K5_PROD")
    a("s_sub_u32 s28, s27, 4")
    srd(a, 8, 16, 17, 4608 * 4096)
    a("s_movk_i32 s30, 4096")
    a("s_lshl_b32 s32, s4, 8")
    if 'nocopy5' not in OPT:
        a("s_and_b32 s31, s4, 3")
        a("s_cmp_lg_u32 s31, 1")
        a("s_cbranch_scc1 K5_NOCP")
        a(f"s_movk_i32 s30, {W2D_PITCH}")
        a("s_lshr_b32 s32, s4, 2")
        a("s_lshl_b32 s32, s32, 9")
        a(f"s_add_u32 s32, s32, {WS_W2D}")
        srd(a, 8, 6, 7, WS_END3)
        a.label("K5_NOCP")
    a("s_lshl_b32 s57, s30, 6")
    a(f"s_mul_i32 s58, s24, {NSTG}")
    a("s_mul_i32 s59, s25, 9")
    a("s_add_u32 s58, s58, s59")
    a("s_mul_i32 s60, s58, s57")
    a("s_add_u32 s32, s32, s60")
    a(f"s_mul_i32 s33, s58, {12*ABLK}")
    a(f"s_add_u32 s33, s33, {WS_G - 4096}")
    a(f"s_sub_u32 s58, {NSTG}, s59")
    a(f"s_mul_i32 s63, s57, {NSTG}")
    a("v_and_b32 v4, 15, v1")
    a("v_lshrrev_b32 v5, 1, v4")
    a("v_and_b32 v4, 1, v4")
    a("s_lshl_b32 s29, s28, 4")
    a("v_add_u32 v6, s29, v3")
    a("v_mul_lo_u32 v6, v6, s30")
    a("v_lshl_add_u32 v6, v4, 4, v6")
    for qq in range(4):
        a(f"v_or_b32 v7, {(qq & 1) << 2}, v3")
        a("v_xor_b32 v7, v7, v5")
        a(f"v_lshl_add_u32 v{10+qq}, v7, 5, v6")
        if qq:
            a(f"s_mul_i32 s31, s30, {4*qq}")
            a(f"s_sub_u32 s31, s31, {1024*qq}")
            a(f"v_add_u32 v{10+qq}, s31, v{10+qq}")
    a("v_lshrrev_b32 v16, 3, v1")
    a("v_lshlrev_b32 v16, 10, v16")
    a("v_and_b32 v17, 7, v1")
    a("v_lshl_add_u32 v16, v17, 4, v16")
    if SK == 4:
        a("s_mul_i32 s34, s28, 5")
        a("s_lshl_b32 s35, s28, 2")
        a("s_add_u32 s35, s35, 2")
        a("s_cmp_lt_u32 s28, 2")
        a("s_cselect_b32 s34, s34, s35")
        NAP = 5
    else:
        a("s_mul_i32 s34, s28, 3")
        NAP = 3
    a(f"s_mul_i32 s61, s5, {MF}")
    for i in range(NAP):
        a(f"s_add_u32 s35, s34, {i}")
        a(f"s_cmp_ge_u32 s35, {MF}")
        a("s_cselect_b32 s36, 1, 0")
        a(f"s_mul_i32 s37, s36, {MF}")
        a("s_sub_u32 s35, s35, s37")
        a("s_add_u32 s35, s35, s61")
        a("s_mul_i32 s37, s35, 43")
        a("s_lshr_b32 s37, s37, 8")
        a("s_mul_i32 s62, s37, 6")
        a("s_sub_u32 s35, s35, s62")
        a("s_cmp_ge_u32 s35, 3")
        a("s_addc_u32 s35, s35, 0")
        a("s_lshl_b32 s35, s35, 7")
        a("s_lshl_b32 s37, s37, 1")
        a("s_add_u32 s37, s37, s36")
        a(f"s_lshl_b32 s37, s37, 13")
        a("s_add_u32 s35, s35, s37")
        a(f"s_add_u32 s35, s35, {4096 - 1024*(i % 4)}")
        a(f"v_add_u32 v{17+i}, s35, v16")
    for s_ in range(NS):
        a("s_lshl_b32 s30, s28, 12")
        a(f"s_add_u32 s{40+s_}, s30, {s_*S_W}")
        a("s_lshl_b32 s30, s34, 10")
        a(f"s_add_u32 s{46+s_}, s30, {S_ACT0 + s_*S_A}")
        a(f"s_add_u32 s{66+s_}, s{46+s_}, 4096")
    def issue(k, na):
        sl = k % NS
        a(f"s_mov_b32 m0, s{40+sl}")
        for qq in range(4): a(f"buffer_load_dwordx4 v{10+qq}, s[8:11], s32 offen offset:{1024*qq} lds")
        a(f"s_mov_b32 m0, s{46+sl}")
        for i in range(min(na, 4)): a(f"buffer_load_dwordx4 v{17+i}, s[12:15], s33 offen offset:{1024*i} lds")
        if na == 5:
            a(f"s_mov_b32 m0, s{66+sl}")
            a("buffer_load_dwordx4 v21, s[12:15], s33 offen lds")
        a("s_add_u32 s32, s32, s57")
        a(f"s_add_u32 s33, s33, {12*ABLK}")
        a("s_sub_u32 s58, s58, 1")
        a("s_cmp_eq_u32 s58, 0")
        a("s_cselect_b32 s59, s63, 0")
        a(f"s_cselect_b32 s64, {NSTG*12*ABLK}, 0")
        a("s_sub_u32 s32, s32, s59")
        a("s_sub_u32 s33, s33, s64")
    EB = opt_int('eb5', 2)
    variants = (5, 4) if SK == 4 else (3,)
    if SK == 4:
        a("s_cmp_ge_u32 s28, 2")
        a("s_cbranch_scc1 K5_PR4")
    for na in variants:
        PPS = 4 + na
        for k in range(EB): issue(k, na)
        a(f"s_waitcnt vmcnt({(EB-1)*PPS})")
        a("s_barrier")
        for k in range(EB, NS): issue(k, na)
        for k in range(1, NSTG):
            a(f"s_waitcnt vmcnt({(min(k + NS - 2, NSTG - 1) - k) * PPS})")
            a("s_barrier")
            if k + NS - 1 < NSTG: issue(k + NS - 1, na)
        a("s_branch K5_END")
        if na == 5: a.label("K5_PR4")
    if PF[5].nwg:
        a.label("K5_PREF")
        gen_prefetch(a, 5, K5S_NWG, "K5_END")
    a.label("K5_END")
    kst_end(a, 4, NG)
    a("s_endpgm")
    return name, BV + 4, K5S_LDS
```

```python
from gen import *
from gen_k2 import *
from gen_gemm import *
from gen_k12 import *
from gen_k12b import *
from gen_k12c import *
from gen_k5s import *
def main():
    import sys
    if 'fuse4' in os.environ.get('GOPT', '').split(','):
        launches = [("k1_kernel", 256, 768, K12C_LDS),
                    ("k4_kernel", GC(1).NWG + PF[4].nwg, 512, GC(1).LDS), ("k5_kernel", K5S_NWG + PF[5].nwg, 512, K5S_LDS)]
        txt = build([gen_k12c, gen_k4, gen_k5s], launches)
    elif 'k5s' in os.environ.get('GOPT', '').split(','):
        launches = [("k1_kernel", 256, 768, K12C_LDS), ("k3_kernel", K3_NWG + PF[3].nwg, 192, 1088),
                    ("k4_kernel", GC(1).NWG + PF[4].nwg, 512, GC(1).LDS), ("k5_kernel", K5S_NWG + PF[5].nwg, 512, K5S_LDS)]
        txt = build([gen_k12c, gen_k3, gen_k4, gen_k5s], launches)
    elif 'fuse3' in os.environ.get('GOPT', '').split(','):
        launches = [("k1_kernel", 256, 768, K12C_LDS), ("k3_kernel", K3_NWG + PF[3].nwg, 192, 1088),
                    ("k4_kernel", GC(1).NWG + PF[4].nwg, 512, GC(1).LDS), ("k5_kernel", GC(2).NWG + PF[5].nwg, 512, GC(2).LDS)]
        txt = build([gen_k12c, gen_k3, gen_k4, gen_k5], launches)
    elif 'fuse2' in os.environ.get('GOPT', '').split(','):
        launches = [("k1_kernel", 256, 768, K12B_LDS), ("k3_kernel", K3_NWG + PF[3].nwg, 192, 1088),
                    ("k4_kernel", GC(1).NWG + PF[4].nwg, 512, GC(1).LDS), ("k5_kernel", GC(2).NWG + PF[5].nwg, 512, GC(2).LDS)]
        txt = build([gen_k12b, gen_k3, gen_k4, gen_k5], launches)
    elif 'fuse' in os.environ.get('GOPT', '').split(','):
        launches = [("k1_kernel", 640 + PF[1].nwg, 256, K12_LDS), ("k3_kernel", K3_NWG + PF[3].nwg, 192, 1088),
                    ("k4_kernel", GC(1).NWG + PF[4].nwg, 512, GC(1).LDS), ("k5_kernel", GC(2).NWG + PF[5].nwg, 512, GC(2).LDS)]
        txt = build([gen_k12, gen_k3, gen_k4, gen_k5], launches)
    else:
        launches = [("k1_kernel", 640 + PF[1].nwg, 256, 38912), ("k2_kernel", 576 + PF[2].nwg, 256, 33280+512+4096), ("k3_kernel", K3_NWG + PF[3].nwg, 192, 1088),
                    ("k4_kernel", GC(1).NWG + PF[4].nwg, 512, GC(1).LDS), ("k5_kernel", GC(2).NWG + PF[5].nwg, 512, GC(2).LDS)]
        txt = build([gen_k1, gen_k2, gen_k3, gen_k4, gen_k5], launches)
    open('test.s', 'w').write(txt)
```

```python
from gen import *
from gen_k12b import cmul
from gen_k2 import ht_group_addr
OPTS = os.environ.get('GOPT', '').split(',')
C_CS = 4160
C_PART = 4 * C_CS
C_UPAD = C_PART + 24576
C_UOFF = C_UPAD + 512
C_KC = C_UOFF + 4096
C_LDS = C_KC + 3072 + 64
K12C_LDS = 3 * C_LDS
C_TT = 8 * 1088
WS_ST = WS_UT
STP = 'stp' in OPTS
WS_RC = 0x240000
RC_N = int(([o[3:] for o in OPTS if o.startswith('rc=')] or ['32'])[0])
RC_STRIDE = 4352

def ln2_tail(a, st):
    opt_sleep = int(([o[4:] for o in OPTS if o.startswith('psl=')] or ['4'])[0])
    a("s_barrier")
    a("s_mul_i32 s36, s59, 171")
    a("s_lshr_b32 s36, s36, 9")
    a("s_sub_u32 s37, s2, 64")
    a("s_lshr_b32 s38, s37, 3")
    a("s_and_b32 s37, s37, 7")
    a("v_mov_b32 v6, 0")
    a("s_cmp_lg_u32 s59, 0")
    a("s_cbranch_scc1 K1_F_NA")
    a("v_mov_b32 v7, 1")
    a(f"v_mul_u32_u24 v9, {RC_STRIDE}, v1")
    a(f"s_mov_b32 s39, {WS_RC}")
    a(f"s_mov_b32 exec_lo, {hex((1 << RC_N) - 1)}")
    a("s_mov_b32 exec_hi, 0")
    a("buffer_atomic_add v7, v9, s[12:15], s39 offen sc1")
    a("s_mov_b64 exec, -1")
    a("s_sub_u32 s35, s2, 64")
    a(f"s_and_b32 s35, s35, {RC_N - 1}")
    a(f"s_mul_i32 s35, s35, {RC_STRIDE}")
    a(f"s_add_u32 s35, s35, {WS_RC}")
    a.label("K1_F_NA")
    a("s_cmp_ge_u32 s36, 2")
    a("s_cbranch_scc1 K1_F_PF")
    a("s_cmp_eq_u32 s36, 0")
    a("s_cbranch_scc1 K1_F_ACT")
    a("s_cmp_ge_u32 s38, 8")
    a("s_cbranch_scc1 K1_F_IDLE")
    a("s_add_u32 s38, s38, 24")
    a.label("K1_F_ACT")
    a("s_lshl_b32 s3, s37, 5")
    a("s_add_u32 s3, s3, s38")
    a("s_mul_i32 s39, s36, 3")
    a("s_sub_u32 s39, s59, s39")
    a("s_lshl_b32 s39, s39, 6")
    a("v_add_u32 v0, s39, v1")
    a("s_lshl_b32 s39, s36, 10")
    ht_group_addr(a)
    a("v_and_b32 v5, 7, v1")
    a("v_lshlrev_b32 v5, 1, v5")
    srd(a, 8, 6, 7, WS_G)
    a("s_mov_b32 s36, 0x40000")
    a("v_lshrrev_b32 v7, 4, v0")
    a("v_cmp_le_u32 vcc, 6, v7")
    a("v_cndmask_b32 v8, 0, 1, vcc")
    a("v_mul_u32_u24 v27, 6, v8")
    a("v_sub_u32 v7, v7, v27")
    a("v_cmp_le_u32 vcc, 3, v7")
    a("v_addc_co_u32 v7, vcc, 0, v7, vcc")
    a(f"v_mul_u32_u24 v8, {2*ABLK}, v8")
    a("v_lshl_add_u32 v8, v7, 7, v8")
    a("v_and_b32 v7, 7, v0")
    a("v_lshl_add_u32 v8, v7, 4, v8")
    a("v_bfe_u32 v7, v0, 3, 1")
    a("v_lshl_add_u32 v8, v7, 10, v8")
    a("s_lshr_b32 s30, s3, 3")
    a(f"s_mul_i32 s30, s30, {12*ABLK}")
    a("s_bfe_u32 s31, s3, 0x10002")
    a(f"s_mul_i32 s31, s31, {ABLK}")
    a("s_add_u32 s30, s30, s31")
    a("s_and_b32 s31, s3, 3")
    a("s_lshl_b32 s31, s31, 11")
    a("s_add_u32 s30, s30, s31")
    a(f"s_add_u32 s30, s30, {WS_HN}")
    a(f"s_mov_b32 s26, {fhex(1.0/576)}")
    a("v_lshrrev_b32 v29, 4, v0")
    a("v_lshlrev_b32 v29, 6, v29")
    a("v_add_u32 v29, s39, v29")
    a("v_and_b32 v27, 15, v1")
    a("v_lshlrev_b32 v27, 2, v27")
    a("v_add_u32 v27, s39, v27")
    a("s_cmp_lg_u32 s59, 0")
    a("s_cbranch_scc1 K1_F_GO")
    NPP = int(([o[4:] for o in OPTS if o.startswith('npp=')] or ['1'])[0])
    if NPP > 1:
        a("s_mov_b64 exec, 1")
        for k in range(NPP):
            a(f"v_mov_b32 v{104+k}, 0")
            a(f"buffer_atomic_add v{104+k}, v6, s[12:15], s35 offen sc0 sc1")
            if k < NPP - 1: a(f"s_sleep {opt_sleep}")
        a.label("K1_F_POLL")
        for k in range(NPP):
            a(f"s_waitcnt vmcnt({NPP-1})")
            a(f"v_readfirstlane_b32 s37, v{104+k}")
            a("s_cmp_ge_u32 s37, 192")
            a("s_cbranch_scc1 K1_F_GO1")
            a(f"v_mov_b32 v{104+k}, 0")
            a(f"buffer_atomic_add v{104+k}, v6, s[12:15], s35 offen sc0 sc1")
        a("s_sub_u32 s36, s36, 1")
        a("s_cmp_lg_u32 s36, 0")
        a("s_cbranch_scc1 K1_F_POLL")
        a.label("K1_F_GO1")
        a("s_mov_b64 exec, -1")
    else:
        a.label("K1_F_POLL")
        a("s_mov_b64 exec, 1")
        if 'apoll' in OPTS:
            a("v_mov_b32 v9, 0")
            a("buffer_atomic_add v9, v6, s[12:15], s35 offen sc0 sc1")
        else:
            a("buffer_load_dword v9, v6, s[12:15], s35 offen sc1")
        a("s_mov_b64 exec, -1")
        a("s_waitcnt vmcnt(0)")
        a("v_readfirstlane_b32 s37, v9")
        a("s_cmp_ge_u32 s37, 192")
        a("s_cbranch_scc1 K1_F_GO")
        a("s_sub_u32 s36, s36, 1")
        a("s_cmp_eq_u32 s36, 0")
        a("s_cbranch_scc1 K1_F_GO")
        a(f"s_sleep {opt_sleep}")
        a("s_branch K1_F_POLL")
    a.label("K1_F_GO")
    a("s_barrier")
    if st: st(0)
    for i in range(3):
        a(f"s_add_u32 s29, s28, {i*192*(8192 if HTP else 4096)}")
        a(f"buffer_load_dwordx4 v[{10+4*i}:{13+4*i}], v4, s[8:11], s29 offen sc1")
    a("buffer_load_dwordx4 v[22:25], v6, s[8:11], s28 offen sc1")
    a("buffer_load_ushort v26, v5, s[8:11], s28 offen sc1")
    a("s_waitcnt vmcnt(0)")
    if st: st(1)
    X = 32
    for i in range(4):
        for k in range(4):
            a(f"v_lshlrev_b32 v{X+8*i+2*k}, 16, v{10+4*i+k}")
            a(f"v_and_b32 v{X+8*i+2*k+1}, 0xffff0000, v{10+4*i+k}")
    a("v_lshlrev_b32 v26, 16, v26")
    S = 64
    for i in range(3):
        for e in range(8):
            a(f"v_sub_f32 v{80+8*i+e}, v{X+8*i+e}, v{56+e}")
    for e in range(8):
        a(f"v_add_f32 v{S+e}, v{80+e}, v{88+e}")
        a(f"v_mul_f32 v{S+8+e}, v{80+e}, v{80+e}")
    for e in range(8):
        a(f"v_add_f32 v{S+e}, v{S+e}, v{96+e}")
        a(f"v_fmac_f32 v{S+8+e}, v{88+e}, v{88+e}")
    for e in range(8):
        a(f"v_fmac_f32 v{S+8+e}, v{96+e}, v{96+e}")
    for mode in ("quad_perm:[1,0,3,2]", "quad_perm:[2,3,0,1]", "row_half_mirror", "row_mirror"):
        for e in range(16):
            a(f"v_add_f32_dpp v{S+e}, v{S+e}, v{S+e} {mode} row_mask:0xf bank_mask:0xf")
    a("v_and_b32 v28, 15, v1")
    a("v_cmp_eq_u32 vcc, 0, v28")
    a("s_and_saveexec_b64 s[32:33], vcc")
    for k in range(4):
        a(f"ds_write_b128 v29, v[{S+4*k}:{S+4*k+3}] offset:{16*k}")
    a("s_mov_b64 exec, s[32:33]")
    a("s_waitcnt lgkmcnt(0)")
    a("s_barrier")
    if st: st(2)
    for r in range(12):
        a(f"ds_read_b32 v{80+r}, v27 offset:{64*r}")
    a("s_waitcnt lgkmcnt(0)")
    for k in range(6): a(f"v_add_f32 v{80+k}, v{80+k}, v{86+k}")
    for k in range(3): a(f"v_add_f32 v{80+k}, v{80+k}, v{83+k}")
    a("v_add_f32 v80, v80, v81")
    a("v_add_f32 v80, v80, v82")
    a("v_mov_b32_dpp v81, v80 row_ror:8 row_mask:0xf bank_mask:0xf")
    a("v_and_b32 v28, 8, v1")
    a("v_cmp_eq_u32 vcc, 0, v28")
    a("v_cndmask_b32 v82, v81, v80, vcc")
    a("v_cndmask_b32 v83, v80, v81, vcc")
    a("v_mul_f32 v82, s26, v82")
    a("v_mul_f32 v83, s26, v83")
    a("v_fma_f32 v83, -v82, v82, v83")
    a("v_max_f32 v83, 0, v83")
    a("v_add_f32 v82, v82, v26")
    bf16_round(a, 82, 82)
    bf16_round(a, 83, 83)
    a(f"v_add_f32 v83, {fhex(1e-5)}, v83")
    bf16_round(a, 83, 83)
    a("v_sqrt_f32 v83, v83")
    bf16_round(a, 83, 83)
    a("v_rcp_f32 v83, v83")
    for e in range(8):
        a(f"v_readlane_b32 s{40+e}, v82, {e}")
        a(f"v_readlane_b32 s{48+e}, v83, {e}")
    for i in range(3):
        for k in range(4):
            x0 = X + 8*i + 2*k; x1 = x0 + 1
            a(f"v_subrev_f32 v{x0}, s{40+2*k}, v{x0}")
            a(f"v_subrev_f32 v{x1}, s{41+2*k}, v{x1}")
            a(f"v_cvt_pk_bf16_f32 v{84+k}, v{x0}, v{x1}")
        for k in range(4):
            x0 = X + 8*i + 2*k; x1 = x0 + 1
            a(f"v_lshlrev_b32 v{x0}, 16, v{84+k}")
            a(f"v_and_b32 v{x1}, 0xffff0000, v{84+k}")
        for k in range(4):
            x0 = X + 8*i + 2*k; x1 = x0 + 1
            a(f"v_mul_f32 v{x0}, s{48+2*k}, v{x0}")
            a(f"v_mul_f32 v{x1}, s{49+2*k}, v{x1}")
            a(f"v_cvt_pk_bf16_f32 v{10+4*i+k}, v{x0}, v{x1}")
        a(f"s_add_u32 s31, s30, {i*2*2*ABLK}")
        a(f"buffer_store_dwordx4 v[{10+4*i}:{13+4*i}], v8, s[8:11], s31 offen")
    if st: st(3)
    a("s_branch K1_F_END")
    a.label("K1_F_PF")
    I8B = [o for o in OPTS if o.startswith('it8b=')]
    if I8B:
        r0, r1 = (int(x) for x in I8B[0][5:].split('.'))
        srd(a, 8, 84, 85, 2048 * 9216)
        t8_addr(a, 37, 1, 6, 7, 82, 83)
        a("s_mul_i32 s82, s38, 6")
        a("s_add_u32 s82, s82, s59")
        a("s_sub_u32 s82, s82, 6")
        a(f"s_mul_i32 s82, s82, {8*9216}")
        a(f"s_add_u32 s82, s82, {r0*9216}")
        n8 = -(-(r1 - r0) // (8 * 144))
        for i in range(n8):
            lab = a.newlabel("K1_T8B")
            a(f"s_cmp_ge_u32 s82, {r1*9216}")
            a(f"s_cbranch_scc1 {lab}")
            a(f"buffer_load_dword v{161+i}, v6, s[8:11], s82 offen")
            a.label(lab)
            if i < n8 - 1: a(f"s_add_u32 s82, s82, {144*8*9216}")
    a.label("K1_F_IDLE")
    a("s_barrier")
    a("s_barrier")
    a.label("K1_F_END")

def gen_k12c(a):
    name = "k1_kernel"
    kernel_head(a, name)
    kst_begin(a)
    KT = 'k1st' in OPTS
    F4 = 'fuse4' in OPTS
    assert not F4 or 'pollc' in OPTS
    ST2 = 'st2' in OPTS
    phase = ['ln']
    ST3 = 'st3' in OPTS
    def st(i):
        if KT and not ((ST2 or ST3) and phase[0] == 'ch'): a(f"s_memrealtime s[{60+2*i}:{61+2*i}]")
    def sth(i):
        if KT and ST3: a(f"s_memrealtime s[{60+2*i}:{61+2*i}]")
    def stg(i):
        if KT and ST2: a(f"s_memrealtime s[{60+2*i}:{61+2*i}]")
    def st_flush():
        a("s_waitcnt lgkmcnt(0)")
        srd(a, 76, 6, 7, 0x4000000)
        for i in range(7): a(f"v_mov_b32 v{80+i}, s{60+2*i}")
        a("v_mov_b32 v87, s94")
        a("s_mul_i32 s75, s2, 384")
        a(f"s_lshl_b32 s74, s59, 5")
        a("s_add_u32 s75, s75, s74")
        a("s_add_u32 s75, s75, 0x2a00000")
        a("v_mov_b32 v78, 0")
        a("buffer_store_dwordx4 v[80:83], v78, s[76:79], s75 offen")
        a("buffer_store_dwordx4 v[84:87], v78, s[76:79], s75 offen offset:16")
    def touch(r0, r1, vd, T):
        srd(a, 8, 84, 85, r1 * 9216)
        t0, t1, t2 = T
        a(f"v_min_u32 v{t0}, 59, v1")
        a(f"v_mul_u32_u24 v{t1}, 52, v{t0}")
        a(f"v_lshrrev_b32 v{t1}, 9, v{t1}")
        a(f"v_mul_u32_u24 v{t2}, 10, v{t1}")
        a(f"v_sub_u32 v{t2}, v{t0}, v{t2}")
        a(f"v_mul_u32_u24 v{t1}, 9216, v{t1}")
        a(f"v_lshl_add_u32 v{t1}, v{t2}, 7, v{t1}")
        a("s_and_b32 s82, s2, 7")
        a("s_mul_i32 s82, s82, 27*171")
        a("s_lshr_b32 s82, s82, 10")
        a("s_lshl_b32 s82, s82, 8")
        a("s_sub_u32 s83, s2, 64")
        a("s_lshr_b32 s83, s83, 3")
        a("s_mul_i32 s83, s83, 12")
        a("s_add_u32 s83, s83, s59")
        a(f"s_mul_i32 s83, s83, {6*9216}")
        a("s_add_u32 s82, s82, s83")
        a(f"s_add_u32 s82, s82, {r0*9216}")
        n = -(-(r1 - r0) // (6 * 288))
        for i in range(n):
            a(f"buffer_load_dword v{vd+i}, v{t1}, s[8:11], s82 offen")
            if i < n - 1: a(f"s_add_u32 s82, s82, {288*6*9216}")
        return n
    a("s_cmp_ge_u32 s2, 256")
    a("s_cbranch_scc1 K1_END")
    a("s_load_dwordx2 s[4:5], s[0:1], 0")
    a("s_load_dwordx2 s[6:7], s[0:1], 112")
    a("s_load_dwordx8 s[16:23], s[0:1], 8")
    a("s_load_dwordx4 s[52:55], s[0:1], 40")
    a("s_load_dwordx2 s[56:57], s[0:1], 104")
    a("s_load_dwordx2 s[84:85], s[0:1], 64")
    a("v_lshrrev_b32 v2, 6, v0")
    a("v_readfirstlane_b32 s59, v2")
    a("v_and_b32 v1, 63, v0")
    if KT:
        for i in range(7): a(f"s_mov_b32 s{60+2*i}, 0")
    a("s_cmp_ge_u32 s2, 64")
    a("s_cbranch_scc1 K1_CH")
    a("s_cmp_ge_u32 s59, 8")
    a("s_cbranch_scc1 K1_LN_B")
    a("s_setprio 3")
    a("v_lshrrev_b32 v2, 4, v1")
    a("v_and_b32 v3, 15, v1")
    a("s_lshl_b32 s3, s2, 5")
    a("s_lshl_b32 s26, s59, 2")
    a("s_add_u32 s3, s3, s26")
    a("v_add_u32 v4, s3, v2")
    a("s_movk_i32 s26, 1152")
    a("v_mul_lo_u32 v5, v4, s26")
    a("v_lshl_add_u32 v5, v3, 3, v5")
    a("s_waitcnt lgkmcnt(0)")
    st(0)
    srd(a, 8, 4, 5, L * D * 2)
    for i in range(9):
        a(f"buffer_load_dwordx2 v[{10+2*i}:{11+2*i}], v5, s[8:11], 0 offen offset:{128*i}")
    srd(a, 12, 6, 7, WS_HN)
    srd(a, 48, 56, 57, 256)
    a("v_mov_b32 v6, 0")
    a("ds_write_b32 v6, v6")
    a("v_lshlrev_b32 v7, 2, v4")
    if STP:
        a("v_lshrrev_b32 v9, 9, v7")
        a("v_and_b32 v7, 511, v7")
        a("v_lshl_add_u32 v7, v9, 10, v7")
        a("v_add_u32 v7, 512, v7")
    a("v_mov_b32 v8, 1")
    if F4:
        a("s_cmp_lg_u32 s59, 0")
        a("s_cbranch_scc1 K1_LN_Z")
        a(f"s_cmp_ge_u32 s2, {RC_N}")
        a("s_cbranch_scc1 K1_LN_Z")
        a(f"s_mul_i32 s26, s2, {RC_STRIDE}")
        a(f"s_add_u32 s26, s26, {WS_RC}")
        a("s_mov_b64 exec, 1")
        a("buffer_store_dword v6, v6, s[12:15], s26 offen sc1")
        a("s_mov_b64 exec, -1")
        a.label("K1_LN_Z")
    LNB = 'lnb' in OPTS
    if LNB:
        a("s_waitcnt lgkmcnt(0)")
    else:
        a("s_waitcnt vmcnt(0) lgkmcnt(0)")
        st(1)
    a.label("K1_LN_B")
    a("s_barrier")
    a("s_cmp_ge_u32 s59, 8")
    a("s_cbranch_scc1 K1_PF")
    if LNB:
        a("s_waitcnt vmcnt(0)")
        st(1)
    for i in range(18):
        a(f"v_lshlrev_b32 v{30+2*i}, 16, v{10+i}")
        a(f"v_and_b32 v{31+2*i}, 0xffff0000, v{10+i}")
    a("v_pk_add_f32 v[66:67], v[30:31], v[32:33]")
    a("v_pk_add_f32 v[68:69], v[34:35], v[36:37]")
    for i in range(4, 18):
        r = 66 + 2 * (i % 2)
        a(f"v_pk_add_f32 v[{r}:{r+1}], v[{r}:{r+1}], v[{30+2*i}:{31+2*i}]")
    a("v_pk_add_f32 v[66:67], v[66:67], v[68:69]")
    a("v_add_f32 v66, v66, v67")
    def red16(r):
        for m in ("quad_perm:[1,0,3,2]", "quad_perm:[2,3,0,1]", "row_half_mirror", "row_mirror"):
            a(f"v_add_f32_dpp v{r}, v{r}, v{r} {m} row_mask:0xf bank_mask:0xf")
    red16(66)
    a(f"s_mov_b32 s26, {fhex(1.0/576)}")
    a("v_mul_f32 v70, s26, v66")
    for i in range(18):
        t = 72 + 2 * (i % 4)
        r = 66 + 2 * (i % 2)
        a(f"v_pk_add_f32 v[{t}:{t+1}], v[{30+2*i}:{31+2*i}], v[70:71] op_sel:[0,0] op_sel_hi:[1,0] neg_lo:[0,1] neg_hi:[0,1]")
        if i < 2: a(f"v_pk_mul_f32 v[{r}:{r+1}], v[{t}:{t+1}], v[{t}:{t+1}]")
        else: a(f"v_pk_fma_f32 v[{r}:{r+1}], v[{t}:{t+1}], v[{t}:{t+1}], v[{r}:{r+1}]")
    a("v_pk_add_f32 v[66:67], v[66:67], v[68:69]")
    a("v_add_f32 v66, v66, v67")
    red16(66)
    a("v_mul_f32 v66, s26, v66")
    bf16_round(a, 70, 70)
    bf16_round(a, 66, 66)
    a(f"v_add_f32 v66, {fhex(1e-5)}, v66")
    bf16_round(a, 66, 66)
    a("v_sqrt_f32 v66, v66")
    bf16_round(a, 66, 66)
    a("v_lshrrev_b32 v70, 16, v70")
    a("v_or_b32 v66, v66, v70")
    st(2)
    a("s_mov_b32 exec_lo, 0x00010001")
    a("s_mov_b32 exec_hi, 0x00010001")
    a(f"s_mov_b32 s26, {WS_ST}")
    a("buffer_store_dword v66, v7, s[12:15], s26 offen sc1")
    a("s_waitcnt vmcnt(0)")
    st(3)
    a("s_mov_b64 exec, 1")
    a("ds_add_rtn_u32 v9, v6, v8")
    a("s_waitcnt lgkmcnt(0)")
    a("v_readfirstlane_b32 s26, v9")
    a("s_cmp_lg_u32 s26, 7")
    a("s_cbranch_scc1 K1_LN_D")
    a("buffer_atomic_add v8, v6, s[48:51], 0 offen sc0 sc1")
    a("s_waitcnt vmcnt(0)")
    st(4)
    if not F4:
        a("v_readfirstlane_b32 s26, v8")
        a("s_cmp_lg_u32 s26, 63")
        a("s_cbranch_scc1 K1_LN_D")
        a("v_mov_b32 v8, 1")
        a("buffer_store_dword v8, v6, s[48:51], 0 offen offset:128 sc1")
        if KT:
            a("s_waitcnt vmcnt(0)")
            st(5)
    a.label("K1_LN_D")
    a("s_mov_b64 exec, -1")
    a("s_setprio 0")
    if KT: st_flush()
    a("s_branch K1_PF")

    a.label("K1_CH")
    phase[0] = 'ch'
    a("s_sub_u32 s3, s2, 64")
    a("s_and_b32 s26, s3, 7")
    a("s_mul_i32 s26, s26, 24")
    a("s_lshr_b32 s3, s3, 3")
    a("s_add_u32 s3, s3, s26")
    a("s_lshr_b32 s39, s59, 2")
    a("s_and_b32 s27, s59, 3")
    a("s_mul_i32 s33, s3, 3")
    a("s_add_u32 s33, s33, s39")
    a(f"s_mul_i32 s34, s39, {C_LDS}")
    a("s_movk_i32 s26, 1152")
    GROT = 'grot' in OPTS
    if GROT:
        a("s_add_u32 s35, s3, s39")
        a("s_mul_i32 s28, s35, 171")
        a("s_lshr_b32 s28, s28, 9")
        a("s_mul_i32 s28, s28, 3")
        a("s_sub_u32 s35, s35, s28")
        a("s_lshl_b32 s28, s35, 8")
        a("v_and_b32 v0, 255, v0")
        a("v_add_u32 v151, s28, v0")
        a("v_mul_lo_u32 v150, v151, s26")
        a("v_lshlrev_b32 v151, 1, v151")
    else:
        a("v_mul_lo_u32 v150, v0, s26")
        a("v_lshlrev_b32 v151, 1, v0")
        a("v_and_b32 v0, 255, v0")
    a("v_lshrrev_b32 v3, 4, v1")
    a("v_and_b32 v4, 15, v1")
    a("v_and_b32 v6, 127, v0")
    a("s_lshl_b32 s28, s33, 8")
    a("v_lshlrev_b32 v5, 1, v6")
    a("v_add_u32 v5, s28, v5")
    a("v_lshl_add_u32 v9, v1, 2, s28")
    a("s_lshl_b32 s44, s33, 1")
    a("v_mov_b32 v7, s44")
    a("s_mul_i32 s36, s3, 6")
    a("s_and_b32 s37, s36, 2")
    a("s_lshl_b32 s37, s37, 3")
    a("s_and_b32 s36, s36, -4")
    a(f"s_add_u32 s38, s36, {768*1152}")
    a(f"s_add_u32 s58, s36, {2*768*1152}")
    a("s_waitcnt lgkmcnt(0)")
    sth(0)
    srd(a, 40, 52, 53, D * 2)
    a("buffer_load_ushort v14, v7, s[40:43], 0 offen")
    srd(a, 8, 16, 17, D * NM * 2)
    a("buffer_load_ushort v10, v5, s[8:11], 0 offen")
    srd(a, 28, 18, 19, D * NM * 2)
    a("buffer_load_ushort v11, v5, s[28:31], 0 offen")
    srd(a, 44, 20, 21, D * NM * 2)
    a("buffer_load_dword v24, v9, s[44:47], 0 offen")
    a("buffer_load_ushort v12, v5, s[44:47], 0 offen")
    srd(a, 48, 22, 23, D * NM * 2)
    a("buffer_load_dword v25, v9, s[48:51], 0 offen")
    a("buffer_load_ushort v13, v5, s[48:51], 0 offen")
    srd(a, 40, 54, 55, D * 2)
    a("buffer_load_ushort v160, v7, s[40:43], 0 offen")
    srd(a, 8, 4, 5, L * D * 2)
    sth(1)
    def gathers():
        a("buffer_load_dwordx2 v[152:153], v150, s[8:11], s36 offen")
        a("buffer_load_dwordx2 v[154:155], v150, s[8:11], s38 offen")
        a("buffer_load_dwordx2 v[156:157], v150, s[8:11], s58 offen")
    srd(a, 12, 6, 7, WS_HN)
    srd(a, 48, 56, 57, 256)
    a(f"s_mov_b32 s44, {hex(LOG2E)}")
    a(f"s_mov_b32 s45, {fhex(1.4426950408889634 - 1.4426950216293335)}")
    a(f"s_mov_b32 s46, {fhex(0.6931471805599453)}")
    a(f"s_mov_b32 s47, {hex(INV2PI)}")
    a(f"s_mov_b32 s26, {hex(LOG2E | 0x80000000)}")
    a("v_lshrrev_b32 v8, 3, v6")
    a("v_mul_u32_u24 v8, 544, v8")
    a("v_bfe_u32 v9, v6, 2, 1")
    a("v_lshl_add_u32 v8, v9, 8, v8")
    a("v_and_b32 v9, 3, v6")
    a("v_lshl_add_u32 v8, v9, 2, v8")
    a("v_add_u32 v8, s34, v8")
    a("s_lshr_b32 s28, s27, 1")
    a(f"s_mul_i32 s28, s28, {2*C_TT}")
    a("v_add_u32 v8, s28, v8")
    a(f"v_add_u32 v2, {C_TT}, v8")
    a("v_lshrrev_b32 v9, 1, v3")
    a("v_mul_u32_u24 v9, 544, v9")
    a("v_and_b32 v5, 1, v3")
    a("v_lshl_add_u32 v9, v5, 8, v9")
    a("v_lshl_add_u32 v9, v4, 4, v9")
    a("v_add_u32 v9, s34, v9")
    a("s_cmp_eq_u32 s27, 1")
    a("s_cbranch_scc1 K1_KG_T1")
    a("s_cmp_eq_u32 s27, 2")
    a("s_cbranch_scc1 K1_KG_T2")
    a("v_and_b32 v100, 1, v3")
    a("v_lshlrev_b32 v100, 2, v100")
    a("v_lshrrev_b32 v101, 1, v3")
    a("v_lshl_add_u32 v100, v101, 7, v100")
    a("v_lshl_add_u32 v100, v4, 3, v100")
    for r in range(1, 4): a(f"v_add_u32 v{100+r}, {r}, v100")
    a("s_branch K1_KG_SC")
    a.label("K1_KG_T1")
    a("v_lshlrev_b32 v104, 6, v3")
    a("v_lshl_add_u32 v104, v4, 2, v104")
    a("v_add_u32 v104, 256, v104")
    a("v_lshlrev_b32 v105, 6, v3")
    a("v_lshl_add_u32 v105, v4, 1, v105")
    a("v_add_u32 v105, 256, v105")
    a("v_cmp_gt_u32 vcc, 2, v3")
    for r in range(4):
        a(f"v_add_u32 v106, {r}, v104")
        a(f"v_add_u32 v107, {32*(r>>1)+(r&1)}, v105")
        a(f"v_cndmask_b32 v{100+r}, v107, v106, vcc")
    a("s_branch K1_KG_SC")
    a.label("K1_KG_T2")
    a("v_lshlrev_b32 v100, 6, v3")
    a("v_add_u32 v100, v4, v100")
    a("v_add_u32 v100, 512, v100")
    for r in range(1, 4): a(f"v_add_u32 v{100+r}, {16*r}, v100")
    a.label("K1_KG_SC")
    for r in range(4): a(f"v_lshl_add_u32 v{140+r}, v{100+r}, 2, s34")
    GM = [o for o in OPTS if o.startswith('g=')]
    GM = GM[0][2:] if GM else 'sp'
    GST = 'gst' in OPTS
    assert not GST or GM == 'sp'
    if GST:
        a("s_and_b32 s32, s36, 127")
        a("s_cmp_eq_u32 s32, 124")
        a("s_cselect_b32 s32, 0, 1")
        a("s_add_u32 s32, s32, s39")
    def gpoint(k):
        lab = a.newlabel("K1_GP")
        if GST: a(f"s_cmp_lg_u32 s32, {k+1}")
        else: a(f"s_cmp_lg_u32 s39, {k}")
        a(f"s_cbranch_scc1 {lab}")
        gathers()
        a.label(lab)
    if GM == 'sp0':
        a("s_barrier")
    def static_addr():
        if 'sa2' in OPTS:
            a("s_add_u32 s28, s39, 1")
            a("s_and_b32 s28, s28, 3")
            a("s_xor_b32 s29, s28, s27")
            a("s_lshl_b32 s28, s28, 6")
            a("v_xor_b32 v117, s28, v0")
            a("v_lshlrev_b32 v116, 3, v117")
            a("v_sub_u32 v116, 2047, v116")
            a("v_cvt_f32_i32 v122, v116")
            a(f"s_sub_u32 s28, s34, {4*17024}")
            for p in range(6):
                e = 2 * p
                t = 118 + 2 * (p % 2)
                if e: a(f"v_add_f32 v{t}, {fhex(-float(e))}, v122")
                a(f"v_add_f32 v{t+1}, {fhex(-float(e+1))}, v122")
                a(f"v_cvt_pk_bf16_f32 v{t}, v{t if e else 122}, v{t+1}")
                a(f"v_mad_u32_u16 v{100+e}, v{t}, 4, s28")
                a(f"v_mad_u32_u16 v{101+e}, v{t}, 4, s28 op_sel:[1,0,0,0]")
            lab = a.newlabel("K1_SA")
            a("s_cmp_lg_u32 s29, 3")
            a(f"s_cbranch_scc1 {lab}")
            a(f"s_add_u32 s28, s34, {768*4}")
            a("v_mov_b32 v123, s28")
            for e in range(12):
                t = 118 + 2 * (e % 2)
                a(f"v_subrev_u32 v{t}, {e}, v116")
                a(f"v_lshl_add_u32 v{t+1}, v{t}, 2, s34")
                a(f"v_cmp_gt_i32 vcc, 128, v{t}")
                a(f"v_cndmask_b32 v{100+e}, v{100+e}, v{t+1}, vcc")
                if e >= 8:
                    a(f"v_cmp_gt_i32 vcc, 0, v{t}")
                    a(f"v_cndmask_b32 v{100+e}, v{100+e}, v123, vcc")
            a.label(lab)
            a("v_lshl_add_u32 v5, v117, 4, s34")
        else:
            a("v_lshlrev_b32 v116, 3, v0")
            a("v_sub_u32 v116, 2047, v116")
            for e in range(12):
                a(f"v_subrev_u32 v{118+(e%2)}, {e}, v116")
                a(f"v_cvt_f32_i32 v{120+(e%2)}, v{118+(e%2)}")
                a(f"v_cvt_pk_bf16_f32 v{120+(e%2)}, v{120+(e%2)}, v{120+(e%2)}")
                a(f"v_and_b32 v{120+(e%2)}, 0xffff, v{120+(e%2)}")
                a(f"v_subrev_u32 v{120+(e%2)}, 17024, v{120+(e%2)}")
                a(f"v_min_i32 v{122+(e%2)}, 127, v{118+(e%2)}")
                a(f"v_max_i32 v{120+(e%2)}, v{120+(e%2)}, v{122+(e%2)}")
                if e >= 8:
                    a(f"v_cmp_gt_i32 vcc, 0, v{118+(e%2)}")
                    a(f"v_mov_b32 v{122+(e%2)}, 768")
                    a(f"v_cndmask_b32 v{120+(e%2)}, v{120+(e%2)}, v{122+(e%2)}, vcc")
                a(f"v_lshl_add_u32 v{100+e}, v{120+(e%2)}, 2, s34")
            a("v_lshl_add_u32 v5, v0, 4, s34")
        a("v_lshlrev_b32 v23, 5, v4")
        a("v_lshl_add_u32 v23, v3, 3, v23")
        a("s_lshl_b32 s28, s27, 10")
        a("s_add_u32 s28, s28, s34")
        a("v_add_u32 v23, s28, v23")
        a("v_and_b32 v15, 3, v1")
        a(f"v_mul_u32_u24 v15, {C_CS}, v15")
        a("v_bfe_u32 v116, v1, 2, 2")
        a("v_lshl_add_u32 v15, v116, 4, v15")
        a("v_add_u32 v15, 4096, v15")
        a("v_subrev_u32 v116, 32, v1")
        a("v_lshlrev_b32 v116, 4, v116")
        a(f"v_add_u32 v116, {C_UPAD}, v116")
        a("v_cmp_gt_u32 vcc, 32, v1")
        a("v_cndmask_b32 v15, v116, v15, vcc")
        a("v_add_u32 v15, s34, v15")
        a("v_lshlrev_b32 v20, 5, v4")
        a("v_lshl_add_u32 v20, v3, 4, v20")
        a("s_lshl_b32 s28, s27, 6")
        a(f"s_sub_u32 s29, {C_UOFF-288}, s28")
        a("s_add_u32 s29, s29, s34")
        a("v_add_u32 v20, s29, v20")
        a("v_and_b32 v21, 3, v4")
        a(f"v_mul_u32_u24 v21, {C_CS}, v21")
        a("v_lshl_add_u32 v21, v3, 4, v21")
        a("v_lshrrev_b32 v116, 2, v4")
        a("v_lshlrev_b32 v116, 3, v116")
        a("v_sub_u32 v21, v21, v116")
        a("s_sub_u32 s29, 216, s28")
        a("s_add_u32 s29, s29, s34")
        a("v_add_u32 v21, s29, v21")
        if STP:
            a("v_and_b32 v22, 7, v4")
            a("v_lshlrev_b32 v22, 6, v22")
            a("v_lshrrev_b32 v116, 3, v4")
            a("v_lshl_add_u32 v22, v116, 10, v22")
            a("v_lshl_add_u32 v22, v3, 4, v22")
        else:
            a("v_lshlrev_b32 v22, 6, v4")
            a("v_lshl_add_u32 v22, v3, 4, v22")
        a(f"v_add_u32 v158, {C_LDS}, v151")
        a(f"v_add_u32 v159, {2*C_LDS}, v151")
    if GM == 'sp0':
        gpoint(0)
        static_addr()
        a("s_cmp_lg_u32 s39, 0")
        a("s_cbranch_scc1 K1_PW1")
        a("s_waitcnt vmcnt(4)")
        a("s_branch K1_PW2")
        a.label("K1_PW1")
        a("s_waitcnt vmcnt(1)")
        a.label("K1_PW2")
    elif GST:
        gpoint(-1)
        static_addr()
        a("s_cmp_lg_u32 s32, 0")
        a("s_cbranch_scc1 K1_PW1")
        a("s_waitcnt vmcnt(4)")
        a("s_branch K1_PW2")
        a.label("K1_PW1")
        a("s_waitcnt vmcnt(1)")
        a.label("K1_PW2")
    else:
        static_addr()
        a("s_waitcnt vmcnt(1)")
    st(0)
    sth(2)
    gpoint(1 if GM == 'sp0' else 0)
    sth(3)
    a("v_lshlrev_b32 v14, 16, v14")
    exp_precise(a, 16, 14, 17, 18, 44, 45, 46)
    a("v_lshlrev_b32 v10, 16, v10")
    exp_precise(a, 19, 10, 28, 29, 44, 45, 46)
    bf16_round(a, 16, 16)
    bf16_round(a, 19, 19)
    a("v_add_f32 v17, v16, v16")
    a("v_mul_f32 v19, v19, v16")
    a("v_mul_f32 v32, s26, v19")
    a("v_lshlrev_b32 v11, 16, v11")
    a("v_mul_f32 v11, v11, v16")
    a("v_mul_f32 v33, s47, v11")
    a("v_and_b32 v24, 0x7fff7fff, v24")
    a("v_and_b32 v25, 0x7fff7fff, v25")
    a("v_lshlrev_b32 v28, 16, v24")
    a("v_lshlrev_b32 v29, 16, v25")
    a("v_max_u32 v24, v24, v25")
    a("v_max_u32 v28, v28, v29")
    a("v_and_b32 v24, 0xffff0000, v24")
    a("v_max_u32 v36, v24, v28")
    for mode in ("quad_perm:[1,0,3,2]", "quad_perm:[2,3,0,1]", "row_half_mirror", "row_mirror"):
        a(f"v_max_u32_dpp v36, v36, v36 {mode} row_mask:0xf bank_mask:0xf")
    for k, sr in enumerate((24, 25, 30, 31)): a(f"v_readlane_b32 s{sr}, v36, {16*k}")
    a("s_max_u32 s24, s24, s25")
    a("s_max_u32 s30, s30, s31")
    a("s_max_u32 s24, s24, s30")
    a("v_mul_f32 v36, s24, v17")
    a("v_frexp_exp_i32_f32 v26, v36")
    a("v_sub_u32 v31, 0, v26")
    def direct(dst, n, conj, t):
        c = fhex(float(n)) if n not in (1, 2, 4) else f"{float(n)}"
        a(f"v_mul_f32 v{t}, {c}, v32")
        a(f"v_mul_f32 v{t+1}, {c}, v33")
        a(f"v_fract_f32 v{t+1}, v{t+1}")
        a(f"v_exp_f32 v{t}, v{t}")
        a(f"v_cos_f32 v{t+2}, v{t+1}")
        a(f"v_sin_f32 v{t+3}, v{t+1}")
        a(f"v_mul_f32 v{dst}, v{t}, v{t+2}")
        a(f"v_mul_f32 v{dst+1}, {'-' if conj else ''}v{t}, v{t+3}")
    pend = {}
    cv = [0]
    def put(T, i, p):
        r = 80 + (cv[0] % 16); cv[0] += 1
        a(f"v_cvt_pk_f16_f32 v{r}, v{p}, v{p+1}")
        o = (T, i ^ 1)
        if o in pend:
            ro = pend.pop(o)
            lo, hi = (ro, r) if i & 1 else (r, ro)
            a(f"ds_write2_b32 v{8 if T == 0 else 2}, v{lo}, v{hi} offset0:{4*(i & ~1)} offset1:{4*(i | 1)}")
        else: pend[(T, i)] = r
    G2K = 2 if GM == 'sp0' else 1
    a("s_cmp_ge_u32 s27, 2")
    a("s_cbranch_scc1 K1_H1")
    direct(40, 8, False, 72)
    direct(42, 1, True, 76)
    direct(44, 128, True, 64)
    a("v_lshlrev_b32 v12, 16, v12")
    a("v_lshlrev_b32 v13, 16, v13")
    a("v_mul_f32 v12, v12, v17")
    a("v_mul_f32 v13, v13, v17")
    a("v_ldexp_f32 v46, v12, v31")
    a("v_ldexp_f32 v47, v13, v31")
    a("v_mov_b32 v52, 1.0")
    a("v_mov_b32 v53, 0")
    put(0, 0, 46); put(1, 0, 52); put(1, 1, 42); put(1, 8, 44)
    if GM == 'sp': gpoint(1)
    ecur, enx = 46, 48
    ycur, ynx = 42, 54
    for k in range(1, 16):
        if k == (3 if GM == 'sp0' else 6): gpoint(2)
        cmul(a, enx, ecur, 40, 50)
        if k <= 7:
            cmul(a, 58, ycur, 44, 60)
            if k < 7: cmul(a, ynx, ycur, 42, 62)
        put(0, k, enx)
        if k <= 7:
            put(1, 8 + k, 58)
            if k < 7: put(1, k + 1, ynx)
            ycur, ynx = ynx, (56 if ynx == 54 else 54)
        ecur, enx = enx, ecur
    assert not pend, pend
    a("s_branch K1_HJ")
    a.label("K1_H1")
    cv[0] = 0
    direct(40, 2, True, 72)
    direct(42, 128, True, 76)
    cmul(a, 44, 40, 40, 60)
    cmul(a, 48, 42, 42, 62)
    cmul(a, 46, 44, 40, 60)
    cmul(a, 50, 48, 42, 62)
    cmul(a, 52, 48, 48, 60)
    cmul(a, 54, 52, 52, 62)
    if GM == 'sp': gpoint(1)
    ys = [40, 44, 46]
    gcur, gnx = 54, 56
    put(1, 0, 54)
    bcur, bnx = 52, 64
    k2 = 1
    def g2step():
        nonlocal gcur, gnx, k2
        if k2 > 15: return
        cmul(a, gnx, gcur, 42, 58)
        put(1, k2, gnx)
        gcur, gnx = gnx, gcur
        k2 += 1
    for base, j0 in ((48, 0), (50, 4)):
        put(0, j0, base)
        for t in range(3):
            cmul(a, 66, base, ys[t], 60)
            g2step()
            put(0, j0 + 1 + t, 66)
        if j0 == 0 and GM == 'sp0': gpoint(2)
    if GM == 'sp': gpoint(2)
    for t in range(4):
        cmul(a, 66, bcur, 44, 60)
        if t < 3: cmul(a, bnx, bcur, 42, 62)
        put(0, 8 + 2 * t, bcur)
        g2step()
        put(0, 8 + 2 * t + 1, 66)
        if t < 3: bcur, bnx = bnx, (68 if bnx == 64 else 64)
    while k2 <= 15: g2step()
    assert not pend, pend
    a.label("K1_HJ")
    a("s_waitcnt lgkmcnt(0)")
    a("s_barrier")
    st(1)
    sth(4)
    a("s_cmp_eq_u32 s27, 3")
    a("s_cbranch_scc1 K1_KG_Z")
    a(f"s_mul_i32 s28, s27, {C_TT}")
    a(f"s_add_u32 s28, s28, {C_TT}")
    a("v_add_u32 v7, s28, v9")
    AFR = 36; BFR = 68; ACCK = 128
    for ks in range(8):
        a(f"ds_read_b128 v[{AFR+4*ks}:{AFR+4*ks+3}], v7 offset:{1088*ks}")
        a(f"ds_read_b128 v[{BFR+4*ks}:{BFR+4*ks+3}], v9 offset:{1088*ks}")
    for ks in range(8):
        a(f"s_waitcnt lgkmcnt({14-2*ks})")
        acc = ACCK + 4 * (ks % 2)
        a(f"v_mfma_f32_16x16x32_f16 v[{acc}:{acc+3}], v[{AFR+4*ks}:{AFR+4*ks+3}], v[{BFR+4*ks}:{BFR+4*ks+3}], {'0' if ks < 2 else f'v[{acc}:{acc+3}]'}")
    for r in range(4):
        a(f"v_add_f32 v{ACCK+r}, v{ACCK+r}, v{ACCK+4+r}")
        a(f"v_ldexp_f32 v{ACCK+r}, v{ACCK+r}, v26")
        a(f"ds_write_b32 v{140+r}, v{ACCK+r} offset:{C_KC}")
    a("s_branch K1_KG_X")
    a.label("K1_KG_Z")
    a("v_mov_b32 v7, s34")
    a("v_mov_b32 v36, 0")
    a(f"ds_write_b32 v7, v36 offset:{C_KC + 768*4}")
    a.label("K1_KG_X")
    sth(5)
    a("s_waitcnt vmcnt(0)")
    sth(6)
    for k in range(3):
        lab = a.newlabel("K1_XS")
        if k == 2:
            a("s_cmp_ge_u32 s35, 2" if GROT else "s_cmp_ge_u32 s59, 8")
            a(f"s_cbranch_scc1 {lab}")
        r = 152 + 2 * k
        a(f"v_lshrrev_b64 v[{r}:{r+1}], s37, v[{r}:{r+1}]")
        a(f"ds_write_b16 v151, v{r} offset:{C_UOFF + 1536*k}")
        a(f"ds_write_b16_d16_hi v158, v{r} offset:{C_UOFF + 1536*k}")
        a(f"ds_write_b16 v159, v{r+1} offset:{C_UOFF + 1536*k}")
        if k == 2: a.label(lab)
    a("s_waitcnt lgkmcnt(0)")
    a("s_barrier")
    st(2)
    PC = 'pollc' in OPTS
    GOFF = 0 if PC else 128
    GOV = 64 if PC else 1
    a("v_mov_b32 v7, 0")
    a(f"buffer_load_dword v9, v7, s[48:51], 0 offen offset:{GOFF} sc1")
    for e in range(12):
        a(f"ds_read_b32 v{70+e}, v{100+e} offset:{C_KC}")
    a(f"ds_read_b64 v[10:11], v23 offset:{C_UOFF}")
    a(f"ds_read_b64 v[12:13], v23 offset:{C_UOFF + 512}")
    for r in range(4): a(f"v_mov_b32 v{84+r}, 0")
    a("ds_write_b128 v15, v[84:87]")
    a(f"s_lshl_b32 s38, s27, {12 if STP else 11}")
    a(f"s_add_u32 s38, s38, {WS_ST + (512 if STP else 0)}")
    Dv = 40; Ev = 48; Ov = 52; Pv = 56
    a("s_waitcnt lgkmcnt(3)")
    for k in range(6):
        a(f"v_cvt_pk_bf16_f32 v{Dv+k}, v{70+2*k}, v{71+2*k}")
    if 'dumpR' in OPTS:
        srd(a, 28, 6, 7, WS_HT)
        a("s_mul_i32 s36, s33, %d" % RSTRIDE)
        a(f"s_add_u32 s36, s36, {WS_R}")
        a("v_lshlrev_b32 v7, 4, v0")
        a("buffer_store_dwordx4 v[40:43], v7, s[28:31], s36 offen")
        a("v_mov_b32 v7, 0")
    for k in range(4): a(f"v_mov_b32 v{Ev+k}, v{Dv+1+k}")
    for k in range(4): a(f"v_alignbit_b32 v{Ov+k}, v{Dv+k+1}, v{Dv+k}, 16")
    for k in range(4): a(f"v_alignbit_b32 v{Pv+k}, v{Dv+k+2}, v{Dv+k+1}, 16")
    src = {3: Dv, 1: Ev, 2: Ov, 0: Pv}
    def copies():
        for r in range(4):
            a(f"ds_write_b128 v5, v[{src[r]}:{src[r]+3}] offset:{r*C_CS}")
    CF = 'cpfirst' in OPTS
    if CF: copies()
    a("s_waitcnt vmcnt(0)")
    a("v_readfirstlane_b32 s36, v9")
    a(f"s_cmp_lt_u32 s36, {GOV}")
    a("s_cbranch_scc1 K1_NG1")
    a("buffer_load_dwordx4 v[24:27], v22, s[12:15], s38 offen sc1")
    a(f"buffer_load_dwordx4 v[28:31], v22, s[12:15], s38 offen offset:{2048 if STP else 1024} sc1")
    a("s_branch K1_NG2")
    a.label("K1_NG1")
    a(f"buffer_load_dword v9, v7, s[48:51], 0 offen offset:{GOFF} sc1")
    a.label("K1_NG2")
    if not CF: copies()
    st(3)
    ACC = 128
    for r in range(32): a(f"v_mov_b32 v{ACC+r}, 0")
    a(f"s_cmp_ge_u32 s36, {GOV}")
    a("s_cbranch_scc1 K1_GO2")
    a.label("K1_POLL")
    a("s_waitcnt vmcnt(0)")
    a("v_readfirstlane_b32 s36, v9")
    a(f"s_cmp_ge_u32 s36, {GOV}")
    a("s_cbranch_scc1 K1_GO")
    a("s_sleep 1")
    a(f"buffer_load_dword v9, v7, s[48:51], 0 offen offset:{GOFF} sc1")
    a("s_branch K1_POLL")
    a.label("K1_GO")
    a("buffer_load_dwordx4 v[24:27], v22, s[12:15], s38 offen sc1")
    a(f"buffer_load_dwordx4 v[28:31], v22, s[12:15], s38 offen offset:{2048 if STP else 1024} sc1")
    a.label("K1_GO2")
    for tt in range(2):
        X = 32; M = 36; R = 40
        xp = 10 + 2 * tt; S = 24 + 4 * tt
        a(f"v_lshlrev_b32 v{X}, 16, v{xp}")
        a(f"v_and_b32 v{X+1}, 0xffff0000, v{xp}")
        a(f"v_lshlrev_b32 v{X+2}, 16, v{xp+1}")
        a(f"v_and_b32 v{X+3}, 0xffff0000, v{xp+1}")
        a(f"s_waitcnt vmcnt({1-tt})")
        if tt == 0: st(4)
        for k in range(4):
            a(f"v_and_b32 v{R+k}, 0xffff0000, v{S+k}")
            a(f"v_lshlrev_b32 v{M+k}, 16, v{S+k}")
            a(f"v_rcp_f32 v{R+k}, v{R+k}")
            a(f"v_sub_f32 v{X+k}, v{X+k}, v{M+k}")
        a(f"v_cvt_pk_bf16_f32 v{M}, v{X}, v{X+1}")
        a(f"v_cvt_pk_bf16_f32 v{M+1}, v{X+2}, v{X+3}")
        a(f"v_lshlrev_b32 v{X}, 16, v{M}")
        a(f"v_and_b32 v{X+1}, 0xffff0000, v{M}")
        a(f"v_lshlrev_b32 v{X+2}, 16, v{M+1}")
        a(f"v_and_b32 v{X+3}, 0xffff0000, v{M+1}")
        for k in range(4): a(f"v_mul_f32 v{X+k}, v{X+k}, v{R+k}")
        a(f"v_cvt_pk_bf16_f32 v{16+2*tt}, v{X}, v{X+1}")
        a(f"v_cvt_pk_bf16_f32 v{17+2*tt}, v{X+2}, v{X+3}")
        a(f"ds_write_b64 v23, v[{16+2*tt}:{17+2*tt}] offset:{C_UOFF + 512*tt}")
    a("v_lshl_add_u32 v5, v1, 4, s34")
    a("s_waitcnt lgkmcnt(0)")
    a("s_barrier")
    st(5)
    stg(0)
    ITX = [o for o in OPTS if o.startswith('itx=')]
    if ITX: touch(*(int(x) for x in ITX[0][4:].split('.')), 161, (24, 25, 26))
    ICP = 'icp' in OPTS
    IT8 = [o for o in OPTS if o.startswith('it8=')]
    def wave_in_xcd(sd):
        a(f"s_sub_u32 s{sd}, s2, 64")
        a(f"s_lshr_b32 s{sd}, s{sd}, 3")
        a(f"s_mul_i32 s{sd}, s{sd}, 12")
        a(f"s_add_u32 s{sd}, s{sd}, s59")
    if 'sf1' in OPTS:
        from gen_k5s import WS_XB, WS_END3, SK, NT_
        assert SK == 2
        srd(a, 8, 6, 7, WS_END3)
        a("v_lshrrev_b32 v36, 3, v1")
        a("v_cmp_le_u32 vcc, 3, v36")
        a("v_addc_co_u32 v36, vcc, 0, v36, vcc")
        a("v_and_b32 v37, 7, v1")
        a("v_lshlrev_b32 v37, 4, v37")
        a("v_lshl_add_u32 v36, v36, 7, v37")
        for r in range(4): a(f"v_mov_b32 v{32+r}, -1")
        a("s_mul_i32 s80, s59, 171")
        a("s_lshr_b32 s80, s80, 9")
        a("s_mul_i32 s81, s80, 3")
        a("s_sub_u32 s81, s59, s81")
        a("s_sub_u32 s82, s2, 64")
        a("s_lshl_b32 s82, s82, 2")
        a("s_add_u32 s82, s82, s80")
        a("s_bfe_u32 s83, s82, 0x10002")
        a(f"s_mul_i32 s82, s82, {NT_}")
        a("s_lshl_b32 s81, s81, 2")
        a("s_add_u32 s82, s82, s81")
        a("s_add_u32 s82, s82, 1")
        a("s_sub_u32 s82, s82, s83")
        a("s_lshl_b32 s82, s82, 11")
        a(f"s_add_u32 s82, s82, {WS_XB}")
        SFS = "" if 'sfp' in OPTS else " sc1"
        a("buffer_store_dwordx4 v[32:35], v36, s[8:11], s82 offen" + SFS)
        a("s_add_u32 s82, s82, 4096")
        a("buffer_store_dwordx4 v[32:35], v36, s[8:11], s82 offen" + SFS)
    if ICP or IT8:
        srd(a, 8, 84, 85, 2048 * 9216)
        a("s_and_b32 s80, s2, 7")
        wave_in_xcd(81)
    if ICP:
        a("s_mul_i32 s82, s80, 576")
        a("s_lshl_b32 s83, s81, 1")
        a("s_add_u32 s82, s82, s83")
        a("s_lshr_b32 s83, s82, 9")
        a("s_and_b32 s82, s82, 511")
        a("s_lshl_b32 s82, s82, 2")
        a("v_lshrrev_b32 v2, 4, v1")
        a("v_and_b32 v6, 15, v1")
        a("v_lshlrev_b32 v6, 4, v6")
        a("v_mul_u32_u24 v7, 9216, v2")
        a("v_add_u32 v7, v7, v6")
        a(f"v_mul_u32_u24 v2, {W1C_PITCH}, v2")
        a("v_add_u32 v2, v2, v6")
        a("s_mul_i32 s86, s82, 9216")
        a("s_lshl_b32 s87, s83, 10")
        a("s_add_u32 s86, s86, s87")
        a("s_add_u32 s86, s86, 256")
        a("buffer_load_dwordx4 v[24:27], v7, s[8:11], s86 offen")
        a(f"s_add_u32 s86, s86, {4*9216}")
        a("buffer_load_dwordx4 v[28:31], v7, s[8:11], s86 offen")
        a(f"s_mul_i32 s86, s82, {W1C_PITCH}")
        a("s_lshl_b32 s87, s83, 9")
        a("s_add_u32 s86, s86, s87")
        a(f"s_add_u32 s86, s86, {WS_W1C}")
    if IT8:
        r0, r1 = (int(x) for x in IT8[0][4:].split('.'))
        t8_addr(a, 80, 1, 6, 7, 82, 83)
        if 'it8t' in OPTS:
            a("s_sub_u32 s82, s2, 64")
            a("s_lshr_b32 s82, s82, 3")
            a("s_mul_i32 s81, s59, 24")
            a("s_add_u32 s81, s81, s82")
        a(f"s_mul_i32 s82, s81, {8*9216}")
        a(f"s_add_u32 s82, s82, {r0*9216}")
        n8 = -(-(r1 - r0) // (8 * 288))
        a("s_mov_b32 s87, 0")
        for i in range(n8):
            lab = a.newlabel("K1_T8")
            a(f"s_cmp_ge_u32 s82, {r1*9216}")
            a(f"s_cbranch_scc1 {lab}")
            a(f"buffer_load_dword v{161+i}, v6, s[8:11], s82 offen")
            a("s_add_u32 s87, s87, 1")
            a.label(lab)
            if i < n8 - 1: a(f"s_add_u32 s82, s82, {288*8*9216}")
    BF = 32; AF = 96
    def lda(i, h): a(f"ds_read_b64 v[{AF+4*(i%8)+2*h}:{AF+4*(i%8)+2*h+1}], v21 offset:{256*(15-i)+8*h}")
    def ldb(z): a(f"ds_read_b128 v[{BF+4*z}:{BF+4*z+3}], v20 offset:{256*z}")
    order = []
    for n in range(16): order += [('a', 15 - n, 0), ('a', 15 - n, 1), ('b', n, 0)]
    issued = 0
    def issue(n):
        nonlocal issued
        for _ in range(n):
            if issued >= len(order): return
            k, x, h = order[issued]
            if k == 'a': lda(x, h)
            else: ldb(x)
            issued += 1
    issue(15)
    for n in range(16):
        i = 15 - n
        a(f"s_waitcnt lgkmcnt({issued - (3*n + 3)})")
        af = AF + 4 * (i % 8)
        for t in range(7, (i >> 1) - 1, -1):
            z = 2 * t - i
            if z < -1: continue
            a(f"v_mfma_f32_16x16x32_bf16 v[{ACC+4*t}:{ACC+4*t+3}], v[{af}:{af+3}], v[{BF+4*(z+1)}:{BF+4*(z+1)+3}], v[{ACC+4*t}:{ACC+4*t+3}]")
        issue(3)
    stg(1)
    CPE = 'cpe' in OPTS
    def copy_store(NHS):
        srd(a, 8, 6, 7, WS_W1C + 2048 * W1C_PITCH)
        if IT8:
            assert not ITX
            for c in range(n8, -1, -1):
                if c > 0:
                    lab = a.newlabel("K1_CW")
                    a(f"s_cmp_lg_u32 s87, {c}")
                    a(f"s_cbranch_scc1 {lab}")
                    a(f"s_waitcnt vmcnt({NHS+c})")
                    a("s_branch K1_CWD")
                    a.label(lab)
                else:
                    a(f"s_waitcnt vmcnt({NHS})")
            a.label("K1_CWD")
        else:
            assert not ITX
            a(f"s_waitcnt vmcnt({NHS})")
        a("buffer_store_dwordx4 v[24:27], v2, s[8:11], s86 offen" + (" sc1" if 'cpsc1' in OPTS else ""))
        a(f"s_add_u32 s86, s86, {4*W1C_PITCH}")
        a("buffer_store_dwordx4 v[28:31], v2, s[8:11], s86 offen" + (" sc1" if 'cpsc1' in OPTS else ""))
    if ICP and CPE: copy_store(0)
    for o in range(4):
        lab = a.newlabel("K2_W")
        a(f"s_cmp_eq_u32 s27, {o}")
        a(f"s_cbranch_scc1 {lab}")
        a(f"s_sub_u32 s36, s27, {o+1}")
        a("s_and_b32 s36, s36, 3")
        a("s_lshl_b32 s36, s36, 10")
        a("v_add_u32 v22, s36, v5")
        for t in (2*o, 2*o+1):
            a(f"ds_write_b128 v22, v[{ACC+4*t}:{ACC+4*t+3}] offset:{C_PART + 3072*t}")
        a.label(lab)
    for w in range(4):
        lab = a.newlabel("K2_M")
        a(f"s_cmp_lg_u32 s27, {w}")
        a(f"s_cbranch_scc1 {lab}")
        for r in range(8): a(f"v_mov_b32 v{96+r}, v{ACC+8*w+r}")
        a.label(lab)
    a("v_subrev_u32 v8, s34, v23")
    a("s_mul_i32 s37, s27, 6144")
    a("v_add_u32 v22, s37, v5")
    a("v_lshlrev_b32 v14, 16, v160")
    a("s_waitcnt lgkmcnt(0)")
    stg(2)
    a("s_barrier")
    stg(3)
    for k in range(3):
        a(f"ds_read_b128 v[{32+8*k}:{35+8*k}], v22 offset:{C_PART + 1024*k}")
        a(f"ds_read_b128 v[{36+8*k}:{39+8*k}], v22 offset:{C_PART + 3072 + 1024*k}")
    a("s_waitcnt lgkmcnt(0)")
    stg(4)
    for r in range(8):
        a(f"v_add_f32 v{96+r}, v{96+r}, v{32+r}")
        a(f"v_add_f32 v{40+r}, v{40+r}, v{48+r}")
        a(f"v_add_f32 v{96+r}, v{96+r}, v{40+r}")
    for tt in range(2):
        y = 96 + 4 * tt; u = 16 + 2 * tt; x = 10 + 2 * tt
        a(f"v_cvt_pk_bf16_f32 v60, v{y}, v{y+1}")
        a(f"v_cvt_pk_bf16_f32 v61, v{y+2}, v{y+3}")
        a(f"v_lshlrev_b32 v62, 16, v{u}")
        a(f"v_and_b32 v63, 0xffff0000, v{u}")
        a(f"v_lshlrev_b32 v64, 16, v{u+1}")
        a(f"v_and_b32 v65, 0xffff0000, v{u+1}")
        for k in range(4): a(f"v_mul_f32 v{62+k}, v{62+k}, v14")
        a(f"v_cvt_pk_bf16_f32 v66, v62, v63")
        a(f"v_cvt_pk_bf16_f32 v67, v64, v65")
        for k in range(2):
            a(f"v_lshlrev_b32 v62, 16, v{60+k}")
            a(f"v_lshlrev_b32 v63, 16, v{66+k}")
            a(f"v_and_b32 v64, 0xffff0000, v{60+k}")
            a(f"v_and_b32 v65, 0xffff0000, v{66+k}")
            a(f"v_add_f32 v62, v62, v63")
            a(f"v_add_f32 v64, v64, v65")
            a(f"v_cvt_pk_bf16_f32 v{68+k}, v62, v64")
            a(f"v_lshlrev_b32 v62, 16, v{68+k}")
            a(f"v_lshlrev_b32 v63, 16, v{x+k}")
            a(f"v_and_b32 v64, 0xffff0000, v{68+k}")
            a(f"v_and_b32 v65, 0xffff0000, v{x+k}")
            a(f"v_add_f32 v62, v62, v63")
            a(f"v_add_f32 v64, v64, v65")
            a(f"v_cvt_pk_bf16_f32 v{70+2*tt+k}, v62, v64")
    if HTP:
        assert 'h4' in OPTS
        a("s_lshl_b32 s35, s33, 13")
        a("s_lshl_b32 s36, s27, 10")
        a("s_add_u32 s35, s35, s36")
        a(f"s_add_u32 s35, s35, {WS_HTP + 512}")
    else:
        a("s_lshl_b32 s35, s33, 12")
        a(f"s_add_u32 s35, s35, {WS_HT}")
    stg(5)
    H4 = 'h4' in OPTS
    NHS = 1 if H4 else 2
    if H4:
        a("v_and_b32 v9, 1, v3")
        a(f"v_mul_u32_u24 v9, {1016 if HTP else 504}, v9")
        a("v_add_u32 v8, v9, v8")
        a("v_permlane16_swap_b32 v70, v72")
        a("v_permlane16_swap_b32 v71, v73")
        a("buffer_store_dwordx4 v[70:73], v8, s[12:15], s35 offen" + (" sc1" if F4 else ""))
    else:
        a("buffer_store_dwordx2 v[70:71], v8, s[12:15], s35 offen" + (" sc1" if F4 else ""))
        a("buffer_store_dwordx2 v[72:73], v8, s[12:15], s35 offen offset:512" + (" sc1" if F4 else ""))
    if ICP and not CPE: copy_store(NHS)
    if F4:
        a(f"s_waitcnt vmcnt({2 if (ICP and not CPE) else 0})")
        st(6)
        stg(6)
        ln2_tail(a, st if 'st4' in OPTS else None)
    if KT:
        a("s_waitcnt vmcnt(0) lgkmcnt(0)")
        if not F4:
            st(6)
            stg(6)
        st_flush()
    a("s_branch K1_END")
    a.label("K1_PF")
    a("s_waitcnt lgkmcnt(0)")
    if 'pfwg' in OPTS:
        a("v_mov_b32 v7, 0")
        a.label("K1_PFW")
        a("ds_read_b32 v9, v7")
        a("s_waitcnt lgkmcnt(0)")
        a("v_readfirstlane_b32 s37, v9")
        a("s_cmp_ge_u32 s37, 8")
        a("s_cbranch_scc1 K1_PFG")
        a("s_sleep 2")
        a("s_branch K1_PFW")
        a.label("K1_PFG")
    elif 'pfgo' in OPTS:
        srd(a, 48, 56, 57, 256)
        a("v_mov_b32 v7, 0")
        a.label("K1_PFW")
        a("buffer_load_dword v9, v7, s[48:51], 0 offen offset:128 sc1")
        a("s_waitcnt vmcnt(0)")
        a("v_readfirstlane_b32 s37, v9")
        a("s_cmp_lg_u32 s37, 0")
        a("s_cbranch_scc1 K1_PFG")
        a("s_sleep 2")
        a("s_branch K1_PFW")
        a.label("K1_PFG")
    gen_prefetch(a, 1, 0, "K1_END")
    a.label("K1_END")
    kst_end(a, 0, 256)
    a("s_endpgm")
    return name, 164, K12C_LDS
```

```python
from gen import *
import os
OPT = os.environ.get('GOPT', '').split(',')
def opt_int(name, default):
    for o in OPT:
        if o.startswith(name + '='): return int(o.split('=')[1])
    return default
WS_W2D = 0x4000000
W2D_PITCH = 2048
WS_FL = 0x4900000
WS_XB = 0x4A00000
WS_END3 = WS_XB + 64 * 16 * 18 * 2048
SK = opt_int('sk', 4)
MF = 9 if SK == 4 else 6
NMT = 36 // MF
NSTG = 72 // SK
K5S_NWG = NMT * 16 * SK
S_NS = opt_int('s5ns', 4)
S_W = 16384
S_A = 2 * MF * 1024
S_ACT0 = S_NS * S_W
K5S_LDS = S_ACT0 + S_NS * S_A
NT_ = 2 * MF
NKEEP = -(-NT_ // SK)

def gen_k5s(a):
    name = "k5_kernel"
    NS = S_NS
    kernel_head(a, name)
    kst_begin(a)
    CLK = 'clk' in OPT
    NG = K5S_NWG + PF[5].nwg
    a(f"s_cmp_ge_u32 s2, {NG}")
    a("s_cbranch_scc1 K5_END")
    if PF[5].nwg:
        a(f"s_cmp_ge_u32 s2, {K5S_NWG}")
        a("s_cbranch_scc1 K5_PREF")
    a("s_load_dwordx2 s[6:7], s[0:1], 112")
    a("s_load_dwordx4 s[16:19], s[0:1], 80")
    a("s_load_dwordx2 s[20:21], s[0:1], 96")
    a("v_lshrrev_b32 v2, 6, v0")
    a("v_readfirstlane_b32 s27, v2")
    a("v_and_b32 v1, 63, v0")
    a("v_lshrrev_b32 v3, 4, v1")
    a("s_and_b32 s22, s2, 7")
    a("s_lshr_b32 s23, s2, 3")
    if SK == 4:
        a("s_lshr_b32 s24, s22, 1")
        a("s_and_b32 s25, s22, 1")
        a("s_and_b32 s5, s23, 3")
        a("s_lshr_b32 s4, s23, 2")
        a("s_lshl_b32 s26, s25, 3")
        a("s_add_u32 s4, s4, s26")
    else:
        a("s_lshr_b32 s24, s22, 2")
        a("s_and_b32 s25, s22, 3")
        a("s_mul_i32 s4, s23, 43")
        a("s_lshr_b32 s4, s4, 8")
        a("s_mul_i32 s5, s4, 6")
        a("s_sub_u32 s5, s23, s5")
        a("s_lshl_b32 s26, s25, 2")
        a("s_add_u32 s4, s4, s26")
    a(f"s_mul_i32 s3, s4, {NMT}")
    a("s_add_u32 s3, s3, s5")
    a("s_waitcnt lgkmcnt(0)")
    srd(a, 12, 6, 7, WS_END3)
    a("s_cmp_ge_u32 s27, 4")
    a("s_cbranch_scc1 K5_PROD")

    a("v_bfe_u32 v8, v1, 2, 2")
    a("v_and_b32 v9, 3, v1")
    a("v_and_b32 v10, 1, v3")
    a("v_lshl_add_u32 v10, v10, 2, v8")
    a("v_lshl_add_u32 v11, v3, 2, v8")
    a("s_lshl_b32 s30, s27, 1")
    a("v_xor_b32 v10, s30, v10")
    a("v_lshlrev_b32 v11, 8, v11")
    a("v_lshl_add_u32 v11, v9, 3, v11")
    a("v_lshl_add_u32 v4, v10, 5, v11")
    a("v_xor_b32 v10, 1, v10")
    a("v_lshl_add_u32 v5, v10, 5, v11")
    a("v_lshlrev_b32 v8, 4, v1")
    a(f"v_add_u32 v8, {S_ACT0}, v8")
    a(f"v_add_u32 v9, {2*S_A}, v8")
    if NS > 4: a(f"v_add_u32 v6, {4*S_A}, v8")
    if NS > 4: a(f"v_add_u32 v7, {65536}, v4"); a(f"v_add_u32 v15, {65536}, v5")
    SZ = 4 * MF + 8
    SET = [32, 32 + SZ]
    ACC = 32 + 2 * SZ
    HV = ACC + 4 * NT_
    BV = HV + 4 * NKEEP
    for r in range(4 * NT_): a(f"v_mov_b32 v{ACC+r}, 0")
    def reads(n):
        sg, kb = divmod(n, 2)
        sl = sg % NS
        b = SET[n % 2]
        va = (8, 9, 6)[sl // 2]
        vw = (4, 5) if sl < 4 else (7, 15)
        wo = (sl % 4) * S_W
        def wr(jj): return [(f"ds_read_b64_tr_b16 v[{b+4*MF+4*jj+2*h}:{b+4*MF+4*jj+2*h+1}], v{vw[jj]} offset:{wo + kb*8192 + h*4096}", ('w', jj, h)) for h in range(2)]
        def ar(dd): return [(f"ds_read_b128 v[{b+4*dd}:{b+4*dd+3}], v{va} offset:{(sl%2)*S_A + (kb*MF + dd)*1024}", ('a', dd))]
        out = wr(0) + ar(0) + wr(1) + ar(1)
        for dd in range(2, MF): out += ar(dd)
        return out
    NRD = MF + 4
    NPRE = opt_int('npre5', 4 if SK == 4 else 2)
    class Q: pass
    q = Q(); q.issued = 0; q.done = 0; q.pos = {}
    def rd_issue(n, item):
        a(item[0]); q.pos[(n % 2, item[1])] = q.issued; q.issued += 1
    def need(keys):
        p = max(q.pos[k] for k in keys)
        if p >= q.done:
            a(f"s_waitcnt lgkmcnt({min(15, q.issued - 1 - p)})")
            q.done = p + 1 if q.issued - 1 - p <= 15 else q.issued - 15
    def half(n):
        b = SET[n % 2]
        nxt = reads(n + 1) if n + 1 < 2 * NSTG else []
        odd = n % 2 == 1
        k = 0
        for dd in range(MF):
            for jj in range(2):
                if odd and k == NPRE and nxt:
                    a("s_waitcnt lgkmcnt(0)"); q.done = q.issued
                    a("s_barrier")
                need([(n % 2, ('a', dd)), (n % 2, ('w', jj, 0)), (n % 2, ('w', jj, 1))])
                acc = ACC + 4 * (2 * dd + jj)
                a(f"v_mfma_f32_16x16x32_bf16 v[{acc}:{acc+3}], v[{b+4*dd}:{b+4*dd+3}], v[{b+4*MF+4*jj}:{b+4*MF+4*jj+3}], v[{acc}:{acc+3}]")
                if nxt and (not odd or k >= NPRE):
                    rd_issue(n + 1, nxt.pop(0))
                    left = 2 * MF - 1 - k
                    while len(nxt) > left: rd_issue(n + 1, nxt.pop(0))
                k += 1
        for it in nxt: rd_issue(n + 1, it)
    a("s_barrier")
    if CLK:
        a("s_memtime s[64:65]"); a("s_memrealtime s[66:67]")
        a("s_waitcnt lgkmcnt(0)")
    for it in reads(0): rd_issue(0, it)
    a("v_and_b32 v10, 15, v1")
    a("v_lshlrev_b32 v10, 1, v10")
    HP = 8192 if HTP else 4096
    a(f"v_lshl_add_u32 v11, v3, {15 if HTP else 14}, v10")
    a("s_lshl_b32 s30, s4, 7")
    a("s_lshl_b32 s31, s27, 5")
    a("s_add_u32 s30, s30, s31")
    a("s_and_b32 s31, s24, 1")
    a("s_lshl_b32 s31, s31, 4")
    a("s_add_u32 s30, s30, s31")
    a("s_mov_b32 s38, s30")
    a("s_lshl_b32 s30, s30, 1")
    srd(a, 16, 18, 19, 2048 * 2)
    a(f"buffer_load_ushort v{BV}, v10, s[16:19], s30 offen")
    a(f"s_mul_i32 s31, s5, {16*MF}")
    a("s_lshr_b32 s33, s24, 1")
    a("s_lshl_b32 s33, s33, 4")
    a("s_add_u32 s31, s31, s33")
    a("s_mov_b32 s39, s31")
    a(f"s_lshl_b32 s31, s31, {13 if HTP else 12}")
    if HTP:
        a("s_lshr_b32 s33, s30, 9")
        a("s_lshl_b32 s33, s33, 10")
        a("s_and_b32 s30, s30, 511")
        a("s_add_u32 s30, s30, s33")
    a("s_add_u32 s30, s30, s31")
    a(f"s_add_u32 s30, s30, {WS_HTP + 512 if HTP else WS_HT}")
    for i in range(NKEEP):
        for r in range(4):
            a(f"buffer_load_ushort v{HV+4*i+r}, v11, s[12:15], s30 offen")
            if r < 3: a(f"s_add_u32 s30, s30, {HP}")
        if i < NKEEP - 1: a(f"s_add_u32 s30, s30, {(8*SK - 3)*HP}")
    nl = (NSTG - 1) // NS
    if NS % 2 == 0 or True:
        XW = opt_int('xwarm', 0)
        if XW:
            a("v_lshrrev_b32 v12, 3, v1")
            a("v_cmp_le_u32 vcc, 3, v12")
            a("v_addc_co_u32 v12, vcc, 0, v12, vcc")
            a("v_and_b32 v13, 7, v1")
            a("v_lshlrev_b32 v13, 4, v13")
            a("v_lshl_add_u32 v12, v12, 7, v13")
            a(f"s_mul_i32 s40, s3, {4*SK}")
            a("s_add_u32 s40, s40, s27")
            a("s_xor_b32 s41, s24, 1")
            a("s_lshl_b32 s41, s41, 2")
            a("s_add_u32 s40, s40, s41")
            a(f"s_mul_i32 s40, s40, {NT_}")
            a("s_add_u32 s40, s40, s24")
            a("s_lshl_b32 s40, s40, 11")
            a(f"s_add_u32 s40, s40, {WS_XB}")
        a(f"s_movk_i32 s31, {nl}")
        a.label("K5_CLOOP")
        if XW:
            assert SK == 2
            a(f"s_cmp_lg_u32 s31, {XW}")
            a("s_cbranch_scc1 K5_NOXW")
            for i in range(NKEEP):
                a("buffer_load_dword v13, v12, s[12:15], s40 offen sc1")
                if i < NKEEP - 1: a("s_add_u32 s40, s40, 4096")
            a.label("K5_NOXW")
        q.done = q.issued - NRD
        for n in range(2 * NS): half(n)
        a("s_sub_u32 s31, s31, 1")
        a("s_cmp_lg_u32 s31, 0")
        a("s_cbranch_scc1 K5_CLOOP")
        q.done = q.issued - NRD
        for n in range(2 * NS * nl, 2 * NSTG): half(n)
    a("s_waitcnt vmcnt(0)")
    if CLK:
        a("s_memtime s[68:69]"); a("s_memrealtime s[70:71]")
        a("s_waitcnt lgkmcnt(0)")
        a("s_sub_u32 s68, s68, s64")
        a("s_sub_u32 s70, s70, s66")
        a("v_mov_b32 v24, s68"); a("v_mov_b32 v25, s70"); a("v_mov_b32 v26, s66"); a("v_mov_b32 v27, 0")
        a("s_lshl_b32 s72, s2, 6")
        a("s_lshl_b32 s73, s27, 4")
        a("s_add_u32 s72, s72, s73")
        a(f"s_add_u32 s72, s72, {0x2900000 + 0x10000}")
        a("v_mov_b32 v28, 0")
        a("buffer_store_dwordx4 v[24:27], v28, s[12:15], s72 offen")

    a("v_lshrrev_b32 v10, 3, v1")
    a("v_cmp_le_u32 vcc, 3, v10")
    a("v_addc_co_u32 v10, vcc, 0, v10, vcc")
    a("v_and_b32 v11, 7, v1")
    a("v_lshlrev_b32 v11, 4, v11")
    a("v_lshl_add_u32 v10, v10, 7, v11")
    a(f"s_mul_i32 s30, s3, {4*SK}")
    a("s_add_u32 s30, s30, s27")
    a("s_lshl_b32 s34, s30, 7")
    a(f"s_add_u32 s34, s34, {WS_FL}")
    a(f"s_mul_i32 s30, s30, {NT_*2048}")
    a(f"s_add_u32 s30, s30, {WS_XB}")
    SRCS = 4 * NT_ * 2048
    srd(a, 16, 20, 21, 2048 * 576 * 2)
    a("v_and_b32 v9, 15, v1")
    a("v_lshlrev_b32 v12, 9, v9")
    a("v_mul_u32_u24 v9, 1152, v9")
    a("v_lshl_add_u32 v9, v3, 3, v9")
    a("s_mul_i32 s38, s38, 1152")
    a("s_lshl_b32 s39, s39, 1")
    a("s_add_u32 s38, s38, s39")
    a(f"v_lshlrev_b32 v{BV}, 16, v{BV}")
    NOX = 'nox' in OPT
    XST = 'xst' in OPT
    SENT = 'sent' in OPT
    XLD = {0: "sc1", 1: "sc0 sc1", 2: "sc1 nt", 3: "sc0 sc1 nt"}[opt_int('xld', 0)]
    XSTO = {0: "sc1", 1: "sc0 sc1", 2: "sc1 nt", 3: "sc0 sc1 nt"}[opt_int('xsto', 0)]
    XDL = opt_int('xdl', -1)
    def xst(i):
        if XST: a(f"s_memrealtime s[{40+2*i}:{41+2*i}]")
    xst(0)
    for kq in range(SK):
        if kq < SK - 1:
            a(f"s_cmp_lg_u32 s24, {kq}")
            a(f"s_cbranch_scc1 K5_X{kq+1}")
        keep = [t for t in range(NT_) if t % SK == kq]
        send = [t for t in range(NT_) if t % SK != kq]
        a(f"s_add_u32 s31, s30, {kq*SRCS}")
        prev = 0
        for t in send:
            while (t - prev) >= 2:
                a(f"s_add_u32 s31, s31, {2*2048}"); prev += 2
            acc = ACC + 4 * t
            if SENT:
                for r_ in range(4): a(f"v_min_u32 v{acc+r_}, -2, v{acc+r_}")
            if not NOX: a(f"buffer_store_dwordx4 v[{acc}:{acc+3}], v10, s[12:15], s31 offen offset:{(t-prev)*2048} {XSTO}")
        xst(1)
        if SENT and XDL == 0: a("s_waitcnt vmcnt(0)")
        if SENT and XDL > 0: a(f"s_sleep {XDL}")
        if SENT:
            srcs = [s_ for s_ in range(SK) if s_ != kq]
            NSRC = SK - 1
            nk = len(keep)
            a("s_mov_b32 s36, 0x100000")
            a.label(f"K5_P{kq}")
            for i, t in enumerate(keep):
                for k, s_ in enumerate(srcs):
                    off = s_ * SRCS + t * 2048
                    r = 32 + 4 * (NSRC * i + k)
                    a(f"s_add_u32 s31, s30, {off}")
                    a(f"buffer_load_dwordx4 v[{r}:{r+3}], v10, s[12:15], s31 offen {XLD}")
            a("s_sub_u32 s36, s36, 1")
            a("s_cmp_eq_u32 s36, 0")
            a("s_waitcnt vmcnt(0)")
            a(f"s_cbranch_scc1 K5_G{kq}")
            nw = 4 * NSRC * nk
            a("v_max3_u32 v13, v32, v33, v34")
            j = 3
            while j < nw:
                if j + 1 < nw: a(f"v_max3_u32 v13, v13, v{32+j}, v{33+j}"); j += 2
                else: a(f"v_max_u32 v13, v13, v{32+j}"); j += 1
            a("v_cmp_eq_u32 vcc, -1, v13")
            a("s_cmp_lg_u64 vcc, 0")
            a(f"s_cbranch_scc1 K5_P{kq}")
            a.label(f"K5_G{kq}")
            xst(2); xst(3)
            for i, t in enumerate(keep):
                acc = ACC + 4 * t
                if i == 0: xst(4)
                if i == nk - 1: xst(5)
                for k in range(NSRC):
                    r = 32 + 4 * (NSRC * i + k)
                    a(f"v_pk_add_f32 v[{acc}:{acc+1}], v[{acc}:{acc+1}], v[{r}:{r+1}]")
                    a(f"v_pk_add_f32 v[{acc+2}:{acc+3}], v[{acc+2}:{acc+3}], v[{r+2}:{r+3}]")
                O = 24 + 2 * (i % 2)
                for p in range(2):
                    x = 16 + 4 * p
                    a(f"v_cvt_pk_bf16_f32 v{x+2}, v{acc+2*p}, v{acc+2*p+1}")
                    a(f"v_lshlrev_b32 v{x}, 16, v{x+2}")
                    a(f"v_and_b32 v{x+1}, 0xffff0000, v{x+2}")
                    a(f"v_add_f32 v{x}, v{x}, v{BV}")
                    a(f"v_add_f32 v{x+1}, v{x+1}, v{BV}")
                    a(f"v_cvt_pk_bf16_f32 v{x+2}, v{x}, v{x+1}")
                    a(f"v_lshlrev_b32 v{x}, 16, v{x+2}")
                    a(f"v_and_b32 v{x+1}, 0xffff0000, v{x+2}")
                    a(f"v_lshlrev_b32 v{x+2}, 16, v{HV+4*i+2*p}")
                    a(f"v_lshlrev_b32 v{x+3}, 16, v{HV+4*i+2*p+1}")
                    a(f"v_add_f32 v{x}, v{x}, v{x+2}")
                    a(f"v_add_f32 v{x+1}, v{x+1}, v{x+3}")
                    a(f"v_cvt_pk_bf16_f32 v{O+p}, v{x}, v{x+1}")
                a(f"buffer_store_dwordx2 v[{O}:{O+1}], v9, s[16:19], s38 offen offset:{16*SK*i}")
            if XST:
                a("s_waitcnt vmcnt(0)")
                xst(6)
                a("s_waitcnt lgkmcnt(0)")
                for i in range(7): a(f"v_mov_b32 v{32+i}, s{40+2*i}")
                a(f"v_mov_b32 v39, s36")
                a("s_lshl_b32 s72, s2, 2")
                a("s_add_u32 s72, s72, s27")
                a("s_lshl_b32 s72, s72, 5")
                a(f"s_add_u32 s72, s72, {0x2800000}")
                a("v_mov_b32 v28, 0")
                a("s_mov_b64 exec, 1")
                a("buffer_store_dwordx4 v[32:35], v28, s[12:15], s72 offen")
                a("buffer_store_dwordx4 v[36:39], v28, s[12:15], s72 offen offset:16")
                a("s_mov_b64 exec, -1")
            a("s_branch K5_END")
            if kq < SK - 1: a.label(f"K5_X{kq+1}")
            continue
        a("s_waitcnt vmcnt(0)")
        xst(2)
        a("v_mov_b32 v13, 1")
        a("v_mov_b32 v14, 0")
        a(f"s_add_u32 s31, s34, {kq*512}")
        a("s_mov_b64 exec, 1")
        a("buffer_store_dword v13, v14, s[12:15], s31 offen sc1")
        a(f"s_mov_b64 exec, {(1 << SK) - 1}")
        needm = ((1 << SK) - 1) & ~(1 << kq)
        a("s_mov_b32 s36, 0x100000")
        a.label(f"K5_P{kq}")
        a("s_sub_u32 s36, s36, 1")
        a("s_cmp_eq_u32 s36, 0")
        a(f"s_cbranch_scc1 K5_G{kq}")
        a("buffer_load_dword v13, v12, s[12:15], s34 offen sc1")
        a("s_waitcnt vmcnt(0)")
        a("v_cmp_ne_u32 vcc, 0, v13")
        a(f"s_and_b32 s35, vcc_lo, {needm}")
        a(f"s_cmp_eq_u32 s35, {needm}")
        a(f"s_cbranch_scc1 K5_G{kq}")
        a("s_sleep 1")
        a(f"s_branch K5_P{kq}")
        a.label(f"K5_G{kq}")
        a("s_mov_b64 exec, -1")
        xst(3)
        srcs = [s_ for s_ in range(SK) if s_ != kq]
        NSRC = SK - 1
        for i, t in enumerate(keep):
            for k, s_ in enumerate(srcs):
                off = s_ * SRCS + t * 2048
                r = 32 + 4 * (NSRC * i + k)
                a(f"s_add_u32 s31, s30, {off}")
                a(f"buffer_load_dwordx4 v[{r}:{r+3}], v10, s[12:15], s31 offen sc1")
        nk = len(keep)
        for i, t in enumerate(keep):
            acc = ACC + 4 * t
            a(f"s_waitcnt vmcnt({NSRC*(nk-1-i) + i})")
            if i == 0: xst(4)
            if i == nk - 1: xst(5)
            for k in range(NSRC):
                r = 32 + 4 * (NSRC * i + k)
                a(f"v_pk_add_f32 v[{acc}:{acc+1}], v[{acc}:{acc+1}], v[{r}:{r+1}]")
                a(f"v_pk_add_f32 v[{acc+2}:{acc+3}], v[{acc+2}:{acc+3}], v[{r+2}:{r+3}]")
            O = 24 + 2 * (i % 2)
            for p in range(2):
                x = 16 + 4 * p
                a(f"v_cvt_pk_bf16_f32 v{x+2}, v{acc+2*p}, v{acc+2*p+1}")
                a(f"v_lshlrev_b32 v{x}, 16, v{x+2}")
                a(f"v_and_b32 v{x+1}, 0xffff0000, v{x+2}")
                a(f"v_add_f32 v{x}, v{x}, v{BV}")
                a(f"v_add_f32 v{x+1}, v{x+1}, v{BV}")
                a(f"v_cvt_pk_bf16_f32 v{x+2}, v{x}, v{x+1}")
                a(f"v_lshlrev_b32 v{x}, 16, v{x+2}")
                a(f"v_and_b32 v{x+1}, 0xffff0000, v{x+2}")
                a(f"v_lshlrev_b32 v{x+2}, 16, v{HV+4*i+2*p}")
                a(f"v_lshlrev_b32 v{x+3}, 16, v{HV+4*i+2*p+1}")
                a(f"v_add_f32 v{x}, v{x}, v{x+2}")
                a(f"v_add_f32 v{x+1}, v{x+1}, v{x+3}")
                a(f"v_cvt_pk_bf16_f32 v{O+p}, v{x}, v{x+1}")
            a(f"buffer_store_dwordx2 v[{O}:{O+1}], v9, s[16:19], s38 offen offset:{16*SK*i}")
        if XST:
            a("s_waitcnt vmcnt(0)")
            xst(6)
            a("s_waitcnt lgkmcnt(0)")
            for i in range(7): a(f"v_mov_b32 v{32+i}, s{40+2*i}")
            a(f"v_mov_b32 v39, s36")
            a("s_lshl_b32 s72, s2, 2")
            a("s_add_u32 s72, s72, s27")
            a("s_lshl_b32 s72, s72, 5")
            a(f"s_add_u32 s72, s72, {0x2800000}")
            a("v_mov_b32 v28, 0")
            a("s_mov_b64 exec, 1")
            a("buffer_store_dwordx4 v[32:35], v28, s[12:15], s72 offen")
            a("buffer_store_dwordx4 v[36:39], v28, s[12:15], s72 offen offset:16")
            a("s_mov_b64 exec, -1")
        a("s_branch K5_END")
        if kq < SK - 1: a.label(f"K5_X{kq+1}")

    a.label("K5_PROD")
    a("s_sub_u32 s28, s27, 4")
    srd(a, 8, 16, 17, 4608 * 4096)
    a("s_movk_i32 s30, 4096")
    a("s_lshl_b32 s32, s4, 8")
    if 'nocopy5' not in OPT:
        a("s_and_b32 s31, s4, 3")
        a("s_cmp_lg_u32 s31, 1")
        a("s_cbranch_scc1 K5_NOCP")
        a(f"s_movk_i32 s30, {W2D_PITCH}")
        a("s_lshr_b32 s32, s4, 2")
        a("s_lshl_b32 s32, s32, 9")
        a(f"s_add_u32 s32, s32, {WS_W2D}")
        srd(a, 8, 6, 7, WS_END3)
        a.label("K5_NOCP")
    a("s_lshl_b32 s57, s30, 6")
    a(f"s_mul_i32 s58, s24, {NSTG}")
    a("s_mul_i32 s59, s25, 9")
    a("s_add_u32 s58, s58, s59")
    a("s_mul_i32 s60, s58, s57")
    a("s_add_u32 s32, s32, s60")
    a(f"s_mul_i32 s33, s58, {12*ABLK}")
    a(f"s_add_u32 s33, s33, {WS_G - 4096}")
    a(f"s_sub_u32 s58, {NSTG}, s59")
    a(f"s_mul_i32 s63, s57, {NSTG}")
    a("v_and_b32 v4, 15, v1")
    a("v_lshrrev_b32 v5, 1, v4")
    a("v_and_b32 v4, 1, v4")
    a("s_lshl_b32 s29, s28, 4")
    a("v_add_u32 v6, s29, v3")
    a("v_mul_lo_u32 v6, v6, s30")
    a("v_lshl_add_u32 v6, v4, 4, v6")
    for qq in range(4):
        a(f"v_or_b32 v7, {(qq & 1) << 2}, v3")
        a("v_xor_b32 v7, v7, v5")
        a(f"v_lshl_add_u32 v{10+qq}, v7, 5, v6")
        if qq:
            a(f"s_mul_i32 s31, s30, {4*qq}")
            a(f"s_sub_u32 s31, s31, {1024*qq}")
            a(f"v_add_u32 v{10+qq}, s31, v{10+qq}")
    a("v_lshrrev_b32 v16, 3, v1")
    a("v_lshlrev_b32 v16, 10, v16")
    a("v_and_b32 v17, 7, v1")
    a("v_lshl_add_u32 v16, v17, 4, v16")
    if SK == 4:
        a("s_mul_i32 s34, s28, 5")
        a("s_lshl_b32 s35, s28, 2")
        a("s_add_u32 s35, s35, 2")
        a("s_cmp_lt_u32 s28, 2")
        a("s_cselect_b32 s34, s34, s35")
        NAP = 5
    else:
        a("s_mul_i32 s34, s28, 3")
        NAP = 3
    a(f"s_mul_i32 s61, s5, {MF}")
    for i in range(NAP):
        a(f"s_add_u32 s35, s34, {i}")
        a(f"s_cmp_ge_u32 s35, {MF}")
        a("s_cselect_b32 s36, 1, 0")
        a(f"s_mul_i32 s37, s36, {MF}")
        a("s_sub_u32 s35, s35, s37")
        a("s_add_u32 s35, s35, s61")
        a("s_mul_i32 s37, s35, 43")
        a("s_lshr_b32 s37, s37, 8")
        a("s_mul_i32 s62, s37, 6")
        a("s_sub_u32 s35, s35, s62")
        a("s_cmp_ge_u32 s35, 3")
        a("s_addc_u32 s35, s35, 0")
        a("s_lshl_b32 s35, s35, 7")
        a("s_lshl_b32 s37, s37, 1")
        a("s_add_u32 s37, s37, s36")
        a(f"s_lshl_b32 s37, s37, 13")
        a("s_add_u32 s35, s35, s37")
        a(f"s_add_u32 s35, s35, {4096 - 1024*(i % 4)}")
        a(f"v_add_u32 v{17+i}, s35, v16")
    for s_ in range(NS):
        a("s_lshl_b32 s30, s28, 12")
        a(f"s_add_u32 s{40+s_}, s30, {s_*S_W}")
        a("s_lshl_b32 s30, s34, 10")
        a(f"s_add_u32 s{46+s_}, s30, {S_ACT0 + s_*S_A}")
        a(f"s_add_u32 s{66+s_}, s{46+s_}, 4096")
    def issue(k, na):
        sl = k % NS
        a(f"s_mov_b32 m0, s{40+sl}")
        for qq in range(4): a(f"buffer_load_dwordx4 v{10+qq}, s[8:11], s32 offen offset:{1024*qq} lds")
        a(f"s_mov_b32 m0, s{46+sl}")
        for i in range(min(na, 4)): a(f"buffer_load_dwordx4 v{17+i}, s[12:15], s33 offen offset:{1024*i} lds")
        if na == 5:
            a(f"s_mov_b32 m0, s{66+sl}")
            a("buffer_load_dwordx4 v21, s[12:15], s33 offen lds")
        a("s_add_u32 s32, s32, s57")
        a(f"s_add_u32 s33, s33, {12*ABLK}")
        a("s_sub_u32 s58, s58, 1")
        a("s_cmp_eq_u32 s58, 0")
        a("s_cselect_b32 s59, s63, 0")
        a(f"s_cselect_b32 s64, {NSTG*12*ABLK}, 0")
        a("s_sub_u32 s32, s32, s59")
        a("s_sub_u32 s33, s33, s64")
    EB = opt_int('eb5', 2)
    variants = (5, 4) if SK == 4 else (3,)
    if SK == 4:
        a("s_cmp_ge_u32 s28, 2")
        a("s_cbranch_scc1 K5_PR4")
    for na in variants:
        PPS = 4 + na
        for k in range(EB): issue(k, na)
        a(f"s_waitcnt vmcnt({(EB-1)*PPS})")
        a("s_barrier")
        for k in range(EB, NS): issue(k, na)
        for k in range(1, NSTG):
            a(f"s_waitcnt vmcnt({(min(k + NS - 2, NSTG - 1) - k) * PPS})")
            a("s_barrier")
            if k + NS - 1 < NSTG: issue(k + NS - 1, na)
        a("s_branch K5_END")
        if na == 5: a.label("K5_PR4")
    if PF[5].nwg:
        a.label("K5_PREF")
        gen_prefetch(a, 5, K5S_NWG, "K5_END")
    a.label("K5_END")
    kst_end(a, 4, NG)
    a("s_endpgm")
    return name, BV + 4, K5S_LDS
```

```python
import sys
sys.path.insert(0, 'gen')
from asmlib import *

NAME = "sequential_preLN__ssm_conv_s4d__mixer_token_mlp__prompt"
L, D, NM, F = 2048, 576, 128, 4608
WS_UT = 0x0
WS_XT = 0x240000
WS_R  = 0x480000
RSTRIDE = 8256; ROFF = 4128
WS_HT = 0x910000
HTP = 'htp' in __import__('os').environ.get('GOPT', '').split(',')
WS_HTP = 0x480000
WS_HN = 0xB50000
WS_G  = 0xE50000
WS_W1C = 0x1510000
W1C_PITCH = 4608
WS_W2C = 0x1E10000
W2C_PITCH = 1024
WS_CNT = 0x2290000
WS_END = 0x22A0000
ABLK = 8192
LOG2E = 0x3fb8aa3b
INV2PI = 0x3e22f983

def fhex(x):
    import struct
    return "0x%08x" % struct.unpack('<I', struct.pack('<f', x))[0]

def srd(a, s, lo, hi, size):
    a(f"s_mov_b32 s{s}, s{lo} ; srd")
    a(f"s_and_b32 s{s+1}, s{hi}, 0xffff ; srd")
    a(f"s_mov_b32 s{s+2}, {hex(size)} ; srd")
    a(f"s_mov_b32 s{s+3}, 0x00020000 ; srd")

def lint_srd(lines, name):
    import re
    tag = {}
    pend = set()
    bad = 0
    for k, t in lines:
        if k != 'i': continue
        it = Ins(t)
        if it.mn == 's_waitcnt' and 'lgkmcnt(0)' in t: pend = set()
        if it.mn.startswith('s_load'):
            for r in it.wr:
                if r in pend: print(f"LINT {name}: s_load into {r} while a load to it is pending: {t}"); bad += 1
            pend |= set(it.wr)
        if it.mn.startswith('buffer_'):
            q = [o for o in it.ops if re.match(r'^s\[\d+:\d+\]$', o)]
            if q:
                regs = regs_of(q[0])
                for r in regs:
                    if tag.get(r) != 'srd': print(f"LINT {name}: {r} of SRD not from srd(): {t}"); bad += 1
                    if r in pend: print(f"LINT {name}: {r} pending s_load: {t}"); bad += 1
        for r in it.wr:
            if r[0] == 's': tag[r] = 'srd' if '; srd' in t else 'other'
    return bad

def kernel_head(a, name):
    a.raw(f".globl {name}\n.p2align 8\n.type {name},@function\n{name}:")

import os
STAMP = 'kst' in os.environ.get('GOPT', '').split(',')
STAMP_BASE = 0x3000000
_KB_COUNT = [0]
def kst_begin(a):
    _KB_COUNT[0] += 1
    for o in os.environ.get('GOPT', '').split(','):
        if o.startswith('dly%d=' % _KB_COUNT[0]): a("s_sleep %d" % int(o.split('=')[1]))
    if not STAMP: return
    a("s_memrealtime s[94:95]")
    a("v_readfirstlane_b32 s93, v0")
def kst_end(a, kidx, nwg):
    if not STAMP: return
    lab = f"KST_{kidx}"
    a(f"s_cmp_ge_u32 s2, {nwg}")
    a(f"s_cbranch_scc1 {lab}")
    a("s_mov_b64 exec, -1")
    a("s_waitcnt vmcnt(0) lgkmcnt(0)")
    a("s_lshr_b32 s86, s93, 6")
    a("s_memrealtime s[92:93]")
    a("s_load_dwordx2 s[6:7], s[0:1], 112")
    a("s_waitcnt lgkmcnt(0)")
    srd(a, 88, 6, 7, 0x4000000)
    a("s_lshl_b32 s86, s86, 3")
    a("v_mov_b32 v2, s86")
    a(f"s_lshl_b32 s87, s2, 7")
    a(f"s_add_u32 s87, s87, {STAMP_BASE + kidx * 0x20000}")
    a("v_mov_b32 v0, s94")
    a("v_mov_b32 v1, s92")
    a("s_mov_b64 exec, 1")
    a("buffer_store_dwordx2 v[0:1], v2, s[88:91], s87 offen")
    a.label(lab)

def kernel_desc(name, vgpr, sgpr=96, accum=None):
    acc = accum if accum is not None else ((vgpr + 3) // 4) * 4
    return f""".amdhsa_kernel {name}
  .amdhsa_next_free_vgpr {vgpr}
  .amdhsa_next_free_sgpr {sgpr}
  .amdhsa_accum_offset {acc}
  .amdhsa_group_segment_fixed_size 0
  .amdhsa_kernarg_size 120
  .amdhsa_user_sgpr_count 2
  .amdhsa_user_sgpr_kernarg_segment_ptr 1
  .amdhsa_system_sgpr_workgroup_id_x 1
.end_amdhsa_kernel
"""


DYN = 'dyn' in os.environ.get('GOPT', '').split(',')
def dyn_assign(a, kidx, quota, lds_off, swave, sws=(6, 7)):
    if not DYN: return
    L = f"DYN{kidx}"
    a(f"s_cmp_lg_u32 s{swave}, 0")
    a(f"s_cbranch_scc1 {L}_W")
    a("s_getreg_b32 s60, hwreg(HW_REG_XCC_ID, 0, 3)")
    srd(a, 64, sws[0], sws[1], WS_END)
    a("s_mov_b32 s61, 0")
    a("v_mov_b32 v61, 0")
    a("s_mov_b64 exec, 1")
    a.label(f"{L}_L")
    a("s_add_u32 s62, s60, s61")
    a("s_and_b32 s62, s62, 7")
    a("s_lshl_b32 s63, s62, 8")
    a(f"s_add_u32 s63, s63, {WS_CNT + kidx * 2048}")
    a("v_mov_b32 v60, 1")
    a("buffer_atomic_add v60, v61, s[64:67], s63 offen sc0")
    a("s_waitcnt vmcnt(0)")
    a("v_readfirstlane_b32 s68, v60")
    a(f"s_cmp_lt_u32 s68, {quota}")
    a(f"s_cbranch_scc1 {L}_D")
    a("s_add_u32 s61, s61, 1")
    a("s_cmp_lt_u32 s61, 8")
    a(f"s_cbranch_scc1 {L}_L")
    a.label(f"{L}_D")
    a("s_lshl_b32 s68, s68, 3")
    a("s_add_u32 s68, s68, s62")
    a("v_mov_b32 v60, s68")
    a(f"v_mov_b32 v61, {lds_off}")
    a("ds_write_b32 v61, v60")
    a("s_mov_b64 exec, -1")
    a("s_waitcnt lgkmcnt(0)")
    a.label(f"{L}_W")
    a("s_barrier")
    a(f"v_mov_b32 v61, {lds_off}")
    a("ds_read_b32 v60, v61")
    a("s_waitcnt lgkmcnt(0)")
    a("v_readfirstlane_b32 s2, v60")

class PFC:
    def __init__(s, nwg, nwv, jobs): s.nwg = nwg; s.nwv = nwv; s.jobs = jobs
def _pfopt():
    d = {1: PFC(0, 4, []), 2: PFC(0, 4, []), 3: PFC(0, 3, []), 4: PFC(0, 8, []), 5: PFC(0, 8, [])}
    for o in os.environ.get('GOPT', '').split(','):
        if o.startswith('pf='):
            for k, spec in enumerate(o[3:].split('/')):
                if not spec or spec == '0': continue
                n, js = spec.split(':')
                d[k + 1].nwg = int(n)
                d[k + 1].jobs = [tuple(int(x) for x in j.split('.')) for j in js.split('+') if j]
    return d
PF = _pfopt()
if {'fuse2', 'fuse3'} & set(os.environ.get('GOPT', '').split(',')): PF[1].nwv = 12; PF[1].nwg = 64
def t8_addr(a, sx, vlane, vo, vt, s0, s1):
    assert s0 % 2 == 0 and s1 == s0 + 1
    a(f"s_lshr_b32 s{s0}, s{sx}, 1")
    a(f"s_lshl_b32 s{s0}, s{s0}, 4")
    a(f"s_mov_b32 s{s1}, 0x33214320")
    a(f"s_cmp_ge_u32 s{s0}, 32")
    a(f"s_cselect_b32 s{s1}, 0x43104210, s{s1}")
    a(f"s_and_b32 s{s0}, s{s0}, 16")
    a(f"s_lshr_b32 s{s1}, s{s1}, s{s0}")
    a(f"v_bfe_u32 v{vt}, v{vlane}, 1, 2")
    a(f"v_lshlrev_b32 v{vt}, 2, v{vt}")
    a(f"v_lshrrev_b32 v{vt}, v{vt}, s{s1}")
    a(f"v_and_b32 v{vt}, 15, v{vt}")
    a(f"s_mul_i32 s{s0}, s{sx}, 27*171".replace("27*171", str(27*171)))
    a(f"s_lshr_b32 s{s0}, s{s0}, 10")
    a(f"v_add_u32 v{vt}, s{s0}, v{vt}")
    a(f"v_lshrrev_b32 v{vo}, 3, v{vlane}")
    a(f"v_mul_u32_u24 v{vo}, 9216, v{vo}")
    a(f"v_lshl_add_u32 v{vo}, v{vt}, 8, v{vo}")
    a(f"v_and_b32 v{vt}, 1, v{vlane}")
    a(f"v_lshl_add_u32 v{vo}, v{vt}, 7, v{vo}")

def gen_prefetch(a, k, nmain, endlab):
    c = PF[k]
    if c.nwg == 0:
        a(f"s_branch {endlab}")
        return
    assert c.nwg % 8 == 0 and nmain % 8 == 0
    a(f"s_cmp_ge_u32 s2, {nmain + c.nwg}")
    a(f"s_cbranch_scc1 {endlab}")
    a("s_load_dwordx2 s[16:17], s[0:1], 64")
    a("s_load_dwordx2 s[18:19], s[0:1], 80")
    a("v_and_b32 v1, 63, v0")
    a("v_lshrrev_b32 v2, 6, v0")
    a("v_readfirstlane_b32 s27, v2")
    a(f"s_sub_u32 s3, s2, {nmain}")
    a("s_lshr_b32 s3, s3, 3")
    a(f"s_mul_i32 s3, s3, {c.nwv}")
    a("s_add_u32 s3, s3, s27")
    a("s_and_b32 s4, s2, 7")
    NWX = c.nwg // 8 * c.nwv
    NWA = c.nwg * c.nwv
    a("s_waitcnt lgkmcnt(0)")
    _o = os.environ.get('GOPT', '').split(',')
    if k == 4 and 'k5s' in _o:
        from gen_k5s import WS_FL, WS_END3
        a("s_load_dwordx2 s[6:7], s[0:1], 112")
        a(f"s_sub_u32 s21, s2, {nmain}")
        a(f"s_mul_i32 s21, s21, {c.nwv}")
        a("s_add_u32 s21, s21, s27")
        a("s_waitcnt lgkmcnt(0)")
        lab = a.newlabel("PF_ZF")
        a("s_cmp_ge_u32 s21, 16")
        a(f"s_cbranch_scc1 {lab}")
        srd(a, 28, 6, 7, WS_END3)
        a("v_lshlrev_b32 v4, 7, v1")
        a("v_mov_b32 v5, 0")
        a("s_lshl_b32 s21, s21, 13")
        a(f"s_add_u32 s21, s21, {WS_FL}")
        a("buffer_store_dword v5, v4, s[28:31], s21 offen")
        a.label(lab)
    cpk = {1: 1, 2: 2}
    for o in _o:
        if o.startswith('cp1='): cpk[1] = int(o[4:])
        if o.startswith('cp2='): cpk[2] = int(o[4:])
    assert cpk[1] != cpk[2]
    if 'icp1' in _o: cpk[1] = -1
    CP = {cpk[1]: 1, cpk[2]: 2}.get(k, 0) if 'nocopy' not in _o else 0
    ncp = 0
    if CP:
        a("s_load_dwordx2 s[6:7], s[0:1], 112")
        a(f"s_sub_u32 s21, s2, {nmain}")
        a(f"s_mul_i32 s21, s21, {c.nwv}")
        a("s_add_u32 s21, s21, s27")
        if CP == 1:
            srd(a, 24, 16, 17, 2048 * 9216)
            a("v_lshrrev_b32 v6, 4, v1")
            a("v_and_b32 v7, 15, v1")
            a("v_mul_u32_u24 v4, 9216, v6")
            a("v_lshl_add_u32 v4, v7, 4, v4")
            a("v_add_u32 v4, 256, v4")
            a(f"v_mul_u32_u24 v5, {W1C_PITCH}, v6")
            a("v_lshl_add_u32 v5, v7, 4, v5")
            nr = -(-512 // NWA)
            assert nr == 1
            a("s_mul_i32 s22, s21, 4*9216".replace("4*9216", str(4*9216)))
            for j in range(9):
                if j in (4, 8): a("s_add_u32 s22, s22, 4096")
                a(f"buffer_load_dwordx4 v[{16+4*j}:{19+4*j}], v4, s[24:27], s22 offen offset:{(j%4)*1024}")
            ncp = 9
            a(f"s_mul_i32 s22, s21, {4*W1C_PITCH}")
            a(f"s_add_u32 s22, s22, {WS_W1C}")
            a("s_add_u32 s23, s22, 4096")
            cp_stores = [f"buffer_store_dwordx4 v[{16+4*j}:{19+4*j}], v5, s[28:31], s{22 if j < 8 else 23} offen offset:{(j%8)*512}" for j in range(9)]
            cp_lim = WS_W1C + 2048 * W1C_PITCH
        else:
            srd(a, 24, 18, 19, 4608 * 4096)
            a("v_lshrrev_b32 v6, 5, v1")
            a("v_bfe_u32 v7, v1, 3, 2")
            a("v_and_b32 v3, 7, v1")
            a("v_lshlrev_b32 v4, 12, v6")
            a("v_lshl_add_u32 v4, v7, 10, v4")
            a("v_lshl_add_u32 v4, v3, 4, v4")
            a("v_add_u32 v4, 384, v4")
            a("v_lshlrev_b32 v5, 10, v6")
            a("v_lshl_add_u32 v5, v7, 8, v5")
            a("v_lshl_add_u32 v5, v3, 4, v5")
            nr = -(-2304 // NWA)
            a("s_lshl_b32 s22, s21, 13")
            for j in range(nr):
                a(f"buffer_load_dwordx4 v[{16+4*j}:{19+4*j}], v4, s[24:27], s22 offen")
                if j < nr - 1: a(f"s_add_u32 s22, s22, {NWA*8192}")
            ncp = nr
            a("s_lshl_b32 s21, s21, 11")
            a(f"s_add_u32 s21, s21, {WS_W2C}")
            cp_stores = []
            for j in range(nr):
                cp_stores.append(f"s_add_u32 s22, s21, {j*NWA*2048}")
                cp_stores.append(f"buffer_store_dwordx4 v[{16+4*j}:{19+4*j}], v5, s[28:31], s22 offen")
            cp_lim = WS_W2C + 4608 * W2C_PITCH
        a("v_mov_b32 v14, v5")
    if k == 4 and 'cp5' in _o:
        from gen_k5s import WS_W2D, W2D_PITCH, WS_END3
        NL = -(-576 // NWX)
        srd(a, 24, 18, 19, 4608 * 4096)
        srd(a, 28, 6, 7, WS_END3)
        a("v_lshrrev_b32 v6, 4, v1")
        a("v_and_b32 v7, 15, v1")
        a("v_lshlrev_b32 v7, 4, v7")
        a("v_lshl_add_u32 v4, v6, 12, v7")
        a(f"v_mul_u32_u24 v5, {W2D_PITCH}, v6")
        a("v_add_u32 v14, v5, v7")
        a("s_lshr_b32 s21, s4, 2")
        a("s_mul_i32 s21, s21, 2304")
        a("s_lshl_b32 s22, s3, 2")
        a("s_add_u32 s21, s21, s22")
        a("s_and_b32 s22, s4, 3")
        a("s_lshl_b32 s23, s21, 12")
        a("s_lshl_b32 s34, s22, 10")
        a("s_add_u32 s23, s23, s34")
        a("s_add_u32 s23, s23, 256")
        a(f"s_mul_i32 s21, s21, {W2D_PITCH}")
        a("s_lshl_b32 s34, s22, 9")
        a("s_add_u32 s21, s21, s34")
        a(f"s_add_u32 s21, s21, {WS_W2D}")
        full = 576 // NWX
        rem = 576 - full * NWX
        for j in range(full):
            a(f"buffer_load_dwordx4 v[{64+4*j}:{67+4*j}], v4, s[24:27], s23 offen")
            a(f"s_add_u32 s23, s23, {NWX*4*4096}")
        lab = a.newlabel("PF_CL")
        if rem:
            a(f"s_cmp_ge_u32 s3, {rem}")
            a(f"s_cbranch_scc1 {lab}")
            a(f"buffer_load_dwordx4 v[{64+4*full}:{67+4*full}], v4, s[24:27], s23 offen")
            a.label(lab)
        a("s_waitcnt vmcnt(0)")
        for j in range(full):
            a(f"buffer_store_dwordx4 v[{64+4*j}:{67+4*j}], v14, s[28:31], s21 offen")
            a(f"s_add_u32 s21, s21, {NWX*4*W2D_PITCH}")
        if rem:
            lab = a.newlabel("PF_CS")
            a(f"s_cmp_ge_u32 s3, {rem}")
            a(f"s_cbranch_scc1 {lab}")
            a(f"buffer_store_dwordx4 v[{64+4*full}:{67+4*full}], v14, s[28:31], s21 offen")
            a.label(lab)
    ntouch = 0
    for o in _o:
        if o.startswith(f'pfd{k}='):
            for _ in range(int(o.split('=')[1])): a("s_sleep 127")
    pfw = [int(o.split('=')[1]) for o in _o if o.startswith(f'pfw{k}=')]
    NT = " nt" if f'pfnt{k}' in _o else ""
    def copy_stores(nt):
        a("s_waitcnt lgkmcnt(0)")
        srd(a, 28, 6, 7, cp_lim)
        a(f"s_waitcnt vmcnt({nt})")
        for st_ in cp_stores: a(st_.replace(", v5, ", ", v14, ") + (" sc1" if ('cpsc1' in _o and st_.startswith('buffer_store')) else ""))
    if CP and pfw: copy_stores(0)
    for ji, (buf, r0, r1) in enumerate(c.jobs):
        pitch = 9216 if buf in (1, 3) else 4096
        RPI = {1: 6, 2: 16, 3: 8, 4: 5, 5: 4, 6: 1, 7: 1, 8: 8, 9: 10}[buf]
        ROT = ('pfrot%d' % buf) in _o
        NROW = 2048 if buf in (1, 3) else 4608
        lim = (NROW if ROT else r1) * pitch
        if buf in (6, 7):
            NST = 32 if buf == 6 else 72
            base = WS_HN if buf == 6 else WS_G
            rot = (('rot1' in _o) if buf == 6 else ('rot2' in _o))
            a("s_waitcnt lgkmcnt(0)")
            a("s_load_dwordx2 s[38:39], s[0:1], 112")
            a("v_min_u32 v3, 47, v1")
            a("v_mul_u32_u24 v4, 43, v3")
            a("v_lshrrev_b32 v4, 8, v4")
            a("v_mul_u32_u24 v5, 6, v4")
            a("v_sub_u32 v5, v3, v5")
            a("v_cmp_le_u32 vcc, 3, v5")
            a("v_addc_co_u32 v5, vcc, 0, v5, vcc")
            a("v_lshlrev_b32 v5, 7, v5")
            a("v_lshl_add_u32 v4, v4, 10, v5")
            a("s_waitcnt lgkmcnt(0)")
            srd(a, 8, 38, 39, WS_END)
            a(f"s_mul_i32 s34, s4, {NST // 8 * 12 if rot else 0}")
            a(f"s_add_u32 s20, s3, {r0*12}")
            n = -(-(r1 - r0) * 12 // NWX)
            for i in range(n):
                lab = a.newlabel(f"PF_SK{k}")
                a(f"s_cmp_ge_u32 s20, {r1*12}")
                a(f"s_cbranch_scc1 {lab}")
                a("s_add_u32 s35, s20, s34")
                a(f"s_cmp_ge_u32 s35, {NST*12}")
                a(f"s_cselect_b32 s36, {NST*12}, 0")
                a("s_sub_u32 s35, s35, s36")
                a("s_lshl_b32 s35, s35, 13")
                a(f"s_add_u32 s35, s35, {base}")
                a(f"buffer_load_dword v{60 + (i % 8)}, v4, s[8:11], s35 offen")
                a.label(lab)
                if i < n - 1: a(f"s_add_u32 s20, s20, {NWX}")
                ntouch += 1
                if pfw: a(f"s_waitcnt vmcnt({pfw[0]})")
            continue
        if buf in (8, 9):
            srd(a, 8, 18, 19, 4608 * 4096)
            RP = 8 if buf == 8 else 10
            if buf == 8:
                a("v_lshrrev_b32 v4, 3, v1")
                a("v_and_b32 v5, 7, v1")
                a("v_lshlrev_b32 v5, 7, v5")
            else:
                a("v_min_u32 v3, 59, v1")
                a("v_mul_u32_u24 v4, 43, v3")
                a("v_lshrrev_b32 v4, 8, v4")
                a("v_mul_u32_u24 v5, 6, v4")
                a("v_sub_u32 v5, v3, v5")
                a("v_cmp_le_u32 vcc, 2, v5")
                a("v_cndmask_b32 v6, 0, 2, vcc")
                a("v_add_u32 v5, v5, v6")
                a("v_lshlrev_b32 v5, 7, v5")
            a("s_and_b32 s34, s4, 3")
            a("s_lshl_b32 s35, s34, 10")
            a("v_add_u32 v5, s35, v5")
            a("s_mul_i32 s34, s34, 576")
            a("s_lshr_b32 s35, s4, 2")
            a(f"s_mul_i32 s35, s35, {2304*4096}")
            a(f"s_mul_i32 s20, s3, {RP}")
            a(f"s_add_u32 s20, s20, {r0}")
            n = -(-(r1 - r0) // (RP * NWX))
            for i in range(n):
                lab = a.newlabel(f"PF_SK{k}")
                a(f"s_cmp_ge_u32 s20, {r1}")
                a(f"s_cbranch_scc1 {lab}")
                a("v_add_u32 v6, s20, v4")
                a(f"v_min_u32 v6, {r1 - 1}, v6")
                a("v_add_u32 v6, s34, v6")
                a("v_subrev_u32 v7, 2304, v6")
                a("v_min_u32 v6, v6, v7")
                a("v_lshl_add_u32 v6, v6, 12, v5")
                a(f"buffer_load_dword v{60 + (i % 8)}, v6, s[8:11], s35 offen")
                a.label(lab)
                if i < n - 1: a(f"s_add_u32 s20, s20, {NWX*RP}")
                ntouch += 1
            continue
        if buf in (4, 5):
            srd(a, 8, 18, 19, 4608 * 4096)
            RP = 5 if buf == 4 else 4
            if buf == 4:
                a("v_min_u32 v3, 59, v1")
                a("v_mul_u32_u24 v4, 43, v3")
                a("v_lshrrev_b32 v4, 9, v4")
                a("v_mul_u32_u24 v5, 12, v4")
                a("v_sub_u32 v5, v3, v5")
                a("v_lshrrev_b32 v6, 1, v5")
                a("v_cmp_le_u32 vcc, 1, v6")
                a("v_addc_co_u32 v7, vcc, 0, v6, vcc")
                a("v_cmp_le_u32 vcc, 4, v6")
                a("v_addc_co_u32 v7, vcc, 0, v7, vcc")
                a("v_and_b32 v5, 1, v5")
                a("v_lshlrev_b32 v5, 7, v5")
                a("v_lshl_add_u32 v5, v7, 8, v5")
            else:
                a("v_lshrrev_b32 v4, 4, v1")
                a("v_and_b32 v5, 15, v1")
                a("v_lshlrev_b32 v5, 7, v5")
            a("s_and_b32 s34, s4, 1")
            a("s_lshl_b32 s35, s34, 11")
            a("v_add_u32 v5, s35, v5")
            a("s_mul_i32 s34, s34, 576")
            a("s_lshr_b32 s35, s4, 1")
            a(f"s_mul_i32 s35, s35, {1152*4096}")
            a(f"s_mul_i32 s20, s3, {RP}")
            a(f"s_add_u32 s20, s20, {r0}")
            n = -(-(r1 - r0) // (RP * NWX))
            for i in range(n):
                lab = a.newlabel(f"PF_SK{k}")
                a(f"s_cmp_ge_u32 s20, {r1}")
                a(f"s_cbranch_scc1 {lab}")
                a("v_add_u32 v6, s20, v4")
                a(f"v_min_u32 v6, {r1 - 1}, v6")
                a("v_add_u32 v6, s34, v6")
                a("v_subrev_u32 v7, 1152, v6")
                a("v_min_u32 v6, v6, v7")
                a("v_lshl_add_u32 v6, v6, 12, v5")
                a(f"buffer_load_dword v{60 + (i % 8)}, v6, s[8:11], s35 offen")
                a.label(lab)
                if i < n - 1: a(f"s_add_u32 s20, s20, {NWX*RP}")
                ntouch += 1
            continue
        if buf == 3:
            srd(a, 8, 16, 17, lim)
            t8_addr(a, 4, 1, 4, 5, 34, 35)
            a(f"s_mul_i32 s20, s3, {RPI*pitch}")
            a(f"s_add_u32 s20, s20, {r0*pitch}")
            n = -(-(r1 - r0) // (RPI * NWX))
            for i in range(n):
                lab = a.newlabel(f"PF_SK{k}")
                a(f"s_cmp_ge_u32 s20, {r1*pitch}")
                a(f"s_cbranch_scc1 {lab}")
                a(f"buffer_load_dword v{60 + (i % 8)}, v4, s[8:11], s20 offen")
                a.label(lab)
                if i < n - 1: a(f"s_add_u32 s20, s20, {NWX*RPI*pitch}")
                ntouch += 1
            continue
        if buf == 1:
            srd(a, 8, 16, 17, lim)
            a("v_min_u32 v3, 59, v1")
            a("v_mul_u32_u24 v4, 52, v3")
            a("v_lshrrev_b32 v4, 9, v4")
            a("v_mul_u32_u24 v5, 10, v4")
            a("v_sub_u32 v5, v3, v5")
            a("s_mul_i32 s5, s4, 27*171")
            a("s_lshr_b32 s5, s5, 10")
            a("s_lshl_b32 s5, s5, 8")
        else:
            srd(a, 8, 18, 19, lim)
            a("v_lshrrev_b32 v4, 2, v1")
            a("v_and_b32 v5, 3, v1")
            a("s_lshl_b32 s5, s4, 9")
        a(f"v_mul_u32_u24 v4, {pitch}, v4")
        a("v_lshl_add_u32 v4, v5, 7, v4")
        a(f"s_mul_i32 s20, s3, {RPI*pitch}")
        a("s_add_u32 s20, s20, s5")
        a(f"s_add_u32 s20, s20, {r0*pitch}")
        n = -(-(r1 - r0) // (RPI * NWX))
        if ROT:
            a(f"s_mul_i32 s34, s4, {NROW // 8 * pitch}")
        for i in range(n):
            if ROT:
                lab = a.newlabel(f"PF_SK{k}")
                a(f"s_cmp_ge_u32 s20, {r1*pitch}")
                a(f"s_cbranch_scc1 {lab}")
                a("s_add_u32 s35, s20, s34")
                a(f"s_cmp_ge_u32 s35, {(NROW)*pitch}")
                a(f"s_cselect_b32 s36, {NROW*pitch}, 0")
                a("s_sub_u32 s35, s35, s36")
                a(f"buffer_load_dword v{60 + (i % 8)}, v4, s[8:11], s35 offen{NT}")
                a.label(lab)
            else:
                a(f"buffer_load_dword v{60 + (i % 8)}, v4, s[8:11], s20 offen{NT}")
            if i < n - 1: a(f"s_add_u32 s20, s20, {NWX*RPI*pitch}")
            ntouch += 1
            if pfw: a(f"s_waitcnt vmcnt({pfw[0]})")
    if CP and not pfw:
        assert ntouch < 60
        anyrot = any(('pfrot%d' % j[0]) in _o or j[0] >= 3 for j in c.jobs)
        copy_stores(0 if anyrot else ntouch)
    if k == 4 and 'k5s' in _o and 'sent' in _o and 'sf1' not in _o:
        from gen_k5s import WS_XB, WS_END3, SK, NT_
        assert SK == 2
        NU = 96 * 2 * 4
        srd(a, 28, 6, 7, WS_END3)
        a("v_lshrrev_b32 v4, 3, v1")
        a("v_cmp_le_u32 vcc, 3, v4")
        a("v_addc_co_u32 v4, vcc, 0, v4, vcc")
        a("v_and_b32 v5, 7, v1")
        a("v_lshlrev_b32 v5, 4, v5")
        a("v_lshl_add_u32 v4, v4, 7, v5")
        for r in range(4): a(f"v_mov_b32 v{8+r}, -1")
        a(f"s_sub_u32 s21, s2, {nmain}")
        a(f"s_mul_i32 s21, s21, {c.nwv}")
        a("s_add_u32 s21, s21, s27")
        for r in range(-(-NU // NWA)):
            lab = a.newlabel("PF_SF")
            a(f"s_cmp_ge_u32 s21, {NU}")
            a(f"s_cbranch_scc1 {lab}")
            a("s_bfe_u32 s22, s21, 0x10002")
            a(f"s_mul_i32 s23, s21, {NT_}")
            a("s_add_u32 s23, s23, 1")
            a("s_sub_u32 s23, s23, s22")
            a("s_lshl_b32 s23, s23, 11")
            a(f"s_add_u32 s23, s23, {WS_XB}")
            for i in range(NT_ // 2):
                a("buffer_store_dwordx4 v[8:11], v4, s[28:31], s23 offen" + ("" if 'sfp' in _o else " sc1"))
                if i < NT_ // 2 - 1: a("s_add_u32 s23, s23, 4096")
            a.label(lab)
            a(f"s_add_u32 s21, s21, {NWA}")
    a(f"s_branch {endlab}")


def _itopt():
    d = {1: [], 2: [], 3: []}
    for o in os.environ.get('GOPT', '').split(','):
        if o.startswith('it='):
            for k, spec in enumerate(o[3:].split('/')):
                if not spec or spec == '0': continue
                d[k + 1] = [tuple(int(x) for x in j.split('.')) for j in spec.split('+') if j]
    return d
IT = _itopt()
def it_load_ptrs(a, k):
    if not IT[k] and not (k == 1 and ICP1): return
    a("s_load_dwordx2 s[76:77], s[0:1], 64")
    a("s_load_dwordx2 s[78:79], s[0:1], 80")
def inline_touch(a, k, sgw, nwaves, vlane, vt, vd):
    n_tot = 0
    if not IT[k]: return 0
    a(f"v_lshlrev_b32 v{vt}, 7, v{vlane}")
    for (buf, r0, r1) in IT[k]:
        pitch = 9216 if buf == 1 else 4096
        srd(a, 72, 76 if buf == 1 else 78, 77 if buf == 1 else 79, r1 * pitch)
        lines = (r1 - r0) * pitch // 128
        n = -(-lines // (64 * nwaves))
        a(f"s_lshl_b32 s70, s{sgw}, 13")
        a(f"s_add_u32 s70, s70, {r0 * pitch}")
        for i in range(n):
            a(f"buffer_load_dword v{vd}, v{vt}, s[72:75], s70 offen")
            if i < n - 1: a(f"s_add_u32 s70, s70, {nwaves * 8192}")
            n_tot += 1
    return n_tot
ICP1 = 'icp1' in os.environ.get('GOPT', '').split(',')

def bf16_round(a, dst, src, tmp=None):
    a(f"v_cvt_pk_bf16_f32 v{dst}, v{src}, v{src}")
    a(f"v_and_b32 v{dst}, 0xffff0000, v{dst}")

def exp_precise(a, dst, src, t0, t1, sL, sLlo, sLn2):
    a(f"v_mul_f32 v{t0}, s{sL}, v{src}")
    a(f"v_fma_f32 v{t1}, v{src}, s{sL}, -v{t0}")
    a(f"v_fma_f32 v{t1}, v{src}, s{sLlo}, v{t1}")
    a(f"v_exp_f32 v{dst}, v{t0}")
    a(f"v_mul_f32 v{t1}, s{sLn2}, v{t1}")
    a(f"v_fma_f32 v{dst}, v{dst}, v{t1}, v{dst}")

def gen_k1(a):
    name = "k1_kernel"
    kernel_head(a, name)
    kst_begin(a)
    a("s_cmp_ge_u32 s2, 640")
    a("s_cbranch_scc1 K1_PF")
    a("s_load_dwordx2 s[4:5], s[0:1], 0")
    a("s_load_dwordx2 s[6:7], s[0:1], 112")
    a("s_load_dwordx8 s[16:23], s[0:1], 8")
    a("s_load_dwordx2 s[24:25], s[0:1], 40")
    it_load_ptrs(a, 1)
    a("s_cmp_ge_u32 s2, 64")
    a("s_cbranch_scc1 K1_KGEN")
    a("s_waitcnt lgkmcnt(0)")
    srd(a, 8, 4, 5, L * D * 2)
    srd(a, 12, 6, 7, WS_R)
    if DYN:
        a("s_cmp_lg_u32 s2, 0")
        a("s_cbranch_scc1 K1_NOZ")
        srd(a, 28, 6, 7, WS_END)
        a("v_lshlrev_b32 v1, 8, v0")
        a("v_mov_b32 v2, 0")
        a(f"s_mov_b32 s26, {WS_CNT}")
        a("v_cmp_gt_u32 vcc, 64, v0")
        a("s_and_saveexec_b64 s[32:33], vcc")
        a("s_cbranch_execz K1_NOZ2")
        a("buffer_store_dword v2, v1, s[28:31], s26 offen")
        a.label("K1_NOZ2")
        a("s_mov_b64 exec, -1")
        a.label("K1_NOZ")
    PITCH = 1216
    a("v_lshrrev_b32 v1, 3, v0")
    a("v_and_b32 v2, 7, v0")
    a("s_lshl_b32 s3, s2, 5")
    a("v_add_u32 v3, s3, v1")
    a("s_movk_i32 s26, 1152")
    a("v_mul_lo_u32 v3, v3, s26")
    a("v_lshl_add_u32 v3, v2, 4, v3")
    for i in range(9):
        a(f"buffer_load_dwordx4 v[{10+4*i}:{13+4*i}], v3, s[8:11], 0 offen offset:{128*i}")
    a(f"s_movk_i32 s26, {PITCH}")
    a("v_mul_lo_u32 v4, v1, s26")
    a("v_lshl_add_u32 v4, v2, 4, v4")
    a("v_and_b32 v5, 63, v0")
    a("v_lshrrev_b32 v6, 6, v0")
    a("v_readfirstlane_b32 s27, v6")
    a("v_bfe_u32 v7, v5, 2, 2")
    a("v_mul_lo_u32 v7, v7, s26")
    a("v_lshrrev_b32 v8, 4, v5")
    a("v_lshl_add_u32 v7, v8, 5, v7")
    a("v_and_b32 v8, 3, v5")
    a("v_lshl_add_u32 v7, v8, 3, v7")
    a("s_lshl_b32 s28, s2, 6")
    a("v_lshlrev_b32 v9, 12, v5")
    a("v_add_u32 v9, s28, v9")
    a("s_waitcnt vmcnt(0)")
    for i in range(9):
        a(f"ds_write_b128 v4, v[{10+4*i}:{13+4*i}] offset:{128*i}")
    for i in range(36):
        a(f"v_lshlrev_b32 v{50+2*i}, 16, v{10+i}")
        a(f"v_and_b32 v{51+2*i}, 0xffff0000, v{10+i}")
    a("v_add_f32 v122, v50, v51")
    a("v_add_f32 v123, v52, v53")
    a("v_add_f32 v124, v54, v55")
    a("v_add_f32 v125, v56, v57")
    for i in range(2, 18):
        for q in range(4):
            a(f"v_add_f32 v{122+q}, v{122+q}, v{50+4*i+q}")
    a("v_add_f32 v122, v122, v123")
    a("v_add_f32 v124, v124, v125")
    a("v_add_f32 v122, v122, v124")
    def red8(r, t):
        a(f"v_add_f32_dpp v{r}, v{r}, v{r} quad_perm:[1,0,3,2] row_mask:0xf bank_mask:0xf")
        a(f"v_add_f32_dpp v{r}, v{r}, v{r} quad_perm:[2,3,0,1] row_mask:0xf bank_mask:0xf")
        a(f"v_add_f32_dpp v{r}, v{r}, v{r} row_half_mirror row_mask:0xf bank_mask:0xf")
    red8(122, None)
    a(f"s_mov_b32 s26, {fhex(1.0/576)}")
    a("v_mul_f32 v126, s26, v122")
    a("s_waitcnt lgkmcnt(0)")
    a("s_barrier")
    def transpose_store(ws_off):
        for u in range(3):
            lab = a.newlabel("K1_SKIP")
            if u == 2:
                a("s_cmp_lg_u32 s27, 0")
                a(f"s_cbranch_scc1 {lab}")
            a(f"s_lshl_b32 s29, s27, 7")
            a(f"s_add_u32 s29, s29, {u*4*128}")
            a(f"v_add_u32 v127, s29, v7")
            for Q in range(8):
                a(f"ds_read_b64_tr_b16 v[{130+2*Q}:{131+2*Q}], v127 offset:{Q*4*PITCH}")
            a(f"s_lshl_b32 s29, s27, 18")
            a(f"s_add_u32 s29, s29, {ws_off + u*4*64*4096}")
            a("s_waitcnt lgkmcnt(0)")
            for q in range(4):
                a(f"buffer_store_dwordx4 v[{130+4*q}:{133+4*q}], v9, s[12:15], s29 offen offset:{16*q}")
            if u == 2: a.label(lab)
            a("s_nop 1")
    transpose_store(WS_XT)
    for i in range(72):
        a(f"v_sub_f32 v{150+0}, v{50+i}, v126") if False else None
    a("v_sub_f32 v127, v50, v126"); a("v_mul_f32 v122, v127, v127")
    a("v_sub_f32 v127, v51, v126"); a("v_mul_f32 v123, v127, v127")
    a("v_sub_f32 v127, v52, v126"); a("v_mul_f32 v124, v127, v127")
    a("v_sub_f32 v127, v53, v126"); a("v_mul_f32 v125, v127, v127")
    for i in range(4, 72):
        t = 146 + (i % 4)
        a(f"v_sub_f32 v{t}, v{50+i}, v126")
        a(f"v_fmac_f32 v{122+(i%4)}, v{t}, v{t}")
    a("v_add_f32 v122, v122, v123")
    a("v_add_f32 v124, v124, v125")
    a("v_add_f32 v122, v122, v124")
    red8(122, None)
    a("v_mul_f32 v122, s26, v122")
    bf16_round(a, 126, 126)
    bf16_round(a, 122, 122)
    a(f"v_add_f32 v122, {fhex(1e-5)}, v122")
    bf16_round(a, 122, 122)
    a("v_sqrt_f32 v122, v122")
    bf16_round(a, 122, 122)
    a("v_rcp_f32 v122, v122")
    for i in range(36):
        x0, x1 = 50 + 2*i, 51 + 2*i
        a(f"v_sub_f32 v{x0}, v{x0}, v126")
        a(f"v_sub_f32 v{x1}, v{x1}, v126")
        a(f"v_cvt_pk_bf16_f32 v146, v{x0}, v{x1}")
        a(f"v_lshlrev_b32 v{x0}, 16, v146")
        a(f"v_and_b32 v{x1}, 0xffff0000, v146")
        a(f"v_mul_f32 v{x0}, v{x0}, v122")
        a(f"v_mul_f32 v{x1}, v{x1}, v122")
        a(f"v_cvt_pk_bf16_f32 v{10+i}, v{x0}, v{x1}")
    a("s_barrier")
    for i in range(9):
        a(f"ds_write_b128 v4, v[{10+4*i}:{13+4*i}] offset:{128*i}")
    a("s_waitcnt lgkmcnt(0)")
    a("s_barrier")
    transpose_store(WS_UT)
    a("s_branch K1_END")

    a.label("K1_KGEN")
    K1ST = 'k1st' in os.environ.get('GOPT', '').split(',')
    def st(i):
        if K1ST: a(f"s_memrealtime s[{60+2*i}:{61+2*i}]")
    a("s_sub_u32 s3, s2, 64")
    a("v_and_b32 v1, 63, v0")
    a("v_lshrrev_b32 v2, 6, v0")
    a("v_readfirstlane_b32 s27, v2")
    a("v_lshrrev_b32 v3, 4, v1")
    a("v_and_b32 v4, 15, v1")
    a("s_lshl_b32 s28, s3, 8")
    a("v_lshlrev_b32 v5, 6, v2")
    a("v_lshl_add_u32 v5, v3, 4, v5")
    a("v_add_u32 v5, s28, v5")
    a("s_waitcnt lgkmcnt(0)")
    srd(a, 8, 16, 17, D * NM * 2)
    a("buffer_load_dwordx4 v[10:13], v5, s[8:11], 0 offen")
    srd(a, 28, 18, 19, D * NM * 2)
    a("buffer_load_dwordx4 v[14:17], v5, s[28:31], 0 offen")
    srd(a, 32, 20, 21, D * NM * 2)
    a("buffer_load_dwordx4 v[18:21], v5, s[32:35], 0 offen")
    srd(a, 36, 22, 23, D * NM * 2)
    a("buffer_load_dwordx4 v[22:25], v5, s[36:39], 0 offen")
    srd(a, 40, 24, 25, D * 2)
    a("s_lshl_b32 s44, s3, 1")
    a("v_mov_b32 v6, s44")
    a("buffer_load_ushort v26, v6, s[40:43], 0 offen")
    srd(a, 12, 6, 7, WS_HT)
    a("v_lshlrev_b32 v27, 3, v4")
    a("v_cvt_f32_u32 v27, v27")
    a("v_and_b32 v28, 7, v4")
    a("v_lshrrev_b32 v29, 3, v4")
    a("v_lshl_add_u32 v28, v29, 7, v28")
    a("v_cvt_f32_u32 v28, v28")
    a("v_lshrrev_b32 v29, 2, v4")
    a("v_lshlrev_b32 v29, 7, v29")
    a("v_and_b32 v30, 3, v4")
    a("v_lshl_add_u32 v29, v30, 1, v29")
    a("v_add_u32 v29, 256, v29")
    a("v_subrev_u32 v30, 8, v4")
    a("v_lshrrev_b32 v30, 1, v30")
    a("v_lshlrev_b32 v30, 7, v30")
    a("v_and_b32 v31, 1, v4")
    a("v_lshl_add_u32 v30, v31, 2, v30")
    a("v_add_u32 v30, 512, v30")
    a("v_cmp_gt_u32 vcc, 8, v4")
    a("v_cndmask_b32 v29, v30, v29, vcc")
    a("v_cvt_f32_u32 v29, v29")
    a("v_lshlrev_b32 v30, 7, v4")
    a("v_add_u32 v30, 1024, v30")
    a("v_cvt_f32_u32 v30, v30")
    a(f"s_mov_b32 s44, {hex(LOG2E)}")
    a(f"s_mov_b32 s45, {fhex(1.4426950408889634 - 1.4426950216293335)}")
    a(f"s_mov_b32 s46, {fhex(0.6931471805599453)}")
    a(f"s_mov_b32 s47, {hex(INV2PI)}")
    a("s_waitcnt vmcnt(0)")
    st(0)
    a("s_lshl_b32 s71, s3, 2")
    a("s_add_u32 s71, s71, s27")
    ntouch = 0
    if ICP1:
        srd(a, 72, 76, 77, 2048 * 9216)
        a("v_mul_u32_u24 v160, 9216, v3")
        a("v_lshl_add_u32 v160, v4, 4, v160")
        a(f"v_mul_u32_u24 v161, {W1C_PITCH}, v3")
        a("v_lshl_add_u32 v161, v4, 4, v161")
        for h in range(2):
            a("s_lshl_b32 s68, s71, 1")
            if h: a("s_add_u32 s68, s68, 1")
            a("s_mul_i32 s69, s68, 7282")
            a("s_lshr_b32 s69, s69, 16")
            a("s_mul_i32 s70, s69, 9")
            a("s_sub_u32 s68, s68, s70")
            a(f"s_mul_i32 s70, s69, {4*9216}")
            a("s_lshl_b32 s67, s68, 10")
            a("s_add_u32 s70, s70, s67")
            a(f"buffer_load_dwordx4 v[{152+4*h}:{155+4*h}], v160, s[72:75], s70 offen offset:256")
            a(f"s_mul_i32 s70, s69, {4*W1C_PITCH}")
            a("s_lshl_b32 s67, s68, 9")
            a("s_add_u32 s70, s70, s67")
            a(f"s_add_u32 s{64+h}, s70, {WS_W1C}")
    ntouch = inline_touch(a, 1, 71, 2304, 1, 162, 163)
    a("v_lshlrev_b32 v26, 16, v26")
    exp_precise(a, 31, 26, 32, 33, 44, 45, 46)
    bf16_round(a, 31, 31)
    a("v_add_f32 v26, v31, v31")
    a(f"s_mov_b32 s48, {hex(LOG2E | 0x80000000)}")
    st(1)
    HI = 40; LO = 72
    XV = 104
    TP = 120
    ACCK = 80 + 60
    ACCK = 140
    for tp in range(4):
        for h in range(2):
            un = (lambda d, s_: a(f"v_lshlrev_b32 v{d}, 16, v{s_}")) if h == 0 else (lambda d, s_: a(f"v_and_b32 v{d}, 0xffff0000, v{s_}"))
            ar, ai, cr, ci = 32 + 4 * h, 33 + 4 * h, 34 + 4 * h, 35 + 4 * h
            t0, t1, t2 = TP, TP + 1, TP + 2
            un(t0, 10 + tp)
            exp_precise(a, t1, t0, t2, TP + 3, 44, 45, 46)
            bf16_round(a, t1, t1)
            a(f"v_mul_f32 v{t1}, v{t1}, v31")
            a(f"v_mul_f32 v{ar}, s48, v{t1}")
            un(t0, 14 + tp)
            a(f"v_mul_f32 v{t0}, v{t0}, v31")
            a(f"v_mul_f32 v{ai}, s47, v{t0}")
            un(t0, 18 + tp)
            a(f"v_mul_f32 v{cr}, v{t0}, v26")
            un(t0, 22 + tp)
            a(f"v_mul_f32 v{ci}, v{t0}, v26")
            e0, e1, e2, e3 = TP + 4, TP + 5, TP + 6, TP + 7
            a(f"v_mul_f32 v{e0}, v{ar}, v27")
            a(f"v_mul_f32 v{e1}, v{ai}, v27")
            a(f"v_exp_f32 v{e0}, v{e0}")
            a(f"v_fract_f32 v{e1}, v{e1}")
            a(f"v_cos_f32 v{e2}, v{e1}")
            a(f"v_sin_f32 v{e3}, v{e1}")
            a(f"v_mul_f32 v{XV+0+h}, v{e0}, v{e2}")
            a(f"v_mul_f32 v{XV+2+h}, v{e0}, v{e3}")
            for T in range(3):
                b = TP + 8 + 6 * T
                a(f"v_mul_f32 v{b}, v{ar}, v{28+T}")
                a(f"v_mul_f32 v{b+1}, v{ai}, v{28+T}")
                a(f"v_exp_f32 v{b}, v{b}")
                a(f"v_fract_f32 v{b+1}, v{b+1}")
                a(f"v_cos_f32 v{b+2}, v{b+1}")
                a(f"v_sin_f32 v{b+3}, v{b+1}")
                a(f"v_mul_f32 v{b+4}, v{cr}, v{b+2}")
                a(f"v_mul_f32 v{b+5}, v{cr}, v{b+3}")
                a(f"v_fma_f32 v{b+4}, -v{ci}, v{b+3}, v{b+4}")
                a(f"v_fma_f32 v{b+5}, v{ci}, v{b+2}, v{b+5}")
                a(f"v_mul_f32 v{XV+4+4*T+h}, v{b}, v{b+4}")
                a(f"v_mul_f32 v{XV+6+4*T+h}, -v{b}, v{b+5}")
        for q in range(8):
            x0, x1 = XV + 2 * q, XV + 2 * q + 1
            hp = HI + 4 * q + tp; lp = LO + 4 * q + tp
            u0, u1 = TP + (2 * q) % 16, TP + (2 * q) % 16 + 1
            a(f"v_cvt_pk_bf16_f32 v{hp}, v{x0}, v{x1}")
            a(f"v_lshlrev_b32 v{u0}, 16, v{hp}")
            a(f"v_and_b32 v{u1}, 0xffff0000, v{hp}")
            a(f"v_sub_f32 v{u0}, v{x0}, v{u0}")
            a(f"v_sub_f32 v{u1}, v{x1}, v{u1}")
            a(f"v_cvt_pk_bf16_f32 v{lp}, v{u0}, v{u1}")
    def fr(base, q): return f"v[{base+4*q}:{base+4*q+3}]"
    for T in range(3):
        acc = f"v[{ACCK+4*T}:{ACCK+4*T+3}]"
        first = True
        for (qa, qb) in ((2 + 2 * T, 0), (3 + 2 * T, 1)):
            for (ba, bb) in ((LO, HI), (HI, LO), (HI, HI)):
                a(f"v_mfma_f32_16x16x32_bf16 {acc}, {fr(ba, qa)}, {fr(bb, qb)}, {'0' if first else acc}")
                first = False
    for r in range(12): a(f"v_mov_b32 v{80+r}, v{ACCK+r}")
    if ICP1:
        srd(a, 72, 6, 7, WS_W1C + 2048 * W1C_PITCH)
        a(f"s_waitcnt vmcnt({ntouch})")
        for h in range(2):
            a(f"buffer_store_dwordx4 v[{152+4*h}:{155+4*h}], v161, s[72:75], s{64+h} offen")
    st(2)
    a("v_lshlrev_b32 v5, 4, v1")
    a("s_mul_i32 s28, s27, 3072")
    a("v_add_u32 v5, s28, v5")
    for T in range(3):
        a(f"ds_write_b128 v5, v[{80+4*T}:{83+4*T}] offset:{1024*T}")
    a("s_waitcnt lgkmcnt(0)")
    a("s_barrier")
    KC = 12288
    a("s_cmp_eq_u32 s27, 3")
    a("s_cbranch_scc1 K1_KG_ZERO")
    a("v_lshlrev_b32 v5, 4, v1")
    a("s_lshl_b32 s28, s27, 10")
    a("v_add_u32 v5, s28, v5")
    for w in range(4):
        a(f"ds_read_b128 v[{80+4*w}:{83+4*w}], v5 offset:{3072*w}")
    a("s_cmp_eq_u32 s27, 1")
    a("s_cbranch_scc1 K1_KG_T1")
    a("s_cmp_eq_u32 s27, 2")
    a("s_cbranch_scc1 K1_KG_T2")
    a("v_and_b32 v100, 1, v3")
    a("v_lshlrev_b32 v100, 2, v100")
    a("v_lshrrev_b32 v101, 1, v3")
    a("v_lshl_add_u32 v100, v101, 7, v100")
    a("v_lshl_add_u32 v100, v4, 3, v100")
    for r in range(1, 4): a(f"v_add_u32 v{100+r}, {r}, v100")
    a("s_branch K1_KG_SC")
    a.label("K1_KG_T1")
    a("v_lshlrev_b32 v104, 6, v3")
    a("v_lshl_add_u32 v104, v4, 2, v104")
    a("v_add_u32 v104, 256, v104")
    a("v_lshlrev_b32 v105, 6, v3")
    a("v_lshl_add_u32 v105, v4, 1, v105")
    a("v_add_u32 v105, 256, v105")
    a("v_cmp_gt_u32 vcc, 2, v3")
    for r in range(4):
        a(f"v_add_u32 v106, {r}, v104")
        a(f"v_add_u32 v107, {32*(r>>1)+(r&1)}, v105")
        a(f"v_cndmask_b32 v{100+r}, v107, v106, vcc")
    a("s_branch K1_KG_SC")
    a.label("K1_KG_T2")
    a("v_lshlrev_b32 v100, 6, v3")
    a("v_add_u32 v100, v4, v100")
    a("v_add_u32 v100, 512, v100")
    for r in range(1, 4): a(f"v_add_u32 v{100+r}, {16*r}, v100")
    a.label("K1_KG_SC")
    a("s_waitcnt lgkmcnt(0)")
    for r in range(4):
        a(f"v_add_f32 v{80+r}, v{80+r}, v{84+r}")
        a(f"v_add_f32 v{88+r}, v{88+r}, v{92+r}")
        a(f"v_add_f32 v{80+r}, v{80+r}, v{88+r}")
        a(f"v_lshlrev_b32 v{100+r}, 2, v{100+r}")
        a(f"ds_write_b32 v{100+r}, v{80+r} offset:{KC}")
    a("s_branch K1_KG_EXP")
    a.label("K1_KG_ZERO")
    a("v_mov_b32 v5, 0")
    a(f"ds_write_b32 v5, v5 offset:{KC + 768*4}")
    a.label("K1_KG_EXP")
    a("s_waitcnt lgkmcnt(0)")
    a("s_barrier")
    st(3)
    a("v_lshlrev_b32 v5, 3, v0")
    a("v_sub_u32 v5, 2047, v5")
    for e in range(9):
        a(f"v_subrev_u32 v{10+e}, {e}, v5")
        a(f"v_cvt_f32_i32 v{20+e}, v{10+e}")
    for e in range(0, 9, 2):
        e1 = min(e + 1, 8)
        a(f"v_cvt_pk_bf16_f32 v{30+e//2}, v{20+e}, v{20+e1}")
    for e in range(9):
        src = 30 + e // 2
        if e % 2 == 0: a(f"v_and_b32 v{20+e}, 0xffff, v{src}")
        else: a(f"v_lshrrev_b32 v{20+e}, 16, v{src}")
        a(f"v_subrev_u32 v{20+e}, 17024, v{20+e}")
        a(f"v_min_u32 v36, 127, v{10+e}")
        a(f"v_max_i32 v{20+e}, v{20+e}, v36")
    a("v_cmp_gt_i32 vcc, 0, v18")
    a("v_mov_b32 v36, 768")
    a("v_cndmask_b32 v28, v28, v36, vcc")
    for e in range(9):
        a(f"v_lshlrev_b32 v{20+e}, 2, v{20+e}")
        a(f"ds_read_b32 v{40+e}, v{20+e} offset:{KC}")
    a("s_mul_i32 s28, s3, %d" % RSTRIDE)
    a(f"s_add_u32 s28, s28, {WS_R}")
    a("v_lshlrev_b32 v5, 4, v0")
    a("s_waitcnt lgkmcnt(0)")
    for k in range(4):
        a(f"v_cvt_pk_bf16_f32 v{52+k}, v{40+2*k}, v{41+2*k}")
        a(f"v_cvt_pk_bf16_f32 v{56+k}, v{41+2*k}, v{42+2*k}")
    a("buffer_store_dwordx4 v[52:55], v5, s[12:15], s28 offen")
    a(f"buffer_store_dwordx4 v[56:59], v5, s[12:15], s28 offen offset:{ROFF - 4096}") if False else None
    a(f"v_add_u32 v6, {ROFF}, v5")
    a("buffer_store_dwordx4 v[56:59], v6, s[12:15], s28 offen")
    if K1ST:
        st(4)
        a("s_waitcnt vmcnt(0) lgkmcnt(0)")
        st(5)
        a("s_waitcnt lgkmcnt(0)")
        srd(a, 72, 6, 7, 0x4000000)
        for i in range(6): a(f"v_mov_b32 v{70+i}, s{60+2*i}")
        a("v_mov_b32 v76, s94"); a("v_mov_b32 v77, 0")
        a("s_lshl_b32 s76, s2, 7")
        a("s_lshl_b32 s77, s27, 5")
        a("s_add_u32 s76, s76, s77")
        a("s_add_u32 s76, s76, 0x2a00000")
        a("v_mov_b32 v78, 0")
        a("buffer_store_dwordx4 v[70:73], v78, s[72:75], s76 offen")
        a("buffer_store_dwordx4 v[74:77], v78, s[72:75], s76 offen offset:16")
    a("v_cmp_gt_u32 vcc, 2, v0")
    a("s_and_saveexec_b64 s[30:31], vcc")
    a("s_cbranch_execz K1_END")
    for r in range(4): a(f"v_mov_b32 v{60+r}, 0")
    a("v_add_u32 v5, 4096, v5")
    a("v_add_u32 v6, 4096, v6")
    a("buffer_store_dwordx4 v[60:63], v5, s[12:15], s28 offen")
    a("buffer_store_dwordx4 v[60:63], v6, s[12:15], s28 offen")
    a("s_branch K1_END")
    a.label("K1_PF")
    gen_prefetch(a, 1, 640, "K1_END")
    a.label("K1_END")
    kst_end(a, 0, 640 + PF[1].nwg)
    a("s_endpgm")
    return name, 164, 38912

KERNELS = []
def build(kernels, launches):
    head = []
    ref = open('cdna_kernels/' + NAME + '.s.ref').read().split('\n')
    for ln in ref:
        if ln.startswith('; Kernarg') or ln.startswith(';   offset'):
            head.append(ln)
    for (k, grid, block, lds) in launches:
        head.append(f"; @launch kernel={k} grid=({grid},1,1) block=({block},1,1) lds={lds}")
    out = '\n'.join(head) + '\n.amdgcn_target "amdgcn-amd-amdhsa--gfx950"\n.text\n'
    descs = ''
    for gen in kernels:
        a = Asm()
        name, vg, lds = gen(a)
        lint_srd(a.lines, name)
        out += render(insert_hazard_nops(a.lines))
        descs += kernel_desc(name, vg)
    out += '.section .rodata,"a"\n.p2align 6\n' + descs.replace('.amdhsa_kernel', '.p2align 6\n.amdhsa_kernel')
    return out

if __name__ == '__main__':
    from gen_rest import *
    main()
```

```python
from gen import *
from gen_k12b import cmul
from gen_k2 import ht_group_addr
OPTS = os.environ.get('GOPT', '').split(',')
C_CS = 4160
C_PART = 4 * C_CS
C_UPAD = C_PART + 24576
C_UOFF = C_UPAD + 512
C_KC = C_UOFF + 4096
C_LDS = C_KC + 3072 + 64
K12C_LDS = 3 * C_LDS
C_TT = 8 * 1088
WS_ST = WS_UT
STP = 'stp' in OPTS
WS_RC = 0x240000
RC_N = int(([o[3:] for o in OPTS if o.startswith('rc=')] or ['32'])[0])
RC_STRIDE = 4352
XM = 'xm' in OPTS
WS_XM = 0x300000

def ln2_tail(a, st):
    opt_sleep = int(([o[4:] for o in OPTS if o.startswith('psl=')] or ['4'])[0])
    a("s_barrier")
    a("s_mul_i32 s36, s59, 171")
    a("s_lshr_b32 s36, s36, 9")
    a("s_sub_u32 s37, s2, 64")
    a("s_lshr_b32 s38, s37, 3")
    a("s_and_b32 s37, s37, 7")
    a("v_mov_b32 v6, 0")
    a("s_cmp_lg_u32 s59, 0")
    a("s_cbranch_scc1 K1_F_NA")
    a("v_mov_b32 v7, 1")
    a(f"v_mul_u32_u24 v9, {RC_STRIDE}, v1")
    a(f"s_mov_b32 s39, {WS_RC}")
    a(f"s_mov_b32 exec_lo, {hex((1 << RC_N) - 1)}")
    a("s_mov_b32 exec_hi, 0")
    a("buffer_atomic_add v7, v9, s[12:15], s39 offen sc1")
    a("s_mov_b64 exec, -1")
    a("s_sub_u32 s35, s2, 64")
    a(f"s_and_b32 s35, s35, {RC_N - 1}")
    a(f"s_mul_i32 s35, s35, {RC_STRIDE}")
    a(f"s_add_u32 s35, s35, {WS_RC}")
    a.label("K1_F_NA")
    a("s_cmp_ge_u32 s36, 2")
    a("s_cbranch_scc1 K1_F_PF")
    a("s_cmp_eq_u32 s36, 0")
    a("s_cbranch_scc1 K1_F_ACT")
    a("s_cmp_ge_u32 s38, 8")
    a("s_cbranch_scc1 K1_F_IDLE")
    a("s_add_u32 s38, s38, 24")
    a.label("K1_F_ACT")
    a("s_lshl_b32 s3, s37, 5")
    a("s_add_u32 s3, s3, s38")
    a("s_mul_i32 s39, s36, 3")
    a("s_sub_u32 s39, s59, s39")
    a("s_lshl_b32 s39, s39, 6")
    a("v_add_u32 v0, s39, v1")
    a("s_lshl_b32 s39, s36, 10")
    ht_group_addr(a)
    a("v_and_b32 v5, 7, v1")
    a("v_lshlrev_b32 v5, 1, v5")
    srd(a, 8, 6, 7, WS_G)
    a("s_mov_b32 s36, 0x40000")
    a("v_lshrrev_b32 v7, 4, v0")
    a("v_cmp_le_u32 vcc, 6, v7")
    a("v_cndmask_b32 v8, 0, 1, vcc")
    a("v_mul_u32_u24 v27, 6, v8")
    a("v_sub_u32 v7, v7, v27")
    a("v_cmp_le_u32 vcc, 3, v7")
    a("v_addc_co_u32 v7, vcc, 0, v7, vcc")
    a(f"v_mul_u32_u24 v8, {2*ABLK}, v8")
    a("v_lshl_add_u32 v8, v7, 7, v8")
    a("v_and_b32 v7, 7, v0")
    a("v_lshl_add_u32 v8, v7, 4, v8")
    a("v_bfe_u32 v7, v0, 3, 1")
    a("v_lshl_add_u32 v8, v7, 10, v8")
    a("s_lshr_b32 s30, s3, 3")
    a(f"s_mul_i32 s30, s30, {12*ABLK}")
    a("s_bfe_u32 s31, s3, 0x10002")
    a(f"s_mul_i32 s31, s31, {ABLK}")
    a("s_add_u32 s30, s30, s31")
    a("s_and_b32 s31, s3, 3")
    a("s_lshl_b32 s31, s31, 11")
    a("s_add_u32 s30, s30, s31")
    a(f"s_add_u32 s30, s30, {WS_HN}")
    a(f"s_mov_b32 s26, {fhex(1.0/576)}")
    a("v_lshrrev_b32 v29, 4, v0")
    a("v_lshlrev_b32 v29, 6, v29")
    a("v_add_u32 v29, s39, v29")
    a("v_and_b32 v27, 15, v1")
    a("v_lshlrev_b32 v27, 2, v27")
    a("v_add_u32 v27, s39, v27")
    a("s_cmp_lg_u32 s59, 0")
    a("s_cbranch_scc1 K1_F_GO")
    NPP = int(([o[4:] for o in OPTS if o.startswith('npp=')] or ['1'])[0])
    if NPP > 1:
        a("s_mov_b64 exec, 1")
        for k in range(NPP):
            a(f"v_mov_b32 v{104+k}, 0")
            a(f"buffer_atomic_add v{104+k}, v6, s[12:15], s35 offen sc0 sc1")
            if k < NPP - 1: a(f"s_sleep {opt_sleep}")
        a.label("K1_F_POLL")
        for k in range(NPP):
            a(f"s_waitcnt vmcnt({NPP-1})")
            a(f"v_readfirstlane_b32 s37, v{104+k}")
            a("s_cmp_ge_u32 s37, 192")
            a("s_cbranch_scc1 K1_F_GO1")
            a(f"v_mov_b32 v{104+k}, 0")
            a(f"buffer_atomic_add v{104+k}, v6, s[12:15], s35 offen sc0 sc1")
        a("s_sub_u32 s36, s36, 1")
        a("s_cmp_lg_u32 s36, 0")
        a("s_cbranch_scc1 K1_F_POLL")
        a.label("K1_F_GO1")
        a("s_mov_b64 exec, -1")
    else:
        a.label("K1_F_POLL")
        a("s_mov_b64 exec, 1")
        if 'apoll' in OPTS:
            a("v_mov_b32 v9, 0")
            a("buffer_atomic_add v9, v6, s[12:15], s35 offen sc0 sc1")
        else:
            a("buffer_load_dword v9, v6, s[12:15], s35 offen sc1")
        a("s_mov_b64 exec, -1")
        a("s_waitcnt vmcnt(0)")
        a("v_readfirstlane_b32 s37, v9")
        a("s_cmp_ge_u32 s37, 192")
        a("s_cbranch_scc1 K1_F_GO")
        a("s_sub_u32 s36, s36, 1")
        a("s_cmp_eq_u32 s36, 0")
        a("s_cbranch_scc1 K1_F_GO")
        a(f"s_sleep {opt_sleep}")
        a("s_branch K1_F_POLL")
    a.label("K1_F_GO")
    a("s_barrier")
    if st: st(0)
    for i in range(3):
        a(f"s_add_u32 s29, s28, {i*192*(8192 if HTP else 4096)}")
        a(f"buffer_load_dwordx4 v[{10+4*i}:{13+4*i}], v4, s[8:11], s29 offen sc1")
    a("buffer_load_dwordx4 v[22:25], v6, s[8:11], s28 offen sc1")
    a("buffer_load_ushort v26, v5, s[8:11], s28 offen sc1")
    a("s_waitcnt vmcnt(0)")
    if st: st(1)
    X = 32
    for i in range(4):
        for k in range(4):
            a(f"v_lshlrev_b32 v{X+8*i+2*k}, 16, v{10+4*i+k}")
            a(f"v_and_b32 v{X+8*i+2*k+1}, 0xffff0000, v{10+4*i+k}")
    a("v_lshlrev_b32 v26, 16, v26")
    S = 64
    for i in range(3):
        for e in range(8):
            a(f"v_sub_f32 v{80+8*i+e}, v{X+8*i+e}, v{56+e}")
    for e in range(8):
        a(f"v_add_f32 v{S+e}, v{80+e}, v{88+e}")
        a(f"v_mul_f32 v{S+8+e}, v{80+e}, v{80+e}")
    for e in range(8):
        a(f"v_add_f32 v{S+e}, v{S+e}, v{96+e}")
        a(f"v_fmac_f32 v{S+8+e}, v{88+e}, v{88+e}")
    for e in range(8):
        a(f"v_fmac_f32 v{S+8+e}, v{96+e}, v{96+e}")
    for mode in ("quad_perm:[1,0,3,2]", "quad_perm:[2,3,0,1]", "row_half_mirror", "row_mirror"):
        for e in range(16):
            a(f"v_add_f32_dpp v{S+e}, v{S+e}, v{S+e} {mode} row_mask:0xf bank_mask:0xf")
    a("v_and_b32 v28, 15, v1")
    a("v_cmp_eq_u32 vcc, 0, v28")
    a("s_and_saveexec_b64 s[32:33], vcc")
    for k in range(4):
        a(f"ds_write_b128 v29, v[{S+4*k}:{S+4*k+3}] offset:{16*k}")
    a("s_mov_b64 exec, s[32:33]")
    a("s_waitcnt lgkmcnt(0)")
    a("s_barrier")
    if st: st(2)
    for r in range(12):
        a(f"ds_read_b32 v{80+r}, v27 offset:{64*r}")
    a("s_waitcnt lgkmcnt(0)")
    for k in range(6): a(f"v_add_f32 v{80+k}, v{80+k}, v{86+k}")
    for k in range(3): a(f"v_add_f32 v{80+k}, v{80+k}, v{83+k}")
    a("v_add_f32 v80, v80, v81")
    a("v_add_f32 v80, v80, v82")
    a("v_mov_b32_dpp v81, v80 row_ror:8 row_mask:0xf bank_mask:0xf")
    a("v_and_b32 v28, 8, v1")
    a("v_cmp_eq_u32 vcc, 0, v28")
    a("v_cndmask_b32 v82, v81, v80, vcc")
    a("v_cndmask_b32 v83, v80, v81, vcc")
    a("v_mul_f32 v82, s26, v82")
    a("v_mul_f32 v83, s26, v83")
    a("v_fma_f32 v83, -v82, v82, v83")
    a("v_max_f32 v83, 0, v83")
    a("v_add_f32 v82, v82, v26")
    bf16_round(a, 82, 82)
    bf16_round(a, 83, 83)
    a(f"v_add_f32 v83, {fhex(1e-5)}, v83")
    bf16_round(a, 83, 83)
    a("v_sqrt_f32 v83, v83")
    bf16_round(a, 83, 83)
    a("v_rcp_f32 v83, v83")
    for e in range(8):
        a(f"v_readlane_b32 s{40+e}, v82, {e}")
        a(f"v_readlane_b32 s{48+e}, v83, {e}")
    for i in range(3):
        for k in range(4):
            x0 = X + 8*i + 2*k; x1 = x0 + 1
            a(f"v_subrev_f32 v{x0}, s{40+2*k}, v{x0}")
            a(f"v_subrev_f32 v{x1}, s{41+2*k}, v{x1}")
            a(f"v_cvt_pk_bf16_f32 v{84+k}, v{x0}, v{x1}")
        for k in range(4):
            x0 = X + 8*i + 2*k; x1 = x0 + 1
            a(f"v_lshlrev_b32 v{x0}, 16, v{84+k}")
            a(f"v_and_b32 v{x1}, 0xffff0000, v{84+k}")
        for k in range(4):
            x0 = X + 8*i + 2*k; x1 = x0 + 1
            a(f"v_mul_f32 v{x0}, s{48+2*k}, v{x0}")
            a(f"v_mul_f32 v{x1}, s{49+2*k}, v{x1}")
            a(f"v_cvt_pk_bf16_f32 v{10+4*i+k}, v{x0}, v{x1}")
        a(f"s_add_u32 s31, s30, {i*2*2*ABLK}")
        a(f"buffer_store_dwordx4 v[{10+4*i}:{13+4*i}], v8, s[8:11], s31 offen")
    if st: st(3)
    a("s_branch K1_F_END")
    a.label("K1_F_PF")
    I8B = [o for o in OPTS if o.startswith('it8b=')]
    if I8B:
        r0, r1 = (int(x) for x in I8B[0][5:].split('.'))
        srd(a, 8, 84, 85, 2048 * 9216)
        t8_addr(a, 37, 1, 6, 7, 82, 83)
        a("s_mul_i32 s82, s38, 6")
        a("s_add_u32 s82, s82, s59")
        a("s_sub_u32 s82, s82, 6")
        a(f"s_mul_i32 s82, s82, {8*9216}")
        a(f"s_add_u32 s82, s82, {r0*9216}")
        n8 = -(-(r1 - r0) // (8 * 144))
        for i in range(n8):
            lab = a.newlabel("K1_T8B")
            a(f"s_cmp_ge_u32 s82, {r1*9216}")
            a(f"s_cbranch_scc1 {lab}")
            a(f"buffer_load_dword v{161+i}, v6, s[8:11], s82 offen")
            a.label(lab)
            if i < n8 - 1: a(f"s_add_u32 s82, s82, {144*8*9216}")
    a.label("K1_F_IDLE")
    a("s_barrier")
    a("s_barrier")
    a.label("K1_F_END")

def gen_k12c(a):
    name = "k1_kernel"
    kernel_head(a, name)
    kst_begin(a)
    KT = 'k1st' in OPTS
    F4 = 'fuse4' in OPTS
    assert not F4 or 'pollc' in OPTS
    ST2 = 'st2' in OPTS
    phase = ['ln']
    ST3 = 'st3' in OPTS
    def st(i):
        if KT and not ((ST2 or ST3) and phase[0] == 'ch'): a(f"s_memrealtime s[{60+2*i}:{61+2*i}]")
    def sth(i):
        if KT and ST3: a(f"s_memrealtime s[{60+2*i}:{61+2*i}]")
    def stg(i):
        if KT and ST2: a(f"s_memrealtime s[{60+2*i}:{61+2*i}]")
    def st_flush():
        a("s_waitcnt lgkmcnt(0)")
        srd(a, 76, 6, 7, 0x4000000)
        for i in range(7): a(f"v_mov_b32 v{80+i}, s{60+2*i}")
        a("v_mov_b32 v87, s94")
        a("s_mul_i32 s75, s2, 384")
        a(f"s_lshl_b32 s74, s59, 5")
        a("s_add_u32 s75, s75, s74")
        a("s_add_u32 s75, s75, 0x2a00000")
        a("v_mov_b32 v78, 0")
        a("buffer_store_dwordx4 v[80:83], v78, s[76:79], s75 offen")
        a("buffer_store_dwordx4 v[84:87], v78, s[76:79], s75 offen offset:16")
    def touch(r0, r1, vd, T):
        srd(a, 8, 84, 85, r1 * 9216)
        t0, t1, t2 = T
        a(f"v_min_u32 v{t0}, 59, v1")
        a(f"v_mul_u32_u24 v{t1}, 52, v{t0}")
        a(f"v_lshrrev_b32 v{t1}, 9, v{t1}")
        a(f"v_mul_u32_u24 v{t2}, 10, v{t1}")
        a(f"v_sub_u32 v{t2}, v{t0}, v{t2}")
        a(f"v_mul_u32_u24 v{t1}, 9216, v{t1}")
        a(f"v_lshl_add_u32 v{t1}, v{t2}, 7, v{t1}")
        a("s_and_b32 s82, s2, 7")
        a("s_mul_i32 s82, s82, 27*171")
        a("s_lshr_b32 s82, s82, 10")
        a("s_lshl_b32 s82, s82, 8")
        a("s_sub_u32 s83, s2, 64")
        a("s_lshr_b32 s83, s83, 3")
        a("s_mul_i32 s83, s83, 12")
        a("s_add_u32 s83, s83, s59")
        a(f"s_mul_i32 s83, s83, {6*9216}")
        a("s_add_u32 s82, s82, s83")
        a(f"s_add_u32 s82, s82, {r0*9216}")
        n = -(-(r1 - r0) // (6 * 288))
        for i in range(n):
            a(f"buffer_load_dword v{vd+i}, v{t1}, s[8:11], s82 offen")
            if i < n - 1: a(f"s_add_u32 s82, s82, {288*6*9216}")
        return n
    a("s_cmp_ge_u32 s2, 256")
    a("s_cbranch_scc1 K1_END")
    a("s_load_dwordx2 s[4:5], s[0:1], 0")
    a("s_load_dwordx2 s[6:7], s[0:1], 112")
    a("s_load_dwordx8 s[16:23], s[0:1], 8")
    a("s_load_dwordx4 s[52:55], s[0:1], 40")
    a("s_load_dwordx2 s[56:57], s[0:1], 104")
    a("s_load_dwordx2 s[84:85], s[0:1], 64")
    a("v_lshrrev_b32 v2, 6, v0")
    a("v_readfirstlane_b32 s59, v2")
    a("v_and_b32 v1, 63, v0")
    if KT:
        for i in range(7): a(f"s_mov_b32 s{60+2*i}, 0")
    a("s_cmp_ge_u32 s2, 64")
    a("s_cbranch_scc1 K1_CH")
    a("s_cmp_ge_u32 s59, 8")
    a("s_cbranch_scc1 K1_LN_B")
    a("s_setprio 3")
    a("v_lshrrev_b32 v2, 4, v1")
    a("v_and_b32 v3, 15, v1")
    a("s_lshl_b32 s3, s2, 5")
    a("s_lshl_b32 s26, s59, 2")
    a("s_add_u32 s3, s3, s26")
    a("v_add_u32 v4, s3, v2")
    a("s_movk_i32 s26, 1152")
    a("v_mul_lo_u32 v5, v4, s26")
    a("v_lshl_add_u32 v5, v3, 3, v5")
    a("s_waitcnt lgkmcnt(0)")
    st(0)
    srd(a, 8, 4, 5, L * D * 2)
    for i in range(9):
        a(f"buffer_load_dwordx2 v[{10+2*i}:{11+2*i}], v5, s[8:11], 0 offen offset:{128*i}")
    srd(a, 12, 6, 7, WS_HN)
    srd(a, 48, 56, 57, 256)
    a("v_mov_b32 v6, 0")
    a("ds_write_b32 v6, v6")
    a("v_lshlrev_b32 v7, 2, v4")
    if STP:
        a("v_lshrrev_b32 v9, 9, v7")
        a("v_and_b32 v7, 511, v7")
        a("v_lshl_add_u32 v7, v9, 10, v7")
        a("v_add_u32 v7, 512, v7")
    a("v_mov_b32 v8, 1")
    if XM:
        a("v_lshrrev_b32 v28, 8, v4")
        a("v_lshlrev_b32 v28, 10, v28")
        a("v_and_b32 v29, 255, v4")
        a("v_lshl_add_u32 v28, v29, 1, v28")
        a("v_add_u32 v28, 512, v28")
    if F4:
        a("s_cmp_lg_u32 s59, 0")
        a("s_cbranch_scc1 K1_LN_Z")
        a(f"s_cmp_ge_u32 s2, {RC_N}")
        a("s_cbranch_scc1 K1_LN_Z")
        a(f"s_mul_i32 s26, s2, {RC_STRIDE}")
        a(f"s_add_u32 s26, s26, {WS_RC}")
        a("s_mov_b64 exec, 1")
        a("buffer_store_dword v6, v6, s[12:15], s26 offen sc1")
        a("s_mov_b64 exec, -1")
        a.label("K1_LN_Z")
    LNB = 'lnb' in OPTS
    if LNB:
        a("s_waitcnt lgkmcnt(0)")
    else:
        a("s_waitcnt vmcnt(0) lgkmcnt(0)")
        st(1)
    a.label("K1_LN_B")
    a("s_barrier")
    a("s_cmp_ge_u32 s59, 8")
    a("s_cbranch_scc1 K1_PF")
    if LNB:
        a("s_waitcnt vmcnt(0)")
        st(1)
    if XM:
        a("s_mov_b32 exec_lo, 0x80008000")
        a("s_mov_b32 exec_hi, 0x80008000")
        for i in (0, 3, 6):
            a(f"s_mov_b32 s26, {WS_XM + i*8192}")
            a(f"buffer_store_short_d16_hi v{11+2*i}, v28, s[12:15], s26 offen sc1")
        a("s_mov_b32 exec_lo, 0x00010001")
        a("s_mov_b32 exec_hi, 0x00010001")
        for i in (2, 5, 8):
            a(f"s_mov_b32 s26, {WS_XM + i*8192}")
            a(f"buffer_store_short v{10+2*i}, v28, s[12:15], s26 offen sc1")
        a("s_mov_b64 exec, -1")
    for i in range(18):
        a(f"v_lshlrev_b32 v{30+2*i}, 16, v{10+i}")
        a(f"v_and_b32 v{31+2*i}, 0xffff0000, v{10+i}")
    a("v_pk_add_f32 v[66:67], v[30:31], v[32:33]")
    a("v_pk_add_f32 v[68:69], v[34:35], v[36:37]")
    for i in range(4, 18):
        r = 66 + 2 * (i % 2)
        a(f"v_pk_add_f32 v[{r}:{r+1}], v[{r}:{r+1}], v[{30+2*i}:{31+2*i}]")
    a("v_pk_add_f32 v[66:67], v[66:67], v[68:69]")
    a("v_add_f32 v66, v66, v67")
    def red16(r):
        for m in ("quad_perm:[1,0,3,2]", "quad_perm:[2,3,0,1]", "row_half_mirror", "row_mirror"):
            a(f"v_add_f32_dpp v{r}, v{r}, v{r} {m} row_mask:0xf bank_mask:0xf")
    red16(66)
    a(f"s_mov_b32 s26, {fhex(1.0/576)}")
    a("v_mul_f32 v70, s26, v66")
    for i in range(18):
        t = 72 + 2 * (i % 4)
        r = 66 + 2 * (i % 2)
        a(f"v_pk_add_f32 v[{t}:{t+1}], v[{30+2*i}:{31+2*i}], v[70:71] op_sel:[0,0] op_sel_hi:[1,0] neg_lo:[0,1] neg_hi:[0,1]")
        if i < 2: a(f"v_pk_mul_f32 v[{r}:{r+1}], v[{t}:{t+1}], v[{t}:{t+1}]")
        else: a(f"v_pk_fma_f32 v[{r}:{r+1}], v[{t}:{t+1}], v[{t}:{t+1}], v[{r}:{r+1}]")
    a("v_pk_add_f32 v[66:67], v[66:67], v[68:69]")
    a("v_add_f32 v66, v66, v67")
    red16(66)
    a("v_mul_f32 v66, s26, v66")
    bf16_round(a, 70, 70)
    bf16_round(a, 66, 66)
    a(f"v_add_f32 v66, {fhex(1e-5)}, v66")
    bf16_round(a, 66, 66)
    a("v_sqrt_f32 v66, v66")
    bf16_round(a, 66, 66)
    a("v_lshrrev_b32 v70, 16, v70")
    a("v_or_b32 v66, v66, v70")
    st(2)
    a("s_mov_b32 exec_lo, 0x00010001")
    a("s_mov_b32 exec_hi, 0x00010001")
    a(f"s_mov_b32 s26, {WS_ST}")
    a("buffer_store_dword v66, v7, s[12:15], s26 offen sc1")
    a("s_waitcnt vmcnt(0)")
    st(3)
    a("s_mov_b64 exec, 1")
    a("ds_add_rtn_u32 v9, v6, v8")
    a("s_waitcnt lgkmcnt(0)")
    a("v_readfirstlane_b32 s26, v9")
    a("s_cmp_lg_u32 s26, 7")
    a("s_cbranch_scc1 K1_LN_D")
    a("buffer_atomic_add v8, v6, s[48:51], 0 offen sc0 sc1")
    a("s_waitcnt vmcnt(0)")
    st(4)
    if not F4:
        a("v_readfirstlane_b32 s26, v8")
        a("s_cmp_lg_u32 s26, 63")
        a("s_cbranch_scc1 K1_LN_D")
        a("v_mov_b32 v8, 1")
        a("buffer_store_dword v8, v6, s[48:51], 0 offen offset:128 sc1")
        if KT:
            a("s_waitcnt vmcnt(0)")
            st(5)
    a.label("K1_LN_D")
    a("s_mov_b64 exec, -1")
    a("s_setprio 0")
    if KT: st_flush()
    a("s_branch K1_PF")

    a.label("K1_CH")
    phase[0] = 'ch'
    a("s_sub_u32 s3, s2, 64")
    a("s_and_b32 s26, s3, 7")
    a("s_mul_i32 s26, s26, 24")
    a("s_lshr_b32 s3, s3, 3")
    a("s_add_u32 s3, s3, s26")
    a("s_lshr_b32 s39, s59, 2")
    a("s_and_b32 s27, s59, 3")
    a("s_mul_i32 s33, s3, 3")
    a("s_add_u32 s33, s33, s39")
    a(f"s_mul_i32 s34, s39, {C_LDS}")
    a("s_movk_i32 s26, 1152")
    GROT = 'grot' in OPTS
    if GROT:
        a("s_add_u32 s35, s3, s39")
        a("s_mul_i32 s28, s35, 171")
        a("s_lshr_b32 s28, s28, 9")
        a("s_mul_i32 s28, s28, 3")
        a("s_sub_u32 s35, s35, s28")
        a("s_lshl_b32 s28, s35, 8")
        a("v_and_b32 v0, 255, v0")
        a("v_add_u32 v151, s28, v0")
        a("v_mul_lo_u32 v150, v151, s26")
        a("v_lshlrev_b32 v151, 1, v151")
    else:
        a("v_mul_lo_u32 v150, v0, s26")
        a("v_lshlrev_b32 v151, 1, v0")
        a("v_and_b32 v0, 255, v0")
    a("v_lshrrev_b32 v3, 4, v1")
    a("v_and_b32 v4, 15, v1")
    a("v_and_b32 v6, 127, v0")
    a("s_lshl_b32 s28, s33, 8")
    a("v_lshlrev_b32 v5, 1, v6")
    a("v_add_u32 v5, s28, v5")
    a("v_lshl_add_u32 v9, v1, 2, s28")
    a("s_lshl_b32 s44, s33, 1")
    a("v_mov_b32 v7, s44")
    a("s_mul_i32 s36, s3, 6")
    a("s_and_b32 s37, s36, 2")
    a("s_lshl_b32 s37, s37, 3")
    a("s_and_b32 s36, s36, -4")
    if XM:
        assert 'gst' not in OPTS
        a("s_mul_i32 s28, s3, 6")
        a("s_and_b32 s28, s28, 127")
        a("s_mov_b32 s32, 3")
        a("s_cmp_lg_u32 s28, 126")
        a("s_cbranch_scc1 K1_XM1")
        a("s_add_u32 s36, s36, 4")
        a("s_mov_b32 s37, 0")
        a("s_mov_b32 s32, 0")
        a.label("K1_XM1")
        a("s_cmp_lg_u32 s28, 124")
        a("s_cbranch_scc1 K1_XM2")
        a("s_sub_u32 s36, s36, 4")
        a("s_mov_b32 s37, 32")
        a("s_mov_b32 s32, 2")
        a.label("K1_XM2")
    a(f"s_add_u32 s38, s36, {768*1152}")
    a(f"s_add_u32 s58, s36, {2*768*1152}")
    a("s_waitcnt lgkmcnt(0)")
    sth(0)
    srd(a, 40, 52, 53, D * 2)
    a("buffer_load_ushort v14, v7, s[40:43], 0 offen")
    srd(a, 8, 16, 17, D * NM * 2)
    a("buffer_load_ushort v10, v5, s[8:11], 0 offen")
    srd(a, 28, 18, 19, D * NM * 2)
    a("buffer_load_ushort v11, v5, s[28:31], 0 offen")
    srd(a, 44, 20, 21, D * NM * 2)
    a("buffer_load_dword v24, v9, s[44:47], 0 offen")
    a("buffer_load_ushort v12, v5, s[44:47], 0 offen")
    srd(a, 48, 22, 23, D * NM * 2)
    a("buffer_load_dword v25, v9, s[48:51], 0 offen")
    a("buffer_load_ushort v13, v5, s[48:51], 0 offen")
    srd(a, 40, 54, 55, D * 2)
    a("buffer_load_ushort v160, v7, s[40:43], 0 offen")
    srd(a, 8, 4, 5, L * D * 2)
    sth(1)
    def gathers():
        a("buffer_load_dwordx2 v[152:153], v150, s[8:11], s36 offen")
        a("buffer_load_dwordx2 v[154:155], v150, s[8:11], s38 offen")
        a("buffer_load_dwordx2 v[156:157], v150, s[8:11], s58 offen")
    srd(a, 12, 6, 7, WS_HN)
    srd(a, 48, 56, 57, 256)
    a(f"s_mov_b32 s44, {hex(LOG2E)}")
    a(f"s_mov_b32 s45, {fhex(1.4426950408889634 - 1.4426950216293335)}")
    a(f"s_mov_b32 s46, {fhex(0.6931471805599453)}")
    a(f"s_mov_b32 s47, {hex(INV2PI)}")
    a(f"s_mov_b32 s26, {hex(LOG2E | 0x80000000)}")
    a("v_lshrrev_b32 v8, 3, v6")
    a("v_mul_u32_u24 v8, 544, v8")
    a("v_bfe_u32 v9, v6, 2, 1")
    a("v_lshl_add_u32 v8, v9, 8, v8")
    a("v_and_b32 v9, 3, v6")
    a("v_lshl_add_u32 v8, v9, 2, v8")
    a("v_add_u32 v8, s34, v8")
    a("s_lshr_b32 s28, s27, 1")
    a(f"s_mul_i32 s28, s28, {2*C_TT}")
    a("v_add_u32 v8, s28, v8")
    a(f"v_add_u32 v2, {C_TT}, v8")
    a("v_lshrrev_b32 v9, 1, v3")
    a("v_mul_u32_u24 v9, 544, v9")
    a("v_and_b32 v5, 1, v3")
    a("v_lshl_add_u32 v9, v5, 8, v9")
    a("v_lshl_add_u32 v9, v4, 4, v9")
    a("v_add_u32 v9, s34, v9")
    a("s_cmp_eq_u32 s27, 1")
    a("s_cbranch_scc1 K1_KG_T1")
    a("s_cmp_eq_u32 s27, 2")
    a("s_cbranch_scc1 K1_KG_T2")
    a("v_and_b32 v100, 1, v3")
    a("v_lshlrev_b32 v100, 2, v100")
    a("v_lshrrev_b32 v101, 1, v3")
    a("v_lshl_add_u32 v100, v101, 7, v100")
    a("v_lshl_add_u32 v100, v4, 3, v100")
    for r in range(1, 4): a(f"v_add_u32 v{100+r}, {r}, v100")
    a("s_branch K1_KG_SC")
    a.label("K1_KG_T1")
    a("v_lshlrev_b32 v104, 6, v3")
    a("v_lshl_add_u32 v104, v4, 2, v104")
    a("v_add_u32 v104, 256, v104")
    a("v_lshlrev_b32 v105, 6, v3")
    a("v_lshl_add_u32 v105, v4, 1, v105")
    a("v_add_u32 v105, 256, v105")
    a("v_cmp_gt_u32 vcc, 2, v3")
    for r in range(4):
        a(f"v_add_u32 v106, {r}, v104")
        a(f"v_add_u32 v107, {32*(r>>1)+(r&1)}, v105")
        a(f"v_cndmask_b32 v{100+r}, v107, v106, vcc")
    a("s_branch K1_KG_SC")
    a.label("K1_KG_T2")
    a("v_lshlrev_b32 v100, 6, v3")
    a("v_add_u32 v100, v4, v100")
    a("v_add_u32 v100, 512, v100")
    for r in range(1, 4): a(f"v_add_u32 v{100+r}, {16*r}, v100")
    a.label("K1_KG_SC")
    for r in range(4): a(f"v_lshl_add_u32 v{140+r}, v{100+r}, 2, s34")
    GM = [o for o in OPTS if o.startswith('g=')]
    GM = GM[0][2:] if GM else 'sp'
    GST = 'gst' in OPTS
    assert not GST or GM == 'sp'
    if GST:
        a("s_and_b32 s32, s36, 127")
        a("s_cmp_eq_u32 s32, 124")
        a("s_cselect_b32 s32, 0, 1")
        a("s_add_u32 s32, s32, s39")
    def gpoint(k):
        lab = a.newlabel("K1_GP")
        if GST: a(f"s_cmp_lg_u32 s32, {k+1}")
        else: a(f"s_cmp_lg_u32 s39, {k}")
        a(f"s_cbranch_scc1 {lab}")
        gathers()
        a.label(lab)
    if GM == 'sp0':
        a("s_barrier")
    def static_addr():
        if 'sa2' in OPTS:
            a("s_add_u32 s28, s39, 1")
            a("s_and_b32 s28, s28, 3")
            a("s_xor_b32 s29, s28, s27")
            a("s_lshl_b32 s28, s28, 6")
            a("v_xor_b32 v117, s28, v0")
            a("v_lshlrev_b32 v116, 3, v117")
            a("v_sub_u32 v116, 2047, v116")
            a("v_cvt_f32_i32 v122, v116")
            a(f"s_sub_u32 s28, s34, {4*17024}")
            for p in range(6):
                e = 2 * p
                t = 118 + 2 * (p % 2)
                if e: a(f"v_add_f32 v{t}, {fhex(-float(e))}, v122")
                a(f"v_add_f32 v{t+1}, {fhex(-float(e+1))}, v122")
                a(f"v_cvt_pk_bf16_f32 v{t}, v{t if e else 122}, v{t+1}")
                a(f"v_mad_u32_u16 v{100+e}, v{t}, 4, s28")
                a(f"v_mad_u32_u16 v{101+e}, v{t}, 4, s28 op_sel:[1,0,0,0]")
            lab = a.newlabel("K1_SA")
            a("s_cmp_lg_u32 s29, 3")
            a(f"s_cbranch_scc1 {lab}")
            a(f"s_add_u32 s28, s34, {768*4}")
            a("v_mov_b32 v123, s28")
            for e in range(12):
                t = 118 + 2 * (e % 2)
                a(f"v_subrev_u32 v{t}, {e}, v116")
                a(f"v_lshl_add_u32 v{t+1}, v{t}, 2, s34")
                a(f"v_cmp_gt_i32 vcc, 128, v{t}")
                a(f"v_cndmask_b32 v{100+e}, v{100+e}, v{t+1}, vcc")
                if e >= 8:
                    a(f"v_cmp_gt_i32 vcc, 0, v{t}")
                    a(f"v_cndmask_b32 v{100+e}, v{100+e}, v123, vcc")
            a.label(lab)
            a("v_lshl_add_u32 v5, v117, 4, s34")
        else:
            a("v_lshlrev_b32 v116, 3, v0")
            a("v_sub_u32 v116, 2047, v116")
            for e in range(12):
                a(f"v_subrev_u32 v{118+(e%2)}, {e}, v116")
                a(f"v_cvt_f32_i32 v{120+(e%2)}, v{118+(e%2)}")
                a(f"v_cvt_pk_bf16_f32 v{120+(e%2)}, v{120+(e%2)}, v{120+(e%2)}")
                a(f"v_and_b32 v{120+(e%2)}, 0xffff, v{120+(e%2)}")
                a(f"v_subrev_u32 v{120+(e%2)}, 17024, v{120+(e%2)}")
                a(f"v_min_i32 v{122+(e%2)}, 127, v{118+(e%2)}")
                a(f"v_max_i32 v{120+(e%2)}, v{120+(e%2)}, v{122+(e%2)}")
                if e >= 8:
                    a(f"v_cmp_gt_i32 vcc, 0, v{118+(e%2)}")
                    a(f"v_mov_b32 v{122+(e%2)}, 768")
                    a(f"v_cndmask_b32 v{120+(e%2)}, v{120+(e%2)}, v{122+(e%2)}, vcc")
                a(f"v_lshl_add_u32 v{100+e}, v{120+(e%2)}, 2, s34")
            a("v_lshl_add_u32 v5, v0, 4, s34")
        a("v_lshlrev_b32 v23, 5, v4")
        a("v_lshl_add_u32 v23, v3, 3, v23")
        a("s_lshl_b32 s28, s27, 10")
        a("s_add_u32 s28, s28, s34")
        a("v_add_u32 v23, s28, v23")
        a("v_and_b32 v15, 3, v1")
        a(f"v_mul_u32_u24 v15, {C_CS}, v15")
        a("v_bfe_u32 v116, v1, 2, 2")
        a("v_lshl_add_u32 v15, v116, 4, v15")
        a("v_add_u32 v15, 4096, v15")
        a("v_subrev_u32 v116, 32, v1")
        a("v_lshlrev_b32 v116, 4, v116")
        a(f"v_add_u32 v116, {C_UPAD}, v116")
        a("v_cmp_gt_u32 vcc, 32, v1")
        a("v_cndmask_b32 v15, v116, v15, vcc")
        a("v_add_u32 v15, s34, v15")
        a("v_lshlrev_b32 v20, 5, v4")
        a("v_lshl_add_u32 v20, v3, 4, v20")
        a("s_lshl_b32 s28, s27, 6")
        a(f"s_sub_u32 s29, {C_UOFF-288}, s28")
        a("s_add_u32 s29, s29, s34")
        a("v_add_u32 v20, s29, v20")
        a("v_and_b32 v21, 3, v4")
        a(f"v_mul_u32_u24 v21, {C_CS}, v21")
        a("v_lshl_add_u32 v21, v3, 4, v21")
        a("v_lshrrev_b32 v116, 2, v4")
        a("v_lshlrev_b32 v116, 3, v116")
        a("v_sub_u32 v21, v21, v116")
        a("s_sub_u32 s29, 216, s28")
        a("s_add_u32 s29, s29, s34")
        a("v_add_u32 v21, s29, v21")
        if STP:
            a("v_and_b32 v22, 7, v4")
            a("v_lshlrev_b32 v22, 6, v22")
            a("v_lshrrev_b32 v116, 3, v4")
            a("v_lshl_add_u32 v22, v116, 10, v22")
            a("v_lshl_add_u32 v22, v3, 4, v22")
        else:
            a("v_lshlrev_b32 v22, 6, v4")
            a("v_lshl_add_u32 v22, v3, 4, v22")
        a(f"v_add_u32 v158, {C_LDS}, v151")
        a(f"v_add_u32 v159, {2*C_LDS}, v151")
        if XM:
            a("s_cmp_lg_u32 s32, 0")
            a("s_cbranch_scc1 K1_XM3")
            a("v_mov_b32 v116, v151")
            a("v_mov_b32 v151, v158")
            a("v_mov_b32 v158, v159")
            a("v_mov_b32 v159, v116")
            a.label("K1_XM3")
    if GM == 'sp0':
        gpoint(0)
        static_addr()
        a("s_cmp_lg_u32 s39, 0")
        a("s_cbranch_scc1 K1_PW1")
        a("s_waitcnt vmcnt(4)")
        a("s_branch K1_PW2")
        a.label("K1_PW1")
        a("s_waitcnt vmcnt(1)")
        a.label("K1_PW2")
    elif GST:
        gpoint(-1)
        static_addr()
        a("s_cmp_lg_u32 s32, 0")
        a("s_cbranch_scc1 K1_PW1")
        a("s_waitcnt vmcnt(4)")
        a("s_branch K1_PW2")
        a.label("K1_PW1")
        a("s_waitcnt vmcnt(1)")
        a.label("K1_PW2")
    else:
        static_addr()
        a("s_waitcnt vmcnt(1)")
    st(0)
    sth(2)
    gpoint(1 if GM == 'sp0' else 0)
    sth(3)
    a("v_lshlrev_b32 v14, 16, v14")
    exp_precise(a, 16, 14, 17, 18, 44, 45, 46)
    a("v_lshlrev_b32 v10, 16, v10")
    exp_precise(a, 19, 10, 28, 29, 44, 45, 46)
    bf16_round(a, 16, 16)
    bf16_round(a, 19, 19)
    a("v_add_f32 v17, v16, v16")
    a("v_mul_f32 v19, v19, v16")
    a("v_mul_f32 v32, s26, v19")
    a("v_lshlrev_b32 v11, 16, v11")
    a("v_mul_f32 v11, v11, v16")
    a("v_mul_f32 v33, s47, v11")
    a("v_and_b32 v24, 0x7fff7fff, v24")
    a("v_and_b32 v25, 0x7fff7fff, v25")
    a("v_lshlrev_b32 v28, 16, v24")
    a("v_lshlrev_b32 v29, 16, v25")
    a("v_max_u32 v24, v24, v25")
    a("v_max_u32 v28, v28, v29")
    a("v_and_b32 v24, 0xffff0000, v24")
    a("v_max_u32 v36, v24, v28")
    for mode in ("quad_perm:[1,0,3,2]", "quad_perm:[2,3,0,1]", "row_half_mirror", "row_mirror"):
        a(f"v_max_u32_dpp v36, v36, v36 {mode} row_mask:0xf bank_mask:0xf")
    for k, sr in enumerate((24, 25, 30, 31)): a(f"v_readlane_b32 s{sr}, v36, {16*k}")
    a("s_max_u32 s24, s24, s25")
    a("s_max_u32 s30, s30, s31")
    a("s_max_u32 s24, s24, s30")
    a("v_mul_f32 v36, s24, v17")
    a("v_frexp_exp_i32_f32 v26, v36")
    a("v_sub_u32 v31, 0, v26")
    def direct(dst, n, conj, t):
        c = fhex(float(n)) if n not in (1, 2, 4) else f"{float(n)}"
        a(f"v_mul_f32 v{t}, {c}, v32")
        a(f"v_mul_f32 v{t+1}, {c}, v33")
        a(f"v_fract_f32 v{t+1}, v{t+1}")
        a(f"v_exp_f32 v{t}, v{t}")
        a(f"v_cos_f32 v{t+2}, v{t+1}")
        a(f"v_sin_f32 v{t+3}, v{t+1}")
        a(f"v_mul_f32 v{dst}, v{t}, v{t+2}")
        a(f"v_mul_f32 v{dst+1}, {'-' if conj else ''}v{t}, v{t+3}")
    pend = {}
    cv = [0]
    def put(T, i, p):
        r = 80 + (cv[0] % 16); cv[0] += 1
        a(f"v_cvt_pk_f16_f32 v{r}, v{p}, v{p+1}")
        o = (T, i ^ 1)
        if o in pend:
            ro = pend.pop(o)
            lo, hi = (ro, r) if i & 1 else (r, ro)
            a(f"ds_write2_b32 v{8 if T == 0 else 2}, v{lo}, v{hi} offset0:{4*(i & ~1)} offset1:{4*(i | 1)}")
        else: pend[(T, i)] = r
    G2K = 2 if GM == 'sp0' else 1
    a("s_cmp_ge_u32 s27, 2")
    a("s_cbranch_scc1 K1_H1")
    direct(40, 8, False, 72)
    direct(42, 1, True, 76)
    direct(44, 128, True, 64)
    a("v_lshlrev_b32 v12, 16, v12")
    a("v_lshlrev_b32 v13, 16, v13")
    a("v_mul_f32 v12, v12, v17")
    a("v_mul_f32 v13, v13, v17")
    a("v_ldexp_f32 v46, v12, v31")
    a("v_ldexp_f32 v47, v13, v31")
    a("v_mov_b32 v52, 1.0")
    a("v_mov_b32 v53, 0")
    put(0, 0, 46); put(1, 0, 52); put(1, 1, 42); put(1, 8, 44)
    if GM == 'sp': gpoint(1)
    ecur, enx = 46, 48
    ycur, ynx = 42, 54
    for k in range(1, 16):
        if k == (3 if GM == 'sp0' else 6): gpoint(2)
        cmul(a, enx, ecur, 40, 50)
        if k <= 7:
            cmul(a, 58, ycur, 44, 60)
            if k < 7: cmul(a, ynx, ycur, 42, 62)
        put(0, k, enx)
        if k <= 7:
            put(1, 8 + k, 58)
            if k < 7: put(1, k + 1, ynx)
            ycur, ynx = ynx, (56 if ynx == 54 else 54)
        ecur, enx = enx, ecur
    assert not pend, pend
    a("s_branch K1_HJ")
    a.label("K1_H1")
    cv[0] = 0
    direct(40, 2, True, 72)
    direct(42, 128, True, 76)
    cmul(a, 44, 40, 40, 60)
    cmul(a, 48, 42, 42, 62)
    cmul(a, 46, 44, 40, 60)
    cmul(a, 50, 48, 42, 62)
    cmul(a, 52, 48, 48, 60)
    cmul(a, 54, 52, 52, 62)
    if GM == 'sp': gpoint(1)
    ys = [40, 44, 46]
    gcur, gnx = 54, 56
    put(1, 0, 54)
    bcur, bnx = 52, 64
    k2 = 1
    def g2step():
        nonlocal gcur, gnx, k2
        if k2 > 15: return
        cmul(a, gnx, gcur, 42, 58)
        put(1, k2, gnx)
        gcur, gnx = gnx, gcur
        k2 += 1
    for base, j0 in ((48, 0), (50, 4)):
        put(0, j0, base)
        for t in range(3):
            cmul(a, 66, base, ys[t], 60)
            g2step()
            put(0, j0 + 1 + t, 66)
        if j0 == 0 and GM == 'sp0': gpoint(2)
    if GM == 'sp': gpoint(2)
    for t in range(4):
        cmul(a, 66, bcur, 44, 60)
        if t < 3: cmul(a, bnx, bcur, 42, 62)
        put(0, 8 + 2 * t, bcur)
        g2step()
        put(0, 8 + 2 * t + 1, 66)
        if t < 3: bcur, bnx = bnx, (68 if bnx == 64 else 64)
    while k2 <= 15: g2step()
    assert not pend, pend
    a.label("K1_HJ")
    a("s_waitcnt lgkmcnt(0)")
    a("s_barrier")
    st(1)
    sth(4)
    a("s_cmp_eq_u32 s27, 3")
    a("s_cbranch_scc1 K1_KG_Z")
    a(f"s_mul_i32 s28, s27, {C_TT}")
    a(f"s_add_u32 s28, s28, {C_TT}")
    a("v_add_u32 v7, s28, v9")
    AFR = 36; BFR = 68; ACCK = 128
    for ks in range(8):
        a(f"ds_read_b128 v[{AFR+4*ks}:{AFR+4*ks+3}], v7 offset:{1088*ks}")
        a(f"ds_read_b128 v[{BFR+4*ks}:{BFR+4*ks+3}], v9 offset:{1088*ks}")
    for ks in range(8):
        a(f"s_waitcnt lgkmcnt({14-2*ks})")
        acc = ACCK + 4 * (ks % 2)
        a(f"v_mfma_f32_16x16x32_f16 v[{acc}:{acc+3}], v[{AFR+4*ks}:{AFR+4*ks+3}], v[{BFR+4*ks}:{BFR+4*ks+3}], {'0' if ks < 2 else f'v[{acc}:{acc+3}]'}")
    for r in range(4):
        a(f"v_add_f32 v{ACCK+r}, v{ACCK+r}, v{ACCK+4+r}")
        a(f"v_ldexp_f32 v{ACCK+r}, v{ACCK+r}, v26")
        a(f"ds_write_b32 v{140+r}, v{ACCK+r} offset:{C_KC}")
    a("s_branch K1_KG_X")
    a.label("K1_KG_Z")
    a("v_mov_b32 v7, s34")
    a("v_mov_b32 v36, 0")
    a(f"ds_write_b32 v7, v36 offset:{C_KC + 768*4}")
    a.label("K1_KG_X")
    sth(5)
    a("s_waitcnt vmcnt(0)")
    sth(6)
    for k in range(3):
        lab = a.newlabel("K1_XS")
        if k == 2:
            a("s_cmp_ge_u32 s35, 2" if GROT else "s_cmp_ge_u32 s59, 8")
            a(f"s_cbranch_scc1 {lab}")
        r = 152 + 2 * k
        a(f"v_lshrrev_b64 v[{r}:{r+1}], s37, v[{r}:{r+1}]")
        a(f"ds_write_b16 v151, v{r} offset:{C_UOFF + 1536*k}")
        a(f"ds_write_b16_d16_hi v158, v{r} offset:{C_UOFF + 1536*k}")
        a(f"ds_write_b16 v159, v{r+1} offset:{C_UOFF + 1536*k}")
        if k == 2: a.label(lab)
    a("s_waitcnt lgkmcnt(0)")
    a("s_barrier")
    st(2)
    PC = 'pollc' in OPTS
    GOFF = 0 if PC else 128
    GOV = 64 if PC else 1
    a("v_mov_b32 v7, 0")
    a(f"buffer_load_dword v9, v7, s[48:51], 0 offen offset:{GOFF} sc1")
    for e in range(12):
        a(f"ds_read_b32 v{70+e}, v{100+e} offset:{C_KC}")
    a(f"ds_read_b64 v[10:11], v23 offset:{C_UOFF}")
    a(f"ds_read_b64 v[12:13], v23 offset:{C_UOFF + 512}")
    for r in range(4): a(f"v_mov_b32 v{84+r}, 0")
    a("ds_write_b128 v15, v[84:87]")
    a(f"s_lshl_b32 s38, s27, {12 if STP else 11}")
    a(f"s_add_u32 s38, s38, {WS_ST + (512 if STP else 0)}")
    Dv = 40; Ev = 48; Ov = 52; Pv = 56
    a("s_waitcnt lgkmcnt(3)")
    for k in range(6):
        a(f"v_cvt_pk_bf16_f32 v{Dv+k}, v{70+2*k}, v{71+2*k}")
    if 'dumpR' in OPTS:
        srd(a, 28, 6, 7, WS_HT)
        a("s_mul_i32 s36, s33, %d" % RSTRIDE)
        a(f"s_add_u32 s36, s36, {WS_R}")
        a("v_lshlrev_b32 v7, 4, v0")
        a("buffer_store_dwordx4 v[40:43], v7, s[28:31], s36 offen")
        a("v_mov_b32 v7, 0")
    for k in range(4): a(f"v_mov_b32 v{Ev+k}, v{Dv+1+k}")
    for k in range(4): a(f"v_alignbit_b32 v{Ov+k}, v{Dv+k+1}, v{Dv+k}, 16")
    for k in range(4): a(f"v_alignbit_b32 v{Pv+k}, v{Dv+k+2}, v{Dv+k+1}, 16")
    src = {3: Dv, 1: Ev, 2: Ov, 0: Pv}
    def copies():
        for r in range(4):
            a(f"ds_write_b128 v5, v[{src[r]}:{src[r]+3}] offset:{r*C_CS}")
    CF = 'cpfirst' in OPTS
    if CF: copies()
    a("s_waitcnt vmcnt(0)")
    a("v_readfirstlane_b32 s36, v9")
    a(f"s_cmp_lt_u32 s36, {GOV}")
    a("s_cbranch_scc1 K1_NG1")
    def stat_loads():
        if XM:
            lab = a.newlabel("K1_XL")
            a("s_cmp_lg_u32 s32, s39")
            a(f"s_cbranch_scc1 {lab}")
            a("s_lshl_b32 s28, s27, 10")
            a("s_add_u32 s29, s28, s34")
            a("v_subrev_u32 v60, s29, v23")
            a("s_lshr_b32 s29, s33, 6")
            a("s_lshl_b32 s29, s29, 13")
            a("s_lshl_b32 s28, s28, 1")
            a("s_add_u32 s29, s29, s28")
            a(f"s_add_u32 s29, s29, {WS_XM + 512}")
            a("s_waitcnt lgkmcnt(0)")
            a("buffer_load_dwordx2 v[10:11], v60, s[12:15], s29 offen sc1")
            a("buffer_load_dwordx2 v[12:13], v60, s[12:15], s29 offen offset:1024 sc1")
            a.label(lab)
        a("buffer_load_dwordx4 v[24:27], v22, s[12:15], s38 offen sc1")
        a(f"buffer_load_dwordx4 v[28:31], v22, s[12:15], s38 offen offset:{2048 if STP else 1024} sc1")
    stat_loads()
    a("s_branch K1_NG2")
    a.label("K1_NG1")
    a(f"buffer_load_dword v9, v7, s[48:51], 0 offen offset:{GOFF} sc1")
    a.label("K1_NG2")
    if not CF: copies()
    st(3)
    ACC = 128
    for r in range(32): a(f"v_mov_b32 v{ACC+r}, 0")
    a(f"s_cmp_ge_u32 s36, {GOV}")
    a("s_cbranch_scc1 K1_GO2")
    a.label("K1_POLL")
    a("s_waitcnt vmcnt(0)")
    a("v_readfirstlane_b32 s36, v9")
    a(f"s_cmp_ge_u32 s36, {GOV}")
    a("s_cbranch_scc1 K1_GO")
    a("s_sleep 1")
    a(f"buffer_load_dword v9, v7, s[48:51], 0 offen offset:{GOFF} sc1")
    a("s_branch K1_POLL")
    a.label("K1_GO")
    stat_loads()
    a.label("K1_GO2")
    for tt in range(2):
        X = 32; M = 36; R = 40
        xp = 10 + 2 * tt; S = 24 + 4 * tt
        if XM: a(f"s_waitcnt vmcnt({1-tt})")
        a(f"v_lshlrev_b32 v{X}, 16, v{xp}")
        a(f"v_and_b32 v{X+1}, 0xffff0000, v{xp}")
        a(f"v_lshlrev_b32 v{X+2}, 16, v{xp+1}")
        a(f"v_and_b32 v{X+3}, 0xffff0000, v{xp+1}")
        if not XM: a(f"s_waitcnt vmcnt({1-tt})")
        if tt == 0: st(4)
        for k in range(4):
            a(f"v_and_b32 v{R+k}, 0xffff0000, v{S+k}")
            a(f"v_lshlrev_b32 v{M+k}, 16, v{S+k}")
            a(f"v_rcp_f32 v{R+k}, v{R+k}")
            a(f"v_sub_f32 v{X+k}, v{X+k}, v{M+k}")
        a(f"v_cvt_pk_bf16_f32 v{M}, v{X}, v{X+1}")
        a(f"v_cvt_pk_bf16_f32 v{M+1}, v{X+2}, v{X+3}")
        a(f"v_lshlrev_b32 v{X}, 16, v{M}")
        a(f"v_and_b32 v{X+1}, 0xffff0000, v{M}")
        a(f"v_lshlrev_b32 v{X+2}, 16, v{M+1}")
        a(f"v_and_b32 v{X+3}, 0xffff0000, v{M+1}")
        for k in range(4): a(f"v_mul_f32 v{X+k}, v{X+k}, v{R+k}")
        a(f"v_cvt_pk_bf16_f32 v{16+2*tt}, v{X}, v{X+1}")
        a(f"v_cvt_pk_bf16_f32 v{17+2*tt}, v{X+2}, v{X+3}")
        a(f"ds_write_b64 v23, v[{16+2*tt}:{17+2*tt}] offset:{C_UOFF + 512*tt}")
    a("v_lshl_add_u32 v5, v1, 4, s34")
    a("s_waitcnt lgkmcnt(0)")
    a("s_barrier")
    st(5)
    stg(0)
    ITX = [o for o in OPTS if o.startswith('itx=')]
    if ITX: touch(*(int(x) for x in ITX[0][4:].split('.')), 161, (24, 25, 26))
    ICP = 'icp' in OPTS
    IT8 = [o for o in OPTS if o.startswith('it8=')]
    def wave_in_xcd(sd):
        a(f"s_sub_u32 s{sd}, s2, 64")
        a(f"s_lshr_b32 s{sd}, s{sd}, 3")
        a(f"s_mul_i32 s{sd}, s{sd}, 12")
        a(f"s_add_u32 s{sd}, s{sd}, s59")
    if 'sf1' in OPTS:
        from gen_k5s import WS_XB, WS_END3, SK, NT_
        assert SK == 2
        srd(a, 8, 6, 7, WS_END3)
        a("v_lshrrev_b32 v36, 3, v1")
        a("v_cmp_le_u32 vcc, 3, v36")
        a("v_addc_co_u32 v36, vcc, 0, v36, vcc")
        a("v_and_b32 v37, 7, v1")
        a("v_lshlrev_b32 v37, 4, v37")
        a("v_lshl_add_u32 v36, v36, 7, v37")
        for r in range(4): a(f"v_mov_b32 v{32+r}, -1")
        a("s_mul_i32 s80, s59, 171")
        a("s_lshr_b32 s80, s80, 9")
        a("s_mul_i32 s81, s80, 3")
        a("s_sub_u32 s81, s59, s81")
        a("s_sub_u32 s82, s2, 64")
        a("s_lshl_b32 s82, s82, 2")
        a("s_add_u32 s82, s82, s80")
        a("s_bfe_u32 s83, s82, 0x10002")
        a(f"s_mul_i32 s82, s82, {NT_}")
        a("s_lshl_b32 s81, s81, 2")
        a("s_add_u32 s82, s82, s81")
        a("s_add_u32 s82, s82, 1")
        a("s_sub_u32 s82, s82, s83")
        a("s_lshl_b32 s82, s82, 11")
        a(f"s_add_u32 s82, s82, {WS_XB}")
        SFS = "" if 'sfp' in OPTS else " sc1"
        a("buffer_store_dwordx4 v[32:35], v36, s[8:11], s82 offen" + SFS)
        a("s_add_u32 s82, s82, 4096")
        a("buffer_store_dwordx4 v[32:35], v36, s[8:11], s82 offen" + SFS)
    if ICP or IT8:
        srd(a, 8, 84, 85, 2048 * 9216)
        a("s_and_b32 s80, s2, 7")
        wave_in_xcd(81)
    if ICP:
        a("s_mul_i32 s82, s80, 576")
        a("s_lshl_b32 s83, s81, 1")
        a("s_add_u32 s82, s82, s83")
        a("s_lshr_b32 s83, s82, 9")
        a("s_and_b32 s82, s82, 511")
        a("s_lshl_b32 s82, s82, 2")
        a("v_lshrrev_b32 v2, 4, v1")
        a("v_and_b32 v6, 15, v1")
        a("v_lshlrev_b32 v6, 4, v6")
        a("v_mul_u32_u24 v7, 9216, v2")
        a("v_add_u32 v7, v7, v6")
        a(f"v_mul_u32_u24 v2, {W1C_PITCH}, v2")
        a("v_add_u32 v2, v2, v6")
        a("s_mul_i32 s86, s82, 9216")
        a("s_lshl_b32 s87, s83, 10")
        a("s_add_u32 s86, s86, s87")
        a("s_add_u32 s86, s86, 256")
        a("buffer_load_dwordx4 v[24:27], v7, s[8:11], s86 offen")
        a(f"s_add_u32 s86, s86, {4*9216}")
        a("buffer_load_dwordx4 v[28:31], v7, s[8:11], s86 offen")
        a(f"s_mul_i32 s86, s82, {W1C_PITCH}")
        a("s_lshl_b32 s87, s83, 9")
        a("s_add_u32 s86, s86, s87")
        a(f"s_add_u32 s86, s86, {WS_W1C}")
    if IT8:
        r0, r1 = (int(x) for x in IT8[0][4:].split('.'))
        t8_addr(a, 80, 1, 6, 7, 82, 83)
        if 'it8t' in OPTS:
            a("s_sub_u32 s82, s2, 64")
            a("s_lshr_b32 s82, s82, 3")
            a("s_mul_i32 s81, s59, 24")
            a("s_add_u32 s81, s81, s82")
        a(f"s_mul_i32 s82, s81, {8*9216}")
        a(f"s_add_u32 s82, s82, {r0*9216}")
        n8 = -(-(r1 - r0) // (8 * 288))
        a("s_mov_b32 s87, 0")
        for i in range(n8):
            lab = a.newlabel("K1_T8")
            a(f"s_cmp_ge_u32 s82, {r1*9216}")
            a(f"s_cbranch_scc1 {lab}")
            a(f"buffer_load_dword v{161+i}, v6, s[8:11], s82 offen")
            a("s_add_u32 s87, s87, 1")
            a.label(lab)
            if i < n8 - 1: a(f"s_add_u32 s82, s82, {288*8*9216}")
    BF = 32; AF = 96
    def lda(i, h): a(f"ds_read_b64 v[{AF+4*(i%8)+2*h}:{AF+4*(i%8)+2*h+1}], v21 offset:{256*(15-i)+8*h}")
    def ldb(z): a(f"ds_read_b128 v[{BF+4*z}:{BF+4*z+3}], v20 offset:{256*z}")
    order = []
    for n in range(16): order += [('a', 15 - n, 0), ('a', 15 - n, 1), ('b', n, 0)]
    issued = 0
    def issue(n):
        nonlocal issued
        for _ in range(n):
            if issued >= len(order): return
            k, x, h = order[issued]
            if k == 'a': lda(x, h)
            else: ldb(x)
            issued += 1
    issue(15)
    for n in range(16):
        i = 15 - n
        a(f"s_waitcnt lgkmcnt({issued - (3*n + 3)})")
        af = AF + 4 * (i % 8)
        for t in range(7, (i >> 1) - 1, -1):
            z = 2 * t - i
            if z < -1: continue
            a(f"v_mfma_f32_16x16x32_bf16 v[{ACC+4*t}:{ACC+4*t+3}], v[{af}:{af+3}], v[{BF+4*(z+1)}:{BF+4*(z+1)+3}], v[{ACC+4*t}:{ACC+4*t+3}]")
        issue(3)
    stg(1)
    CPE = 'cpe' in OPTS
    def copy_store(NHS):
        srd(a, 8, 6, 7, WS_W1C + 2048 * W1C_PITCH)
        if IT8:
            assert not ITX
            for c in range(n8, -1, -1):
                if c > 0:
                    lab = a.newlabel("K1_CW")
                    a(f"s_cmp_lg_u32 s87, {c}")
                    a(f"s_cbranch_scc1 {lab}")
                    a(f"s_waitcnt vmcnt({NHS+c})")
                    a("s_branch K1_CWD")
                    a.label(lab)
                else:
                    a(f"s_waitcnt vmcnt({NHS})")
            a.label("K1_CWD")
        else:
            assert not ITX
            a(f"s_waitcnt vmcnt({NHS})")
        a("buffer_store_dwordx4 v[24:27], v2, s[8:11], s86 offen" + (" sc1" if 'cpsc1' in OPTS else ""))
        a(f"s_add_u32 s86, s86, {4*W1C_PITCH}")
        a("buffer_store_dwordx4 v[28:31], v2, s[8:11], s86 offen" + (" sc1" if 'cpsc1' in OPTS else ""))
    if ICP and CPE: copy_store(0)
    for o in range(4):
        lab = a.newlabel("K2_W")
        a(f"s_cmp_eq_u32 s27, {o}")
        a(f"s_cbranch_scc1 {lab}")
        a(f"s_sub_u32 s36, s27, {o+1}")
        a("s_and_b32 s36, s36, 3")
        a("s_lshl_b32 s36, s36, 10")
        a("v_add_u32 v22, s36, v5")
        for t in (2*o, 2*o+1):
            a(f"ds_write_b128 v22, v[{ACC+4*t}:{ACC+4*t+3}] offset:{C_PART + 3072*t}")
        a.label(lab)
    for w in range(4):
        lab = a.newlabel("K2_M")
        a(f"s_cmp_lg_u32 s27, {w}")
        a(f"s_cbranch_scc1 {lab}")
        for r in range(8): a(f"v_mov_b32 v{96+r}, v{ACC+8*w+r}")
        a.label(lab)
    a("v_subrev_u32 v8, s34, v23")
    a("s_mul_i32 s37, s27, 6144")
    a("v_add_u32 v22, s37, v5")
    a("v_lshlrev_b32 v14, 16, v160")
    a("s_waitcnt lgkmcnt(0)")
    stg(2)
    a("s_barrier")
    stg(3)
    for k in range(3):
        a(f"ds_read_b128 v[{32+8*k}:{35+8*k}], v22 offset:{C_PART + 1024*k}")
        a(f"ds_read_b128 v[{36+8*k}:{39+8*k}], v22 offset:{C_PART + 3072 + 1024*k}")
    a("s_waitcnt lgkmcnt(0)")
    stg(4)
    for r in range(8):
        a(f"v_add_f32 v{96+r}, v{96+r}, v{32+r}")
        a(f"v_add_f32 v{40+r}, v{40+r}, v{48+r}")
        a(f"v_add_f32 v{96+r}, v{96+r}, v{40+r}")
    for tt in range(2):
        y = 96 + 4 * tt; u = 16 + 2 * tt; x = 10 + 2 * tt
        a(f"v_cvt_pk_bf16_f32 v60, v{y}, v{y+1}")
        a(f"v_cvt_pk_bf16_f32 v61, v{y+2}, v{y+3}")
        a(f"v_lshlrev_b32 v62, 16, v{u}")
        a(f"v_and_b32 v63, 0xffff0000, v{u}")
        a(f"v_lshlrev_b32 v64, 16, v{u+1}")
        a(f"v_and_b32 v65, 0xffff0000, v{u+1}")
        for k in range(4): a(f"v_mul_f32 v{62+k}, v{62+k}, v14")
        a(f"v_cvt_pk_bf16_f32 v66, v62, v63")
        a(f"v_cvt_pk_bf16_f32 v67, v64, v65")
        for k in range(2):
            a(f"v_lshlrev_b32 v62, 16, v{60+k}")
            a(f"v_lshlrev_b32 v63, 16, v{66+k}")
            a(f"v_and_b32 v64, 0xffff0000, v{60+k}")
            a(f"v_and_b32 v65, 0xffff0000, v{66+k}")
            a(f"v_add_f32 v62, v62, v63")
            a(f"v_add_f32 v64, v64, v65")
            a(f"v_cvt_pk_bf16_f32 v{68+k}, v62, v64")
            a(f"v_lshlrev_b32 v62, 16, v{68+k}")
            a(f"v_lshlrev_b32 v63, 16, v{x+k}")
            a(f"v_and_b32 v64, 0xffff0000, v{68+k}")
            a(f"v_and_b32 v65, 0xffff0000, v{x+k}")
            a(f"v_add_f32 v62, v62, v63")
            a(f"v_add_f32 v64, v64, v65")
            a(f"v_cvt_pk_bf16_f32 v{70+2*tt+k}, v62, v64")
    if HTP:
        assert 'h4' in OPTS
        a("s_lshl_b32 s35, s33, 13")
        a("s_lshl_b32 s36, s27, 10")
        a("s_add_u32 s35, s35, s36")
        a(f"s_add_u32 s35, s35, {WS_HTP + 512}")
    else:
        a("s_lshl_b32 s35, s33, 12")
        a(f"s_add_u32 s35, s35, {WS_HT}")
    stg(5)
    H4 = 'h4' in OPTS
    NHS = 1 if H4 else 2
    if H4:
        a("v_and_b32 v9, 1, v3")
        a(f"v_mul_u32_u24 v9, {1016 if HTP else 504}, v9")
        a("v_add_u32 v8, v9, v8")
        a("v_permlane16_swap_b32 v70, v72")
        a("v_permlane16_swap_b32 v71, v73")
        a("buffer_store_dwordx4 v[70:73], v8, s[12:15], s35 offen" + (" sc1" if F4 else ""))
    else:
        a("buffer_store_dwordx2 v[70:71], v8, s[12:15], s35 offen" + (" sc1" if F4 else ""))
        a("buffer_store_dwordx2 v[72:73], v8, s[12:15], s35 offen offset:512" + (" sc1" if F4 else ""))
    if ICP and not CPE: copy_store(NHS)
    if F4:
        a(f"s_waitcnt vmcnt({2 if (ICP and not CPE) else 0})")
        st(6)
        stg(6)
        ln2_tail(a, st if 'st4' in OPTS else None)
    if KT:
        a("s_waitcnt vmcnt(0) lgkmcnt(0)")
        if not F4:
            st(6)
            stg(6)
        st_flush()
    a("s_branch K1_END")
    a.label("K1_PF")
    a("s_waitcnt lgkmcnt(0)")
    if 'pfwg' in OPTS:
        a("v_mov_b32 v7, 0")
        a.label("K1_PFW")
        a("ds_read_b32 v9, v7")
        a("s_waitcnt lgkmcnt(0)")
        a("v_readfirstlane_b32 s37, v9")
        a("s_cmp_ge_u32 s37, 8")
        a("s_cbranch_scc1 K1_PFG")
        a("s_sleep 2")
        a("s_branch K1_PFW")
        a.label("K1_PFG")
    elif 'pfgo' in OPTS:
        srd(a, 48, 56, 57, 256)
        a("v_mov_b32 v7, 0")
        a.label("K1_PFW")
        a("buffer_load_dword v9, v7, s[48:51], 0 offen offset:128 sc1")
        a("s_waitcnt vmcnt(0)")
        a("v_readfirstlane_b32 s37, v9")
        a("s_cmp_lg_u32 s37, 0")
        a("s_cbranch_scc1 K1_PFG")
        a("s_sleep 2")
        a("s_branch K1_PFW")
        a.label("K1_PFG")
    gen_prefetch(a, 1, 0, "K1_END")
    a.label("K1_END")
    kst_end(a, 0, 256)
    a("s_endpgm")
    return name, 164, K12C_LDS
```

```python
from gen import *
from gen_k12b import cmul
from gen_k2 import ht_group_addr
OPTS = os.environ.get('GOPT', '').split(',')
C_CS = 4160
C_PART = 4 * C_CS
C_UPAD = C_PART + 24576
C_UOFF = C_UPAD + 512
C_KC = C_UOFF + 4096
C_LDS = C_KC + 3072 + 64
K12C_LDS = 3 * C_LDS
C_TT = 8 * 1088
WS_ST = WS_UT
STP = 'stp' in OPTS
WS_RC = 0x240000
RC_N = int(([o[3:] for o in OPTS if o.startswith('rc=')] or ['32'])[0])
RC_STRIDE = 4352
XM = 'xm' in OPTS
WS_XM = 0x300000

def ln2_tail(a, st):
    opt_sleep = int(([o[4:] for o in OPTS if o.startswith('psl=')] or ['4'])[0])
    a("s_barrier")
    a("s_mul_i32 s36, s59, 171")
    a("s_lshr_b32 s36, s36, 9")
    a("s_sub_u32 s37, s2, 64")
    a("s_lshr_b32 s38, s37, 3")
    a("s_and_b32 s37, s37, 7")
    a("v_mov_b32 v6, 0")
    a("s_cmp_lg_u32 s59, 0")
    a("s_cbranch_scc1 K1_F_NA")
    a("v_mov_b32 v7, 1")
    a(f"v_mul_u32_u24 v9, {RC_STRIDE}, v1")
    a(f"s_mov_b32 s39, {WS_RC}")
    a(f"s_mov_b32 exec_lo, {hex((1 << RC_N) - 1)}")
    a("s_mov_b32 exec_hi, 0")
    a("buffer_atomic_add v7, v9, s[12:15], s39 offen sc1")
    a("s_mov_b64 exec, -1")
    a("s_sub_u32 s35, s2, 64")
    a(f"s_and_b32 s35, s35, {RC_N - 1}")
    a(f"s_mul_i32 s35, s35, {RC_STRIDE}")
    a(f"s_add_u32 s35, s35, {WS_RC}")
    a.label("K1_F_NA")
    a("s_cmp_ge_u32 s36, 2")
    a("s_cbranch_scc1 K1_F_PF")
    a("s_cmp_eq_u32 s36, 0")
    a("s_cbranch_scc1 K1_F_ACT")
    a("s_cmp_ge_u32 s38, 8")
    a("s_cbranch_scc1 K1_F_IDLE")
    a("s_add_u32 s38, s38, 24")
    a.label("K1_F_ACT")
    a("s_lshl_b32 s3, s37, 5")
    a("s_add_u32 s3, s3, s38")
    a("s_mul_i32 s39, s36, 3")
    a("s_sub_u32 s39, s59, s39")
    a("s_lshl_b32 s39, s39, 6")
    a("v_add_u32 v0, s39, v1")
    a("s_lshl_b32 s39, s36, 10")
    ht_group_addr(a)
    a("v_and_b32 v5, 7, v1")
    a("v_lshlrev_b32 v5, 1, v5")
    srd(a, 8, 6, 7, WS_G)
    a("s_mov_b32 s36, 0x40000")
    a("v_lshrrev_b32 v7, 4, v0")
    a("v_cmp_le_u32 vcc, 6, v7")
    a("v_cndmask_b32 v8, 0, 1, vcc")
    a("v_mul_u32_u24 v27, 6, v8")
    a("v_sub_u32 v7, v7, v27")
    a("v_cmp_le_u32 vcc, 3, v7")
    a("v_addc_co_u32 v7, vcc, 0, v7, vcc")
    a(f"v_mul_u32_u24 v8, {2*ABLK}, v8")
    a("v_lshl_add_u32 v8, v7, 7, v8")
    a("v_and_b32 v7, 7, v0")
    a("v_lshl_add_u32 v8, v7, 4, v8")
    a("v_bfe_u32 v7, v0, 3, 1")
    a("v_lshl_add_u32 v8, v7, 10, v8")
    a("s_lshr_b32 s30, s3, 3")
    a(f"s_mul_i32 s30, s30, {12*ABLK}")
    a("s_bfe_u32 s31, s3, 0x10002")
    a(f"s_mul_i32 s31, s31, {ABLK}")
    a("s_add_u32 s30, s30, s31")
    a("s_and_b32 s31, s3, 3")
    a("s_lshl_b32 s31, s31, 11")
    a("s_add_u32 s30, s30, s31")
    a(f"s_add_u32 s30, s30, {WS_HN}")
    a(f"s_mov_b32 s26, {fhex(1.0/576)}")
    a("v_lshrrev_b32 v29, 4, v0")
    a("v_lshlrev_b32 v29, 6, v29")
    a("v_add_u32 v29, s39, v29")
    a("v_and_b32 v27, 15, v1")
    a("v_lshlrev_b32 v27, 2, v27")
    a("v_add_u32 v27, s39, v27")
    a("s_cmp_lg_u32 s59, 0")
    a("s_cbranch_scc1 K1_F_GO")
    NPP = int(([o[4:] for o in OPTS if o.startswith('npp=')] or ['1'])[0])
    if NPP > 1:
        a("s_mov_b64 exec, 1")
        for k in range(NPP):
            a(f"v_mov_b32 v{104+k}, 0")
            a(f"buffer_atomic_add v{104+k}, v6, s[12:15], s35 offen sc0 sc1")
            if k < NPP - 1: a(f"s_sleep {opt_sleep}")
        a.label("K1_F_POLL")
        for k in range(NPP):
            a(f"s_waitcnt vmcnt({NPP-1})")
            a(f"v_readfirstlane_b32 s37, v{104+k}")
            a("s_cmp_ge_u32 s37, 192")
            a("s_cbranch_scc1 K1_F_GO1")
            a(f"v_mov_b32 v{104+k}, 0")
            a(f"buffer_atomic_add v{104+k}, v6, s[12:15], s35 offen sc0 sc1")
        a("s_sub_u32 s36, s36, 1")
        a("s_cmp_lg_u32 s36, 0")
        a("s_cbranch_scc1 K1_F_POLL")
        a.label("K1_F_GO1")
        a("s_mov_b64 exec, -1")
    else:
        a.label("K1_F_POLL")
        a("s_mov_b64 exec, 1")
        if 'apoll' in OPTS:
            a("v_mov_b32 v9, 0")
            a("buffer_atomic_add v9, v6, s[12:15], s35 offen sc0 sc1")
        else:
            a("buffer_load_dword v9, v6, s[12:15], s35 offen sc1")
        a("s_mov_b64 exec, -1")
        a("s_waitcnt vmcnt(0)")
        a("v_readfirstlane_b32 s37, v9")
        a("s_cmp_ge_u32 s37, 192")
        a("s_cbranch_scc1 K1_F_GO")
        a("s_sub_u32 s36, s36, 1")
        a("s_cmp_eq_u32 s36, 0")
        a("s_cbranch_scc1 K1_F_GO")
        a(f"s_sleep {opt_sleep}")
        a("s_branch K1_F_POLL")
    a.label("K1_F_GO")
    a("s_barrier")
    if st: st(0)
    for i in range(3):
        a(f"s_add_u32 s29, s28, {i*192*(8192 if HTP else 4096)}")
        a(f"buffer_load_dwordx4 v[{10+4*i}:{13+4*i}], v4, s[8:11], s29 offen sc1")
    a("buffer_load_dwordx4 v[22:25], v6, s[8:11], s28 offen sc1")
    a("buffer_load_ushort v26, v5, s[8:11], s28 offen sc1")
    a("s_waitcnt vmcnt(0)")
    if st: st(1)
    X = 32
    for i in range(4):
        for k in range(4):
            a(f"v_lshlrev_b32 v{X+8*i+2*k}, 16, v{10+4*i+k}")
            a(f"v_and_b32 v{X+8*i+2*k+1}, 0xffff0000, v{10+4*i+k}")
    a("v_lshlrev_b32 v26, 16, v26")
    S = 64
    for i in range(3):
        for e in range(8):
            a(f"v_sub_f32 v{80+8*i+e}, v{X+8*i+e}, v{56+e}")
    for e in range(8):
        a(f"v_add_f32 v{S+e}, v{80+e}, v{88+e}")
        a(f"v_mul_f32 v{S+8+e}, v{80+e}, v{80+e}")
    for e in range(8):
        a(f"v_add_f32 v{S+e}, v{S+e}, v{96+e}")
        a(f"v_fmac_f32 v{S+8+e}, v{88+e}, v{88+e}")
    for e in range(8):
        a(f"v_fmac_f32 v{S+8+e}, v{96+e}, v{96+e}")
    for mode in ("quad_perm:[1,0,3,2]", "quad_perm:[2,3,0,1]", "row_half_mirror", "row_mirror"):
        for e in range(16):
            a(f"v_add_f32_dpp v{S+e}, v{S+e}, v{S+e} {mode} row_mask:0xf bank_mask:0xf")
    a("v_and_b32 v28, 15, v1")
    a("v_cmp_eq_u32 vcc, 0, v28")
    a("s_and_saveexec_b64 s[32:33], vcc")
    for k in range(4):
        a(f"ds_write_b128 v29, v[{S+4*k}:{S+4*k+3}] offset:{16*k}")
    a("s_mov_b64 exec, s[32:33]")
    a("s_waitcnt lgkmcnt(0)")
    a("s_barrier")
    if st: st(2)
    for r in range(12):
        a(f"ds_read_b32 v{80+r}, v27 offset:{64*r}")
    a("s_waitcnt lgkmcnt(0)")
    for k in range(6): a(f"v_add_f32 v{80+k}, v{80+k}, v{86+k}")
    for k in range(3): a(f"v_add_f32 v{80+k}, v{80+k}, v{83+k}")
    a("v_add_f32 v80, v80, v81")
    a("v_add_f32 v80, v80, v82")
    a("v_mov_b32_dpp v81, v80 row_ror:8 row_mask:0xf bank_mask:0xf")
    a("v_and_b32 v28, 8, v1")
    a("v_cmp_eq_u32 vcc, 0, v28")
    a("v_cndmask_b32 v82, v81, v80, vcc")
    a("v_cndmask_b32 v83, v80, v81, vcc")
    a("v_mul_f32 v82, s26, v82")
    a("v_mul_f32 v83, s26, v83")
    a("v_fma_f32 v83, -v82, v82, v83")
    a("v_max_f32 v83, 0, v83")
    a("v_add_f32 v82, v82, v26")
    bf16_round(a, 82, 82)
    bf16_round(a, 83, 83)
    a(f"v_add_f32 v83, {fhex(1e-5)}, v83")
    bf16_round(a, 83, 83)
    a("v_sqrt_f32 v83, v83")
    bf16_round(a, 83, 83)
    a("v_rcp_f32 v83, v83")
    for e in range(8):
        a(f"v_readlane_b32 s{40+e}, v82, {e}")
        a(f"v_readlane_b32 s{48+e}, v83, {e}")
    for i in range(3):
        for k in range(4):
            x0 = X + 8*i + 2*k; x1 = x0 + 1
            a(f"v_subrev_f32 v{x0}, s{40+2*k}, v{x0}")
            a(f"v_subrev_f32 v{x1}, s{41+2*k}, v{x1}")
            a(f"v_cvt_pk_bf16_f32 v{84+k}, v{x0}, v{x1}")
        for k in range(4):
            x0 = X + 8*i + 2*k; x1 = x0 + 1
            a(f"v_lshlrev_b32 v{x0}, 16, v{84+k}")
            a(f"v_and_b32 v{x1}, 0xffff0000, v{84+k}")
        for k in range(4):
            x0 = X + 8*i + 2*k; x1 = x0 + 1
            a(f"v_mul_f32 v{x0}, s{48+2*k}, v{x0}")
            a(f"v_mul_f32 v{x1}, s{49+2*k}, v{x1}")
            a(f"v_cvt_pk_bf16_f32 v{10+4*i+k}, v{x0}, v{x1}")
        a(f"s_add_u32 s31, s30, {i*2*2*ABLK}")
        a(f"buffer_store_dwordx4 v[{10+4*i}:{13+4*i}], v8, s[8:11], s31 offen")
    if st: st(3)
    a("s_branch K1_F_END")
    a.label("K1_F_PF")
    I8B = [o for o in OPTS if o.startswith('it8b=')]
    if I8B:
        r0, r1 = (int(x) for x in I8B[0][5:].split('.'))
        srd(a, 8, 84, 85, 2048 * 9216)
        t8_addr(a, 37, 1, 6, 7, 82, 83)
        a("s_mul_i32 s82, s38, 6")
        a("s_add_u32 s82, s82, s59")
        a("s_sub_u32 s82, s82, 6")
        a(f"s_mul_i32 s82, s82, {8*9216}")
        a(f"s_add_u32 s82, s82, {r0*9216}")
        n8 = -(-(r1 - r0) // (8 * 144))
        for i in range(n8):
            lab = a.newlabel("K1_T8B")
            a(f"s_cmp_ge_u32 s82, {r1*9216}")
            a(f"s_cbranch_scc1 {lab}")
            a(f"buffer_load_dword v{161+i}, v6, s[8:11], s82 offen")
            a.label(lab)
            if i < n8 - 1: a(f"s_add_u32 s82, s82, {144*8*9216}")
    a.label("K1_F_IDLE")
    a("s_barrier")
    a("s_barrier")
    a.label("K1_F_END")

def gen_k12c(a):
    name = "k1_kernel"
    kernel_head(a, name)
    kst_begin(a)
    KT = 'k1st' in OPTS
    F4 = 'fuse4' in OPTS
    assert not F4 or 'pollc' in OPTS
    ST2 = 'st2' in OPTS
    phase = ['ln']
    ST3 = 'st3' in OPTS
    def st(i):
        if KT and not ((ST2 or ST3) and phase[0] == 'ch'): a(f"s_memrealtime s[{60+2*i}:{61+2*i}]")
    def sth(i):
        if KT and ST3: a(f"s_memrealtime s[{60+2*i}:{61+2*i}]")
    def stg(i):
        if KT and ST2: a(f"s_memrealtime s[{60+2*i}:{61+2*i}]")
    def st_flush():
        a("s_waitcnt lgkmcnt(0)")
        srd(a, 76, 6, 7, 0x4000000)
        for i in range(7): a(f"v_mov_b32 v{80+i}, s{60+2*i}")
        a("v_mov_b32 v87, s94")
        a("s_mul_i32 s75, s2, 384")
        a(f"s_lshl_b32 s74, s59, 5")
        a("s_add_u32 s75, s75, s74")
        a("s_add_u32 s75, s75, 0x2a00000")
        a("v_mov_b32 v78, 0")
        a("buffer_store_dwordx4 v[80:83], v78, s[76:79], s75 offen")
        a("buffer_store_dwordx4 v[84:87], v78, s[76:79], s75 offen offset:16")
    def touch(r0, r1, vd, T):
        srd(a, 8, 84, 85, r1 * 9216)
        t0, t1, t2 = T
        a(f"v_min_u32 v{t0}, 59, v1")
        a(f"v_mul_u32_u24 v{t1}, 52, v{t0}")
        a(f"v_lshrrev_b32 v{t1}, 9, v{t1}")
        a(f"v_mul_u32_u24 v{t2}, 10, v{t1}")
        a(f"v_sub_u32 v{t2}, v{t0}, v{t2}")
        a(f"v_mul_u32_u24 v{t1}, 9216, v{t1}")
        a(f"v_lshl_add_u32 v{t1}, v{t2}, 7, v{t1}")
        a("s_and_b32 s82, s2, 7")
        a("s_mul_i32 s82, s82, 27*171")
        a("s_lshr_b32 s82, s82, 10")
        a("s_lshl_b32 s82, s82, 8")
        a("s_sub_u32 s83, s2, 64")
        a("s_lshr_b32 s83, s83, 3")
        a("s_mul_i32 s83, s83, 12")
        a("s_add_u32 s83, s83, s59")
        a(f"s_mul_i32 s83, s83, {6*9216}")
        a("s_add_u32 s82, s82, s83")
        a(f"s_add_u32 s82, s82, {r0*9216}")
        n = -(-(r1 - r0) // (6 * 288))
        for i in range(n):
            a(f"buffer_load_dword v{vd+i}, v{t1}, s[8:11], s82 offen")
            if i < n - 1: a(f"s_add_u32 s82, s82, {288*6*9216}")
        return n
    a("s_cmp_ge_u32 s2, 256")
    a("s_cbranch_scc1 K1_END")
    a("s_load_dwordx2 s[4:5], s[0:1], 0")
    a("s_load_dwordx2 s[6:7], s[0:1], 112")
    a("s_load_dwordx8 s[16:23], s[0:1], 8")
    a("s_load_dwordx4 s[52:55], s[0:1], 40")
    a("s_load_dwordx2 s[56:57], s[0:1], 104")
    a("s_load_dwordx2 s[84:85], s[0:1], 64")
    a("v_lshrrev_b32 v2, 6, v0")
    a("v_readfirstlane_b32 s59, v2")
    a("v_and_b32 v1, 63, v0")
    if KT:
        for i in range(7): a(f"s_mov_b32 s{60+2*i}, 0")
    a("s_cmp_ge_u32 s2, 64")
    a("s_cbranch_scc1 K1_CH")
    a("s_cmp_ge_u32 s59, 8")
    a("s_cbranch_scc1 K1_LN_B")
    a("s_setprio 3")
    a("v_lshrrev_b32 v2, 4, v1")
    a("v_and_b32 v3, 15, v1")
    a("s_lshl_b32 s3, s2, 5")
    a("s_lshl_b32 s26, s59, 2")
    a("s_add_u32 s3, s3, s26")
    a("v_add_u32 v4, s3, v2")
    a("s_movk_i32 s26, 1152")
    a("v_mul_lo_u32 v5, v4, s26")
    a("v_lshl_add_u32 v5, v3, 3, v5")
    a("s_waitcnt lgkmcnt(0)")
    st(0)
    srd(a, 8, 4, 5, L * D * 2)
    for i in range(9):
        a(f"buffer_load_dwordx2 v[{10+2*i}:{11+2*i}], v5, s[8:11], 0 offen offset:{128*i}")
    srd(a, 12, 6, 7, WS_HN)
    srd(a, 48, 56, 57, 256)
    a("v_mov_b32 v6, 0")
    a("ds_write_b32 v6, v6")
    a("v_lshlrev_b32 v7, 2, v4")
    if STP:
        a("v_lshrrev_b32 v9, 9, v7")
        a("v_and_b32 v7, 511, v7")
        a("v_lshl_add_u32 v7, v9, 10, v7")
        a("v_add_u32 v7, 512, v7")
    a("v_mov_b32 v8, 1")
    if XM:
        a("v_lshrrev_b32 v28, 8, v4")
        a("v_lshlrev_b32 v28, 10, v28")
        a("v_and_b32 v29, 255, v4")
        a("v_lshl_add_u32 v28, v29, 1, v28")
        a("v_add_u32 v28, 512, v28")
    if F4:
        a("s_cmp_lg_u32 s59, 0")
        a("s_cbranch_scc1 K1_LN_Z")
        a(f"s_cmp_ge_u32 s2, {RC_N}")
        a("s_cbranch_scc1 K1_LN_Z")
        a(f"s_mul_i32 s26, s2, {RC_STRIDE}")
        a(f"s_add_u32 s26, s26, {WS_RC}")
        a("s_mov_b64 exec, 1")
        a("buffer_store_dword v6, v6, s[12:15], s26 offen sc1")
        a("s_mov_b64 exec, -1")
        a.label("K1_LN_Z")
    LNB = 'lnb' in OPTS
    if LNB:
        a("s_waitcnt lgkmcnt(0)")
    else:
        a("s_waitcnt vmcnt(0) lgkmcnt(0)")
        st(1)
    a.label("K1_LN_B")
    a("s_barrier")
    a("s_cmp_ge_u32 s59, 8")
    a("s_cbranch_scc1 K1_PF")
    if LNB:
        a("s_waitcnt vmcnt(0)")
        st(1)
    if XM:
        a("s_mov_b32 exec_lo, 0x80008000")
        a("s_mov_b32 exec_hi, 0x80008000")
        for i in (0, 3, 6):
            a(f"s_mov_b32 s26, {WS_XM + i*8192}")
            a(f"buffer_store_short_d16_hi v{11+2*i}, v28, s[12:15], s26 offen sc1")
        a("s_mov_b32 exec_lo, 0x00010001")
        a("s_mov_b32 exec_hi, 0x00010001")
        for i in (2, 5, 8):
            a(f"s_mov_b32 s26, {WS_XM + i*8192}")
            a(f"buffer_store_short v{10+2*i}, v28, s[12:15], s26 offen sc1")
        a("s_mov_b64 exec, -1")
    for i in range(18):
        a(f"v_lshlrev_b32 v{30+2*i}, 16, v{10+i}")
        a(f"v_and_b32 v{31+2*i}, 0xffff0000, v{10+i}")
    a("v_pk_add_f32 v[66:67], v[30:31], v[32:33]")
    a("v_pk_add_f32 v[68:69], v[34:35], v[36:37]")
    for i in range(4, 18):
        r = 66 + 2 * (i % 2)
        a(f"v_pk_add_f32 v[{r}:{r+1}], v[{r}:{r+1}], v[{30+2*i}:{31+2*i}]")
    a("v_pk_add_f32 v[66:67], v[66:67], v[68:69]")
    a("v_add_f32 v66, v66, v67")
    def red16(r):
        for m in ("quad_perm:[1,0,3,2]", "quad_perm:[2,3,0,1]", "row_half_mirror", "row_mirror"):
            a(f"v_add_f32_dpp v{r}, v{r}, v{r} {m} row_mask:0xf bank_mask:0xf")
    red16(66)
    a(f"s_mov_b32 s26, {fhex(1.0/576)}")
    a("v_mul_f32 v70, s26, v66")
    for i in range(18):
        t = 72 + 2 * (i % 4)
        r = 66 + 2 * (i % 2)
        a(f"v_pk_add_f32 v[{t}:{t+1}], v[{30+2*i}:{31+2*i}], v[70:71] op_sel:[0,0] op_sel_hi:[1,0] neg_lo:[0,1] neg_hi:[0,1]")
        if i < 2: a(f"v_pk_mul_f32 v[{r}:{r+1}], v[{t}:{t+1}], v[{t}:{t+1}]")
        else: a(f"v_pk_fma_f32 v[{r}:{r+1}], v[{t}:{t+1}], v[{t}:{t+1}], v[{r}:{r+1}]")
    a("v_pk_add_f32 v[66:67], v[66:67], v[68:69]")
    a("v_add_f32 v66, v66, v67")
    red16(66)
    a("v_mul_f32 v66, s26, v66")
    bf16_round(a, 70, 70)
    bf16_round(a, 66, 66)
    a(f"v_add_f32 v66, {fhex(1e-5)}, v66")
    bf16_round(a, 66, 66)
    a("v_sqrt_f32 v66, v66")
    bf16_round(a, 66, 66)
    a("v_lshrrev_b32 v70, 16, v70")
    a("v_or_b32 v66, v66, v70")
    st(2)
    a("s_mov_b32 exec_lo, 0x00010001")
    a("s_mov_b32 exec_hi, 0x00010001")
    a(f"s_mov_b32 s26, {WS_ST}")
    a("buffer_store_dword v66, v7, s[12:15], s26 offen sc1")
    a("s_waitcnt vmcnt(0)")
    st(3)
    a("s_mov_b64 exec, 1")
    a("ds_add_rtn_u32 v9, v6, v8")
    a("s_waitcnt lgkmcnt(0)")
    a("v_readfirstlane_b32 s26, v9")
    a("s_cmp_lg_u32 s26, 7")
    a("s_cbranch_scc1 K1_LN_D")
    a("buffer_atomic_add v8, v6, s[48:51], 0 offen sc0 sc1")
    a("s_waitcnt vmcnt(0)")
    st(4)
    if not F4:
        a("v_readfirstlane_b32 s26, v8")
        a("s_cmp_lg_u32 s26, 63")
        a("s_cbranch_scc1 K1_LN_D")
        a("v_mov_b32 v8, 1")
        a("buffer_store_dword v8, v6, s[48:51], 0 offen offset:128 sc1")
        if KT:
            a("s_waitcnt vmcnt(0)")
            st(5)
    a.label("K1_LN_D")
    a("s_mov_b64 exec, -1")
    a("s_setprio 0")
    if KT: st_flush()
    a("s_branch K1_PF")

    a.label("K1_CH")
    phase[0] = 'ch'
    a("s_sub_u32 s3, s2, 64")
    a("s_and_b32 s26, s3, 7")
    a("s_mul_i32 s26, s26, 24")
    a("s_lshr_b32 s3, s3, 3")
    a("s_add_u32 s3, s3, s26")
    a("s_lshr_b32 s39, s59, 2")
    a("s_and_b32 s27, s59, 3")
    a("s_mul_i32 s33, s3, 3")
    a("s_add_u32 s33, s33, s39")
    a(f"s_mul_i32 s34, s39, {C_LDS}")
    a("s_movk_i32 s26, 1152")
    GROT = 'grot' in OPTS
    if GROT:
        a("s_add_u32 s35, s3, s39")
        a("s_mul_i32 s28, s35, 171")
        a("s_lshr_b32 s28, s28, 9")
        a("s_mul_i32 s28, s28, 3")
        a("s_sub_u32 s35, s35, s28")
        a("s_lshl_b32 s28, s35, 8")
        a("v_and_b32 v0, 255, v0")
        a("v_add_u32 v151, s28, v0")
        a("v_mul_lo_u32 v150, v151, s26")
        a("v_lshlrev_b32 v151, 1, v151")
    else:
        a("v_mul_lo_u32 v150, v0, s26")
        a("v_lshlrev_b32 v151, 1, v0")
        a("v_and_b32 v0, 255, v0")
    a("v_lshrrev_b32 v3, 4, v1")
    a("v_and_b32 v4, 15, v1")
    a("v_and_b32 v6, 127, v0")
    a("s_lshl_b32 s28, s33, 8")
    a("v_lshlrev_b32 v5, 1, v6")
    a("v_add_u32 v5, s28, v5")
    a("v_lshl_add_u32 v9, v1, 2, s28")
    a("s_lshl_b32 s44, s33, 1")
    a("v_mov_b32 v7, s44")
    a("s_mul_i32 s36, s3, 6")
    a("s_and_b32 s37, s36, 2")
    a("s_lshl_b32 s37, s37, 3")
    a("s_and_b32 s36, s36, -4")
    if XM:
        assert 'gst' not in OPTS
        a("s_mul_i32 s28, s3, 6")
        a("s_and_b32 s28, s28, 127")
        a("s_mov_b32 s32, 3")
        a("s_cmp_lg_u32 s28, 126")
        a("s_cbranch_scc1 K1_XM1")
        a("s_add_u32 s36, s36, 4")
        a("s_mov_b32 s37, 0")
        a("s_mov_b32 s32, 0")
        a.label("K1_XM1")
        a("s_cmp_lg_u32 s28, 124")
        a("s_cbranch_scc1 K1_XM2")
        a("s_sub_u32 s36, s36, 4")
        a("s_mov_b32 s37, 32")
        a("s_mov_b32 s32, 2")
        a.label("K1_XM2")
    a(f"s_add_u32 s38, s36, {768*1152}")
    a(f"s_add_u32 s58, s36, {2*768*1152}")
    a("s_waitcnt lgkmcnt(0)")
    sth(0)
    srd(a, 40, 52, 53, D * 2)
    a("buffer_load_ushort v14, v7, s[40:43], 0 offen")
    srd(a, 8, 16, 17, D * NM * 2)
    a("buffer_load_ushort v10, v5, s[8:11], 0 offen")
    srd(a, 28, 18, 19, D * NM * 2)
    a("buffer_load_ushort v11, v5, s[28:31], 0 offen")
    srd(a, 44, 20, 21, D * NM * 2)
    a("buffer_load_dword v24, v9, s[44:47], 0 offen")
    a("buffer_load_ushort v12, v5, s[44:47], 0 offen")
    srd(a, 48, 22, 23, D * NM * 2)
    a("buffer_load_dword v25, v9, s[48:51], 0 offen")
    a("buffer_load_ushort v13, v5, s[48:51], 0 offen")
    srd(a, 40, 54, 55, D * 2)
    a("buffer_load_ushort v160, v7, s[40:43], 0 offen")
    srd(a, 8, 4, 5, L * D * 2)
    sth(1)
    def gathers():
        a("buffer_load_dwordx2 v[152:153], v150, s[8:11], s36 offen")
        a("buffer_load_dwordx2 v[154:155], v150, s[8:11], s38 offen")
        a("buffer_load_dwordx2 v[156:157], v150, s[8:11], s58 offen")
    srd(a, 12, 6, 7, WS_HN)
    srd(a, 48, 56, 57, 256)
    a(f"s_mov_b32 s44, {hex(LOG2E)}")
    a(f"s_mov_b32 s45, {fhex(1.4426950408889634 - 1.4426950216293335)}")
    a(f"s_mov_b32 s46, {fhex(0.6931471805599453)}")
    a(f"s_mov_b32 s47, {hex(INV2PI)}")
    a(f"s_mov_b32 s26, {hex(LOG2E | 0x80000000)}")
    a("v_lshrrev_b32 v8, 3, v6")
    a("v_mul_u32_u24 v8, 544, v8")
    a("v_bfe_u32 v9, v6, 2, 1")
    a("v_lshl_add_u32 v8, v9, 8, v8")
    a("v_and_b32 v9, 3, v6")
    a("v_lshl_add_u32 v8, v9, 2, v8")
    a("v_add_u32 v8, s34, v8")
    a("s_lshr_b32 s28, s27, 1")
    a(f"s_mul_i32 s28, s28, {2*C_TT}")
    a("v_add_u32 v8, s28, v8")
    a(f"v_add_u32 v2, {C_TT}, v8")
    a("v_lshrrev_b32 v9, 1, v3")
    a("v_mul_u32_u24 v9, 544, v9")
    a("v_and_b32 v5, 1, v3")
    a("v_lshl_add_u32 v9, v5, 8, v9")
    a("v_lshl_add_u32 v9, v4, 4, v9")
    a("v_add_u32 v9, s34, v9")
    a("s_cmp_eq_u32 s27, 1")
    a("s_cbranch_scc1 K1_KG_T1")
    a("s_cmp_eq_u32 s27, 2")
    a("s_cbranch_scc1 K1_KG_T2")
    a("v_and_b32 v100, 1, v3")
    a("v_lshlrev_b32 v100, 2, v100")
    a("v_lshrrev_b32 v101, 1, v3")
    a("v_lshl_add_u32 v100, v101, 7, v100")
    a("v_lshl_add_u32 v100, v4, 3, v100")
    for r in range(1, 4): a(f"v_add_u32 v{100+r}, {r}, v100")
    a("s_branch K1_KG_SC")
    a.label("K1_KG_T1")
    a("v_lshlrev_b32 v104, 6, v3")
    a("v_lshl_add_u32 v104, v4, 2, v104")
    a("v_add_u32 v104, 256, v104")
    a("v_lshlrev_b32 v105, 6, v3")
    a("v_lshl_add_u32 v105, v4, 1, v105")
    a("v_add_u32 v105, 256, v105")
    a("v_cmp_gt_u32 vcc, 2, v3")
    for r in range(4):
        a(f"v_add_u32 v106, {r}, v104")
        a(f"v_add_u32 v107, {32*(r>>1)+(r&1)}, v105")
        a(f"v_cndmask_b32 v{100+r}, v107, v106, vcc")
    a("s_branch K1_KG_SC")
    a.label("K1_KG_T2")
    a("v_lshlrev_b32 v100, 6, v3")
    a("v_add_u32 v100, v4, v100")
    a("v_add_u32 v100, 512, v100")
    for r in range(1, 4): a(f"v_add_u32 v{100+r}, {16*r}, v100")
    a.label("K1_KG_SC")
    for r in range(4): a(f"v_lshl_add_u32 v{140+r}, v{100+r}, 2, s34")
    GM = [o for o in OPTS if o.startswith('g=')]
    GM = GM[0][2:] if GM else 'sp'
    GST = 'gst' in OPTS
    assert not GST or GM == 'sp'
    if GST:
        a("s_and_b32 s32, s36, 127")
        a("s_cmp_eq_u32 s32, 124")
        a("s_cselect_b32 s32, 0, 1")
        a("s_add_u32 s32, s32, s39")
    def gpoint(k):
        lab = a.newlabel("K1_GP")
        if GST: a(f"s_cmp_lg_u32 s32, {k+1}")
        else: a(f"s_cmp_lg_u32 s39, {k}")
        a(f"s_cbranch_scc1 {lab}")
        gathers()
        a.label(lab)
    if GM == 'sp0':
        a("s_barrier")
    def static_addr():
        if 'sa2' in OPTS:
            a("s_add_u32 s28, s39, 1")
            a("s_and_b32 s28, s28, 3")
            a("s_xor_b32 s29, s28, s27")
            a("s_lshl_b32 s28, s28, 6")
            a("v_xor_b32 v117, s28, v0")
            a("v_lshlrev_b32 v116, 3, v117")
            a("v_sub_u32 v116, 2047, v116")
            a("v_cvt_f32_i32 v122, v116")
            a(f"s_sub_u32 s28, s34, {4*17024}")
            for p in range(6):
                e = 2 * p
                t = 118 + 2 * (p % 2)
                if e: a(f"v_add_f32 v{t}, {fhex(-float(e))}, v122")
                a(f"v_add_f32 v{t+1}, {fhex(-float(e+1))}, v122")
                a(f"v_cvt_pk_bf16_f32 v{t}, v{t if e else 122}, v{t+1}")
                a(f"v_mad_u32_u16 v{100+e}, v{t}, 4, s28")
                a(f"v_mad_u32_u16 v{101+e}, v{t}, 4, s28 op_sel:[1,0,0,0]")
            lab = a.newlabel("K1_SA")
            a("s_cmp_lg_u32 s29, 3")
            a(f"s_cbranch_scc1 {lab}")
            a(f"s_add_u32 s28, s34, {768*4}")
            a("v_mov_b32 v123, s28")
            for e in range(12):
                t = 118 + 2 * (e % 2)
                a(f"v_subrev_u32 v{t}, {e}, v116")
                a(f"v_lshl_add_u32 v{t+1}, v{t}, 2, s34")
                a(f"v_cmp_gt_i32 vcc, 128, v{t}")
                a(f"v_cndmask_b32 v{100+e}, v{100+e}, v{t+1}, vcc")
                if e >= 8:
                    a(f"v_cmp_gt_i32 vcc, 0, v{t}")
                    a(f"v_cndmask_b32 v{100+e}, v{100+e}, v123, vcc")
            a.label(lab)
            a("v_lshl_add_u32 v5, v117, 4, s34")
        else:
            a("v_lshlrev_b32 v116, 3, v0")
            a("v_sub_u32 v116, 2047, v116")
            for e in range(12):
                a(f"v_subrev_u32 v{118+(e%2)}, {e}, v116")
                a(f"v_cvt_f32_i32 v{120+(e%2)}, v{118+(e%2)}")
                a(f"v_cvt_pk_bf16_f32 v{120+(e%2)}, v{120+(e%2)}, v{120+(e%2)}")
                a(f"v_and_b32 v{120+(e%2)}, 0xffff, v{120+(e%2)}")
                a(f"v_subrev_u32 v{120+(e%2)}, 17024, v{120+(e%2)}")
                a(f"v_min_i32 v{122+(e%2)}, 127, v{118+(e%2)}")
                a(f"v_max_i32 v{120+(e%2)}, v{120+(e%2)}, v{122+(e%2)}")
                if e >= 8:
                    a(f"v_cmp_gt_i32 vcc, 0, v{118+(e%2)}")
                    a(f"v_mov_b32 v{122+(e%2)}, 768")
                    a(f"v_cndmask_b32 v{120+(e%2)}, v{120+(e%2)}, v{122+(e%2)}, vcc")
                a(f"v_lshl_add_u32 v{100+e}, v{120+(e%2)}, 2, s34")
            a("v_lshl_add_u32 v5, v0, 4, s34")
        a("v_lshlrev_b32 v23, 5, v4")
        a("v_lshl_add_u32 v23, v3, 3, v23")
        a("s_lshl_b32 s28, s27, 10")
        a("s_add_u32 s28, s28, s34")
        a("v_add_u32 v23, s28, v23")
        a("v_and_b32 v15, 3, v1")
        a(f"v_mul_u32_u24 v15, {C_CS}, v15")
        a("v_bfe_u32 v116, v1, 2, 2")
        a("v_lshl_add_u32 v15, v116, 4, v15")
        a("v_add_u32 v15, 4096, v15")
        a("v_subrev_u32 v116, 32, v1")
        a("v_lshlrev_b32 v116, 4, v116")
        a(f"v_add_u32 v116, {C_UPAD}, v116")
        a("v_cmp_gt_u32 vcc, 32, v1")
        a("v_cndmask_b32 v15, v116, v15, vcc")
        a("v_add_u32 v15, s34, v15")
        a("v_lshlrev_b32 v20, 5, v4")
        a("v_lshl_add_u32 v20, v3, 4, v20")
        a("s_lshl_b32 s28, s27, 6")
        a(f"s_sub_u32 s29, {C_UOFF-288}, s28")
        a("s_add_u32 s29, s29, s34")
        a("v_add_u32 v20, s29, v20")
        a("v_and_b32 v21, 3, v4")
        a(f"v_mul_u32_u24 v21, {C_CS}, v21")
        a("v_lshl_add_u32 v21, v3, 4, v21")
        a("v_lshrrev_b32 v116, 2, v4")
        a("v_lshlrev_b32 v116, 3, v116")
        a("v_sub_u32 v21, v21, v116")
        a("s_sub_u32 s29, 216, s28")
        a("s_add_u32 s29, s29, s34")
        a("v_add_u32 v21, s29, v21")
        if STP:
            a("v_and_b32 v22, 7, v4")
            a("v_lshlrev_b32 v22, 6, v22")
            a("v_lshrrev_b32 v116, 3, v4")
            a("v_lshl_add_u32 v22, v116, 10, v22")
            a("v_lshl_add_u32 v22, v3, 4, v22")
        else:
            a("v_lshlrev_b32 v22, 6, v4")
            a("v_lshl_add_u32 v22, v3, 4, v22")
        a(f"v_add_u32 v158, {C_LDS}, v151")
        a(f"v_add_u32 v159, {2*C_LDS}, v151")
        if XM:
            a("s_cmp_lg_u32 s32, 0")
            a("s_cbranch_scc1 K1_XM3")
            a("v_mov_b32 v116, v151")
            a("v_mov_b32 v151, v158")
            a("v_mov_b32 v158, v159")
            a("v_mov_b32 v159, v116")
            a.label("K1_XM3")
    if GM == 'sp0':
        gpoint(0)
        static_addr()
        a("s_cmp_lg_u32 s39, 0")
        a("s_cbranch_scc1 K1_PW1")
        a("s_waitcnt vmcnt(4)")
        a("s_branch K1_PW2")
        a.label("K1_PW1")
        a("s_waitcnt vmcnt(1)")
        a.label("K1_PW2")
    elif GST:
        gpoint(-1)
        static_addr()
        a("s_cmp_lg_u32 s32, 0")
        a("s_cbranch_scc1 K1_PW1")
        a("s_waitcnt vmcnt(4)")
        a("s_branch K1_PW2")
        a.label("K1_PW1")
        a("s_waitcnt vmcnt(1)")
        a.label("K1_PW2")
    else:
        static_addr()
        a("s_waitcnt vmcnt(1)")
    st(0)
    sth(2)
    gpoint(1 if GM == 'sp0' else 0)
    sth(3)
    a("v_lshlrev_b32 v14, 16, v14")
    exp_precise(a, 16, 14, 17, 18, 44, 45, 46)
    a("v_lshlrev_b32 v10, 16, v10")
    exp_precise(a, 19, 10, 28, 29, 44, 45, 46)
    bf16_round(a, 16, 16)
    bf16_round(a, 19, 19)
    a("v_add_f32 v17, v16, v16")
    a("v_mul_f32 v19, v19, v16")
    a("v_mul_f32 v32, s26, v19")
    a("v_lshlrev_b32 v11, 16, v11")
    a("v_mul_f32 v11, v11, v16")
    a("v_mul_f32 v33, s47, v11")
    a("v_and_b32 v24, 0x7fff7fff, v24")
    a("v_and_b32 v25, 0x7fff7fff, v25")
    a("v_lshlrev_b32 v28, 16, v24")
    a("v_lshlrev_b32 v29, 16, v25")
    a("v_max_u32 v24, v24, v25")
    a("v_max_u32 v28, v28, v29")
    a("v_and_b32 v24, 0xffff0000, v24")
    a("v_max_u32 v36, v24, v28")
    for mode in ("quad_perm:[1,0,3,2]", "quad_perm:[2,3,0,1]", "row_half_mirror", "row_mirror"):
        a(f"v_max_u32_dpp v36, v36, v36 {mode} row_mask:0xf bank_mask:0xf")
    for k, sr in enumerate((24, 25, 30, 31)): a(f"v_readlane_b32 s{sr}, v36, {16*k}")
    a("s_max_u32 s24, s24, s25")
    a("s_max_u32 s30, s30, s31")
    a("s_max_u32 s24, s24, s30")
    a("v_mul_f32 v36, s24, v17")
    a("v_frexp_exp_i32_f32 v26, v36")
    a("v_sub_u32 v31, 0, v26")
    def direct(dst, n, conj, t):
        c = fhex(float(n)) if n not in (1, 2, 4) else f"{float(n)}"
        a(f"v_mul_f32 v{t}, {c}, v32")
        a(f"v_mul_f32 v{t+1}, {c}, v33")
        a(f"v_fract_f32 v{t+1}, v{t+1}")
        a(f"v_exp_f32 v{t}, v{t}")
        a(f"v_cos_f32 v{t+2}, v{t+1}")
        a(f"v_sin_f32 v{t+3}, v{t+1}")
        a(f"v_mul_f32 v{dst}, v{t}, v{t+2}")
        a(f"v_mul_f32 v{dst+1}, {'-' if conj else ''}v{t}, v{t+3}")
    pend = {}
    cv = [0]
    def put(T, i, p):
        r = 80 + (cv[0] % 16); cv[0] += 1
        a(f"v_cvt_pk_f16_f32 v{r}, v{p}, v{p+1}")
        o = (T, i ^ 1)
        if o in pend:
            ro = pend.pop(o)
            lo, hi = (ro, r) if i & 1 else (r, ro)
            a(f"ds_write2_b32 v{8 if T == 0 else 2}, v{lo}, v{hi} offset0:{4*(i & ~1)} offset1:{4*(i | 1)}")
        else: pend[(T, i)] = r
    G2K = 2 if GM == 'sp0' else 1
    a("s_cmp_ge_u32 s27, 2")
    a("s_cbranch_scc1 K1_H1")
    direct(40, 8, False, 72)
    direct(42, 1, True, 76)
    direct(44, 128, True, 64)
    a("v_lshlrev_b32 v12, 16, v12")
    a("v_lshlrev_b32 v13, 16, v13")
    a("v_mul_f32 v12, v12, v17")
    a("v_mul_f32 v13, v13, v17")
    a("v_ldexp_f32 v46, v12, v31")
    a("v_ldexp_f32 v47, v13, v31")
    a("v_mov_b32 v52, 1.0")
    a("v_mov_b32 v53, 0")
    put(0, 0, 46); put(1, 0, 52); put(1, 1, 42); put(1, 8, 44)
    if GM == 'sp': gpoint(1)
    ecur, enx = 46, 48
    ycur, ynx = 42, 54
    for k in range(1, 16):
        if k == (3 if GM == 'sp0' else 6): gpoint(2)
        cmul(a, enx, ecur, 40, 50)
        if k <= 7:
            cmul(a, 58, ycur, 44, 60)
            if k < 7: cmul(a, ynx, ycur, 42, 62)
        put(0, k, enx)
        if k <= 7:
            put(1, 8 + k, 58)
            if k < 7: put(1, k + 1, ynx)
            ycur, ynx = ynx, (56 if ynx == 54 else 54)
        ecur, enx = enx, ecur
    assert not pend, pend
    a("s_branch K1_HJ")
    a.label("K1_H1")
    cv[0] = 0
    direct(40, 2, True, 72)
    direct(42, 128, True, 76)
    cmul(a, 44, 40, 40, 60)
    cmul(a, 48, 42, 42, 62)
    cmul(a, 46, 44, 40, 60)
    cmul(a, 50, 48, 42, 62)
    cmul(a, 52, 48, 48, 60)
    cmul(a, 54, 52, 52, 62)
    if GM == 'sp': gpoint(1)
    ys = [40, 44, 46]
    gcur, gnx = 54, 56
    put(1, 0, 54)
    bcur, bnx = 52, 64
    k2 = 1
    def g2step():
        nonlocal gcur, gnx, k2
        if k2 > 15: return
        cmul(a, gnx, gcur, 42, 58)
        put(1, k2, gnx)
        gcur, gnx = gnx, gcur
        k2 += 1
    for base, j0 in ((48, 0), (50, 4)):
        put(0, j0, base)
        for t in range(3):
            cmul(a, 66, base, ys[t], 60)
            g2step()
            put(0, j0 + 1 + t, 66)
        if j0 == 0 and GM == 'sp0': gpoint(2)
    if GM == 'sp': gpoint(2)
    for t in range(4):
        cmul(a, 66, bcur, 44, 60)
        if t < 3: cmul(a, bnx, bcur, 42, 62)
        put(0, 8 + 2 * t, bcur)
        g2step()
        put(0, 8 + 2 * t + 1, 66)
        if t < 3: bcur, bnx = bnx, (68 if bnx == 64 else 64)
    while k2 <= 15: g2step()
    assert not pend, pend
    a.label("K1_HJ")
    a("s_waitcnt lgkmcnt(0)")
    a("s_barrier")
    st(1)
    sth(4)
    a("s_cmp_eq_u32 s27, 3")
    a("s_cbranch_scc1 K1_KG_Z")
    a(f"s_mul_i32 s28, s27, {C_TT}")
    a(f"s_add_u32 s28, s28, {C_TT}")
    a("v_add_u32 v7, s28, v9")
    AFR = 36; BFR = 68; ACCK = 128
    for ks in range(8):
        a(f"ds_read_b128 v[{AFR+4*ks}:{AFR+4*ks+3}], v7 offset:{1088*ks}")
        a(f"ds_read_b128 v[{BFR+4*ks}:{BFR+4*ks+3}], v9 offset:{1088*ks}")
    for ks in range(8):
        a(f"s_waitcnt lgkmcnt({14-2*ks})")
        acc = ACCK + 4 * (ks % 2)
        a(f"v_mfma_f32_16x16x32_f16 v[{acc}:{acc+3}], v[{AFR+4*ks}:{AFR+4*ks+3}], v[{BFR+4*ks}:{BFR+4*ks+3}], {'0' if ks < 2 else f'v[{acc}:{acc+3}]'}")
    for r in range(4):
        a(f"v_add_f32 v{ACCK+r}, v{ACCK+r}, v{ACCK+4+r}")
        a(f"v_ldexp_f32 v{ACCK+r}, v{ACCK+r}, v26")
        a(f"ds_write_b32 v{140+r}, v{ACCK+r} offset:{C_KC}")
    a("s_branch K1_KG_X")
    a.label("K1_KG_Z")
    a("v_mov_b32 v7, s34")
    a("v_mov_b32 v36, 0")
    a(f"ds_write_b32 v7, v36 offset:{C_KC + 768*4}")
    if 'gsy' in OPTS: a(f"ds_write_b32 v7, v36 offset:{C_KC + 768*4 + 16}")
    a.label("K1_KG_X")
    sth(5)
    a("s_waitcnt vmcnt(0)")
    sth(6)
    for k in range(3):
        lab = a.newlabel("K1_XS")
        if k == 2:
            a("s_cmp_ge_u32 s35, 2" if GROT else "s_cmp_ge_u32 s59, 8")
            a(f"s_cbranch_scc1 {lab}")
        r = 152 + 2 * k
        a(f"v_lshrrev_b64 v[{r}:{r+1}], s37, v[{r}:{r+1}]")
        a(f"ds_write_b16 v151, v{r} offset:{C_UOFF + 1536*k}")
        a(f"ds_write_b16_d16_hi v158, v{r} offset:{C_UOFF + 1536*k}")
        a(f"ds_write_b16 v159, v{r+1} offset:{C_UOFF + 1536*k}")
        if k == 2: a.label(lab)
    a("s_waitcnt lgkmcnt(0)")
    a("s_barrier")
    st(2)
    PC = 'pollc' in OPTS
    GOFF = 0 if PC else 128
    GOV = 64 if PC else 1
    a("v_mov_b32 v7, 0")
    a(f"buffer_load_dword v9, v7, s[48:51], 0 offen offset:{GOFF} sc1")
    for e in range(12):
        a(f"ds_read_b32 v{70+e}, v{100+e} offset:{C_KC}")
    a(f"ds_read_b64 v[10:11], v23 offset:{C_UOFF}")
    a(f"ds_read_b64 v[12:13], v23 offset:{C_UOFF + 512}")
    for r in range(4): a(f"v_mov_b32 v{84+r}, 0")
    a("ds_write_b128 v15, v[84:87]")
    a(f"s_lshl_b32 s38, s27, {12 if STP else 11}")
    a(f"s_add_u32 s38, s38, {WS_ST + (512 if STP else 0)}")
    Dv = 40; Ev = 48; Ov = 52; Pv = 56
    a("s_waitcnt lgkmcnt(3)")
    for k in range(6):
        a(f"v_cvt_pk_bf16_f32 v{Dv+k}, v{70+2*k}, v{71+2*k}")
    if 'dumpR' in OPTS:
        srd(a, 28, 6, 7, WS_HT)
        a("s_mul_i32 s36, s33, %d" % RSTRIDE)
        a(f"s_add_u32 s36, s36, {WS_R}")
        a("v_lshlrev_b32 v7, 4, v0")
        a("buffer_store_dwordx4 v[40:43], v7, s[28:31], s36 offen")
        a("v_mov_b32 v7, 0")
    for k in range(4): a(f"v_mov_b32 v{Ev+k}, v{Dv+1+k}")
    for k in range(4): a(f"v_alignbit_b32 v{Ov+k}, v{Dv+k+1}, v{Dv+k}, 16")
    for k in range(4): a(f"v_alignbit_b32 v{Pv+k}, v{Dv+k+2}, v{Dv+k+1}, 16")
    src = {3: Dv, 1: Ev, 2: Ov, 0: Pv}
    def copies():
        for r in range(4):
            a(f"ds_write_b128 v5, v[{src[r]}:{src[r]+3}] offset:{r*C_CS}")
    CF = 'cpfirst' in OPTS
    if CF: copies()
    a("s_waitcnt vmcnt(0)")
    a("v_readfirstlane_b32 s36, v9")
    a(f"s_cmp_lt_u32 s36, {GOV}")
    a("s_cbranch_scc1 K1_NG1")
    def stat_loads():
        if XM:
            lab = a.newlabel("K1_XL")
            a("s_cmp_lg_u32 s32, s39")
            a(f"s_cbranch_scc1 {lab}")
            a("s_lshl_b32 s28, s27, 10")
            a("s_add_u32 s29, s28, s34")
            a("v_subrev_u32 v60, s29, v23")
            a("s_lshr_b32 s29, s33, 6")
            a("s_lshl_b32 s29, s29, 13")
            a("s_lshl_b32 s28, s28, 1")
            a("s_add_u32 s29, s29, s28")
            a(f"s_add_u32 s29, s29, {WS_XM + 512}")
            a("s_waitcnt lgkmcnt(0)")
            a("buffer_load_dwordx2 v[10:11], v60, s[12:15], s29 offen sc1")
            a("buffer_load_dwordx2 v[12:13], v60, s[12:15], s29 offen offset:1024 sc1")
            a.label(lab)
        a("buffer_load_dwordx4 v[24:27], v22, s[12:15], s38 offen sc1")
        a(f"buffer_load_dwordx4 v[28:31], v22, s[12:15], s38 offen offset:{2048 if STP else 1024} sc1")
    stat_loads()
    a("s_branch K1_NG2")
    a.label("K1_NG1")
    a(f"buffer_load_dword v9, v7, s[48:51], 0 offen offset:{GOFF} sc1")
    a.label("K1_NG2")
    if not CF: copies()
    st(3)
    ACC = 128
    for r in range(32): a(f"v_mov_b32 v{ACC+r}, 0")
    a(f"s_cmp_ge_u32 s36, {GOV}")
    a("s_cbranch_scc1 K1_GO2")
    a.label("K1_POLL")
    a("s_waitcnt vmcnt(0)")
    a("v_readfirstlane_b32 s36, v9")
    a(f"s_cmp_ge_u32 s36, {GOV}")
    a("s_cbranch_scc1 K1_GO")
    a("s_sleep 1")
    a(f"buffer_load_dword v9, v7, s[48:51], 0 offen offset:{GOFF} sc1")
    a("s_branch K1_POLL")
    a.label("K1_GO")
    stat_loads()
    a.label("K1_GO2")
    for tt in range(2):
        X = 32; M = 36; R = 40
        xp = 10 + 2 * tt; S = 24 + 4 * tt
        if XM: a(f"s_waitcnt vmcnt({1-tt})")
        a(f"v_lshlrev_b32 v{X}, 16, v{xp}")
        a(f"v_and_b32 v{X+1}, 0xffff0000, v{xp}")
        a(f"v_lshlrev_b32 v{X+2}, 16, v{xp+1}")
        a(f"v_and_b32 v{X+3}, 0xffff0000, v{xp+1}")
        if not XM: a(f"s_waitcnt vmcnt({1-tt})")
        if tt == 0: st(4)
        for k in range(4):
            a(f"v_and_b32 v{R+k}, 0xffff0000, v{S+k}")
            a(f"v_lshlrev_b32 v{M+k}, 16, v{S+k}")
            a(f"v_rcp_f32 v{R+k}, v{R+k}")
            a(f"v_sub_f32 v{X+k}, v{X+k}, v{M+k}")
        a(f"v_cvt_pk_bf16_f32 v{M}, v{X}, v{X+1}")
        a(f"v_cvt_pk_bf16_f32 v{M+1}, v{X+2}, v{X+3}")
        a(f"v_lshlrev_b32 v{X}, 16, v{M}")
        a(f"v_and_b32 v{X+1}, 0xffff0000, v{M}")
        a(f"v_lshlrev_b32 v{X+2}, 16, v{M+1}")
        a(f"v_and_b32 v{X+3}, 0xffff0000, v{M+1}")
        for k in range(4): a(f"v_mul_f32 v{X+k}, v{X+k}, v{R+k}")
        a(f"v_cvt_pk_bf16_f32 v{16+2*tt}, v{X}, v{X+1}")
        a(f"v_cvt_pk_bf16_f32 v{17+2*tt}, v{X+2}, v{X+3}")
        a(f"ds_write_b64 v23, v[{16+2*tt}:{17+2*tt}] offset:{C_UOFF + 512*tt}")
    a("v_lshl_add_u32 v5, v1, 4, s34")
    a("s_waitcnt lgkmcnt(0)")
    a("s_barrier")
    st(5)
    stg(0)
    ITX = [o for o in OPTS if o.startswith('itx=')]
    if ITX: touch(*(int(x) for x in ITX[0][4:].split('.')), 161, (24, 25, 26))
    ICP = 'icp' in OPTS
    IT8 = [o for o in OPTS if o.startswith('it8=')]
    def wave_in_xcd(sd):
        a(f"s_sub_u32 s{sd}, s2, 64")
        a(f"s_lshr_b32 s{sd}, s{sd}, 3")
        a(f"s_mul_i32 s{sd}, s{sd}, 12")
        a(f"s_add_u32 s{sd}, s{sd}, s59")
    n8 = 0
    def aux():
        nonlocal n8
        if 'sf1' in OPTS:
            from gen_k5s import WS_XB, WS_END3, SK, NT_
            assert SK == 2
            srd(a, 8, 6, 7, WS_END3)
            a("v_lshrrev_b32 v36, 3, v1")
            a("v_cmp_le_u32 vcc, 3, v36")
            a("v_addc_co_u32 v36, vcc, 0, v36, vcc")
            a("v_and_b32 v37, 7, v1")
            a("v_lshlrev_b32 v37, 4, v37")
            a("v_lshl_add_u32 v36, v36, 7, v37")
            for r in range(4): a(f"v_mov_b32 v{32+r}, -1")
            a("s_mul_i32 s80, s59, 171")
            a("s_lshr_b32 s80, s80, 9")
            a("s_mul_i32 s81, s80, 3")
            a("s_sub_u32 s81, s59, s81")
            a("s_sub_u32 s82, s2, 64")
            a("s_lshl_b32 s82, s82, 2")
            a("s_add_u32 s82, s82, s80")
            a("s_bfe_u32 s83, s82, 0x10002")
            a(f"s_mul_i32 s82, s82, {NT_}")
            a("s_lshl_b32 s81, s81, 2")
            a("s_add_u32 s82, s82, s81")
            a("s_add_u32 s82, s82, 1")
            a("s_sub_u32 s82, s82, s83")
            a("s_lshl_b32 s82, s82, 11")
            a(f"s_add_u32 s82, s82, {WS_XB}")
            SFS = "" if 'sfp' in OPTS else " sc1"
            a("buffer_store_dwordx4 v[32:35], v36, s[8:11], s82 offen" + SFS)
            a("s_add_u32 s82, s82, 4096")
            a("buffer_store_dwordx4 v[32:35], v36, s[8:11], s82 offen" + SFS)
        if ICP or IT8:
            srd(a, 8, 84, 85, 2048 * 9216)
            a("s_and_b32 s80, s2, 7")
            wave_in_xcd(81)
        if ICP:
            a("s_mul_i32 s82, s80, 576")
            a("s_lshl_b32 s83, s81, 1")
            a("s_add_u32 s82, s82, s83")
            a("s_lshr_b32 s83, s82, 9")
            a("s_and_b32 s82, s82, 511")
            a("s_lshl_b32 s82, s82, 2")
            a("v_lshrrev_b32 v2, 4, v1")
            a("v_and_b32 v6, 15, v1")
            a("v_lshlrev_b32 v6, 4, v6")
            a("v_mul_u32_u24 v7, 9216, v2")
            a("v_add_u32 v7, v7, v6")
            a(f"v_mul_u32_u24 v2, {W1C_PITCH}, v2")
            a("v_add_u32 v2, v2, v6")
            a("s_mul_i32 s86, s82, 9216")
            a("s_lshl_b32 s87, s83, 10")
            a("s_add_u32 s86, s86, s87")
            a("s_add_u32 s86, s86, 256")
            a("buffer_load_dwordx4 v[24:27], v7, s[8:11], s86 offen")
            a(f"s_add_u32 s86, s86, {4*9216}")
            a("buffer_load_dwordx4 v[28:31], v7, s[8:11], s86 offen")
            a(f"s_mul_i32 s86, s82, {W1C_PITCH}")
            a("s_lshl_b32 s87, s83, 9")
            a("s_add_u32 s86, s86, s87")
            a(f"s_add_u32 s86, s86, {WS_W1C}")
        if IT8:
            r0, r1 = (int(x) for x in IT8[0][4:].split('.'))
            t8_addr(a, 80, 1, 6, 7, 82, 83)
            if 'it8t' in OPTS:
                a("s_sub_u32 s82, s2, 64")
                a("s_lshr_b32 s82, s82, 3")
                a("s_mul_i32 s81, s59, 24")
                a("s_add_u32 s81, s81, s82")
            a(f"s_mul_i32 s82, s81, {8*9216}")
            a(f"s_add_u32 s82, s82, {r0*9216}")
            n8 = -(-(r1 - r0) // (8 * 288))
            a("s_mov_b32 s87, 0")
            for i in range(n8):
                lab = a.newlabel("K1_T8")
                a(f"s_cmp_ge_u32 s82, {r1*9216}")
                a(f"s_cbranch_scc1 {lab}")
                a(f"buffer_load_dword v{161+i}, v6, s[8:11], s82 offen")
                a("s_add_u32 s87, s87, 1")
                a.label(lab)
                if i < n8 - 1: a(f"s_add_u32 s82, s82, {288*8*9216}")
    AUXN = int(([o[5:] for o in OPTS if o.startswith('auxn=')] or ['-1'])[0])
    assert AUXN < 0 or 'sf1' not in OPTS
    if AUXN < 0: aux()
    BF = 32; AF = 96
    def lda(i, h): a(f"ds_read_b64 v[{AF+4*(i%8)+2*h}:{AF+4*(i%8)+2*h+1}], v21 offset:{256*(15-i)+8*h}")
    def ldb(z): a(f"ds_read_b128 v[{BF+4*z}:{BF+4*z+3}], v20 offset:{256*z}")
    order = []
    for n in range(16): order += [('a', 15 - n, 0), ('a', 15 - n, 1), ('b', n, 0)]
    issued = 0
    def issue(n):
        nonlocal issued
        for _ in range(n):
            if issued >= len(order): return
            k, x, h = order[issued]
            if k == 'a': lda(x, h)
            else: ldb(x)
            issued += 1
    issue(15)
    for n in range(16):
        i = 15 - n
        if n == AUXN: aux()
        a(f"s_waitcnt lgkmcnt({issued - (3*n + 3)})")
        af = AF + 4 * (i % 8)
        for t in range(7, (i >> 1) - 1, -1):
            z = 2 * t - i
            if z < -1: continue
            a(f"v_mfma_f32_16x16x32_bf16 v[{ACC+4*t}:{ACC+4*t+3}], v[{af}:{af+3}], v[{BF+4*(z+1)}:{BF+4*(z+1)+3}], v[{ACC+4*t}:{ACC+4*t+3}]")
        issue(3)
    stg(1)
    CPE = 'cpe' in OPTS
    def copy_store(NHS):
        srd(a, 8, 6, 7, WS_W1C + 2048 * W1C_PITCH)
        if IT8:
            assert not ITX
            for c in range(n8, -1, -1):
                if c > 0:
                    lab = a.newlabel("K1_CW")
                    a(f"s_cmp_lg_u32 s87, {c}")
                    a(f"s_cbranch_scc1 {lab}")
                    a(f"s_waitcnt vmcnt({NHS+c})")
                    a("s_branch K1_CWD")
                    a.label(lab)
                else:
                    a(f"s_waitcnt vmcnt({NHS})")
            a.label("K1_CWD")
        else:
            assert not ITX
            a(f"s_waitcnt vmcnt({NHS})")
        a("buffer_store_dwordx4 v[24:27], v2, s[8:11], s86 offen" + (" sc1" if 'cpsc1' in OPTS else ""))
        a(f"s_add_u32 s86, s86, {4*W1C_PITCH}")
        a("buffer_store_dwordx4 v[28:31], v2, s[8:11], s86 offen" + (" sc1" if 'cpsc1' in OPTS else ""))
    if ICP and CPE: copy_store(0)
    for o in range(4):
        lab = a.newlabel("K2_W")
        a(f"s_cmp_eq_u32 s27, {o}")
        a(f"s_cbranch_scc1 {lab}")
        a(f"s_sub_u32 s36, s27, {o+1}")
        a("s_and_b32 s36, s36, 3")
        a("s_lshl_b32 s36, s36, 10")
        a("v_add_u32 v22, s36, v5")
        for t in (2*o, 2*o+1):
            a(f"ds_write_b128 v22, v[{ACC+4*t}:{ACC+4*t+3}] offset:{C_PART + 3072*t}")
        a.label(lab)
    for w in range(4):
        lab = a.newlabel("K2_M")
        a(f"s_cmp_lg_u32 s27, {w}")
        a(f"s_cbranch_scc1 {lab}")
        for r in range(8): a(f"v_mov_b32 v{96+r}, v{ACC+8*w+r}")
        a.label(lab)
    a("v_subrev_u32 v8, s34, v23")
    a("s_mul_i32 s37, s27, 6144")
    a("v_add_u32 v22, s37, v5")
    a("v_lshlrev_b32 v14, 16, v160")
    a("s_waitcnt lgkmcnt(0)")
    stg(2)
    if 'gsy' in OPTS:
        a("v_mov_b32 v32, s34")
        a("v_mov_b32 v33, 1")
        a("s_mov_b64 exec, 1")
        a(f"ds_add_rtn_u32 v34, v32, v33 offset:{C_KC + 768*4 + 16}")
        a("s_waitcnt lgkmcnt(0)")
        a("v_readfirstlane_b32 s36, v34")
        a("s_cmp_ge_u32 s36, 3")
        a("s_cbranch_scc1 K1_GS_D")
        a("s_mov_b32 s37, 0x1000000")
        a.label("K1_GS_L")
        a("s_sub_u32 s37, s37, 1")
        a("s_cmp_eq_u32 s37, 0")
        a("s_cbranch_scc1 K1_GS_D")
        a(f"ds_read_b32 v34, v32 offset:{C_KC + 768*4 + 16}")
        a("s_waitcnt lgkmcnt(0)")
        a("v_readfirstlane_b32 s36, v34")
        a("s_cmp_lt_u32 s36, 4")
        a("s_cbranch_scc1 K1_GS_L")
        a.label("K1_GS_D")
        a("s_mov_b64 exec, -1")
    else:
        a("s_barrier")
    stg(3)
    for k in range(3):
        a(f"ds_read_b128 v[{32+8*k}:{35+8*k}], v22 offset:{C_PART + 1024*k}")
        a(f"ds_read_b128 v[{36+8*k}:{39+8*k}], v22 offset:{C_PART + 3072 + 1024*k}")
    a("s_waitcnt lgkmcnt(0)")
    stg(4)
    for r in range(8):
        a(f"v_add_f32 v{96+r}, v{96+r}, v{32+r}")
        a(f"v_add_f32 v{40+r}, v{40+r}, v{48+r}")
        a(f"v_add_f32 v{96+r}, v{96+r}, v{40+r}")
    for tt in range(2):
        y = 96 + 4 * tt; u = 16 + 2 * tt; x = 10 + 2 * tt
        a(f"v_cvt_pk_bf16_f32 v60, v{y}, v{y+1}")
        a(f"v_cvt_pk_bf16_f32 v61, v{y+2}, v{y+3}")
        a(f"v_lshlrev_b32 v62, 16, v{u}")
        a(f"v_and_b32 v63, 0xffff0000, v{u}")
        a(f"v_lshlrev_b32 v64, 16, v{u+1}")
        a(f"v_and_b32 v65, 0xffff0000, v{u+1}")
        for k in range(4): a(f"v_mul_f32 v{62+k}, v{62+k}, v14")
        a(f"v_cvt_pk_bf16_f32 v66, v62, v63")
        a(f"v_cvt_pk_bf16_f32 v67, v64, v65")
        for k in range(2):
            a(f"v_lshlrev_b32 v62, 16, v{60+k}")
            a(f"v_lshlrev_b32 v63, 16, v{66+k}")
            a(f"v_and_b32 v64, 0xffff0000, v{60+k}")
            a(f"v_and_b32 v65, 0xffff0000, v{66+k}")
            a(f"v_add_f32 v62, v62, v63")
            a(f"v_add_f32 v64, v64, v65")
            a(f"v_cvt_pk_bf16_f32 v{68+k}, v62, v64")
            a(f"v_lshlrev_b32 v62, 16, v{68+k}")
            a(f"v_lshlrev_b32 v63, 16, v{x+k}")
            a(f"v_and_b32 v64, 0xffff0000, v{68+k}")
            a(f"v_and_b32 v65, 0xffff0000, v{x+k}")
            a(f"v_add_f32 v62, v62, v63")
            a(f"v_add_f32 v64, v64, v65")
            a(f"v_cvt_pk_bf16_f32 v{70+2*tt+k}, v62, v64")
    if HTP:
        assert 'h4' in OPTS
        a("s_lshl_b32 s35, s33, 13")
        a("s_lshl_b32 s36, s27, 10")
        a("s_add_u32 s35, s35, s36")
        a(f"s_add_u32 s35, s35, {WS_HTP + 512}")
    else:
        a("s_lshl_b32 s35, s33, 12")
        a(f"s_add_u32 s35, s35, {WS_HT}")
    stg(5)
    H4 = 'h4' in OPTS
    NHS = 1 if H4 else 2
    if H4:
        a("v_and_b32 v9, 1, v3")
        a(f"v_mul_u32_u24 v9, {1016 if HTP else 504}, v9")
        a("v_add_u32 v8, v9, v8")
        a("v_permlane16_swap_b32 v70, v72")
        a("v_permlane16_swap_b32 v71, v73")
        a("buffer_store_dwordx4 v[70:73], v8, s[12:15], s35 offen" + (" sc1" if (F4 or 'htsc1' in OPTS) else ""))
    else:
        a("buffer_store_dwordx2 v[70:71], v8, s[12:15], s35 offen" + (" sc1" if F4 else ""))
        a("buffer_store_dwordx2 v[72:73], v8, s[12:15], s35 offen offset:512" + (" sc1" if F4 else ""))
    if ICP and not CPE: copy_store(NHS)
    if F4:
        a(f"s_waitcnt vmcnt({2 if (ICP and not CPE) else 0})")
        st(6)
        stg(6)
        ln2_tail(a, st if 'st4' in OPTS else None)
    if KT:
        a("s_waitcnt vmcnt(0) lgkmcnt(0)")
        if not F4:
            st(6)
            stg(6)
        st_flush()
    a("s_branch K1_END")
    a.label("K1_PF")
    a("s_waitcnt lgkmcnt(0)")
    if 'pfwg' in OPTS:
        a("v_mov_b32 v7, 0")
        a.label("K1_PFW")
        a("ds_read_b32 v9, v7")
        a("s_waitcnt lgkmcnt(0)")
        a("v_readfirstlane_b32 s37, v9")
        a("s_cmp_ge_u32 s37, 8")
        a("s_cbranch_scc1 K1_PFG")
        a("s_sleep 2")
        a("s_branch K1_PFW")
        a.label("K1_PFG")
    elif 'pfgo' in OPTS:
        srd(a, 48, 56, 57, 256)
        a("v_mov_b32 v7, 0")
        a.label("K1_PFW")
        a("buffer_load_dword v9, v7, s[48:51], 0 offen offset:128 sc1")
        a("s_waitcnt vmcnt(0)")
        a("v_readfirstlane_b32 s37, v9")
        a("s_cmp_lg_u32 s37, 0")
        a("s_cbranch_scc1 K1_PFG")
        a("s_sleep 2")
        a("s_branch K1_PFW")
        a.label("K1_PFG")
    gen_prefetch(a, 1, 0, "K1_END")
    a.label("K1_END")
    kst_end(a, 0, 256)
    a("s_endpgm")
    return name, 164, K12C_LDS
```

```python
import numpy as np
F_CS = 2112
F_S5 = 8448; F_S9 = 11592; F_S3 = 13712; F_S7 = 16864; F_PART = 18976
F_B3 = 3160
assert F_S9 + 32 - (F_S5 + 16) == F_B3 and F_S7 + 16 - (F_S3 + 8) == F_B3
LM = 643; LM8 = 1055
SEGQ0 = 648; SEGQ = 48; SEGA = 856; SEGB = 936
def bf16_round_int(q):
    x = np.float32(q); u = x.view(np.uint32)
    r = (int(u) + 0x7fff + ((int(u) >> 16) & 1)) >> 16
    return r
def tidx(lag):
    if lag < 128: return lag
    return bf16_round_int(lag) - 17024
def seg_of(X):
    if X < 48: return 's8'
    if X < 96: return None
    if X < 648: return 'm'
    if X < 840: return ('q', (X - 648) // 48)
    if X < 856: return None
    if X < 936: return 'a'
    if X < 1016: return 'b'
    return None
def formula(seg, X):
    if seg is None: return None
    if seg == 's8':
        lag = LM8 - X
        return tidx(lag) if 1027 <= lag <= 1035 else None
    if seg == 'm':
        lag = LM - X
        return tidx(lag) if 0 <= lag <= 525 else None
    if seg == 'a':
        J = 128 - (X - SEGA)
        return 384 + 2 * J if 65 <= J <= 128 else None
    if seg == 'b':
        J = 128 - (X - SEGB)
        return 385 + 2 * J if 65 <= J <= 127 else None
    q = seg[1]
    J = 80 - (X - SEGQ0 - SEGQ * q)
    return 256 + 4 * J + q if (33 <= J <= 63 or (J == 64 and q == 0)) else None
def thread_entry(n, e):
    return formula(seg_of(8 * n), 8 * n + e)
def masks(tkw):
    out = []
    for e in range(12):
        m = 0
        for l in range(64):
            if thread_entry(64 * tkw + l, e) is not None: m |= 1 << l
        out.append(m)
    return out
FAR_ITEMS = {0: [('d', 4), ('d', 8), (2, 5)], 1: [(0, 2), (0, 3), (2, 6)], 2: [(1, 2), (1, 3), (2, 7)], 3: [(0, 4), (1, 4), (2, 4)]}

def simulate(Ktab, u):
    bf = lambda x: (lambda v: ((v + 0x7fff + ((v >> 16) & 1)) & 0xffff0000).astype(np.uint32).view(np.float32))(np.asarray(x, np.float32).view(np.uint32))
    lds = np.zeros(60000 // 2, dtype=np.float64)
    poison = np.nan
    lds[:] = poison
    for n in range(128):
        re = [thread_entry(n, e) for e in range(12)]
        v = [0.0 if i is None else Ktab[i] for i in re]
        for r in range(4):
            for k in range(8):
                lds[(r * F_CS) // 2 + 8 * n + k] = v[k + 3 - r]
    UOFF = F_PART + 24576 + 512
    lds[(UOFF - 512) // 2: UOFF // 2] = 0
    lds[UOFF // 2: UOFF // 2 + 2048] = u
    for b in (F_S5, F_S3, F_S7):
        lds[b // 2: b // 2 + 16] = 0
    def srow(base, tau0, h):
        for s in range(4):
            t = tau0 + s
            lds[(base + 64) // 2 + t] = float(bf(np.float32(sum(lds[UOFF // 2 + t - r] for r in range(-h, h + 1)))))
    for n in range(256):
        t0 = 4 * n - 16
        for base, h in ((F_S3, 1), (F_S5, 2), (F_S7, 3), (F_S9, 4)): srow(base, t0, h)
    for n in range(128):
        t0 = 1008 + 4 * n
        for base, h in ((F_S3, 1), (F_S5, 2)): srow(base, t0, h)
    acc = np.zeros((8, 16, 16))
    lanes = [(l & 15, l >> 4) for l in range(64)]
    def rd(byte, n):
        assert byte % 8 == 0, byte
        return lds[byte // 2: byte // 2 + n]
    def dirA(w, I):
        A = np.zeros((16, 32))
        for (ro, g) in lanes:
            v21 = (ro & 3) * F_CS + 16 * g - 8 * (ro >> 2) + 24 + 192 - 64 * w
            assert v21 >= 0
            for h in range(2):
                if I == 8: ad = v21 - 192 + 8 * h
                else: ad = v21 + 1032 - 256 * I + 8 * h
                A[ro, 8 * g + 4 * h: 8 * g + 4 * h + 4] = rd(ad, 4)
        return A
    def dirB(w, zi):
        B = np.zeros((32, 16))
        for (c, g) in lanes:
            ad = UOFF - 288 - 64 * w + 32 * c + 16 * g + 256 * zi
            B[8 * g: 8 * g + 8, c] = rd(ad, 8)
        return B
    def farA(kind, mu):
        A = np.zeros((16, 32))
        for g in range(4):
            for h in range(2):
                blk = np.zeros((4, 16))
                for j in range(16):
                    rp, c = j >> 2, j & 3
                    vS2 = (F_S3 + 8 if g >> 1 else F_S5 + 16) + 128 * (g & 1) + 32 * rp + 8 * c
                    imm = 512 * mu + 256 * h + (16 if kind == 0 else 0 if kind == 1 else F_B3)
                    blk[rp, 4 * c: 4 * c + 4] = rd(vS2 + imm, 4)
                for j in range(16): A[j, 8 * g + 4 * h: 8 * g + 4 * h + 4] = blk[:, j]
        return A
    def farB(kind, dl):
        B = np.zeros((32, 16))
        for (c, g) in lanes:
            vT2 = (c & 3) * F_CS - 8 * (c >> 2) + 24 + 8 * (g & 1) + 96 * (g >> 1)
            for h in range(2):
                if kind < 2: ad = vT2 + 1448 - 24 - 32 * dl + 16 * h + 192 * kind
                else: ad = vT2 + 64 * (g >> 1) + 1960 - 24 - 32 * dl + 16 * h
                B[8 * g + 4 * h: 8 * g + 4 * h + 4, c] = rd(ad, 4)
        return B
    cnt = {}
    for w in range(4):
        n = 0
        for zi in range(16):
            z = zi - 1
            for I in range(4):
                if (z + I) % 2 == 0 and 0 <= (z + I) // 2 <= 7:
                    acc[(z + I) // 2] += dirA(w, I) @ dirB(w, zi); n += 1
        for kind, dl in FAR_ITEMS[w]:
            if kind == 'd':
                assert w == 0
                for t in range(dl // 2, 8):
                    acc[t] += dirA(0, dl) @ dirB(0, 2 * t - dl + 1); n += 1
            else:
                for mu in range(8 - dl):
                    acc[dl + mu] += farA(kind, mu) @ farB(kind, dl); n += 1
        cnt[w] = n
    y = np.zeros(2048)
    for t in range(8):
        for c in range(16):
            for ro in range(16): y[256 * t + 16 * c + ro] = acc[t, ro, c]
    return y, cnt

if __name__ == '__main__':
    d = np.load('ref0_small.npz')
    f32 = lambda b: (b.astype(np.uint32) << 16).view(np.float32)
    u = f32(d['u'][0]).T.astype(np.float64); K = d['K'].astype(np.float64); yf = d['yf'][0]
    bf = lambda x: (lambda v: ((v + 0x7fff + ((v >> 16) & 1)) & 0xffff0000).astype(np.uint32).view(np.float32))(np.asarray(x, np.float32).view(np.uint32))
    for c in (0, 100, 575):
        Kt = np.zeros(768)
        for lag in range(2048): Kt[tidx(lag)] = bf(np.float32(K[c][lag]))
        y, cnt = simulate(Kt, u[c])
        print(c, cnt, "max err vs ref", np.nanmax(np.abs(y - yf[c])), "nan", np.isnan(y).sum())
    for t in (0, 1): print([hex(m) for m in masks(t)])
```

```python
from gen import *
from gen_k12b import cmul
from gen_k2 import ht_group_addr
OPTS = os.environ.get('GOPT', '').split(',')
FAR = 'far' in OPTS
import far as FM
C_CS = FM.F_CS if FAR else 4160
C_PART = FM.F_PART if FAR else 4 * C_CS
C_UPAD = C_PART + 24576
C_UOFF = C_UPAD + 512
C_KC = C_UOFF + 4096
C_LDS = C_KC + 3072 + 64
K12C_LDS = 3 * C_LDS
C_TT = 8 * 1088
WS_ST = WS_UT
STP = 'stp' in OPTS
WS_RC = 0x240000
RC_N = int(([o[3:] for o in OPTS if o.startswith('rc=')] or ['32'])[0])
RC_STRIDE = 4352
XM = 'xm' in OPTS
WS_XM = 0x300000

def ln2_tail(a, st):
    opt_sleep = int(([o[4:] for o in OPTS if o.startswith('psl=')] or ['4'])[0])
    a("s_barrier")
    a("s_mul_i32 s36, s59, 171")
    a("s_lshr_b32 s36, s36, 9")
    a("s_sub_u32 s37, s2, 64")
    a("s_lshr_b32 s38, s37, 3")
    a("s_and_b32 s37, s37, 7")
    a("v_mov_b32 v6, 0")
    a("s_cmp_lg_u32 s59, 0")
    a("s_cbranch_scc1 K1_F_NA")
    a("v_mov_b32 v7, 1")
    a(f"v_mul_u32_u24 v9, {RC_STRIDE}, v1")
    a(f"s_mov_b32 s39, {WS_RC}")
    a(f"s_mov_b32 exec_lo, {hex((1 << RC_N) - 1)}")
    a("s_mov_b32 exec_hi, 0")
    a("buffer_atomic_add v7, v9, s[12:15], s39 offen sc1")
    a("s_mov_b64 exec, -1")
    a("s_sub_u32 s35, s2, 64")
    a(f"s_and_b32 s35, s35, {RC_N - 1}")
    a(f"s_mul_i32 s35, s35, {RC_STRIDE}")
    a(f"s_add_u32 s35, s35, {WS_RC}")
    a.label("K1_F_NA")
    a("s_cmp_ge_u32 s36, 2")
    a("s_cbranch_scc1 K1_F_PF")
    a("s_cmp_eq_u32 s36, 0")
    a("s_cbranch_scc1 K1_F_ACT")
    a("s_cmp_ge_u32 s38, 8")
    a("s_cbranch_scc1 K1_F_IDLE")
    a("s_add_u32 s38, s38, 24")
    a.label("K1_F_ACT")
    a("s_lshl_b32 s3, s37, 5")
    a("s_add_u32 s3, s3, s38")
    a("s_mul_i32 s39, s36, 3")
    a("s_sub_u32 s39, s59, s39")
    a("s_lshl_b32 s39, s39, 6")
    a("v_add_u32 v0, s39, v1")
    a("s_lshl_b32 s39, s36, 10")
    ht_group_addr(a)
    a("v_and_b32 v5, 7, v1")
    a("v_lshlrev_b32 v5, 1, v5")
    srd(a, 8, 6, 7, WS_G)
    a("s_mov_b32 s36, 0x40000")
    a("v_lshrrev_b32 v7, 4, v0")
    a("v_cmp_le_u32 vcc, 6, v7")
    a("v_cndmask_b32 v8, 0, 1, vcc")
    a("v_mul_u32_u24 v27, 6, v8")
    a("v_sub_u32 v7, v7, v27")
    a("v_cmp_le_u32 vcc, 3, v7")
    a("v_addc_co_u32 v7, vcc, 0, v7, vcc")
    a(f"v_mul_u32_u24 v8, {2*ABLK}, v8")
    a("v_lshl_add_u32 v8, v7, 7, v8")
    a("v_and_b32 v7, 7, v0")
    a("v_lshl_add_u32 v8, v7, 4, v8")
    a("v_bfe_u32 v7, v0, 3, 1")
    a("v_lshl_add_u32 v8, v7, 10, v8")
    a("s_lshr_b32 s30, s3, 3")
    a(f"s_mul_i32 s30, s30, {12*ABLK}")
    a("s_bfe_u32 s31, s3, 0x10002")
    a(f"s_mul_i32 s31, s31, {ABLK}")
    a("s_add_u32 s30, s30, s31")
    a("s_and_b32 s31, s3, 3")
    a("s_lshl_b32 s31, s31, 11")
    a("s_add_u32 s30, s30, s31")
    a(f"s_add_u32 s30, s30, {WS_HN}")
    a(f"s_mov_b32 s26, {fhex(1.0/576)}")
    a("v_lshrrev_b32 v29, 4, v0")
    a("v_lshlrev_b32 v29, 6, v29")
    a("v_add_u32 v29, s39, v29")
    a("v_and_b32 v27, 15, v1")
    a("v_lshlrev_b32 v27, 2, v27")
    a("v_add_u32 v27, s39, v27")
    a("s_cmp_lg_u32 s59, 0")
    a("s_cbranch_scc1 K1_F_GO")
    NPP = int(([o[4:] for o in OPTS if o.startswith('npp=')] or ['1'])[0])
    if NPP > 1:
        a("s_mov_b64 exec, 1")
        for k in range(NPP):
            a(f"v_mov_b32 v{104+k}, 0")
            a(f"buffer_atomic_add v{104+k}, v6, s[12:15], s35 offen sc0 sc1")
            if k < NPP - 1: a(f"s_sleep {opt_sleep}")
        a.label("K1_F_POLL")
        for k in range(NPP):
            a(f"s_waitcnt vmcnt({NPP-1})")
            a(f"v_readfirstlane_b32 s37, v{104+k}")
            a("s_cmp_ge_u32 s37, 192")
            a("s_cbranch_scc1 K1_F_GO1")
            a(f"v_mov_b32 v{104+k}, 0")
            a(f"buffer_atomic_add v{104+k}, v6, s[12:15], s35 offen sc0 sc1")
        a("s_sub_u32 s36, s36, 1")
        a("s_cmp_lg_u32 s36, 0")
        a("s_cbranch_scc1 K1_F_POLL")
        a.label("K1_F_GO1")
        a("s_mov_b64 exec, -1")
    else:
        a.label("K1_F_POLL")
        a("s_mov_b64 exec, 1")
        if 'apoll' in OPTS:
            a("v_mov_b32 v9, 0")
            a("buffer_atomic_add v9, v6, s[12:15], s35 offen sc0 sc1")
        else:
            a("buffer_load_dword v9, v6, s[12:15], s35 offen sc1")
        a("s_mov_b64 exec, -1")
        a("s_waitcnt vmcnt(0)")
        a("v_readfirstlane_b32 s37, v9")
        a("s_cmp_ge_u32 s37, 192")
        a("s_cbranch_scc1 K1_F_GO")
        a("s_sub_u32 s36, s36, 1")
        a("s_cmp_eq_u32 s36, 0")
        a("s_cbranch_scc1 K1_F_GO")
        a(f"s_sleep {opt_sleep}")
        a("s_branch K1_F_POLL")
    a.label("K1_F_GO")
    a("s_barrier")
    if st: st(0)
    for i in range(3):
        a(f"s_add_u32 s29, s28, {i*192*(8192 if HTP else 4096)}")
        a(f"buffer_load_dwordx4 v[{10+4*i}:{13+4*i}], v4, s[8:11], s29 offen sc1")
    a("buffer_load_dwordx4 v[22:25], v6, s[8:11], s28 offen sc1")
    a("buffer_load_ushort v26, v5, s[8:11], s28 offen sc1")
    a("s_waitcnt vmcnt(0)")
    if st: st(1)
    X = 32
    for i in range(4):
        for k in range(4):
            a(f"v_lshlrev_b32 v{X+8*i+2*k}, 16, v{10+4*i+k}")
            a(f"v_and_b32 v{X+8*i+2*k+1}, 0xffff0000, v{10+4*i+k}")
    a("v_lshlrev_b32 v26, 16, v26")
    S = 64
    for i in range(3):
        for e in range(8):
            a(f"v_sub_f32 v{80+8*i+e}, v{X+8*i+e}, v{56+e}")
    for e in range(8):
        a(f"v_add_f32 v{S+e}, v{80+e}, v{88+e}")
        a(f"v_mul_f32 v{S+8+e}, v{80+e}, v{80+e}")
    for e in range(8):
        a(f"v_add_f32 v{S+e}, v{S+e}, v{96+e}")
        a(f"v_fmac_f32 v{S+8+e}, v{88+e}, v{88+e}")
    for e in range(8):
        a(f"v_fmac_f32 v{S+8+e}, v{96+e}, v{96+e}")
    for mode in ("quad_perm:[1,0,3,2]", "quad_perm:[2,3,0,1]", "row_half_mirror", "row_mirror"):
        for e in range(16):
            a(f"v_add_f32_dpp v{S+e}, v{S+e}, v{S+e} {mode} row_mask:0xf bank_mask:0xf")
    a("v_and_b32 v28, 15, v1")
    a("v_cmp_eq_u32 vcc, 0, v28")
    a("s_and_saveexec_b64 s[32:33], vcc")
    for k in range(4):
        a(f"ds_write_b128 v29, v[{S+4*k}:{S+4*k+3}] offset:{16*k}")
    a("s_mov_b64 exec, s[32:33]")
    a("s_waitcnt lgkmcnt(0)")
    a("s_barrier")
    if st: st(2)
    for r in range(12):
        a(f"ds_read_b32 v{80+r}, v27 offset:{64*r}")
    a("s_waitcnt lgkmcnt(0)")
    for k in range(6): a(f"v_add_f32 v{80+k}, v{80+k}, v{86+k}")
    for k in range(3): a(f"v_add_f32 v{80+k}, v{80+k}, v{83+k}")
    a("v_add_f32 v80, v80, v81")
    a("v_add_f32 v80, v80, v82")
    a("v_mov_b32_dpp v81, v80 row_ror:8 row_mask:0xf bank_mask:0xf")
    a("v_and_b32 v28, 8, v1")
    a("v_cmp_eq_u32 vcc, 0, v28")
    a("v_cndmask_b32 v82, v81, v80, vcc")
    a("v_cndmask_b32 v83, v80, v81, vcc")
    a("v_mul_f32 v82, s26, v82")
    a("v_mul_f32 v83, s26, v83")
    a("v_fma_f32 v83, -v82, v82, v83")
    a("v_max_f32 v83, 0, v83")
    a("v_add_f32 v82, v82, v26")
    bf16_round(a, 82, 82)
    bf16_round(a, 83, 83)
    a(f"v_add_f32 v83, {fhex(1e-5)}, v83")
    bf16_round(a, 83, 83)
    a("v_sqrt_f32 v83, v83")
    bf16_round(a, 83, 83)
    a("v_rcp_f32 v83, v83")
    for e in range(8):
        a(f"v_readlane_b32 s{40+e}, v82, {e}")
        a(f"v_readlane_b32 s{48+e}, v83, {e}")
    for i in range(3):
        for k in range(4):
            x0 = X + 8*i + 2*k; x1 = x0 + 1
            a(f"v_subrev_f32 v{x0}, s{40+2*k}, v{x0}")
            a(f"v_subrev_f32 v{x1}, s{41+2*k}, v{x1}")
            a(f"v_cvt_pk_bf16_f32 v{84+k}, v{x0}, v{x1}")
        for k in range(4):
            x0 = X + 8*i + 2*k; x1 = x0 + 1
            a(f"v_lshlrev_b32 v{x0}, 16, v{84+k}")
            a(f"v_and_b32 v{x1}, 0xffff0000, v{84+k}")
        for k in range(4):
            x0 = X + 8*i + 2*k; x1 = x0 + 1
            a(f"v_mul_f32 v{x0}, s{48+2*k}, v{x0}")
            a(f"v_mul_f32 v{x1}, s{49+2*k}, v{x1}")
            a(f"v_cvt_pk_bf16_f32 v{10+4*i+k}, v{x0}, v{x1}")
        a(f"s_add_u32 s31, s30, {i*2*2*ABLK}")
        a(f"buffer_store_dwordx4 v[{10+4*i}:{13+4*i}], v8, s[8:11], s31 offen")
    if st: st(3)
    a("s_branch K1_F_END")
    a.label("K1_F_PF")
    I8B = [o for o in OPTS if o.startswith('it8b=')]
    if I8B:
        r0, r1 = (int(x) for x in I8B[0][5:].split('.'))
        srd(a, 8, 84, 85, 2048 * 9216)
        t8_addr(a, 37, 1, 6, 7, 82, 83)
        a("s_mul_i32 s82, s38, 6")
        a("s_add_u32 s82, s82, s59")
        a("s_sub_u32 s82, s82, 6")
        a(f"s_mul_i32 s82, s82, {8*9216}")
        a(f"s_add_u32 s82, s82, {r0*9216}")
        n8 = -(-(r1 - r0) // (8 * 144))
        for i in range(n8):
            lab = a.newlabel("K1_T8B")
            a(f"s_cmp_ge_u32 s82, {r1*9216}")
            a(f"s_cbranch_scc1 {lab}")
            a(f"buffer_load_dword v{161+i}, v6, s[8:11], s82 offen")
            a.label(lab)
            if i < n8 - 1: a(f"s_add_u32 s82, s82, {144*8*9216}")
    a.label("K1_F_IDLE")
    a("s_barrier")
    a("s_barrier")
    a.label("K1_F_END")

def gen_k12c(a):
    name = "k1_kernel"
    kernel_head(a, name)
    kst_begin(a)
    KT = 'k1st' in OPTS
    F4 = 'fuse4' in OPTS
    assert not F4 or 'pollc' in OPTS
    ST2 = 'st2' in OPTS
    phase = ['ln']
    ST3 = 'st3' in OPTS
    def st(i):
        if KT and not ((ST2 or ST3) and phase[0] == 'ch'): a(f"s_memrealtime s[{60+2*i}:{61+2*i}]")
    def sth(i):
        if KT and ST3: a(f"s_memrealtime s[{60+2*i}:{61+2*i}]")
    def stg(i):
        if KT and ST2: a(f"s_mem{'time' if 'mt' in OPTS else 'realtime'} s[{60+2*i}:{61+2*i}]")
    ST5 = 'st5' in OPTS
    if ST5:
        _stg = stg
        def stg(i):
            if i in (0, 6): _stg(i)
    ST6 = 'st6' in OPTS
    if ST6:
        def st(i):
            if KT and phase[0] != 'ch': a(f"s_memrealtime s[{60+2*i}:{61+2*i}]")
        def stg(i): pass
    def st6(i):
        if ST6: a(f"s_memtime s[{60+2*i}:{61+2*i}]")
    def stf(i):
        if ST5: a(f"s_mem{'time' if 'mt' in OPTS else 'realtime'} s[{60+2*i}:{61+2*i}]")
    def st_flush():
        a("s_waitcnt lgkmcnt(0)")
        srd(a, 76, 6, 7, 0x4000000)
        for i in range(7): a(f"v_mov_b32 v{80+i}, s{60+2*i}")
        a("v_mov_b32 v87, s94")
        a("s_mul_i32 s75, s2, 384")
        a(f"s_lshl_b32 s74, s59, 5")
        a("s_add_u32 s75, s75, s74")
        a("s_add_u32 s75, s75, 0x2a00000")
        a("v_mov_b32 v78, 0")
        a("buffer_store_dwordx4 v[80:83], v78, s[76:79], s75 offen")
        a("buffer_store_dwordx4 v[84:87], v78, s[76:79], s75 offen offset:16")
    def touch(r0, r1, vd, T):
        srd(a, 8, 84, 85, r1 * 9216)
        t0, t1, t2 = T
        a(f"v_min_u32 v{t0}, 59, v1")
        a(f"v_mul_u32_u24 v{t1}, 52, v{t0}")
        a(f"v_lshrrev_b32 v{t1}, 9, v{t1}")
        a(f"v_mul_u32_u24 v{t2}, 10, v{t1}")
        a(f"v_sub_u32 v{t2}, v{t0}, v{t2}")
        a(f"v_mul_u32_u24 v{t1}, 9216, v{t1}")
        a(f"v_lshl_add_u32 v{t1}, v{t2}, 7, v{t1}")
        a("s_and_b32 s82, s2, 7")
        a("s_mul_i32 s82, s82, 27*171")
        a("s_lshr_b32 s82, s82, 10")
        a("s_lshl_b32 s82, s82, 8")
        a("s_sub_u32 s83, s2, 64")
        a("s_lshr_b32 s83, s83, 3")
        a("s_mul_i32 s83, s83, 12")
        a("s_add_u32 s83, s83, s59")
        a(f"s_mul_i32 s83, s83, {6*9216}")
        a("s_add_u32 s82, s82, s83")
        a(f"s_add_u32 s82, s82, {r0*9216}")
        n = -(-(r1 - r0) // (6 * 288))
        for i in range(n):
            a(f"buffer_load_dword v{vd+i}, v{t1}, s[8:11], s82 offen")
            if i < n - 1: a(f"s_add_u32 s82, s82, {288*6*9216}")
        return n
    a("s_cmp_ge_u32 s2, 256")
    a("s_cbranch_scc1 K1_END")
    a("s_load_dwordx2 s[4:5], s[0:1], 0")
    a("s_load_dwordx2 s[6:7], s[0:1], 112")
    a("s_load_dwordx8 s[16:23], s[0:1], 8")
    a("s_load_dwordx4 s[52:55], s[0:1], 40")
    a("s_load_dwordx2 s[56:57], s[0:1], 104")
    a("s_load_dwordx2 s[84:85], s[0:1], 64")
    a("v_lshrrev_b32 v2, 6, v0")
    a("v_readfirstlane_b32 s59, v2")
    a("v_and_b32 v1, 63, v0")
    if KT:
        for i in range(7): a(f"s_mov_b32 s{60+2*i}, 0")
    a("s_cmp_ge_u32 s2, 64")
    a("s_cbranch_scc1 K1_CH")
    if 'cpfa' in OPTS or 'cpfa1' in OPTS:
        a("s_cmp_lt_u32 s59, 8")
        a("s_cbranch_scc1 K1_LN_A")
        a("s_sub_u32 s26, s59, 8")
        a("s_lshl_b32 s26, s26, 13")
        if 'cpfa' in OPTS: code_pf(a, "A", "k1_kernel", "K5_END", [0, 4], 40, 1, 90, 92, backward=True, schunk=26)
        else:
            a("s_cmp_ge_u32 s59, 10")
            a("s_cbranch_scc1 K1_LN_B")
            code_pf(a, "A", "k1_kernel", "k3_kernel", [0], 40, 1, 90, 92, backward=True, schunk=26)
        a("s_branch K1_LN_B")
        a.label("K1_LN_A")
    else:
        a("s_cmp_ge_u32 s59, 8")
        a("s_cbranch_scc1 K1_LN_B")
    a("s_setprio 3")
    a("v_lshrrev_b32 v2, 4, v1")
    a("v_and_b32 v3, 15, v1")
    a("s_lshl_b32 s3, s2, 5")
    a("s_lshl_b32 s26, s59, 2")
    a("s_add_u32 s3, s3, s26")
    a("v_add_u32 v4, s3, v2")
    a("s_movk_i32 s26, 1152")
    a("v_mul_lo_u32 v5, v4, s26")
    a("v_lshl_add_u32 v5, v3, 3, v5")
    a("s_waitcnt lgkmcnt(0)")
    st(0)
    srd(a, 8, 4, 5, L * D * 2)
    for i in range(9):
        a(f"buffer_load_dwordx2 v[{10+2*i}:{11+2*i}], v5, s[8:11], 0 offen offset:{128*i}")
    srd(a, 12, 6, 7, WS_HN)
    srd(a, 48, 56, 57, 256)
    a("v_mov_b32 v6, 0")
    a("ds_write_b32 v6, v6")
    a("v_lshlrev_b32 v7, 2, v4")
    if STP:
        a("v_lshrrev_b32 v9, 9, v7")
        a("v_and_b32 v7, 511, v7")
        a("v_lshl_add_u32 v7, v9, 10, v7")
        a("v_add_u32 v7, 512, v7")
    a("v_mov_b32 v8, 1")
    if XM:
        a("v_lshrrev_b32 v28, 8, v4")
        a("v_lshlrev_b32 v28, 10, v28")
        a("v_and_b32 v29, 255, v4")
        a("v_lshl_add_u32 v28, v29, 1, v28")
        a("v_add_u32 v28, 512, v28")
    if F4:
        a("s_cmp_lg_u32 s59, 0")
        a("s_cbranch_scc1 K1_LN_Z")
        a(f"s_cmp_ge_u32 s2, {RC_N}")
        a("s_cbranch_scc1 K1_LN_Z")
        a(f"s_mul_i32 s26, s2, {RC_STRIDE}")
        a(f"s_add_u32 s26, s26, {WS_RC}")
        a("s_mov_b64 exec, 1")
        a("buffer_store_dword v6, v6, s[12:15], s26 offen sc1")
        a("s_mov_b64 exec, -1")
        a.label("K1_LN_Z")
    LNB = 'lnb' in OPTS
    if LNB:
        a("s_waitcnt lgkmcnt(0)")
    else:
        a("s_waitcnt vmcnt(0) lgkmcnt(0)")
        st(1)
    a.label("K1_LN_B")
    a("s_barrier")
    a("s_cmp_ge_u32 s59, 8")
    a("s_cbranch_scc1 K1_PF")
    if LNB:
        a("s_waitcnt vmcnt(0)")
        st(1)
    if XM:
        a("s_mov_b32 exec_lo, 0x80008000")
        a("s_mov_b32 exec_hi, 0x80008000")
        for i in (0, 3, 6):
            a(f"s_mov_b32 s26, {WS_XM + i*8192}")
            a(f"buffer_store_short_d16_hi v{11+2*i}, v28, s[12:15], s26 offen sc1")
        a("s_mov_b32 exec_lo, 0x00010001")
        a("s_mov_b32 exec_hi, 0x00010001")
        for i in (2, 5, 8):
            a(f"s_mov_b32 s26, {WS_XM + i*8192}")
            a(f"buffer_store_short v{10+2*i}, v28, s[12:15], s26 offen sc1")
        a("s_mov_b64 exec, -1")
    for i in range(18):
        a(f"v_lshlrev_b32 v{30+2*i}, 16, v{10+i}")
        a(f"v_and_b32 v{31+2*i}, 0xffff0000, v{10+i}")
    a("v_pk_add_f32 v[66:67], v[30:31], v[32:33]")
    a("v_pk_add_f32 v[68:69], v[34:35], v[36:37]")
    for i in range(4, 18):
        r = 66 + 2 * (i % 2)
        a(f"v_pk_add_f32 v[{r}:{r+1}], v[{r}:{r+1}], v[{30+2*i}:{31+2*i}]")
    a("v_pk_add_f32 v[66:67], v[66:67], v[68:69]")
    a("v_add_f32 v66, v66, v67")
    def red16(r):
        for m in ("quad_perm:[1,0,3,2]", "quad_perm:[2,3,0,1]", "row_half_mirror", "row_mirror"):
            a(f"v_add_f32_dpp v{r}, v{r}, v{r} {m} row_mask:0xf bank_mask:0xf")
    red16(66)
    a(f"s_mov_b32 s26, {fhex(1.0/576)}")
    a("v_mul_f32 v70, s26, v66")
    for i in range(18):
        t = 72 + 2 * (i % 4)
        r = 66 + 2 * (i % 2)
        a(f"v_pk_add_f32 v[{t}:{t+1}], v[{30+2*i}:{31+2*i}], v[70:71] op_sel:[0,0] op_sel_hi:[1,0] neg_lo:[0,1] neg_hi:[0,1]")
        if i < 2: a(f"v_pk_mul_f32 v[{r}:{r+1}], v[{t}:{t+1}], v[{t}:{t+1}]")
        else: a(f"v_pk_fma_f32 v[{r}:{r+1}], v[{t}:{t+1}], v[{t}:{t+1}], v[{r}:{r+1}]")
    a("v_pk_add_f32 v[66:67], v[66:67], v[68:69]")
    a("v_add_f32 v66, v66, v67")
    red16(66)
    a("v_mul_f32 v66, s26, v66")
    bf16_round(a, 70, 70)
    bf16_round(a, 66, 66)
    a(f"v_add_f32 v66, {fhex(1e-5)}, v66")
    bf16_round(a, 66, 66)
    a("v_sqrt_f32 v66, v66")
    bf16_round(a, 66, 66)
    a("v_lshrrev_b32 v70, 16, v70")
    a("v_or_b32 v66, v66, v70")
    st(2)
    a("s_mov_b32 exec_lo, 0x00010001")
    a("s_mov_b32 exec_hi, 0x00010001")
    a(f"s_mov_b32 s26, {WS_ST}")
    a("buffer_store_dword v66, v7, s[12:15], s26 offen sc1")
    a("s_waitcnt vmcnt(0)")
    st(3)
    a("s_mov_b64 exec, 1")
    a("ds_add_rtn_u32 v9, v6, v8")
    a("s_waitcnt lgkmcnt(0)")
    a("v_readfirstlane_b32 s26, v9")
    a("s_cmp_lg_u32 s26, 7")
    a("s_cbranch_scc1 K1_LN_D")
    a("buffer_atomic_add v8, v6, s[48:51], 0 offen sc0 sc1")
    a("s_waitcnt vmcnt(0)")
    st(4)
    if not F4:
        a("v_readfirstlane_b32 s26, v8")
        a("s_cmp_lg_u32 s26, 63")
        a("s_cbranch_scc1 K1_LN_D")
        a("v_mov_b32 v8, 1")
        a("buffer_store_dword v8, v6, s[48:51], 0 offen offset:128 sc1")
        if KT:
            a("s_waitcnt vmcnt(0)")
            st(5)
    a.label("K1_LN_D")
    a("s_mov_b64 exec, -1")
    a("s_setprio 0")
    if KT: st_flush()
    a("s_branch K1_PF")

    a.label("K1_CH")
    phase[0] = 'ch'
    a("s_sub_u32 s3, s2, 64")
    a("s_and_b32 s26, s3, 7")
    a("s_mul_i32 s26, s26, 24")
    a("s_lshr_b32 s3, s3, 3")
    a("s_add_u32 s3, s3, s26")
    a("s_lshr_b32 s39, s59, 2")
    a("s_and_b32 s27, s59, 3")
    OSP = 'osp' in OPTS; ROT = 'rot' in OPTS; AXP = 'axp' in OPTS
    assert not OSP or FAR
    if ROT:
        a("s_add_u32 s27, s27, s39")
        a("s_and_b32 s27, s27, 3")
    a("s_mul_i32 s33, s3, 3")
    a("s_add_u32 s33, s33, s39")
    a(f"s_mul_i32 s34, s39, {C_LDS}")
    a("s_movk_i32 s26, 1152")
    GSA = 'gsa' in OPTS; GSD = 'gsd' in OPTS
    CNTB = C_KC + 768 * 4
    if GSA or GSD:
        a("s_cmp_lg_u32 s27, 3")
        a("s_cbranch_scc1 K1_CI")
        a("v_and_b32 v2, 15, v1")
        a("v_lshl_add_u32 v2, v2, 2, s34")
        a("v_mov_b32 v5, 0")
        a(f"ds_write_b32 v2, v5 offset:{CNTB}")
        a.label("K1_CI")
    def gsync(off, tag, nowait=None):
        a("v_mov_b32 v32, s34")
        a("v_mov_b32 v33, 1")
        a("s_waitcnt lgkmcnt(0)")
        a("s_mov_b64 exec, 1")
        a(f"ds_add_rtn_u32 v34, v32, v33 offset:{CNTB + off}")
        if nowait is not None:
            a(f"s_cmp_eq_u32 s27, {nowait}")
            a(f"s_cbranch_scc1 K1_SY{tag}D")
        a("s_waitcnt lgkmcnt(0)")
        a("v_readfirstlane_b32 s28, v34")
        a("s_cmp_ge_u32 s28, 3")
        a(f"s_cbranch_scc1 K1_SY{tag}D")
        a("s_mov_b32 s29, 0x1000000")
        a.label(f"K1_SY{tag}L")
        a(f"ds_read_b32 v34, v32 offset:{CNTB + off}")
        a("s_sub_u32 s29, s29, 1")
        a("s_cmp_eq_u32 s29, 0")
        a(f"s_cbranch_scc1 K1_SY{tag}D")
        a("s_waitcnt lgkmcnt(0)")
        a("v_readfirstlane_b32 s28, v34")
        a("s_cmp_lt_u32 s28, 4")
        a(f"s_cbranch_scc1 K1_SY{tag}L")
        a.label(f"K1_SY{tag}D")
        a("s_mov_b64 exec, -1")
    N8 = [0]
    def aux_pre():
        assert 'it8t' in OPTS and 'sf1' not in OPTS
        IT8 = [o for o in OPTS if o.startswith('it8=')]
        r0, r1 = (int(x) for x in IT8[0][4:].split('.'))
        srd(a, 8, 84, 85, 2048 * 9216)
        a("s_and_b32 s80, s2, 7")
        a("s_sub_u32 s90, s2, 64")
        a("s_lshr_b32 s90, s90, 3")
        if 'icp' in OPTS: aux_pre_copy()
        t8_addr(a, 80, 1, 6, 167, 82, 83)
        a("s_mul_i32 s81, s59, 24")
        a("s_add_u32 s81, s81, s90")
        a(f"s_mul_i32 s82, s81, {8*9216}")
        a(f"s_add_u32 s82, s82, {r0*9216}")
        a("s_mov_b32 s87, 0")
        N8[0] = -(-(r1 - r0) // (8 * 288))
    def aux_pre_copy():
        a("s_mul_i32 s81, s90, 12")
        a("s_add_u32 s81, s81, s59")
        a("s_mul_i32 s82, s80, 576")
        a("s_lshl_b32 s83, s81, 1")
        a("s_add_u32 s82, s82, s83")
        a("s_lshr_b32 s83, s82, 9")
        a("s_and_b32 s82, s82, 511")
        a("s_lshl_b32 s82, s82, 2")
        a("v_lshrrev_b32 v2, 4, v1")
        a("v_and_b32 v6, 15, v1")
        a("v_lshlrev_b32 v6, 4, v6")
        a("v_mul_u32_u24 v166, 9216, v2")
        a("v_add_u32 v166, v166, v6")
        a(f"v_mul_u32_u24 v2, {W1C_PITCH}, v2")
        a("v_add_u32 v2, v2, v6")
        a("s_mul_i32 s86, s82, 9216")
        a("s_lshl_b32 s87, s83, 10")
        a("s_add_u32 s86, s86, s87")
        a("s_add_u32 s86, s86, 256")
        a(f"s_mul_i32 s89, s82, {W1C_PITCH}")
        a("s_lshl_b32 s87, s83, 9")
        a("s_add_u32 s89, s89, s87")
        a(f"s_add_u32 s89, s89, {WS_W1C}")
        a(f"s_add_u32 s26, s86, {4*9216}")
    def aux_issue():
        IT8 = [o for o in OPTS if o.startswith('it8=')]
        r0, r1 = (int(x) for x in IT8[0][4:].split('.'))
        if 'icp' in OPTS:
            a("buffer_load_dwordx4 v[24:27], v166, s[8:11], s86 offen")
            a("buffer_load_dwordx4 v[28:31], v166, s[8:11], s26 offen")
            a("s_mov_b32 s86, s89")
        for i in range(N8[0]):
            lab = a.newlabel("K1_T8")
            a(f"s_cmp_ge_u32 s82, {r1*9216}")
            a(f"s_cbranch_scc1 {lab}")
            a(f"buffer_load_dword v{161+i}, v6, s[8:11], s82 offen")
            a("s_add_u32 s87, s87, 1")
            a.label(lab)
            if i < N8[0] - 1: a(f"s_add_u32 s82, s82, {288*8*9216}")
    GROT = 'grot' in OPTS
    if GROT:
        a("s_add_u32 s35, s3, s39")
        a("s_mul_i32 s28, s35, 171")
        a("s_lshr_b32 s28, s28, 9")
        a("s_mul_i32 s28, s28, 3")
        a("s_sub_u32 s35, s35, s28")
        a("s_lshl_b32 s28, s35, 8")
        if ROT: a("v_lshl_add_u32 v0, s27, 6, v1")
        else: a("v_and_b32 v0, 255, v0")
        a("v_add_u32 v151, s28, v0")
        a("v_mul_lo_u32 v150, v151, s26")
        a("v_lshlrev_b32 v151, 1, v151")
    else:
        a("v_mul_lo_u32 v150, v0, s26")
        a("v_lshlrev_b32 v151, 1, v0")
        a("v_and_b32 v0, 255, v0")
    a("v_lshrrev_b32 v3, 4, v1")
    a("v_and_b32 v4, 15, v1")
    a("v_and_b32 v6, 127, v0")
    a("s_lshl_b32 s28, s33, 8")
    a("v_lshlrev_b32 v5, 1, v6")
    a("v_add_u32 v5, s28, v5")
    a("v_lshl_add_u32 v9, v1, 2, s28")
    a("s_lshl_b32 s44, s33, 1")
    a("v_mov_b32 v7, s44")
    a("s_mul_i32 s36, s3, 6")
    a("s_and_b32 s37, s36, 2")
    a("s_lshl_b32 s37, s37, 3")
    a("s_and_b32 s36, s36, -4")
    if XM:
        assert 'gst' not in OPTS
        a("s_mul_i32 s28, s3, 6")
        a("s_and_b32 s28, s28, 127")
        a("s_mov_b32 s32, 3")
        a("s_cmp_lg_u32 s28, 126")
        a("s_cbranch_scc1 K1_XM1")
        a("s_add_u32 s36, s36, 4")
        a("s_mov_b32 s37, 0")
        a("s_mov_b32 s32, 0")
        a.label("K1_XM1")
        a("s_cmp_lg_u32 s28, 124")
        a("s_cbranch_scc1 K1_XM2")
        a("s_sub_u32 s36, s36, 4")
        a("s_mov_b32 s37, 32")
        a("s_mov_b32 s32, 2")
        a.label("K1_XM2")
    LDR = 'ldr' in OPTS
    if LDR:
        assert XM and OSP and GSD and not AXP
        a("s_cmp_eq_u32 s32, 3")
        a("s_cselect_b32 s91, 0, s32")
    a(f"s_add_u32 s38, s36, {768*1152}")
    a(f"s_add_u32 s58, s36, {2*768*1152}")
    a("s_waitcnt lgkmcnt(0)")
    sth(0)
    srd(a, 40, 52, 53, D * 2)
    a("buffer_load_ushort v14, v7, s[40:43], 0 offen")
    srd(a, 8, 16, 17, D * NM * 2)
    a("buffer_load_ushort v10, v5, s[8:11], 0 offen")
    srd(a, 28, 18, 19, D * NM * 2)
    a("buffer_load_ushort v11, v5, s[28:31], 0 offen")
    srd(a, 44, 20, 21, D * NM * 2)
    a("buffer_load_dword v24, v9, s[44:47], 0 offen")
    a("buffer_load_ushort v12, v5, s[44:47], 0 offen")
    srd(a, 48, 22, 23, D * NM * 2)
    a("buffer_load_dword v25, v9, s[48:51], 0 offen")
    a("buffer_load_ushort v13, v5, s[48:51], 0 offen")
    srd(a, 40, 54, 55, D * 2)
    a("buffer_load_ushort v160, v7, s[40:43], 0 offen")
    srd(a, 8, 4, 5, L * D * 2)
    sth(1)
    if GSA or GSD: a("s_barrier")
    def gathers():
        a("buffer_load_dwordx2 v[152:153], v150, s[8:11], s36 offen")
        a("buffer_load_dwordx2 v[154:155], v150, s[8:11], s38 offen")
        a("buffer_load_dwordx2 v[156:157], v150, s[8:11], s58 offen")
    srd(a, 12, 6, 7, WS_HN)
    srd(a, 48, 56, 57, 256)
    a(f"s_mov_b32 s44, {hex(LOG2E)}")
    a(f"s_mov_b32 s45, {fhex(1.4426950408889634 - 1.4426950216293335)}")
    a(f"s_mov_b32 s46, {fhex(0.6931471805599453)}")
    a(f"s_mov_b32 s47, {hex(INV2PI)}")
    a(f"s_mov_b32 s26, {hex(LOG2E | 0x80000000)}")
    a("v_lshrrev_b32 v8, 3, v6")
    a("v_mul_u32_u24 v8, 544, v8")
    a("v_bfe_u32 v9, v6, 2, 1")
    a("v_lshl_add_u32 v8, v9, 8, v8")
    a("v_and_b32 v9, 3, v6")
    a("v_lshl_add_u32 v8, v9, 2, v8")
    a("v_add_u32 v8, s34, v8")
    a("s_lshr_b32 s28, s27, 1")
    a(f"s_mul_i32 s28, s28, {2*C_TT}")
    a("v_add_u32 v8, s28, v8")
    a(f"v_add_u32 v2, {C_TT}, v8")
    a("v_lshrrev_b32 v9, 1, v3")
    a("v_mul_u32_u24 v9, 544, v9")
    a("v_and_b32 v5, 1, v3")
    a("v_lshl_add_u32 v9, v5, 8, v9")
    a("v_lshl_add_u32 v9, v4, 4, v9")
    a("v_add_u32 v9, s34, v9")
    a("s_cmp_eq_u32 s27, 1")
    a("s_cbranch_scc1 K1_KG_T1")
    a("s_cmp_eq_u32 s27, 2")
    a("s_cbranch_scc1 K1_KG_T2")
    a("v_and_b32 v100, 1, v3")
    a("v_lshlrev_b32 v100, 2, v100")
    a("v_lshrrev_b32 v101, 1, v3")
    a("v_lshl_add_u32 v100, v101, 7, v100")
    a("v_lshl_add_u32 v100, v4, 3, v100")
    for r in range(1, 4): a(f"v_add_u32 v{100+r}, {r}, v100")
    a("s_branch K1_KG_SC")
    a.label("K1_KG_T1")
    a("v_lshlrev_b32 v104, 6, v3")
    a("v_lshl_add_u32 v104, v4, 2, v104")
    a("v_add_u32 v104, 256, v104")
    a("v_lshlrev_b32 v105, 6, v3")
    a("v_lshl_add_u32 v105, v4, 1, v105")
    a("v_add_u32 v105, 256, v105")
    a("v_cmp_gt_u32 vcc, 2, v3")
    for r in range(4):
        a(f"v_add_u32 v106, {r}, v104")
        a(f"v_add_u32 v107, {32*(r>>1)+(r&1)}, v105")
        a(f"v_cndmask_b32 v{100+r}, v107, v106, vcc")
    a("s_branch K1_KG_SC")
    a.label("K1_KG_T2")
    a("v_lshlrev_b32 v100, 6, v3")
    a("v_add_u32 v100, v4, v100")
    a("v_add_u32 v100, 512, v100")
    for r in range(1, 4): a(f"v_add_u32 v{100+r}, {16*r}, v100")
    a.label("K1_KG_SC")
    for r in range(4): a(f"v_lshl_add_u32 v{140+r}, v{100+r}, 2, s34")
    GM = [o for o in OPTS if o.startswith('g=')]
    GM = GM[0][2:] if GM else 'sp'
    GST = 'gst' in OPTS
    assert not GST or GM == 'sp'
    if GST:
        a("s_and_b32 s32, s36, 127")
        a("s_cmp_eq_u32 s32, 124")
        a("s_cselect_b32 s32, 0, 1")
        a("s_add_u32 s32, s32, s39")
    def gpoint(k):
        lab = a.newlabel("K1_GP")
        if GST: a(f"s_cmp_lg_u32 s32, {k+1}")
        else: a(f"s_cmp_lg_u32 s39, {k}")
        a(f"s_cbranch_scc1 {lab}")
        gathers()
        a.label(lab)
    if GM == 'sp0':
        a("s_barrier")
    def static_addr():
        if FAR:
            a("s_min_u32 s28, s39, 1")
            a("s_add_u32 s28, s28, s39")
            if ROT:
                a("s_and_b32 s88, s59, 3")
                a("s_xor_b32 s88, s28, s88")
            else: a("s_xor_b32 s88, s28, s27")
            a("s_cmp_eq_u32 s88, 1")
            a("s_cbranch_scc1 K1_FA1")
            a("s_cmp_lg_u32 s88, 0")
            a("s_cbranch_scc1 K1_FA2")
            a("v_lshlrev_b32 v116, 3, v1")
            a(f"v_sub_u32 v117, {FM.LM}, v116")
            a(f"v_add_u32 v118, {FM.LM8 - FM.LM}, v117")
            a("v_cmp_gt_u32 vcc, 6, v1")
            a("v_cndmask_b32 v116, v117, v118, vcc")
            a("v_cvt_f32_i32 v122, v116")
            a(f"s_sub_u32 s28, s34, {4*17024}")
            for p in range(6):
                e = 2 * p
                t = 118 + 2 * (p % 2)
                if e: a(f"v_add_f32 v{t}, {fhex(-float(e))}, v122")
                a(f"v_add_f32 v{t+1}, {fhex(-float(e+1))}, v122")
                a(f"v_cvt_pk_bf16_f32 v{t}, v{t if e else 122}, v{t+1}")
                a(f"v_mad_u32_u16 v{100+e}, v{t}, 4, s28")
                a(f"v_mad_u32_u16 v{101+e}, v{t}, 4, s28 op_sel:[1,0,0,0]")
            a("v_lshl_add_u32 v5, v1, 4, s34")
            a("s_branch K1_FA2")
            a.label("K1_FA1")
            a("v_lshlrev_b32 v116, 5, v1")
            a("v_sub_u32 v100, 524, v116")
            a("v_subrev_u32 v117, 17, v1")
            a("v_mul_u32_u24 v118, 43, v117")
            a("v_lshrrev_b32 v118, 8, v118")
            a("v_mul_u32_u24 v118, 772, v118")
            a("v_lshlrev_b32 v117, 7, v117")
            a("v_sub_u32 v118, v118, v117")
            a("v_add_u32 v118, 2304, v118")
            a("v_cmp_lt_u32 vcc, 16, v1")
            a("v_cndmask_b32 v100, v100, v118, vcc")
            a("v_cndmask_b32 v119, -4, -16, vcc")
            a("v_subrev_u32 v117, 43, v1")
            a("v_lshlrev_b32 v117, 6, v117")
            a("v_sub_u32 v118, 2560, v117")
            a("v_add_u32 v117, 644, v118")
            a("v_cmp_lt_u32 vcc, 52, v1")
            a("v_cndmask_b32 v118, v118, v117, vcc")
            a("v_cmp_lt_u32 vcc, 42, v1")
            a("v_cndmask_b32 v100, v100, v118, vcc")
            a("v_cndmask_b32 v119, v119, -8, vcc")
            a("v_add_u32 v100, s34, v100")
            for e in range(1, 12): a(f"v_mad_i32_i24 v{100+e}, v119, {e}, v100")
            a("v_lshl_add_u32 v5, v1, 4, s34")
            a("v_add_u32 v5, 1024, v5")
            a.label("K1_FA2")
        elif 'sa2' in OPTS:
            a("s_add_u32 s28, s39, 1")
            a("s_and_b32 s28, s28, 3")
            a("s_xor_b32 s29, s28, s27")
            a("s_lshl_b32 s28, s28, 6")
            a("v_xor_b32 v117, s28, v0")
            a("v_lshlrev_b32 v116, 3, v117")
            a("v_sub_u32 v116, 2047, v116")
            a("v_cvt_f32_i32 v122, v116")
            a(f"s_sub_u32 s28, s34, {4*17024}")
            for p in range(6):
                e = 2 * p
                t = 118 + 2 * (p % 2)
                if e: a(f"v_add_f32 v{t}, {fhex(-float(e))}, v122")
                a(f"v_add_f32 v{t+1}, {fhex(-float(e+1))}, v122")
                a(f"v_cvt_pk_bf16_f32 v{t}, v{t if e else 122}, v{t+1}")
                a(f"v_mad_u32_u16 v{100+e}, v{t}, 4, s28")
                a(f"v_mad_u32_u16 v{101+e}, v{t}, 4, s28 op_sel:[1,0,0,0]")
            lab = a.newlabel("K1_SA")
            a("s_cmp_lg_u32 s29, 3")
            a(f"s_cbranch_scc1 {lab}")
            a(f"s_add_u32 s28, s34, {768*4}")
            a("v_mov_b32 v123, s28")
            for e in range(12):
                t = 118 + 2 * (e % 2)
                a(f"v_subrev_u32 v{t}, {e}, v116")
                a(f"v_lshl_add_u32 v{t+1}, v{t}, 2, s34")
                a(f"v_cmp_gt_i32 vcc, 128, v{t}")
                a(f"v_cndmask_b32 v{100+e}, v{100+e}, v{t+1}, vcc")
                if e >= 8:
                    a(f"v_cmp_gt_i32 vcc, 0, v{t}")
                    a(f"v_cndmask_b32 v{100+e}, v{100+e}, v123, vcc")
            a.label(lab)
            a("v_lshl_add_u32 v5, v117, 4, s34")
        else:
            a("v_lshlrev_b32 v116, 3, v0")
            a("v_sub_u32 v116, 2047, v116")
            for e in range(12):
                a(f"v_subrev_u32 v{118+(e%2)}, {e}, v116")
                a(f"v_cvt_f32_i32 v{120+(e%2)}, v{118+(e%2)}")
                a(f"v_cvt_pk_bf16_f32 v{120+(e%2)}, v{120+(e%2)}, v{120+(e%2)}")
                a(f"v_and_b32 v{120+(e%2)}, 0xffff, v{120+(e%2)}")
                a(f"v_subrev_u32 v{120+(e%2)}, 17024, v{120+(e%2)}")
                a(f"v_min_i32 v{122+(e%2)}, 127, v{118+(e%2)}")
                a(f"v_max_i32 v{120+(e%2)}, v{120+(e%2)}, v{122+(e%2)}")
                if e >= 8:
                    a(f"v_cmp_gt_i32 vcc, 0, v{118+(e%2)}")
                    a(f"v_mov_b32 v{122+(e%2)}, 768")
                    a(f"v_cndmask_b32 v{120+(e%2)}, v{120+(e%2)}, v{122+(e%2)}, vcc")
                a(f"v_lshl_add_u32 v{100+e}, v{120+(e%2)}, 2, s34")
            a("v_lshl_add_u32 v5, v0, 4, s34")
        a("v_lshlrev_b32 v23, 5, v4")
        a("v_lshl_add_u32 v23, v3, 3, v23")
        a("s_lshl_b32 s28, s27, 10")
        a("s_add_u32 s28, s28, s34")
        a("v_add_u32 v23, s28, v23")
        if FAR:
            a("v_and_b32 v15, 1, v1")
            a("v_lshlrev_b32 v15, 4, v15")
            a(f"v_add_u32 v15, {FM.F_S5}, v15")
            a("v_bfe_u32 v116, v1, 1, 2")
            a(f"v_add_u32 v117, {FM.F_S3 - FM.F_S5}, v15")
            a("v_cmp_le_u32 vcc, 1, v116")
            a("v_cndmask_b32 v15, v15, v117, vcc")
            a(f"v_add_u32 v117, {FM.F_S7 - FM.F_S3}, v15")
            a("v_cmp_le_u32 vcc, 2, v116")
            a("v_cndmask_b32 v15, v15, v117, vcc")
        else:
            a("v_and_b32 v15, 3, v1")
            a(f"v_mul_u32_u24 v15, {C_CS}, v15")
            a("v_bfe_u32 v116, v1, 2, 2")
            a("v_lshl_add_u32 v15, v116, 4, v15")
            a("v_add_u32 v15, 4096, v15")
        a("v_subrev_u32 v116, 32, v1")
        a("v_lshlrev_b32 v116, 4, v116")
        a(f"v_add_u32 v116, {C_UPAD}, v116")
        a("v_cmp_gt_u32 vcc, 32, v1")
        a("v_cndmask_b32 v15, v116, v15, vcc")
        a("v_add_u32 v15, s34, v15")
        a("v_lshlrev_b32 v20, 5, v4")
        a("v_lshl_add_u32 v20, v3, 4, v20")
        if OSP: a(f"s_add_u32 s29, s34, {C_UOFF - 480}")
        else:
            a("s_lshl_b32 s28, s27, 6")
            a(f"s_sub_u32 s29, {C_UOFF-288}, s28")
            a("s_add_u32 s29, s29, s34")
        a("v_add_u32 v20, s29, v20")
        a("v_and_b32 v21, 3, v4")
        a(f"v_mul_u32_u24 v21, {C_CS}, v21")
        a("v_lshl_add_u32 v21, v3, 4, v21")
        a("v_lshrrev_b32 v116, 2, v4")
        a("v_lshlrev_b32 v116, 3, v116")
        a("v_sub_u32 v21, v21, v116")
        if OSP: a("s_add_u32 s29, s34, 216")
        else:
            a(f"s_sub_u32 s29, 216, s28")
            a("s_add_u32 s29, s29, s34")
        a("v_add_u32 v21, s29, v21")
        if STP:
            a("v_and_b32 v22, 7, v4")
            a("v_lshlrev_b32 v22, 6, v22")
            a("v_lshrrev_b32 v116, 3, v4")
            a("v_lshl_add_u32 v22, v116, 10, v22")
            a("v_lshl_add_u32 v22, v3, 4, v22")
        else:
            a("v_lshlrev_b32 v22, 6, v4")
            a("v_lshl_add_u32 v22, v3, 4, v22")
        a(f"v_add_u32 v158, {C_LDS}, v151")
        a(f"v_add_u32 v159, {2*C_LDS}, v151")
        if XM:
            a("s_cmp_lg_u32 s32, 0")
            a("s_cbranch_scc1 K1_XM3")
            a("v_mov_b32 v116, v151")
            a("v_mov_b32 v151, v158")
            a("v_mov_b32 v158, v159")
            a("v_mov_b32 v159, v116")
            a.label("K1_XM3")
    if GM == 'sp0':
        gpoint(0)
        static_addr()
        a("s_cmp_lg_u32 s39, 0")
        a("s_cbranch_scc1 K1_PW1")
        a("s_waitcnt vmcnt(4)")
        a("s_branch K1_PW2")
        a.label("K1_PW1")
        a("s_waitcnt vmcnt(1)")
        a.label("K1_PW2")
    elif GST:
        gpoint(-1)
        static_addr()
        a("s_cmp_lg_u32 s32, 0")
        a("s_cbranch_scc1 K1_PW1")
        a("s_waitcnt vmcnt(4)")
        a("s_branch K1_PW2")
        a.label("K1_PW1")
        a("s_waitcnt vmcnt(1)")
        a.label("K1_PW2")
    else:
        static_addr()
        a("s_waitcnt vmcnt(1)")
    st(0)
    sth(2)
    st6(0)
    gpoint(1 if GM == 'sp0' else 0)
    sth(3)
    st6(1)
    a("v_lshlrev_b32 v14, 16, v14")
    exp_precise(a, 16, 14, 17, 18, 44, 45, 46)
    a("v_lshlrev_b32 v10, 16, v10")
    exp_precise(a, 19, 10, 28, 29, 44, 45, 46)
    bf16_round(a, 16, 16)
    bf16_round(a, 19, 19)
    a("v_add_f32 v17, v16, v16")
    a("v_mul_f32 v19, v19, v16")
    a("v_mul_f32 v32, s26, v19")
    a("v_lshlrev_b32 v11, 16, v11")
    a("v_mul_f32 v11, v11, v16")
    a("v_mul_f32 v33, s47, v11")
    a("v_and_b32 v24, 0x7fff7fff, v24")
    a("v_and_b32 v25, 0x7fff7fff, v25")
    a("v_lshlrev_b32 v28, 16, v24")
    a("v_lshlrev_b32 v29, 16, v25")
    a("v_max_u32 v24, v24, v25")
    a("v_max_u32 v28, v28, v29")
    a("v_and_b32 v24, 0xffff0000, v24")
    a("v_max_u32 v36, v24, v28")
    for mode in ("quad_perm:[1,0,3,2]", "quad_perm:[2,3,0,1]", "row_half_mirror", "row_mirror"):
        a(f"v_max_u32_dpp v36, v36, v36 {mode} row_mask:0xf bank_mask:0xf")
    for k, sr in enumerate((24, 25, 30, 31)): a(f"v_readlane_b32 s{sr}, v36, {16*k}")
    a("s_max_u32 s24, s24, s25")
    a("s_max_u32 s30, s30, s31")
    a("s_max_u32 s24, s24, s30")
    a("v_mul_f32 v36, s24, v17")
    a("v_frexp_exp_i32_f32 v26, v36")
    a("v_sub_u32 v31, 0, v26")
    def direct(dst, n, conj, t):
        c = fhex(float(n)) if n not in (1, 2, 4) else f"{float(n)}"
        a(f"v_mul_f32 v{t}, {c}, v32")
        a(f"v_mul_f32 v{t+1}, {c}, v33")
        a(f"v_fract_f32 v{t+1}, v{t+1}")
        a(f"v_exp_f32 v{t}, v{t}")
        a(f"v_cos_f32 v{t+2}, v{t+1}")
        a(f"v_sin_f32 v{t+3}, v{t+1}")
        a(f"v_mul_f32 v{dst}, v{t}, v{t+2}")
        a(f"v_mul_f32 v{dst+1}, {'-' if conj else ''}v{t}, v{t+3}")
    pend = {}
    cv = [0]
    def put(T, i, p):
        r = 80 + (cv[0] % 16); cv[0] += 1
        a(f"v_cvt_pk_f16_f32 v{r}, v{p}, v{p+1}")
        o = (T, i ^ 1)
        if o in pend:
            ro = pend.pop(o)
            lo, hi = (ro, r) if i & 1 else (r, ro)
            a(f"ds_write2_b32 v{8 if T == 0 else 2}, v{lo}, v{hi} offset0:{4*(i & ~1)} offset1:{4*(i | 1)}")
        else: pend[(T, i)] = r
    G2K = 2 if GM == 'sp0' else 1
    st6(2)
    a("s_cmp_ge_u32 s27, 2")
    a("s_cbranch_scc1 K1_H1")
    direct(40, 8, False, 72)
    direct(42, 1, True, 76)
    direct(44, 128, True, 64)
    a("v_lshlrev_b32 v12, 16, v12")
    a("v_lshlrev_b32 v13, 16, v13")
    a("v_mul_f32 v12, v12, v17")
    a("v_mul_f32 v13, v13, v17")
    a("v_ldexp_f32 v46, v12, v31")
    a("v_ldexp_f32 v47, v13, v31")
    a("v_mov_b32 v52, 1.0")
    a("v_mov_b32 v53, 0")
    put(0, 0, 46); put(1, 0, 52); put(1, 1, 42); put(1, 8, 44)
    st6(3)
    if GM == 'sp': gpoint(1)
    ecur, enx = 46, 48
    ycur, ynx = 42, 54
    for k in range(1, 16):
        if k == (3 if GM == 'sp0' else 6):
            st6(4)
            gpoint(2)
        cmul(a, enx, ecur, 40, 50)
        if k <= 7:
            cmul(a, 58, ycur, 44, 60)
            if k < 7: cmul(a, ynx, ycur, 42, 62)
        put(0, k, enx)
        if k <= 7:
            put(1, 8 + k, 58)
            if k < 7: put(1, k + 1, ynx)
            ycur, ynx = ynx, (56 if ynx == 54 else 54)
        ecur, enx = enx, ecur
    assert not pend, pend
    a("s_branch K1_HJ")
    a.label("K1_H1")
    cv[0] = 0
    direct(40, 2, True, 72)
    direct(42, 128, True, 76)
    cmul(a, 44, 40, 40, 60)
    cmul(a, 48, 42, 42, 62)
    cmul(a, 46, 44, 40, 60)
    cmul(a, 50, 48, 42, 62)
    cmul(a, 52, 48, 48, 60)
    cmul(a, 54, 52, 52, 62)
    st6(3)
    if GM == 'sp': gpoint(1)
    ys = [40, 44, 46]
    gcur, gnx = 54, 56
    G2MAX = 8 if 'g2c' in OPTS else 15
    put(1, 0, 54)
    bcur, bnx = 52, 64
    k2 = 1
    def g2step():
        nonlocal gcur, gnx, k2
        if k2 > G2MAX: return
        cmul(a, gnx, gcur, 42, 58)
        put(1, k2, gnx)
        gcur, gnx = gnx, gcur
        k2 += 1
    for base, j0 in ((48, 0), (50, 4)):
        put(0, j0, base)
        for t in range(3):
            cmul(a, 66, base, ys[t], 60)
            g2step()
            put(0, j0 + 1 + t, 66)
        if j0 == 0 and GM == 'sp0': gpoint(2)
    st6(4)
    if GM == 'sp': gpoint(2)
    for t in range(4):
        cmul(a, 66, bcur, 44, 60)
        if t < 3: cmul(a, bnx, bcur, 42, 62)
        put(0, 8 + 2 * t, bcur)
        g2step()
        put(0, 8 + 2 * t + 1, 66)
        if t < 3: bcur, bnx = bnx, (68 if bnx == 64 else 64)
    while k2 <= G2MAX: g2step()
    for (T, i), r in list(pend.items()):
        a(f"ds_write_b32 v{8 if T == 0 else 2}, v{r} offset:{16*i}")
        del pend[(T, i)]
    assert not pend, pend
    a.label("K1_HJ")
    st6(5)
    if GSA: gsync(4, "A", nowait=3)
    else:
        a("s_waitcnt lgkmcnt(0)")
        a("s_barrier")
    st(1)
    sth(4)
    st6(6)
    a("s_cmp_eq_u32 s27, 3")
    a("s_cbranch_scc1 K1_KG_Z")
    a(f"s_mul_i32 s28, s27, {C_TT}")
    a(f"s_add_u32 s28, s28, {C_TT}")
    a("v_add_u32 v7, s28, v9")
    AFR = 36; BFR = 68; ACCK = 128
    for ks in range(8):
        a(f"ds_read_b128 v[{AFR+4*ks}:{AFR+4*ks+3}], v7 offset:{1088*ks}")
        a(f"ds_read_b128 v[{BFR+4*ks}:{BFR+4*ks+3}], v9 offset:{1088*ks}")
    for ks in range(8):
        a(f"s_waitcnt lgkmcnt({14-2*ks})")
        acc = ACCK + 4 * (ks % 2)
        a(f"v_mfma_f32_16x16x32_f16 v[{acc}:{acc+3}], v[{AFR+4*ks}:{AFR+4*ks+3}], v[{BFR+4*ks}:{BFR+4*ks+3}], {'0' if ks < 2 else f'v[{acc}:{acc+3}]'}")
    for r in range(4):
        a(f"v_add_f32 v{ACCK+r}, v{ACCK+r}, v{ACCK+4+r}")
        a(f"v_ldexp_f32 v{ACCK+r}, v{ACCK+r}, v26")
        a(f"ds_write_b32 v{140+r}, v{ACCK+r} offset:{C_KC}")
    a("s_branch K1_KG_X")
    a.label("K1_KG_Z")
    if not (GSA or GSD):
        a("v_mov_b32 v7, s34")
        a("v_mov_b32 v36, 0")
        a(f"ds_write_b32 v7, v36 offset:{C_KC + 768*4}")
        if 'gsy' in OPTS: a(f"ds_write_b32 v7, v36 offset:{C_KC + 768*4 + 16}")
        if FAR: a(f"ds_write_b32 v7, v36 offset:{C_KC + 768*4 + 32}")
    a.label("K1_KG_X")
    sth(5)
    if FAR:
        for e in range(12): a(f"v_mov_b32 v{112+e}, 0")
    a("s_waitcnt vmcnt(0)")
    sth(6)
    for k in range(3):
        lab = a.newlabel("K1_XS")
        if k == 2:
            a("s_cmp_ge_u32 s35, 2" if GROT else "s_cmp_ge_u32 s59, 8")
            a(f"s_cbranch_scc1 {lab}")
        r = 152 + 2 * k
        a(f"v_lshrrev_b64 v[{r}:{r+1}], s37, v[{r}:{r+1}]")
        a(f"ds_write_b16 v151, v{r} offset:{C_UOFF + 1536*k}")
        a(f"ds_write_b16_d16_hi v158, v{r} offset:{C_UOFF + 1536*k}")
        a(f"ds_write_b16 v159, v{r+1} offset:{C_UOFF + 1536*k}")
        if k == 2: a.label(lab)
    a("s_waitcnt lgkmcnt(0)")
    a("s_barrier")
    st(2)
    PC = 'pollc' in OPTS
    GOFF = 0 if PC else 128
    GOV = 64 if PC else 1
    a("v_mov_b32 v7, 0")
    if LDR:
        a("s_cmp_lg_u32 s39, s91")
        a("s_cbranch_scc1 K1_NL1")
    a(f"buffer_load_dword v9, v7, s[48:51], 0 offen offset:{GOFF} sc1")
    if LDR: a.label("K1_NL1")
    if FAR:
        a("s_cmp_ge_u32 s88, 2")
        a("s_cbranch_scc1 K1_FG")
        for tkw in range(2):
            if tkw == 0:
                a("s_cmp_eq_u32 s88, 1")
                a("s_cbranch_scc1 K1_FG1")
            else: a.label("K1_FG1")
            prev = None
            for e, m in enumerate(FM.masks(tkw)):
                if m != prev:
                    a(f"s_mov_b32 exec_lo, {hex(m & 0xffffffff)}")
                    a(f"s_mov_b32 exec_hi, {hex(m >> 32)}")
                    prev = m
                a(f"ds_read_b32 v{112+e}, v{100+e} offset:{C_KC}")
            a("s_mov_b64 exec, -1")
            if tkw == 0: a("s_branch K1_FG")
        a.label("K1_FG")
    else:
        for e in range(12):
            a(f"ds_read_b32 v{70+e}, v{100+e} offset:{C_KC}")
    a(f"ds_read_b64 v[10:11], v23 offset:{C_UOFF}")
    a(f"ds_read_b64 v[12:13], v23 offset:{C_UOFF + 512}")
    for r in range(4): a(f"v_mov_b32 v{84+r}, 0")
    a("ds_write_b128 v15, v[84:87]")
    a(f"s_lshl_b32 s38, s27, {12 if STP else 11}")
    a(f"s_add_u32 s38, s38, {WS_ST + (512 if STP else 0)}")
    Dv = 40; Ev = 48; Ov = 52; Pv = 56
    if FAR:
        assert 'cpfirst' in OPTS
        a("s_cmp_ge_u32 s88, 2")
        a("s_cbranch_scc1 K1_FC")
    a("s_waitcnt lgkmcnt(3)")
    GB = 112 if FAR else 70
    for k in range(6):
        a(f"v_cvt_pk_bf16_f32 v{Dv+k}, v{GB+2*k}, v{GB+1+2*k}")
    if 'dumpR' in OPTS:
        srd(a, 28, 6, 7, WS_HT)
        a("s_mul_i32 s36, s33, %d" % RSTRIDE)
        a(f"s_add_u32 s36, s36, {WS_R}")
        a("v_lshlrev_b32 v7, 4, v0")
        a("buffer_store_dwordx4 v[40:43], v7, s[28:31], s36 offen")
        a("v_mov_b32 v7, 0")
    for k in range(4): a(f"v_mov_b32 v{Ev+k}, v{Dv+1+k}")
    for k in range(4): a(f"v_alignbit_b32 v{Ov+k}, v{Dv+k+1}, v{Dv+k}, 16")
    for k in range(4): a(f"v_alignbit_b32 v{Pv+k}, v{Dv+k+2}, v{Dv+k+1}, 16")
    src = {3: Dv, 1: Ev, 2: Ov, 0: Pv}
    def copies():
        for r in range(4):
            a(f"ds_write_b128 v5, v[{src[r]}:{src[r]+3}] offset:{r*C_CS}")
    CF = 'cpfirst' in OPTS
    if CF: copies()
    if FAR:
        a.label("K1_FC")
        a("v_lshl_add_u32 v162, v0, 3, s34")
        a("v_lshrrev_b32 v166, 1, v3")
        a("v_and_b32 v167, 1, v3")
        a(f"v_mul_u32_u24 v163, {FM.F_S3 + 8 - FM.F_S5 - 16}, v166")
        a("v_lshl_add_u32 v163, v167, 7, v163")
        a("v_and_b32 v164, 15, v1")
        a("v_lshl_add_u32 v163, v164, 3, v163")
        a(f"s_add_u32 s28, s34, {FM.F_S5 + 16}")
        a("v_add_u32 v163, s28, v163")
        a("v_and_b32 v164, 3, v4")
        a(f"v_mul_u32_u24 v164, {C_CS}, v164")
        a("v_lshrrev_b32 v165, 2, v4")
        a("v_lshlrev_b32 v165, 3, v165")
        a("v_sub_u32 v164, v164, v165")
        a("v_lshl_add_u32 v164, v167, 3, v164")
        a("v_mul_u32_u24 v165, 96, v166")
        a("v_add_u32 v164, v164, v165")
        a("s_add_u32 s28, s34, 24")
        a("v_add_u32 v164, s28, v164")
        a("v_lshl_add_u32 v165, v166, 6, v164")
    if LDR:
        a("v_lshlrev_b32 v61, 4, v1")
        a("s_lshl_b32 s28, s27, 11")
        a(f"s_add_u32 s28, s28, {C_PART}")
        a("v_add_u32 v61, s28, v61")
        a("s_lshl_b32 s28, s27, 2")
        a(f"s_add_u32 s28, s28, {CNTB + 48}")
        a("v_mov_b32 v62, s28")
        a("s_cmp_lg_u32 s39, s91")
        a("s_cbranch_scc1 K1_NLW")
    a("s_waitcnt vmcnt(0)")
    a("v_readfirstlane_b32 s36, v9")
    a(f"s_cmp_lt_u32 s36, {GOV}")
    a("s_cbranch_scc1 K1_NG1")
    def stat_loads():
        if XM:
            lab = a.newlabel("K1_XL")
            a("s_cmp_lg_u32 s32, s39")
            a(f"s_cbranch_scc1 {lab}")
            a("s_lshl_b32 s28, s27, 10")
            a("s_add_u32 s29, s28, s34")
            a("v_subrev_u32 v60, s29, v23")
            a("s_lshr_b32 s29, s33, 6")
            a("s_lshl_b32 s29, s29, 13")
            a("s_lshl_b32 s28, s28, 1")
            a("s_add_u32 s29, s29, s28")
            a(f"s_add_u32 s29, s29, {WS_XM + 512}")
            a("s_waitcnt lgkmcnt(0)")
            a("buffer_load_dwordx2 v[10:11], v60, s[12:15], s29 offen sc1")
            a("buffer_load_dwordx2 v[12:13], v60, s[12:15], s29 offen offset:1024 sc1")
            a.label(lab)
        a("buffer_load_dwordx4 v[24:27], v22, s[12:15], s38 offen sc1")
        a(f"buffer_load_dwordx4 v[28:31], v22, s[12:15], s38 offen offset:{2048 if STP else 1024} sc1")
    stat_loads()
    a("s_branch K1_NG2")
    a.label("K1_NG1")
    a(f"buffer_load_dword v9, v7, s[48:51], 0 offen offset:{GOFF} sc1")
    a.label("K1_NG2")
    if not CF: copies()
    st(3)
    ACC = 128
    if not OSP:
        for r in range(32): a(f"v_mov_b32 v{ACC+r}, 0")
    if AXP: aux_pre()
    a(f"s_cmp_ge_u32 s36, {GOV}")
    a("s_cbranch_scc1 K1_GO2")
    a.label("K1_POLL")
    a("s_waitcnt vmcnt(0)")
    a("v_readfirstlane_b32 s36, v9")
    a(f"s_cmp_ge_u32 s36, {GOV}")
    a("s_cbranch_scc1 K1_GO")
    a("s_sleep 1")
    a(f"buffer_load_dword v9, v7, s[48:51], 0 offen offset:{GOFF} sc1")
    a("s_branch K1_POLL")
    a.label("K1_GO")
    stat_loads()
    a.label("K1_GO2")
    if LDR:
        a("v_mov_b32 v63, 1")
        a("s_waitcnt vmcnt(0) lgkmcnt(0)")
        a("ds_write_b128 v61, v[24:27]")
        a("ds_write_b128 v61, v[28:31] offset:1024")
        a("ds_write_b32 v62, v63")
        a("s_branch K1_LNM")
        a.label("K1_NLW")
        IT8 = [o for o in OPTS if o.startswith('it8=')]
        r0, r1 = (int(x) for x in IT8[0][4:].split('.'))
        srd(a, 8, 84, 85, 2048 * 9216)
        a("s_cmp_gt_u32 s39, s91")
        a("s_cselect_b32 s81, 1, 0")
        a("s_sub_u32 s81, s39, s81")
        a("s_lshl_b32 s81, s81, 2")
        a("s_and_b32 s82, s59, 3")
        a("s_add_u32 s90, s81, s82")
        a("s_and_b32 s80, s2, 7")
        a("s_sub_u32 s81, s2, 64")
        a("s_lshr_b32 s81, s81, 3")
        a("s_mul_i32 s82, s80, 24")
        a("s_add_u32 s82, s82, s81")
        a("s_lshl_b32 s82, s82, 3")
        a("s_add_u32 s82, s82, s90")
        a("s_lshr_b32 s83, s82, 9")
        a("s_and_b32 s82, s82, 511")
        a("v_lshrrev_b32 v2, 4, v1")
        a("v_and_b32 v6, 15, v1")
        a("v_lshlrev_b32 v6, 4, v6")
        a("v_mul_u32_u24 v166, 9216, v2")
        a("v_add_u32 v166, v166, v6")
        a(f"v_mul_u32_u24 v2, {W1C_PITCH}, v2")
        a("v_add_u32 v2, v2, v6")
        a(f"s_mul_i32 s86, s82, {4*9216}")
        a("s_mul_i32 s87, s83, 3072")
        a("s_add_u32 s86, s86, s87")
        for j, r in enumerate((148, 152, 156)):
            a(f"buffer_load_dwordx4 v[{r}:{r+3}], v166, s[8:11], s86 offen offset:{256 + 1024*j}")
        a(f"s_mul_i32 s86, s82, {4*W1C_PITCH}")
        a("s_lshr_b32 s87, s87, 1")
        a("s_add_u32 s86, s86, s87")
        a(f"s_add_u32 s86, s86, {WS_W1C}")
        n8_ = -(-(r1 - r0) // (8 * 192))
        a("s_mul_i32 s83, s90, 24")
        a("s_add_u32 s89, s83, s81")
        a(f"s_cmp_ge_u32 s89, {(r1 - r0) // 8}")
        a("s_cbranch_scc1 K1_NLT")
        t8_addr(a, 80, 1, 166, 167, 82, 83)
        a(f"s_mul_i32 s82, s89, {8*9216}")
        a(f"s_add_u32 s82, s82, {r0*9216}")
        for i in range(n8_):
            if i:
                a(f"s_add_u32 s82, s82, {192*8*9216}")
                a(f"s_cmp_ge_u32 s82, {r1*9216}")
                a("s_cbranch_scc1 K1_NLT")
            a(f"buffer_load_dword v161, v166, s[8:11], s82 offen")
        a.label("K1_NLT")
        a("s_mov_b32 s29, 0x1000000")
        a.label("K1_NLP")
        a("ds_read_b32 v63, v62")
        a("s_sub_u32 s29, s29, 1")
        a("s_cmp_eq_u32 s29, 0")
        a("s_cbranch_scc1 K1_NLG")
        a("s_waitcnt lgkmcnt(0)")
        a("v_readfirstlane_b32 s28, v63")
        a("s_cmp_eq_u32 s28, 0")
        a("s_cbranch_scc1 K1_NLP")
        a.label("K1_NLG")
        a("ds_read_b128 v[24:27], v61")
        a("ds_read_b128 v[28:31], v61 offset:1024")
    if FAR: a("s_waitcnt lgkmcnt(0)")
    if LDR: a.label("K1_LNM")
    for tt in range(2):
        X = 32; M = 36; R = 40
        xp = 10 + 2 * tt; S = 24 + 4 * tt
        if XM and not LDR: a(f"s_waitcnt vmcnt({1-tt})")
        a(f"v_lshlrev_b32 v{X}, 16, v{xp}")
        a(f"v_and_b32 v{X+1}, 0xffff0000, v{xp}")
        a(f"v_lshlrev_b32 v{X+2}, 16, v{xp+1}")
        a(f"v_and_b32 v{X+3}, 0xffff0000, v{xp+1}")
        if not XM: a(f"s_waitcnt vmcnt({1-tt})")
        if tt == 0: st(4)
        for k in range(4):
            a(f"v_and_b32 v{R+k}, 0xffff0000, v{S+k}")
            a(f"v_lshlrev_b32 v{M+k}, 16, v{S+k}")
            a(f"v_rcp_f32 v{R+k}, v{R+k}")
            a(f"v_sub_f32 v{X+k}, v{X+k}, v{M+k}")
        a(f"v_cvt_pk_bf16_f32 v{M}, v{X}, v{X+1}")
        a(f"v_cvt_pk_bf16_f32 v{M+1}, v{X+2}, v{X+3}")
        a(f"v_lshlrev_b32 v{X}, 16, v{M}")
        a(f"v_and_b32 v{X+1}, 0xffff0000, v{M}")
        a(f"v_lshlrev_b32 v{X+2}, 16, v{M+1}")
        a(f"v_and_b32 v{X+3}, 0xffff0000, v{M+1}")
        for k in range(4): a(f"v_mul_f32 v{X+k}, v{X+k}, v{R+k}")
        a(f"v_cvt_pk_bf16_f32 v{16+2*tt}, v{X}, v{X+1}")
        a(f"v_cvt_pk_bf16_f32 v{17+2*tt}, v{X+2}, v{X+3}")
        a(f"ds_write_b64 v23, v[{16+2*tt}:{17+2*tt}] offset:{C_UOFF + 512*tt}")
    a("v_lshl_add_u32 v5, v1, 4, s34")
    AX2 = 'ax2' in OPTS
    if AX2:
        assert 'icp' in OPTS and 'it8t' in OPTS and FAR
        a("s_cmp_ge_u32 s39, 2")
        a("s_cbranch_scc1 K1_AX_D")
        srd(a, 8, 84, 85, 2048 * 9216)
        a("s_and_b32 s80, s2, 7")
        a("s_sub_u32 s81, s2, 64")
        a("s_lshr_b32 s81, s81, 3")
        a("s_mul_i32 s82, s80, 24")
        a("s_add_u32 s82, s82, s81")
        a("s_lshl_b32 s82, s82, 3")
        a("s_add_u32 s82, s82, s59")
        a("s_lshr_b32 s83, s82, 9")
        a("s_and_b32 s82, s82, 511")
        a("v_lshrrev_b32 v2, 4, v1")
        a("v_and_b32 v6, 15, v1")
        a("v_lshlrev_b32 v6, 4, v6")
        a("v_mul_u32_u24 v7, 9216, v2")
        a("v_add_u32 v7, v7, v6")
        a(f"v_mul_u32_u24 v2, {W1C_PITCH}, v2")
        a("v_add_u32 v2, v2, v6")
        a(f"s_mul_i32 s86, s82, {4*9216}")
        a("s_mul_i32 s87, s83, 3072")
        a("s_add_u32 s86, s86, s87")
        a("buffer_load_dwordx4 v[24:27], v7, s[8:11], s86 offen offset:256")
        a("buffer_load_dwordx4 v[28:31], v7, s[8:11], s86 offen offset:1280")
        a("buffer_load_dwordx4 v[6:9], v7, s[8:11], s86 offen offset:2304")
        a(f"s_mul_i32 s86, s82, {4*W1C_PITCH}")
        a("s_lshr_b32 s87, s87, 1")
        a("s_add_u32 s86, s86, s87")
        a(f"s_add_u32 s86, s86, {WS_W1C}")
        IT8 = [o for o in OPTS if o.startswith('it8=')]
        r0, r1 = (int(x) for x in IT8[0][4:].split('.'))
        n8 = -(-(r1 - r0) // (8 * 192))
        a("s_mul_i32 s83, s59, 24")
        a("s_add_u32 s89, s83, s81")
        a(f"s_cmp_ge_u32 s89, {(r1 - r0) // 8}")
        a("s_cbranch_scc1 K1_AX_D")
        t8_addr(a, 80, 1, 166, 167, 82, 83)
        a(f"s_mul_i32 s82, s89, {8*9216}")
        a(f"s_add_u32 s82, s82, {r0*9216}")
        for i in range(n8):
            if i:
                a(f"s_add_u32 s82, s82, {192*8*9216}")
                a(f"s_cmp_ge_u32 s82, {r1*9216}")
                a("s_cbranch_scc1 K1_AX_D")
            a(f"buffer_load_dword v161, v166, s[8:11], s82 offen")
        a.label("K1_AX_D")
    if GSD: gsync(8, "D")
    else:
        a("s_waitcnt lgkmcnt(0)")
        a("s_barrier")
    st(5)
    stg(0)
    ITX = [o for o in OPTS if o.startswith('itx=')]
    if ITX: touch(*(int(x) for x in ITX[0][4:].split('.')), 161, (24, 25, 26))
    ICP = 'icp' in OPTS
    IT8 = [o for o in OPTS if o.startswith('it8=')]
    def wave_in_xcd(sd):
        a(f"s_sub_u32 s{sd}, s2, 64")
        a(f"s_lshr_b32 s{sd}, s{sd}, 3")
        a(f"s_mul_i32 s{sd}, s{sd}, 12")
        a(f"s_add_u32 s{sd}, s{sd}, s59")
    n8 = 0
    def aux():
        nonlocal n8
        if LDR: return
        if AXP:
            aux_issue(); n8 = N8[0]
            return
        if 'sf1' in OPTS:
            from gen_k5s import WS_XB, WS_END3, SK, NT_
            assert SK == 2
            srd(a, 8, 6, 7, WS_END3)
            a("v_lshrrev_b32 v36, 3, v1")
            a("v_cmp_le_u32 vcc, 3, v36")
            a("v_addc_co_u32 v36, vcc, 0, v36, vcc")
            a("v_and_b32 v37, 7, v1")
            a("v_lshlrev_b32 v37, 4, v37")
            a("v_lshl_add_u32 v36, v36, 7, v37")
            for r in range(4): a(f"v_mov_b32 v{32+r}, -1")
            a("s_mul_i32 s80, s59, 171")
            a("s_lshr_b32 s80, s80, 9")
            a("s_mul_i32 s81, s80, 3")
            a("s_sub_u32 s81, s59, s81")
            a("s_sub_u32 s82, s2, 64")
            a("s_lshl_b32 s82, s82, 2")
            a("s_add_u32 s82, s82, s80")
            a("s_bfe_u32 s83, s82, 0x10002")
            a(f"s_mul_i32 s82, s82, {NT_}")
            a("s_lshl_b32 s81, s81, 2")
            a("s_add_u32 s82, s82, s81")
            a("s_add_u32 s82, s82, 1")
            a("s_sub_u32 s82, s82, s83")
            a("s_lshl_b32 s82, s82, 11")
            a(f"s_add_u32 s82, s82, {WS_XB}")
            SFS = "" if 'sfp' in OPTS else " sc1"
            a("buffer_store_dwordx4 v[32:35], v36, s[8:11], s82 offen" + SFS)
            a("s_add_u32 s82, s82, 4096")
            a("buffer_store_dwordx4 v[32:35], v36, s[8:11], s82 offen" + SFS)
        if ICP or IT8:
            srd(a, 8, 84, 85, 2048 * 9216)
            a("s_and_b32 s80, s2, 7")
            wave_in_xcd(81)
        if ICP:
            a("s_mul_i32 s82, s80, 576")
            a("s_lshl_b32 s83, s81, 1")
            a("s_add_u32 s82, s82, s83")
            a("s_lshr_b32 s83, s82, 9")
            a("s_and_b32 s82, s82, 511")
            a("s_lshl_b32 s82, s82, 2")
            a("v_lshrrev_b32 v2, 4, v1")
            a("v_and_b32 v6, 15, v1")
            a("v_lshlrev_b32 v6, 4, v6")
            a("v_mul_u32_u24 v7, 9216, v2")
            a("v_add_u32 v7, v7, v6")
            a(f"v_mul_u32_u24 v2, {W1C_PITCH}, v2")
            a("v_add_u32 v2, v2, v6")
            a("s_mul_i32 s86, s82, 9216")
            a("s_lshl_b32 s87, s83, 10")
            a("s_add_u32 s86, s86, s87")
            a("s_add_u32 s86, s86, 256")
            a("buffer_load_dwordx4 v[24:27], v7, s[8:11], s86 offen")
            a(f"s_add_u32 s86, s86, {4*9216}")
            a("buffer_load_dwordx4 v[28:31], v7, s[8:11], s86 offen")
            a(f"s_mul_i32 s86, s82, {W1C_PITCH}")
            a("s_lshl_b32 s87, s83, 9")
            a("s_add_u32 s86, s86, s87")
            a(f"s_add_u32 s86, s86, {WS_W1C}")
        if IT8:
            r0, r1 = (int(x) for x in IT8[0][4:].split('.'))
            t8_addr(a, 80, 1, 6, 7, 82, 83)
            if 'it8t' in OPTS:
                a("s_sub_u32 s82, s2, 64")
                a("s_lshr_b32 s82, s82, 3")
                a("s_mul_i32 s81, s59, 24")
                a("s_add_u32 s81, s81, s82")
            a(f"s_mul_i32 s82, s81, {8*9216}")
            a(f"s_add_u32 s82, s82, {r0*9216}")
            n8 = -(-(r1 - r0) // (8 * 288))
            a("s_mov_b32 s87, 0")
            for i in range(n8):
                lab = a.newlabel("K1_T8")
                a(f"s_cmp_ge_u32 s82, {r1*9216}")
                a(f"s_cbranch_scc1 {lab}")
                a(f"buffer_load_dword v{161+i}, v6, s[8:11], s82 offen")
                a("s_add_u32 s87, s87, 1")
                a.label(lab)
                if i < n8 - 1: a(f"s_add_u32 s82, s82, {288*8*9216}")
    AUXN = int(([o[5:] for o in OPTS if o.startswith('auxn=')] or ['-1'])[0])
    assert AUXN < 0 or 'sf1' not in OPTS
    def far_conv():
        class LQ: pass
        q = LQ(); q.n = 0; q.done = 0; q.pos = {}
        def ld(text, tag=None, opt=False):
            a(text)
            if opt: return
            if tag is not None: q.pos[tag] = q.n
            q.n += 1
        def need(*tags):
            p = max(q.pos[t] for t in tags)
            if p >= q.done:
                c = q.n - 1 - p
                a(f"s_waitcnt lgkmcnt({min(15, c)})")
                q.done = p + 1 if c <= 15 else q.n - 15
        ACC = 128
        BR = lambda zi: 32 + 4 * (zi % 8)
        AD = lambda I: 96 + 4 * I
        def ldA(I, reg, base='v21', off=None):
            off = 1032 - 256 * I if off is None else off
            for h in range(2): ld(f"ds_read_b64 v[{reg+2*h}:{reg+2*h+1}], {base} offset:{off + 8*h}", ('A', I, h))
        def ldB(zi): ld(f"ds_read_b128 v[{BR(zi)}:{BR(zi)+3}], v20 offset:{256*zi}", ('B', zi))
        def mf(t, A, B): a(f"v_mfma_f32_16x16x32_bf16 v[{ACC+4*t}:{ACC+4*t+3}], v[{A}:{A+3}], v[{B}:{B+3}], v[{ACC+4*t}:{ACC+4*t+3}]")
        R1 = 112; R2 = 118
        UO = C_UOFF - 40
        for k in range(3): ld(f"ds_read_b64 v[{R1+2*k}:{R1+2*k+1}], v162 offset:{UO + 8*k}", ('r1', k))
        ldA(1, AD(1)); ldA(3, AD(3)); ldB(0); ldA(0, AD(0)); ldA(2, AD(2)); ldB(1)
        for k in range(3): ld(f"ds_read_b64 v[{R2+2*k}:{R2+2*k+1}], v162 offset:{UO + 1024 + 8*k}", ('r2', k))
        if AUXN < 0 and not AX2: aux()
        stf(1)
        for zi in range(2, 6): ldB(zi)
        A_ = 64; S3 = 76; S5 = 80; S7 = 84; S9 = 88
        T = {'45': 92, '67': 93, '23': 94, '89': 95, '12': 124, '01': 125, 'AB': 126, '9A': 127}
        V = []
        def v(text): V.append(lambda: a(text))
        def unpack(R, tagp, js):
            for k in range(3):
                first = True
                for hh in range(2):
                    for x in range(2):
                        j = 4 * k + 2 * hh + x
                        if j not in js: continue
                        ins = f"v_lshlrev_b32 v{A_+j}, 16, v{R+2*k+hh}" if x == 0 else f"v_and_b32 v{A_+j}, 0xffff0000, v{R+2*k+hh}"
                        if first:
                            V.append(lambda ins=ins, k=k: (need((tagp, k)), a(ins))); first = False
                        else: v(ins)
        def add(d, x, y): v(f"v_add_f32 v{d}, v{x}, v{y}")
        def s35():
            for nm in ('45', '67', '23', '89'): add(T[nm], A_ + int(nm[0]), A_ + int(nm[1]))
            add(S3, A_ + 3, T['45']); add(S3 + 1, T['45'], A_ + 6); add(S3 + 2, A_ + 5, T['67']); add(S3 + 3, T['67'], A_ + 8)
            add(S5, S3 + 1, T['23']); add(S5 + 1, S3, T['67']); add(S5 + 2, S3 + 3, T['45']); add(S5 + 3, S3 + 2, T['89'])
        def wr(src, pk, base, extra, opt):
            v(f"v_cvt_pk_bf16_f32 v{pk}, v{src}, v{src+1}")
            v(f"v_cvt_pk_bf16_f32 v{pk+1}, v{src+2}, v{src+3}")
            V.append(lambda: ld(f"ds_write_b64 v162, v[{pk}:{pk+1}] offset:{base + 32 + extra}", opt=opt))
        unpack(R1, 'r1', range(12))
        add(T['12'], A_ + 1, A_ + 2); add(T['01'], A_, A_ + 1); add(T['AB'], A_ + 10, A_ + 11); add(T['9A'], A_ + 9, A_ + 10)
        s35()
        wr(S3, R1, FM.F_S3, 0, False)
        add(S7, S5 + 1, T['12']); add(S7 + 1, S5 + 2, T['23']); add(S7 + 2, S5 + 1, T['89']); add(S7 + 3, S5 + 2, T['9A'])
        wr(S5, R1 + 2, FM.F_S5, 0, False)
        add(S9, S7 + 1, T['01']); add(S9 + 1, S7 + 2, T['12']); add(S9 + 2, S7 + 3, T['23']); add(S9 + 3, S7 + 2, T['AB'])
        wr(S7, R1 + 4, FM.F_S7, 0, False)
        wr(S9, S3, FM.F_S9, 0, False)
        V1 = V; V = []
        unpack(R2, 'r2', range(2, 10))
        s35()
        wr(S3, R2, FM.F_S3, 1024, True)
        wr(S5, R2 + 2, FM.F_S5, 1024, True)
        V2 = V
        VPG = int(([o[4:] for o in OPTS if o.startswith('vpg=')] or ['3'])[0])
        def signal():
            a("v_mov_b32 v124, s34")
            a("v_mov_b32 v125, 1")
            a("s_mov_b64 exec, 1")
            ld(f"ds_add_u32 v124, v125 offset:{C_KC + 768*4 + 32}")
            a("s_mov_b64 exec, -1")
        state = {'sig': False}
        def fill(n):
            for _ in range(n):
                if V1: V1.pop(0)()
            if not V1 and not state['sig']:
                state['sig'] = True
                lab = a.newlabel("K1_FR2")
                a("s_cmp_lt_u32 s27, 2")
                a(f"s_cbranch_scc1 {lab}")
                sv = (q.done,)
                for f in V2: f()
                a.label(lab)
                q.done = sv[0]
                signal()
                stf(2)
        if 'sfirst' in OPTS:
            while V1: fill(1)
        ZO = list(range(16))
        for zi in ZO:
            z = zi - 1
            for I in ((1, 3) if z % 2 else (0, 2)):
                t = (z + I) // 2
                if t > 7: continue
                need(('A', I, 0), ('A', I, 1), ('B', zi))
                mf(t, AD(I), BR(zi))
                fill(VPG)
            nx = zi + (6 if zi < 2 else 6)
            if 6 <= nx < 16: ldB(nx)
        while V1: fill(1)
        assert state['sig']
        stf(3)
        FB = lambda k: 64 + 4 * k
        FA = lambda k: 76 + 4 * (k % 5)
        CNT = C_KC + 768 * 4 + 32
        for w in range(4):
            lab = a.newlabel("K1_FW")
            if w < 3:
                a(f"s_cmp_lg_u32 s27, {w}")
                a(f"s_cbranch_scc1 {lab}")
            a("s_waitcnt lgkmcnt(0)"); q.done = q.n
            items = FM.FAR_ITEMS[w]
            far = [(k, d) for (k, d) in items if k != 'd']
            a("v_mov_b32 v124, s34")
            for j, (kind, dl) in enumerate(far):
                for h in range(2):
                    if kind < 2: ld(f"ds_read_b64 v[{FB(j)+2*h}:{FB(j)+2*h+1}], v164 offset:{1448 - 24 - 32*dl + 16*h + 192*kind}", ('T', j, h))
                    else: ld(f"ds_read_b64 v[{FB(j)+2*h}:{FB(j)+2*h+1}], v165 offset:{1960 - 24 - 32*dl + 16*h}", ('T', j, h))
            if w == 0:
                a("v_subrev_u32 v126, 192, v21")
                WS_ = {1: 32, 3: 40, 5: 48, 7: 52}
                ldA(4, AD(0))
                ldA(8, AD(1), base='v126', off=0)
                for zi in (1, 3, 5, 7): ld(f"ds_read_b128 v[{WS_[zi]}:{WS_[zi]+3}], v20 offset:{256*zi}", ('W', zi))
            ld(f"ds_read_b32 v125, v124 offset:{CNT}", 'cnt')
            if w == 0:
                def dm(I, zi):
                    if zi < 8:
                        need(('A', I, 0), ('A', I, 1), ('W', zi)); reg = WS_[zi]
                    else:
                        need(('A', I, 0), ('A', I, 1)); reg = BR(zi)
                    mf((zi - 1 + I) // 2, AD(0) if I == 4 else AD(1), reg)
                dm(4, 9); dm(4, 11)
                for zi in (1, 3, 5, 7): dm(4, zi); dm(8, zi)
            pl = a.newlabel("K1_FP"); go = a.newlabel("K1_FQ")
            a("s_mov_b32 s37, 0x1000000")
            a.label(pl)
            a("s_waitcnt lgkmcnt(0)")
            a("v_readfirstlane_b32 s36, v125")
            a("s_cmp_ge_u32 s36, 4")
            a(f"s_cbranch_scc1 {go}")
            a("s_sub_u32 s37, s37, 1")
            a("s_cmp_eq_u32 s37, 0")
            a(f"s_cbranch_scc1 {go}")
            a(f"ds_read_b32 v125, v124 offset:{CNT}")
            a(f"s_branch {pl}")
            a.label(go)
            stf(4)
            q.done = q.n
            frs = []
            for j, (kind, dl) in enumerate(far):
                for mu in range(8 - dl):
                    if (kind, mu) not in frs: frs.append((kind, mu))
            frs.sort(key=lambda x: (x[1], x[0]))
            issued = [0]
            def fa_issue(k):
                while issued[0] < min(k, len(frs)):
                    kind, mu = frs[issued[0]]
                    for h in range(2):
                        imm = 512 * mu + 256 * h + (16 if kind == 0 else 0 if kind == 1 else FM.F_B3)
                        ld(f"ds_read_b64_tr_b16 v[{FA(issued[0])+2*h}:{FA(issued[0])+2*h+1}], v163 offset:{imm}", ('F', issued[0], h))
                    issued[0] += 1
            fa_issue(5)
            for n_, (kind, mu) in enumerate(frs):
                need(('F', n_, 0), ('F', n_, 1))
                for j, (k2_, dl) in enumerate(far):
                    if k2_ == kind and mu < 8 - dl: mf(dl + mu, FA(n_), FB(j))
                fa_issue(n_ + 6)
            if w < 3: a("s_branch K1_FEND")
            a.label(lab)
        a.label("K1_FEND")
        stf(5)
    def osp_conv():
        CNT = C_KC + 768 * 4 + 32
        UO = C_UOFF - 40
        ACC = 128
        for w in range(4):
            q = type('LQ', (), {})(); q.n = 0; q.done = 0; q.pos = {}
            def ld(text, tag=None, opt=False):
                a(text)
                if opt: return
                if tag is not None: q.pos[tag] = q.n
                q.n += 1
            def need(*tags):
                p = max(q.pos[t] for t in tags)
                if p >= q.done:
                    c = q.n - 1 - p
                    a(f"s_waitcnt lgkmcnt({min(15, c)})")
                    q.done = p + 1 if c <= 15 else q.n - 15
            nxt = a.newlabel("K1_OW")
            if w < 3:
                a(f"s_cmp_lg_u32 s27, {w}")
                a(f"s_cbranch_scc1 {nxt}")
            def dense(wp):
                L = []
                for I in range(4):
                    for tt in range(2):
                        zi = 2 * (2 * w + tt) - I + 1
                        if zi >= 0: L.append((tt, ('A', wp, I), ('B', wp, zi)))
                return L
            ops = dense(0) + dense(1) + dense(2)
            for I in (4, 8):
                for tt in range(2):
                    zi = 2 * (2 * w + tt) - I + 1
                    if zi >= 0 and 2 * w + tt >= I // 2: ops.append((tt, ('A', 0, I), ('B', 0, zi)))
            PIDX = len(ops)
            ops += dense(3)
            far = []
            for kind, dls in ((0, (2, 3, 4)), (1, (2, 3, 4)), (2, (4, 5, 6, 7))):
                for dl in dls:
                    for tt in range(2):
                        mu = 2 * w + tt - dl
                        if mu >= 0: far.append((tt, ('F', kind, mu), ('T', kind, dl)))
            f0 = [o for o in far if o[0] == 0]; f1 = [o for o in far if o[0] == 1]
            f0.sort(key=lambda o: (o[1][1], o[1][2])); f1.sort(key=lambda o: (o[1][1], o[1][2]))
            far = []
            while f0 or f1:
                if f1: far.append(f1.pop(0))
                if f0: far.append(f0.pop(0))
            ops += far
            last = {}
            order = []
            for n_, (tt, ka, kb) in enumerate(ops):
                for k in (ka, kb):
                    if k not in last: order.append(k)
                    last[k] = n_
            pool = [32 + 4 * k for k in range(8)] + [96 + 4 * k for k in range(4)] + [136 + 4 * k for k in range(3 if LDR else 6)]
            late = [64 + 4 * k for k in range(8)] + [112 + 4 * k for k in range(3)]
            slot = {}
            st_ = {'i': 0, 'sync': False}
            def issue(k):
                r = slot[k]
                if k[0] == 'A':
                    _, wp, I = k
                    for h in range(2):
                        if I == 8: ld(f"ds_read_b64 v[{r+2*h}:{r+2*h+1}], v126 offset:{8*h}", (k, h))
                        else: ld(f"ds_read_b64 v[{r+2*h}:{r+2*h+1}], v21 offset:{1032 - 256*I - 64*wp + 8*h}", (k, h))
                elif k[0] == 'B':
                    _, wp, zi = k
                    ld(f"ds_read_b128 v[{r}:{r+3}], v20 offset:{192 - 64*wp + 256*zi}", (k, 0)); q.pos[(k, 1)] = q.pos[(k, 0)]
                elif k[0] == 'T':
                    _, kind, dl = k
                    for h in range(2):
                        if kind < 2: ld(f"ds_read_b64 v[{r+2*h}:{r+2*h+1}], v164 offset:{1448 - 24 - 32*dl + 16*h + 192*kind}", (k, h))
                        else: ld(f"ds_read_b64 v[{r+2*h}:{r+2*h+1}], v165 offset:{1960 - 24 - 32*dl + 16*h}", (k, h))
                else:
                    _, kind, mu = k
                    for h in range(2):
                        imm = 512 * mu + 256 * h + (16 if kind == 0 else 0 if kind == 1 else FM.F_B3)
                        ld(f"ds_read_b64_tr_b16 v[{r+2*h}:{r+2*h+1}], v163 offset:{imm}", (k, h))
            def pump(n):
                i = 0
                while n > 0 and i < len(order):
                    k = order[i]
                    if (k[0] == 'F' and not st_['sync']) or (k == ('A', 0, 8) and not st_.get('s_done')):
                        i += 1; continue
                    if not pool: return
                    slot[k] = pool.pop(0)
                    issue(k); order.pop(i); n -= 1
            R1 = 112; R2 = 118
            for k in range(3): ld(f"ds_read_b64 v[{R1+2*k}:{R1+2*k+1}], v162 offset:{UO + 8*k}", ('r1', k))
            if w < 2:
                for k in range(3): ld(f"ds_read_b64 v[{R2+2*k}:{R2+2*k+1}], v162 offset:{UO + 2048 + 8*k}", ('r2', k))
            pump(6 if w < 2 else 8)
            aux()
            stf(1)
            A_ = 64; S3 = 76; S5 = 80; S7 = 84; S9 = 88
            T = {'45': 92, '67': 93, '23': 94, '89': 95, '12': 124, '01': 125, 'AB': 126, '9A': 127}
            V = []
            def v(text): V.append(lambda: a(text))
            def unpack(R, tagp, js):
                for k in range(3):
                    first = True
                    for hh in range(2):
                        for x in range(2):
                            j = 4 * k + 2 * hh + x
                            if j not in js: continue
                            ins = f"v_lshlrev_b32 v{A_+j}, 16, v{R+2*k+hh}" if x == 0 else f"v_and_b32 v{A_+j}, 0xffff0000, v{R+2*k+hh}"
                            if first:
                                V.append(lambda ins=ins, k=k: (need((tagp, k)), a(ins))); first = False
                            else: v(ins)
            def add(d, x, y): v(f"v_add_f32 v{d}, v{x}, v{y}")
            def s35():
                for nm in ('45', '67', '23', '89'): add(T[nm], A_ + int(nm[0]), A_ + int(nm[1]))
                add(S3, A_ + 3, T['45']); add(S3 + 1, T['45'], A_ + 6); add(S3 + 2, A_ + 5, T['67']); add(S3 + 3, T['67'], A_ + 8)
                add(S5, S3 + 1, T['23']); add(S5 + 1, S3, T['67']); add(S5 + 2, S3 + 3, T['45']); add(S5 + 3, S3 + 2, T['89'])
            def wr(src, pk, base, extra):
                v(f"v_cvt_pk_bf16_f32 v{pk}, v{src}, v{src+1}")
                v(f"v_cvt_pk_bf16_f32 v{pk+1}, v{src+2}, v{src+3}")
                V.append(lambda: ld(f"ds_write_b64 v162, v[{pk}:{pk+1}] offset:{base + 32 + extra}"))
            unpack(R1, 'r1', range(12))
            add(T['12'], A_ + 1, A_ + 2); add(T['01'], A_, A_ + 1); add(T['AB'], A_ + 10, A_ + 11); add(T['9A'], A_ + 9, A_ + 10)
            s35()
            wr(S3, R1, FM.F_S3, 0)
            add(S7, S5 + 1, T['12']); add(S7 + 1, S5 + 2, T['23']); add(S7 + 2, S5 + 1, T['89']); add(S7 + 3, S5 + 2, T['9A'])
            wr(S5, R1 + 2, FM.F_S5, 0)
            add(S9, S7 + 1, T['01']); add(S9 + 1, S7 + 2, T['12']); add(S9 + 2, S7 + 3, T['23']); add(S9 + 3, S7 + 2, T['AB'])
            wr(S7, R1 + 4, FM.F_S7, 0)
            wr(S9, S3, FM.F_S9, 0)
            if w < 2:
                unpack(R2, 'r2', range(2, 10))
                s35()
                wr(S3, R2, FM.F_S3, 2048)
                wr(S5, R2 + 2, FM.F_S5, 2048)
            for n_, f in enumerate(V):
                f()
                if n_ % 5 == 4: pump(1)
            a("v_mov_b32 v124, s34")
            a("v_mov_b32 v125, 1")
            a("s_mov_b64 exec, 1")
            ld(f"ds_add_u32 v124, v125 offset:{CNT}")
            a("s_mov_b64 exec, -1")
            stf(2)
            a("v_subrev_u32 v126, 192, v21")
            st_['s_done'] = True
            pool += late
            started = set()
            for n_, (tt, ka, kb) in enumerate(ops):
                if far and n_ == PIDX - 4: ld(f"ds_read_b32 v125, v124 offset:{CNT}", 'cnt')
                if n_ == PIDX:
                    stf(3)
                    if far:
                        pl = a.newlabel("K1_FP"); go = a.newlabel("K1_FQ")
                        need('cnt')
                        a("v_readfirstlane_b32 s36, v125")
                        a("s_cmp_ge_u32 s36, 4")
                        a(f"s_cbranch_scc1 {go}")
                        a("s_mov_b32 s37, 0x1000000")
                        a.label(pl)
                        a(f"ds_read_b32 v125, v124 offset:{CNT}")
                        a("s_sub_u32 s37, s37, 1")
                        a("s_cmp_eq_u32 s37, 0")
                        a(f"s_cbranch_scc1 {go}")
                        a("s_waitcnt lgkmcnt(0)")
                        a("v_readfirstlane_b32 s36, v125")
                        a("s_cmp_lt_u32 s36, 4")
                        a(f"s_cbranch_scc1 {pl}")
                        a.label(go)
                        st_['sync'] = True
                        pump(3)
                    stf(4)
                for k in (ka, kb):
                    while k not in slot:
                        assert pool and not (k[0] == 'F' and not st_['sync']), (w, n_, k)
                        pump(1)
                need((ka, 0), (ka, 1), (kb, 0), (kb, 1))
                d = ACC + 4 * tt
                c = f"v[{d}:{d+3}]" if tt in started else "0"
                started.add(tt)
                a(f"v_mfma_f32_16x16x32_bf16 v[{d}:{d+3}], v[{slot[ka]}:{slot[ka]+3}], v[{slot[kb]}:{slot[kb]+3}], {c}")
                for k in (ka, kb):
                    if last[k] == n_: pool.append(slot[k])
                pump(2)
            assert not order and started == {0, 1}
            stf(5)
            if w < 3: a("s_branch K1_FEND")
            a.label(nxt)
        a.label("K1_FEND")
    if OSP: osp_conv()
    elif FAR: far_conv()
    if AUXN < 0 and not FAR: aux()
    BF = 32; AF = 96
    def lda(i, h): a(f"ds_read_b64 v[{AF+4*(i%8)+2*h}:{AF+4*(i%8)+2*h+1}], v21 offset:{256*(15-i)+8*h}")
    def ldb(z): a(f"ds_read_b128 v[{BF+4*z}:{BF+4*z+3}], v20 offset:{256*z}")
    order = []
    for n in range(16): order += [('a', 15 - n, 0), ('a', 15 - n, 1), ('b', n, 0)]
    issued = 0
    def issue(n):
        nonlocal issued
        for _ in range(n):
            if issued >= len(order): return
            k, x, h = order[issued]
            if k == 'a': lda(x, h)
            else: ldb(x)
            issued += 1
    if not FAR: issue(15)
    for n in range(0 if FAR else 16):
        i = 15 - n
        if n == AUXN: aux()
        a(f"s_waitcnt lgkmcnt({issued - (3*n + 3)})")
        af = AF + 4 * (i % 8)
        for t in range(7, (i >> 1) - 1, -1):
            z = 2 * t - i
            if z < -1: continue
            a(f"v_mfma_f32_16x16x32_bf16 v[{ACC+4*t}:{ACC+4*t+3}], v[{af}:{af+3}], v[{BF+4*(z+1)}:{BF+4*(z+1)+3}], v[{ACC+4*t}:{ACC+4*t+3}]")
        issue(3)
    stg(1)
    CPE = 'cpe' in OPTS
    def copy_store(NHS):
        srd(a, 8, 6, 7, WS_W1C + 2048 * W1C_PITCH)
        if IT8:
            assert not ITX
            for c in range(n8, -1, -1):
                if c > 0:
                    lab = a.newlabel("K1_CW")
                    a(f"s_cmp_lg_u32 s87, {c}")
                    a(f"s_cbranch_scc1 {lab}")
                    a(f"s_waitcnt vmcnt({NHS+c})")
                    a("s_branch K1_CWD")
                    a.label(lab)
                else:
                    a(f"s_waitcnt vmcnt({NHS})")
            a.label("K1_CWD")
        else:
            assert not ITX
            a(f"s_waitcnt vmcnt({NHS})")
        a("buffer_store_dwordx4 v[24:27], v2, s[8:11], s86 offen" + (" sc1" if 'cpsc1' in OPTS else ""))
        a(f"s_add_u32 s86, s86, {4*W1C_PITCH}")
        a("buffer_store_dwordx4 v[28:31], v2, s[8:11], s86 offen" + (" sc1" if 'cpsc1' in OPTS else ""))
    if LDR:
        a("s_cmp_eq_u32 s39, s91")
        a("s_cbranch_scc1 K1_AX_S")
        srd(a, 8, 6, 7, WS_W1C + 2048 * W1C_PITCH)
        a("s_waitcnt vmcnt(0)")
        for j, r in enumerate((148, 152, 156)):
            a(f"buffer_store_dwordx4 v[{r}:{r+3}], v2, s[8:11], s86 offen offset:{512*j}" + (" sc1" if 'cpsc1' in OPTS else ""))
        a.label("K1_AX_S")
    elif AX2:
        a("s_cmp_ge_u32 s39, 2")
        a("s_cbranch_scc1 K1_AX_S")
        srd(a, 8, 6, 7, WS_W1C + 2048 * W1C_PITCH)
        a("s_waitcnt vmcnt(0)")
        for j, r in enumerate((24, 28, 6)):
            a(f"buffer_store_dwordx4 v[{r}:{r+3}], v2, s[8:11], s86 offen offset:{512*j}" + (" sc1" if 'cpsc1' in OPTS else ""))
        a.label("K1_AX_S")
    elif ICP and CPE: copy_store(0)
    for o in range(0 if OSP else 4):
        lab = a.newlabel("K2_W")
        a(f"s_cmp_eq_u32 s27, {o}")
        a(f"s_cbranch_scc1 {lab}")
        a(f"s_sub_u32 s36, s27, {o+1}")
        a("s_and_b32 s36, s36, 3")
        a("s_lshl_b32 s36, s36, 10")
        a("v_add_u32 v22, s36, v5")
        for t in (2*o, 2*o+1):
            a(f"ds_write_b128 v22, v[{ACC+4*t}:{ACC+4*t+3}] offset:{C_PART + 3072*t}")
        a.label(lab)
    for w in range(0 if OSP else 4):
        lab = a.newlabel("K2_M")
        a(f"s_cmp_lg_u32 s27, {w}")
        a(f"s_cbranch_scc1 {lab}")
        for r in range(8): a(f"v_mov_b32 v{96+r}, v{ACC+8*w+r}")
        a.label(lab)
    a("v_subrev_u32 v8, s34, v23")
    if not OSP:
        a("s_mul_i32 s37, s27, 6144")
        a("v_add_u32 v22, s37, v5")
    a("v_lshlrev_b32 v14, 16, v160")
    if not OSP: a("s_waitcnt lgkmcnt(0)")
    stg(2)
    if OSP: pass
    elif 'gsy' in OPTS:
        a("v_mov_b32 v32, s34")
        a("v_mov_b32 v33, 1")
        a("s_mov_b64 exec, 1")
        a(f"ds_add_rtn_u32 v34, v32, v33 offset:{C_KC + 768*4 + 16}")
        a("s_waitcnt lgkmcnt(0)")
        a("v_readfirstlane_b32 s36, v34")
        a("s_cmp_ge_u32 s36, 3")
        a("s_cbranch_scc1 K1_GS_D")
        a("s_mov_b32 s37, 0x1000000")
        a.label("K1_GS_L")
        a("s_sub_u32 s37, s37, 1")
        a("s_cmp_eq_u32 s37, 0")
        a("s_cbranch_scc1 K1_GS_D")
        a(f"ds_read_b32 v34, v32 offset:{C_KC + 768*4 + 16}")
        a("s_waitcnt lgkmcnt(0)")
        a("v_readfirstlane_b32 s36, v34")
        a("s_cmp_lt_u32 s36, 4")
        a("s_cbranch_scc1 K1_GS_L")
        a.label("K1_GS_D")
        a("s_mov_b64 exec, -1")
    else:
        a("s_barrier")
    stg(3)
    for k in range(0 if OSP else 3):
        a(f"ds_read_b128 v[{32+8*k}:{35+8*k}], v22 offset:{C_PART + 1024*k}")
        a(f"ds_read_b128 v[{36+8*k}:{39+8*k}], v22 offset:{C_PART + 3072 + 1024*k}")
    if not OSP: a("s_waitcnt lgkmcnt(0)")
    stg(4)
    for r in range(0 if OSP else 8):
        a(f"v_add_f32 v{96+r}, v{96+r}, v{32+r}")
        a(f"v_add_f32 v{40+r}, v{40+r}, v{48+r}")
        a(f"v_add_f32 v{96+r}, v{96+r}, v{40+r}")
    for tt in range(2):
        y = (128 if OSP else 96) + 4 * tt; u = 16 + 2 * tt; x = 10 + 2 * tt
        a(f"v_cvt_pk_bf16_f32 v60, v{y}, v{y+1}")
        a(f"v_cvt_pk_bf16_f32 v61, v{y+2}, v{y+3}")
        a(f"v_lshlrev_b32 v62, 16, v{u}")
        a(f"v_and_b32 v63, 0xffff0000, v{u}")
        a(f"v_lshlrev_b32 v64, 16, v{u+1}")
        a(f"v_and_b32 v65, 0xffff0000, v{u+1}")
        for k in range(4): a(f"v_mul_f32 v{62+k}, v{62+k}, v14")
        a(f"v_cvt_pk_bf16_f32 v66, v62, v63")
        a(f"v_cvt_pk_bf16_f32 v67, v64, v65")
        for k in range(2):
            a(f"v_lshlrev_b32 v62, 16, v{60+k}")
            a(f"v_lshlrev_b32 v63, 16, v{66+k}")
            a(f"v_and_b32 v64, 0xffff0000, v{60+k}")
            a(f"v_and_b32 v65, 0xffff0000, v{66+k}")
            a(f"v_add_f32 v62, v62, v63")
            a(f"v_add_f32 v64, v64, v65")
            a(f"v_cvt_pk_bf16_f32 v{68+k}, v62, v64")
            a(f"v_lshlrev_b32 v62, 16, v{68+k}")
            a(f"v_lshlrev_b32 v63, 16, v{x+k}")
            a(f"v_and_b32 v64, 0xffff0000, v{68+k}")
            a(f"v_and_b32 v65, 0xffff0000, v{x+k}")
            a(f"v_add_f32 v62, v62, v63")
            a(f"v_add_f32 v64, v64, v65")
            a(f"v_cvt_pk_bf16_f32 v{70+2*tt+k}, v62, v64")
    if HTP:
        assert 'h4' in OPTS
        a("s_lshl_b32 s35, s33, 13")
        a("s_lshl_b32 s36, s27, 10")
        a("s_add_u32 s35, s35, s36")
        a(f"s_add_u32 s35, s35, {WS_HTP + 512}")
    else:
        a("s_lshl_b32 s35, s33, 12")
        a(f"s_add_u32 s35, s35, {WS_HT}")
    stg(5)
    H4 = 'h4' in OPTS
    NHS = 1 if H4 else 2
    if H4:
        a("v_and_b32 v9, 1, v3")
        a(f"v_mul_u32_u24 v9, {1016 if HTP else 504}, v9")
        a("v_add_u32 v8, v9, v8")
        a("v_permlane16_swap_b32 v70, v72")
        a("v_permlane16_swap_b32 v71, v73")
        a("buffer_store_dwordx4 v[70:73], v8, s[12:15], s35 offen" + (" sc1" if (F4 or 'htsc1' in OPTS) else ""))
    else:
        a("buffer_store_dwordx2 v[70:71], v8, s[12:15], s35 offen" + (" sc1" if F4 else ""))
        a("buffer_store_dwordx2 v[72:73], v8, s[12:15], s35 offen offset:512" + (" sc1" if F4 else ""))
    if ICP and not CPE and not AX2 and not LDR: copy_store(NHS)
    if F4:
        a(f"s_waitcnt vmcnt({2 if (ICP and not CPE) else 0})")
        st(6)
        stg(6)
        ln2_tail(a, st if 'st4' in OPTS else None)
    if KT:
        a("s_waitcnt vmcnt(0) lgkmcnt(0)")
        if not F4:
            st(6)
            stg(6)
        st_flush()
    a("s_branch K1_END")
    a.label("K1_PF")
    a("s_waitcnt lgkmcnt(0)")
    if 'pfwg' in OPTS:
        a("v_mov_b32 v7, 0")
        a.label("K1_PFW")
        a("ds_read_b32 v9, v7")
        a("s_waitcnt lgkmcnt(0)")
        a("v_readfirstlane_b32 s37, v9")
        a("s_cmp_ge_u32 s37, 8")
        a("s_cbranch_scc1 K1_PFG")
        a("s_sleep 2")
        a("s_branch K1_PFW")
        a.label("K1_PFG")
    elif 'pfgo' in OPTS:
        srd(a, 48, 56, 57, 256)
        a("v_mov_b32 v7, 0")
        a.label("K1_PFW")
        a("buffer_load_dword v9, v7, s[48:51], 0 offen offset:128 sc1")
        a("s_waitcnt vmcnt(0)")
        a("v_readfirstlane_b32 s37, v9")
        a("s_cmp_lg_u32 s37, 0")
        a("s_cbranch_scc1 K1_PFG")
        a("s_sleep 2")
        a("s_branch K1_PFW")
        a.label("K1_PFG")
    gen_prefetch(a, 1, 0, "K1_END")
    a.label("K1_END")
    kst_end(a, 0, 256)
    a("s_endpgm")
    return name, (168 if FAR else 164), K12C_LDS
```

```python
from gen import *
import os
OPT = os.environ.get('GOPT', '').split(',')
def opt_int(name, default):
    for o in OPT:
        if o.startswith(name + '='): return int(o.split('=')[1])
    return default
WS_W2D = 0x4000000
W2D_PITCH = 2048
WS_FL = 0x4900000
WS_XB = 0x4A00000
WS_END3 = WS_XB + 64 * 16 * 18 * 2048
SK = opt_int('sk', 4)
MF = 9 if SK == 4 else 6
NMT = 36 // MF
NSTG = 72 // SK
K5S_NWG = NMT * 16 * SK
S_NS = opt_int('s5ns', 4)
S_W = 16384
S_A = 2 * MF * 1024
S_ACT0 = S_NS * S_W
K5S_LDS = S_ACT0 + S_NS * S_A
NT_ = 2 * MF
NKEEP = -(-NT_ // SK)

def gen_k5s(a):
    name = "k5_kernel"
    NS = S_NS
    kernel_head(a, name)
    kst_begin(a)
    CLK = 'clk' in OPT
    NG = K5S_NWG + PF[5].nwg
    a(f"s_cmp_ge_u32 s2, {NG}")
    a("s_cbranch_scc1 K5_END")
    if PF[5].nwg:
        a(f"s_cmp_ge_u32 s2, {K5S_NWG}")
        a("s_cbranch_scc1 K5_PREF")
    a("s_load_dwordx2 s[6:7], s[0:1], 112")
    a("s_load_dwordx4 s[16:19], s[0:1], 80")
    a("s_load_dwordx2 s[20:21], s[0:1], 96")
    a("v_lshrrev_b32 v2, 6, v0")
    a("v_readfirstlane_b32 s27, v2")
    a("v_and_b32 v1, 63, v0")
    a("v_lshrrev_b32 v3, 4, v1")
    a("s_and_b32 s22, s2, 7")
    a("s_lshr_b32 s23, s2, 3")
    if SK == 4:
        a("s_lshr_b32 s24, s22, 1")
        a("s_and_b32 s25, s22, 1")
        a("s_and_b32 s5, s23, 3")
        a("s_lshr_b32 s4, s23, 2")
        a("s_lshl_b32 s26, s25, 3")
        a("s_add_u32 s4, s4, s26")
    else:
        a("s_lshr_b32 s24, s22, 2")
        a("s_and_b32 s25, s22, 3")
        a("s_mul_i32 s4, s23, 43")
        a("s_lshr_b32 s4, s4, 8")
        a("s_mul_i32 s5, s4, 6")
        a("s_sub_u32 s5, s23, s5")
        a("s_lshl_b32 s26, s25, 2")
        a("s_add_u32 s4, s4, s26")
    a(f"s_mul_i32 s3, s4, {NMT}")
    a("s_add_u32 s3, s3, s5")
    a("s_waitcnt lgkmcnt(0)")
    srd(a, 12, 6, 7, WS_END3)
    a("s_cmp_ge_u32 s27, 4")
    a("s_cbranch_scc1 K5_PROD")

    a("v_bfe_u32 v8, v1, 2, 2")
    a("v_and_b32 v9, 3, v1")
    a("v_and_b32 v10, 1, v3")
    a("v_lshl_add_u32 v10, v10, 2, v8")
    a("v_lshl_add_u32 v11, v3, 2, v8")
    a("s_lshl_b32 s30, s27, 1")
    a("v_xor_b32 v10, s30, v10")
    a("v_lshlrev_b32 v11, 8, v11")
    a("v_lshl_add_u32 v11, v9, 3, v11")
    a("v_lshl_add_u32 v4, v10, 5, v11")
    a("v_xor_b32 v10, 1, v10")
    a("v_lshl_add_u32 v5, v10, 5, v11")
    a("v_lshlrev_b32 v8, 4, v1")
    a(f"v_add_u32 v8, {S_ACT0}, v8")
    a(f"v_add_u32 v9, {2*S_A}, v8")
    if NS > 4: a(f"v_add_u32 v6, {4*S_A}, v8")
    if NS > 4: a(f"v_add_u32 v7, {65536}, v4"); a(f"v_add_u32 v15, {65536}, v5")
    SZ = 4 * MF + 8
    SET = [32, 32 + SZ]
    ACC = 32 + 2 * SZ
    HV = ACC + 4 * NT_
    BV = HV + 4 * NKEEP
    for r in range(4 * NT_): a(f"v_mov_b32 v{ACC+r}, 0")
    def reads(n):
        sg, kb = divmod(n, 2)
        sl = sg % NS
        b = SET[n % 2]
        va = (8, 9, 6)[sl // 2]
        vw = (4, 5) if sl < 4 else (7, 15)
        wo = (sl % 4) * S_W
        def wr(jj): return [(f"ds_read_b64_tr_b16 v[{b+4*MF+4*jj+2*h}:{b+4*MF+4*jj+2*h+1}], v{vw[jj]} offset:{wo + kb*8192 + h*4096}", ('w', jj, h)) for h in range(2)]
        def ar(dd): return [(f"ds_read_b128 v[{b+4*dd}:{b+4*dd+3}], v{va} offset:{(sl%2)*S_A + (kb*MF + dd)*1024}", ('a', dd))]
        out = wr(0) + ar(0) + wr(1) + ar(1)
        for dd in range(2, MF): out += ar(dd)
        return out
    NRD = MF + 4
    NPRE = opt_int('npre5', 4 if SK == 4 else 2)
    class Q: pass
    q = Q(); q.issued = 0; q.done = 0; q.pos = {}
    def rd_issue(n, item):
        a(item[0]); q.pos[(n % 2, item[1])] = q.issued; q.issued += 1
    def need(keys):
        p = max(q.pos[k] for k in keys)
        if p >= q.done:
            a(f"s_waitcnt lgkmcnt({min(15, q.issued - 1 - p)})")
            q.done = p + 1 if q.issued - 1 - p <= 15 else q.issued - 15
    def half(n):
        b = SET[n % 2]
        nxt = reads(n + 1) if n + 1 < 2 * NSTG else []
        odd = n % 2 == 1
        k = 0
        for dd in range(MF):
            for jj in range(2):
                if odd and k == NPRE and nxt:
                    a("s_waitcnt lgkmcnt(0)"); q.done = q.issued
                    a("s_barrier")
                need([(n % 2, ('a', dd)), (n % 2, ('w', jj, 0)), (n % 2, ('w', jj, 1))])
                acc = ACC + 4 * (2 * dd + jj)
                a(f"v_mfma_f32_16x16x32_bf16 v[{acc}:{acc+3}], v[{b+4*dd}:{b+4*dd+3}], v[{b+4*MF+4*jj}:{b+4*MF+4*jj+3}], v[{acc}:{acc+3}]")
                if nxt and (not odd or k >= NPRE):
                    rd_issue(n + 1, nxt.pop(0))
                    left = 2 * MF - 1 - k
                    while len(nxt) > left: rd_issue(n + 1, nxt.pop(0))
                k += 1
        for it in nxt: rd_issue(n + 1, it)
    a("s_barrier")
    if CLK:
        a("s_memtime s[64:65]"); a("s_memrealtime s[66:67]")
        a("s_waitcnt lgkmcnt(0)")
    for it in reads(0): rd_issue(0, it)
    a("v_and_b32 v10, 15, v1")
    a("v_lshlrev_b32 v10, 1, v10")
    HP = 8192 if HTP else 4096
    a(f"v_lshl_add_u32 v11, v3, {15 if HTP else 14}, v10")
    a("s_lshl_b32 s30, s4, 7")
    a("s_lshl_b32 s31, s27, 5")
    a("s_add_u32 s30, s30, s31")
    a("s_and_b32 s31, s24, 1")
    a("s_lshl_b32 s31, s31, 4")
    a("s_add_u32 s30, s30, s31")
    a("s_mov_b32 s38, s30")
    a("s_lshl_b32 s30, s30, 1")
    K5T = [o for o in OPT if o.startswith('k5t=')]
    if K5T:
        TB1, TD, TW = (int(x) for x in K5T[0][4:].split('.'))
        HK = opt_int('hk', 192)
        assert SK == 2 and NS == 4 and HK in (192, 96)
        srd(a, 44, 16, 17, 4608 * 4096)
        a("v_lshrrev_b32 v16, 3, v1")
        if HK == 192: a("s_lshl_b32 s48, s23, 3")
        else:
            a("s_lshl_b32 s48, s23, 2")
            a("v_and_b32 v16, 3, v16")
        a("s_mul_i32 s49, s25, 576")
        a("s_add_u32 s48, s48, s49")
        a("v_add_u32 v16, s48, v16")
        a("v_and_b32 v17, 7, v1")
        a("v_lshlrev_b32 v17, 7, v17")
        a("s_lshl_b32 s48, s25, 10")
        a("v_add_u32 v17, s48, v17")
        a(f"s_mul_i32 s48, s24, {2304*4096}")
        a(f"s_movk_i32 s49, {256*TD}")
    srd(a, 16, 18, 19, 2048 * 2)
    a(f"buffer_load_ushort v{BV}, v10, s[16:19], s30 offen")
    a(f"s_mul_i32 s31, s5, {16*MF}")
    a("s_lshr_b32 s33, s24, 1")
    a("s_lshl_b32 s33, s33, 4")
    a("s_add_u32 s31, s31, s33")
    a("s_mov_b32 s39, s31")
    a(f"s_lshl_b32 s31, s31, {13 if HTP else 12}")
    if HTP:
        a("s_lshr_b32 s33, s30, 9")
        a("s_lshl_b32 s33, s33, 10")
        a("s_and_b32 s30, s30, 511")
        a("s_add_u32 s30, s30, s33")
    a("s_add_u32 s30, s30, s31")
    a(f"s_add_u32 s30, s30, {WS_HTP + 512 if HTP else WS_HT}")
    for i in range(NKEEP):
        for r in range(4):
            a(f"buffer_load_ushort v{HV+4*i+r}, v11, s[12:15], s30 offen")
            if r < 3: a(f"s_add_u32 s30, s30, {HP}")
        if i < NKEEP - 1: a(f"s_add_u32 s30, s30, {(8*SK - 3)*HP}")
    nl = (NSTG - 1) // NS
    if NS % 2 == 0 or True:
        XW = opt_int('xwarm', 0)
        if XW:
            a("v_lshrrev_b32 v12, 3, v1")
            a("v_cmp_le_u32 vcc, 3, v12")
            a("v_addc_co_u32 v12, vcc, 0, v12, vcc")
            a("v_and_b32 v13, 7, v1")
            a("v_lshlrev_b32 v13, 4, v13")
            a("v_lshl_add_u32 v12, v12, 7, v13")
            a(f"s_mul_i32 s40, s3, {4*SK}")
            a("s_add_u32 s40, s40, s27")
            a("s_xor_b32 s41, s24, 1")
            a("s_lshl_b32 s41, s41, 2")
            a("s_add_u32 s40, s40, s41")
            a(f"s_mul_i32 s40, s40, {NT_}")
            a("s_add_u32 s40, s40, s24")
            a("s_lshl_b32 s40, s40, 11")
            a(f"s_add_u32 s40, s40, {WS_XB}")
        a(f"s_movk_i32 s31, {nl}")
        a.label("K5_CLOOP")
        if XW:
            assert SK == 2
            a(f"s_cmp_lg_u32 s31, {XW}")
            a("s_cbranch_scc1 K5_NOXW")
            for i in range(NKEEP):
                a("buffer_load_dword v13, v12, s[12:15], s40 offen sc1")
                if i < NKEEP - 1: a("s_add_u32 s40, s40, 4096")
            a.label("K5_NOXW")
        if K5T:
            if TW >= 0: a(f"s_cmp_lg_u32 s27, {TW}")
            else:
                a("s_and_b32 s50, s31, 3")
                a("s_cmp_lg_u32 s27, s50")
            a("s_cbranch_scc1 K5_NOT")
            a(f"s_cmp_lt_u32 s49, {256*TB1}")
            a("s_cbranch_scc1 K5_NOT")
            a(f"s_cmp_ge_u32 s49, 2304")
            a("s_cbranch_scc1 K5_NOT")
            a("v_add_u32 v18, s49, v16")
            a("v_subrev_u32 v19, 2304, v18")
            a("v_min_u32 v18, v18, v19")
            a("v_lshl_add_u32 v18, v18, 12, v17")
            if HK == 96:
                a("s_mov_b32 exec_hi, 0")
            a("buffer_load_dword v20, v18, s[44:47], s48 offen")
            if HK == 96:
                a("s_mov_b32 exec_hi, -1")
            a.label("K5_NOT")
            a("s_add_u32 s49, s49, 256")
        q.done = q.issued - NRD
        for n in range(2 * NS): half(n)
        a("s_sub_u32 s31, s31, 1")
        a("s_cmp_lg_u32 s31, 0")
        a("s_cbranch_scc1 K5_CLOOP")
        q.done = q.issued - NRD
        for n in range(2 * NS * nl, 2 * NSTG): half(n)
    a("s_waitcnt vmcnt(0)")
    if CLK:
        a("s_memtime s[68:69]"); a("s_memrealtime s[70:71]")
        a("s_waitcnt lgkmcnt(0)")
        a("s_sub_u32 s68, s68, s64")
        a("s_sub_u32 s70, s70, s66")
        a("v_mov_b32 v24, s68"); a("v_mov_b32 v25, s70"); a("v_mov_b32 v26, s66"); a("v_mov_b32 v27, 0")
        a("s_lshl_b32 s72, s2, 6")
        a("s_lshl_b32 s73, s27, 4")
        a("s_add_u32 s72, s72, s73")
        a(f"s_add_u32 s72, s72, {0x2900000 + 0x10000}")
        a("v_mov_b32 v28, 0")
        a("buffer_store_dwordx4 v[24:27], v28, s[12:15], s72 offen")

    a("v_lshrrev_b32 v10, 3, v1")
    a("v_cmp_le_u32 vcc, 3, v10")
    a("v_addc_co_u32 v10, vcc, 0, v10, vcc")
    a("v_and_b32 v11, 7, v1")
    a("v_lshlrev_b32 v11, 4, v11")
    a("v_lshl_add_u32 v10, v10, 7, v11")
    a(f"s_mul_i32 s30, s3, {4*SK}")
    a("s_add_u32 s30, s30, s27")
    a("s_lshl_b32 s34, s30, 7")
    a(f"s_add_u32 s34, s34, {WS_FL}")
    a(f"s_mul_i32 s30, s30, {NT_*2048}")
    a(f"s_add_u32 s30, s30, {WS_XB}")
    SRCS = 4 * NT_ * 2048
    srd(a, 16, 20, 21, 2048 * 576 * 2)
    a("v_and_b32 v9, 15, v1")
    a("v_lshlrev_b32 v12, 9, v9")
    a("v_mul_u32_u24 v9, 1152, v9")
    O16 = 'o16' in OPT
    if O16:
        assert SK == 2 and 'sent' not in OPT
        a("v_and_b32 v15, 1, v3")
        a("v_lshl_add_u32 v9, v15, 5, v9")
        a("v_lshrrev_b32 v15, 1, v3")
        a("v_lshl_add_u32 v9, v15, 4, v9")
    else:
        a("v_lshl_add_u32 v9, v3, 3, v9")
    a("s_mul_i32 s38, s38, 1152")
    a("s_lshl_b32 s39, s39, 1")
    a("s_add_u32 s38, s38, s39")
    a(f"v_lshlrev_b32 v{BV}, 16, v{BV}")
    NOX = 'nox' in OPT
    XST = 'xst' in OPT
    SENT = 'sent' in OPT
    XLD = {0: "sc1", 1: "sc0 sc1", 2: "sc1 nt", 3: "sc0 sc1 nt"}[opt_int('xld', 0)]
    XSTO = {0: "sc1", 1: "sc0 sc1", 2: "sc1 nt", 3: "sc0 sc1 nt"}[opt_int('xsto', 0)]
    XDL = opt_int('xdl', -1)
    def xst(i):
        if XST: a(f"s_memrealtime s[{40+2*i}:{41+2*i}]")
    xst(0)
    for kq in range(SK):
        if kq < SK - 1:
            a(f"s_cmp_lg_u32 s24, {kq}")
            a(f"s_cbranch_scc1 K5_X{kq+1}")
        keep = [t for t in range(NT_) if t % SK == kq]
        send = [t for t in range(NT_) if t % SK != kq]
        a(f"s_add_u32 s31, s30, {kq*SRCS}")
        prev = 0
        for t in send:
            while (t - prev) >= 2:
                a(f"s_add_u32 s31, s31, {2*2048}"); prev += 2
            acc = ACC + 4 * t
            if SENT:
                for r_ in range(4): a(f"v_min_u32 v{acc+r_}, -2, v{acc+r_}")
            if not NOX: a(f"buffer_store_dwordx4 v[{acc}:{acc+3}], v10, s[12:15], s31 offen offset:{(t-prev)*2048} {XSTO}")
        xst(1)
        if SENT and XDL == 0: a("s_waitcnt vmcnt(0)")
        if SENT and XDL > 0: a(f"s_sleep {XDL}")
        if SENT:
            srcs = [s_ for s_ in range(SK) if s_ != kq]
            NSRC = SK - 1
            nk = len(keep)
            a("s_mov_b32 s36, 0x100000")
            a.label(f"K5_P{kq}")
            for i, t in enumerate(keep):
                for k, s_ in enumerate(srcs):
                    off = s_ * SRCS + t * 2048
                    r = 32 + 4 * (NSRC * i + k)
                    a(f"s_add_u32 s31, s30, {off}")
                    a(f"buffer_load_dwordx4 v[{r}:{r+3}], v10, s[12:15], s31 offen {XLD}")
            a("s_sub_u32 s36, s36, 1")
            a("s_cmp_eq_u32 s36, 0")
            a("s_waitcnt vmcnt(0)")
            a(f"s_cbranch_scc1 K5_G{kq}")
            nw = 4 * NSRC * nk
            a("v_max3_u32 v13, v32, v33, v34")
            j = 3
            while j < nw:
                if j + 1 < nw: a(f"v_max3_u32 v13, v13, v{32+j}, v{33+j}"); j += 2
                else: a(f"v_max_u32 v13, v13, v{32+j}"); j += 1
            a("v_cmp_eq_u32 vcc, -1, v13")
            a("s_cmp_lg_u64 vcc, 0")
            a(f"s_cbranch_scc1 K5_P{kq}")
            a.label(f"K5_G{kq}")
            xst(2); xst(3)
            for i, t in enumerate(keep):
                acc = ACC + 4 * t
                if i == 0: xst(4)
                if i == nk - 1: xst(5)
                for k in range(NSRC):
                    r = 32 + 4 * (NSRC * i + k)
                    a(f"v_pk_add_f32 v[{acc}:{acc+1}], v[{acc}:{acc+1}], v[{r}:{r+1}]")
                    a(f"v_pk_add_f32 v[{acc+2}:{acc+3}], v[{acc+2}:{acc+3}], v[{r+2}:{r+3}]")
                O = 24 + 2 * (i % 2)
                for p in range(2):
                    x = 16 + 4 * p
                    a(f"v_cvt_pk_bf16_f32 v{x+2}, v{acc+2*p}, v{acc+2*p+1}")
                    a(f"v_lshlrev_b32 v{x}, 16, v{x+2}")
                    a(f"v_and_b32 v{x+1}, 0xffff0000, v{x+2}")
                    a(f"v_add_f32 v{x}, v{x}, v{BV}")
                    a(f"v_add_f32 v{x+1}, v{x+1}, v{BV}")
                    a(f"v_cvt_pk_bf16_f32 v{x+2}, v{x}, v{x+1}")
                    a(f"v_lshlrev_b32 v{x}, 16, v{x+2}")
                    a(f"v_and_b32 v{x+1}, 0xffff0000, v{x+2}")
                    a(f"v_lshlrev_b32 v{x+2}, 16, v{HV+4*i+2*p}")
                    a(f"v_lshlrev_b32 v{x+3}, 16, v{HV+4*i+2*p+1}")
                    a(f"v_add_f32 v{x}, v{x}, v{x+2}")
                    a(f"v_add_f32 v{x+1}, v{x+1}, v{x+3}")
                    a(f"v_cvt_pk_bf16_f32 v{O+p}, v{x}, v{x+1}")
                a(f"buffer_store_dwordx2 v[{O}:{O+1}], v9, s[16:19], s38 offen offset:{16*SK*i}")
            if XST:
                a("s_waitcnt vmcnt(0)")
                xst(6)
                a("s_waitcnt lgkmcnt(0)")
                for i in range(7): a(f"v_mov_b32 v{32+i}, s{40+2*i}")
                a(f"v_mov_b32 v39, s36")
                a("s_lshl_b32 s72, s2, 2")
                a("s_add_u32 s72, s72, s27")
                a("s_lshl_b32 s72, s72, 5")
                a(f"s_add_u32 s72, s72, {0x2800000}")
                a("v_mov_b32 v28, 0")
                a("s_mov_b64 exec, 1")
                a("buffer_store_dwordx4 v[32:35], v28, s[12:15], s72 offen")
                a("buffer_store_dwordx4 v[36:39], v28, s[12:15], s72 offen offset:16")
                a("s_mov_b64 exec, -1")
            a("s_branch K5_END")
            if kq < SK - 1: a.label(f"K5_X{kq+1}")
            continue
        a("s_waitcnt vmcnt(0)")
        xst(2)
        a("v_mov_b32 v13, 1")
        a("v_mov_b32 v14, 0")
        a(f"s_add_u32 s31, s34, {kq*512}")
        a("s_mov_b64 exec, 1")
        a("buffer_store_dword v13, v14, s[12:15], s31 offen sc1")
        a(f"s_mov_b64 exec, {(1 << SK) - 1}")
        needm = ((1 << SK) - 1) & ~(1 << kq)
        a("s_mov_b32 s36, 0x100000")
        a.label(f"K5_P{kq}")
        a("s_sub_u32 s36, s36, 1")
        a("s_cmp_eq_u32 s36, 0")
        a(f"s_cbranch_scc1 K5_G{kq}")
        a("buffer_load_dword v13, v12, s[12:15], s34 offen sc1")
        a("s_waitcnt vmcnt(0)")
        a("v_cmp_ne_u32 vcc, 0, v13")
        a(f"s_and_b32 s35, vcc_lo, {needm}")
        a(f"s_cmp_eq_u32 s35, {needm}")
        a(f"s_cbranch_scc1 K5_G{kq}")
        a("s_sleep 1")
        a(f"s_branch K5_P{kq}")
        a.label(f"K5_G{kq}")
        a("s_mov_b64 exec, -1")
        xst(3)
        srcs = [s_ for s_ in range(SK) if s_ != kq]
        NSRC = SK - 1
        for i, t in enumerate(keep):
            for k, s_ in enumerate(srcs):
                off = s_ * SRCS + t * 2048
                r = 32 + 4 * (NSRC * i + k)
                a(f"s_add_u32 s31, s30, {off}")
                a(f"buffer_load_dwordx4 v[{r}:{r+3}], v10, s[12:15], s31 offen sc1")
        nk = len(keep)
        for i, t in enumerate(keep):
            acc = ACC + 4 * t
            a(f"s_waitcnt vmcnt({NSRC*(nk-1-i) + (i // 2 if O16 else i)})")
            if i == 0: xst(4)
            if i == nk - 1: xst(5)
            for k in range(NSRC):
                r = 32 + 4 * (NSRC * i + k)
                a(f"v_pk_add_f32 v[{acc}:{acc+1}], v[{acc}:{acc+1}], v[{r}:{r+1}]")
                a(f"v_pk_add_f32 v[{acc+2}:{acc+3}], v[{acc+2}:{acc+3}], v[{r+2}:{r+3}]")
            O = 24 + 2 * (i % 2)
            if O16: O = 24 + 4 * ((i // 2) % 2) + 2 * (i % 2)
            for p in range(2):
                x = 16 + 4 * p
                a(f"v_cvt_pk_bf16_f32 v{x+2}, v{acc+2*p}, v{acc+2*p+1}")
                a(f"v_lshlrev_b32 v{x}, 16, v{x+2}")
                a(f"v_and_b32 v{x+1}, 0xffff0000, v{x+2}")
                a(f"v_add_f32 v{x}, v{x}, v{BV}")
                a(f"v_add_f32 v{x+1}, v{x+1}, v{BV}")
                a(f"v_cvt_pk_bf16_f32 v{x+2}, v{x}, v{x+1}")
                a(f"v_lshlrev_b32 v{x}, 16, v{x+2}")
                a(f"v_and_b32 v{x+1}, 0xffff0000, v{x+2}")
                a(f"v_lshlrev_b32 v{x+2}, 16, v{HV+4*i+2*p}")
                a(f"v_lshlrev_b32 v{x+3}, 16, v{HV+4*i+2*p+1}")
                a(f"v_add_f32 v{x}, v{x}, v{x+2}")
                a(f"v_add_f32 v{x+1}, v{x+1}, v{x+3}")
                a(f"v_cvt_pk_bf16_f32 v{O+p}, v{x}, v{x+1}")
            if O16:
                if i % 2 == 1:
                    B_ = O - 2
                    a(f"v_permlane16_swap_b32 v{B_}, v{B_+2}")
                    a(f"v_permlane16_swap_b32 v{B_+1}, v{B_+3}")
                    a(f"buffer_store_dwordx4 v[{B_}:{B_+3}], v9, s[16:19], s38 offen offset:{32*(i-1)}" + (" sc1" if i // 2 < opt_int('osc1', 0) else ""))
            else:
                a(f"buffer_store_dwordx2 v[{O}:{O+1}], v9, s[16:19], s38 offen offset:{16*SK*i}")
        if XST:
            a("s_waitcnt vmcnt(0)")
            xst(6)
            a("s_waitcnt lgkmcnt(0)")
            for i in range(7): a(f"v_mov_b32 v{32+i}, s{40+2*i}")
            a(f"v_mov_b32 v39, s36")
            a("s_lshl_b32 s72, s2, 2")
            a("s_add_u32 s72, s72, s27")
            a("s_lshl_b32 s72, s72, 5")
            a(f"s_add_u32 s72, s72, {0x2800000}")
            a("v_mov_b32 v28, 0")
            a("s_mov_b64 exec, 1")
            a("buffer_store_dwordx4 v[32:35], v28, s[12:15], s72 offen")
            a("buffer_store_dwordx4 v[36:39], v28, s[12:15], s72 offen offset:16")
            a("s_mov_b64 exec, -1")
        a("s_branch K5_END")
        if kq < SK - 1: a.label(f"K5_X{kq+1}")

    a.label("K5_PROD")
    a("s_sub_u32 s28, s27, 4")
    srd(a, 8, 16, 17, 4608 * 4096)
    a("s_movk_i32 s30, 4096")
    a("s_lshl_b32 s32, s4, 8")
    if 'nocopy5' not in OPT:
        a("s_and_b32 s31, s4, 3")
        a("s_cmp_lg_u32 s31, 1")
        a("s_cbranch_scc1 K5_NOCP")
        a(f"s_movk_i32 s30, {W2D_PITCH}")
        a("s_lshr_b32 s32, s4, 2")
        a("s_lshl_b32 s32, s32, 9")
        a(f"s_add_u32 s32, s32, {WS_W2D}")
        srd(a, 8, 6, 7, WS_END3)
        a.label("K5_NOCP")
    a("s_lshl_b32 s57, s30, 6")
    a(f"s_mul_i32 s58, s24, {NSTG}")
    a("s_mul_i32 s59, s25, 9")
    if 'jrot' in OPT:
        JR = opt_int('jrs', NSTG * 2 // NMT)
        a(f"s_mul_i32 s60, s5, {JR}")
        a("s_lshr_b32 s60, s60, 1")
        a("s_add_u32 s59, s59, s60")
        a(f"s_sub_u32 s60, s59, {NSTG}")
        a("s_min_u32 s59, s59, s60")
        a(f"s_sub_u32 s60, s59, {NSTG}")
        a("s_min_u32 s59, s59, s60")
    a("s_add_u32 s58, s58, s59")
    a("s_mul_i32 s60, s58, s57")
    a("s_add_u32 s32, s32, s60")
    a(f"s_mul_i32 s33, s58, {12*ABLK}")
    a(f"s_add_u32 s33, s33, {WS_G - 4096}")
    a(f"s_sub_u32 s58, {NSTG}, s59")
    a(f"s_mul_i32 s63, s57, {NSTG}")
    a("v_and_b32 v4, 15, v1")
    a("v_lshrrev_b32 v5, 1, v4")
    a("v_and_b32 v4, 1, v4")
    a("s_lshl_b32 s29, s28, 4")
    a("v_add_u32 v6, s29, v3")
    a("v_mul_lo_u32 v6, v6, s30")
    a("v_lshl_add_u32 v6, v4, 4, v6")
    for qq in range(4):
        a(f"v_or_b32 v7, {(qq & 1) << 2}, v3")
        a("v_xor_b32 v7, v7, v5")
        a(f"v_lshl_add_u32 v{10+qq}, v7, 5, v6")
        if qq:
            a(f"s_mul_i32 s31, s30, {4*qq}")
            a(f"s_sub_u32 s31, s31, {1024*qq}")
            a(f"v_add_u32 v{10+qq}, s31, v{10+qq}")
    a("v_lshrrev_b32 v16, 3, v1")
    a("v_lshlrev_b32 v16, 10, v16")
    a("v_and_b32 v17, 7, v1")
    a("v_lshl_add_u32 v16, v17, 4, v16")
    if SK == 4:
        a("s_mul_i32 s34, s28, 5")
        a("s_lshl_b32 s35, s28, 2")
        a("s_add_u32 s35, s35, 2")
        a("s_cmp_lt_u32 s28, 2")
        a("s_cselect_b32 s34, s34, s35")
        NAP = 5
    else:
        a("s_mul_i32 s34, s28, 3")
        NAP = 3
    a(f"s_mul_i32 s61, s5, {MF}")
    for i in range(NAP):
        a(f"s_add_u32 s35, s34, {i}")
        a(f"s_cmp_ge_u32 s35, {MF}")
        a("s_cselect_b32 s36, 1, 0")
        a(f"s_mul_i32 s37, s36, {MF}")
        a("s_sub_u32 s35, s35, s37")
        a("s_add_u32 s35, s35, s61")
        a("s_mul_i32 s37, s35, 43")
        a("s_lshr_b32 s37, s37, 8")
        a("s_mul_i32 s62, s37, 6")
        a("s_sub_u32 s35, s35, s62")
        a("s_cmp_ge_u32 s35, 3")
        a("s_addc_u32 s35, s35, 0")
        a("s_lshl_b32 s35, s35, 7")
        a("s_lshl_b32 s37, s37, 1")
        a("s_add_u32 s37, s37, s36")
        a(f"s_lshl_b32 s37, s37, 13")
        a("s_add_u32 s35, s35, s37")
        a(f"s_add_u32 s35, s35, {4096 - 1024*(i % 4)}")
        a(f"v_add_u32 v{17+i}, s35, v16")
    for s_ in range(NS):
        a("s_lshl_b32 s30, s28, 12")
        a(f"s_add_u32 s{40+s_}, s30, {s_*S_W}")
        a("s_lshl_b32 s30, s34, 10")
        a(f"s_add_u32 s{46+s_}, s30, {S_ACT0 + s_*S_A}")
        a(f"s_add_u32 s{66+s_}, s{46+s_}, 4096")
    def issue(k, na):
        sl = k % NS
        a(f"s_mov_b32 m0, s{40+sl}")
        for qq in range(4): a(f"buffer_load_dwordx4 v{10+qq}, s[8:11], s32 offen offset:{1024*qq} lds")
        a(f"s_mov_b32 m0, s{46+sl}")
        for i in range(min(na, 4)): a(f"buffer_load_dwordx4 v{17+i}, s[12:15], s33 offen offset:{1024*i} lds")
        if na == 5:
            a(f"s_mov_b32 m0, s{66+sl}")
            a("buffer_load_dwordx4 v21, s[12:15], s33 offen lds")
        a("s_add_u32 s32, s32, s57")
        a(f"s_add_u32 s33, s33, {12*ABLK}")
        a("s_sub_u32 s58, s58, 1")
        a("s_cmp_eq_u32 s58, 0")
        a("s_cselect_b32 s59, s63, 0")
        a(f"s_cselect_b32 s64, {NSTG*12*ABLK}, 0")
        a("s_sub_u32 s32, s32, s59")
        a("s_sub_u32 s33, s33, s64")
    EB = opt_int('eb5', 2)
    variants = (5, 4) if SK == 4 else (3,)
    if SK == 4:
        a("s_cmp_ge_u32 s28, 2")
        a("s_cbranch_scc1 K5_PR4")
    for na in variants:
        PPS = 4 + na
        for k in range(EB): issue(k, na)
        a(f"s_waitcnt vmcnt({(EB-1)*PPS})")
        a("s_barrier")
        for k in range(EB, NS): issue(k, na)
        for k in range(1, NSTG):
            a(f"s_waitcnt vmcnt({(min(k + NS - 2, NSTG - 1) - k) * PPS})")
            a("s_barrier")
            if k + NS - 1 < NSTG: issue(k + NS - 1, na)
        a("s_branch K5_END")
        if na == 5: a.label("K5_PR4")
    if PF[5].nwg:
        a.label("K5_PREF")
        gen_prefetch(a, 5, K5S_NWG, "K5_END")
    a.label("K5_END")
    kst_end(a, 4, NG)
    a("s_endpgm")
    return name, BV + 4, K5S_LDS
```

```python
import sys
sys.path.insert(0, 'gen')
from asmlib import *

NAME = "sequential_preLN__ssm_conv_s4d__mixer_token_mlp__prompt"
L, D, NM, F = 2048, 576, 128, 4608
WS_UT = 0x0
WS_XT = 0x240000
WS_R  = 0x480000
RSTRIDE = 8256; ROFF = 4128
WS_HT = 0x910000
HTP = 'htp' in __import__('os').environ.get('GOPT', '').split(',')
WS_HTP = 0x480000
WS_HN = 0xB50000
WS_G  = 0xE50000
WS_W1C = 0x1510000
W1C_PITCH = 4608
WS_W2C = 0x1E10000
W2C_PITCH = 1024
WS_CNT = 0x2290000
WS_END = 0x22A0000
ABLK = 8192
LOG2E = 0x3fb8aa3b
INV2PI = 0x3e22f983

def fhex(x):
    import struct
    return "0x%08x" % struct.unpack('<I', struct.pack('<f', x))[0]

def srd(a, s, lo, hi, size):
    a(f"s_mov_b32 s{s}, s{lo} ; srd")
    a(f"s_and_b32 s{s+1}, s{hi}, 0xffff ; srd")
    a(f"s_mov_b32 s{s+2}, {hex(size)} ; srd")
    a(f"s_mov_b32 s{s+3}, 0x00020000 ; srd")

def lint_srd(lines, name):
    import re
    tag = {}
    pend = set()
    bad = 0
    for k, t in lines:
        if k != 'i': continue
        it = Ins(t)
        if it.mn == 's_waitcnt' and 'lgkmcnt(0)' in t: pend = set()
        if it.mn.startswith('s_load'):
            for r in it.wr:
                if r in pend: print(f"LINT {name}: s_load into {r} while a load to it is pending: {t}"); bad += 1
            pend |= set(it.wr)
        if it.mn.startswith('buffer_'):
            q = [o for o in it.ops if re.match(r'^s\[\d+:\d+\]$', o)]
            if q:
                regs = regs_of(q[0])
                for r in regs:
                    if tag.get(r) != 'srd': print(f"LINT {name}: {r} of SRD not from srd(): {t}"); bad += 1
                    if r in pend: print(f"LINT {name}: {r} pending s_load: {t}"); bad += 1
        for r in it.wr:
            if r[0] == 's': tag[r] = 'srd' if '; srd' in t else 'other'
    return bad

def kernel_head(a, name):
    a.raw(f".globl {name}\n.p2align 8\n.type {name},@function\n{name}:")

import os
STAMP = 'kst' in os.environ.get('GOPT', '').split(',')
STAMP_BASE = 0x3000000
_KB_COUNT = [0]
def kst_begin(a):
    _KB_COUNT[0] += 1
    for o in os.environ.get('GOPT', '').split(','):
        if o.startswith('dly%d=' % _KB_COUNT[0]): a("s_sleep %d" % int(o.split('=')[1]))
    if not STAMP: return
    a("s_memrealtime s[94:95]")
    a("v_readfirstlane_b32 s93, v0")
def kst_end(a, kidx, nwg):
    if not STAMP: return
    lab = f"KST_{kidx}"
    a(f"s_cmp_ge_u32 s2, {nwg}")
    a(f"s_cbranch_scc1 {lab}")
    a("s_mov_b64 exec, -1")
    a("s_waitcnt vmcnt(0) lgkmcnt(0)")
    a("s_lshr_b32 s86, s93, 6")
    a("s_memrealtime s[92:93]")
    a("s_load_dwordx2 s[6:7], s[0:1], 112")
    a("s_waitcnt lgkmcnt(0)")
    srd(a, 88, 6, 7, 0x4000000)
    a("s_lshl_b32 s86, s86, 3")
    a("v_mov_b32 v2, s86")
    a(f"s_lshl_b32 s87, s2, 7")
    a(f"s_add_u32 s87, s87, {STAMP_BASE + kidx * 0x20000}")
    a("v_mov_b32 v0, s94")
    a("v_mov_b32 v1, s92")
    a("s_mov_b64 exec, 1")
    a("buffer_store_dwordx2 v[0:1], v2, s[88:91], s87 offen")
    a.label(lab)

def kernel_desc(name, vgpr, sgpr=96, accum=None):
    acc = accum if accum is not None else ((vgpr + 3) // 4) * 4
    return f""".amdhsa_kernel {name}
  .amdhsa_next_free_vgpr {vgpr}
  .amdhsa_next_free_sgpr {sgpr}
  .amdhsa_accum_offset {acc}
  .amdhsa_group_segment_fixed_size 0
  .amdhsa_kernarg_size 120
  .amdhsa_user_sgpr_count 2
  .amdhsa_user_sgpr_kernarg_segment_ptr 1
  .amdhsa_system_sgpr_workgroup_id_x 1
.end_amdhsa_kernel
"""


DYN = 'dyn' in os.environ.get('GOPT', '').split(',')
def dyn_assign(a, kidx, quota, lds_off, swave, sws=(6, 7)):
    if not DYN: return
    L = f"DYN{kidx}"
    a(f"s_cmp_lg_u32 s{swave}, 0")
    a(f"s_cbranch_scc1 {L}_W")
    a("s_getreg_b32 s60, hwreg(HW_REG_XCC_ID, 0, 3)")
    srd(a, 64, sws[0], sws[1], WS_END)
    a("s_mov_b32 s61, 0")
    a("v_mov_b32 v61, 0")
    a("s_mov_b64 exec, 1")
    a.label(f"{L}_L")
    a("s_add_u32 s62, s60, s61")
    a("s_and_b32 s62, s62, 7")
    a("s_lshl_b32 s63, s62, 8")
    a(f"s_add_u32 s63, s63, {WS_CNT + kidx * 2048}")
    a("v_mov_b32 v60, 1")
    a("buffer_atomic_add v60, v61, s[64:67], s63 offen sc0")
    a("s_waitcnt vmcnt(0)")
    a("v_readfirstlane_b32 s68, v60")
    a(f"s_cmp_lt_u32 s68, {quota}")
    a(f"s_cbranch_scc1 {L}_D")
    a("s_add_u32 s61, s61, 1")
    a("s_cmp_lt_u32 s61, 8")
    a(f"s_cbranch_scc1 {L}_L")
    a.label(f"{L}_D")
    a("s_lshl_b32 s68, s68, 3")
    a("s_add_u32 s68, s68, s62")
    a("v_mov_b32 v60, s68")
    a(f"v_mov_b32 v61, {lds_off}")
    a("ds_write_b32 v61, v60")
    a("s_mov_b64 exec, -1")
    a("s_waitcnt lgkmcnt(0)")
    a.label(f"{L}_W")
    a("s_barrier")
    a(f"v_mov_b32 v61, {lds_off}")
    a("ds_read_b32 v60, v61")
    a("s_waitcnt lgkmcnt(0)")
    a("v_readfirstlane_b32 s2, v60")

class PFC:
    def __init__(s, nwg, nwv, jobs): s.nwg = nwg; s.nwv = nwv; s.jobs = jobs
def _pfopt():
    d = {1: PFC(0, 4, []), 2: PFC(0, 4, []), 3: PFC(0, 3, []), 4: PFC(0, 8, []), 5: PFC(0, 8, [])}
    for o in os.environ.get('GOPT', '').split(','):
        if o.startswith('pf='):
            for k, spec in enumerate(o[3:].split('/')):
                if not spec or spec == '0': continue
                n, js = spec.split(':')
                d[k + 1].nwg = int(n)
                d[k + 1].jobs = [tuple(int(x) for x in j.split('.')) for j in js.split('+') if j]
    return d
PF = _pfopt()
if {'fuse2', 'fuse3'} & set(os.environ.get('GOPT', '').split(',')): PF[1].nwv = 12; PF[1].nwg = 64
def t8_addr(a, sx, vlane, vo, vt, s0, s1):
    assert s0 % 2 == 0 and s1 == s0 + 1
    a(f"s_lshr_b32 s{s0}, s{sx}, 1")
    a(f"s_lshl_b32 s{s0}, s{s0}, 4")
    a(f"s_mov_b32 s{s1}, 0x33214320")
    a(f"s_cmp_ge_u32 s{s0}, 32")
    a(f"s_cselect_b32 s{s1}, 0x43104210, s{s1}")
    a(f"s_and_b32 s{s0}, s{s0}, 16")
    a(f"s_lshr_b32 s{s1}, s{s1}, s{s0}")
    a(f"v_bfe_u32 v{vt}, v{vlane}, 1, 2")
    a(f"v_lshlrev_b32 v{vt}, 2, v{vt}")
    a(f"v_lshrrev_b32 v{vt}, v{vt}, s{s1}")
    a(f"v_and_b32 v{vt}, 15, v{vt}")
    a(f"s_mul_i32 s{s0}, s{sx}, 27*171".replace("27*171", str(27*171)))
    a(f"s_lshr_b32 s{s0}, s{s0}, 10")
    a(f"v_add_u32 v{vt}, s{s0}, v{vt}")
    a(f"v_lshrrev_b32 v{vo}, 3, v{vlane}")
    a(f"v_mul_u32_u24 v{vo}, 9216, v{vo}")
    a(f"v_lshl_add_u32 v{vo}, v{vt}, 8, v{vo}")
    a(f"v_and_b32 v{vt}, 1, v{vlane}")
    a(f"v_lshl_add_u32 v{vo}, v{vt}, 7, v{vo}")

def code_pf(a, tag, lab0, lab1, chunks, s, vlane, vt, vd, backward=False, schunk=None):
    a(f"s_getpc_b64 s[{s}:{s+1}]")
    a.label(f"CPF_{tag}")
    a(f"s_add_u32 s{s}, s{s}, {lab0}-CPF_{tag}")
    a(f"s_addc_u32 s{s+1}, s{s+1}, {-1 if backward else 0}")
    a(f"v_lshlrev_b32 v{vt}, 7, v{vlane}")
    if schunk is not None: a(f"v_add_u32 v{vt}, s{schunk}, v{vt}")
    for i, k in enumerate(chunks):
        if k: a(f"v_add_u32 v{vt+1}, {8192*k}, v{vt}")
        a(f"v_min_u32 v{vt+1}, {lab1}-{lab0}-4, v{vt+1 if k else vt}")
        a(f"global_load_dword v{vd+i}, v{vt+1}, s[{s}:{s+1}]")

def gen_prefetch(a, k, nmain, endlab):
    c = PF[k]
    if c.nwg == 0:
        a(f"s_branch {endlab}")
        return
    assert c.nwg % 8 == 0 and nmain % 8 == 0
    a(f"s_cmp_ge_u32 s2, {nmain + c.nwg}")
    a(f"s_cbranch_scc1 {endlab}")
    a("s_load_dwordx2 s[16:17], s[0:1], 64")
    a("s_load_dwordx2 s[18:19], s[0:1], 80")
    a("v_and_b32 v1, 63, v0")
    a("v_lshrrev_b32 v2, 6, v0")
    a("v_readfirstlane_b32 s27, v2")
    a(f"s_sub_u32 s3, s2, {nmain}")
    a("s_lshr_b32 s3, s3, 3")
    a(f"s_mul_i32 s3, s3, {c.nwv}")
    a("s_add_u32 s3, s3, s27")
    a("s_and_b32 s4, s2, 7")
    NWX = c.nwg // 8 * c.nwv
    NWA = c.nwg * c.nwv
    a("s_waitcnt lgkmcnt(0)")
    _oo = os.environ.get('GOPT', '').split(',')
    if k == 3 and 'cpfb' in _oo:
        lab = a.newlabel("PF_CP")
        a("s_cmp_lg_u32 s27, 0")
        a(f"s_cbranch_scc1 {lab}")
        code_pf(a, "B", "k4_kernel", "k5_kernel", [0, 1], 40, 1, 90, 92)
        a.label(lab)
    _o = os.environ.get('GOPT', '').split(',')
    if k == 4 and 'k5s' in _o:
        from gen_k5s import WS_FL, WS_END3
        a("s_load_dwordx2 s[6:7], s[0:1], 112")
        a(f"s_sub_u32 s21, s2, {nmain}")
        a(f"s_mul_i32 s21, s21, {c.nwv}")
        a("s_add_u32 s21, s21, s27")
        a("s_waitcnt lgkmcnt(0)")
        lab = a.newlabel("PF_ZF")
        a("s_cmp_ge_u32 s21, 16")
        a(f"s_cbranch_scc1 {lab}")
        srd(a, 28, 6, 7, WS_END3)
        a("v_lshlrev_b32 v4, 7, v1")
        a("v_mov_b32 v5, 0")
        a("s_lshl_b32 s21, s21, 13")
        a(f"s_add_u32 s21, s21, {WS_FL}")
        a("buffer_store_dword v5, v4, s[28:31], s21 offen")
        a.label(lab)
    cpk = {1: 1, 2: 2}
    for o in _o:
        if o.startswith('cp1='): cpk[1] = int(o[4:])
        if o.startswith('cp2='): cpk[2] = int(o[4:])
    assert cpk[1] != cpk[2]
    if 'icp1' in _o: cpk[1] = -1
    CP = {cpk[1]: 1, cpk[2]: 2}.get(k, 0) if 'nocopy' not in _o else 0
    ncp = 0
    if CP:
        a("s_load_dwordx2 s[6:7], s[0:1], 112")
        a(f"s_sub_u32 s21, s2, {nmain}")
        a(f"s_mul_i32 s21, s21, {c.nwv}")
        a("s_add_u32 s21, s21, s27")
        if CP == 1:
            srd(a, 24, 16, 17, 2048 * 9216)
            a("v_lshrrev_b32 v6, 4, v1")
            a("v_and_b32 v7, 15, v1")
            a("v_mul_u32_u24 v4, 9216, v6")
            a("v_lshl_add_u32 v4, v7, 4, v4")
            a("v_add_u32 v4, 256, v4")
            a(f"v_mul_u32_u24 v5, {W1C_PITCH}, v6")
            a("v_lshl_add_u32 v5, v7, 4, v5")
            nr = -(-512 // NWA)
            assert nr == 1 or 'cpb' in _o
        if CP == 1 and 'cpb' in _o:
            RG = 1536 // NWA
            assert RG * NWA == 1536
            a("s_mul_i32 s22, s21, 43691")
            a("s_lshr_b32 s22, s22, 17")
            a("s_mul_i32 s23, s22, 3")
            a("s_sub_u32 s23, s21, s23")
            a(f"s_mul_i32 s34, s22, {4*RG*9216}")
            a("s_mul_i32 s35, s23, 3072")
            a("s_add_u32 s34, s34, s35")
            for g in range(RG):
                for j in range(3):
                    r = 16 + 4 * (3 * g + j)
                    a(f"buffer_load_dwordx4 v[{r}:{r+3}], v4, s[24:27], s34 offen offset:{j*1024}")
                if g < RG - 1: a(f"s_add_u32 s34, s34, {4*9216}")
            ncp = 3 * RG
            a(f"s_mul_i32 s22, s22, {4*RG*W1C_PITCH}")
            a("s_mul_i32 s23, s23, 1536")
            a("s_add_u32 s22, s22, s23")
            a(f"s_add_u32 s22, s22, {WS_W1C}")
            cp_stores = []
            for g in range(RG):
                for j in range(3):
                    r = 16 + 4 * (3 * g + j)
                    cp_stores.append(f"buffer_store_dwordx4 v[{r}:{r+3}], v5, s[28:31], s22 offen offset:{j*512}")
                if g < RG - 1: cp_stores.append(f"s_add_u32 s22, s22, {4*W1C_PITCH}")
            cp_lim = WS_W1C + 2048 * W1C_PITCH
        elif CP == 1:
            a("s_mul_i32 s22, s21, 4*9216".replace("4*9216", str(4*9216)))
            for j in range(9):
                if j in (4, 8): a("s_add_u32 s22, s22, 4096")
                a(f"buffer_load_dwordx4 v[{16+4*j}:{19+4*j}], v4, s[24:27], s22 offen offset:{(j%4)*1024}")
            ncp = 9
            a(f"s_mul_i32 s22, s21, {4*W1C_PITCH}")
            a(f"s_add_u32 s22, s22, {WS_W1C}")
            a("s_add_u32 s23, s22, 4096")
            cp_stores = [f"buffer_store_dwordx4 v[{16+4*j}:{19+4*j}], v5, s[28:31], s{22 if j < 8 else 23} offen offset:{(j%8)*512}" for j in range(9)]
            cp_lim = WS_W1C + 2048 * W1C_PITCH
        else:
            srd(a, 24, 18, 19, 4608 * 4096)
            a("v_lshrrev_b32 v6, 5, v1")
            a("v_bfe_u32 v7, v1, 3, 2")
            a("v_and_b32 v3, 7, v1")
            a("v_lshlrev_b32 v4, 12, v6")
            a("v_lshl_add_u32 v4, v7, 10, v4")
            a("v_lshl_add_u32 v4, v3, 4, v4")
            a("v_add_u32 v4, 384, v4")
            a("v_lshlrev_b32 v5, 10, v6")
            a("v_lshl_add_u32 v5, v7, 8, v5")
            a("v_lshl_add_u32 v5, v3, 4, v5")
            nr = -(-2304 // NWA)
            a("s_lshl_b32 s22, s21, 13")
            for j in range(nr):
                a(f"buffer_load_dwordx4 v[{16+4*j}:{19+4*j}], v4, s[24:27], s22 offen")
                if j < nr - 1: a(f"s_add_u32 s22, s22, {NWA*8192}")
            ncp = nr
            a("s_lshl_b32 s21, s21, 11")
            a(f"s_add_u32 s21, s21, {WS_W2C}")
            cp_stores = []
            for j in range(nr):
                cp_stores.append(f"s_add_u32 s22, s21, {j*NWA*2048}")
                cp_stores.append(f"buffer_store_dwordx4 v[{16+4*j}:{19+4*j}], v5, s[28:31], s22 offen")
            cp_lim = WS_W2C + 4608 * W2C_PITCH
        a("v_mov_b32 v14, v5")
    if k == 4 and 'cp5' in _o:
        from gen_k5s import WS_W2D, W2D_PITCH, WS_END3
        NL = -(-576 // NWX)
        srd(a, 24, 18, 19, 4608 * 4096)
        srd(a, 28, 6, 7, WS_END3)
        a("v_lshrrev_b32 v6, 4, v1")
        a("v_and_b32 v7, 15, v1")
        a("v_lshlrev_b32 v7, 4, v7")
        a("v_lshl_add_u32 v4, v6, 12, v7")
        a(f"v_mul_u32_u24 v5, {W2D_PITCH}, v6")
        a("v_add_u32 v14, v5, v7")
        a("s_lshr_b32 s21, s4, 2")
        a("s_mul_i32 s21, s21, 2304")
        a("s_lshl_b32 s22, s3, 2")
        a("s_add_u32 s21, s21, s22")
        a("s_and_b32 s22, s4, 3")
        a("s_lshl_b32 s23, s21, 12")
        a("s_lshl_b32 s34, s22, 10")
        a("s_add_u32 s23, s23, s34")
        a("s_add_u32 s23, s23, 256")
        a(f"s_mul_i32 s21, s21, {W2D_PITCH}")
        a("s_lshl_b32 s34, s22, 9")
        a("s_add_u32 s21, s21, s34")
        a(f"s_add_u32 s21, s21, {WS_W2D}")
        full = 576 // NWX
        rem = 576 - full * NWX
        for j in range(full):
            a(f"buffer_load_dwordx4 v[{64+4*j}:{67+4*j}], v4, s[24:27], s23 offen")
            a(f"s_add_u32 s23, s23, {NWX*4*4096}")
        lab = a.newlabel("PF_CL")
        if rem:
            a(f"s_cmp_ge_u32 s3, {rem}")
            a(f"s_cbranch_scc1 {lab}")
            a(f"buffer_load_dwordx4 v[{64+4*full}:{67+4*full}], v4, s[24:27], s23 offen")
            a.label(lab)
        a("s_waitcnt vmcnt(0)")
        for j in range(full):
            a(f"buffer_store_dwordx4 v[{64+4*j}:{67+4*j}], v14, s[28:31], s21 offen")
            a(f"s_add_u32 s21, s21, {NWX*4*W2D_PITCH}")
        if rem:
            lab = a.newlabel("PF_CS")
            a(f"s_cmp_ge_u32 s3, {rem}")
            a(f"s_cbranch_scc1 {lab}")
            a(f"buffer_store_dwordx4 v[{64+4*full}:{67+4*full}], v14, s[28:31], s21 offen")
            a.label(lab)
    ntouch = 0
    for o in _o:
        if o.startswith(f'pfd{k}='):
            for _ in range(int(o.split('=')[1])): a("s_sleep 127")
    pfw = [int(o.split('=')[1]) for o in _o if o.startswith(f'pfw{k}=')]
    NT = " nt" if f'pfnt{k}' in _o else ""
    def copy_stores(nt):
        a("s_waitcnt lgkmcnt(0)")
        srd(a, 28, 6, 7, cp_lim)
        a(f"s_waitcnt vmcnt({nt})")
        for st_ in cp_stores: a(st_.replace(", v5, ", ", v14, ") + (" sc1" if ('cpsc1' in _o and st_.startswith('buffer_store')) else ""))
    if CP and pfw: copy_stores(0)
    for ji, (buf, r0, r1) in enumerate(c.jobs):
        pitch = 9216 if buf in (1, 3) else 4096
        RPI = {1: 6, 2: 16, 3: 8, 4: 5, 5: 4, 6: 1, 7: 1, 8: 8, 9: 10, 11: 8, 12: 1}[buf]
        ROT = ('pfrot%d' % buf) in _o
        NROW = 2048 if buf in (1, 3) else 4608
        lim = (NROW if ROT else r1) * pitch
        if buf in (6, 7):
            NST = 32 if buf == 6 else 72
            base = WS_HN if buf == 6 else WS_G
            rot = (('rot1' in _o) if buf == 6 else ('rot2' in _o))
            a("s_waitcnt lgkmcnt(0)")
            a("s_load_dwordx2 s[38:39], s[0:1], 112")
            a("v_min_u32 v3, 47, v1")
            a("v_mul_u32_u24 v4, 43, v3")
            a("v_lshrrev_b32 v4, 8, v4")
            a("v_mul_u32_u24 v5, 6, v4")
            a("v_sub_u32 v5, v3, v5")
            a("v_cmp_le_u32 vcc, 3, v5")
            a("v_addc_co_u32 v5, vcc, 0, v5, vcc")
            a("v_lshlrev_b32 v5, 7, v5")
            a("v_lshl_add_u32 v4, v4, 10, v5")
            a("s_waitcnt lgkmcnt(0)")
            srd(a, 8, 38, 39, WS_END)
            a(f"s_mul_i32 s34, s4, {NST // 8 * 12 if rot else 0}")
            a(f"s_add_u32 s20, s3, {r0*12}")
            n = -(-(r1 - r0) * 12 // NWX)
            for i in range(n):
                lab = a.newlabel(f"PF_SK{k}")
                a(f"s_cmp_ge_u32 s20, {r1*12}")
                a(f"s_cbranch_scc1 {lab}")
                a("s_add_u32 s35, s20, s34")
                a(f"s_cmp_ge_u32 s35, {NST*12}")
                a(f"s_cselect_b32 s36, {NST*12}, 0")
                a("s_sub_u32 s35, s35, s36")
                a("s_lshl_b32 s35, s35, 13")
                a(f"s_add_u32 s35, s35, {base}")
                a(f"buffer_load_dword v{60 + (i % 8)}, v4, s[8:11], s35 offen")
                a.label(lab)
                if i < n - 1: a(f"s_add_u32 s20, s20, {NWX}")
                ntouch += 1
                if pfw: a(f"s_waitcnt vmcnt({pfw[0]})")
            continue
        if buf == 11:
            HK = [int(o.split('=')[1]) for o in _o if o.startswith('hk=')][0]
            HN = 256 - HK
            assert HN in (32, 64, 128)
            srd(a, 8, 18, 19, 4608 * 4096)
            a("v_lshrrev_b32 v4, 3, v1")
            a("v_and_b32 v5, 7, v1")
            a("v_lshlrev_b32 v5, 7, v5")
            a("s_and_b32 s34, s4, 3")
            a("s_lshl_b32 s35, s34, 10")
            a("v_add_u32 v5, s35, v5")
            a("s_mul_i32 s34, s34, 576")
            a("s_lshr_b32 s35, s4, 2")
            a(f"s_mul_i32 s35, s35, {2304*4096}")
            a(f"s_mul_i32 s20, s3, 8")
            NR = (r1 - r0) * HN
            n = -(-NR // (8 * NWX))
            for i in range(n):
                lab = a.newlabel(f"PF_SK{k}")
                a(f"s_cmp_ge_u32 s20, {NR}")
                a(f"s_cbranch_scc1 {lab}")
                a("v_add_u32 v6, s20, v4")
                a(f"v_lshrrev_b32 v7, {HN.bit_length()-1}, v6")
                a(f"v_and_b32 v6, {HN-1}, v6")
                a("v_lshl_add_u32 v6, v7, 8, v6")
                a(f"v_add_u32 v6, {256*r0 + HK}, v6")
                a("v_add_u32 v6, s34, v6")
                a("v_subrev_u32 v7, 2304, v6")
                a("v_min_u32 v6, v6, v7")
                a("v_lshl_add_u32 v6, v6, 12, v5")
                a(f"buffer_load_dword v{60 + (i % 8)}, v6, s[8:11], s35 offen{NT}")
                a.label(lab)
                if i < n - 1: a(f"s_add_u32 s20, s20, {NWX*8}")
                ntouch += 1
            continue
        if buf == 12:
            srd(a, 8, 18, 19, 4608 * 4096)
            a("s_and_b32 s34, s4, 3")
            a("s_lshl_b32 s36, s34, 10")
            a("s_mul_i32 s34, s34, 576")
            a("s_lshr_b32 s35, s4, 2")
            a(f"s_mul_i32 s35, s35, {2304*4096}")
            a("s_add_u32 s35, s35, s36")
            a(f"s_add_u32 s20, s3, {r0}")
            n = -(-(r1 - r0) // NWX)
            sgl = [int(o.split('=')[1]) for o in _o if o.startswith('sgl=')]
            SG = sgl[0] if sgl else 128
            for i in range(n):
                lab = a.newlabel(f"PF_SS{k}")
                a(f"s_cmp_ge_u32 s20, {r1}")
                a(f"s_cbranch_scc1 {lab}")
                a("s_add_u32 s36, s20, s34")
                a("s_sub_u32 s37, s36, 2304")
                a("s_min_u32 s36, s36, s37")
                a("s_lshl_b32 s36, s36, 12")
                a("s_add_u32 s36, s36, s35")
                for l in range(1024 // SG):
                    a(f"s_buffer_load_dword s{72 + (l % 16)}, s[8:11], s36 offset:{SG*l} ; touch")
                a.label(lab)
                if i < n - 1: a(f"s_add_u32 s20, s20, {NWX}")
            a("s_waitcnt lgkmcnt(0)")
            continue
        if buf in (8, 9):
            srd(a, 8, 18, 19, 4608 * 4096)
            RP = 8 if buf == 8 else 10
            if buf == 8:
                a("v_lshrrev_b32 v4, 3, v1")
                a("v_and_b32 v5, 7, v1")
                a("v_lshlrev_b32 v5, 7, v5")
            else:
                a("v_min_u32 v3, 59, v1")
                a("v_mul_u32_u24 v4, 43, v3")
                a("v_lshrrev_b32 v4, 8, v4")
                a("v_mul_u32_u24 v5, 6, v4")
                a("v_sub_u32 v5, v3, v5")
                a("v_cmp_le_u32 vcc, 2, v5")
                a("v_cndmask_b32 v6, 0, 2, vcc")
                a("v_add_u32 v5, v5, v6")
                a("v_lshlrev_b32 v5, 7, v5")
            a("s_and_b32 s34, s4, 3")
            a("s_lshl_b32 s35, s34, 10")
            a("v_add_u32 v5, s35, v5")
            a("s_mul_i32 s34, s34, 576")
            a("s_lshr_b32 s35, s4, 2")
            a(f"s_mul_i32 s35, s35, {2304*4096}")
            a(f"s_mul_i32 s20, s3, {RP}")
            a(f"s_add_u32 s20, s20, {r0}")
            n = -(-(r1 - r0) // (RP * NWX))
            for i in range(n):
                lab = a.newlabel(f"PF_SK{k}")
                a(f"s_cmp_ge_u32 s20, {r1}")
                a(f"s_cbranch_scc1 {lab}")
                a("v_add_u32 v6, s20, v4")
                a(f"v_min_u32 v6, {r1 - 1}, v6")
                a("v_add_u32 v6, s34, v6")
                a("v_subrev_u32 v7, 2304, v6")
                a("v_min_u32 v6, v6, v7")
                a("v_lshl_add_u32 v6, v6, 12, v5")
                a(f"buffer_load_dword v{60 + (i % 8)}, v6, s[8:11], s35 offen{NT}")
                a.label(lab)
                if i < n - 1: a(f"s_add_u32 s20, s20, {NWX*RP}")
                ntouch += 1
            continue
        if buf in (4, 5):
            srd(a, 8, 18, 19, 4608 * 4096)
            RP = 5 if buf == 4 else 4
            if buf == 4:
                a("v_min_u32 v3, 59, v1")
                a("v_mul_u32_u24 v4, 43, v3")
                a("v_lshrrev_b32 v4, 9, v4")
                a("v_mul_u32_u24 v5, 12, v4")
                a("v_sub_u32 v5, v3, v5")
                a("v_lshrrev_b32 v6, 1, v5")
                a("v_cmp_le_u32 vcc, 1, v6")
                a("v_addc_co_u32 v7, vcc, 0, v6, vcc")
                a("v_cmp_le_u32 vcc, 4, v6")
                a("v_addc_co_u32 v7, vcc, 0, v7, vcc")
                a("v_and_b32 v5, 1, v5")
                a("v_lshlrev_b32 v5, 7, v5")
                a("v_lshl_add_u32 v5, v7, 8, v5")
            else:
                a("v_lshrrev_b32 v4, 4, v1")
                a("v_and_b32 v5, 15, v1")
                a("v_lshlrev_b32 v5, 7, v5")
            a("s_and_b32 s34, s4, 1")
            a("s_lshl_b32 s35, s34, 11")
            a("v_add_u32 v5, s35, v5")
            a("s_mul_i32 s34, s34, 576")
            a("s_lshr_b32 s35, s4, 1")
            a(f"s_mul_i32 s35, s35, {1152*4096}")
            a(f"s_mul_i32 s20, s3, {RP}")
            a(f"s_add_u32 s20, s20, {r0}")
            n = -(-(r1 - r0) // (RP * NWX))
            for i in range(n):
                lab = a.newlabel(f"PF_SK{k}")
                a(f"s_cmp_ge_u32 s20, {r1}")
                a(f"s_cbranch_scc1 {lab}")
                a("v_add_u32 v6, s20, v4")
                a(f"v_min_u32 v6, {r1 - 1}, v6")
                a("v_add_u32 v6, s34, v6")
                a("v_subrev_u32 v7, 1152, v6")
                a("v_min_u32 v6, v6, v7")
                a("v_lshl_add_u32 v6, v6, 12, v5")
                a(f"buffer_load_dword v{60 + (i % 8)}, v6, s[8:11], s35 offen{NT}")
                a.label(lab)
                if i < n - 1: a(f"s_add_u32 s20, s20, {NWX*RP}")
                ntouch += 1
            continue
        if buf == 3:
            srd(a, 8, 16, 17, lim)
            t8_addr(a, 4, 1, 4, 5, 34, 35)
            a(f"s_mul_i32 s20, s3, {RPI*pitch}")
            a(f"s_add_u32 s20, s20, {r0*pitch}")
            n = -(-(r1 - r0) // (RPI * NWX))
            for i in range(n):
                lab = a.newlabel(f"PF_SK{k}")
                a(f"s_cmp_ge_u32 s20, {r1*pitch}")
                a(f"s_cbranch_scc1 {lab}")
                a(f"buffer_load_dword v{60 + (i % 8)}, v4, s[8:11], s20 offen{NT}")
                a.label(lab)
                if i < n - 1: a(f"s_add_u32 s20, s20, {NWX*RPI*pitch}")
                ntouch += 1
            continue
        if buf == 1:
            srd(a, 8, 16, 17, lim)
            a("v_min_u32 v3, 59, v1")
            a("v_mul_u32_u24 v4, 52, v3")
            a("v_lshrrev_b32 v4, 9, v4")
            a("v_mul_u32_u24 v5, 10, v4")
            a("v_sub_u32 v5, v3, v5")
            a("s_mul_i32 s5, s4, 27*171")
            a("s_lshr_b32 s5, s5, 10")
            a("s_lshl_b32 s5, s5, 8")
        else:
            srd(a, 8, 18, 19, lim)
            a("v_lshrrev_b32 v4, 2, v1")
            a("v_and_b32 v5, 3, v1")
            a("s_lshl_b32 s5, s4, 9")
        a(f"v_mul_u32_u24 v4, {pitch}, v4")
        a("v_lshl_add_u32 v4, v5, 7, v4")
        a(f"s_mul_i32 s20, s3, {RPI*pitch}")
        a("s_add_u32 s20, s20, s5")
        a(f"s_add_u32 s20, s20, {r0*pitch}")
        n = -(-(r1 - r0) // (RPI * NWX))
        if ROT:
            a(f"s_mul_i32 s34, s4, {NROW // 8 * pitch}")
        for i in range(n):
            if ROT:
                lab = a.newlabel(f"PF_SK{k}")
                a(f"s_cmp_ge_u32 s20, {r1*pitch}")
                a(f"s_cbranch_scc1 {lab}")
                a("s_add_u32 s35, s20, s34")
                a(f"s_cmp_ge_u32 s35, {(NROW)*pitch}")
                a(f"s_cselect_b32 s36, {NROW*pitch}, 0")
                a("s_sub_u32 s35, s35, s36")
                a(f"buffer_load_dword v{60 + (i % 8)}, v4, s[8:11], s35 offen{NT}")
                a.label(lab)
            else:
                a(f"buffer_load_dword v{60 + (i % 8)}, v4, s[8:11], s20 offen{NT}")
            if i < n - 1: a(f"s_add_u32 s20, s20, {NWX*RPI*pitch}")
            ntouch += 1
            if pfw: a(f"s_waitcnt vmcnt({pfw[0]})")
    if k == 4 and 'cpfc' in _oo:
        lab = a.newlabel("PF_CP")
        a("s_cmp_lg_u32 s27, 0")
        a(f"s_cbranch_scc1 {lab}")
        code_pf(a, "C", "k5_kernel", "K5_END", [0, 1], 40, 1, 90, 92)
        a.label(lab)
    if k == 1 and 'cpfd' in _oo:
        lab = a.newlabel("PF_CP")
        a("s_cmp_lg_u32 s27, 9")
        a(f"s_cbranch_scc1 {lab}")
        code_pf(a, "D", "k3_kernel", "k5_kernel", [0, 1], 40, 1, 90, 92)
        a.label(lab)
    if CP and not pfw:
        assert ntouch < 60
        anyrot = any(('pfrot%d' % j[0]) in _o or j[0] >= 3 for j in c.jobs)
        copy_stores(0 if anyrot else ntouch)
    if k == 4 and 'k5s' in _o and 'sent' in _o and 'sf1' not in _o:
        from gen_k5s import WS_XB, WS_END3, SK, NT_
        assert SK == 2
        NU = 96 * 2 * 4
        srd(a, 28, 6, 7, WS_END3)
        a("v_lshrrev_b32 v4, 3, v1")
        a("v_cmp_le_u32 vcc, 3, v4")
        a("v_addc_co_u32 v4, vcc, 0, v4, vcc")
        a("v_and_b32 v5, 7, v1")
        a("v_lshlrev_b32 v5, 4, v5")
        a("v_lshl_add_u32 v4, v4, 7, v5")
        for r in range(4): a(f"v_mov_b32 v{8+r}, -1")
        a(f"s_sub_u32 s21, s2, {nmain}")
        a(f"s_mul_i32 s21, s21, {c.nwv}")
        a("s_add_u32 s21, s21, s27")
        for r in range(-(-NU // NWA)):
            lab = a.newlabel("PF_SF")
            a(f"s_cmp_ge_u32 s21, {NU}")
            a(f"s_cbranch_scc1 {lab}")
            a("s_bfe_u32 s22, s21, 0x10002")
            a(f"s_mul_i32 s23, s21, {NT_}")
            a("s_add_u32 s23, s23, 1")
            a("s_sub_u32 s23, s23, s22")
            a("s_lshl_b32 s23, s23, 11")
            a(f"s_add_u32 s23, s23, {WS_XB}")
            for i in range(NT_ // 2):
                a("buffer_store_dwordx4 v[8:11], v4, s[28:31], s23 offen" + ("" if 'sfp' in _o else " sc1"))
                if i < NT_ // 2 - 1: a("s_add_u32 s23, s23, 4096")
            a.label(lab)
            a(f"s_add_u32 s21, s21, {NWA}")
    a(f"s_branch {endlab}")


def _itopt():
    d = {1: [], 2: [], 3: []}
    for o in os.environ.get('GOPT', '').split(','):
        if o.startswith('it='):
            for k, spec in enumerate(o[3:].split('/')):
                if not spec or spec == '0': continue
                d[k + 1] = [tuple(int(x) for x in j.split('.')) for j in spec.split('+') if j]
    return d
IT = _itopt()
def it_load_ptrs(a, k):
    if not IT[k] and not (k == 1 and ICP1): return
    a("s_load_dwordx2 s[76:77], s[0:1], 64")
    a("s_load_dwordx2 s[78:79], s[0:1], 80")
def inline_touch(a, k, sgw, nwaves, vlane, vt, vd):
    n_tot = 0
    if not IT[k]: return 0
    a(f"v_lshlrev_b32 v{vt}, 7, v{vlane}")
    for (buf, r0, r1) in IT[k]:
        pitch = 9216 if buf == 1 else 4096
        srd(a, 72, 76 if buf == 1 else 78, 77 if buf == 1 else 79, r1 * pitch)
        lines = (r1 - r0) * pitch // 128
        n = -(-lines // (64 * nwaves))
        a(f"s_lshl_b32 s70, s{sgw}, 13")
        a(f"s_add_u32 s70, s70, {r0 * pitch}")
        for i in range(n):
            a(f"buffer_load_dword v{vd}, v{vt}, s[72:75], s70 offen")
            if i < n - 1: a(f"s_add_u32 s70, s70, {nwaves * 8192}")
            n_tot += 1
    return n_tot
ICP1 = 'icp1' in os.environ.get('GOPT', '').split(',')

def bf16_round(a, dst, src, tmp=None):
    a(f"v_cvt_pk_bf16_f32 v{dst}, v{src}, v{src}")
    a(f"v_and_b32 v{dst}, 0xffff0000, v{dst}")

def exp_precise(a, dst, src, t0, t1, sL, sLlo, sLn2):
    a(f"v_mul_f32 v{t0}, s{sL}, v{src}")
    a(f"v_fma_f32 v{t1}, v{src}, s{sL}, -v{t0}")
    a(f"v_fma_f32 v{t1}, v{src}, s{sLlo}, v{t1}")
    a(f"v_exp_f32 v{dst}, v{t0}")
    a(f"v_mul_f32 v{t1}, s{sLn2}, v{t1}")
    a(f"v_fma_f32 v{dst}, v{dst}, v{t1}, v{dst}")

def gen_k1(a):
    name = "k1_kernel"
    kernel_head(a, name)
    kst_begin(a)
    a("s_cmp_ge_u32 s2, 640")
    a("s_cbranch_scc1 K1_PF")
    a("s_load_dwordx2 s[4:5], s[0:1], 0")
    a("s_load_dwordx2 s[6:7], s[0:1], 112")
    a("s_load_dwordx8 s[16:23], s[0:1], 8")
    a("s_load_dwordx2 s[24:25], s[0:1], 40")
    it_load_ptrs(a, 1)
    a("s_cmp_ge_u32 s2, 64")
    a("s_cbranch_scc1 K1_KGEN")
    a("s_waitcnt lgkmcnt(0)")
    srd(a, 8, 4, 5, L * D * 2)
    srd(a, 12, 6, 7, WS_R)
    if DYN:
        a("s_cmp_lg_u32 s2, 0")
        a("s_cbranch_scc1 K1_NOZ")
        srd(a, 28, 6, 7, WS_END)
        a("v_lshlrev_b32 v1, 8, v0")
        a("v_mov_b32 v2, 0")
        a(f"s_mov_b32 s26, {WS_CNT}")
        a("v_cmp_gt_u32 vcc, 64, v0")
        a("s_and_saveexec_b64 s[32:33], vcc")
        a("s_cbranch_execz K1_NOZ2")
        a("buffer_store_dword v2, v1, s[28:31], s26 offen")
        a.label("K1_NOZ2")
        a("s_mov_b64 exec, -1")
        a.label("K1_NOZ")
    PITCH = 1216
    a("v_lshrrev_b32 v1, 3, v0")
    a("v_and_b32 v2, 7, v0")
    a("s_lshl_b32 s3, s2, 5")
    a("v_add_u32 v3, s3, v1")
    a("s_movk_i32 s26, 1152")
    a("v_mul_lo_u32 v3, v3, s26")
    a("v_lshl_add_u32 v3, v2, 4, v3")
    for i in range(9):
        a(f"buffer_load_dwordx4 v[{10+4*i}:{13+4*i}], v3, s[8:11], 0 offen offset:{128*i}")
    a(f"s_movk_i32 s26, {PITCH}")
    a("v_mul_lo_u32 v4, v1, s26")
    a("v_lshl_add_u32 v4, v2, 4, v4")
    a("v_and_b32 v5, 63, v0")
    a("v_lshrrev_b32 v6, 6, v0")
    a("v_readfirstlane_b32 s27, v6")
    a("v_bfe_u32 v7, v5, 2, 2")
    a("v_mul_lo_u32 v7, v7, s26")
    a("v_lshrrev_b32 v8, 4, v5")
    a("v_lshl_add_u32 v7, v8, 5, v7")
    a("v_and_b32 v8, 3, v5")
    a("v_lshl_add_u32 v7, v8, 3, v7")
    a("s_lshl_b32 s28, s2, 6")
    a("v_lshlrev_b32 v9, 12, v5")
    a("v_add_u32 v9, s28, v9")
    a("s_waitcnt vmcnt(0)")
    for i in range(9):
        a(f"ds_write_b128 v4, v[{10+4*i}:{13+4*i}] offset:{128*i}")
    for i in range(36):
        a(f"v_lshlrev_b32 v{50+2*i}, 16, v{10+i}")
        a(f"v_and_b32 v{51+2*i}, 0xffff0000, v{10+i}")
    a("v_add_f32 v122, v50, v51")
    a("v_add_f32 v123, v52, v53")
    a("v_add_f32 v124, v54, v55")
    a("v_add_f32 v125, v56, v57")
    for i in range(2, 18):
        for q in range(4):
            a(f"v_add_f32 v{122+q}, v{122+q}, v{50+4*i+q}")
    a("v_add_f32 v122, v122, v123")
    a("v_add_f32 v124, v124, v125")
    a("v_add_f32 v122, v122, v124")
    def red8(r, t):
        a(f"v_add_f32_dpp v{r}, v{r}, v{r} quad_perm:[1,0,3,2] row_mask:0xf bank_mask:0xf")
        a(f"v_add_f32_dpp v{r}, v{r}, v{r} quad_perm:[2,3,0,1] row_mask:0xf bank_mask:0xf")
        a(f"v_add_f32_dpp v{r}, v{r}, v{r} row_half_mirror row_mask:0xf bank_mask:0xf")
    red8(122, None)
    a(f"s_mov_b32 s26, {fhex(1.0/576)}")
    a("v_mul_f32 v126, s26, v122")
    a("s_waitcnt lgkmcnt(0)")
    a("s_barrier")
    def transpose_store(ws_off):
        for u in range(3):
            lab = a.newlabel("K1_SKIP")
            if u == 2:
                a("s_cmp_lg_u32 s27, 0")
                a(f"s_cbranch_scc1 {lab}")
            a(f"s_lshl_b32 s29, s27, 7")
            a(f"s_add_u32 s29, s29, {u*4*128}")
            a(f"v_add_u32 v127, s29, v7")
            for Q in range(8):
                a(f"ds_read_b64_tr_b16 v[{130+2*Q}:{131+2*Q}], v127 offset:{Q*4*PITCH}")
            a(f"s_lshl_b32 s29, s27, 18")
            a(f"s_add_u32 s29, s29, {ws_off + u*4*64*4096}")
            a("s_waitcnt lgkmcnt(0)")
            for q in range(4):
                a(f"buffer_store_dwordx4 v[{130+4*q}:{133+4*q}], v9, s[12:15], s29 offen offset:{16*q}")
            if u == 2: a.label(lab)
            a("s_nop 1")
    transpose_store(WS_XT)
    for i in range(72):
        a(f"v_sub_f32 v{150+0}, v{50+i}, v126") if False else None
    a("v_sub_f32 v127, v50, v126"); a("v_mul_f32 v122, v127, v127")
    a("v_sub_f32 v127, v51, v126"); a("v_mul_f32 v123, v127, v127")
    a("v_sub_f32 v127, v52, v126"); a("v_mul_f32 v124, v127, v127")
    a("v_sub_f32 v127, v53, v126"); a("v_mul_f32 v125, v127, v127")
    for i in range(4, 72):
        t = 146 + (i % 4)
        a(f"v_sub_f32 v{t}, v{50+i}, v126")
        a(f"v_fmac_f32 v{122+(i%4)}, v{t}, v{t}")
    a("v_add_f32 v122, v122, v123")
    a("v_add_f32 v124, v124, v125")
    a("v_add_f32 v122, v122, v124")
    red8(122, None)
    a("v_mul_f32 v122, s26, v122")
    bf16_round(a, 126, 126)
    bf16_round(a, 122, 122)
    a(f"v_add_f32 v122, {fhex(1e-5)}, v122")
    bf16_round(a, 122, 122)
    a("v_sqrt_f32 v122, v122")
    bf16_round(a, 122, 122)
    a("v_rcp_f32 v122, v122")
    for i in range(36):
        x0, x1 = 50 + 2*i, 51 + 2*i
        a(f"v_sub_f32 v{x0}, v{x0}, v126")
        a(f"v_sub_f32 v{x1}, v{x1}, v126")
        a(f"v_cvt_pk_bf16_f32 v146, v{x0}, v{x1}")
        a(f"v_lshlrev_b32 v{x0}, 16, v146")
        a(f"v_and_b32 v{x1}, 0xffff0000, v146")
        a(f"v_mul_f32 v{x0}, v{x0}, v122")
        a(f"v_mul_f32 v{x1}, v{x1}, v122")
        a(f"v_cvt_pk_bf16_f32 v{10+i}, v{x0}, v{x1}")
    a("s_barrier")
    for i in range(9):
        a(f"ds_write_b128 v4, v[{10+4*i}:{13+4*i}] offset:{128*i}")
    a("s_waitcnt lgkmcnt(0)")
    a("s_barrier")
    transpose_store(WS_UT)
    a("s_branch K1_END")

    a.label("K1_KGEN")
    K1ST = 'k1st' in os.environ.get('GOPT', '').split(',')
    def st(i):
        if K1ST: a(f"s_memrealtime s[{60+2*i}:{61+2*i}]")
    a("s_sub_u32 s3, s2, 64")
    a("v_and_b32 v1, 63, v0")
    a("v_lshrrev_b32 v2, 6, v0")
    a("v_readfirstlane_b32 s27, v2")
    a("v_lshrrev_b32 v3, 4, v1")
    a("v_and_b32 v4, 15, v1")
    a("s_lshl_b32 s28, s3, 8")
    a("v_lshlrev_b32 v5, 6, v2")
    a("v_lshl_add_u32 v5, v3, 4, v5")
    a("v_add_u32 v5, s28, v5")
    a("s_waitcnt lgkmcnt(0)")
    srd(a, 8, 16, 17, D * NM * 2)
    a("buffer_load_dwordx4 v[10:13], v5, s[8:11], 0 offen")
    srd(a, 28, 18, 19, D * NM * 2)
    a("buffer_load_dwordx4 v[14:17], v5, s[28:31], 0 offen")
    srd(a, 32, 20, 21, D * NM * 2)
    a("buffer_load_dwordx4 v[18:21], v5, s[32:35], 0 offen")
    srd(a, 36, 22, 23, D * NM * 2)
    a("buffer_load_dwordx4 v[22:25], v5, s[36:39], 0 offen")
    srd(a, 40, 24, 25, D * 2)
    a("s_lshl_b32 s44, s3, 1")
    a("v_mov_b32 v6, s44")
    a("buffer_load_ushort v26, v6, s[40:43], 0 offen")
    srd(a, 12, 6, 7, WS_HT)
    a("v_lshlrev_b32 v27, 3, v4")
    a("v_cvt_f32_u32 v27, v27")
    a("v_and_b32 v28, 7, v4")
    a("v_lshrrev_b32 v29, 3, v4")
    a("v_lshl_add_u32 v28, v29, 7, v28")
    a("v_cvt_f32_u32 v28, v28")
    a("v_lshrrev_b32 v29, 2, v4")
    a("v_lshlrev_b32 v29, 7, v29")
    a("v_and_b32 v30, 3, v4")
    a("v_lshl_add_u32 v29, v30, 1, v29")
    a("v_add_u32 v29, 256, v29")
    a("v_subrev_u32 v30, 8, v4")
    a("v_lshrrev_b32 v30, 1, v30")
    a("v_lshlrev_b32 v30, 7, v30")
    a("v_and_b32 v31, 1, v4")
    a("v_lshl_add_u32 v30, v31, 2, v30")
    a("v_add_u32 v30, 512, v30")
    a("v_cmp_gt_u32 vcc, 8, v4")
    a("v_cndmask_b32 v29, v30, v29, vcc")
    a("v_cvt_f32_u32 v29, v29")
    a("v_lshlrev_b32 v30, 7, v4")
    a("v_add_u32 v30, 1024, v30")
    a("v_cvt_f32_u32 v30, v30")
    a(f"s_mov_b32 s44, {hex(LOG2E)}")
    a(f"s_mov_b32 s45, {fhex(1.4426950408889634 - 1.4426950216293335)}")
    a(f"s_mov_b32 s46, {fhex(0.6931471805599453)}")
    a(f"s_mov_b32 s47, {hex(INV2PI)}")
    a("s_waitcnt vmcnt(0)")
    st(0)
    a("s_lshl_b32 s71, s3, 2")
    a("s_add_u32 s71, s71, s27")
    ntouch = 0
    if ICP1:
        srd(a, 72, 76, 77, 2048 * 9216)
        a("v_mul_u32_u24 v160, 9216, v3")
        a("v_lshl_add_u32 v160, v4, 4, v160")
        a(f"v_mul_u32_u24 v161, {W1C_PITCH}, v3")
        a("v_lshl_add_u32 v161, v4, 4, v161")
        for h in range(2):
            a("s_lshl_b32 s68, s71, 1")
            if h: a("s_add_u32 s68, s68, 1")
            a("s_mul_i32 s69, s68, 7282")
            a("s_lshr_b32 s69, s69, 16")
            a("s_mul_i32 s70, s69, 9")
            a("s_sub_u32 s68, s68, s70")
            a(f"s_mul_i32 s70, s69, {4*9216}")
            a("s_lshl_b32 s67, s68, 10")
            a("s_add_u32 s70, s70, s67")
            a(f"buffer_load_dwordx4 v[{152+4*h}:{155+4*h}], v160, s[72:75], s70 offen offset:256")
            a(f"s_mul_i32 s70, s69, {4*W1C_PITCH}")
            a("s_lshl_b32 s67, s68, 9")
            a("s_add_u32 s70, s70, s67")
            a(f"s_add_u32 s{64+h}, s70, {WS_W1C}")
    ntouch = inline_touch(a, 1, 71, 2304, 1, 162, 163)
    a("v_lshlrev_b32 v26, 16, v26")
    exp_precise(a, 31, 26, 32, 33, 44, 45, 46)
    bf16_round(a, 31, 31)
    a("v_add_f32 v26, v31, v31")
    a(f"s_mov_b32 s48, {hex(LOG2E | 0x80000000)}")
    st(1)
    HI = 40; LO = 72
    XV = 104
    TP = 120
    ACCK = 80 + 60
    ACCK = 140
    for tp in range(4):
        for h in range(2):
            un = (lambda d, s_: a(f"v_lshlrev_b32 v{d}, 16, v{s_}")) if h == 0 else (lambda d, s_: a(f"v_and_b32 v{d}, 0xffff0000, v{s_}"))
            ar, ai, cr, ci = 32 + 4 * h, 33 + 4 * h, 34 + 4 * h, 35 + 4 * h
            t0, t1, t2 = TP, TP + 1, TP + 2
            un(t0, 10 + tp)
            exp_precise(a, t1, t0, t2, TP + 3, 44, 45, 46)
            bf16_round(a, t1, t1)
            a(f"v_mul_f32 v{t1}, v{t1}, v31")
            a(f"v_mul_f32 v{ar}, s48, v{t1}")
            un(t0, 14 + tp)
            a(f"v_mul_f32 v{t0}, v{t0}, v31")
            a(f"v_mul_f32 v{ai}, s47, v{t0}")
            un(t0, 18 + tp)
            a(f"v_mul_f32 v{cr}, v{t0}, v26")
            un(t0, 22 + tp)
            a(f"v_mul_f32 v{ci}, v{t0}, v26")
            e0, e1, e2, e3 = TP + 4, TP + 5, TP + 6, TP + 7
            a(f"v_mul_f32 v{e0}, v{ar}, v27")
            a(f"v_mul_f32 v{e1}, v{ai}, v27")
            a(f"v_exp_f32 v{e0}, v{e0}")
            a(f"v_fract_f32 v{e1}, v{e1}")
            a(f"v_cos_f32 v{e2}, v{e1}")
            a(f"v_sin_f32 v{e3}, v{e1}")
            a(f"v_mul_f32 v{XV+0+h}, v{e0}, v{e2}")
            a(f"v_mul_f32 v{XV+2+h}, v{e0}, v{e3}")
            for T in range(3):
                b = TP + 8 + 6 * T
                a(f"v_mul_f32 v{b}, v{ar}, v{28+T}")
                a(f"v_mul_f32 v{b+1}, v{ai}, v{28+T}")
                a(f"v_exp_f32 v{b}, v{b}")
                a(f"v_fract_f32 v{b+1}, v{b+1}")
                a(f"v_cos_f32 v{b+2}, v{b+1}")
                a(f"v_sin_f32 v{b+3}, v{b+1}")
                a(f"v_mul_f32 v{b+4}, v{cr}, v{b+2}")
                a(f"v_mul_f32 v{b+5}, v{cr}, v{b+3}")
                a(f"v_fma_f32 v{b+4}, -v{ci}, v{b+3}, v{b+4}")
                a(f"v_fma_f32 v{b+5}, v{ci}, v{b+2}, v{b+5}")
                a(f"v_mul_f32 v{XV+4+4*T+h}, v{b}, v{b+4}")
                a(f"v_mul_f32 v{XV+6+4*T+h}, -v{b}, v{b+5}")
        for q in range(8):
            x0, x1 = XV + 2 * q, XV + 2 * q + 1
            hp = HI + 4 * q + tp; lp = LO + 4 * q + tp
            u0, u1 = TP + (2 * q) % 16, TP + (2 * q) % 16 + 1
            a(f"v_cvt_pk_bf16_f32 v{hp}, v{x0}, v{x1}")
            a(f"v_lshlrev_b32 v{u0}, 16, v{hp}")
            a(f"v_and_b32 v{u1}, 0xffff0000, v{hp}")
            a(f"v_sub_f32 v{u0}, v{x0}, v{u0}")
            a(f"v_sub_f32 v{u1}, v{x1}, v{u1}")
            a(f"v_cvt_pk_bf16_f32 v{lp}, v{u0}, v{u1}")
    def fr(base, q): return f"v[{base+4*q}:{base+4*q+3}]"
    for T in range(3):
        acc = f"v[{ACCK+4*T}:{ACCK+4*T+3}]"
        first = True
        for (qa, qb) in ((2 + 2 * T, 0), (3 + 2 * T, 1)):
            for (ba, bb) in ((LO, HI), (HI, LO), (HI, HI)):
                a(f"v_mfma_f32_16x16x32_bf16 {acc}, {fr(ba, qa)}, {fr(bb, qb)}, {'0' if first else acc}")
                first = False
    for r in range(12): a(f"v_mov_b32 v{80+r}, v{ACCK+r}")
    if ICP1:
        srd(a, 72, 6, 7, WS_W1C + 2048 * W1C_PITCH)
        a(f"s_waitcnt vmcnt({ntouch})")
        for h in range(2):
            a(f"buffer_store_dwordx4 v[{152+4*h}:{155+4*h}], v161, s[72:75], s{64+h} offen")
    st(2)
    a("v_lshlrev_b32 v5, 4, v1")
    a("s_mul_i32 s28, s27, 3072")
    a("v_add_u32 v5, s28, v5")
    for T in range(3):
        a(f"ds_write_b128 v5, v[{80+4*T}:{83+4*T}] offset:{1024*T}")
    a("s_waitcnt lgkmcnt(0)")
    a("s_barrier")
    KC = 12288
    a("s_cmp_eq_u32 s27, 3")
    a("s_cbranch_scc1 K1_KG_ZERO")
    a("v_lshlrev_b32 v5, 4, v1")
    a("s_lshl_b32 s28, s27, 10")
    a("v_add_u32 v5, s28, v5")
    for w in range(4):
        a(f"ds_read_b128 v[{80+4*w}:{83+4*w}], v5 offset:{3072*w}")
    a("s_cmp_eq_u32 s27, 1")
    a("s_cbranch_scc1 K1_KG_T1")
    a("s_cmp_eq_u32 s27, 2")
    a("s_cbranch_scc1 K1_KG_T2")
    a("v_and_b32 v100, 1, v3")
    a("v_lshlrev_b32 v100, 2, v100")
    a("v_lshrrev_b32 v101, 1, v3")
    a("v_lshl_add_u32 v100, v101, 7, v100")
    a("v_lshl_add_u32 v100, v4, 3, v100")
    for r in range(1, 4): a(f"v_add_u32 v{100+r}, {r}, v100")
    a("s_branch K1_KG_SC")
    a.label("K1_KG_T1")
    a("v_lshlrev_b32 v104, 6, v3")
    a("v_lshl_add_u32 v104, v4, 2, v104")
    a("v_add_u32 v104, 256, v104")
    a("v_lshlrev_b32 v105, 6, v3")
    a("v_lshl_add_u32 v105, v4, 1, v105")
    a("v_add_u32 v105, 256, v105")
    a("v_cmp_gt_u32 vcc, 2, v3")
    for r in range(4):
        a(f"v_add_u32 v106, {r}, v104")
        a(f"v_add_u32 v107, {32*(r>>1)+(r&1)}, v105")
        a(f"v_cndmask_b32 v{100+r}, v107, v106, vcc")
    a("s_branch K1_KG_SC")
    a.label("K1_KG_T2")
    a("v_lshlrev_b32 v100, 6, v3")
    a("v_add_u32 v100, v4, v100")
    a("v_add_u32 v100, 512, v100")
    for r in range(1, 4): a(f"v_add_u32 v{100+r}, {16*r}, v100")
    a.label("K1_KG_SC")
    a("s_waitcnt lgkmcnt(0)")
    for r in range(4):
        a(f"v_add_f32 v{80+r}, v{80+r}, v{84+r}")
        a(f"v_add_f32 v{88+r}, v{88+r}, v{92+r}")
        a(f"v_add_f32 v{80+r}, v{80+r}, v{88+r}")
        a(f"v_lshlrev_b32 v{100+r}, 2, v{100+r}")
        a(f"ds_write_b32 v{100+r}, v{80+r} offset:{KC}")
    a("s_branch K1_KG_EXP")
    a.label("K1_KG_ZERO")
    a("v_mov_b32 v5, 0")
    a(f"ds_write_b32 v5, v5 offset:{KC + 768*4}")
    a.label("K1_KG_EXP")
    a("s_waitcnt lgkmcnt(0)")
    a("s_barrier")
    st(3)
    a("v_lshlrev_b32 v5, 3, v0")
    a("v_sub_u32 v5, 2047, v5")
    for e in range(9):
        a(f"v_subrev_u32 v{10+e}, {e}, v5")
        a(f"v_cvt_f32_i32 v{20+e}, v{10+e}")
    for e in range(0, 9, 2):
        e1 = min(e + 1, 8)
        a(f"v_cvt_pk_bf16_f32 v{30+e//2}, v{20+e}, v{20+e1}")
    for e in range(9):
        src = 30 + e // 2
        if e % 2 == 0: a(f"v_and_b32 v{20+e}, 0xffff, v{src}")
        else: a(f"v_lshrrev_b32 v{20+e}, 16, v{src}")
        a(f"v_subrev_u32 v{20+e}, 17024, v{20+e}")
        a(f"v_min_u32 v36, 127, v{10+e}")
        a(f"v_max_i32 v{20+e}, v{20+e}, v36")
    a("v_cmp_gt_i32 vcc, 0, v18")
    a("v_mov_b32 v36, 768")
    a("v_cndmask_b32 v28, v28, v36, vcc")
    for e in range(9):
        a(f"v_lshlrev_b32 v{20+e}, 2, v{20+e}")
        a(f"ds_read_b32 v{40+e}, v{20+e} offset:{KC}")
    a("s_mul_i32 s28, s3, %d" % RSTRIDE)
    a(f"s_add_u32 s28, s28, {WS_R}")
    a("v_lshlrev_b32 v5, 4, v0")
    a("s_waitcnt lgkmcnt(0)")
    for k in range(4):
        a(f"v_cvt_pk_bf16_f32 v{52+k}, v{40+2*k}, v{41+2*k}")
        a(f"v_cvt_pk_bf16_f32 v{56+k}, v{41+2*k}, v{42+2*k}")
    a("buffer_store_dwordx4 v[52:55], v5, s[12:15], s28 offen")
    a(f"buffer_store_dwordx4 v[56:59], v5, s[12:15], s28 offen offset:{ROFF - 4096}") if False else None
    a(f"v_add_u32 v6, {ROFF}, v5")
    a("buffer_store_dwordx4 v[56:59], v6, s[12:15], s28 offen")
    if K1ST:
        st(4)
        a("s_waitcnt vmcnt(0) lgkmcnt(0)")
        st(5)
        a("s_waitcnt lgkmcnt(0)")
        srd(a, 72, 6, 7, 0x4000000)
        for i in range(6): a(f"v_mov_b32 v{70+i}, s{60+2*i}")
        a("v_mov_b32 v76, s94"); a("v_mov_b32 v77, 0")
        a("s_lshl_b32 s76, s2, 7")
        a("s_lshl_b32 s77, s27, 5")
        a("s_add_u32 s76, s76, s77")
        a("s_add_u32 s76, s76, 0x2a00000")
        a("v_mov_b32 v78, 0")
        a("buffer_store_dwordx4 v[70:73], v78, s[72:75], s76 offen")
        a("buffer_store_dwordx4 v[74:77], v78, s[72:75], s76 offen offset:16")
    a("v_cmp_gt_u32 vcc, 2, v0")
    a("s_and_saveexec_b64 s[30:31], vcc")
    a("s_cbranch_execz K1_END")
    for r in range(4): a(f"v_mov_b32 v{60+r}, 0")
    a("v_add_u32 v5, 4096, v5")
    a("v_add_u32 v6, 4096, v6")
    a("buffer_store_dwordx4 v[60:63], v5, s[12:15], s28 offen")
    a("buffer_store_dwordx4 v[60:63], v6, s[12:15], s28 offen")
    a("s_branch K1_END")
    a.label("K1_PF")
    gen_prefetch(a, 1, 640, "K1_END")
    a.label("K1_END")
    kst_end(a, 0, 640 + PF[1].nwg)
    a("s_endpgm")
    return name, 164, 38912

KERNELS = []
def build(kernels, launches):
    head = []
    ref = open('cdna_kernels/' + NAME + '.s.ref').read().split('\n')
    for ln in ref:
        if ln.startswith('; Kernarg') or ln.startswith(';   offset'):
            head.append(ln)
    for (k, grid, block, lds) in launches:
        head.append(f"; @launch kernel={k} grid=({grid},1,1) block=({block},1,1) lds={lds}")
    out = '\n'.join(head) + '\n.amdgcn_target "amdgcn-amd-amdhsa--gfx950"\n.text\n'
    descs = ''
    for gen in kernels:
        a = Asm()
        name, vg, lds = gen(a)
        lint_srd(a.lines, name)
        out += render(insert_hazard_nops(a.lines))
        descs += kernel_desc(name, vg)
    out += '.section .rodata,"a"\n.p2align 6\n' + descs.replace('.amdhsa_kernel', '.p2align 6\n.amdhsa_kernel')
    return out

if __name__ == '__main__':
    from gen_rest import *
    main()
```

```python
from gen import *
import os, math
OPT = os.environ.get('GOPT', '').split(',')
def opt_int(name, default):
    for o in OPT:
        if o.startswith(name + '='): return int(o.split('=')[1])
    return default

ASLOT = 12288

class GC:
    def __init__(s, kind):
        s.kind = kind
        s.TW = 128 if kind == 1 else 64
        s.NJ = s.TW // 32
        s.NS = opt_int('ns1', 4) if kind == 1 else opt_int('ns2', 6)
        s.PD = opt_int('pd1', 10) if kind == 1 else opt_int('pd2', 12)
        s.nstg = 32 if kind == 1 else 72
        s.ntn = 36 if kind == 1 else 32
        s.WPITCH = 9216 if kind == 1 else 4096
        s.WTEST = opt_int('wp%d' % kind, 0)
        if s.WTEST: s.WPITCH = s.WTEST if s.WTEST > 0 else s.TW * 2
        s.ROWB = s.TW * 2
        s.WSLOT = 64 * s.ROWB
        s.ACT0 = s.NS * s.WSLOT
        s.HT0 = s.ACT0 + s.NS * ASLOT
        s.LDS = s.HT0 + (96 * s.ROWB if kind == 2 else 0)
        s.HTOV = s.LDS > 163840
        if s.HTOV:
            s.HT0 = s.ACT0
            s.LDS = s.ACT0 + s.NS * ASLOT
        if DYN: s.LDS += 64
        s.NWG = 6 * s.ntn
        s.per_xcd = s.NWG // 8
        s.ACTBASE = WS_HN if kind == 1 else WS_G
        s.NWP = s.WSLOT // 4096
        s.DUP = opt_int('dup4', 0) if kind == 1 else 0
        s.PPS = (0 if 'noW' in OPT else s.NWP) + (0 if 'noA' in OPT else 3) + s.DUP

def gen_gemm(a, kind, name):
    C = GC(kind)
    NS, TW, NJ, nstg, WPITCH, ROWB, WSLOT, ACT0, HT0, NWG = C.NS, C.TW, C.NJ, C.nstg, C.WPITCH, C.ROWB, C.WSLOT, C.ACT0, C.HT0, C.NWG
    kernel_head(a, name)
    P = name.upper()[:2]
    END = f"{P}_END"; PROD = f"{P}_PROD"; PREF = f"{P}_PREF"
    kst_begin(a)
    NG = NWG + PF[3 + kind].nwg
    a(f"s_cmp_ge_u32 s2, {NG}")
    a(f"s_cbranch_scc1 {END}")
    if not DYN:
        a(f"s_cmp_ge_u32 s2, {NWG}")
        a(f"s_cbranch_scc1 {PREF}")
    a("s_load_dwordx2 s[6:7], s[0:1], 112")
    a(f"s_load_dwordx4 s[16:19], s[0:1], {64 if kind == 1 else 80}")
    a("s_load_dwordx2 s[20:21], s[0:1], 96")
    a("v_lshrrev_b32 v2, 6, v0")
    a("v_readfirstlane_b32 s27, v2")
    if DYN:
        a("s_waitcnt lgkmcnt(0)")
        dyn_assign(a, 2 + kind, NG // 8, C.LDS - 64, 27)
        a(f"s_cmp_ge_u32 s2, {NWG}")
        a(f"s_cbranch_scc1 {PREF}")
    a("s_and_b32 s22, s2, 7")
    a("s_lshr_b32 s23, s2, 3")
    if ('map%d' % kind) in OPT:
        a("s_mul_i32 s4, s23, 171")
        a("s_lshr_b32 s4, s4, 9")
        a("s_mul_i32 s5, s4, 3")
        a("s_sub_u32 s5, s23, s5")
        a("s_and_b32 s24, s22, 1")
        a("s_mul_i32 s24, s24, 3")
        a("s_add_u32 s5, s5, s24")
        a("s_lshr_b32 s24, s22, 1")
        a(f"s_mul_i32 s24, s24, {C.ntn // 4}")
        a("s_add_u32 s4, s4, s24")
    else:
        a(f"s_mul_i32 s3, s22, {C.per_xcd}")
        a("s_mul_i32 s24, s3, 171")
        a("s_lshr_b32 s24, s24, 10")
        a("s_add_u32 s3, s3, s23")
        a("s_mul_i32 s4, s3, 171")
        a("s_lshr_b32 s4, s4, 10")
        a("s_mul_i32 s5, s4, 6")
        a("s_sub_u32 s5, s3, s5")
    a("v_and_b32 v1, 63, v0")
    a("v_lshrrev_b32 v2, 6, v0")
    a("v_readfirstlane_b32 s27, v2")
    a("v_lshrrev_b32 v3, 4, v1")
    a("s_waitcnt lgkmcnt(0)")
    if C.WTEST:
        a("s_add_u32 s14, s6, 0x4000000"); a("s_addc_u32 s15, s7, 0")
        srd(a, 8, 14, 15, 0x4000000)
    else:
        srd(a, 8, 16, 17, 2048 * 4608 * 2)
    srd(a, 12, 6, 7, WS_END)
    a("s_cmp_ge_u32 s27, 4")
    a(f"s_cbranch_scc1 {PROD}")
    assert nstg % NS == 0
    nloop = nstg // NS - 1

    a("s_lshr_b32 s28, s27, 1")
    a("s_and_b32 s29, s27, 1")
    a("v_bfe_u32 v8, v1, 2, 2")
    a("v_and_b32 v9, 3, v1")
    if kind == 1:
        a("v_and_b32 v10, 1, v3")
        a("v_lshl_add_u32 v10, v10, 2, v8")
        a("v_lshl_add_u32 v11, v3, 3, v8")
        HOFF = 4 * ROWB
    else:
        a("v_lshl_add_u32 v11, v3, 2, v8")
        a("v_bfe_u32 v10, v11, 1, 2")
        HOFF = 16 * ROWB
    a(f"s_mul_i32 s30, s28, {NJ}")
    a("v_xor_b32 v10, s30, v10")
    a(f"s_movk_i32 s30, {ROWB}")
    a("v_mul_lo_u32 v11, v11, s30")
    a("v_lshl_add_u32 v11, v9, 3, v11")
    for jj in range(NJ):
        a(f"v_xor_b32 v12, {jj}, v10")
        a(f"v_lshl_add_u32 v{4+jj}, v12, 5, v11")
    a("s_mul_i32 s30, s29, 3072")
    a(f"s_add_u32 s30, s30, {ACT0}")
    a("v_lshlrev_b32 v8, 4, v1")
    a("v_add_u32 v8, s30, v8")
    a(f"v_add_u32 v9, {3*ASLOT}, v8")
    srd(a, 16, 18, 19, (4608 if kind == 1 else 2048) * 2)
    a(f"s_mul_i32 s30, s4, {TW*2}")
    a(f"s_mul_i32 s31, s28, {TW}")
    a("s_add_u32 s30, s30, s31")
    if kind == 1:
        a("v_lshlrev_b32 v10, 3, v3")
        for jj in range(NJ):
            a(f"buffer_load_dwordx2 v[{16+2*jj}:{17+2*jj}], v10, s[16:19], s30 offen offset:{32*jj}")
    else:
        a("v_and_b32 v10, 15, v1")
        a("v_lshlrev_b32 v10, 1, v10")
        for jj in range(NJ):
            a(f"buffer_load_ushort v{16+jj}, v10, s[16:19], s30 offen offset:{32*jj}")
    ACC = 160 if kind == 1 else 120
    SETSZ = 2 * (4 * NJ + 12)
    FA = [32, 32 + SETSZ]
    AO = 4 * NJ
    assert FA[1] + SETSZ <= ACC
    for r in range(12 * NJ): a(f"v_mov_b32 v{ACC+r}, 0")

    def reads(slot, st):
        out = []
        for kb in range(2):
            base = FA[st] + kb * (SETSZ // 2)
            def wr(jj):
                return [f"ds_read_b64_tr_b16 v[{base+4*jj+2*h}:{base+4*jj+2*h+1}], v{4+jj} offset:{slot*WSLOT + kb*32*ROWB + h*HOFF}" for h in range(2)]
            def ar(dd):
                va, so = (8, slot) if slot < 3 else (9, slot - 3)
                return [f"ds_read_b128 v[{base+AO+4*dd}:{base+AO+4*dd+3}], v{va} offset:{so*ASLOT + kb*6144 + dd*1024}"]
            out += wr(0) + ar(0) + ar(1) + ar(2)
            for jj in range(1, NJ): out += wr(jj)
        return out
    def mfmas(st):
        out = []
        for kb in range(2):
            base = FA[st] + kb * (SETSZ // 2)
            for jj in range(NJ):
                for dd in range(3):
                    acc = ACC + 4 * (jj * 3 + dd)
                    wf_ = f"v[{base+4*jj}:{base+4*jj+3}]"; af_ = f"v[{base+AO+4*dd}:{base+AO+4*dd+3}]"
                    if kind == 1:
                        out.append(f"v_mfma_f32_16x16x32_bf16 v[{acc}:{acc+3}], {wf_}, {af_}, v[{acc}:{acc+3}]")
                    else:
                        out.append(f"v_mfma_f32_16x16x32_bf16 v[{acc}:{acc+3}], {af_}, {wf_}, v[{acc}:{acc+3}]")
        return out
    NPRE = opt_int('npre1', 4) if kind == 1 else opt_int('npre2', 3)
    NRD = len(reads(0, 0))
    need = 5 + (2 if NPRE > 3 else 0) + (2 if NPRE > 6 else 0)
    def stage(slot, st, last):
        m = mfmas(st)
        if 'nomfma' in OPT: m = []
        a(f"s_waitcnt lgkmcnt({min(15, NRD - need)})")
        for ins in m[:NPRE]: a(ins)
        a("s_waitcnt lgkmcnt(0)")
        if last:
            for ins in m[NPRE:]: a(ins)
            return
        a("s_barrier")
        rd = reads((slot + 1) % NS, 1 - st)
        if 'nords' in OPT: rd = []
        rest = m[NPRE:]
        ng = max(1, len(rest) - 1)
        extra = max(0, len(rd) - ng)
        for i, ins in enumerate(rest):
            a(ins)
            n = 1 + (1 if i < extra else 0)
            if i == len(rest) - 1: n = len(rd)
            for _ in range(n):
                if rd: a(rd.pop(0))
        for r_ in rd: a(r_)
    a("s_barrier")
    if 'clk' in OPT:
        a("s_memtime s[64:65]"); a("s_memrealtime s[66:67]")
    for r in reads(0, 0): a(r)
    assert NS % 2 == 0
    a(f"s_movk_i32 s31, {nloop}")
    a.label(f"{P}_CLOOP")
    for s in range(NS): stage(s, s % 2, False)
    a("s_sub_u32 s31, s31, 1")
    a("s_cmp_lg_u32 s31, 0")
    a(f"s_cbranch_scc1 {P}_CLOOP")
    for s in range(NS): stage(s, s % 2, s == NS - 1)
    if 'clk' in OPT:
        a("s_memtime s[68:69]"); a("s_memrealtime s[70:71]")
        a("s_waitcnt lgkmcnt(0)")
        a("s_sub_u32 s68, s68, s64")
        a("s_sub_u32 s70, s70, s66")
        a("v_mov_b32 v10, s68"); a("v_mov_b32 v11, s70"); a("v_mov_b32 v12, s66"); a("v_mov_b32 v13, 0")
        a("s_lshl_b32 s72, s2, 6")
        a("s_lshl_b32 s73, s27, 4")
        a("s_add_u32 s72, s72, s73")
        a(f"s_add_u32 s72, s72, {0x2900000 + (0 if kind == 1 else 0x10000)}")
        srd(a, 76, 6, 7, 0x4000000)
        a("v_mov_b32 v14, 0")
        a("buffer_store_dwordx4 v[10:13], v14, s[76:79], s72 offen")

    if kind == 1:
        a("s_waitcnt vmcnt(0)")
        for jj in range(4):
            a(f"v_lshlrev_b32 v{96+4*jj}, 16, v{16+2*jj}")
            a(f"v_and_b32 v{97+4*jj}, 0xffff0000, v{16+2*jj}")
            a(f"v_lshlrev_b32 v{98+4*jj}, 16, v{17+2*jj}")
            a(f"v_and_b32 v{99+4*jj}, 0xffff0000, v{17+2*jj}")
        c0 = -2.0 * math.sqrt(2.0 / math.pi) * 1.4426950408889634
        c1 = c0 * 0.044715
        a(f"s_mov_b32 s34, {fhex(c1)}"); a(f"s_mov_b32 s35, {fhex(c1)}")
        a(f"s_mov_b32 s36, {fhex(1.0)}"); a(f"s_mov_b32 s37, {fhex(1.0)}")
        a(f"v_mov_b32 v30, {fhex(c0)}"); a(f"v_mov_b32 v31, {fhex(c0)}")
        a("s_lshl_b32 s39, s4, 1")
        a("s_add_u32 s38, s39, s28")
        a("s_mul_i32 s38, s38, 6")
        a("s_add_u32 s38, s38, s5")
        a(f"s_mul_i32 s38, s38, {2*ABLK}")
        a("s_lshl_b32 s39, s29, 9")
        a("s_add_u32 s38, s38, s39")
        a(f"s_add_u32 s38, s38, {WS_G}")
        a("v_lshrrev_b32 v9, 3, v1")
        a("v_lshlrev_b32 v9, 10, v9")
        a("v_and_b32 v10, 7, v1")
        a("v_lshl_add_u32 v9, v10, 4, v9")
        a(f"s_add_u32 s39, s38, {ABLK}")
        for kb in range(2):
            for dd in range(3):
                T = 32
                O = 112 + 4 * ((kb * 3 + dd) % 2)
                for t in range(2):
                    jj = 2 * kb + t
                    acc = ACC + 4 * (jj * 3 + dd)
                    for p in range(2):
                        x = T + 8 * t + 4 * p
                        a(f"v_cvt_pk_bf16_f32 v{x+2}, v{acc+2*p}, v{acc+2*p+1}")
                        a(f"v_lshlrev_b32 v{x}, 16, v{x+2}")
                        a(f"v_and_b32 v{x+1}, 0xffff0000, v{x+2}")
                        a(f"v_pk_add_f32 v[{x}:{x+1}], v[{x}:{x+1}], v[{96+4*jj+2*p}:{97+4*jj+2*p}]")
                        a(f"v_cvt_pk_bf16_f32 v{x+2}, v{x}, v{x+1}")
                        a(f"v_lshlrev_b32 v{x}, 16, v{x+2}")
                        a(f"v_and_b32 v{x+1}, 0xffff0000, v{x+2}")
                    for p in range(2):
                        x = T + 8 * t + 4 * p
                        a(f"v_pk_mul_f32 v[{x+2}:{x+3}], v[{x}:{x+1}], v[{x}:{x+1}]")
                        a(f"v_pk_fma_f32 v[{x+2}:{x+3}], v[{x+2}:{x+3}], s[34:35], v[30:31]")
                        a(f"v_pk_mul_f32 v[{x+2}:{x+3}], v[{x+2}:{x+3}], v[{x}:{x+1}]")
                    for p in range(2):
                        x = T + 8 * t + 4 * p
                        a(f"v_exp_f32 v{x+2}, v{x+2}")
                        a(f"v_exp_f32 v{x+3}, v{x+3}")
                    for p in range(2):
                        x = T + 8 * t + 4 * p
                        a(f"v_pk_add_f32 v[{x+2}:{x+3}], v[{x+2}:{x+3}], s[36:37]")
                    for p in range(2):
                        x = T + 8 * t + 4 * p
                        a(f"v_rcp_f32 v{x+2}, v{x+2}")
                        a(f"v_rcp_f32 v{x+3}, v{x+3}")
                    for p in range(2):
                        x = T + 8 * t + 4 * p
                        a(f"v_pk_mul_f32 v[{x}:{x+1}], v[{x}:{x+1}], v[{x+2}:{x+3}]")
                        a(f"v_cvt_pk_bf16_f32 v{O+2*t+p}, v{x}, v{x+1}")
                a(f"buffer_store_dwordx4 v[{O}:{O+3}], v9, s[12:15], s{38+kb} offen offset:{128*dd}" + (" sc1" if (kb * 3 + dd) < opt_int('gsc1', 0) else ""))
    else:
        a("s_waitcnt vmcnt(0)")
        if C.HTOV: a("s_barrier")
        for jj in range(NJ): a(f"v_lshlrev_b32 v{16+jj}, 16, v{16+jj}")
        a(f"s_mul_i32 s30, s29, {48*ROWB}")
        a(f"s_add_u32 s30, s30, {HT0}")
        for jj in range(NJ): a(f"v_add_u32 v{4+jj}, s30, v{4+jj}")
        for jj in range(NJ):
            for dd in range(3):
                r = 32 + 2 * (jj * 3 + dd)
                a(f"ds_read_b64_tr_b16 v[{r}:{r+1}], v{4+jj} offset:{dd*16*ROWB}")
        srd(a, 16, 20, 21, 2048 * 576 * 2)
        a("v_and_b32 v9, 15, v1")
        a("s_movk_i32 s30, 1152")
        a("v_mul_lo_u32 v9, v9, s30")
        a("v_lshl_add_u32 v9, v3, 3, v9")
        a(f"s_mul_i32 s30, s4, {TW}")
        a(f"s_mul_i32 s31, s28, {TW//2}")
        a("s_add_u32 s30, s30, s31")
        a("s_mul_i32 s30, s30, 1152")
        a("s_mul_i32 s31, s5, 192")
        a("s_add_u32 s30, s30, s31")
        a("s_mul_i32 s31, s29, 96")
        a("s_add_u32 s30, s30, s31")
        a("s_waitcnt lgkmcnt(0)")
        for jj in range(NJ):
            for dd in range(3):
                acc = ACC + 4 * (jj * 3 + dd)
                hr = 32 + 2 * (jj * 3 + dd)
                O = 64 + 2 * ((jj * 3 + dd) % 4)
                for p in range(2):
                    x = 80 + 4 * p
                    a(f"v_cvt_pk_bf16_f32 v{x+2}, v{acc+2*p}, v{acc+2*p+1}")
                    a(f"v_lshlrev_b32 v{x}, 16, v{x+2}")
                    a(f"v_and_b32 v{x+1}, 0xffff0000, v{x+2}")
                    a(f"v_add_f32 v{x}, v{x}, v{16+jj}")
                    a(f"v_add_f32 v{x+1}, v{x+1}, v{16+jj}")
                    a(f"v_cvt_pk_bf16_f32 v{x+2}, v{x}, v{x+1}")
                    a(f"v_lshlrev_b32 v{x}, 16, v{x+2}")
                    a(f"v_and_b32 v{x+1}, 0xffff0000, v{x+2}")
                    a(f"v_lshlrev_b32 v{x+2}, 16, v{hr+p}")
                    a(f"v_and_b32 v{x+3}, 0xffff0000, v{hr+p}")
                    a(f"v_add_f32 v{x}, v{x}, v{x+2}")
                    a(f"v_add_f32 v{x+1}, v{x+1}, v{x+3}")
                    a(f"v_cvt_pk_bf16_f32 v{O+p}, v{x}, v{x+1}")
                a(f"buffer_store_dwordx2 v[{O}:{O+1}], v9, s[16:19], s30 offen offset:{32*dd}")
            if jj < NJ - 1: a(f"s_add_u32 s30, s30, {16*1152}")
    a(f"s_branch {END}")

    a.label(PROD)
    a("s_sub_u32 s28, s27, 4")
    CPY = 'nocopy' not in OPT and not C.WTEST
    CPITCH = W1C_PITCH if kind == 1 else W2C_PITCH
    a(f"s_movk_i32 s30, {WPITCH}")
    a(f"s_mul_i32 s32, s4, {ROWB if C.WTEST >= 0 else nstg * WSLOT}")
    if CPY:
        a(f"s_and_b32 s31, s4, {3 if kind == 1 else 7}")
        a(f"s_cmp_lg_u32 s31, {1 if kind == 1 else 3}")
        a(f"s_cbranch_scc1 {P}_NOCP")
        a(f"s_movk_i32 s30, {CPITCH}")
        a(f"s_lshr_b32 s32, s4, {2 if kind == 1 else 3}")
        a(f"s_lshl_b32 s32, s32, {9 if kind == 1 else 8}")
        a(f"s_add_u32 s32, s32, {WS_W1C if kind == 1 else WS_W2C}")
        srd(a, 8, 6, 7, WS_END)
        a.label(f"{P}_NOCP")
    a("s_mov_b32 s56, s30")
    a("s_lshl_b32 s57, s30, 6")
    if kind == 1:
        a("v_and_b32 v4, 15, v1")
        a("v_lshrrev_b32 v5, 1, v4")
        a("v_and_b32 v4, 1, v4")
        a("s_lshl_b32 s29, s28, 4")
        a("v_add_u32 v6, s29, v3")
        a("v_mul_lo_u32 v6, v6, s30")
        a("v_lshl_add_u32 v6, v4, 4, v6")
        for q in range(4):
            hi = (q >> 1)
            a(f"v_or_b32 v7, {hi << 2}, v3")
            a("v_xor_b32 v7, v7, v5")
            a(f"v_lshl_add_u32 v{10+q}, v7, 5, v6")
            if q:
                a(f"s_mul_i32 s31, s56, {4*q}")
                a(f"s_sub_u32 s31, s31, {1024*q}")
                a(f"v_add_u32 v{10+q}, s31, v{10+q}")
    else:
        a("v_bfe_u32 v5, v1, 1, 2")
        a("v_and_b32 v4, 1, v1")
        a("v_lshrrev_b32 v6, 3, v1")
        a("s_lshl_b32 s29, s28, 4")
        a("v_add_u32 v6, s29, v6")
        a("v_mul_lo_u32 v6, v6, s30")
        a("v_lshl_add_u32 v6, v4, 4, v6")
        a("v_xor_b32 v7, v3, v5")
        a("v_lshl_add_u32 v10, v7, 5, v6")
        a("s_lshl_b32 s31, s56, 3")
        a("s_sub_u32 s31, s31, 1024")
        a("v_add_u32 v11, s31, v10")
    a("v_lshrrev_b32 v16, 3, v1")
    a("v_lshlrev_b32 v16, 10, v16")
    a("v_and_b32 v17, 7, v1")
    a("v_lshl_add_u32 v16, v17, 4, v16")
    a("s_lshr_b32 s30, s28, 1")
    a("s_lshl_b32 s30, s30, 13")
    a("s_and_b32 s31, s28, 1")
    a("s_lshl_b32 s31, s31, 9")
    a("s_add_u32 s30, s30, s31")
    for q in range(3):
        a(f"s_add_u32 s31, s30, {2048 - 896*q}")
        a(f"v_add_u32 v{17+q}, s31, v16")
    a(f"s_mul_i32 s33, s5, {2*ABLK}")
    a(f"s_add_u32 s33, s33, {C.ACTBASE - 2048 + opt_int('ashift', 0)}")
    ROT = (('rot' in OPT) or (('rot%d' % kind) in OPT)) and 'norot4' not in OPT
    if ROT:
        RS = nstg // 8
        a("s_and_b32 s58, s2, 7")
        a(f"s_mul_i32 s58, s58, {RS}")
        a("s_mul_i32 s59, s58, s57")
        a("s_add_u32 s32, s32, s59")
        a(f"s_mul_i32 s59, s58, {12*ABLK}")
        a("s_add_u32 s33, s33, s59")
        a(f"s_sub_u32 s58, {nstg}, s58")
        a(f"s_mul_i32 s63, s57, {nstg}")
    if opt_int('wshift', 0): a(f"s_add_u32 s32, s32, {opt_int('wshift', 0)}")
    if opt_int('wxor', 0): a(f"s_xor_b32 s32, s32, {opt_int('wxor', 0)}")
    for s in range(NS):
        a(f"s_mul_i32 s30, s28, {C.NWP*1024}")
        a(f"s_add_u32 s{40+s}, s30, {s*WSLOT}")
        a("s_mul_i32 s30, s28, 3072")
        a(f"s_add_u32 s{48+s}, s30, {ACT0 + s*ASLOT}")
    if kind == 2:
        a("s_mul_i32 s29, s28, 24")
        a("v_lshrrev_b32 v6, 3, v1")
        a("v_add_u32 v6, s29, v6")
        a("v_lshlrev_b32 v15, 12, v6")
        a("v_lshl_add_u32 v15, v4, 4, v15")
        a("v_lshl_add_u32 v15, v7, 5, v15")
        a("s_mul_i32 s30, s5, 96*4096")
        a(f"s_mul_i32 s31, s4, {ROWB}")
        a("s_add_u32 s30, s30, s31")
        a(f"s_add_u32 s30, s30, {WS_HT}")
        a("s_mul_i32 s31, s28, 3072")
        a(f"s_add_u32 s31, s31, {HT0}")
        a("s_mov_b32 s36, s30"); a("s_mov_b32 s37, s31")
        def ht_issue():
            for i in range(3):
                a(f"s_add_u32 s34, s37, {1024*i}")
                a("s_mov_b32 m0, s34")
                a(f"s_add_u32 s35, s36, {i*8*4096}")
                a("buffer_load_dwordx4 v15, s[12:15], s35 offen lds")
        if not C.HTOV and 'htlate' not in OPT: ht_issue()
    AV = [17, 18, 19]
    def issue(slot):
        a(f"s_mov_b32 m0, s{40+slot}")
        for q in range(0 if 'noW' in OPT else C.NWP):
            a(f"buffer_load_dwordx4 v{10+q}, s[8:11], s32 offen offset:{1024*q} lds")
        a(f"s_mov_b32 m0, s{48+slot}")
        for q in range(0 if 'noA' in OPT else 3):
            a(f"buffer_load_dwordx4 v{AV[q]}, s[12:15], s33 offen offset:{1024*q} lds")
        for q in range(C.DUP):
            a(f"buffer_load_dwordx4 v{AV[q]}, s[12:15], s33 offen offset:{1024*q} lds")
        if 'hot' not in OPT:
            a("s_add_u32 s32, s32, s57")
            a(f"s_add_u32 s33, s33, {12*ABLK}")
            if ROT:
                a("s_sub_u32 s58, s58, 1")
                a("s_cmp_eq_u32 s58, 0")
                a("s_cselect_b32 s59, s63, 0")
                a(f"s_cselect_b32 s64, {nstg*12*ABLK}, 0")
                a("s_sub_u32 s32, s32, s59")
                a("s_sub_u32 s33, s33, s64")
    def stamp():
        if 'stamp' not in OPT: return
        a("s_memrealtime s[60:61]")
        a("s_waitcnt lgkmcnt(0)")
        a("v_mov_b32 v22, s60")
        a("v_cmp_eq_u32 vcc, s62, v1")
        a("v_cndmask_b32 v20, v20, v22, vcc")
        a("s_add_u32 s62, s62, 1")
        a("s_and_b32 s62, s62, 63")
    if 'stamp' in OPT:
        a("s_mov_b32 s62, 0"); a("v_mov_b32 v20, 0")
    PPS = C.PPS
    stamp()
    EB = opt_int('eb%d' % kind, NS)
    for s in range(EB): issue(s)
    stamp()
    a(f"s_waitcnt vmcnt({(EB-1)*PPS})")
    a("s_barrier")
    for s in range(EB, NS): issue(s)
    if kind == 2 and not C.HTOV and 'htlate' in OPT: ht_issue()
    stamp()
    a(f"s_movk_i32 s31, {nloop}")
    a.label(f"{P}_PLOOP")
    for s in range(NS):
        a(f"s_waitcnt vmcnt({(NS-2)*PPS})")
        a("s_barrier")
        if kind == 1 or s % 2 == 0: stamp()
        issue(s)
    a("s_sub_u32 s31, s31, 1")
    a("s_cmp_lg_u32 s31, 0")
    a(f"s_cbranch_scc1 {P}_PLOOP")
    HOV = kind == 2 and C.HTOV
    XL = 0
    if kind == 1 and 'cpfe' in OPT:
        a("s_lshl_b32 s60, s28, 13")
        code_pf(a, "E", "k4_kernel", "K5_END", [0], 62, 1, 24, 26, backward=True, schunk=60)
        XL = 1
    for s in range(NS - 1):
        a(f"s_waitcnt vmcnt({(NS-2-s)*PPS + (3 if (HOV and s > 0) else 0) + XL})")
        a("s_barrier")
        stamp()
        if HOV and s == 0: ht_issue()
    if HOV:
        a("s_waitcnt vmcnt(0)")
        a("s_barrier")
    if 'stamp' in OPT:
        a("s_cmp_lg_u32 s28, 0")
        a(f"s_cbranch_scc1 {END}")
        a("s_lshl_b32 s30, s2, 8")
        a(f"s_add_u32 s30, s30, {0x2400000 + (0 if kind == 1 else 0x10000)}")
        a("v_lshlrev_b32 v21, 2, v1")
        srd(a, 12, 6, 7, 0x4000000)
        a("buffer_store_dword v20, v21, s[12:15], s30 offen")
    a(f"s_branch {END}")
    a.label(PREF)
    gen_prefetch(a, 3 + kind, NWG, END)
    a.label(END)
    kst_end(a, 2 + kind, NWG + PF[3 + kind].nwg)
    a("s_endpgm")
    return name, (208 if kind == 1 else 144), C.LDS

def gen_k4(a): return gen_gemm(a, 1, "k4_kernel")
def gen_k5(a): return gen_gemm(a, 2, "k5_kernel")
```

```python
from gen import *
import os
OPT = os.environ.get('GOPT', '').split(',')
def opt_int(name, default):
    for o in OPT:
        if o.startswith(name + '='): return int(o.split('=')[1])
    return default
WS_W2D = 0x4000000
W2D_PITCH = 2048
WS_FL = 0x4900000
WS_XB = 0x4A00000
WS_END3 = WS_XB + 64 * 16 * 18 * 2048
SK = opt_int('sk', 4)
MF = 9 if SK == 4 else 6
NMT = 36 // MF
NSTG = 72 // SK
K5S_NWG = NMT * 16 * SK
S_NS = opt_int('s5ns', 4)
S_W = 16384
S_A = 2 * MF * 1024
S_ACT0 = S_NS * S_W
K5S_LDS = S_ACT0 + S_NS * S_A
NT_ = 2 * MF
NKEEP = -(-NT_ // SK)

def gen_k5s(a):
    name = "k5_kernel"
    NS = S_NS
    kernel_head(a, name)
    kst_begin(a)
    CLK = 'clk' in OPT
    NG = K5S_NWG + PF[5].nwg
    a(f"s_cmp_ge_u32 s2, {NG}")
    a("s_cbranch_scc1 K5_END")
    if PF[5].nwg:
        a(f"s_cmp_ge_u32 s2, {K5S_NWG}")
        a("s_cbranch_scc1 K5_PREF")
    a("s_load_dwordx2 s[6:7], s[0:1], 112")
    a("s_load_dwordx4 s[16:19], s[0:1], 80")
    a("s_load_dwordx2 s[20:21], s[0:1], 96")
    a("v_lshrrev_b32 v2, 6, v0")
    a("v_readfirstlane_b32 s27, v2")
    a("v_and_b32 v1, 63, v0")
    a("v_lshrrev_b32 v3, 4, v1")
    a("s_and_b32 s22, s2, 7")
    a("s_lshr_b32 s23, s2, 3")
    if SK == 4:
        a("s_lshr_b32 s24, s22, 1")
        a("s_and_b32 s25, s22, 1")
        a("s_and_b32 s5, s23, 3")
        a("s_lshr_b32 s4, s23, 2")
        a("s_lshl_b32 s26, s25, 3")
        a("s_add_u32 s4, s4, s26")
    else:
        a("s_lshr_b32 s24, s22, 2")
        a("s_and_b32 s25, s22, 3")
        a("s_mul_i32 s4, s23, 43")
        a("s_lshr_b32 s4, s4, 8")
        a("s_mul_i32 s5, s4, 6")
        a("s_sub_u32 s5, s23, s5")
        a("s_lshl_b32 s26, s25, 2")
        a("s_add_u32 s4, s4, s26")
    a(f"s_mul_i32 s3, s4, {NMT}")
    a("s_add_u32 s3, s3, s5")
    a("s_waitcnt lgkmcnt(0)")
    srd(a, 12, 6, 7, WS_END3)
    a("s_cmp_ge_u32 s27, 4")
    a("s_cbranch_scc1 K5_PROD")

    a("v_bfe_u32 v8, v1, 2, 2")
    a("v_and_b32 v9, 3, v1")
    a("v_and_b32 v10, 1, v3")
    a("v_lshl_add_u32 v10, v10, 2, v8")
    a("v_lshl_add_u32 v11, v3, 2, v8")
    a("s_lshl_b32 s30, s27, 1")
    a("v_xor_b32 v10, s30, v10")
    a("v_lshlrev_b32 v11, 8, v11")
    a("v_lshl_add_u32 v11, v9, 3, v11")
    a("v_lshl_add_u32 v4, v10, 5, v11")
    a("v_xor_b32 v10, 1, v10")
    a("v_lshl_add_u32 v5, v10, 5, v11")
    a("v_lshlrev_b32 v8, 4, v1")
    a(f"v_add_u32 v8, {S_ACT0}, v8")
    a(f"v_add_u32 v9, {2*S_A}, v8")
    if NS > 4: a(f"v_add_u32 v6, {4*S_A}, v8")
    if NS > 4: a(f"v_add_u32 v7, {65536}, v4"); a(f"v_add_u32 v15, {65536}, v5")
    SZ = 4 * MF + 8
    SET = [32, 32 + SZ]
    ACC = 32 + 2 * SZ
    HV = ACC + 4 * NT_
    BV = HV + 4 * NKEEP
    for r in range(4 * NT_): a(f"v_mov_b32 v{ACC+r}, 0")
    def reads(n):
        sg, kb = divmod(n, 2)
        sl = sg % NS
        b = SET[n % 2]
        va = (8, 9, 6)[sl // 2]
        vw = (4, 5) if sl < 4 else (7, 15)
        wo = (sl % 4) * S_W
        def wr(jj): return [(f"ds_read_b64_tr_b16 v[{b+4*MF+4*jj+2*h}:{b+4*MF+4*jj+2*h+1}], v{vw[jj]} offset:{wo + kb*8192 + h*4096}", ('w', jj, h)) for h in range(2)]
        def ar(dd): return [(f"ds_read_b128 v[{b+4*dd}:{b+4*dd+3}], v{va} offset:{(sl%2)*S_A + (kb*MF + dd)*1024}", ('a', dd))]
        out = wr(0) + ar(0) + wr(1) + ar(1)
        for dd in range(2, MF): out += ar(dd)
        return out
    NRD = MF + 4
    NPRE = opt_int('npre5', 4 if SK == 4 else 2)
    class Q: pass
    q = Q(); q.issued = 0; q.done = 0; q.pos = {}
    def rd_issue(n, item):
        a(item[0]); q.pos[(n % 2, item[1])] = q.issued; q.issued += 1
    def need(keys):
        p = max(q.pos[k] for k in keys)
        if p >= q.done:
            a(f"s_waitcnt lgkmcnt({min(15, q.issued - 1 - p)})")
            q.done = p + 1 if q.issued - 1 - p <= 15 else q.issued - 15
    def half(n):
        b = SET[n % 2]
        nxt = reads(n + 1) if n + 1 < 2 * NSTG else []
        odd = n % 2 == 1
        k = 0
        for dd in range(MF):
            for jj in range(2):
                if odd and k == NPRE and nxt:
                    a("s_waitcnt lgkmcnt(0)"); q.done = q.issued
                    a("s_barrier")
                need([(n % 2, ('a', dd)), (n % 2, ('w', jj, 0)), (n % 2, ('w', jj, 1))])
                acc = ACC + 4 * (2 * dd + jj)
                a(f"v_mfma_f32_16x16x32_bf16 v[{acc}:{acc+3}], v[{b+4*dd}:{b+4*dd+3}], v[{b+4*MF+4*jj}:{b+4*MF+4*jj+3}], v[{acc}:{acc+3}]")
                if nxt and (not odd or k >= NPRE):
                    rd_issue(n + 1, nxt.pop(0))
                    left = 2 * MF - 1 - k
                    while len(nxt) > left: rd_issue(n + 1, nxt.pop(0))
                k += 1
        for it in nxt: rd_issue(n + 1, it)
    a("s_barrier")
    if CLK:
        a("s_memtime s[64:65]"); a("s_memrealtime s[66:67]")
        a("s_waitcnt lgkmcnt(0)")
    for it in reads(0): rd_issue(0, it)
    a("v_and_b32 v10, 15, v1")
    a("v_lshlrev_b32 v10, 1, v10")
    HP = 8192 if HTP else 4096
    a(f"v_lshl_add_u32 v11, v3, {15 if HTP else 14}, v10")
    a("s_lshl_b32 s30, s4, 7")
    a("s_lshl_b32 s31, s27, 5")
    a("s_add_u32 s30, s30, s31")
    a("s_and_b32 s31, s24, 1")
    a("s_lshl_b32 s31, s31, 4")
    a("s_add_u32 s30, s30, s31")
    a("s_mov_b32 s38, s30")
    a("s_lshl_b32 s30, s30, 1")
    K5T = [o for o in OPT if o.startswith('k5t=')]
    if K5T:
        TB1, TD, TW = (int(x) for x in K5T[0][4:].split('.'))
        HK = opt_int('hk', 192)
        assert SK == 2 and NS == 4 and HK in (192, 96)
        srd(a, 44, 16, 17, 4608 * 4096)
        a("v_lshrrev_b32 v16, 3, v1")
        if HK == 192: a("s_lshl_b32 s48, s23, 3")
        else:
            a("s_lshl_b32 s48, s23, 2")
            a("v_and_b32 v16, 3, v16")
        a("s_mul_i32 s49, s25, 576")
        a("s_add_u32 s48, s48, s49")
        a("v_add_u32 v16, s48, v16")
        a("v_and_b32 v17, 7, v1")
        a("v_lshlrev_b32 v17, 7, v17")
        a("s_lshl_b32 s48, s25, 10")
        a("v_add_u32 v17, s48, v17")
        a(f"s_mul_i32 s48, s24, {2304*4096}")
        a(f"s_movk_i32 s49, {256*TD}")
    srd(a, 16, 18, 19, 2048 * 2)
    a(f"buffer_load_ushort v{BV}, v10, s[16:19], s30 offen")
    a(f"s_mul_i32 s31, s5, {16*MF}")
    a("s_lshr_b32 s33, s24, 1")
    a("s_lshl_b32 s33, s33, 4")
    a("s_add_u32 s31, s31, s33")
    a("s_mov_b32 s39, s31")
    a(f"s_lshl_b32 s31, s31, {13 if HTP else 12}")
    if HTP:
        a("s_lshr_b32 s33, s30, 9")
        a("s_lshl_b32 s33, s33, 10")
        a("s_and_b32 s30, s30, 511")
        a("s_add_u32 s30, s30, s33")
    a("s_add_u32 s30, s30, s31")
    a(f"s_add_u32 s30, s30, {WS_HTP + 512 if HTP else WS_HT}")
    for i in range(NKEEP):
        for r in range(4):
            a(f"buffer_load_ushort v{HV+4*i+r}, v11, s[12:15], s30 offen")
            if r < 3: a(f"s_add_u32 s30, s30, {HP}")
        if i < NKEEP - 1: a(f"s_add_u32 s30, s30, {(8*SK - 3)*HP}")
    nl = (NSTG - 1) // NS
    if NS % 2 == 0 or True:
        XW = opt_int('xwarm', 0)
        if XW:
            a("v_lshrrev_b32 v12, 3, v1")
            a("v_cmp_le_u32 vcc, 3, v12")
            a("v_addc_co_u32 v12, vcc, 0, v12, vcc")
            a("v_and_b32 v13, 7, v1")
            a("v_lshlrev_b32 v13, 4, v13")
            a("v_lshl_add_u32 v12, v12, 7, v13")
            a(f"s_mul_i32 s40, s3, {4*SK}")
            a("s_add_u32 s40, s40, s27")
            a("s_xor_b32 s41, s24, 1")
            a("s_lshl_b32 s41, s41, 2")
            a("s_add_u32 s40, s40, s41")
            a(f"s_mul_i32 s40, s40, {NT_}")
            a("s_add_u32 s40, s40, s24")
            a("s_lshl_b32 s40, s40, 11")
            a(f"s_add_u32 s40, s40, {WS_XB}")
        a(f"s_movk_i32 s31, {nl}")
        a.label("K5_CLOOP")
        if XW:
            assert SK == 2
            a(f"s_cmp_lg_u32 s31, {XW}")
            a("s_cbranch_scc1 K5_NOXW")
            for i in range(NKEEP):
                a("buffer_load_dword v13, v12, s[12:15], s40 offen sc1")
                if i < NKEEP - 1: a("s_add_u32 s40, s40, 4096")
            a.label("K5_NOXW")
        if K5T:
            if TW >= 0: a(f"s_cmp_lg_u32 s27, {TW}")
            else:
                a("s_and_b32 s50, s31, 3")
                a("s_cmp_lg_u32 s27, s50")
            a("s_cbranch_scc1 K5_NOT")
            a(f"s_cmp_lt_u32 s49, {256*TB1}")
            a("s_cbranch_scc1 K5_NOT")
            a(f"s_cmp_ge_u32 s49, 2304")
            a("s_cbranch_scc1 K5_NOT")
            a("v_add_u32 v18, s49, v16")
            a("v_subrev_u32 v19, 2304, v18")
            a("v_min_u32 v18, v18, v19")
            a("v_lshl_add_u32 v18, v18, 12, v17")
            if HK == 96:
                a("s_mov_b32 exec_hi, 0")
            a("buffer_load_dword v20, v18, s[44:47], s48 offen")
            if HK == 96:
                a("s_mov_b32 exec_hi, -1")
            a.label("K5_NOT")
            a("s_add_u32 s49, s49, 256")
        q.done = q.issued - NRD
        for n in range(2 * NS): half(n)
        a("s_sub_u32 s31, s31, 1")
        a("s_cmp_lg_u32 s31, 0")
        a("s_cbranch_scc1 K5_CLOOP")
        q.done = q.issued - NRD
        for n in range(2 * NS * nl, 2 * NSTG): half(n)
    a("s_waitcnt vmcnt(0)")
    if CLK:
        a("s_memtime s[68:69]"); a("s_memrealtime s[70:71]")
        a("s_waitcnt lgkmcnt(0)")
        a("s_sub_u32 s68, s68, s64")
        a("s_sub_u32 s70, s70, s66")
        a("v_mov_b32 v24, s68"); a("v_mov_b32 v25, s70"); a("v_mov_b32 v26, s66"); a("v_mov_b32 v27, 0")
        a("s_lshl_b32 s72, s2, 6")
        a("s_lshl_b32 s73, s27, 4")
        a("s_add_u32 s72, s72, s73")
        a(f"s_add_u32 s72, s72, {0x2900000 + 0x10000}")
        a("v_mov_b32 v28, 0")
        a("buffer_store_dwordx4 v[24:27], v28, s[12:15], s72 offen")

    a("v_lshrrev_b32 v10, 3, v1")
    a("v_cmp_le_u32 vcc, 3, v10")
    a("v_addc_co_u32 v10, vcc, 0, v10, vcc")
    a("v_and_b32 v11, 7, v1")
    a("v_lshlrev_b32 v11, 4, v11")
    a("v_lshl_add_u32 v10, v10, 7, v11")
    a(f"s_mul_i32 s30, s3, {4*SK}")
    a("s_add_u32 s30, s30, s27")
    a("s_lshl_b32 s34, s30, 7")
    a(f"s_add_u32 s34, s34, {WS_FL}")
    a(f"s_mul_i32 s30, s30, {NT_*2048}")
    a(f"s_add_u32 s30, s30, {WS_XB}")
    SRCS = 4 * NT_ * 2048
    srd(a, 16, 20, 21, 2048 * 576 * 2)
    a("v_and_b32 v9, 15, v1")
    a("v_lshlrev_b32 v12, 9, v9")
    a("v_mul_u32_u24 v9, 1152, v9")
    O16 = 'o16' in OPT
    if O16:
        assert SK == 2 and 'sent' not in OPT
        a("v_and_b32 v15, 1, v3")
        a("v_lshl_add_u32 v9, v15, 5, v9")
        a("v_lshrrev_b32 v15, 1, v3")
        a("v_lshl_add_u32 v9, v15, 4, v9")
    else:
        a("v_lshl_add_u32 v9, v3, 3, v9")
    a("s_mul_i32 s38, s38, 1152")
    a("s_lshl_b32 s39, s39, 1")
    a("s_add_u32 s38, s38, s39")
    a(f"v_lshlrev_b32 v{BV}, 16, v{BV}")
    NOX = 'nox' in OPT
    XST = 'xst' in OPT
    SENT = 'sent' in OPT
    XLD = {0: "sc1", 1: "sc0 sc1", 2: "sc1 nt", 3: "sc0 sc1 nt"}[opt_int('xld', 0)]
    XSTO = {0: "sc1", 1: "sc0 sc1", 2: "sc1 nt", 3: "sc0 sc1 nt"}[opt_int('xsto', 0)]
    XDL = opt_int('xdl', -1)
    def xst(i):
        if XST: a(f"s_memrealtime s[{40+2*i}:{41+2*i}]")
    xst(0)
    for kq in range(SK):
        if kq < SK - 1:
            a(f"s_cmp_lg_u32 s24, {kq}")
            a(f"s_cbranch_scc1 K5_X{kq+1}")
        keep = [t for t in range(NT_) if t % SK == kq]
        send = [t for t in range(NT_) if t % SK != kq]
        a(f"s_add_u32 s31, s30, {kq*SRCS}")
        prev = 0
        for t in send:
            while (t - prev) >= 2:
                a(f"s_add_u32 s31, s31, {2*2048}"); prev += 2
            acc = ACC + 4 * t
            if SENT:
                for r_ in range(4): a(f"v_min_u32 v{acc+r_}, -2, v{acc+r_}")
            if not NOX: a(f"buffer_store_dwordx4 v[{acc}:{acc+3}], v10, s[12:15], s31 offen offset:{(t-prev)*2048} {XSTO}")
        xst(1)
        if SENT and XDL == 0: a("s_waitcnt vmcnt(0)")
        if SENT and XDL > 0: a(f"s_sleep {XDL}")
        if SENT:
            srcs = [s_ for s_ in range(SK) if s_ != kq]
            NSRC = SK - 1
            nk = len(keep)
            a("s_mov_b32 s36, 0x100000")
            a.label(f"K5_P{kq}")
            for i, t in enumerate(keep):
                for k, s_ in enumerate(srcs):
                    off = s_ * SRCS + t * 2048
                    r = 32 + 4 * (NSRC * i + k)
                    a(f"s_add_u32 s31, s30, {off}")
                    a(f"buffer_load_dwordx4 v[{r}:{r+3}], v10, s[12:15], s31 offen {XLD}")
            a("s_sub_u32 s36, s36, 1")
            a("s_cmp_eq_u32 s36, 0")
            a("s_waitcnt vmcnt(0)")
            a(f"s_cbranch_scc1 K5_G{kq}")
            nw = 4 * NSRC * nk
            a("v_max3_u32 v13, v32, v33, v34")
            j = 3
            while j < nw:
                if j + 1 < nw: a(f"v_max3_u32 v13, v13, v{32+j}, v{33+j}"); j += 2
                else: a(f"v_max_u32 v13, v13, v{32+j}"); j += 1
            a("v_cmp_eq_u32 vcc, -1, v13")
            a("s_cmp_lg_u64 vcc, 0")
            a(f"s_cbranch_scc1 K5_P{kq}")
            a.label(f"K5_G{kq}")
            xst(2); xst(3)
            for i, t in enumerate(keep):
                acc = ACC + 4 * t
                if i == 0: xst(4)
                if i == nk - 1: xst(5)
                for k in range(NSRC):
                    r = 32 + 4 * (NSRC * i + k)
                    a(f"v_pk_add_f32 v[{acc}:{acc+1}], v[{acc}:{acc+1}], v[{r}:{r+1}]")
                    a(f"v_pk_add_f32 v[{acc+2}:{acc+3}], v[{acc+2}:{acc+3}], v[{r+2}:{r+3}]")
                O = 24 + 2 * (i % 2)
                for p in range(2):
                    x = 16 + 4 * p
                    a(f"v_cvt_pk_bf16_f32 v{x+2}, v{acc+2*p}, v{acc+2*p+1}")
                    a(f"v_lshlrev_b32 v{x}, 16, v{x+2}")
                    a(f"v_and_b32 v{x+1}, 0xffff0000, v{x+2}")
                    a(f"v_add_f32 v{x}, v{x}, v{BV}")
                    a(f"v_add_f32 v{x+1}, v{x+1}, v{BV}")
                    a(f"v_cvt_pk_bf16_f32 v{x+2}, v{x}, v{x+1}")
                    a(f"v_lshlrev_b32 v{x}, 16, v{x+2}")
                    a(f"v_and_b32 v{x+1}, 0xffff0000, v{x+2}")
                    a(f"v_lshlrev_b32 v{x+2}, 16, v{HV+4*i+2*p}")
                    a(f"v_lshlrev_b32 v{x+3}, 16, v{HV+4*i+2*p+1}")
                    a(f"v_add_f32 v{x}, v{x}, v{x+2}")
                    a(f"v_add_f32 v{x+1}, v{x+1}, v{x+3}")
                    a(f"v_cvt_pk_bf16_f32 v{O+p}, v{x}, v{x+1}")
                a(f"buffer_store_dwordx2 v[{O}:{O+1}], v9, s[16:19], s38 offen offset:{16*SK*i}")
            if XST:
                a("s_waitcnt vmcnt(0)")
                xst(6)
                a("s_waitcnt lgkmcnt(0)")
                for i in range(7): a(f"v_mov_b32 v{32+i}, s{40+2*i}")
                a(f"v_mov_b32 v39, s36")
                a("s_lshl_b32 s72, s2, 2")
                a("s_add_u32 s72, s72, s27")
                a("s_lshl_b32 s72, s72, 5")
                a(f"s_add_u32 s72, s72, {0x2800000}")
                a("v_mov_b32 v28, 0")
                a("s_mov_b64 exec, 1")
                a("buffer_store_dwordx4 v[32:35], v28, s[12:15], s72 offen")
                a("buffer_store_dwordx4 v[36:39], v28, s[12:15], s72 offen offset:16")
                a("s_mov_b64 exec, -1")
            a("s_branch K5_END")
            if kq < SK - 1: a.label(f"K5_X{kq+1}")
            continue
        a("s_waitcnt vmcnt(0)")
        xst(2)
        a("v_mov_b32 v13, 1")
        a("v_mov_b32 v14, 0")
        a(f"s_add_u32 s31, s34, {kq*512}")
        a("s_mov_b64 exec, 1")
        a("buffer_store_dword v13, v14, s[12:15], s31 offen sc1")
        a(f"s_mov_b64 exec, {(1 << SK) - 1}")
        needm = ((1 << SK) - 1) & ~(1 << kq)
        a("s_mov_b32 s36, 0x100000")
        a.label(f"K5_P{kq}")
        a("s_sub_u32 s36, s36, 1")
        a("s_cmp_eq_u32 s36, 0")
        a(f"s_cbranch_scc1 K5_G{kq}")
        a("buffer_load_dword v13, v12, s[12:15], s34 offen sc1")
        a("s_waitcnt vmcnt(0)")
        a("v_cmp_ne_u32 vcc, 0, v13")
        a(f"s_and_b32 s35, vcc_lo, {needm}")
        a(f"s_cmp_eq_u32 s35, {needm}")
        a(f"s_cbranch_scc1 K5_G{kq}")
        a("s_sleep 1")
        a(f"s_branch K5_P{kq}")
        a.label(f"K5_G{kq}")
        a("s_mov_b64 exec, -1")
        xst(3)
        srcs = [s_ for s_ in range(SK) if s_ != kq]
        NSRC = SK - 1
        for i, t in enumerate(keep):
            for k, s_ in enumerate(srcs):
                off = s_ * SRCS + t * 2048
                r = 32 + 4 * (NSRC * i + k)
                a(f"s_add_u32 s31, s30, {off}")
                a(f"buffer_load_dwordx4 v[{r}:{r+3}], v10, s[12:15], s31 offen sc1")
        nk = len(keep)
        for i, t in enumerate(keep):
            acc = ACC + 4 * t
            a(f"s_waitcnt vmcnt({NSRC*(nk-1-i) + (i // 2 if O16 else i)})")
            if i == 0: xst(4)
            if i == nk - 1: xst(5)
            for k in range(NSRC):
                r = 32 + 4 * (NSRC * i + k)
                a(f"v_pk_add_f32 v[{acc}:{acc+1}], v[{acc}:{acc+1}], v[{r}:{r+1}]")
                a(f"v_pk_add_f32 v[{acc+2}:{acc+3}], v[{acc+2}:{acc+3}], v[{r+2}:{r+3}]")
            O = 24 + 2 * (i % 2)
            if O16: O = 24 + 4 * ((i // 2) % 2) + 2 * (i % 2)
            for p in range(2):
                x = 16 + 4 * p
                a(f"v_cvt_pk_bf16_f32 v{x+2}, v{acc+2*p}, v{acc+2*p+1}")
                a(f"v_lshlrev_b32 v{x}, 16, v{x+2}")
                a(f"v_and_b32 v{x+1}, 0xffff0000, v{x+2}")
                a(f"v_add_f32 v{x}, v{x}, v{BV}")
                a(f"v_add_f32 v{x+1}, v{x+1}, v{BV}")
                a(f"v_cvt_pk_bf16_f32 v{x+2}, v{x}, v{x+1}")
                a(f"v_lshlrev_b32 v{x}, 16, v{x+2}")
                a(f"v_and_b32 v{x+1}, 0xffff0000, v{x+2}")
                a(f"v_lshlrev_b32 v{x+2}, 16, v{HV+4*i+2*p}")
                a(f"v_lshlrev_b32 v{x+3}, 16, v{HV+4*i+2*p+1}")
                a(f"v_add_f32 v{x}, v{x}, v{x+2}")
                a(f"v_add_f32 v{x+1}, v{x+1}, v{x+3}")
                a(f"v_cvt_pk_bf16_f32 v{O+p}, v{x}, v{x+1}")
            if O16:
                if i % 2 == 1:
                    B_ = O - 2
                    a(f"v_permlane16_swap_b32 v{B_}, v{B_+2}")
                    a(f"v_permlane16_swap_b32 v{B_+1}, v{B_+3}")
                    a(f"buffer_store_dwordx4 v[{B_}:{B_+3}], v9, s[16:19], s38 offen offset:{32*(i-1)}" + (" sc1" if i // 2 < opt_int('osc1', 0) else ""))
            else:
                a(f"buffer_store_dwordx2 v[{O}:{O+1}], v9, s[16:19], s38 offen offset:{16*SK*i}")
        if XST:
            a("s_waitcnt vmcnt(0)")
            xst(6)
            a("s_waitcnt lgkmcnt(0)")
            for i in range(7): a(f"v_mov_b32 v{32+i}, s{40+2*i}")
            a(f"v_mov_b32 v39, s36")
            a("s_lshl_b32 s72, s2, 2")
            a("s_add_u32 s72, s72, s27")
            a("s_lshl_b32 s72, s72, 5")
            a(f"s_add_u32 s72, s72, {0x2800000}")
            a("v_mov_b32 v28, 0")
            a("s_mov_b64 exec, 1")
            a("buffer_store_dwordx4 v[32:35], v28, s[12:15], s72 offen")
            a("buffer_store_dwordx4 v[36:39], v28, s[12:15], s72 offen offset:16")
            a("s_mov_b64 exec, -1")
        a("s_branch K5_END")
        if kq < SK - 1: a.label(f"K5_X{kq+1}")

    a.label("K5_PROD")
    a("s_sub_u32 s28, s27, 4")
    srd(a, 8, 16, 17, 4608 * 4096)
    a("s_movk_i32 s30, 4096")
    a("s_lshl_b32 s32, s4, 8")
    if 'nocopy5' not in OPT:
        a("s_and_b32 s31, s4, 3")
        a("s_cmp_lg_u32 s31, 1")
        a("s_cbranch_scc1 K5_NOCP")
        a(f"s_movk_i32 s30, {W2D_PITCH}")
        a("s_lshr_b32 s32, s4, 2")
        a("s_lshl_b32 s32, s32, 9")
        a(f"s_add_u32 s32, s32, {WS_W2D}")
        srd(a, 8, 6, 7, WS_END3)
        a.label("K5_NOCP")
    a("s_lshl_b32 s57, s30, 6")
    a(f"s_mul_i32 s58, s24, {NSTG}")
    a("s_mul_i32 s59, s25, 9")
    if 'jrot' in OPT:
        JR = opt_int('jrs', NSTG * 2 // NMT)
        a(f"s_mul_i32 s60, s5, {JR}")
        a("s_lshr_b32 s60, s60, 1")
        a("s_add_u32 s59, s59, s60")
        a(f"s_sub_u32 s60, s59, {NSTG}")
        a("s_min_u32 s59, s59, s60")
        a(f"s_sub_u32 s60, s59, {NSTG}")
        a("s_min_u32 s59, s59, s60")
    a("s_add_u32 s58, s58, s59")
    a("s_mul_i32 s60, s58, s57")
    a("s_add_u32 s32, s32, s60")
    a(f"s_mul_i32 s33, s58, {12*ABLK}")
    a(f"s_add_u32 s33, s33, {WS_G - 4096}")
    a(f"s_sub_u32 s58, {NSTG}, s59")
    a(f"s_mul_i32 s63, s57, {NSTG}")
    a("v_and_b32 v4, 15, v1")
    a("v_lshrrev_b32 v5, 1, v4")
    a("v_and_b32 v4, 1, v4")
    a("s_lshl_b32 s29, s28, 4")
    a("v_add_u32 v6, s29, v3")
    a("v_mul_lo_u32 v6, v6, s30")
    a("v_lshl_add_u32 v6, v4, 4, v6")
    for qq in range(4):
        a(f"v_or_b32 v7, {(qq & 1) << 2}, v3")
        a("v_xor_b32 v7, v7, v5")
        a(f"v_lshl_add_u32 v{10+qq}, v7, 5, v6")
        if qq:
            a(f"s_mul_i32 s31, s30, {4*qq}")
            a(f"s_sub_u32 s31, s31, {1024*qq}")
            a(f"v_add_u32 v{10+qq}, s31, v{10+qq}")
    a("v_lshrrev_b32 v16, 3, v1")
    a("v_lshlrev_b32 v16, 10, v16")
    a("v_and_b32 v17, 7, v1")
    a("v_lshl_add_u32 v16, v17, 4, v16")
    if SK == 4:
        a("s_mul_i32 s34, s28, 5")
        a("s_lshl_b32 s35, s28, 2")
        a("s_add_u32 s35, s35, 2")
        a("s_cmp_lt_u32 s28, 2")
        a("s_cselect_b32 s34, s34, s35")
        NAP = 5
    else:
        a("s_mul_i32 s34, s28, 3")
        NAP = 3
    a(f"s_mul_i32 s61, s5, {MF}")
    for i in range(NAP):
        a(f"s_add_u32 s35, s34, {i}")
        a(f"s_cmp_ge_u32 s35, {MF}")
        a("s_cselect_b32 s36, 1, 0")
        a(f"s_mul_i32 s37, s36, {MF}")
        a("s_sub_u32 s35, s35, s37")
        a("s_add_u32 s35, s35, s61")
        a("s_mul_i32 s37, s35, 43")
        a("s_lshr_b32 s37, s37, 8")
        a("s_mul_i32 s62, s37, 6")
        a("s_sub_u32 s35, s35, s62")
        a("s_cmp_ge_u32 s35, 3")
        a("s_addc_u32 s35, s35, 0")
        a("s_lshl_b32 s35, s35, 7")
        a("s_lshl_b32 s37, s37, 1")
        a("s_add_u32 s37, s37, s36")
        a(f"s_lshl_b32 s37, s37, 13")
        a("s_add_u32 s35, s35, s37")
        a(f"s_add_u32 s35, s35, {4096 - 1024*(i % 4)}")
        a(f"v_add_u32 v{17+i}, s35, v16")
    for s_ in range(NS):
        a("s_lshl_b32 s30, s28, 12")
        a(f"s_add_u32 s{40+s_}, s30, {s_*S_W}")
        a("s_lshl_b32 s30, s34, 10")
        a(f"s_add_u32 s{46+s_}, s30, {S_ACT0 + s_*S_A}")
        a(f"s_add_u32 s{66+s_}, s{46+s_}, 4096")
    def issue(k, na):
        sl = k % NS
        a(f"s_mov_b32 m0, s{40+sl}")
        for qq in range(4): a(f"buffer_load_dwordx4 v{10+qq}, s[8:11], s32 offen offset:{1024*qq} lds")
        a(f"s_mov_b32 m0, s{46+sl}")
        for i in range(min(na, 4)): a(f"buffer_load_dwordx4 v{17+i}, s[12:15], s33 offen offset:{1024*i} lds")
        for i in range(opt_int('dup5', 0)): a(f"buffer_load_dwordx4 v{17+i}, s[12:15], s33 offen offset:{1024*i} lds")
        if na == 5:
            a(f"s_mov_b32 m0, s{66+sl}")
            a("buffer_load_dwordx4 v21, s[12:15], s33 offen lds")
        a("s_add_u32 s32, s32, s57")
        a(f"s_add_u32 s33, s33, {12*ABLK}")
        a("s_sub_u32 s58, s58, 1")
        a("s_cmp_eq_u32 s58, 0")
        a("s_cselect_b32 s59, s63, 0")
        a(f"s_cselect_b32 s64, {NSTG*12*ABLK}, 0")
        a("s_sub_u32 s32, s32, s59")
        a("s_sub_u32 s33, s33, s64")
    EB = opt_int('eb5', 2)
    variants = (5, 4) if SK == 4 else (3,)
    if SK == 4:
        a("s_cmp_ge_u32 s28, 2")
        a("s_cbranch_scc1 K5_PR4")
    for na in variants:
        PPS = 4 + na + opt_int('dup5', 0)
        for k in range(EB): issue(k, na)
        a(f"s_waitcnt vmcnt({(EB-1)*PPS})")
        a("s_barrier")
        for k in range(EB, NS): issue(k, na)
        XL = 0
        for k in range(1, NSTG):
            a(f"s_waitcnt vmcnt({(min(k + NS - 2, NSTG - 1) - k) * PPS + XL})")
            a("s_barrier")
            if k + NS - 1 < NSTG: issue(k + NS - 1, na)
            if k + NS - 1 == NSTG - 1 and 'cpff' in OPT:
                a("s_lshl_b32 s70, s28, 13")
                code_pf(a, f"F{na}", "k5_kernel", "K5_PROD", [0], 72, 1, 24, 26, backward=True, schunk=70)
                XL = 1
        a("s_branch K5_END")
        if na == 5: a.label("K5_PR4")
    if PF[5].nwg:
        a.label("K5_PREF")
        gen_prefetch(a, 5, K5S_NWG, "K5_END")
    a.label("K5_END")
    kst_end(a, 4, NG)
    a("s_endpgm")
    return name, BV + 4, K5S_LDS
```

```python
from gen import *
import os
def gen_k6(a):
    name = "k6_kernel"
    kernel_head(a, name)
    a("s_cmp_ge_u32 s2, 1")
    a("s_cbranch_scc1 K6_END")
    a("s_load_dwordx2 s[6:7], s[0:1], 112")
    a("s_load_dwordx2 s[8:9], s[0:1], 104")
    a("v_lshlrev_b32 v1, 7, v0")
    a("v_lshlrev_b32 v2, 2, v0")
    a("v_mov_b32 v3, 0")
    a("v_and_b32 v4, 1, v0")
    a("v_cmp_eq_u32 vcc, 0, v4")
    a("v_cndmask_b32 v4, 0, -1, vcc")
    a("ds_write_b32 v2, v4")
    a("s_waitcnt lgkmcnt(0)")
    srd(a, 12, 6, 7, 0x4000000)
    srd(a, 16, 8, 9, 256)
    a(f"s_mov_b32 s20, {STAMP_BASE}")
    a("buffer_load_dword v5, v3, s[12:15], s20 offen")
    a("s_waitcnt vmcnt(0) lgkmcnt(0)")
    a("v_subrev_u32 v5, 500, v5")
    a("s_barrier")
    for ki, (kidx, g, nw, m0, m1) in enumerate([(0, 256, 12, 64, 256), (2, 384, 3, 0, 256), (3, 256, 8, 0, 216), (4, 256, 8, 0, 192)]):
        for half in range(2 if g > 256 else 1):
            a(f"s_mov_b32 s20, {STAMP_BASE + kidx*0x20000 + half*256*128}")
            for w in range(nw): a(f"buffer_load_dwordx2 v[{10+2*w}:{11+2*w}], v1, s[12:15], s20 offen offset:{8*w}")
            a("s_waitcnt vmcnt(0)")
            for w in range(nw):
                a(f"v_sub_u32 v{10+2*w}, v{10+2*w}, v5")
                a(f"v_sub_u32 v{11+2*w}, v{11+2*w}, v5")
            a("v_mov_b32 v6, v10"); a("v_mov_b32 v7, v11")
            for w in range(1, nw):
                a(f"v_min_u32 v6, v6, v{10+2*w}")
                a(f"v_max_u32 v7, v7, v{11+2*w}")
            a(f"v_add_u32 v8, {256*half}, v0")
            a(f"v_cmp_gt_u32 vcc, {g}, v8")
            a("v_cndmask_b32 v6, -1, v6, vcc")
            a("v_cndmask_b32 v7, 0, v7, vcc")
            a(f"v_subrev_u32 v9, {m0}, v8")
            a(f"v_cmp_gt_u32 vcc, {m1-m0}, v9")
            a("v_cndmask_b32 v40, 0, v7, vcc")
            a("v_cndmask_b32 v41, -1, v7, vcc")
            a("v_cndmask_b32 v42, v7, 0, vcc")
            a(f"v_mov_b32 v43, {16*ki}")
            a("ds_min_u32 v43, v6")
            a("ds_max_u32 v43, v40 offset:4")
            a("ds_min_u32 v43, v41 offset:8")
            a("ds_max_u32 v43, v42 offset:12")
    a("s_waitcnt lgkmcnt(0)")
    a("s_barrier")
    a("ds_read_b32 v6, v2")
    a("s_waitcnt lgkmcnt(0)")
    a("v_subrev_u32 v6, 500, v6")
    a("v_cmp_gt_u32 vcc, 16, v0")
    a("s_and_b64 exec, exec, vcc")
    a("s_cbranch_execz K6_END")
    a("buffer_store_dword v6, v2, s[16:19], 0 offen")
    a.label("K6_END")
    a("s_endpgm")
    return name, 64, 1024
```

```python
from gen import *
from gen_k2 import *
from gen_gemm import *
from gen_k12 import *
from gen_k12b import *
from gen_k12c import *
from gen_k5s import *
from gen_k6 import *
def main():
    import sys
    if 'fuse4' in os.environ.get('GOPT', '').split(','):
        launches = [("k1_kernel", 256, 768, K12C_LDS),
                    ("k4_kernel", GC(1).NWG + PF[4].nwg, 512, GC(1).LDS), ("k5_kernel", K5S_NWG + PF[5].nwg, 512, K5S_LDS)]
        txt = build([gen_k12c, gen_k4, gen_k5s], launches)
    elif 'k5s' in os.environ.get('GOPT', '').split(','):
        launches = [("k1_kernel", 256, 768, K12C_LDS), ("k3_kernel", K3_NWG + PF[3].nwg, 192, 1088),
                    ("k4_kernel", GC(1).NWG + PF[4].nwg, 512, GC(1).LDS), ("k5_kernel", K5S_NWG + PF[5].nwg, 512, K5S_LDS)]
        if 'k6' in os.environ.get('GOPT', '').split(','):
            txt = build([gen_k12c, gen_k3, gen_k4, gen_k5s, gen_k6], launches + [("k6_kernel", 1, 256, 1024)])
        else:
            txt = build([gen_k12c, gen_k3, gen_k4, gen_k5s], launches)
    elif 'fuse3' in os.environ.get('GOPT', '').split(','):
        launches = [("k1_kernel", 256, 768, K12C_LDS), ("k3_kernel", K3_NWG + PF[3].nwg, 192, 1088),
                    ("k4_kernel", GC(1).NWG + PF[4].nwg, 512, GC(1).LDS), ("k5_kernel", GC(2).NWG + PF[5].nwg, 512, GC(2).LDS)]
        txt = build([gen_k12c, gen_k3, gen_k4, gen_k5], launches)
    elif 'fuse2' in os.environ.get('GOPT', '').split(','):
        launches = [("k1_kernel", 256, 768, K12B_LDS), ("k3_kernel", K3_NWG + PF[3].nwg, 192, 1088),
                    ("k4_kernel", GC(1).NWG + PF[4].nwg, 512, GC(1).LDS), ("k5_kernel", GC(2).NWG + PF[5].nwg, 512, GC(2).LDS)]
        txt = build([gen_k12b, gen_k3, gen_k4, gen_k5], launches)
    elif 'fuse' in os.environ.get('GOPT', '').split(','):
        launches = [("k1_kernel", 640 + PF[1].nwg, 256, K12_LDS), ("k3_kernel", K3_NWG + PF[3].nwg, 192, 1088),
                    ("k4_kernel", GC(1).NWG + PF[4].nwg, 512, GC(1).LDS), ("k5_kernel", GC(2).NWG + PF[5].nwg, 512, GC(2).LDS)]
        txt = build([gen_k12, gen_k3, gen_k4, gen_k5], launches)
    else:
        launches = [("k1_kernel", 640 + PF[1].nwg, 256, 38912), ("k2_kernel", 576 + PF[2].nwg, 256, 33280+512+4096), ("k3_kernel", K3_NWG + PF[3].nwg, 192, 1088),
                    ("k4_kernel", GC(1).NWG + PF[4].nwg, 512, GC(1).LDS), ("k5_kernel", GC(2).NWG + PF[5].nwg, 512, GC(2).LDS)]
        txt = build([gen_k1, gen_k2, gen_k3, gen_k4, gen_k5], launches)
    open('test.s', 'w').write(txt)
```

```python
from gen import *
import os, math
OPT = os.environ.get('GOPT', '').split(',')
def opt_int(name, default):
    for o in OPT:
        if o.startswith(name + '='): return int(o.split('=')[1])
    return default

ASLOT = 12288

class GC:
    def __init__(s, kind):
        s.kind = kind
        s.TW = 128 if kind == 1 else 64
        s.NJ = s.TW // 32
        s.NS = opt_int('ns1', 4) if kind == 1 else opt_int('ns2', 6)
        s.PD = opt_int('pd1', 10) if kind == 1 else opt_int('pd2', 12)
        s.nstg = 32 if kind == 1 else 72
        s.ntn = 36 if kind == 1 else 32
        s.WPITCH = 9216 if kind == 1 else 4096
        s.WTEST = opt_int('wp%d' % kind, 0)
        if s.WTEST: s.WPITCH = s.WTEST if s.WTEST > 0 else s.TW * 2
        s.ROWB = s.TW * 2
        s.WSLOT = 64 * s.ROWB
        s.ACT0 = s.NS * s.WSLOT
        s.HT0 = s.ACT0 + s.NS * ASLOT
        s.LDS = s.HT0 + (96 * s.ROWB if kind == 2 else 0)
        s.HTOV = s.LDS > 163840
        if s.HTOV:
            s.HT0 = s.ACT0
            s.LDS = s.ACT0 + s.NS * ASLOT
        if DYN: s.LDS += 64
        s.NWG = 6 * s.ntn
        s.per_xcd = s.NWG // 8
        s.ACTBASE = WS_HN if kind == 1 else WS_G
        s.NWP = s.WSLOT // 4096
        s.DUP = opt_int('dup4', 0) if kind == 1 else 0
        s.PPS = (0 if 'noW' in OPT else s.NWP) + (0 if 'noA' in OPT else 3) + s.DUP

def gen_gemm(a, kind, name):
    C = GC(kind)
    NS, TW, NJ, nstg, WPITCH, ROWB, WSLOT, ACT0, HT0, NWG = C.NS, C.TW, C.NJ, C.nstg, C.WPITCH, C.ROWB, C.WSLOT, C.ACT0, C.HT0, C.NWG
    kernel_head(a, name)
    P = name.upper()[:2]
    END = f"{P}_END"; PROD = f"{P}_PROD"; PREF = f"{P}_PREF"
    kst_begin(a)
    NG = NWG + PF[3 + kind].nwg
    a(f"s_cmp_ge_u32 s2, {NG}")
    a(f"s_cbranch_scc1 {END}")
    if not DYN:
        a(f"s_cmp_ge_u32 s2, {NWG}")
        a(f"s_cbranch_scc1 {PREF}")
    a("s_load_dwordx2 s[6:7], s[0:1], 112")
    a(f"s_load_dwordx4 s[16:19], s[0:1], {64 if kind == 1 else 80}")
    a("s_load_dwordx2 s[20:21], s[0:1], 96")
    a("v_lshrrev_b32 v2, 6, v0")
    a("v_readfirstlane_b32 s27, v2")
    if DYN:
        a("s_waitcnt lgkmcnt(0)")
        dyn_assign(a, 2 + kind, NG // 8, C.LDS - 64, 27)
        a(f"s_cmp_ge_u32 s2, {NWG}")
        a(f"s_cbranch_scc1 {PREF}")
    a("s_and_b32 s22, s2, 7")
    a("s_lshr_b32 s23, s2, 3")
    if ('map%d' % kind) in OPT:
        a("s_mul_i32 s4, s23, 171")
        a("s_lshr_b32 s4, s4, 9")
        a("s_mul_i32 s5, s4, 3")
        a("s_sub_u32 s5, s23, s5")
        a("s_and_b32 s24, s22, 1")
        a("s_mul_i32 s24, s24, 3")
        a("s_add_u32 s5, s5, s24")
        a("s_lshr_b32 s24, s22, 1")
        a(f"s_mul_i32 s24, s24, {C.ntn // 4}")
        a("s_add_u32 s4, s4, s24")
    else:
        a(f"s_mul_i32 s3, s22, {C.per_xcd}")
        a("s_mul_i32 s24, s3, 171")
        a("s_lshr_b32 s24, s24, 10")
        a("s_add_u32 s3, s3, s23")
        a("s_mul_i32 s4, s3, 171")
        a("s_lshr_b32 s4, s4, 10")
        a("s_mul_i32 s5, s4, 6")
        a("s_sub_u32 s5, s3, s5")
    a("v_and_b32 v1, 63, v0")
    if 'fh4' not in OPT or kind != 1:
        a("v_lshrrev_b32 v2, 6, v0")
        a("v_readfirstlane_b32 s27, v2")
    a("v_lshrrev_b32 v3, 4, v1")
    BST = 'bst' in OPT
    FH = 'fh4' in OPT and kind == 1
    if FH:
        assert not C.WTEST and not DYN and 'nocopy' not in OPT
        a("s_cmp_lt_u32 s27, 4")
        a(f"s_cbranch_scc1 {P}_CONS")
        mark0 = len(a.lines)
        a.label(f"{P}_CONS")
        a("s_waitcnt lgkmcnt(0)")
        srd(a, 12, 6, 7, WS_END)
    else:
        a("s_waitcnt lgkmcnt(0)")
        if BST: a("s_memrealtime s[74:75]")
        if C.WTEST:
            a("s_add_u32 s14, s6, 0x4000000"); a("s_addc_u32 s15, s7, 0")
            srd(a, 8, 14, 15, 0x4000000)
        else:
            srd(a, 8, 16, 17, 2048 * 4608 * 2)
        srd(a, 12, 6, 7, WS_END)
        a("s_cmp_ge_u32 s27, 4")
        a(f"s_cbranch_scc1 {PROD}")
    assert nstg % NS == 0
    nloop = nstg // NS - 1

    a("s_lshr_b32 s28, s27, 1")
    a("s_and_b32 s29, s27, 1")
    a("v_bfe_u32 v8, v1, 2, 2")
    a("v_and_b32 v9, 3, v1")
    if kind == 1:
        a("v_and_b32 v10, 1, v3")
        a("v_lshl_add_u32 v10, v10, 2, v8")
        a("v_lshl_add_u32 v11, v3, 3, v8")
        HOFF = 4 * ROWB
    else:
        a("v_lshl_add_u32 v11, v3, 2, v8")
        a("v_bfe_u32 v10, v11, 1, 2")
        HOFF = 16 * ROWB
    a(f"s_mul_i32 s30, s28, {NJ}")
    a("v_xor_b32 v10, s30, v10")
    a(f"s_movk_i32 s30, {ROWB}")
    a("v_mul_lo_u32 v11, v11, s30")
    a("v_lshl_add_u32 v11, v9, 3, v11")
    for jj in range(NJ):
        a(f"v_xor_b32 v12, {jj}, v10")
        a(f"v_lshl_add_u32 v{4+jj}, v12, 5, v11")
    a("s_mul_i32 s30, s29, 3072")
    a(f"s_add_u32 s30, s30, {ACT0}")
    a("v_lshlrev_b32 v8, 4, v1")
    a("v_add_u32 v8, s30, v8")
    a(f"v_add_u32 v9, {3*ASLOT}, v8")
    srd(a, 16, 18, 19, (4608 if kind == 1 else 2048) * 2)
    a(f"s_mul_i32 s30, s4, {TW*2}")
    a(f"s_mul_i32 s31, s28, {TW}")
    a("s_add_u32 s30, s30, s31")
    if kind == 1:
        a("v_lshlrev_b32 v10, 3, v3")
        for jj in range(NJ):
            a(f"buffer_load_dwordx2 v[{16+2*jj}:{17+2*jj}], v10, s[16:19], s30 offen offset:{32*jj}")
    else:
        a("v_and_b32 v10, 15, v1")
        a("v_lshlrev_b32 v10, 1, v10")
        for jj in range(NJ):
            a(f"buffer_load_ushort v{16+jj}, v10, s[16:19], s30 offen offset:{32*jj}")
    ACC = 160 if kind == 1 else 120
    SETSZ = 2 * (4 * NJ + 12)
    FA = [32, 32 + SETSZ]
    AO = 4 * NJ
    assert FA[1] + SETSZ <= ACC
    for r in range(12 * NJ): a(f"v_mov_b32 v{ACC+r}, 0")

    def reads(slot, st):
        out = []
        for kb in range(2):
            base = FA[st] + kb * (SETSZ // 2)
            def wr(jj):
                return [f"ds_read_b64_tr_b16 v[{base+4*jj+2*h}:{base+4*jj+2*h+1}], v{4+jj} offset:{slot*WSLOT + kb*32*ROWB + h*HOFF}" for h in range(2)]
            def ar(dd):
                va, so = (8, slot) if slot < 3 else (9, slot - 3)
                return [f"ds_read_b128 v[{base+AO+4*dd}:{base+AO+4*dd+3}], v{va} offset:{so*ASLOT + kb*6144 + dd*1024}"]
            out += wr(0) + ar(0) + ar(1) + ar(2)
            for jj in range(1, NJ): out += wr(jj)
        return out
    def mfmas(st):
        out = []
        for kb in range(2):
            base = FA[st] + kb * (SETSZ // 2)
            for jj in range(NJ):
                for dd in range(3):
                    acc = ACC + 4 * (jj * 3 + dd)
                    wf_ = f"v[{base+4*jj}:{base+4*jj+3}]"; af_ = f"v[{base+AO+4*dd}:{base+AO+4*dd+3}]"
                    if kind == 1:
                        out.append(f"v_mfma_f32_16x16x32_bf16 v[{acc}:{acc+3}], {wf_}, {af_}, v[{acc}:{acc+3}]")
                    else:
                        out.append(f"v_mfma_f32_16x16x32_bf16 v[{acc}:{acc+3}], {af_}, {wf_}, v[{acc}:{acc+3}]")
        return out
    NPRE = opt_int('npre1', 4) if kind == 1 else opt_int('npre2', 3)
    NRD = len(reads(0, 0))
    need = 5 + (2 if NPRE > 3 else 0) + (2 if NPRE > 6 else 0)
    def stage(slot, st, last):
        m = mfmas(st)
        if 'nomfma' in OPT: m = []
        a(f"s_waitcnt lgkmcnt({min(15, NRD - need)})")
        for ins in m[:NPRE]: a(ins)
        a("s_waitcnt lgkmcnt(0)")
        if last:
            for ins in m[NPRE:]: a(ins)
            return
        a("s_barrier")
        rd = reads((slot + 1) % NS, 1 - st)
        if 'nords' in OPT: rd = []
        rest = m[NPRE:]
        ng = max(1, len(rest) - 1)
        extra = max(0, len(rd) - ng)
        for i, ins in enumerate(rest):
            a(ins)
            n = 1 + (1 if i < extra else 0)
            if i == len(rest) - 1: n = len(rd)
            for _ in range(n):
                if rd: a(rd.pop(0))
        for r_ in rd: a(r_)
    a("s_barrier")
    if 'clk' in OPT:
        a("s_memtime s[64:65]"); a("s_memrealtime s[66:67]")
    for r in reads(0, 0): a(r)
    assert NS % 2 == 0
    a(f"s_movk_i32 s31, {nloop}")
    a.label(f"{P}_CLOOP")
    for s in range(NS): stage(s, s % 2, False)
    a("s_sub_u32 s31, s31, 1")
    a("s_cmp_lg_u32 s31, 0")
    a(f"s_cbranch_scc1 {P}_CLOOP")
    for s in range(NS): stage(s, s % 2, s == NS - 1)
    if 'clk' in OPT:
        a("s_memtime s[68:69]"); a("s_memrealtime s[70:71]")
        a("s_waitcnt lgkmcnt(0)")
        a("s_sub_u32 s68, s68, s64")
        a("s_sub_u32 s70, s70, s66")
        a("v_mov_b32 v10, s68"); a("v_mov_b32 v11, s70"); a("v_mov_b32 v12, s66"); a("v_mov_b32 v13, 0")
        a("s_lshl_b32 s72, s2, 6")
        a("s_lshl_b32 s73, s27, 4")
        a("s_add_u32 s72, s72, s73")
        a(f"s_add_u32 s72, s72, {0x2900000 + (0 if kind == 1 else 0x10000)}")
        srd(a, 76, 6, 7, 0x4000000)
        a("v_mov_b32 v14, 0")
        a("buffer_store_dwordx4 v[10:13], v14, s[76:79], s72 offen")

    if kind == 1:
        a("s_waitcnt vmcnt(0)")
        for jj in range(4):
            a(f"v_lshlrev_b32 v{96+4*jj}, 16, v{16+2*jj}")
            a(f"v_and_b32 v{97+4*jj}, 0xffff0000, v{16+2*jj}")
            a(f"v_lshlrev_b32 v{98+4*jj}, 16, v{17+2*jj}")
            a(f"v_and_b32 v{99+4*jj}, 0xffff0000, v{17+2*jj}")
        c0 = -2.0 * math.sqrt(2.0 / math.pi) * 1.4426950408889634
        c1 = c0 * 0.044715
        a(f"s_mov_b32 s34, {fhex(c1)}"); a(f"s_mov_b32 s35, {fhex(c1)}")
        a(f"s_mov_b32 s36, {fhex(1.0)}"); a(f"s_mov_b32 s37, {fhex(1.0)}")
        a(f"v_mov_b32 v30, {fhex(c0)}"); a(f"v_mov_b32 v31, {fhex(c0)}")
        a("s_lshl_b32 s39, s4, 1")
        a("s_add_u32 s38, s39, s28")
        a("s_mul_i32 s38, s38, 6")
        a("s_add_u32 s38, s38, s5")
        a(f"s_mul_i32 s38, s38, {2*ABLK}")
        a("s_lshl_b32 s39, s29, 9")
        a("s_add_u32 s38, s38, s39")
        a(f"s_add_u32 s38, s38, {WS_G}")
        a("v_lshrrev_b32 v9, 3, v1")
        a("v_lshlrev_b32 v9, 10, v9")
        a("v_and_b32 v10, 7, v1")
        a("v_lshl_add_u32 v9, v10, 4, v9")
        a(f"s_add_u32 s39, s38, {ABLK}")
        for kb in range(2):
            for dd in range(3):
                T = 32
                O = 112 + 4 * ((kb * 3 + dd) % 2)
                for t in range(2):
                    jj = 2 * kb + t
                    acc = ACC + 4 * (jj * 3 + dd)
                    for p in range(2):
                        x = T + 8 * t + 4 * p
                        a(f"v_cvt_pk_bf16_f32 v{x+2}, v{acc+2*p}, v{acc+2*p+1}")
                        a(f"v_lshlrev_b32 v{x}, 16, v{x+2}")
                        a(f"v_and_b32 v{x+1}, 0xffff0000, v{x+2}")
                        a(f"v_pk_add_f32 v[{x}:{x+1}], v[{x}:{x+1}], v[{96+4*jj+2*p}:{97+4*jj+2*p}]")
                        a(f"v_cvt_pk_bf16_f32 v{x+2}, v{x}, v{x+1}")
                        a(f"v_lshlrev_b32 v{x}, 16, v{x+2}")
                        a(f"v_and_b32 v{x+1}, 0xffff0000, v{x+2}")
                    for p in range(2):
                        x = T + 8 * t + 4 * p
                        a(f"v_pk_mul_f32 v[{x+2}:{x+3}], v[{x}:{x+1}], v[{x}:{x+1}]")
                        a(f"v_pk_fma_f32 v[{x+2}:{x+3}], v[{x+2}:{x+3}], s[34:35], v[30:31]")
                        a(f"v_pk_mul_f32 v[{x+2}:{x+3}], v[{x+2}:{x+3}], v[{x}:{x+1}]")
                    for p in range(2):
                        x = T + 8 * t + 4 * p
                        a(f"v_exp_f32 v{x+2}, v{x+2}")
                        a(f"v_exp_f32 v{x+3}, v{x+3}")
                    for p in range(2):
                        x = T + 8 * t + 4 * p
                        a(f"v_pk_add_f32 v[{x+2}:{x+3}], v[{x+2}:{x+3}], s[36:37]")
                    for p in range(2):
                        x = T + 8 * t + 4 * p
                        a(f"v_rcp_f32 v{x+2}, v{x+2}")
                        a(f"v_rcp_f32 v{x+3}, v{x+3}")
                    for p in range(2):
                        x = T + 8 * t + 4 * p
                        a(f"v_pk_mul_f32 v[{x}:{x+1}], v[{x}:{x+1}], v[{x+2}:{x+3}]")
                        a(f"v_cvt_pk_bf16_f32 v{O+2*t+p}, v{x}, v{x+1}")
                a(f"buffer_store_dwordx4 v[{O}:{O+3}], v9, s[12:15], s{38+kb} offen offset:{128*dd}" + (" sc1" if (kb * 3 + dd) < opt_int('gsc1', 0) else ""))
    else:
        a("s_waitcnt vmcnt(0)")
        if C.HTOV: a("s_barrier")
        for jj in range(NJ): a(f"v_lshlrev_b32 v{16+jj}, 16, v{16+jj}")
        a(f"s_mul_i32 s30, s29, {48*ROWB}")
        a(f"s_add_u32 s30, s30, {HT0}")
        for jj in range(NJ): a(f"v_add_u32 v{4+jj}, s30, v{4+jj}")
        for jj in range(NJ):
            for dd in range(3):
                r = 32 + 2 * (jj * 3 + dd)
                a(f"ds_read_b64_tr_b16 v[{r}:{r+1}], v{4+jj} offset:{dd*16*ROWB}")
        srd(a, 16, 20, 21, 2048 * 576 * 2)
        a("v_and_b32 v9, 15, v1")
        a("s_movk_i32 s30, 1152")
        a("v_mul_lo_u32 v9, v9, s30")
        a("v_lshl_add_u32 v9, v3, 3, v9")
        a(f"s_mul_i32 s30, s4, {TW}")
        a(f"s_mul_i32 s31, s28, {TW//2}")
        a("s_add_u32 s30, s30, s31")
        a("s_mul_i32 s30, s30, 1152")
        a("s_mul_i32 s31, s5, 192")
        a("s_add_u32 s30, s30, s31")
        a("s_mul_i32 s31, s29, 96")
        a("s_add_u32 s30, s30, s31")
        a("s_waitcnt lgkmcnt(0)")
        for jj in range(NJ):
            for dd in range(3):
                acc = ACC + 4 * (jj * 3 + dd)
                hr = 32 + 2 * (jj * 3 + dd)
                O = 64 + 2 * ((jj * 3 + dd) % 4)
                for p in range(2):
                    x = 80 + 4 * p
                    a(f"v_cvt_pk_bf16_f32 v{x+2}, v{acc+2*p}, v{acc+2*p+1}")
                    a(f"v_lshlrev_b32 v{x}, 16, v{x+2}")
                    a(f"v_and_b32 v{x+1}, 0xffff0000, v{x+2}")
                    a(f"v_add_f32 v{x}, v{x}, v{16+jj}")
                    a(f"v_add_f32 v{x+1}, v{x+1}, v{16+jj}")
                    a(f"v_cvt_pk_bf16_f32 v{x+2}, v{x}, v{x+1}")
                    a(f"v_lshlrev_b32 v{x}, 16, v{x+2}")
                    a(f"v_and_b32 v{x+1}, 0xffff0000, v{x+2}")
                    a(f"v_lshlrev_b32 v{x+2}, 16, v{hr+p}")
                    a(f"v_and_b32 v{x+3}, 0xffff0000, v{hr+p}")
                    a(f"v_add_f32 v{x}, v{x}, v{x+2}")
                    a(f"v_add_f32 v{x+1}, v{x+1}, v{x+3}")
                    a(f"v_cvt_pk_bf16_f32 v{O+p}, v{x}, v{x+1}")
                a(f"buffer_store_dwordx2 v[{O}:{O+1}], v9, s[16:19], s30 offen offset:{32*dd}")
            if jj < NJ - 1: a(f"s_add_u32 s30, s30, {16*1152}")
    a(f"s_branch {END}")

    mark1 = len(a.lines)
    a.label(PROD)
    a("s_sub_u32 s28, s27, 4")
    if FH:
        a("v_and_b32 v4, 15, v1")
        a("s_lshr_b32 s32, s4, 2")
        a("v_lshrrev_b32 v5, 1, v4")
        a("s_lshl_b32 s32, s32, 9")
        a("v_and_b32 v4, 1, v4")
        a(f"s_add_u32 s32, s32, {WS_W1C}")
        a("s_lshl_b32 s29, s28, 4")
        a("s_lshl_b32 s30, s4, 8")
        a("v_add_u32 v6, s29, v3")
        a("s_and_b32 s55, s4, 3")
        a("s_cmp_eq_u32 s55, 1")
        a("s_cselect_b32 s32, s32, s30")
        a(f"s_mov_b32 s56, {WPITCH}")
        a(f"s_cselect_b32 s56, {W1C_PITCH}, s56")
        a("v_mul_lo_u32 v6, v6, s56")
        a("v_xor_b32 v7, v3, v5")
        a("s_lshl_b32 s57, s56, 6")
        a("v_lshl_add_u32 v6, v4, 4, v6")
        a("s_lshl_b32 s31, s56, 2")
        a("v_lshl_add_u32 v10, v7, 5, v6")
        a("s_sub_u32 s31, s31, 1024")
        a("v_xor_b32 v7, 4, v7")
        a("s_lshl_b32 s29, s31, 1")
        a("v_add_u32 v11, s31, v10")
        a("v_lshl_add_u32 v12, v7, 5, v6")
        a("v_lshrrev_b32 v16, 3, v1")
        a("v_add_u32 v12, s29, v12")
        a("v_lshlrev_b32 v16, 10, v16")
        a("v_add_u32 v13, s31, v12")
        a("v_and_b32 v17, 7, v1")
        a("s_lshr_b32 s30, s28, 1")
        a("v_lshl_add_u32 v16, v17, 4, v16")
        a("s_lshl_b32 s30, s30, 13")
        a("s_and_b32 s31, s28, 1")
        a("s_lshl_b32 s31, s31, 9")
        a("s_add_u32 s30, s30, s31")
        a("s_add_u32 s30, s30, 2048")
        a("v_add_u32 v17, s30, v16")
        a(f"s_mul_i32 s33, s5, {2*ABLK}")
        a("v_subrev_u32 v18, 896, v17")
        a(f"s_add_u32 s33, s33, {C.ACTBASE - 2048}")
        a("v_subrev_u32 v19, 1792, v17")
        mark_a = len(a.lines)
    CPY = 'nocopy' not in OPT and not C.WTEST
    CPITCH = W1C_PITCH if kind == 1 else W2C_PITCH
    a(f"s_movk_i32 s30, {WPITCH}")
    a(f"s_mul_i32 s32, s4, {ROWB if C.WTEST >= 0 else nstg * WSLOT}")
    if CPY:
        a(f"s_and_b32 s31, s4, {3 if kind == 1 else 7}")
        a(f"s_cmp_lg_u32 s31, {1 if kind == 1 else 3}")
        a(f"s_cbranch_scc1 {P}_NOCP")
        a(f"s_movk_i32 s30, {CPITCH}")
        a(f"s_lshr_b32 s32, s4, {2 if kind == 1 else 3}")
        a(f"s_lshl_b32 s32, s32, {9 if kind == 1 else 8}")
        a(f"s_add_u32 s32, s32, {WS_W1C if kind == 1 else WS_W2C}")
        srd(a, 8, 6, 7, WS_END)
        a.label(f"{P}_NOCP")
    a("s_mov_b32 s56, s30")
    a("s_lshl_b32 s57, s30, 6")
    if kind == 1:
        a("v_and_b32 v4, 15, v1")
        a("v_lshrrev_b32 v5, 1, v4")
        a("v_and_b32 v4, 1, v4")
        a("s_lshl_b32 s29, s28, 4")
        a("v_add_u32 v6, s29, v3")
        a("v_mul_lo_u32 v6, v6, s30")
        a("v_lshl_add_u32 v6, v4, 4, v6")
        for q in range(4):
            hi = (q >> 1)
            a(f"v_or_b32 v7, {hi << 2}, v3")
            a("v_xor_b32 v7, v7, v5")
            a(f"v_lshl_add_u32 v{10+q}, v7, 5, v6")
            if q:
                a(f"s_mul_i32 s31, s56, {4*q}")
                a(f"s_sub_u32 s31, s31, {1024*q}")
                a(f"v_add_u32 v{10+q}, s31, v{10+q}")
    else:
        a("v_bfe_u32 v5, v1, 1, 2")
        a("v_and_b32 v4, 1, v1")
        a("v_lshrrev_b32 v6, 3, v1")
        a("s_lshl_b32 s29, s28, 4")
        a("v_add_u32 v6, s29, v6")
        a("v_mul_lo_u32 v6, v6, s30")
        a("v_lshl_add_u32 v6, v4, 4, v6")
        a("v_xor_b32 v7, v3, v5")
        a("v_lshl_add_u32 v10, v7, 5, v6")
        a("s_lshl_b32 s31, s56, 3")
        a("s_sub_u32 s31, s31, 1024")
        a("v_add_u32 v11, s31, v10")
    a("v_lshrrev_b32 v16, 3, v1")
    a("v_lshlrev_b32 v16, 10, v16")
    a("v_and_b32 v17, 7, v1")
    a("v_lshl_add_u32 v16, v17, 4, v16")
    a("s_lshr_b32 s30, s28, 1")
    a("s_lshl_b32 s30, s30, 13")
    a("s_and_b32 s31, s28, 1")
    a("s_lshl_b32 s31, s31, 9")
    a("s_add_u32 s30, s30, s31")
    for q in range(3):
        a(f"s_add_u32 s31, s30, {2048 - 896*q}")
        a(f"v_add_u32 v{17+q}, s31, v16")
    a(f"s_mul_i32 s33, s5, {2*ABLK}")
    a(f"s_add_u32 s33, s33, {C.ACTBASE - 2048 + opt_int('ashift', 0)}")
    if FH: del a.lines[mark_a:]
    ROT = (('rot' in OPT) or (('rot%d' % kind) in OPT)) and 'norot4' not in OPT
    if ROT:
        RS = nstg // 8
        a("s_and_b32 s58, s2, 7")
        a(f"s_mul_i32 s58, s58, {RS}")
        a("s_mul_i32 s59, s58, s57")
        a("s_add_u32 s32, s32, s59")
        a(f"s_mul_i32 s59, s58, {12*ABLK}")
        a("s_add_u32 s33, s33, s59")
        a(f"s_sub_u32 s58, {nstg}, s58")
        a(f"s_mul_i32 s63, s57, {nstg}")
    if opt_int('wshift', 0): a(f"s_add_u32 s32, s32, {opt_int('wshift', 0)}")
    if opt_int('wxor', 0): a(f"s_xor_b32 s32, s32, {opt_int('wxor', 0)}")
    if FH:
        a(f"s_mul_i32 s40, s28, {C.NWP*1024}")
        a("s_mul_i32 s48, s28, 3072")
        a(f"s_add_u32 s48, s48, {ACT0}")
        for s in range(1, NS):
            a(f"s_add_u32 s{40+s}, s40, {s*WSLOT}")
            a(f"s_add_u32 s{48+s}, s48, {s*ASLOT}")
    for s in range(0 if FH else NS):
        a(f"s_mul_i32 s30, s28, {C.NWP*1024}")
        a(f"s_add_u32 s{40+s}, s30, {s*WSLOT}")
        a("s_mul_i32 s30, s28, 3072")
        a(f"s_add_u32 s{48+s}, s30, {ACT0 + s*ASLOT}")
    if FH:
        a("s_waitcnt lgkmcnt(0)")
        if BST: a("s_memrealtime s[74:75]")
        srd(a, 8, 16, 17, 2048 * 4608 * 2)
        srd(a, 12, 6, 7, WS_END)
        a("s_cmp_lg_u32 s55, 1")
        a(f"s_cbranch_scc1 {P}_NOCP")
        srd(a, 8, 6, 7, WS_END)
        a.label(f"{P}_NOCP")
    if kind == 2:
        a("s_mul_i32 s29, s28, 24")
        a("v_lshrrev_b32 v6, 3, v1")
        a("v_add_u32 v6, s29, v6")
        a("v_lshlrev_b32 v15, 12, v6")
        a("v_lshl_add_u32 v15, v4, 4, v15")
        a("v_lshl_add_u32 v15, v7, 5, v15")
        a("s_mul_i32 s30, s5, 96*4096")
        a(f"s_mul_i32 s31, s4, {ROWB}")
        a("s_add_u32 s30, s30, s31")
        a(f"s_add_u32 s30, s30, {WS_HT}")
        a("s_mul_i32 s31, s28, 3072")
        a(f"s_add_u32 s31, s31, {HT0}")
        a("s_mov_b32 s36, s30"); a("s_mov_b32 s37, s31")
        def ht_issue():
            for i in range(3):
                a(f"s_add_u32 s34, s37, {1024*i}")
                a("s_mov_b32 m0, s34")
                a(f"s_add_u32 s35, s36, {i*8*4096}")
                a("buffer_load_dwordx4 v15, s[12:15], s35 offen lds")
        if not C.HTOV and 'htlate' not in OPT: ht_issue()
    AV = [17, 18, 19]
    def issue(slot):
        a(f"s_mov_b32 m0, s{40+slot}")
        for q in range(0 if 'noW' in OPT else C.NWP):
            a(f"buffer_load_dwordx4 v{10+q}, s[8:11], s32 offen offset:{1024*q} lds")
        a(f"s_mov_b32 m0, s{48+slot}")
        for q in range(0 if 'noA' in OPT else 3):
            a(f"buffer_load_dwordx4 v{AV[q]}, s[12:15], s33 offen offset:{1024*q} lds")
        for q in range(C.DUP):
            a(f"buffer_load_dwordx4 v{AV[q]}, s[12:15], s33 offen offset:{1024*q} lds")
        if 'hot' not in OPT:
            a("s_add_u32 s32, s32, s57")
            a(f"s_add_u32 s33, s33, {12*ABLK}")
            if ROT:
                a("s_sub_u32 s58, s58, 1")
                a("s_cmp_eq_u32 s58, 0")
                a("s_cselect_b32 s59, s63, 0")
                a(f"s_cselect_b32 s64, {nstg*12*ABLK}, 0")
                a("s_sub_u32 s32, s32, s59")
                a("s_sub_u32 s33, s33, s64")
    def stamp():
        if 'stamp' not in OPT: return
        a("s_memrealtime s[60:61]")
        a("s_waitcnt lgkmcnt(0)")
        a("v_mov_b32 v22, s60")
        a("v_cmp_eq_u32 vcc, s62, v1")
        a("v_cndmask_b32 v20, v20, v22, vcc")
        a("s_add_u32 s62, s62, 1")
        a("s_and_b32 s62, s62, 63")
    if 'stamp' in OPT:
        a("s_mov_b32 s62, 0"); a("v_mov_b32 v20, 0")
    PPS = C.PPS
    stamp()
    EB = opt_int('eb%d' % kind, NS)
    if BST: a("s_memrealtime s[76:77]")
    for s in range(EB): issue(s)
    stamp()
    if BST: a("s_memrealtime s[78:79]")
    a(f"s_waitcnt vmcnt({(EB-1)*PPS})")
    if BST: a("s_memrealtime s[80:81]")
    a("s_barrier")
    for s in range(EB, NS): issue(s)
    if kind == 2 and not C.HTOV and 'htlate' in OPT: ht_issue()
    stamp()
    a(f"s_movk_i32 s31, {nloop}")
    a.label(f"{P}_PLOOP")
    for s in range(NS):
        a(f"s_waitcnt vmcnt({(NS-2)*PPS})")
        a("s_barrier")
        if kind == 1 or s % 2 == 0: stamp()
        issue(s)
    a("s_sub_u32 s31, s31, 1")
    a("s_cmp_lg_u32 s31, 0")
    a(f"s_cbranch_scc1 {P}_PLOOP")
    HOV = kind == 2 and C.HTOV
    XL = 0
    if kind == 1 and 'cpfe' in OPT:
        a("s_lshl_b32 s60, s28, 13")
        code_pf(a, "E", "k4_kernel", "K5_END", [0], 62, 1, 24, 26, backward=True, schunk=60)
        XL = 1
    for s in range(NS - 1):
        a(f"s_waitcnt vmcnt({(NS-2-s)*PPS + (3 if (HOV and s > 0) else 0) + XL})")
        a("s_barrier")
        stamp()
        if HOV and s == 0: ht_issue()
    if HOV:
        a("s_waitcnt vmcnt(0)")
        a("s_barrier")
    if 'stamp' in OPT:
        a("s_cmp_lg_u32 s28, 0")
        a(f"s_cbranch_scc1 {END}")
        a("s_lshl_b32 s30, s2, 8")
        a(f"s_add_u32 s30, s30, {0x2400000 + (0 if kind == 1 else 0x10000)}")
        a("v_lshlrev_b32 v21, 2, v1")
        srd(a, 12, 6, 7, 0x4000000)
        a("buffer_store_dword v20, v21, s[12:15], s30 offen")
    if BST:
        a("s_waitcnt lgkmcnt(0)")
        a("v_mov_b32 v24, s94"); a("v_mov_b32 v25, s74"); a("v_mov_b32 v26, s76"); a("v_mov_b32 v27, s78"); a("v_mov_b32 v28, s80"); a("v_mov_b32 v29, 0")
        a("s_lshl_b32 s72, s2, 2"); a("s_add_u32 s72, s72, s28"); a("s_lshl_b32 s72, s72, 5")
        a(f"s_add_u32 s72, s72, {0x2800000}")
        srd(a, 84, 6, 7, 0x4000000)
        a("s_mov_b64 exec, 1")
        a("buffer_store_dwordx4 v[24:27], v29, s[84:87], s72 offen")
        a("buffer_store_dword v28, v29, s[84:87], s72 offen offset:16")
        a("s_mov_b64 exec, -1")
    a(f"s_branch {END}")
    if FH:
        a.lines[mark0:] = a.lines[mark1:] + a.lines[mark0:mark1]
    a.label(PREF)
    gen_prefetch(a, 3 + kind, NWG, END)
    a.label(END)
    kst_end(a, 2 + kind, NWG + PF[3 + kind].nwg)
    a("s_endpgm")
    return name, (208 if kind == 1 else 144), C.LDS

def gen_k4(a): return gen_gemm(a, 1, "k4_kernel")
def gen_k5(a): return gen_gemm(a, 2, "k5_kernel")
```

```python
from gen import *
import os
OPT = os.environ.get('GOPT', '').split(',')
def opt_int(name, default):
    for o in OPT:
        if o.startswith(name + '='): return int(o.split('=')[1])
    return default
WS_W2D = 0x4000000
W2D_PITCH = 2048
WS_FL = 0x4900000
WS_XB = 0x4A00000
WS_END3 = WS_XB + 64 * 16 * 18 * 2048
SK = opt_int('sk', 4)
MF = 9 if SK == 4 else 6
NMT = 36 // MF
NSTG = 72 // SK
K5S_NWG = NMT * 16 * SK
S_NS = opt_int('s5ns', 4)
S_W = 16384
S_A = 2 * MF * 1024
S_ACT0 = S_NS * S_W
K5S_LDS = S_ACT0 + S_NS * S_A
NT_ = 2 * MF
NKEEP = -(-NT_ // SK)

def gen_k5s(a):
    name = "k5_kernel"
    NS = S_NS
    kernel_head(a, name)
    kst_begin(a)
    CLK = 'clk' in OPT
    NG = K5S_NWG + PF[5].nwg
    a(f"s_cmp_ge_u32 s2, {NG}")
    a("s_cbranch_scc1 K5_END")
    if PF[5].nwg:
        a(f"s_cmp_ge_u32 s2, {K5S_NWG}")
        a("s_cbranch_scc1 K5_PREF")
    a("s_load_dwordx2 s[6:7], s[0:1], 112")
    a("s_load_dwordx4 s[16:19], s[0:1], 80")
    a("s_load_dwordx2 s[20:21], s[0:1], 96")
    a("v_lshrrev_b32 v2, 6, v0")
    a("v_readfirstlane_b32 s27, v2")
    a("v_and_b32 v1, 63, v0")
    a("v_lshrrev_b32 v3, 4, v1")
    a("s_and_b32 s22, s2, 7")
    a("s_lshr_b32 s23, s2, 3")
    if SK == 4:
        a("s_lshr_b32 s24, s22, 1")
        a("s_and_b32 s25, s22, 1")
        a("s_and_b32 s5, s23, 3")
        a("s_lshr_b32 s4, s23, 2")
        a("s_lshl_b32 s26, s25, 3")
        a("s_add_u32 s4, s4, s26")
    else:
        a("s_lshr_b32 s24, s22, 2")
        a("s_and_b32 s25, s22, 3")
        a("s_mul_i32 s4, s23, 43")
        a("s_lshr_b32 s4, s4, 8")
        a("s_mul_i32 s5, s4, 6")
        a("s_sub_u32 s5, s23, s5")
        a("s_lshl_b32 s26, s25, 2")
        a("s_add_u32 s4, s4, s26")
    a(f"s_mul_i32 s3, s4, {NMT}")
    a("s_add_u32 s3, s3, s5")
    BST = 'bst' in OPT
    FH = 'fh5' in OPT
    if FH:
        assert SK == 2 and 'nocopy5' in OPT and 'jrot' not in OPT
        a("s_cmp_lt_u32 s27, 4")
        a("s_cbranch_scc1 K5_CONS")
        mark0 = len(a.lines)
        a.label("K5_CONS")
        a("s_waitcnt lgkmcnt(0)")
        srd(a, 12, 6, 7, WS_END3)
    else:
        a("s_waitcnt lgkmcnt(0)")
        if BST: a("s_memrealtime s[74:75]")
        srd(a, 12, 6, 7, WS_END3)
        a("s_cmp_ge_u32 s27, 4")
        a("s_cbranch_scc1 K5_PROD")

    a("v_bfe_u32 v8, v1, 2, 2")
    a("v_and_b32 v9, 3, v1")
    a("v_and_b32 v10, 1, v3")
    a("v_lshl_add_u32 v10, v10, 2, v8")
    a("v_lshl_add_u32 v11, v3, 2, v8")
    a("s_lshl_b32 s30, s27, 1")
    a("v_xor_b32 v10, s30, v10")
    a("v_lshlrev_b32 v11, 8, v11")
    a("v_lshl_add_u32 v11, v9, 3, v11")
    a("v_lshl_add_u32 v4, v10, 5, v11")
    a("v_xor_b32 v10, 1, v10")
    a("v_lshl_add_u32 v5, v10, 5, v11")
    a("v_lshlrev_b32 v8, 4, v1")
    a(f"v_add_u32 v8, {S_ACT0}, v8")
    a(f"v_add_u32 v9, {2*S_A}, v8")
    if NS > 4: a(f"v_add_u32 v6, {4*S_A}, v8")
    if NS > 4: a(f"v_add_u32 v7, {65536}, v4"); a(f"v_add_u32 v15, {65536}, v5")
    SZ = 4 * MF + 8
    SET = [32, 32 + SZ]
    ACC = 32 + 2 * SZ
    HV = ACC + 4 * NT_
    BV = HV + 4 * NKEEP
    for r in range(4 * NT_): a(f"v_mov_b32 v{ACC+r}, 0")
    def reads(n):
        sg, kb = divmod(n, 2)
        sl = sg % NS
        b = SET[n % 2]
        va = (8, 9, 6)[sl // 2]
        vw = (4, 5) if sl < 4 else (7, 15)
        wo = (sl % 4) * S_W
        def wr(jj): return [(f"ds_read_b64_tr_b16 v[{b+4*MF+4*jj+2*h}:{b+4*MF+4*jj+2*h+1}], v{vw[jj]} offset:{wo + kb*8192 + h*4096}", ('w', jj, h)) for h in range(2)]
        def ar(dd): return [(f"ds_read_b128 v[{b+4*dd}:{b+4*dd+3}], v{va} offset:{(sl%2)*S_A + (kb*MF + dd)*1024}", ('a', dd))]
        out = wr(0) + ar(0) + wr(1) + ar(1)
        for dd in range(2, MF): out += ar(dd)
        return out
    NRD = MF + 4
    NPRE = opt_int('npre5', 4 if SK == 4 else 2)
    class Q: pass
    q = Q(); q.issued = 0; q.done = 0; q.pos = {}
    def rd_issue(n, item):
        a(item[0]); q.pos[(n % 2, item[1])] = q.issued; q.issued += 1
    def need(keys):
        p = max(q.pos[k] for k in keys)
        if p >= q.done:
            a(f"s_waitcnt lgkmcnt({min(15, q.issued - 1 - p)})")
            q.done = p + 1 if q.issued - 1 - p <= 15 else q.issued - 15
    def half(n):
        b = SET[n % 2]
        nxt = reads(n + 1) if n + 1 < 2 * NSTG else []
        odd = n % 2 == 1
        k = 0
        for dd in range(MF):
            for jj in range(2):
                if odd and k == NPRE and nxt:
                    a("s_waitcnt lgkmcnt(0)"); q.done = q.issued
                    a("s_barrier")
                need([(n % 2, ('a', dd)), (n % 2, ('w', jj, 0)), (n % 2, ('w', jj, 1))])
                acc = ACC + 4 * (2 * dd + jj)
                a(f"v_mfma_f32_16x16x32_bf16 v[{acc}:{acc+3}], v[{b+4*dd}:{b+4*dd+3}], v[{b+4*MF+4*jj}:{b+4*MF+4*jj+3}], v[{acc}:{acc+3}]")
                if nxt and (not odd or k >= NPRE):
                    rd_issue(n + 1, nxt.pop(0))
                    left = 2 * MF - 1 - k
                    while len(nxt) > left: rd_issue(n + 1, nxt.pop(0))
                k += 1
        for it in nxt: rd_issue(n + 1, it)
    a("s_barrier")
    if CLK:
        a("s_memtime s[64:65]"); a("s_memrealtime s[66:67]")
        a("s_waitcnt lgkmcnt(0)")
    for it in reads(0): rd_issue(0, it)
    a("v_and_b32 v10, 15, v1")
    a("v_lshlrev_b32 v10, 1, v10")
    HP = 8192 if HTP else 4096
    a(f"v_lshl_add_u32 v11, v3, {15 if HTP else 14}, v10")
    a("s_lshl_b32 s30, s4, 7")
    a("s_lshl_b32 s31, s27, 5")
    a("s_add_u32 s30, s30, s31")
    a("s_and_b32 s31, s24, 1")
    a("s_lshl_b32 s31, s31, 4")
    a("s_add_u32 s30, s30, s31")
    a("s_mov_b32 s38, s30")
    a("s_lshl_b32 s30, s30, 1")
    K5T = [o for o in OPT if o.startswith('k5t=')]
    if K5T:
        TB1, TD, TW = (int(x) for x in K5T[0][4:].split('.'))
        HK = opt_int('hk', 192)
        assert SK == 2 and NS == 4 and HK in (192, 96)
        srd(a, 44, 16, 17, 4608 * 4096)
        a("v_lshrrev_b32 v16, 3, v1")
        if HK == 192: a("s_lshl_b32 s48, s23, 3")
        else:
            a("s_lshl_b32 s48, s23, 2")
            a("v_and_b32 v16, 3, v16")
        a("s_mul_i32 s49, s25, 576")
        a("s_add_u32 s48, s48, s49")
        a("v_add_u32 v16, s48, v16")
        a("v_and_b32 v17, 7, v1")
        a("v_lshlrev_b32 v17, 7, v17")
        a("s_lshl_b32 s48, s25, 10")
        a("v_add_u32 v17, s48, v17")
        a(f"s_mul_i32 s48, s24, {2304*4096}")
        a(f"s_movk_i32 s49, {256*TD}")
    srd(a, 16, 18, 19, 2048 * 2)
    a(f"buffer_load_ushort v{BV}, v10, s[16:19], s30 offen")
    a(f"s_mul_i32 s31, s5, {16*MF}")
    a("s_lshr_b32 s33, s24, 1")
    a("s_lshl_b32 s33, s33, 4")
    a("s_add_u32 s31, s31, s33")
    a("s_mov_b32 s39, s31")
    a(f"s_lshl_b32 s31, s31, {13 if HTP else 12}")
    if HTP:
        a("s_lshr_b32 s33, s30, 9")
        a("s_lshl_b32 s33, s33, 10")
        a("s_and_b32 s30, s30, 511")
        a("s_add_u32 s30, s30, s33")
    a("s_add_u32 s30, s30, s31")
    a(f"s_add_u32 s30, s30, {WS_HTP + 512 if HTP else WS_HT}")
    for i in range(NKEEP):
        for r in range(4):
            a(f"buffer_load_ushort v{HV+4*i+r}, v11, s[12:15], s30 offen")
            if r < 3: a(f"s_add_u32 s30, s30, {HP}")
        if i < NKEEP - 1: a(f"s_add_u32 s30, s30, {(8*SK - 3)*HP}")
    nl = (NSTG - 1) // NS
    if NS % 2 == 0 or True:
        XW = opt_int('xwarm', 0)
        if XW:
            a("v_lshrrev_b32 v12, 3, v1")
            a("v_cmp_le_u32 vcc, 3, v12")
            a("v_addc_co_u32 v12, vcc, 0, v12, vcc")
            a("v_and_b32 v13, 7, v1")
            a("v_lshlrev_b32 v13, 4, v13")
            a("v_lshl_add_u32 v12, v12, 7, v13")
            a(f"s_mul_i32 s40, s3, {4*SK}")
            a("s_add_u32 s40, s40, s27")
            a("s_xor_b32 s41, s24, 1")
            a("s_lshl_b32 s41, s41, 2")
            a("s_add_u32 s40, s40, s41")
            a(f"s_mul_i32 s40, s40, {NT_}")
            a("s_add_u32 s40, s40, s24")
            a("s_lshl_b32 s40, s40, 11")
            a(f"s_add_u32 s40, s40, {WS_XB}")
        a(f"s_movk_i32 s31, {nl}")
        a.label("K5_CLOOP")
        if XW:
            assert SK == 2
            a(f"s_cmp_lg_u32 s31, {XW}")
            a("s_cbranch_scc1 K5_NOXW")
            for i in range(NKEEP):
                a("buffer_load_dword v13, v12, s[12:15], s40 offen sc1")
                if i < NKEEP - 1: a("s_add_u32 s40, s40, 4096")
            a.label("K5_NOXW")
        if K5T:
            if TW >= 0: a(f"s_cmp_lg_u32 s27, {TW}")
            else:
                a("s_and_b32 s50, s31, 3")
                a("s_cmp_lg_u32 s27, s50")
            a("s_cbranch_scc1 K5_NOT")
            a(f"s_cmp_lt_u32 s49, {256*TB1}")
            a("s_cbranch_scc1 K5_NOT")
            a(f"s_cmp_ge_u32 s49, 2304")
            a("s_cbranch_scc1 K5_NOT")
            a("v_add_u32 v18, s49, v16")
            a("v_subrev_u32 v19, 2304, v18")
            a("v_min_u32 v18, v18, v19")
            a("v_lshl_add_u32 v18, v18, 12, v17")
            if HK == 96:
                a("s_mov_b32 exec_hi, 0")
            a("buffer_load_dword v20, v18, s[44:47], s48 offen")
            if HK == 96:
                a("s_mov_b32 exec_hi, -1")
            a.label("K5_NOT")
            a("s_add_u32 s49, s49, 256")
        q.done = q.issued - NRD
        for n in range(2 * NS): half(n)
        a("s_sub_u32 s31, s31, 1")
        a("s_cmp_lg_u32 s31, 0")
        a("s_cbranch_scc1 K5_CLOOP")
        q.done = q.issued - NRD
        for n in range(2 * NS * nl, 2 * NSTG): half(n)
    a("s_waitcnt vmcnt(0)")
    if CLK:
        a("s_memtime s[68:69]"); a("s_memrealtime s[70:71]")
        a("s_waitcnt lgkmcnt(0)")
        a("s_sub_u32 s68, s68, s64")
        a("s_sub_u32 s70, s70, s66")
        a("v_mov_b32 v24, s68"); a("v_mov_b32 v25, s70"); a("v_mov_b32 v26, s66"); a("v_mov_b32 v27, 0")
        a("s_lshl_b32 s72, s2, 6")
        a("s_lshl_b32 s73, s27, 4")
        a("s_add_u32 s72, s72, s73")
        a(f"s_add_u32 s72, s72, {0x2900000 + 0x10000}")
        a("v_mov_b32 v28, 0")
        a("buffer_store_dwordx4 v[24:27], v28, s[12:15], s72 offen")

    a("v_lshrrev_b32 v10, 3, v1")
    a("v_cmp_le_u32 vcc, 3, v10")
    a("v_addc_co_u32 v10, vcc, 0, v10, vcc")
    a("v_and_b32 v11, 7, v1")
    a("v_lshlrev_b32 v11, 4, v11")
    a("v_lshl_add_u32 v10, v10, 7, v11")
    a(f"s_mul_i32 s30, s3, {4*SK}")
    a("s_add_u32 s30, s30, s27")
    a("s_lshl_b32 s34, s30, 7")
    a(f"s_add_u32 s34, s34, {WS_FL}")
    a(f"s_mul_i32 s30, s30, {NT_*2048}")
    a(f"s_add_u32 s30, s30, {WS_XB}")
    SRCS = 4 * NT_ * 2048
    srd(a, 16, 20, 21, 2048 * 576 * 2)
    a("v_and_b32 v9, 15, v1")
    a("v_lshlrev_b32 v12, 9, v9")
    a("v_mul_u32_u24 v9, 1152, v9")
    O16 = 'o16' in OPT
    if O16:
        assert SK == 2 and 'sent' not in OPT
        a("v_and_b32 v15, 1, v3")
        a("v_lshl_add_u32 v9, v15, 5, v9")
        a("v_lshrrev_b32 v15, 1, v3")
        a("v_lshl_add_u32 v9, v15, 4, v9")
    else:
        a("v_lshl_add_u32 v9, v3, 3, v9")
    a("s_mul_i32 s38, s38, 1152")
    a("s_lshl_b32 s39, s39, 1")
    a("s_add_u32 s38, s38, s39")
    a(f"v_lshlrev_b32 v{BV}, 16, v{BV}")
    NOX = 'nox' in OPT
    XST = 'xst' in OPT
    SENT = 'sent' in OPT
    XLD = {0: "sc1", 1: "sc0 sc1", 2: "sc1 nt", 3: "sc0 sc1 nt"}[opt_int('xld', 0)]
    XSTO = {0: "sc1", 1: "sc0 sc1", 2: "sc1 nt", 3: "sc0 sc1 nt"}[opt_int('xsto', 0)]
    XDL = opt_int('xdl', -1)
    def xst(i):
        if XST: a(f"s_memrealtime s[{40+2*i}:{41+2*i}]")
    xst(0)
    for kq in range(SK):
        if kq < SK - 1:
            a(f"s_cmp_lg_u32 s24, {kq}")
            a(f"s_cbranch_scc1 K5_X{kq+1}")
        keep = [t for t in range(NT_) if t % SK == kq]
        send = [t for t in range(NT_) if t % SK != kq]
        a(f"s_add_u32 s31, s30, {kq*SRCS}")
        prev = 0
        for t in send:
            while (t - prev) >= 2:
                a(f"s_add_u32 s31, s31, {2*2048}"); prev += 2
            acc = ACC + 4 * t
            if SENT:
                for r_ in range(4): a(f"v_min_u32 v{acc+r_}, -2, v{acc+r_}")
            if not NOX: a(f"buffer_store_dwordx4 v[{acc}:{acc+3}], v10, s[12:15], s31 offen offset:{(t-prev)*2048} {XSTO}")
        xst(1)
        if SENT and XDL == 0: a("s_waitcnt vmcnt(0)")
        if SENT and XDL > 0: a(f"s_sleep {XDL}")
        if SENT:
            srcs = [s_ for s_ in range(SK) if s_ != kq]
            NSRC = SK - 1
            nk = len(keep)
            a("s_mov_b32 s36, 0x100000")
            a.label(f"K5_P{kq}")
            for i, t in enumerate(keep):
                for k, s_ in enumerate(srcs):
                    off = s_ * SRCS + t * 2048
                    r = 32 + 4 * (NSRC * i + k)
                    a(f"s_add_u32 s31, s30, {off}")
                    a(f"buffer_load_dwordx4 v[{r}:{r+3}], v10, s[12:15], s31 offen {XLD}")
            a("s_sub_u32 s36, s36, 1")
            a("s_cmp_eq_u32 s36, 0")
            a("s_waitcnt vmcnt(0)")
            a(f"s_cbranch_scc1 K5_G{kq}")
            nw = 4 * NSRC * nk
            a("v_max3_u32 v13, v32, v33, v34")
            j = 3
            while j < nw:
                if j + 1 < nw: a(f"v_max3_u32 v13, v13, v{32+j}, v{33+j}"); j += 2
                else: a(f"v_max_u32 v13, v13, v{32+j}"); j += 1
            a("v_cmp_eq_u32 vcc, -1, v13")
            a("s_cmp_lg_u64 vcc, 0")
            a(f"s_cbranch_scc1 K5_P{kq}")
            a.label(f"K5_G{kq}")
            xst(2); xst(3)
            for i, t in enumerate(keep):
                acc = ACC + 4 * t
                if i == 0: xst(4)
                if i == nk - 1: xst(5)
                for k in range(NSRC):
                    r = 32 + 4 * (NSRC * i + k)
                    a(f"v_pk_add_f32 v[{acc}:{acc+1}], v[{acc}:{acc+1}], v[{r}:{r+1}]")
                    a(f"v_pk_add_f32 v[{acc+2}:{acc+3}], v[{acc+2}:{acc+3}], v[{r+2}:{r+3}]")
                O = 24 + 2 * (i % 2)
                for p in range(2):
                    x = 16 + 4 * p
                    a(f"v_cvt_pk_bf16_f32 v{x+2}, v{acc+2*p}, v{acc+2*p+1}")
                    a(f"v_lshlrev_b32 v{x}, 16, v{x+2}")
                    a(f"v_and_b32 v{x+1}, 0xffff0000, v{x+2}")
                    a(f"v_add_f32 v{x}, v{x}, v{BV}")
                    a(f"v_add_f32 v{x+1}, v{x+1}, v{BV}")
                    a(f"v_cvt_pk_bf16_f32 v{x+2}, v{x}, v{x+1}")
                    a(f"v_lshlrev_b32 v{x}, 16, v{x+2}")
                    a(f"v_and_b32 v{x+1}, 0xffff0000, v{x+2}")
                    a(f"v_lshlrev_b32 v{x+2}, 16, v{HV+4*i+2*p}")
                    a(f"v_lshlrev_b32 v{x+3}, 16, v{HV+4*i+2*p+1}")
                    a(f"v_add_f32 v{x}, v{x}, v{x+2}")
                    a(f"v_add_f32 v{x+1}, v{x+1}, v{x+3}")
                    a(f"v_cvt_pk_bf16_f32 v{O+p}, v{x}, v{x+1}")
                a(f"buffer_store_dwordx2 v[{O}:{O+1}], v9, s[16:19], s38 offen offset:{16*SK*i}")
            if XST:
                a("s_waitcnt vmcnt(0)")
                xst(6)
                a("s_waitcnt lgkmcnt(0)")
                for i in range(7): a(f"v_mov_b32 v{32+i}, s{40+2*i}")
                a(f"v_mov_b32 v39, s36")
                a("s_lshl_b32 s72, s2, 2")
                a("s_add_u32 s72, s72, s27")
                a("s_lshl_b32 s72, s72, 5")
                a(f"s_add_u32 s72, s72, {0x2800000}")
                a("v_mov_b32 v28, 0")
                a("s_mov_b64 exec, 1")
                a("buffer_store_dwordx4 v[32:35], v28, s[12:15], s72 offen")
                a("buffer_store_dwordx4 v[36:39], v28, s[12:15], s72 offen offset:16")
                a("s_mov_b64 exec, -1")
            a("s_branch K5_END")
            if kq < SK - 1: a.label(f"K5_X{kq+1}")
            continue
        a("s_waitcnt vmcnt(0)")
        xst(2)
        a("v_mov_b32 v13, 1")
        a("v_mov_b32 v14, 0")
        a(f"s_add_u32 s31, s34, {kq*512}")
        a("s_mov_b64 exec, 1")
        a("buffer_store_dword v13, v14, s[12:15], s31 offen sc1")
        a(f"s_mov_b64 exec, {(1 << SK) - 1}")
        needm = ((1 << SK) - 1) & ~(1 << kq)
        a("s_mov_b32 s36, 0x100000")
        a.label(f"K5_P{kq}")
        a("s_sub_u32 s36, s36, 1")
        a("s_cmp_eq_u32 s36, 0")
        a(f"s_cbranch_scc1 K5_G{kq}")
        a("buffer_load_dword v13, v12, s[12:15], s34 offen sc1")
        a("s_waitcnt vmcnt(0)")
        a("v_cmp_ne_u32 vcc, 0, v13")
        a(f"s_and_b32 s35, vcc_lo, {needm}")
        a(f"s_cmp_eq_u32 s35, {needm}")
        a(f"s_cbranch_scc1 K5_G{kq}")
        a("s_sleep 1")
        a(f"s_branch K5_P{kq}")
        a.label(f"K5_G{kq}")
        a("s_mov_b64 exec, -1")
        xst(3)
        srcs = [s_ for s_ in range(SK) if s_ != kq]
        NSRC = SK - 1
        for i, t in enumerate(keep):
            for k, s_ in enumerate(srcs):
                off = s_ * SRCS + t * 2048
                r = 32 + 4 * (NSRC * i + k)
                a(f"s_add_u32 s31, s30, {off}")
                a(f"buffer_load_dwordx4 v[{r}:{r+3}], v10, s[12:15], s31 offen sc1")
        nk = len(keep)
        for i, t in enumerate(keep):
            acc = ACC + 4 * t
            a(f"s_waitcnt vmcnt({NSRC*(nk-1-i) + (i // 2 if O16 else i)})")
            if i == 0: xst(4)
            if i == nk - 1: xst(5)
            for k in range(NSRC):
                r = 32 + 4 * (NSRC * i + k)
                a(f"v_pk_add_f32 v[{acc}:{acc+1}], v[{acc}:{acc+1}], v[{r}:{r+1}]")
                a(f"v_pk_add_f32 v[{acc+2}:{acc+3}], v[{acc+2}:{acc+3}], v[{r+2}:{r+3}]")
            O = 24 + 2 * (i % 2)
            if O16: O = 24 + 4 * ((i // 2) % 2) + 2 * (i % 2)
            for p in range(2):
                x = 16 + 4 * p
                a(f"v_cvt_pk_bf16_f32 v{x+2}, v{acc+2*p}, v{acc+2*p+1}")
                a(f"v_lshlrev_b32 v{x}, 16, v{x+2}")
                a(f"v_and_b32 v{x+1}, 0xffff0000, v{x+2}")
                a(f"v_add_f32 v{x}, v{x}, v{BV}")
                a(f"v_add_f32 v{x+1}, v{x+1}, v{BV}")
                a(f"v_cvt_pk_bf16_f32 v{x+2}, v{x}, v{x+1}")
                a(f"v_lshlrev_b32 v{x}, 16, v{x+2}")
                a(f"v_and_b32 v{x+1}, 0xffff0000, v{x+2}")
                a(f"v_lshlrev_b32 v{x+2}, 16, v{HV+4*i+2*p}")
                a(f"v_lshlrev_b32 v{x+3}, 16, v{HV+4*i+2*p+1}")
                a(f"v_add_f32 v{x}, v{x}, v{x+2}")
                a(f"v_add_f32 v{x+1}, v{x+1}, v{x+3}")
                a(f"v_cvt_pk_bf16_f32 v{O+p}, v{x}, v{x+1}")
            if O16:
                if i % 2 == 1:
                    B_ = O - 2
                    a(f"v_permlane16_swap_b32 v{B_}, v{B_+2}")
                    a(f"v_permlane16_swap_b32 v{B_+1}, v{B_+3}")
                    a(f"buffer_store_dwordx4 v[{B_}:{B_+3}], v9, s[16:19], s38 offen offset:{32*(i-1)}" + (" sc1" if i // 2 < opt_int('osc1', 0) else ""))
            else:
                a(f"buffer_store_dwordx2 v[{O}:{O+1}], v9, s[16:19], s38 offen offset:{16*SK*i}")
        if XST:
            a("s_waitcnt vmcnt(0)")
            xst(6)
            a("s_waitcnt lgkmcnt(0)")
            for i in range(7): a(f"v_mov_b32 v{32+i}, s{40+2*i}")
            a(f"v_mov_b32 v39, s36")
            a("s_lshl_b32 s72, s2, 2")
            a("s_add_u32 s72, s72, s27")
            a("s_lshl_b32 s72, s72, 5")
            a(f"s_add_u32 s72, s72, {0x2800000}")
            a("v_mov_b32 v28, 0")
            a("s_mov_b64 exec, 1")
            a("buffer_store_dwordx4 v[32:35], v28, s[12:15], s72 offen")
            a("buffer_store_dwordx4 v[36:39], v28, s[12:15], s72 offen offset:16")
            a("s_mov_b64 exec, -1")
        a("s_branch K5_END")
        if kq < SK - 1: a.label(f"K5_X{kq+1}")

    mark1 = len(a.lines)
    a.label("K5_PROD")
    a("s_sub_u32 s28, s27, 4")
    if FH:
        a("v_and_b32 v4, 15, v1")
        a("s_lshl_b32 s29, s28, 4")
        a("v_lshrrev_b32 v5, 1, v4")
        a("v_add_u32 v6, s29, v3")
        a("v_and_b32 v4, 1, v4")
        a("v_lshlrev_b32 v6, 12, v6")
        a("v_xor_b32 v7, v3, v5")
        a("v_lshl_add_u32 v6, v4, 4, v6")
        a("s_mul_i32 s59, s25, 9")
        a("v_lshl_add_u32 v10, v7, 5, v6")
        a(f"s_mul_i32 s58, s24, {NSTG}")
        a("v_xor_b32 v7, 4, v7")
        a("s_add_u32 s58, s58, s59")
        a("v_lshl_add_u32 v11, v7, 5, v6")
        a("s_lshl_b32 s32, s4, 8")
        a("v_lshrrev_b32 v16, 3, v1")
        a("s_lshl_b32 s60, s58, 18")
        a(f"v_add_u32 v11, {16384 - 1024}, v11")
        a("s_add_u32 s32, s32, s60")
        a("v_lshlrev_b32 v16, 10, v16")
        a(f"s_mul_i32 s33, s58, {12*ABLK}")
        a("v_and_b32 v17, 7, v1")
        a(f"s_add_u32 s33, s33, {WS_G - 4096}")
        a("v_lshl_add_u32 v16, v17, 4, v16")
        a("s_and_b32 s35, s28, 1")
        a(f"v_add_u32 v12, {32768 - 2048}, v10")
        a("s_lshl_b32 s35, s35, 9")
        a(f"v_add_u32 v13, {32768 - 2048}, v11")
        a("s_lshr_b32 s36, s28, 1")
        a("s_lshl_b32 s37, s5, 1")
        a("s_add_u32 s37, s37, s36")
        a("s_lshl_b32 s37, s37, 13")
        a("s_add_u32 s35, s35, s37")
        a("s_add_u32 s35, s35, 4096")
        a("v_add_u32 v17, s35, v16")
        a(f"s_sub_u32 s58, {NSTG}, s59")
        a("v_subrev_u32 v18, 896, v17")
        a("s_mov_b32 s57, 0x40000")
        a("v_subrev_u32 v19, 1792, v17")
        a(f"s_mov_b32 s63, {0x40000*NSTG}")
        a("s_lshl_b32 s40, s28, 12")
        a("s_mul_i32 s46, s28, 3072")
        a(f"s_add_u32 s46, s46, {S_ACT0}")
        for s_ in range(1, NS):
            a(f"s_add_u32 s{40+s_}, s40, {s_*S_W}")
            a(f"s_add_u32 s{46+s_}, s46, {s_*S_A}")
        a("s_waitcnt lgkmcnt(0)")
        if BST: a("s_memrealtime s[74:75]")
        srd(a, 8, 16, 17, 4608 * 4096)
        srd(a, 12, 6, 7, WS_END3)
        mark_skip = len(a.lines)
    srd(a, 8, 16, 17, 4608 * 4096)
    a("s_movk_i32 s30, 4096")
    a("s_lshl_b32 s32, s4, 8")
    if 'nocopy5' not in OPT:
        a("s_and_b32 s31, s4, 3")
        a("s_cmp_lg_u32 s31, 1")
        a("s_cbranch_scc1 K5_NOCP")
        a(f"s_movk_i32 s30, {W2D_PITCH}")
        a("s_lshr_b32 s32, s4, 2")
        a("s_lshl_b32 s32, s32, 9")
        a(f"s_add_u32 s32, s32, {WS_W2D}")
        srd(a, 8, 6, 7, WS_END3)
        a.label("K5_NOCP")
    a("s_lshl_b32 s57, s30, 6")
    a(f"s_mul_i32 s58, s24, {NSTG}")
    a("s_mul_i32 s59, s25, 9")
    if 'jrot' in OPT:
        JR = opt_int('jrs', NSTG * 2 // NMT)
        a(f"s_mul_i32 s60, s5, {JR}")
        a("s_lshr_b32 s60, s60, 1")
        a("s_add_u32 s59, s59, s60")
        a(f"s_sub_u32 s60, s59, {NSTG}")
        a("s_min_u32 s59, s59, s60")
        a(f"s_sub_u32 s60, s59, {NSTG}")
        a("s_min_u32 s59, s59, s60")
    a("s_add_u32 s58, s58, s59")
    a("s_mul_i32 s60, s58, s57")
    a("s_add_u32 s32, s32, s60")
    a(f"s_mul_i32 s33, s58, {12*ABLK}")
    a(f"s_add_u32 s33, s33, {WS_G - 4096}")
    a(f"s_sub_u32 s58, {NSTG}, s59")
    a(f"s_mul_i32 s63, s57, {NSTG}")
    a("v_and_b32 v4, 15, v1")
    a("v_lshrrev_b32 v5, 1, v4")
    a("v_and_b32 v4, 1, v4")
    a("s_lshl_b32 s29, s28, 4")
    a("v_add_u32 v6, s29, v3")
    a("v_mul_lo_u32 v6, v6, s30")
    a("v_lshl_add_u32 v6, v4, 4, v6")
    for qq in range(4):
        a(f"v_or_b32 v7, {(qq & 1) << 2}, v3")
        a("v_xor_b32 v7, v7, v5")
        a(f"v_lshl_add_u32 v{10+qq}, v7, 5, v6")
        if qq:
            a(f"s_mul_i32 s31, s30, {4*qq}")
            a(f"s_sub_u32 s31, s31, {1024*qq}")
            a(f"v_add_u32 v{10+qq}, s31, v{10+qq}")
    a("v_lshrrev_b32 v16, 3, v1")
    a("v_lshlrev_b32 v16, 10, v16")
    a("v_and_b32 v17, 7, v1")
    a("v_lshl_add_u32 v16, v17, 4, v16")
    if SK == 4:
        a("s_mul_i32 s34, s28, 5")
        a("s_lshl_b32 s35, s28, 2")
        a("s_add_u32 s35, s35, 2")
        a("s_cmp_lt_u32 s28, 2")
        a("s_cselect_b32 s34, s34, s35")
        NAP = 5
    else:
        a("s_mul_i32 s34, s28, 3")
        NAP = 3
    a(f"s_mul_i32 s61, s5, {MF}")
    for i in range(NAP):
        a(f"s_add_u32 s35, s34, {i}")
        a(f"s_cmp_ge_u32 s35, {MF}")
        a("s_cselect_b32 s36, 1, 0")
        a(f"s_mul_i32 s37, s36, {MF}")
        a("s_sub_u32 s35, s35, s37")
        a("s_add_u32 s35, s35, s61")
        a("s_mul_i32 s37, s35, 43")
        a("s_lshr_b32 s37, s37, 8")
        a("s_mul_i32 s62, s37, 6")
        a("s_sub_u32 s35, s35, s62")
        a("s_cmp_ge_u32 s35, 3")
        a("s_addc_u32 s35, s35, 0")
        a("s_lshl_b32 s35, s35, 7")
        a("s_lshl_b32 s37, s37, 1")
        a("s_add_u32 s37, s37, s36")
        a(f"s_lshl_b32 s37, s37, 13")
        a("s_add_u32 s35, s35, s37")
        a(f"s_add_u32 s35, s35, {4096 - 1024*(i % 4)}")
        a(f"v_add_u32 v{17+i}, s35, v16")
    for s_ in range(NS):
        a("s_lshl_b32 s30, s28, 12")
        a(f"s_add_u32 s{40+s_}, s30, {s_*S_W}")
        a("s_lshl_b32 s30, s34, 10")
        a(f"s_add_u32 s{46+s_}, s30, {S_ACT0 + s_*S_A}")
        a(f"s_add_u32 s{66+s_}, s{46+s_}, 4096")
    if FH: del a.lines[mark_skip:]
    def issue(k, na):
        sl = k % NS
        a(f"s_mov_b32 m0, s{40+sl}")
        for qq in range(4): a(f"buffer_load_dwordx4 v{10+qq}, s[8:11], s32 offen offset:{1024*qq} lds")
        a(f"s_mov_b32 m0, s{46+sl}")
        for i in range(min(na, 4)): a(f"buffer_load_dwordx4 v{17+i}, s[12:15], s33 offen offset:{1024*i} lds")
        for i in range(opt_int('dup5', 0)): a(f"buffer_load_dwordx4 v{17+i}, s[12:15], s33 offen offset:{1024*i} lds")
        if na == 5:
            a(f"s_mov_b32 m0, s{66+sl}")
            a("buffer_load_dwordx4 v21, s[12:15], s33 offen lds")
        a("s_add_u32 s32, s32, s57")
        a(f"s_add_u32 s33, s33, {12*ABLK}")
        a("s_sub_u32 s58, s58, 1")
        a("s_cmp_eq_u32 s58, 0")
        a("s_cselect_b32 s59, s63, 0")
        a(f"s_cselect_b32 s64, {NSTG*12*ABLK}, 0")
        a("s_sub_u32 s32, s32, s59")
        a("s_sub_u32 s33, s33, s64")
    EB = opt_int('eb5', 2)
    variants = (5, 4) if SK == 4 else (3,)
    if SK == 4:
        a("s_cmp_ge_u32 s28, 2")
        a("s_cbranch_scc1 K5_PR4")
    for na in variants:
        PPS = 4 + na + opt_int('dup5', 0)
        if BST: a("s_memrealtime s[76:77]")
        for k in range(EB): issue(k, na)
        if BST: a("s_memrealtime s[78:79]")
        a(f"s_waitcnt vmcnt({(EB-1)*PPS})")
        if BST: a("s_memrealtime s[80:81]")
        a("s_barrier")
        for k in range(EB, NS): issue(k, na)
        XL = 0
        for k in range(1, NSTG):
            a(f"s_waitcnt vmcnt({(min(k + NS - 2, NSTG - 1) - k) * PPS + XL})")
            a("s_barrier")
            if k + NS - 1 < NSTG: issue(k + NS - 1, na)
            if k + NS - 1 == NSTG - 1 and 'cpff' in OPT:
                a("s_lshl_b32 s70, s28, 13")
                code_pf(a, f"F{na}", "k5_kernel", "K5_PROD", [0], 72, 1, 24, 26, backward=True, schunk=70)
                XL = 1
        if BST:
            a("s_waitcnt lgkmcnt(0)")
            a("v_mov_b32 v24, s94"); a("v_mov_b32 v25, s74"); a("v_mov_b32 v26, s76"); a("v_mov_b32 v27, s78"); a("v_mov_b32 v28, s80"); a("v_mov_b32 v29, 0")
            a("s_lshl_b32 s72, s2, 2"); a("s_add_u32 s72, s72, s28"); a("s_lshl_b32 s72, s72, 5")
            a(f"s_add_u32 s72, s72, {0x2800000 + 0x10000}")
            a("s_mov_b64 exec, 1")
            a("buffer_store_dwordx4 v[24:27], v29, s[12:15], s72 offen")
            a("buffer_store_dword v28, v29, s[12:15], s72 offen offset:16")
            a("s_mov_b64 exec, -1")
        a("s_branch K5_END")
        if na == 5: a.label("K5_PR4")
    if FH:
        a.lines[mark0:] = a.lines[mark1:] + a.lines[mark0:mark1]
    if PF[5].nwg:
        a.label("K5_PREF")
        gen_prefetch(a, 5, K5S_NWG, "K5_END")
    a.label("K5_END")
    kst_end(a, 4, NG)
    a("s_endpgm")
    return name, BV + 4, K5S_LDS
```
